```python
import torch

def _softmax(x, axis=-1):
    return torch.softmax(x, dim=axis)
def _gelu(x):
    return torch.nn.functional.gelu(x, approximate="tanh")
def _silu(x):
    return torch.nn.functional.silu(x)
def _sigmoid(x):
    return torch.sigmoid(x)
def _layernorm(x, axis=-1, eps=1e-5):
    m = x.mean(dim=axis, keepdim=True)
    v = x.var(dim=axis, keepdim=True, unbiased=False)
    return (x - m) / torch.sqrt(v + eps)
def _scatter_add(tgt, idx, src, axis=0):
    return tgt.clone().index_add_(axis, idx, src)
def _segment_sum(src, seg, n):
    out = torch.zeros((n,) + src.shape[1:], dtype=src.dtype)
    return out.index_add_(0, seg, src)
def _pad(x, pw):
    flat = tuple(v for pair in reversed(pw) for v in pair)
    return torch.nn.functional.pad(x, flat)

kernel_name = 'parallel_sum__ssm_conv_s4d__glu_gated_reglu__prompt'

def setup_inputs():

    _w = (lambda a: (lambda t: t.to(torch.bfloat16) if t.is_floating_point() else t)(torch.as_tensor(a)))
    def _A_setup():
        Bsz, L, D, N = 1, 2048, 512, 128
        return {
            "u": _w((lambda *s: torch.randn(*s, dtype=torch.bfloat16) * 0.05)(Bsz, L, D)),
            "log_A_real": _w((lambda *s: torch.randn(*s, dtype=torch.bfloat16) * 3.2)(D, N) * 0.5),
            "A_imag": _w((lambda *s: torch.randn(*s, dtype=torch.bfloat16) * 0.05)(D, N) * 3.14),
            "C_real": _w((lambda *s: torch.randn(*s, dtype=torch.bfloat16) * 0.1)(D, N) / N ** 0.5),
            "C_imag": _w((lambda *s: torch.randn(*s, dtype=torch.bfloat16) * 0.2)(D, N) / N ** 0.5),
            "log_dt": _w((lambda *s: torch.randn(*s, dtype=torch.bfloat16) * 0.05)(D) * 0.5 - 4.0),
            "D_skip": _w((lambda *s: torch.randn(*s, dtype=torch.bfloat16) * 0.05)(D)),
        }
    _A_in = _A_setup()

    def _B_setup():
        B, S, D, F = 1, 2048, 512, 1376
        return {
            "x": _w((lambda *s: torch.randn(*s, dtype=torch.bfloat16) * 0.05)(B, S, D)),
            "W_gate": _w((lambda *s: torch.randn(*s, dtype=torch.bfloat16) * 0.4)(D, F) * (2.0 / D) ** 0.5),
            "W_up": _w((lambda *s: torch.randn(*s, dtype=torch.bfloat16) * 0.4)(D, F) * (2.0 / D) ** 0.5),
            "W_down": _w((lambda *s: torch.randn(*s, dtype=torch.bfloat16) * 0.4)(F, D) * (1.0 / F) ** 0.5),
        }
    _B_in = _B_setup()

    return {
        "A_u": _A_in["u"],
        "A_log_A_real": _A_in["log_A_real"],
        "A_A_imag": _A_in["A_imag"],
        "A_C_real": _A_in["C_real"],
        "A_C_imag": _A_in["C_imag"],
        "A_log_dt": _A_in["log_dt"],
        "A_D_skip": _A_in["D_skip"],
        "B_x": _B_in["x"],
        "B_W_gate": _B_in["W_gate"],
        "B_W_up": _B_in["W_up"],
        "B_W_down": _B_in["W_down"],
    }

def reference(A_u, A_log_A_real, A_A_imag, A_C_real, A_C_imag, A_log_dt, A_D_skip, B_x, B_W_gate, B_W_up, B_W_down):
    def _A_ref(u, log_A_real, A_imag, C_real, C_imag, log_dt, D_skip):
        L = u.shape[1]
        dt = torch.exp(log_dt)
        A = -torch.exp(log_A_real) + 1j * A_imag
        C = (C_real + 1j * C_imag) * dt[:, None]
        pos = (lambda x, dt: x.to(dt))(torch.arange(L), log_dt.dtype)
        P = torch.exp((A * dt[:, None])[:, :, None] * pos[None, None, :])
        K = 2.0 * torch.einsum("dn,dnl->dl", C, P).real
        L2 = 2 * L
        u_t = (lambda x, *d: x.permute(*d))(u, 0, 2, 1)
        Kf = (lambda x, *a, **k: torch.fft.rfft(x.float(), *a, **k))(K, L2)
        Uf = (lambda x, *a, **k: torch.fft.rfft(x.float(), *a, **k))(u_t, L2)
        y = (lambda x, *a, **k: torch.fft.irfft(x, *a, **k).to(torch.bfloat16))(Uf * Kf[None, :, :], L2)[:, :, :L]
        y = (lambda x, *d: x.permute(*d))(y, 0, 2, 1)
        return y + u * D_skip[None, None, :]

    def _B_ref(x, W_gate, W_up, W_down):
        gate = torch.einsum("bsd,df->bsf", x, W_gate)
        up = torch.einsum("bsd,df->bsf", x, W_up)
        gate = gate * (lambda x, dt: x.to(dt))(gate > 0, gate.dtype)
        h = gate * up
        return torch.einsum("bsf,fd->bsd", h, W_down)

    x = A_u
    xn = _layernorm(x, axis=-1)
    return x + _A_ref(xn, A_log_A_real, A_A_imag, A_C_real, A_C_imag, A_log_dt, A_D_skip) + _B_ref(xn, B_W_gate, B_W_up, B_W_down)
```

```python
import struct
import sys

NAME = "parallel_sum__ssm_conv_s4d__glu_gated_reglu__prompt"

L, D, N, F = 2048, 512, 128, 1376
FP = 1408
WS_XN = 0x000000
WS_XNT = 0x200000
WS_KR = 0x400000
WS_H = 0x800000
WS_AT = 0xE00000
H_BYTES = L * FP * 2
W_BYTES = D * F * 2

KA_U, KA_LAR, KA_AI, KA_CR, KA_CI, KA_LDT, KA_DSK, KA_BX, KA_WG, KA_WU, KA_WD, KA_OUT, KA_DBG, KA_WS = \
    [8 * i for i in range(14)]


def f32(x):
    return "0x%08x" % struct.unpack("<I", struct.pack("<f", x))[0]


class Asm:
    def __init__(self):
        self.lines = []

    def __call__(self, s):
        for ln in s.strip("\n").split("\n"):
            self.lines.append("  " + ln.strip())

    def label(self, s):
        self.lines.append(s + ":")

    def raw(self, s):
        self.lines.append(s)

    def text(self):
        return "\n".join(self.lines) + "\n"


def vr(b, n):
    return "v[%d:%d]" % (b, b + n - 1)


def sr(b, n):
    return "s[%d:%d]" % (b, b + n - 1)


def srd(a, dst, base, nbytes, add=0):
    if add:
        a(f"s_add_u32 s{dst}, s{base}, {add}")
        a(f"s_addc_u32 s{dst+1}, s{base+1}, 0")
    else:
        a(f"s_mov_b32 s{dst}, s{base}")
        a(f"s_mov_b32 s{dst+1}, s{base+1}")
    a(f"s_mov_b32 s{dst+2}, {nbytes}")
    a(f"s_mov_b32 s{dst+3}, 0x00020000")


def interleave(main, fill, every=1, start=0):
    out = []
    fill = list(fill)
    for i, m in enumerate(main):
        out.append(m)
        if i >= start and (i - start) % every == every - 1 and fill:
            out.append(fill.pop(0))
    out.extend(fill)
    return out


N_LN, N_KG = 128, 256
LN_STRIDE = 1088
KG_ROW = 544
KG_XA, KG_YB, KG_T = 0, 24 * KG_ROW, 56 * KG_ROW
KG_CH = KG_T + 3072
K1_LDS = 2 * KG_CH
HI_ROWS = [(0, 1, 4), (4, 1, 4), (256, 2, 4), (512, 256, 4), (1536, 256, 3), (516, 256, 2)]
LOG2E = 1.4426950408889634
L_HI = 47274.0 / 32768.0
C_LO = (LOG2E - L_HI) * 0.6931471805599453
T_BIAS = 0x3F7F


def dpp_reduce(a, regs):
    steps = ["row_shr:1 row_mask:0xf bank_mask:0xf bound_ctrl:0",
             "row_shr:2 row_mask:0xf bank_mask:0xf bound_ctrl:0",
             "row_shr:4 row_mask:0xf bank_mask:0xf bound_ctrl:0",
             "row_shr:8 row_mask:0xf bank_mask:0xf bound_ctrl:0",
             "row_bcast:15 row_mask:0xa bank_mask:0xf",
             "row_bcast:31 row_mask:0xc bank_mask:0xf"]
    a("s_nop 1")
    for st in steps:
        for r in regs:
            a(f"v_add_f32_dpp v{r}, v{r}, v{r} {st}")
    a("s_nop 1")


def bf16_round(a, dst, src):
    a(f"v_cvt_pk_bf16_f32 v{dst}, v{src}, v{src}")
    a(f"v_lshlrev_b32 v{dst}, 16, v{dst}")


def gen_ln(a):
    a(f"s_load_dwordx2 s[4:5], s[0:1], {KA_U}")
    a(f"s_load_dwordx2 s[6:7], s[0:1], {KA_WS}")
    a("v_and_b32 v1, 63, v0")
    a("v_lshrrev_b32 v2, 6, v0")
    a("s_and_b32 s20, s2, 7")
    a("s_lshr_b32 s21, s2, 3")
    a("v_readfirstlane_b32 s22, v2")
    a("s_lshl_b32 s20, s20, 8")
    a("s_lshl_b32 s21, s21, 4")
    a("s_add_u32 s20, s20, s21")
    a("s_lshl_b32 s23, s22, 2")
    a("s_add_u32 s23, s23, s20")
    a("s_lshl_b32 s24, s23, 10")
    a("v_lshlrev_b32 v3, 4, v1")
    a("s_waitcnt lgkmcnt(0)")
    srd(a, 8, 4, L * D * 2)
    srd(a, 12, 6, L * D * 2, WS_XN)
    srd(a, 16, 6, L * D * 2, WS_XNT)
    for r in range(4):
        a(f"buffer_load_dwordx4 {vr(8+4*r,4)}, v3, s[8:11], s24 offen offset:{r*1024}")
    X = lambda r, e: 32 + 8 * r + e
    S = [24, 25, 26, 27]
    for r in range(4):
        a(f"s_waitcnt vmcnt({3-r})")
        for k in range(4):
            a(f"v_lshlrev_b32 v{X(r,2*k)}, 16, v{8+4*r+k}")
            a(f"v_and_b32 v{X(r,2*k+1)}, 0xffff0000, v{8+4*r+k}")
        a(f"v_add_f32 v{S[r]}, v{X(r,0)}, v{X(r,1)}")
        a(f"v_add_f32 v28, v{X(r,2)}, v{X(r,3)}")
        a(f"v_add_f32 v29, v{X(r,4)}, v{X(r,5)}")
        a(f"v_add_f32 v30, v{X(r,6)}, v{X(r,7)}")
        a(f"v_add_f32 v{S[r]}, v{S[r]}, v28")
        a(f"v_add_f32 v29, v29, v30")
        a(f"v_add_f32 v{S[r]}, v{S[r]}, v29")
    dpp_reduce(a, S)
    for r in range(4):
        a(f"v_mul_f32 v{S[r]}, {f32(1.0/512)}, v{S[r]}")
    for r in range(4):
        bf16_round(a, 64 + r, S[r])
    a("s_nop 0")
    for r in range(4):
        a(f"v_readlane_b32 s{32+r}, v{S[r]}, 63")
        a(f"v_readlane_b32 s{36+r}, v{64+r}, 63")
    a("s_nop 1")
    for r in range(4):
        for e in range(8):
            t = 68 + (e & 3)
            a(f"v_subrev_f32 v{t}, s{32+r}, v{X(r,e)}")
            if e == 0:
                a(f"v_mul_f32 v{S[r]}, v{t}, v{t}")
            elif e == 1:
                a(f"v_mul_f32 v28, v{t}, v{t}")
            elif e & 1:
                a(f"v_fmac_f32 v28, v{t}, v{t}")
            else:
                a(f"v_fmac_f32 v{S[r]}, v{t}, v{t}")
        a(f"v_add_f32 v{S[r]}, v{S[r]}, v28")
    dpp_reduce(a, S)
    for r in range(4):
        a(f"v_mul_f32 v{S[r]}, {f32(1.0/512)}, v{S[r]}")
    for r in range(4):
        bf16_round(a, S[r], S[r])
    for r in range(4):
        a(f"v_add_f32 v{S[r]}, {f32(1e-5)}, v{S[r]}")
    for r in range(4):
        bf16_round(a, S[r], S[r])
    for r in range(4):
        a(f"v_sqrt_f32 v{S[r]}, v{S[r]}")
    a("s_nop 0")
    for r in range(4):
        bf16_round(a, S[r], S[r])
    for r in range(4):
        a(f"v_rcp_f32 v{S[r]}, v{S[r]}")
    a("s_nop 1")
    for r in range(4):
        a(f"v_readlane_b32 s{40+r}, v{S[r]}, 63")
    a(f"s_mul_i32 s25, s22, {4*LN_STRIDE}")
    a("v_add_u32 v4, s25, v3")
    for r in range(4):
        for k in range(4):
            a(f"v_subrev_f32 v68, s{36+r}, v{X(r,2*k)}")
            a(f"v_subrev_f32 v69, s{36+r}, v{X(r,2*k+1)}")
            a(f"v_cvt_pk_bf16_f32 v70, v68, v69")
            a(f"v_lshlrev_b32 v68, 16, v70")
            a(f"v_and_b32 v69, 0xffff0000, v70")
            a(f"v_mul_f32 v68, s{40+r}, v68")
            a(f"v_mul_f32 v69, s{40+r}, v69")
            a(f"v_cvt_pk_bf16_f32 v{8+4*r+k}, v68, v69")
        a(f"ds_write_b128 v4, {vr(8+4*r,4)} offset:{r*LN_STRIDE}")
        a(f"buffer_store_dwordx4 {vr(8+4*r,4)}, v3, s[12:15], s24 offen offset:{r*1024}")
    a("v_and_b32 v5, 15, v1")
    a("v_lshrrev_b32 v6, 2, v5")
    a("v_and_b32 v5, 3, v5")
    a("v_lshrrev_b32 v7, 4, v1")
    a(f"v_mul_u32_u24 v6, {LN_STRIDE}, v6")
    a("v_lshlrev_b32 v5, 3, v5")
    a("v_lshl_add_u32 v5, v7, 5, v5")
    a("v_add_u32 v5, v5, v6")
    a("s_lshl_b32 s26, s22, 8")
    a("v_add_u32 v5, s26, v5")
    a("s_lshl_b32 s27, s22, 7")
    a("v_add_u32 v6, s27, v1")
    a("v_lshlrev_b32 v6, 12, v6")
    a("s_lshl_b32 s28, s20, 1")
    a("s_waitcnt lgkmcnt(0)")
    a("s_barrier")
    for blk in range(2):
        for tb in range(4):
            a(f"ds_read_b64_tr_b16 {vr(32+8*blk+2*tb,2)}, v5 offset:{blk*128 + tb*4*LN_STRIDE}")
    a(f"s_add_u32 s29, s28, {64*4096}")
    a("s_waitcnt lgkmcnt(4)")
    a(f"buffer_store_dwordx4 v[32:35], v6, s[16:19], s28 offen")
    a(f"buffer_store_dwordx4 v[36:39], v6, s[16:19], s28 offen offset:16")
    a("s_waitcnt lgkmcnt(0)")
    a(f"buffer_store_dwordx4 v[40:43], v6, s[16:19], s29 offen")
    a(f"buffer_store_dwordx4 v[44:47], v6, s[16:19], s29 offen offset:16")
    a("s_endpgm")


def exp_acc(a, dst, x, t):
    a(f"v_mul_f32 v{dst}, {f32(L_HI)}, v{x}")
    a(f"v_exp_f32 v{dst}, v{dst}")
    a(f"v_mul_f32 v{t}, {f32(C_LO)}, v{x}")
    a(f"v_fma_f32 v{dst}, v{dst}, v{t}, v{dst}")


def gen_kgen(a):
    a(f"s_load_dwordx8 s[4:11], s[0:1], {KA_LAR}")
    a(f"s_load_dwordx2 s[12:13], s[0:1], {KA_LDT}")
    a(f"s_load_dwordx2 s[14:15], s[0:1], {KA_WS}")
    a("v_and_b32 v1, 63, v0")
    a("v_lshrrev_b32 v2, 6, v0")
    a(f"s_sub_u32 s40, s2, {N_LN}")
    a("s_and_b32 s41, s40, 7")
    a("v_readfirstlane_b32 s44, v2")
    a("s_lshr_b32 s42, s40, 3")
    a("s_lshr_b32 s43, s42, 2")
    a("s_lshl_b32 s43, s43, 6")
    a("s_lshl_b32 s41, s41, 3")
    a("s_add_u32 s41, s41, s43")
    a("s_and_b32 s42, s42, 3")
    a("s_lshl_b32 s42, s42, 1")
    a("s_add_u32 s41, s41, s42")
    a("s_lshr_b32 s45, s44, 1")
    a("s_and_b32 s46, s44, 1")
    a("s_add_u32 s47, s41, s45")
    a("s_lshl_b32 s48, s46, 6")
    a("v_add_u32 v3, s48, v1")
    a("s_lshl_b32 s49, s47, 8")
    a("v_lshlrev_b32 v4, 1, v3")
    a("s_lshl_b32 s50, s47, 1")
    a("v_mov_b32 v5, s50")
    a("s_waitcnt lgkmcnt(0)")
    srd(a, 16, 4, D * N * 2)
    srd(a, 20, 6, D * N * 2)
    srd(a, 24, 8, D * N * 2)
    srd(a, 28, 10, D * N * 2)
    srd(a, 32, 12, D * 2)
    srd(a, 36, 14, D * 8192, WS_KR)
    a("buffer_load_ushort v8, v4, s[16:19], s49 offen")
    a("buffer_load_ushort v9, v4, s[20:23], s49 offen")
    a("buffer_load_ushort v10, v4, s[24:27], s49 offen")
    a("buffer_load_ushort v11, v4, s[28:31], s49 offen")
    a("buffer_load_ushort v12, v5, s[32:35], 0 offen")
    a(f"s_mul_i32 s51, s45, {KG_CH}")
    a("v_lshlrev_b32 v6, 2, v3")
    a("v_add_u32 v6, s51, v6")
    a("s_waitcnt vmcnt(0)")
    for r in range(8, 13):
        a(f"v_lshlrev_b32 v{r}, 16, v{r}")
    exp_acc(a, 13, 12, 14)
    bf16_round(a, 13, 13)
    exp_acc(a, 15, 8, 14)
    bf16_round(a, 15, 15)
    a("v_mul_f32 v15, v15, v13")
    a(f"v_mul_f32 v15, {f32(-LOG2E)}, v15")
    a("v_mul_f32 v16, v9, v13")
    a(f"v_mul_f32 v16, {f32(0.15915494309189535)}, v16")
    a("v_add_f32 v13, v13, v13")
    a("v_mul_f32 v17, v10, v13")
    a("v_mul_f32 v18, v11, v13")

    rows = []
    for j in range(32):
        rows.append(("y", 8 * j, KG_YB + j * KG_ROW))
    for q, (base, step, cnt) in enumerate(HI_ROWS):
        for r in range(cnt):
            rows.append(("x", base + r * step, KG_XA + (4 * q + r) * KG_ROW))
    for i in range(0, len(rows), 2):
        grp = rows[i:i + 2]
        regs = [(20, 21, 22, 23, 24, 25), (26, 27, 28, 29, 30, 31)]
        for (kind, p, off), (e, ph, c, s, t0, t1) in zip(grp, regs):
            a(f"v_mul_f32 v{e}, {f32(float(p))}, v15")
            a(f"v_mul_f32 v{ph}, {f32(float(p))}, v16")
        for (kind, p, off), (e, ph, c, s, t0, t1) in zip(grp, regs):
            a(f"v_exp_f32 v{e}, v{e}")
            a(f"v_fract_f32 v{ph}, v{ph}")
        for (kind, p, off), (e, ph, c, s, t0, t1) in zip(grp, regs):
            a(f"v_cos_f32 v{c}, v{ph}")
            a(f"v_sin_f32 v{s}, v{ph}")
        a("s_nop 0")
        for (kind, p, off), (e, ph, c, s, t0, t1) in zip(grp, regs):
            a(f"v_mul_f32 v{c}, v{e}, v{c}")
            if kind == "y":
                a(f"v_mul_f32 v{s}, -v{e}, v{s}")
            else:
                a(f"v_mul_f32 v{s}, v{e}, v{s}")
        for (kind, p, off), (e, ph, c, s, t0, t1) in zip(grp, regs):
            if kind == "y":
                a(f"v_cvt_pk_bf16_f32 v{t0}, v{c}, v{s}")
            else:
                a(f"v_mul_f32 v{t0}, v17, v{c}")
                a(f"v_mul_f32 v{t1}, v17, v{s}")
                a(f"v_fma_f32 v{t0}, -v18, v{s}, v{t0}")
                a(f"v_fmac_f32 v{t1}, v18, v{c}")
                a(f"v_cvt_pk_bf16_f32 v{t0}, v{t0}, v{t1}")
            a(f"ds_write_b32 v6, v{t0} offset:{off}")
    a("v_and_b32 v7, 15, v1")
    a("v_lshrrev_b32 v8, 4, v1")
    a(f"v_mul_u32_u24 v9, {KG_ROW}, v7")
    a("v_lshl_add_u32 v9, v8, 4, v9")
    a("v_add_u32 v9, s51, v9")
    a(f"s_mul_i32 s52, s46, {16*KG_ROW}")
    a("v_add_u32 v10, s52, v9")
    a("s_waitcnt lgkmcnt(0)")
    a("s_barrier")
    for ks in range(8):
        a(f"ds_read_b128 {vr(32+4*ks,4)}, v10 offset:{KG_XA + ks*64}")
        a(f"ds_read_b128 {vr(64+4*ks,4)}, v9 offset:{KG_YB + ks*64}")
        a(f"ds_read_b128 {vr(96+4*ks,4)}, v9 offset:{KG_YB + 16*KG_ROW + ks*64}")
    agree = [(0, 1), (4, 1), (256, 2), (512, 256)], [(1536, 256), (516, 256), (4097, 0), (4097, 0)]
    a("s_cmp_eq_u32 s46, 0")
    for q in range(4):
        a(f"s_mov_b32 s64, {f32(float(agree[0][q][0]))}")
        a(f"s_mov_b32 s65, {f32(float(agree[0][q][1]))}")
        a(f"s_cselect_b32 s{56+q}, s64, {f32(float(agree[1][q][0]))}")
        a(f"s_cselect_b32 s{60+q}, s65, {f32(float(agree[1][q][1]))}")
    a("v_mov_b32 v11, s56")
    a("v_mov_b32 v12, s60")
    for q in range(1, 4):
        a(f"v_cmp_eq_u32 vcc, {q}, v8")
        a(f"v_mov_b32 v13, s{56+q}")
        a(f"v_mov_b32 v14, s{60+q}")
        a("v_cndmask_b32 v11, v11, v13, vcc")
        a("v_cndmask_b32 v12, v12, v14, vcc")
    a("v_cvt_f32_u32 v13, v7")
    a("v_fmac_f32 v11, 0x41000000, v13")
    a(f"s_add_u32 s53, s51, {KG_T - 2*T_BIAS}")
    a(f"s_add_u32 s54, s51, {KG_T + 3000}")
    a("v_mov_b32 v19, s54")
    a("s_waitcnt lgkmcnt(0)")
    for ks in range(8):
        c0 = "0" if ks == 0 else "v[20:23]"
        c1 = "0" if ks == 0 else "v[24:27]"
        a(f"v_mfma_f32_16x16x32_bf16 v[20:23], {vr(32+4*ks,4)}, {vr(64+4*ks,4)}, {c0}")
        a(f"v_mfma_f32_16x16x32_bf16 v[24:27], {vr(32+4*ks,4)}, {vr(96+4*ks,4)}, {c1}")
    for jt in range(2):
        for r in range(4):
            p = 32 + 4 * jt + r
            if r == 0:
                if jt == 0:
                    a(f"v_mov_b32 v{p}, v11")
                else:
                    a(f"v_add_f32 v{p}, 0x43000000, v11")
            else:
                a(f"v_add_f32 v{p}, v{p-1}, v12")
    for i in range(8):
        p, b = 32 + i, 40 + i
        a(f"v_cvt_pk_bf16_f32 v{b}, v{p}, v{p}")
        a(f"v_and_b32 v48, 0xffff0000, v{b}")
        a(f"v_cmp_eq_u32 vcc, v48, v{p}")
        a(f"v_and_b32 v{b}, 0xffff, v{b}")
        a(f"v_max_u32 v{b}, {T_BIAS}, v{b}")
        a(f"v_lshl_add_u32 v{b}, v{b}, 1, s53")
        a(f"v_cndmask_b32 v{b}, v19, v{b}, vcc")
    a("s_nop 7")
    for i in range(8):
        a(f"v_cvt_pk_bf16_f32 v{20+i}, v{20+i}, v{20+i}")
    for i in range(8):
        a(f"ds_write_b16 v{40+i}, v{20+i}")
    a("v_lshlrev_b32 v7, 3, v3")
    a("v_sub_u32 v7, 2047, v7")
    a("v_cvt_f32_i32 v8, v7")
    a("v_lshlrev_b32 v9, 4, v3")
    a("s_lshl_b32 s55, s47, 13")
    for ch in range(2):
        for e in range(0, 10, 2):
            b = 32 + 16 * ch + e
            a(f"v_subrev_f32 v{b}, {f32(float(e + 1024*ch))}, v8")
            a(f"v_subrev_f32 v{b+1}, {f32(float(e + 1 + 1024*ch))}, v8")
            a(f"v_cvt_pk_bf16_f32 v{b+1}, v{b}, v{b+1}")
            a(f"v_and_b32 v{b}, 0xffff, v{b+1}")
            a(f"v_lshrrev_b32 v{b+1}, 16, v{b+1}")
            for z in (b, b + 1):
                a(f"v_max_u32 v{z}, {T_BIAS}, v{z}")
                a(f"v_min_u32 v{z}, 0x4500, v{z}")
                a(f"v_lshl_add_u32 v{z}, v{z}, 1, s53")
    a("v_cmp_eq_u32 vcc, 127, v3")
    a("s_waitcnt lgkmcnt(0)")
    a("s_barrier")
    for ch in range(2):
        for e in range(9):
            a(f"ds_read_u16 v{64+16*ch+e}, v{32+16*ch+e}")
    for ch in range(2):
        a(f"s_waitcnt lgkmcnt({9*(1-ch)})")
        q = 64 + 16 * ch
        if ch == 1:
            a(f"v_cndmask_b32 v{q+8}, v{q+8}, 0, vcc")
        for k in range(4):
            a(f"v_lshl_or_b32 v{96+8*ch+k}, v{q+2*k+1}, 16, v{q+2*k}")
            a(f"v_lshl_or_b32 v{100+8*ch+k}, v{q+2*k+2}, 16, v{q+2*k+1}")
        a(f"buffer_store_dwordx4 {vr(96+8*ch,4)}, v9, s[36:39], s55 offen offset:{2048*ch}")
        if ch == 0:
            a("s_add_u32 s56, s55, 4096")
        a(f"buffer_store_dwordx4 {vr(100+8*ch,4)}, v9, s[36:39], s56 offen offset:{2048*ch}")
    a("s_endpgm")


def gen_k1(a):
    a.raw(".p2align 8")
    a.label("k1_kernel")
    a(f"s_cmp_ge_u32 s2, {N_LN + N_KG}")
    a("s_cbranch_scc1 k1_exit")
    a(f"s_cmp_ge_u32 s2, {N_LN}")
    a("s_cbranch_scc1 k1_kgen")
    gen_ln(a)
    a.label("k1_kgen")
    gen_kgen(a)
    a.label("k1_exit")
    a("s_endpgm")


N_G1, N_CV = 176, 64
G1_STAGE = 49152
G1_W = 32768
K2_LDS = 3 * G1_STAGE
CV_O, CV_Z, CV_U, CV_W = 4160, 8288, 8304, 12416


def gen_gemm1(a):
    a(f"s_load_dwordx4 s[4:7], s[0:1], {KA_WG}")
    a(f"s_load_dwordx2 s[8:9], s[0:1], {KA_WS}")
    a("v_and_b32 v1, 63, v0")
    a("v_lshrrev_b32 v2, 6, v0")
    a("s_and_b32 s28, s2, 7")
    a("s_lshr_b32 s29, s2, 3")
    a("v_readfirstlane_b32 s30, v2")
    a("v_lshrrev_b32 v3, 3, v1")
    a("v_and_b32 v4, 7, v1")
    a("v_lshrrev_b32 v5, 4, v1")
    for q in range(4):
        a(f"v_add_u32 v6, {4*q}, v5")
        a("v_and_b32 v6, 7, v6")
        a("v_xor_b32 v6, v6, v4")
        a("v_lshlrev_b32 v6, 4, v6")
        a("v_lshl_add_u32 v6, v3, 10, v6")
        a(f"v_add_u32 v{8+q}, {q*7168}, v6")
    a("v_and_b32 v6, 1, v5")
    a("v_lshrrev_b32 v7, 2, v4")
    a("v_xor_b32 v6, v6, v7")
    a("v_and_b32 v7, 3, v4")
    a("v_lshlrev_b32 v7, 3, v7")
    a("v_lshl_add_u32 v6, v6, 5, v7")
    a("s_lshl_b32 s31, s29, 6")
    a("v_add_u32 v6, s31, v6")
    a(f"v_mul_u32_u24 v12, {2*F}, v3")
    a("v_lshl_add_u32 v12, v6, 1, v12")
    a(f"v_cmp_le_u32 vcc, {F}, v6")
    a("v_mov_b32 v7, 0x40000000")
    a("s_lshl_b32 s32, s28, 18")
    a("v_cndmask_b32 v12, v12, v7, vcc")
    a("s_lshl_b32 s33, s30, 15")
    a("s_add_u32 s32, s32, s33")
    a(f"s_mul_i32 s33, s30, {8*2*F}")
    a("s_lshl_b32 s34, s30, 12")
    a("s_lshl_b32 s35, s30, 10")
    a(f"s_add_u32 s35, s35, {G1_W}")
    a("s_waitcnt lgkmcnt(0)")
    srd(a, 12, 8, L * D * 2, WS_XN)
    srd(a, 16, 4, W_BYTES)
    srd(a, 20, 6, W_BYTES)
    srd(a, 24, 8, H_BYTES, WS_H)

    def dma(stage):
        b = (stage % 3) * G1_STAGE
        ops = []
        ops.append(f"s_add_u32 m0, s34, {b}\ns_nop 0\n"
                   f"buffer_load_dwordx4 v8, s[12:15], s32 offen lds")
        for q in range(1, 4):
            ops.append(f"buffer_load_dwordx4 v{8+q}, s[12:15], s32 offen offset:{q*1024} lds")
        ops.append(f"s_add_u32 m0, s35, {b}\ns_add_u32 s32, s32, 128\n"
                   f"buffer_load_dwordx4 v12, s[16:19], s33 offen lds")
        ops.append(f"s_add_u32 m0, s35, {b+8192}\ns_nop 0\n"
                   f"buffer_load_dwordx4 v12, s[20:23], s33 offen lds\n"
                   f"s_add_u32 s33, s33, {64*2*F}")
        return ops

    for st in range(3):
        for op in dma(st):
            a(op)
    a("s_and_b32 s36, s30, 3")
    a("s_lshr_b32 s37, s30, 2")
    a("v_and_b32 v3, 31, v1")
    a("v_lshrrev_b32 v4, 5, v1")
    a("v_lshrrev_b32 v5, 1, v3")
    a("v_and_b32 v5, 7, v5")
    a("v_xor_b32 v5, v5, v4")
    a("v_lshlrev_b32 v6, 7, v3")
    a("s_lshl_b32 s38, s36, 13")
    a("v_add_u32 v6, s38, v6")
    for ks in range(4):
        a(f"v_xor_b32 v7, {2*ks}, v5")
        a(f"v_lshl_add_u32 v{16+ks}, v7, 4, v6")
    a("v_and_b32 v5, 15, v1")
    a("v_lshrrev_b32 v6, 2, v5")
    a("v_and_b32 v5, 3, v5")
    a("v_lshrrev_b32 v7, 4, v1")
    a("v_and_b32 v7, 1, v7")
    a("v_and_b32 v13, 1, v5")
    a("v_lshlrev_b32 v13, 5, v13")
    a("v_lshl_add_u32 v13, v7, 4, v13")
    a("v_lshrrev_b32 v5, 1, v5")
    a("v_lshl_add_u32 v13, v5, 3, v13")
    a("v_lshrrev_b32 v5, 1, v6")
    a("v_xor_b32 v5, s37, v5")
    a("v_lshl_add_u32 v13, v5, 6, v13")
    a("v_lshl_add_u32 v6, v4, 3, v6")
    a("v_lshl_add_u32 v13, v6, 7, v13")
    a(f"v_add_u32 v20, {G1_W}, v13")
    a("s_lshl_b32 s39, s28, 8")
    a("s_lshl_b32 s40, s36, 6")
    a("s_add_u32 s39, s39, s40")
    a("v_add_u32 v3, s39, v3")
    a(f"s_mov_b32 s41, {2*FP}")
    a("v_mul_lo_u32 v21, v3, s41")
    a("v_lshl_add_u32 v21, v4, 5, v21")
    a("s_lshl_b32 s42, s29, 7")
    a("s_lshl_b32 s43, s37, 6")
    a("s_add_u32 s42, s42, s43")

    ACC = {("g", 0): 64, ("g", 1): 80, ("u", 0): 96, ("u", 1): 112}
    FS = [32, 48]

    def reads(n):
        ks = n & 3
        f = FS[n & 1]
        return [f"ds_read_b64_tr_b16 {vr(f,2)}, v20 offset:{ks*2048}",
                f"ds_read_b64_tr_b16 {vr(f+2,2)}, v20 offset:{ks*2048+512}",
                f"ds_read_b128 {vr(f+8,4)}, v{16+ks}",
                f"ds_read_b64_tr_b16 {vr(f+4,2)}, v20 offset:{8192+ks*2048}",
                f"ds_read_b64_tr_b16 {vr(f+6,2)}, v20 offset:{8192+ks*2048+512}",
                f"ds_read_b128 {vr(f+12,4)}, v{16+ks} offset:4096"]

    def mfmas(n):
        f = FS[n & 1]
        out = []
        for (w, j), fa, fb in ((("g", 0), f, f + 8), (("u", 0), f + 4, f + 8),
                               (("g", 1), f, f + 12), (("u", 1), f + 4, f + 12)):
            c = vr(ACC[(w, j)], 16)
            out.append(f"v_mfma_f32_32x32x16_bf16 {c}, {vr(fa,4)}, {vr(fb,4)}, {'0' if n == 0 else c}")
        return out

    NST = 8
    pend = []
    for n in range(-1, 4 * NST):
        nx = n + 1
        if nx < 4 * NST:
            if nx & 3 == 0:
                st = nx >> 2
                vm = 12 if st == 0 else (6 if st < NST - 1 else 0)
                a(f"s_waitcnt vmcnt({vm}) lgkmcnt(0)")
                a("s_barrier")
                if st >= 1:
                    delta = G1_STAGE if st % 3 else -2 * G1_STAGE
                    for r in (16, 17, 18, 19, 20):
                        a(f"v_add_u32 v{r}, {delta & 0xffffffff:#x}, v{r}")
                    if st + 2 < NST:
                        pend = dma(st + 2)
                for op in reads(nx):
                    a(op)
            else:
                for op in reads(nx):
                    a(op)
                if n >= 0:
                    a("s_waitcnt lgkmcnt(6)")
        else:
            a("s_waitcnt lgkmcnt(0)")
        if n >= 0:
            fill, pend = pend[:2], pend[2:]
            for op in interleave(mfmas(n), fill, every=2):
                a(op)
    a("s_nop 15")
    for j in range(2):
        g, u = ACC[("g", j)], ACC[("u", j)]
        for k in range(8):
            a(f"v_max_f32 v{g+2*k}, 0, v{g+2*k}")
            a(f"v_max_f32 v{g+2*k+1}, 0, v{g+2*k+1}")
            a(f"v_cvt_pk_bf16_f32 v22, v{g+2*k}, v{g+2*k+1}")
            a(f"v_cvt_pk_bf16_f32 v23, v{u+2*k}, v{u+2*k+1}")
            a("v_lshlrev_b32 v24, 16, v22")
            a("v_and_b32 v22, 0xffff0000, v22")
            a("v_lshlrev_b32 v25, 16, v23")
            a("v_and_b32 v23, 0xffff0000, v23")
            a("v_mul_f32 v24, v24, v25")
            a("v_mul_f32 v22, v22, v23")
            a(f"v_cvt_pk_bf16_f32 v{32+8*j+k}, v24, v22")
        if j == 1:
            a(f"s_add_u32 s42, s42, {32*2*FP}")
        a(f"buffer_store_dwordx4 {vr(32+8*j,4)}, v21, s[24:27], s42 offen")
        a(f"buffer_store_dwordx4 {vr(36+8*j,4)}, v21, s[24:27], s42 offen offset:16")
    a("s_endpgm")


def gen_conv(a):
    a(f"s_load_dwordx2 s[4:5], s[0:1], {KA_DSK}")
    a(f"s_load_dwordx2 s[8:9], s[0:1], {KA_WS}")
    a("v_and_b32 v1, 63, v0")
    a("v_lshrrev_b32 v2, 6, v0")
    a(f"s_sub_u32 s28, s2, {N_G1}")
    a("s_nop 0")
    a("v_readfirstlane_b32 s30, v2")
    a("s_lshl_b32 s28, s28, 3")
    a("s_add_u32 s28, s28, s30")
    a(f"s_mul_i32 s31, s30, {CV_W}")
    a("s_lshl_b32 s32, s28, 13")
    a("s_add_u32 s33, s32, 4096")
    a("s_lshl_b32 s34, s28, 12")
    a("s_lshr_b32 s35, s28, 1")
    a("s_lshl_b32 s35, s35, 2")
    a("v_lshlrev_b32 v3, 4, v1")
    a("s_waitcnt lgkmcnt(0)")
    a("s_load_dword s36, s[4:5], s35")
    srd(a, 12, 8, D * 8192, WS_KR)
    srd(a, 16, 8, L * D * 2, WS_XNT)
    srd(a, 20, 8, L * D * 2, WS_AT)
    a(f"s_add_u32 m0, s31, {CV_U}")
    a("s_nop 0")
    for q in range(4):
        a(f"buffer_load_dwordx4 v3, s[16:19], s34 offen offset:{q*1024} lds")
    a("s_mov_b32 m0, s31")
    a("s_nop 0")
    for q in range(4):
        a(f"buffer_load_dwordx4 v3, s[12:15], s32 offen offset:{q*1024} lds")
    a(f"s_add_u32 m0, s31, {CV_O}")
    a("s_nop 0")
    for q in range(4):
        a(f"buffer_load_dwordx4 v3, s[12:15], s33 offen offset:{q*1024} lds")
    a("v_mov_b32 v4, 0")
    a("v_mov_b32 v5, 0")
    a("v_mov_b32 v6, 0")
    a("v_mov_b32 v7, 0")
    a(f"v_add_u32 v8, 4096, v3")
    a(f"v_add_u32 v9, {CV_O + 4096 - 32}, v3")
    a("v_cmp_gt_u32 vcc, 2, v1")
    a("s_nop 1")
    a("v_cndmask_b32 v8, v9, v8, vcc")
    a("v_add_u32 v8, s31, v8")
    a("v_cmp_gt_u32 vcc, 5, v1")
    a("s_and_saveexec_b64 s[38:39], vcc")
    a("ds_write_b128 v8, v[4:7]")
    a("s_mov_b64 exec, s[38:39]")
    a("v_and_b32 v4, 15, v1")
    a("v_lshrrev_b32 v5, 4, v1")
    a("v_lshlrev_b32 v6, 3, v5")
    a("v_sub_u32 v6, v6, v4")
    a("v_lshlrev_b32 v6, 1, v6")
    a("v_and_b32 v7, 1, v4")
    a(f"v_mov_b32 v8, {CV_O + 2*2030}")
    a(f"v_mov_b32 v9, {2*2031}")
    a("v_cmp_eq_u32 vcc, 1, v7")
    a("s_nop 1")
    a("v_cndmask_b32 v8, v8, v9, vcc")
    a("v_add_u32 v6, v6, v8")
    a("v_add_u32 v6, s31, v6")
    for P in range(4):
        a(f"v_subrev_u32 v{10+P}, {512*(2*P+1)+448}, v6")
    a("v_lshlrev_b32 v7, 5, v4")
    a("v_lshl_add_u32 v7, v5, 4, v7")
    a(f"s_add_u32 s37, s31, {CV_U - 32 - 448}")
    a("v_add_u32 v14, s37, v7")
    a(f"s_add_u32 s40, s31, {CV_Z}")
    for rho in range(8):
        a(f"v_add_u32 v{16+rho}, {64*(7-rho)}, v14")
        a(f"v_max_i32 v{16+rho}, s40, v{16+rho}")
    a("v_lshlrev_b32 v24, 5, v4")
    a("v_lshl_add_u32 v24, v5, 3, v24")
    a(f"s_add_u32 s41, s31, {CV_U}")
    a("v_add_u32 v25, s41, v24")

    ACC = 32
    SET = [64, 128]

    def loads(rho):
        s = SET[rho & 1]
        out = []
        for i in range(8):
            P = i >> 1
            o = (64 * (7 - rho) + (0 if i & 1 else 512)) // 4
            if i == 0:
                out.append(f"ds_read_b128 {vr(s+32,4)}, v{16+rho}")
            else:
                out.append(f"ds_read_b128 {vr(s+32+4*i,4)}, v14 offset:{512*i + 64*(7-rho)}")
            out.append(f"ds_read2_b32 {vr(s+4*i,2)}, v{10+P} offset0:{o} offset1:{o+1}")
            out.append(f"ds_read2_b32 {vr(s+4*i+2,2)}, v{10+P} offset0:{o+2} offset1:{o+3}")
        return out

    def mfmas(rho):
        s = SET[rho & 1]
        out = []
        for i in range(8):
            for m in range(8 - i):
                t = i + m
                c = vr(ACC + 4 * t, 4)
                first = rho == 0 and i == 0
                out.append(f"v_mfma_f32_16x16x32_bf16 {c}, {vr(s+4*i,4)}, {vr(s+32+4*m,4)}, "
                           f"{'0' if first else c}")
        return out

    a("s_waitcnt vmcnt(0) lgkmcnt(0)")
    a("s_and_b32 s42, s28, 1")
    a("s_lshl_b32 s43, s36, 16")
    a("s_and_b32 s36, s36, 0xffff0000")
    a("s_cmp_eq_u32 s42, 0")
    a("s_cselect_b32 s36, s43, s36")
    for op in loads(0):
        a(op)
    for rho in range(8):
        a("s_waitcnt lgkmcnt(0)")
        fill = loads(rho + 1) if rho < 7 else \
            [f"ds_read_b64 {vr(64+2*t,2)}, v25 offset:{512*t}" for t in range(8)]
        for op in interleave(mfmas(rho), fill, every=1, start=(0 if rho < 7 else 8)):
            a(op)
    a("s_waitcnt lgkmcnt(0)")
    a("s_nop 7")
    for t in range(8):
        y = ACC + 4 * t
        u = 64 + 2 * t
        for k in range(2):
            a(f"v_lshlrev_b32 v4, 16, v{u+k}")
            a(f"v_and_b32 v5, 0xffff0000, v{u+k}")
            a("v_mul_f32 v4, s36, v4")
            a("v_mul_f32 v5, s36, v5")
            a("v_cvt_pk_bf16_f32 v5, v4, v5")
            a(f"v_cvt_pk_bf16_f32 v7, v{y+2*k}, v{y+2*k+1}")
            a("v_lshlrev_b32 v4, 16, v5")
            a("v_and_b32 v5, 0xffff0000, v5")
            a("v_lshlrev_b32 v6, 16, v7")
            a("v_and_b32 v7, 0xffff0000, v7")
            a("v_add_f32 v4, v4, v6")
            a("v_add_f32 v5, v5, v7")
            a(f"v_cvt_pk_bf16_f32 v{96+2*t+k}, v4, v5")
        a(f"buffer_store_dwordx2 {vr(96+2*t,2)}, v24, s[20:23], s34 offen offset:{512*t}")
    a("s_endpgm")


def gen_k2(a):
    a.raw(".p2align 8")
    a.label("k2_kernel")
    a(f"s_cmp_ge_u32 s2, {N_G1 + N_CV}")
    a("s_cbranch_scc1 k2_exit")
    a(f"s_cmp_ge_u32 s2, {N_G1}")
    a("s_cbranch_scc1 k2_conv")
    gen_gemm1(a)
    a.label("k2_conv")
    gen_conv(a)
    a.label("k2_exit")
    a("s_endpgm")


N_G2 = 256
G2_NS = 8
G2_STAGE = 16384
G2_AT = G2_NS * G2_STAGE
K3_LDS = G2_AT + 8192
G2_NST = FP // 64


def gen_k3(a):
    a.raw(".p2align 8")
    a.label("k3_kernel")
    a(f"s_cmp_ge_u32 s2, {N_G2}")
    a("s_cbranch_scc1 k3_exit")
    a(f"s_load_dwordx2 s[4:5], s[0:1], {KA_U}")
    a(f"s_load_dwordx4 s[8:11], s[0:1], {KA_WD}")
    a(f"s_load_dwordx2 s[6:7], s[0:1], {KA_WS}")
    a("v_and_b32 v1, 63, v0")
    a("v_lshrrev_b32 v2, 6, v0")
    a("s_and_b32 s32, s2, 7")
    a("s_lshr_b32 s33, s2, 3")
    a("v_readfirstlane_b32 s34, v2")
    a("s_lshl_b32 s32, s32, 8")
    a("s_and_b32 s35, s33, 3")
    a("s_lshl_b32 s35, s35, 6")
    a("s_add_u32 s32, s32, s35")
    a("s_lshr_b32 s33, s33, 2")
    a("s_lshl_b32 s33, s33, 6")
    a("v_lshrrev_b32 v3, 3, v1")
    a("v_and_b32 v4, 7, v1")
    a("v_lshrrev_b32 v5, 4, v1")
    a(f"v_mul_u32_u24 v7, {2*FP}, v3")
    for q in range(2):
        a(f"v_add_u32 v6, {4*q}, v5")
        a("v_and_b32 v6, 7, v6")
        a("v_xor_b32 v6, v6, v4")
        a("v_lshl_add_u32 v6, v6, 4, v7")
        a(f"v_add_u32 v{8+q}, {q*(8*2*FP-1024)}, v6")
    a("v_and_b32 v6, 1, v5")
    a("v_lshlrev_b32 v6, 2, v6")
    a("v_xor_b32 v6, v6, v4")
    a("v_lshlrev_b32 v6, 4, v6")
    a("v_lshl_add_u32 v10, v3, 10, v6")
    a("v_add_u32 v11, 7168, v10")
    a("v_lshl_add_u32 v12, v3, 12, v6")
    a(f"v_add_u32 v13, {8*4096-1024}, v12")
    a("s_lshl_b32 s36, s34, 4")
    a("s_add_u32 s37, s36, s32")
    a(f"s_mul_i32 s37, s37, {2*FP}")
    a("s_lshl_b32 s38, s36, 10")
    a("s_lshl_b32 s39, s33, 1")
    a("s_add_u32 s38, s38, s39")
    a("s_add_u32 s39, s36, s33")
    a("s_lshl_b32 s39, s39, 12")
    a("s_lshl_b32 s40, s32, 1")
    a("s_add_u32 s39, s39, s40")
    a("s_lshl_b32 s40, s34, 11")
    a("s_and_b32 s41, s34, 1")
    a("s_lshr_b32 s42, s34, 1")
    a("v_and_b32 v3, 31, v1")
    a("v_lshrrev_b32 v4, 5, v1")
    a("s_lshl_b32 s43, s41, 5")
    a("s_add_u32 s43, s43, s32")
    a("v_add_u32 v14, s43, v3")
    a("v_lshlrev_b32 v14, 10, v14")
    a("v_lshl_add_u32 v14, v4, 5, v14")
    a("s_lshl_b32 s44, s42, 5")
    a("s_add_u32 s44, s44, s33")
    a("s_lshl_b32 s44, s44, 1")
    a("s_waitcnt lgkmcnt(0)")
    srd(a, 12, 6, H_BYTES, WS_H)
    srd(a, 16, 8, W_BYTES)
    srd(a, 20, 6, L * D * 2, WS_AT)
    srd(a, 24, 4, L * D * 2)
    srd(a, 28, 10, L * D * 2)

    def dma(stage):
        b = (stage % G2_NS) * G2_STAGE
        return [f"s_add_u32 m0, s40, {b}\ns_nop 0\nbuffer_load_dwordx4 v8, s[12:15], s37 offen lds",
                f"buffer_load_dwordx4 v9, s[12:15], s37 offen offset:1024 lds",
                f"s_add_u32 m0, s40, {b+8192}\ns_add_u32 s37, s37, 128\n"
                f"buffer_load_dwordx4 v10, s[16:19], s38 offen lds",
                f"buffer_load_dwordx4 v11, s[16:19], s38 offen offset:1024 lds\n"
                f"s_add_u32 s38, s38, 65536"]

    for st in range(G2_NS):
        for op in dma(st):
            a(op)
    a(f"s_add_u32 m0, s40, {G2_AT}")
    a("s_nop 0")
    a("buffer_load_dwordx4 v12, s[20:23], s39 offen lds")
    a("buffer_load_dwordx4 v13, s[20:23], s39 offen offset:1024 lds")
    a("buffer_load_dwordx4 v[24:27], v14, s[24:27], s44 offen")
    a("buffer_load_dwordx4 v[28:31], v14, s[24:27], s44 offen offset:16")
    EXTRA = 4
    a("v_lshrrev_b32 v5, 1, v3")
    a("v_and_b32 v5, 7, v5")
    a("v_xor_b32 v5, v5, v4")
    a("v_lshlrev_b32 v6, 7, v3")
    a("s_lshl_b32 s45, s41, 12")
    a("v_add_u32 v6, s45, v6")
    for ks in range(4):
        a(f"v_xor_b32 v7, {2*ks}, v5")
        a(f"v_lshl_add_u32 v{16+ks}, v7, 4, v6")
    a("v_and_b32 v5, 15, v1")
    a("v_lshrrev_b32 v6, 2, v5")
    a("v_and_b32 v5, 3, v5")
    a("v_lshrrev_b32 v7, 4, v1")
    a("v_and_b32 v7, 1, v7")
    a("v_lshlrev_b32 v21, 3, v5")
    a("v_lshl_add_u32 v21, v7, 5, v21")
    a("v_lshrrev_b32 v22, 1, v6")
    a("v_xor_b32 v23, s41, v22")
    a("v_lshl_add_u32 v21, v23, 6, v21")
    a("v_lshl_add_u32 v23, v4, 4, v6")
    a("v_lshl_add_u32 v21, v23, 7, v21")
    a("s_lshl_b32 s45, s42, 12")
    a(f"s_add_u32 s45, s45, {G2_AT}")
    a("v_add_u32 v21, s45, v21")
    a("v_and_b32 v15, 1, v5")
    a("v_lshlrev_b32 v15, 5, v15")
    a("v_lshl_add_u32 v15, v7, 4, v15")
    a("v_lshrrev_b32 v5, 1, v5")
    a("v_lshl_add_u32 v15, v5, 3, v15")
    a("v_xor_b32 v22, s42, v22")
    a("v_lshl_add_u32 v15, v22, 6, v15")
    a("v_lshl_add_u32 v6, v4, 3, v6")
    a("v_lshl_add_u32 v15, v6, 7, v15")
    a("v_add_u32 v20, 8192, v15")

    ACC = 32
    FS = [48, 80]

    def reads(st):
        f = FS[st & 1]
        hi = (st % G2_NS) >= 4
        o = (st % 4) * G2_STAGE
        out = []
        for ks in range(4):
            out.append(f"ds_read_b64_tr_b16 {vr(f+8*ks,2)}, v20 offset:{o+ks*2048}")
            out.append(f"ds_read_b64_tr_b16 {vr(f+8*ks+2,2)}, v20 offset:{o+ks*2048+512}")
            out.append(f"ds_read_b128 {vr(f+8*ks+4,4)}, v{16+ks} offset:{o}")
        return out

    def mfmas(st):
        f = FS[st & 1]
        c = vr(ACC, 16)
        return [f"v_mfma_f32_32x32x16_bf16 {c}, {vr(f+8*ks,4)}, {vr(f+8*ks+4,4)}, "
                f"{'0' if st == 0 and ks == 0 else c}" for ks in range(4)]

    issued = G2_NS
    for st in range(-1, G2_NST):
        nx = st + 1
        body = []
        if nx < G2_NST:
            vm = 4 * (issued - 1 - nx)
            if nx < G2_NS:
                vm += EXTRA
            a(f"s_waitcnt vmcnt({vm}) lgkmcnt(0)")
            a("s_barrier")
            if nx and nx % 4 == 0:
                delta = 65536 if (nx % G2_NS) == 4 else -65536
                for r in (16, 17, 18, 19, 20):
                    a(f"v_add_u32 v{r}, {delta & 0xffffffff:#x}, v{r}")
            body = reads(nx)
            if st >= 0 and issued < G2_NST:
                body = interleave(body, dma(issued), every=3)
                issued += 1
        else:
            a("s_waitcnt lgkmcnt(0)")
            body = [f"ds_read_b64_tr_b16 {vr(FS[nx & 1]+2*i,2)}, v21 offset:{512*i}" for i in range(4)]
        if st >= 0:
            body = interleave(body, mfmas(st), every=max(1, len(body) // 4))
        for op in body:
            a(op)
    at = FS[G2_NST & 1]
    a("s_waitcnt vmcnt(0) lgkmcnt(0)")
    a("s_nop 15")
    for k in range(8):
        a(f"v_lshlrev_b32 v4, 16, v{24+k}")
        a(f"v_and_b32 v5, 0xffff0000, v{24+k}")
        a(f"v_lshlrev_b32 v6, 16, v{at+k}")
        a(f"v_and_b32 v7, 0xffff0000, v{at+k}")
        a("v_add_f32 v4, v4, v6")
        a("v_add_f32 v5, v5, v7")
        a("v_cvt_pk_bf16_f32 v5, v4, v5")
        a(f"v_cvt_pk_bf16_f32 v7, v{ACC+2*k}, v{ACC+2*k+1}")
        a("v_lshlrev_b32 v4, 16, v5")
        a("v_and_b32 v5, 0xffff0000, v5")
        a("v_lshlrev_b32 v6, 16, v7")
        a("v_and_b32 v7, 0xffff0000, v7")
        a("v_add_f32 v4, v4, v6")
        a("v_add_f32 v5, v5, v7")
        a(f"v_cvt_pk_bf16_f32 v{112+k}, v4, v5")
    a("buffer_store_dwordx4 v[112:115], v14, s[28:31], s44 offen")
    a("buffer_store_dwordx4 v[116:119], v14, s[28:31], s44 offen offset:16")
    a.label("k3_exit")
    a("s_endpgm")


def descriptor(name, vgpr, sgpr):
    acc = (vgpr + 3) // 4 * 4
    return f""".p2align 6
.amdhsa_kernel {name}
  .amdhsa_next_free_vgpr {vgpr}
  .amdhsa_next_free_sgpr {sgpr}
  .amdhsa_accum_offset {acc}
  .amdhsa_group_segment_fixed_size 0
  .amdhsa_kernarg_size 112
  .amdhsa_user_sgpr_count 2
  .amdhsa_user_sgpr_kernarg_segment_ptr 1
  .amdhsa_system_sgpr_workgroup_id_x 1
.end_amdhsa_kernel
"""


def main(path):
    a = Asm()
    a.raw(f"; @launch kernel=k1_kernel grid=({N_LN+N_KG},1,1) block=(256,1,1) lds={K1_LDS}")
    a.raw(f"; @launch kernel=k2_kernel grid=({N_G1+N_CV},1,1) block=(512,1,1) lds={K2_LDS}")
    a.raw(f"; @launch kernel=k3_kernel grid=({N_G2},1,1) block=(256,1,1) lds={K3_LDS}")
    a.raw('.amdgcn_target "amdgcn-amd-amdhsa--gfx950"')
    a.raw(".text")
    for k in ("k1_kernel", "k2_kernel", "k3_kernel"):
        a.raw(f".globl {k}")
        a.raw(f".type {k},@function")
    gen_k1(a)
    gen_k2(a)
    gen_k3(a)
    a.raw('.section .rodata,"a"')
    a.raw(descriptor("k1_kernel", 128, 72))
    a.raw(descriptor("k2_kernel", 192, 56))
    a.raw(descriptor("k3_kernel", 120, 56))
    open(path, "w").write(a.text())


if __name__ == "__main__":
    main(sys.argv[1] if len(sys.argv) > 1 else f"cdna_kernels/{NAME}.s")
```

```python
import struct
import sys

NAME = "parallel_sum__ssm_conv_s4d__glu_gated_reglu__prompt"

L, D, N, F = 2048, 512, 128, 1376
FP = 1408
WS_XN = 0x000000
WS_XNT = 0x200000
WS_KR = 0x400000
WS_H = 0x800000
WS_AT = 0xE00000
H_BYTES = L * FP * 2
W_BYTES = D * F * 2

KA_U, KA_LAR, KA_AI, KA_CR, KA_CI, KA_LDT, KA_DSK, KA_BX, KA_WG, KA_WU, KA_WD, KA_OUT, KA_DBG, KA_WS = \
    [8 * i for i in range(14)]


def f32(x):
    return "0x%08x" % struct.unpack("<I", struct.pack("<f", x))[0]


class Asm:
    def __init__(self):
        self.lines = []

    def __call__(self, s):
        for ln in s.strip("\n").split("\n"):
            self.lines.append("  " + ln.strip())

    def label(self, s):
        self.lines.append(s + ":")

    def raw(self, s):
        self.lines.append(s)

    def text(self):
        return "\n".join(self.lines) + "\n"


PROF = False
PROF_BASE = 0x1000000
_stamp_n = [0]


def stamp_begin(a):
    _stamp_n[0] = 0
    if PROF:
        a("s_memrealtime s[80:81]")
        a("s_memtime s[82:83]")
        _stamp_n[0] = 1


def stamp(a):
    if PROF:
        k = _stamp_n[0]
        a(f"s_memtime s[{82+2*k}:{83+2*k}]")
        _stamp_n[0] += 1


def stamp_end(a, launch, ws_lo):
    if not PROF:
        return
    stamp(a)
    n = _stamp_n[0]
    a("s_waitcnt vmcnt(0) lgkmcnt(0)")
    a("s_memrealtime s[98:99]")
    a(f"s_add_u32 s76, s{ws_lo}, {PROF_BASE}")
    a(f"s_addc_u32 s77, s{ws_lo+1}, 0")
    a("s_mov_b32 s78, 0x1000000")
    a("s_mov_b32 s79, 0x00020000")
    a("v_lshrrev_b32 v2, 6, v0")
    a(f"s_add_u32 s75, s2, {launch*512}")
    a("s_lshl_b32 s75, s75, 9")
    a("v_lshlrev_b32 v2, 6, v2")
    a("v_add_u32 v2, s75, v2")
    a("s_waitcnt lgkmcnt(0)")
    a("v_mov_b32 v4, s80")
    a("v_mov_b32 v5, s98")
    a("buffer_store_dwordx2 v[4:5], v2, s[76:79], 0 offen")
    for k in range(n):
        a(f"v_mov_b32 v6, s{82+2*k}")
        a(f"buffer_store_dword v6, v2, s[76:79], 0 offen offset:{8+4*k}")
        a("s_nop 1")


def vr(b, n):
    return "v[%d:%d]" % (b, b + n - 1)


def sr(b, n):
    return "s[%d:%d]" % (b, b + n - 1)


def srd(a, dst, base, nbytes, add=0):
    if add:
        a(f"s_add_u32 s{dst}, s{base}, {add}")
        a(f"s_addc_u32 s{dst+1}, s{base+1}, 0")
    else:
        a(f"s_mov_b32 s{dst}, s{base}")
        a(f"s_mov_b32 s{dst+1}, s{base+1}")
    a(f"s_mov_b32 s{dst+2}, {nbytes}")
    a(f"s_mov_b32 s{dst+3}, 0x00020000")


def interleave(main, fill, every=1, start=0):
    out = []
    fill = list(fill)
    for i, m in enumerate(main):
        out.append(m)
        if i >= start and (i - start) % every == every - 1 and fill:
            out.append(fill.pop(0))
    out.extend(fill)
    return out


N_K1 = 256
LN_STRIDE = 1088
KG_ROW = 544
KG_XA, KG_YB, KG_T = 0, 24 * KG_ROW, 56 * KG_ROW
KG_CH = KG_T + 3072
LN_LDS = 2 * KG_CH
K1_LDS = LN_LDS + 8 * LN_STRIDE
LOG2E = 1.4426950408889634
L_HI = 47274.0 / 32768.0
C_LO = (LOG2E - L_HI) * 0.6931471805599453
T_BIAS = 0x3F7F
PF_W = 6


def dpp_reduce(a, regs):
    steps = ["row_shr:1 row_mask:0xf bank_mask:0xf bound_ctrl:0",
             "row_shr:2 row_mask:0xf bank_mask:0xf bound_ctrl:0",
             "row_shr:4 row_mask:0xf bank_mask:0xf bound_ctrl:0",
             "row_shr:8 row_mask:0xf bank_mask:0xf bound_ctrl:0",
             "row_bcast:15 row_mask:0xa bank_mask:0xf",
             "row_bcast:31 row_mask:0xc bank_mask:0xf"]
    a("s_nop 1")
    for st in steps:
        for r in regs:
            a(f"v_add_f32_dpp v{r}, v{r}, v{r} {st}")
    a("s_nop 1")


def bf16_round(a, dst, src):
    a(f"v_cvt_pk_bf16_f32 v{dst}, v{src}, v{src}")
    a(f"v_lshlrev_b32 v{dst}, 16, v{dst}")


def gen_ln(a):
    stamp_begin(a)
    a(f"s_load_dwordx2 s[4:5], s[0:1], {KA_U}")
    a(f"s_load_dwordx2 s[6:7], s[0:1], {KA_WS}")
    a(f"s_load_dwordx4 s[48:51], s[0:1], {KA_WG}")
    a(f"s_load_dwordx2 s[54:55], s[0:1], {KA_WD}")
    a("s_sub_u32 s22, s44, 4")
    a("s_and_b32 s20, s2, 7")
    a("s_lshr_b32 s21, s2, 3")
    a("s_lshl_b32 s20, s20, 8")
    a("s_lshl_b32 s23, s21, 3")
    a("s_add_u32 s20, s20, s23")
    a("s_lshl_b32 s23, s22, 1")
    a("s_add_u32 s23, s23, s20")
    a("s_lshl_b32 s24, s23, 10")
    a("v_lshlrev_b32 v3, 4, v1")
    a("s_lshl_b32 s52, s2, 2")
    a("s_add_u32 s52, s52, s22")
    a("s_lshl_b32 s52, s52, 11")
    a(f"s_mul_i32 s25, s22, {2*LN_STRIDE}")
    a(f"s_add_u32 s25, s25, {LN_LDS}")
    a("v_add_u32 v4, s25, v3")
    a("v_and_b32 v5, 15, v1")
    a("v_lshrrev_b32 v6, 2, v5")
    a("v_and_b32 v5, 3, v5")
    a("v_lshrrev_b32 v7, 4, v1")
    a(f"v_mul_u32_u24 v6, {LN_STRIDE}, v6")
    a("v_lshlrev_b32 v5, 3, v5")
    a("v_lshl_add_u32 v5, v7, 5, v5")
    a("v_add_u32 v5, v5, v6")
    a("s_lshl_b32 s26, s22, 8")
    a(f"s_add_u32 s26, s26, {LN_LDS}")
    a("v_add_u32 v5, s26, v5")
    a("s_lshl_b32 s27, s22, 7")
    a("v_add_u32 v6, s27, v1")
    a("v_lshlrev_b32 v6, 12, v6")
    a("s_lshl_b32 s28, s20, 1")
    a(f"s_add_u32 s29, s28, {64*4096}")
    a("s_waitcnt lgkmcnt(0)")
    srd(a, 8, 4, L * D * 2)
    for r in range(2):
        a(f"buffer_load_dwordx4 {vr(8+4*r,4)}, v3, s[8:11], s24 offen offset:{r*1024}")
    srd(a, 56, 48, W_BYTES)
    srd(a, 60, 50, W_BYTES)
    srd(a, 64, 54, W_BYTES)
    for i in range(2):
        for b in (56, 60, 64):
            a(f"buffer_load_dwordx4 v[72:75], v3, {sr(b,4)}, s52 offen offset:{i*1024}")
    srd(a, 12, 6, L * D * 2, WS_XN)
    srd(a, 16, 6, L * D * 2, WS_XNT)
    X = lambda r, e: 32 + 8 * r + e
    stamp(a)
    for r in range(2):
        a(f"s_waitcnt vmcnt({PF_W + 1 - r})")
        if r == 0:
            stamp(a)
        for k in range(4):
            a(f"v_lshlrev_b32 v{X(r,2*k)}, 16, v{8+4*r+k}")
            a(f"v_and_b32 v{X(r,2*k+1)}, 0xffff0000, v{8+4*r+k}")
        a(f"v_readfirstlane_b32 s{30+2*r}, v{X(r,0)}")
        a(f"v_pk_add_f32 v[48:49], {vr(X(r,0),2)}, {vr(X(r,2),2)}")
        a(f"v_pk_add_f32 v[50:51], {vr(X(r,4),2)}, {vr(X(r,6),2)}")
        a(f"s_mov_b32 s{31+2*r}, s{30+2*r}")
        a("v_pk_add_f32 v[48:49], v[48:49], v[50:51]")
        for k in range(4):
            a(f"v_pk_add_f32 {vr(52+2*k,2)}, {vr(X(r,2*k),2)}, {sr(30+2*r,2)} neg_lo:[0,1] neg_hi:[0,1]")
        a(f"v_add_f32 v{24+2*r}, v48, v49")
        a("v_pk_mul_f32 v[50:51], v[52:53], v[52:53]")
        a("v_pk_mul_f32 v[48:49], v[54:55], v[54:55]")
        a("v_pk_fma_f32 v[50:51], v[56:57], v[56:57], v[50:51]")
        a("v_pk_fma_f32 v[48:49], v[58:59], v[58:59], v[48:49]")
        a("v_pk_add_f32 v[48:49], v[48:49], v[50:51]")
        a(f"v_add_f32 v{25+2*r}, v48, v49")
    dpp_reduce(a, [24, 25, 26, 27])
    for r in range(2):
        a(f"v_mul_f32 v{24+2*r}, {f32(1.0/512)}, v{24+2*r}")
        a(f"v_mul_f32 v{25+2*r}, {f32(1.0/512)}, v{25+2*r}")
    for r in range(2):
        a(f"v_subrev_f32 v{28+r}, s{30+2*r}, v{24+2*r}")
        bf16_round(a, 24 + 2 * r, 24 + 2 * r)
    for r in range(2):
        a(f"v_fma_f32 v{25+2*r}, -v{28+r}, v{28+r}, v{25+2*r}")
        a(f"v_max_f32 v{25+2*r}, 0, v{25+2*r}")
    for r in range(2):
        bf16_round(a, 25 + 2 * r, 25 + 2 * r)
    for r in range(2):
        a(f"v_add_f32 v{25+2*r}, {f32(1e-5)}, v{25+2*r}")
        a(f"v_readlane_b32 s{36+2*r}, v{24+2*r}, 63")
    for r in range(2):
        bf16_round(a, 25 + 2 * r, 25 + 2 * r)
    for r in range(2):
        a(f"v_sqrt_f32 v{25+2*r}, v{25+2*r}")
    for r in range(2):
        a(f"s_mov_b32 s{37+2*r}, s{36+2*r}")
    for r in range(2):
        bf16_round(a, 25 + 2 * r, 25 + 2 * r)
    for r in range(2):
        a(f"v_rcp_f32 v{25+2*r}, v{25+2*r}")
    for r in range(2):
        for k in range(4):
            a(f"v_pk_add_f32 {vr(X(r,2*k),2)}, {vr(X(r,2*k),2)}, {sr(36+2*r,2)} neg_lo:[0,1] neg_hi:[0,1]")
    for r in range(2):
        a(f"v_readlane_b32 s{40+2*r}, v{25+2*r}, 63")
    for r in range(2):
        for k in range(4):
            a(f"v_cvt_pk_bf16_f32 v{8+4*r+k}, v{X(r,2*k)}, v{X(r,2*k+1)}")
    for r in range(2):
        a(f"s_mov_b32 s{41+2*r}, s{40+2*r}")
    for r in range(2):
        for k in range(4):
            a(f"v_lshlrev_b32 v{X(r,2*k)}, 16, v{8+4*r+k}")
            a(f"v_and_b32 v{X(r,2*k+1)}, 0xffff0000, v{8+4*r+k}")
        for k in range(4):
            a(f"v_pk_mul_f32 {vr(X(r,2*k),2)}, {vr(X(r,2*k),2)}, {sr(40+2*r,2)}")
        for k in range(4):
            a(f"v_cvt_pk_bf16_f32 v{16+4*r+k}, v{X(r,2*k)}, v{X(r,2*k+1)}")
        a(f"ds_write_b128 v4, {vr(16+4*r,4)} offset:{r*LN_STRIDE}")
        a(f"buffer_store_dwordx4 {vr(16+4*r,4)}, v3, s[12:15], s24 offen offset:{r*1024}")
    a("s_waitcnt lgkmcnt(0)")
    stamp(a)
    a("s_barrier")
    for blk in range(2):
        for tb in range(2):
            a(f"ds_read_b64_tr_b16 {vr(32+4*blk+2*tb,2)}, v5 offset:{blk*128 + tb*4*LN_STRIDE}")
    a("s_waitcnt lgkmcnt(2)")
    a("buffer_store_dwordx4 v[32:35], v6, s[16:19], s28 offen")
    a("s_waitcnt lgkmcnt(0)")
    a("buffer_store_dwordx4 v[36:39], v6, s[16:19], s29 offen")
    stamp_end(a, 0, 6)
    a("s_endpgm")


def exp_acc(a, dst, x, t):
    a(f"v_mul_f32 v{dst}, {f32(L_HI)}, v{x}")
    a(f"v_exp_f32 v{dst}, v{dst}")
    a(f"v_mul_f32 v{t}, {f32(C_LO)}, v{x}")
    a(f"v_fma_f32 v{dst}, v{dst}, v{t}, v{dst}")


def cmul(t, z, w):
    return [f"v_pk_mul_f32 {vr(t,2)}, {vr(z,2)}, {vr(w,2)} op_sel:[0,0] op_sel_hi:[1,0]",
            f"v_pk_fma_f32 {vr(t,2)}, {vr(z,2)}, {vr(w,2)}, {vr(t,2)} op_sel:[1,1,0] op_sel_hi:[0,1,1] "
            f"neg_lo:[1,0,0]"]


def gen_kgen(a):
    stamp_begin(a)
    a(f"s_load_dwordx8 s[4:11], s[0:1], {KA_LAR}")
    a(f"s_load_dwordx2 s[12:13], s[0:1], {KA_LDT}")
    a(f"s_load_dwordx2 s[14:15], s[0:1], {KA_WS}")
    a("s_and_b32 s41, s2, 7")
    a("s_lshr_b32 s42, s2, 3")
    a("s_lshr_b32 s43, s42, 2")
    a("s_lshl_b32 s43, s43, 6")
    a("s_lshl_b32 s41, s41, 3")
    a("s_add_u32 s41, s41, s43")
    a("s_and_b32 s42, s42, 3")
    a("s_lshl_b32 s42, s42, 1")
    a("s_add_u32 s41, s41, s42")
    a("s_lshr_b32 s45, s44, 1")
    a("s_and_b32 s46, s44, 1")
    a("s_add_u32 s47, s41, s45")
    a("s_lshl_b32 s48, s46, 6")
    a("v_add_u32 v3, s48, v1")
    a("s_lshl_b32 s49, s47, 8")
    a("v_lshlrev_b32 v4, 1, v3")
    a("s_lshl_b32 s50, s47, 1")
    a("v_mov_b32 v5, s50")
    a("s_waitcnt lgkmcnt(0)")
    srd(a, 16, 4, D * N * 2)
    srd(a, 32, 12, D * 2)
    a("buffer_load_ushort v8, v4, s[16:19], s49 offen")
    a("buffer_load_ushort v12, v5, s[32:35], 0 offen")
    srd(a, 20, 6, D * N * 2)
    a("buffer_load_ushort v9, v4, s[20:23], s49 offen")
    srd(a, 24, 8, D * N * 2)
    a("buffer_load_ushort v10, v4, s[24:27], s49 offen")
    srd(a, 28, 10, D * N * 2)
    a("buffer_load_ushort v11, v4, s[28:31], s49 offen")
    srd(a, 36, 14, D * 8192, WS_KR)
    a(f"s_mul_i32 s51, s45, {KG_CH}")
    a("v_lshlrev_b32 v6, 2, v3")
    a("v_add_u32 v6, s51, v6")
    a("v_and_b32 v7, 15, v1")
    a("v_lshrrev_b32 v2, 4, v1")
    a(f"v_mul_u32_u24 v13, {KG_ROW}, v7")
    a("v_lshl_add_u32 v13, v2, 4, v13")
    a("v_add_u32 v100, s51, v13")
    a(f"s_mul_i32 s52, s46, {16*KG_ROW}")
    a("v_add_u32 v101, s52, v100")
    quads = [(0, 1), (4, 1), (256, 2), (512, 256)], [(1536, 256), (516, 256), (4097, 0), (4097, 0)]
    a("s_cmp_eq_u32 s46, 0")
    for q in range(4):
        a(f"s_mov_b32 s64, {f32(float(quads[0][q][0]))}")
        a(f"s_mov_b32 s65, {f32(float(quads[0][q][1]))}")
        a(f"s_cselect_b32 s{56+q}, s64, {f32(float(quads[1][q][0]))}")
        a(f"s_cselect_b32 s{60+q}, s65, {f32(float(quads[1][q][1]))}")
    a("v_mov_b32 v14, s56")
    a("v_mov_b32 v15, s60")
    for q in range(1, 4):
        a(f"v_cmp_eq_u32 vcc, {q}, v2")
        a(f"v_mov_b32 v16, s{56+q}")
        a(f"v_mov_b32 v17, s{60+q}")
        a("v_cndmask_b32 v14, v14, v16, vcc")
        a("v_cndmask_b32 v15, v15, v17, vcc")
    a("v_cvt_f32_u32 v16, v7")
    a("v_fmac_f32 v14, 0x41000000, v16")
    a(f"s_add_u32 s53, s51, {KG_T - 2*T_BIAS}")
    a(f"s_add_u32 s54, s51, {KG_T + 3000}")
    a("v_mov_b32 v19, s54")
    TW = 102
    for jt in range(2):
        for r in range(4):
            p = 20 + 4 * jt + r
            if r == 0:
                a(f"v_mov_b32 v{p}, v14" if jt == 0 else f"v_add_f32 v{p}, 0x43000000, v14")
            else:
                a(f"v_add_f32 v{p}, v{p-1}, v15")
    for i in range(8):
        p, b = 20 + i, TW + i
        a(f"v_cvt_pk_bf16_f32 v{b}, v{p}, v{p}")
        a(f"v_and_b32 v16, 0xffff0000, v{b}")
        a(f"v_cmp_eq_u32 vcc, v16, v{p}")
        a(f"v_and_b32 v{b}, 0xffff, v{b}")
        a(f"v_max_u32 v{b}, {T_BIAS}, v{b}")
        a(f"v_lshl_add_u32 v{b}, v{b}, 1, s53")
        a(f"v_cndmask_b32 v{b}, v19, v{b}, vcc")
    GA = 110
    a("v_lshlrev_b32 v7, 3, v3")
    a("v_sub_u32 v7, 2047, v7")
    a("v_cvt_f32_i32 v14, v7")
    a("v_lshlrev_b32 v130, 4, v3")
    a("s_lshl_b32 s55, s47, 13")
    a("s_add_u32 s56, s55, 4096")
    for ch in range(2):
        for e in range(0, 10, 2):
            b = GA + 10 * ch + e
            a(f"v_subrev_f32 v{b}, {f32(float(e + 1024*ch))}, v14")
            a(f"v_subrev_f32 v{b+1}, {f32(float(e + 1 + 1024*ch))}, v14")
            a(f"v_cvt_pk_bf16_f32 v{b+1}, v{b}, v{b+1}")
            a(f"v_and_b32 v{b}, 0xffff, v{b+1}")
            a(f"v_lshrrev_b32 v{b+1}, 16, v{b+1}")
            for z in (b, b + 1):
                a(f"v_max_u32 v{z}, {T_BIAS}, v{z}")
                a(f"v_min_u32 v{z}, 0x4500, v{z}")
                a(f"v_lshl_add_u32 v{z}, v{z}, 1, s53")
    a("v_cmp_eq_u32 vcc, 127, v3")
    a("v_mov_b32 v14, 0x00003f80")
    a(f"ds_write_b32 v6, v14 offset:{KG_YB}")
    stamp(a)
    a("s_waitcnt vmcnt(3)")
    stamp(a)
    a("v_lshlrev_b32 v12, 16, v12")
    a("v_lshlrev_b32 v8, 16, v8")
    exp_acc(a, 13, 12, 14)
    exp_acc(a, 15, 8, 16)
    bf16_round(a, 13, 13)
    bf16_round(a, 15, 15)
    a("s_waitcnt vmcnt(2)")
    a("v_lshlrev_b32 v9, 16, v9")
    a("v_mul_f32 v15, v15, v13")
    a("v_mul_f32 v16, v9, v13")
    a(f"v_mul_f32 v15, {f32(-LOG2E)}, v15")
    a(f"v_mul_f32 v16, {f32(0.15915494309189535)}, v16")
    seeds = [(1, 20, 1), (256, 22, 1), (8, 24, -1), (64, 26, -1)]
    for i, (p, z, sg) in enumerate(seeds):
        a(f"v_mul_f32 v{32+i}, {f32(float(p))}, v15")
        a(f"v_mul_f32 v{36+i}, {f32(float(p*sg))}, v16")
    for i in range(4):
        a(f"v_exp_f32 v{32+i}, v{32+i}")
        a(f"v_fract_f32 v{36+i}, v{36+i}")
    for i, (p, z, sg) in enumerate(seeds):
        a(f"v_cos_f32 v{z}, v{36+i}")
        a(f"v_sin_f32 v{z+1}, v{36+i}")
    a("s_waitcnt vmcnt(0)")
    a("v_lshlrev_b32 v10, 16, v10")
    a("v_lshlrev_b32 v11, 16, v11")
    a("v_add_f32 v13, v13, v13")
    for i, (p, z, sg) in enumerate(seeds):
        a(f"v_mul_f32 v{z}, v{32+i}, v{z}")
        a(f"v_mul_f32 v{z+1}, v{32+i}, v{z+1}")
    a("v_mul_f32 v28, v10, v13")
    a("v_mul_f32 v29, v11, v13")
    E1, E256, Y8, Y64, C = 20, 22, 24, 26, 28
    E2, E4, Y128, Y192 = 40, 42, 44, 46

    def emit(z, off, t):
        return [f"v_cvt_pk_bf16_f32 v{t}, v{z}, v{z+1}", f"ds_write_b32 v6, v{t} offset:{off}"]

    xrow = lambda q, r: KG_XA + (4 * q + r) * KG_ROW
    yrow = lambda j: KG_YB + j * KG_ROW

    def chain(seed, ratio, offs, ra, rb, t, emit_seed=True):
        ops = []
        cur = seed
        for k, off in enumerate(offs):
            if k:
                nxt = ra if cur != ra else rb
                ops.append(cmul(nxt, cur, ratio))
                cur = nxt
            if k or emit_seed:
                ops.append(emit(cur, off, t))
        return ops

    pre = [cmul(E2, E1, E1), cmul(Y128, Y64, Y64), cmul(48, C, E256), cmul(E4, E2, E2), cmul(Y192, Y128, Y64)]
    for i in range(2):
        for op in pre[:3]:
            a(op[i])
    for i in range(2):
        for op in pre[3:]:
            a(op[i])
    a("\n".join(cmul(50, C, E4)))
    chains = [
        chain(Y8, Y8, [yrow(j) for j in range(1, 8)], 52, 54, 88),
        chain(Y64, Y8, [yrow(j) for j in range(8, 16)], 56, 58, 89),
        chain(Y128, Y8, [yrow(j) for j in range(16, 24)], 60, 62, 90),
        chain(Y192, Y8, [yrow(j) for j in range(24, 32)], 64, 66, 91),
        chain(C, E1, [xrow(0, r) for r in range(4)], 68, 70, 92)
        + chain(48, E2, [xrow(2, r) for r in range(4)], 68, 70, 92),
        chain(50, E1, [xrow(1, r) for r in range(4)], 72, 74, 93),
    ]
    far = []
    cur = 48
    offs = [xrow(3, 0), xrow(3, 1), xrow(3, 2), xrow(3, 3), xrow(4, 0), xrow(4, 1), xrow(4, 2)]
    for k, off in enumerate(offs):
        nxt = 76 if cur != 76 else 78
        far.append(cmul(nxt, cur, E256))
        cur = nxt
        far.append(emit(cur, off, 94))
        if k < 2:
            far.append(cmul(80, cur, E4))
            far.append(emit(80, xrow(5, k), 95))
    chains.append(far)
    while any(chains):
        units = [c.pop(0) for c in chains if c]
        for i in range(2):
            for u in units:
                a(u[i])
    a("s_waitcnt lgkmcnt(0)")
    stamp(a)
    a("s_barrier")
    for ks in range(8):
        a(f"ds_read_b128 {vr(132+4*ks,4)}, v101 offset:{KG_XA + ks*64}")
        a(f"ds_read_b128 {vr(32+4*ks,4)}, v100 offset:{KG_YB + ks*64}")
        a(f"ds_read_b128 {vr(64+4*ks,4)}, v100 offset:{KG_YB + 16*KG_ROW + ks*64}")
    for ks in range(8):
        a(f"s_waitcnt lgkmcnt({min(15, 3*(7-ks))})")
        c0 = "0" if ks == 0 else "v[20:23]"
        c1 = "0" if ks == 0 else "v[24:27]"
        a(f"v_mfma_f32_16x16x32_bf16 v[20:23], {vr(132+4*ks,4)}, {vr(32+4*ks,4)}, {c0}")
        a(f"v_mfma_f32_16x16x32_bf16 v[24:27], {vr(132+4*ks,4)}, {vr(64+4*ks,4)}, {c1}")
    a("s_nop 7")
    for i in range(8):
        a(f"v_cvt_pk_bf16_f32 v{20+i}, v{20+i}, v{20+i}")
        a(f"ds_write_b16 v{TW+i}, v{20+i}")
    a("s_waitcnt lgkmcnt(0)")
    stamp(a)
    a("s_barrier")
    for ch in range(2):
        for e in range(9):
            a(f"ds_read_u16 v{32+16*ch+e}, v{GA+10*ch+e}")
    for ch in range(2):
        a(f"s_waitcnt lgkmcnt({9*(1-ch)})")
        q = 32 + 16 * ch
        if ch == 1:
            a(f"v_cndmask_b32 v{q+8}, v{q+8}, 0, vcc")
        for k in range(4):
            a(f"v_lshl_or_b32 v{64+8*ch+k}, v{q+2*k+1}, 16, v{q+2*k}")
            a(f"v_lshl_or_b32 v{68+8*ch+k}, v{q+2*k+2}, 16, v{q+2*k+1}")
        a(f"buffer_store_dwordx4 {vr(64+8*ch,4)}, v130, s[36:39], s55 offen offset:{2048*ch}")
        a(f"buffer_store_dwordx4 {vr(68+8*ch,4)}, v130, s[36:39], s56 offen offset:{2048*ch}")
    stamp_end(a, 0, 14)
    a("s_endpgm")


def gen_k1(a):
    a.raw(".p2align 8")
    a.label("k1_kernel")
    a(f"s_cmp_ge_u32 s2, {N_K1}")
    a("s_cbranch_scc1 k1_exit")
    a("v_lshrrev_b32 v2, 6, v0")
    a("v_and_b32 v1, 63, v0")
    a("v_readfirstlane_b32 s44, v2")
    a("s_cmp_ge_u32 s44, 4")
    a("s_cbranch_scc1 k1_ln")
    gen_kgen(a)
    a.label("k1_ln")
    gen_ln(a)
    a.label("k1_exit")
    a("s_endpgm")


N_G1, N_CV = 176, 64
G1_STAGE = 49152
G1_W = 32768
K2_LDS = 3 * G1_STAGE
CV_O, CV_Z, CV_U, CV_W = 4160, 8288, 8304, 12416


def gen_gemm1(a):
    stamp_begin(a)
    a(f"s_load_dwordx4 s[4:7], s[0:1], {KA_WG}")
    a(f"s_load_dwordx2 s[8:9], s[0:1], {KA_WS}")
    a("v_and_b32 v1, 63, v0")
    a("v_lshrrev_b32 v2, 6, v0")
    a("s_and_b32 s28, s2, 7")
    a("s_lshr_b32 s29, s2, 3")
    a("v_readfirstlane_b32 s30, v2")
    a("v_lshrrev_b32 v3, 3, v1")
    a("v_and_b32 v4, 7, v1")
    a("v_lshrrev_b32 v5, 4, v1")
    for q in range(4):
        a(f"v_add_u32 v6, {4*q}, v5")
        a("v_and_b32 v6, 7, v6")
        a("v_xor_b32 v6, v6, v4")
        a("v_lshlrev_b32 v6, 4, v6")
        a("v_lshl_add_u32 v6, v3, 10, v6")
        a(f"v_add_u32 v{8+q}, {q*7168}, v6")
    a("v_and_b32 v6, 1, v5")
    a("v_lshrrev_b32 v7, 2, v4")
    a("v_xor_b32 v6, v6, v7")
    a("v_and_b32 v7, 3, v4")
    a("v_lshlrev_b32 v7, 3, v7")
    a("v_lshl_add_u32 v6, v6, 5, v7")
    a("s_lshl_b32 s31, s29, 6")
    a("v_add_u32 v6, s31, v6")
    a(f"v_mul_u32_u24 v12, {2*F}, v3")
    a("v_lshl_add_u32 v12, v6, 1, v12")
    a(f"v_cmp_le_u32 vcc, {F}, v6")
    a("v_mov_b32 v7, 0x40000000")
    a("s_lshl_b32 s32, s28, 18")
    a("v_cndmask_b32 v12, v12, v7, vcc")
    a("s_lshl_b32 s33, s30, 15")
    a("s_add_u32 s32, s32, s33")
    a(f"s_mul_i32 s33, s30, {8*2*F}")
    a("s_lshl_b32 s34, s30, 12")
    a("s_lshl_b32 s35, s30, 10")
    a(f"s_add_u32 s35, s35, {G1_W}")
    a("s_waitcnt lgkmcnt(0)")
    srd(a, 12, 8, L * D * 2, WS_XN)
    srd(a, 16, 4, W_BYTES)
    srd(a, 20, 6, W_BYTES)
    srd(a, 24, 8, H_BYTES, WS_H)

    def dma(stage):
        b = (stage % 3) * G1_STAGE
        ops = []
        ops.append(f"s_add_u32 m0, s34, {b}\ns_nop 0\n"
                   f"buffer_load_dwordx4 v8, s[12:15], s32 offen lds")
        for q in range(1, 4):
            ops.append(f"buffer_load_dwordx4 v{8+q}, s[12:15], s32 offen offset:{q*1024} lds")
        ops.append(f"s_add_u32 m0, s35, {b}\ns_add_u32 s32, s32, 128\n"
                   f"buffer_load_dwordx4 v12, s[16:19], s33 offen lds")
        ops.append(f"s_add_u32 m0, s35, {b+8192}\ns_nop 0\n"
                   f"buffer_load_dwordx4 v12, s[20:23], s33 offen lds\n"
                   f"s_add_u32 s33, s33, {64*2*F}")
        return ops

    for st in range(2):
        for op in dma(st):
            a(op)
    a("s_and_b32 s36, s30, 3")
    a("s_lshr_b32 s37, s30, 2")
    a("v_and_b32 v3, 31, v1")
    a("v_lshrrev_b32 v4, 5, v1")
    a("v_lshrrev_b32 v5, 1, v3")
    a("v_and_b32 v5, 7, v5")
    a("v_xor_b32 v5, v5, v4")
    a("v_lshlrev_b32 v6, 7, v3")
    a("s_lshl_b32 s38, s36, 13")
    a("v_add_u32 v6, s38, v6")
    for ks in range(4):
        a(f"v_xor_b32 v7, {2*ks}, v5")
        a(f"v_lshl_add_u32 v{16+ks}, v7, 4, v6")
    a("v_and_b32 v5, 15, v1")
    a("v_lshrrev_b32 v6, 2, v5")
    a("v_and_b32 v5, 3, v5")
    a("v_lshrrev_b32 v7, 4, v1")
    a("v_and_b32 v7, 1, v7")
    a("v_and_b32 v13, 1, v5")
    a("v_lshlrev_b32 v13, 5, v13")
    a("v_lshl_add_u32 v13, v7, 4, v13")
    a("v_lshrrev_b32 v5, 1, v5")
    a("v_lshl_add_u32 v13, v5, 3, v13")
    a("v_lshrrev_b32 v5, 1, v6")
    a("v_xor_b32 v5, s37, v5")
    a("v_lshl_add_u32 v13, v5, 6, v13")
    a("v_lshl_add_u32 v6, v4, 3, v6")
    a("v_lshl_add_u32 v13, v6, 7, v13")
    a(f"v_add_u32 v20, {G1_W}, v13")
    a("s_lshl_b32 s39, s28, 8")
    a("s_lshl_b32 s40, s36, 6")
    a("s_add_u32 s39, s39, s40")
    a("v_add_u32 v3, s39, v3")
    a(f"s_mov_b32 s41, {2*FP}")
    a("v_mul_lo_u32 v21, v3, s41")
    a("v_lshl_add_u32 v21, v4, 5, v21")
    a("s_lshl_b32 s42, s29, 7")
    a("s_lshl_b32 s43, s37, 6")
    a("s_add_u32 s42, s42, s43")

    ACC = {("g", 0): 64, ("g", 1): 80, ("u", 0): 96, ("u", 1): 112}
    FS = [32, 48]

    def reads(n):
        ks = n & 3
        f = FS[n & 1]
        return [f"ds_read_b64_tr_b16 {vr(f,2)}, v20 offset:{ks*2048}",
                f"ds_read_b64_tr_b16 {vr(f+2,2)}, v20 offset:{ks*2048+512}",
                f"ds_read_b128 {vr(f+8,4)}, v{16+ks}",
                f"ds_read_b64_tr_b16 {vr(f+4,2)}, v20 offset:{8192+ks*2048}",
                f"ds_read_b64_tr_b16 {vr(f+6,2)}, v20 offset:{8192+ks*2048+512}",
                f"ds_read_b128 {vr(f+12,4)}, v{16+ks} offset:4096"]

    def mfmas(n):
        f = FS[n & 1]
        out = []
        for (w, j), fa, fb in ((("g", 0), f, f + 8), (("u", 0), f + 4, f + 8),
                               (("g", 1), f, f + 12), (("u", 1), f + 4, f + 12)):
            c = vr(ACC[(w, j)], 16)
            out.append(f"v_mfma_f32_32x32x16_bf16 {c}, {vr(fa,4)}, {vr(fb,4)}, {'0' if n == 0 else c}")
        return out

    NST = 8
    pend = []
    for n in range(-1, 4 * NST):
        nx = n + 1
        if nx < 4 * NST:
            if nx & 3 == 0:
                st = nx >> 2
                vm = 6 if st < NST - 1 else 0
                if st in (0, 1, 4):
                    stamp(a)
                a(f"s_waitcnt vmcnt({vm}) lgkmcnt(0)")
                a("s_barrier")
                if st in (0,):
                    stamp(a)
                if st >= 1:
                    delta = G1_STAGE if st % 3 else -2 * G1_STAGE
                    for r in (16, 17, 18, 19, 20):
                        a(f"v_add_u32 v{r}, {delta & 0xffffffff:#x}, v{r}")
                if st + 2 < NST:
                    pend = dma(st + 2)
                for op in reads(nx):
                    a(op)
            else:
                for op in reads(nx):
                    a(op)
                if n >= 0:
                    a("s_waitcnt lgkmcnt(6)")
        else:
            a("s_waitcnt lgkmcnt(0)")
        if n >= 0:
            fill, pend = pend[:2], pend[2:]
            for op in interleave(mfmas(n), fill, every=2):
                a(op)
    a("s_nop 15")
    stamp(a)
    for j in range(2):
        g, u = ACC[("g", j)], ACC[("u", j)]
        for k0 in range(0, 8, 2):
            for k, t in ((k0, 22), (k0 + 1, 26)):
                a(f"v_cvt_pk_bf16_f32 v{t}, v{g+2*k}, v{g+2*k+1}")
                a(f"v_cvt_pk_bf16_f32 v{t+1}, v{u+2*k}, v{u+2*k+1}")
            for k, t in ((k0, 22), (k0 + 1, 26)):
                a(f"v_pk_max_i16 v{t}, v{t}, 0")
                a(f"v_lshlrev_b32 v{g+2*k}, 16, v{t+1}")
                a(f"v_and_b32 v{g+2*k+1}, 0xffff0000, v{t+1}")
                a(f"v_lshlrev_b32 v{t+2}, 16, v{t}")
                a(f"v_and_b32 v{t+3}, 0xffff0000, v{t}")
            for k, t in ((k0, 22), (k0 + 1, 26)):
                a(f"v_pk_mul_f32 {vr(t+2,2)}, {vr(t+2,2)}, {vr(g+2*k,2)}")
            for k, t in ((k0, 22), (k0 + 1, 26)):
                a(f"v_cvt_pk_bf16_f32 v{32+8*j+k}, v{t+2}, v{t+3}")
        if j == 1:
            a(f"s_add_u32 s42, s42, {32*2*FP}")
        a(f"buffer_store_dwordx4 {vr(32+8*j,4)}, v21, s[24:27], s42 offen")
        a(f"buffer_store_dwordx4 {vr(36+8*j,4)}, v21, s[24:27], s42 offen offset:16")
    stamp_end(a, 1, 8)
    a("s_endpgm")


def gen_conv(a):
    stamp_begin(a)
    a(f"s_load_dwordx2 s[4:5], s[0:1], {KA_DSK}")
    a(f"s_load_dwordx2 s[8:9], s[0:1], {KA_WS}")
    a("v_and_b32 v1, 63, v0")
    a("v_lshrrev_b32 v2, 6, v0")
    a(f"s_sub_u32 s28, s2, {N_G1}")
    a("s_nop 0")
    a("v_readfirstlane_b32 s30, v2")
    a("s_lshl_b32 s28, s28, 3")
    a("s_add_u32 s28, s28, s30")
    a(f"s_mul_i32 s31, s30, {CV_W}")
    a("s_lshl_b32 s32, s28, 13")
    a("s_add_u32 s33, s32, 4096")
    a("s_lshl_b32 s34, s28, 12")
    a("s_lshr_b32 s35, s28, 1")
    a("s_lshl_b32 s35, s35, 2")
    a("v_lshlrev_b32 v3, 4, v1")
    a("s_waitcnt lgkmcnt(0)")
    a("s_load_dword s36, s[4:5], s35")
    srd(a, 12, 8, D * 8192, WS_KR)
    srd(a, 16, 8, L * D * 2, WS_XNT)
    srd(a, 20, 8, L * D * 2, WS_AT)
    a(f"s_add_u32 m0, s31, {CV_U}")
    a("s_nop 0")
    for q in range(4):
        a(f"buffer_load_dwordx4 v3, s[16:19], s34 offen offset:{q*1024} lds")
    a("s_mov_b32 m0, s31")
    a("s_nop 0")
    for q in range(4):
        a(f"buffer_load_dwordx4 v3, s[12:15], s32 offen offset:{q*1024} lds")
    a(f"s_add_u32 m0, s31, {CV_O}")
    a("s_nop 0")
    for q in range(4):
        a(f"buffer_load_dwordx4 v3, s[12:15], s33 offen offset:{q*1024} lds")
    a("v_mov_b32 v4, 0")
    a("v_mov_b32 v5, 0")
    a("v_mov_b32 v6, 0")
    a("v_mov_b32 v7, 0")
    a(f"v_add_u32 v8, 4096, v3")
    a(f"v_add_u32 v9, {CV_O + 4096 - 32}, v3")
    a("v_cmp_gt_u32 vcc, 2, v1")
    a("s_nop 1")
    a("v_cndmask_b32 v8, v9, v8, vcc")
    a("v_add_u32 v8, s31, v8")
    a("v_cmp_gt_u32 vcc, 5, v1")
    a("s_and_saveexec_b64 s[38:39], vcc")
    a("ds_write_b128 v8, v[4:7]")
    a("s_mov_b64 exec, s[38:39]")
    a("v_and_b32 v4, 15, v1")
    a("v_lshrrev_b32 v5, 4, v1")
    a("v_lshlrev_b32 v6, 3, v5")
    a("v_sub_u32 v6, v6, v4")
    a("v_lshlrev_b32 v6, 1, v6")
    a("v_and_b32 v7, 1, v4")
    a(f"v_mov_b32 v8, {CV_O + 2*2030}")
    a(f"v_mov_b32 v9, {2*2031}")
    a("v_cmp_eq_u32 vcc, 1, v7")
    a("s_nop 1")
    a("v_cndmask_b32 v8, v8, v9, vcc")
    a("v_add_u32 v6, v6, v8")
    a("v_add_u32 v6, s31, v6")
    for P in range(4):
        a(f"v_subrev_u32 v{10+P}, {512*(2*P+1)+448}, v6")
    a("v_lshlrev_b32 v7, 5, v4")
    a("v_lshl_add_u32 v7, v5, 4, v7")
    a(f"s_add_u32 s37, s31, {CV_U - 32 - 448}")
    a("v_add_u32 v14, s37, v7")
    a(f"s_add_u32 s40, s31, {CV_Z}")
    for rho in range(8):
        a(f"v_add_u32 v{16+rho}, {64*(7-rho)}, v14")
        a(f"v_max_i32 v{16+rho}, s40, v{16+rho}")
    a("v_lshlrev_b32 v24, 5, v4")
    a("v_lshl_add_u32 v24, v5, 3, v24")
    a(f"s_add_u32 s41, s31, {CV_U}")
    a("v_add_u32 v25, s41, v24")

    ACC = 32
    SET = [64, 128]

    def loads(rho):
        s = SET[rho & 1]
        out = []
        for i in range(8):
            P = i >> 1
            o = (64 * (7 - rho) + (0 if i & 1 else 512)) // 4
            if i == 0:
                out.append(f"ds_read_b128 {vr(s+32,4)}, v{16+rho}")
            else:
                out.append(f"ds_read_b128 {vr(s+32+4*i,4)}, v14 offset:{512*i + 64*(7-rho)}")
            out.append(f"ds_read2_b32 {vr(s+4*i,2)}, v{10+P} offset0:{o} offset1:{o+1}")
            out.append(f"ds_read2_b32 {vr(s+4*i+2,2)}, v{10+P} offset0:{o+2} offset1:{o+3}")
        return out

    def mfmas(rho):
        s = SET[rho & 1]
        out = []
        for i in range(8):
            for m in range(8 - i):
                t = i + m
                c = vr(ACC + 4 * t, 4)
                first = rho == 0 and i == 0
                out.append(f"v_mfma_f32_16x16x32_bf16 {c}, {vr(s+4*i,4)}, {vr(s+32+4*m,4)}, "
                           f"{'0' if first else c}")
        return out

    stamp(a)
    a("s_waitcnt vmcnt(0) lgkmcnt(0)")
    stamp(a)
    a("s_and_b32 s42, s28, 1")
    a("s_lshl_b32 s43, s36, 16")
    a("s_and_b32 s36, s36, 0xffff0000")
    a("s_cmp_eq_u32 s42, 0")
    a("s_cselect_b32 s36, s43, s36")
    for op in loads(0):
        a(op)
    def tile_epilogue(t):
        y = ACC + 4 * t
        u = 64 + 2 * t
        w = 80 + 8 * (t & 1)
        return [f"v_lshlrev_b32 v{w}, 16, v{u}",
                f"v_and_b32 v{w+1}, 0xffff0000, v{u}",
                f"v_lshlrev_b32 v{w+2}, 16, v{u+1}",
                f"v_and_b32 v{w+3}, 0xffff0000, v{u+1}",
                f"v_pk_mul_f32 {vr(w,2)}, {vr(w,2)}, s[36:37]",
                f"v_pk_mul_f32 {vr(w+2,2)}, {vr(w+2,2)}, s[36:37]",
                f"v_cvt_pk_bf16_f32 v{u}, v{w}, v{w+1}",
                f"v_cvt_pk_bf16_f32 v{u+1}, v{w+2}, v{w+3}",
                f"v_cvt_pk_bf16_f32 v{w+5}, v{y}, v{y+1}",
                f"v_cvt_pk_bf16_f32 v{w+7}, v{y+2}, v{y+3}",
                f"v_lshlrev_b32 v{w}, 16, v{u}",
                f"v_and_b32 v{w+1}, 0xffff0000, v{u}",
                f"v_lshlrev_b32 v{w+2}, 16, v{u+1}",
                f"v_and_b32 v{w+3}, 0xffff0000, v{u+1}",
                f"v_lshlrev_b32 v{w+4}, 16, v{w+5}",
                f"v_and_b32 v{w+5}, 0xffff0000, v{w+5}",
                f"v_lshlrev_b32 v{w+6}, 16, v{w+7}",
                f"v_and_b32 v{w+7}, 0xffff0000, v{w+7}",
                f"v_pk_add_f32 {vr(w,2)}, {vr(w,2)}, {vr(w+4,2)}",
                f"v_pk_add_f32 {vr(w+2,2)}, {vr(w+2,2)}, {vr(w+6,2)}",
                f"v_cvt_pk_bf16_f32 v{96+2*t}, v{w}, v{w+1}",
                f"v_cvt_pk_bf16_f32 v{97+2*t}, v{w+2}, v{w+3}",
                f"buffer_store_dwordx2 {vr(96+2*t,2)}, v24, s[20:23], s34 offen offset:{512*t}"]

    a("s_mov_b32 s37, s36")
    for rho in range(7):
        a("s_waitcnt lgkmcnt(0)")
        for op in interleave(mfmas(rho), loads(rho + 1)):
            a(op)
    a("s_waitcnt lgkmcnt(0)")
    for t in range(8):
        a(f"ds_read_b64 {vr(64+2*t,2)}, v25 offset:{512*t}")
    sset = SET[1]
    order = [0, 1, 2, 3, 4, 5, 6, 7]
    seq = []
    for t in order:
        c = vr(ACC + 4 * t, 4)
        seq.append([f"v_mfma_f32_16x16x32_bf16 {c}, {vr(sset+4*i,4)}, {vr(sset+32+4*(t-i),4)}, {c}"
                    for i in range(t + 1)])
    for op in seq[0] + seq[1] + seq[2] + seq[3]:
        a(op)
    a("s_waitcnt lgkmcnt(0)")
    drain = {4: [0, 1], 5: [2], 6: [3, 4], 7: [5, 6]}
    for t in range(4, 8):
        fill = []
        for d in drain[t]:
            fill += tile_epilogue(d)
        per = -(-len(fill) // len(seq[t]))
        for i, m in enumerate(seq[t]):
            a(m)
            for op in fill[i * per:(i + 1) * per]:
                a(op)
    a("s_nop 7")
    stamp(a)
    for op in tile_epilogue(7):
        a(op)
    stamp_end(a, 1, 8)
    a("s_endpgm")


def gen_k2(a):
    a.raw(".p2align 8")
    a.label("k2_kernel")
    a(f"s_cmp_ge_u32 s2, {N_G1 + N_CV}")
    a("s_cbranch_scc1 k2_exit")
    a(f"s_cmp_ge_u32 s2, {N_G1}")
    a("s_cbranch_scc1 k2_conv")
    gen_gemm1(a)
    a.label("k2_conv")
    gen_conv(a)
    a.label("k2_exit")
    a("s_endpgm")


N_G2 = 256
G2_NS = 8
G2_STAGE = 16384
G2_AT = G2_NS * G2_STAGE
K3_LDS = G2_AT + 8192
G2_NST = FP // 64


def gen_k3(a):
    a.raw(".p2align 8")
    a.label("k3_kernel")
    a(f"s_cmp_ge_u32 s2, {N_G2}")
    a("s_cbranch_scc1 k3_exit")
    stamp_begin(a)
    a(f"s_load_dwordx2 s[4:5], s[0:1], {KA_U}")
    a(f"s_load_dwordx4 s[8:11], s[0:1], {KA_WD}")
    a(f"s_load_dwordx2 s[6:7], s[0:1], {KA_WS}")
    a("v_and_b32 v1, 63, v0")
    a("v_lshrrev_b32 v2, 6, v0")
    a("s_and_b32 s32, s2, 7")
    a("s_lshr_b32 s33, s2, 3")
    a("v_readfirstlane_b32 s34, v2")
    a("s_lshl_b32 s32, s32, 8")
    a("s_and_b32 s35, s33, 3")
    a("s_lshl_b32 s35, s35, 6")
    a("s_add_u32 s32, s32, s35")
    a("s_lshr_b32 s33, s33, 2")
    a("s_lshl_b32 s33, s33, 6")
    a("s_cmp_lt_u32 s34, 4")
    a("s_cbranch_scc1 k3_compute")
    a("s_sub_u32 s34, s34, 4")
    a("v_lshrrev_b32 v3, 3, v1")
    a("v_and_b32 v4, 7, v1")
    a("v_lshrrev_b32 v5, 4, v1")
    a(f"v_mul_u32_u24 v7, {2*FP}, v3")
    for q in range(2):
        a(f"v_add_u32 v6, {4*q}, v5")
        a("v_and_b32 v6, 7, v6")
        a("v_xor_b32 v6, v6, v4")
        a("v_lshl_add_u32 v6, v6, 4, v7")
        a(f"v_add_u32 v{8+q}, {q*(8*2*FP-1024)}, v6")
    a("v_and_b32 v6, 1, v5")
    a("v_lshlrev_b32 v6, 2, v6")
    a("v_xor_b32 v6, v6, v4")
    a("v_lshlrev_b32 v6, 4, v6")
    a("v_lshl_add_u32 v10, v3, 10, v6")
    a("v_add_u32 v11, 7168, v10")
    a("v_lshl_add_u32 v12, v3, 12, v6")
    a(f"v_add_u32 v13, {8*4096-1024}, v12")
    a("s_lshl_b32 s36, s34, 4")
    a("s_add_u32 s37, s36, s32")
    a(f"s_mul_i32 s37, s37, {2*FP}")
    a("s_lshl_b32 s38, s36, 10")
    a("s_lshl_b32 s39, s33, 1")
    a("s_add_u32 s38, s38, s39")
    a("s_add_u32 s39, s36, s33")
    a("s_lshl_b32 s39, s39, 12")
    a("s_lshl_b32 s40, s32, 1")
    a("s_add_u32 s39, s39, s40")
    a("s_lshl_b32 s40, s34, 11")
    a("s_waitcnt lgkmcnt(0)")
    srd(a, 16, 8, W_BYTES)
    srd(a, 12, 6, H_BYTES, WS_H)
    srd(a, 20, 6, L * D * 2, WS_AT)

    def dma(stage):
        b = (stage % G2_NS) * G2_STAGE
        a(f"s_add_u32 m0, s40, {b+8192}")
        a("s_nop 0")
        a("buffer_load_dwordx4 v10, s[16:19], s38 offen lds")
        a("buffer_load_dwordx4 v11, s[16:19], s38 offen offset:1024 lds")
        a(f"s_add_u32 m0, s40, {b}")
        a("s_add_u32 s38, s38, 65536")
        a("buffer_load_dwordx4 v8, s[12:15], s37 offen lds")
        a("buffer_load_dwordx4 v9, s[12:15], s37 offen offset:1024 lds")
        a("s_add_u32 s37, s37, 128")

    AT_AFTER = 3
    issued = 0
    for st in range(G2_NST):
        want = min(G2_NST - 1, 2 * st + 2, st - 2 + G2_NS)
        while issued <= want:
            dma(issued)
            if issued == AT_AFTER:
                a(f"s_add_u32 m0, s40, {G2_AT}")
                a("s_nop 0")
                a("buffer_load_dwordx4 v12, s[20:23], s39 offen lds")
                a("buffer_load_dwordx4 v13, s[20:23], s39 offen offset:1024 lds")
            issued += 1
        vm = 4 * (issued - 1 - st) + (2 if st <= AT_AFTER < issued else 0)
        if st in (0, 8, 16):
            stamp(a)
        a(f"s_waitcnt vmcnt({vm})")
        a("s_barrier")
    stamp_end(a, 2, 6)
    a("s_endpgm")
    a.label("k3_compute")
    _stamp_n[0] = 1 if PROF else 0
    a("s_and_b32 s41, s34, 1")
    a("s_lshr_b32 s42, s34, 1")
    a("v_and_b32 v3, 31, v1")
    a("v_lshrrev_b32 v4, 5, v1")
    a("s_lshl_b32 s43, s41, 5")
    a("s_add_u32 s43, s43, s32")
    a("v_add_u32 v14, s43, v3")
    a("v_lshlrev_b32 v14, 10, v14")
    a("v_lshl_add_u32 v14, v4, 5, v14")
    a("s_lshl_b32 s44, s42, 5")
    a("s_add_u32 s44, s44, s33")
    a("s_lshl_b32 s44, s44, 1")
    a("v_lshrrev_b32 v5, 1, v3")
    a("v_and_b32 v5, 7, v5")
    a("v_xor_b32 v5, v5, v4")
    a("v_lshlrev_b32 v6, 7, v3")
    a("s_lshl_b32 s45, s41, 12")
    a("v_add_u32 v6, s45, v6")
    for ks in range(4):
        a(f"v_xor_b32 v7, {2*ks}, v5")
        a(f"v_lshl_add_u32 v{16+ks}, v7, 4, v6")
    a("v_and_b32 v5, 15, v1")
    a("v_lshrrev_b32 v6, 2, v5")
    a("v_and_b32 v5, 3, v5")
    a("v_lshrrev_b32 v7, 4, v1")
    a("v_and_b32 v7, 1, v7")
    a("v_lshlrev_b32 v21, 3, v5")
    a("v_lshl_add_u32 v21, v7, 5, v21")
    a("v_lshrrev_b32 v22, 1, v6")
    a("v_xor_b32 v23, s41, v22")
    a("v_lshl_add_u32 v21, v23, 6, v21")
    a("v_lshl_add_u32 v23, v4, 4, v6")
    a("v_lshl_add_u32 v21, v23, 7, v21")
    a("s_lshl_b32 s45, s42, 12")
    a(f"s_add_u32 s45, s45, {G2_AT}")
    a("v_add_u32 v21, s45, v21")
    a("v_and_b32 v15, 1, v5")
    a("v_lshlrev_b32 v15, 5, v15")
    a("v_lshl_add_u32 v15, v7, 4, v15")
    a("v_lshrrev_b32 v5, 1, v5")
    a("v_lshl_add_u32 v15, v5, 3, v15")
    a("v_xor_b32 v22, s42, v22")
    a("v_lshl_add_u32 v15, v22, 6, v15")
    a("v_lshl_add_u32 v6, v4, 3, v6")
    a("v_lshl_add_u32 v15, v6, 7, v15")
    a("v_add_u32 v20, 8192, v15")
    a("s_waitcnt lgkmcnt(0)")
    srd(a, 24, 4, L * D * 2)
    srd(a, 28, 10, L * D * 2)
    a("buffer_load_dwordx4 v[24:27], v14, s[24:27], s44 offen")
    a("buffer_load_dwordx4 v[28:31], v14, s[24:27], s44 offen offset:16")

    ACC = 32
    FS = [48, 80]
    XA = 112
    ATR = 128
    AT_ST = 10

    def reads(st):
        f = FS[st & 1]
        o = (st % 4) * G2_STAGE
        out = []
        for ks in range(4):
            out.append(f"ds_read_b64_tr_b16 {vr(f+8*ks,2)}, v20 offset:{o+ks*2048}")
            out.append(f"ds_read_b64_tr_b16 {vr(f+8*ks+2,2)}, v20 offset:{o+ks*2048+512}")
            out.append(f"ds_read_b128 {vr(f+8*ks+4,4)}, v{16+ks} offset:{o}")
        return out

    def mfmas(st):
        f = FS[st & 1]
        c = vr(ACC, 16)
        return [f"v_mfma_f32_32x32x16_bf16 {c}, {vr(f+8*ks,4)}, {vr(f+8*ks+4,4)}, "
                f"{'0' if st == 0 and ks == 0 else c}" for ks in range(4)]

    def xa_ops(k):
        x, t = XA + 2 * k, 4
        return [f"v_lshlrev_b32 v{x}, 16, v{24+k}",
                f"v_and_b32 v{x+1}, 0xffff0000, v{24+k}",
                f"v_lshlrev_b32 v{t}, 16, v{ATR+k}",
                f"v_and_b32 v{t+1}, 0xffff0000, v{ATR+k}",
                f"v_pk_add_f32 {vr(x,2)}, {vr(x,2)}, {vr(t,2)}",
                f"v_cvt_pk_bf16_f32 v{x+1}, v{x}, v{x+1}",
                f"v_lshlrev_b32 v{x}, 16, v{x+1}",
                f"v_and_b32 v{x+1}, 0xffff0000, v{x+1}"]

    for st in range(-1, G2_NST):
        nx = st + 1
        body = []
        if nx < G2_NST:
            if nx in (0, 8, 16):
                stamp(a)
            a("s_waitcnt lgkmcnt(0)" if nx != AT_ST + 1 else "s_waitcnt vmcnt(0) lgkmcnt(0)")
            a("s_barrier")
            if nx and nx % 4 == 0:
                delta = 65536 if (nx % G2_NS) == 4 else -65536
                for r in (16, 17, 18, 19, 20):
                    a(f"v_add_u32 v{r}, {delta & 0xffffffff:#x}, v{r}")
            body = reads(nx)
            if nx == AT_ST:
                body += [f"ds_read_b64_tr_b16 {vr(ATR+2*i,2)}, v21 offset:{512*i}" for i in range(4)]
        else:
            a("s_waitcnt lgkmcnt(0)")
        if st >= 0:
            body = interleave(body, mfmas(st), every=3) if body else mfmas(st)
        if AT_ST < nx <= AT_ST + 4:
            k = 2 * (nx - AT_ST - 1)
            body += xa_ops(k) + xa_ops(k + 1)
        for op in body:
            a(op)
    a("s_nop 15")
    stamp(a)
    for k in range(8):
        a(f"v_cvt_pk_bf16_f32 v{48+k}, v{ACC+2*k}, v{ACC+2*k+1}")
    for k in range(8):
        a(f"v_lshlrev_b32 v{ACC+2*k}, 16, v{48+k}")
        a(f"v_and_b32 v{ACC+2*k+1}, 0xffff0000, v{48+k}")
    for k in range(8):
        a(f"v_pk_add_f32 {vr(ACC+2*k,2)}, {vr(ACC+2*k,2)}, {vr(XA+2*k,2)}")
    for k in range(8):
        a(f"v_cvt_pk_bf16_f32 v{56+k}, v{ACC+2*k}, v{ACC+2*k+1}")
        if k == 3:
            a("buffer_store_dwordx4 v[56:59], v14, s[28:31], s44 offen")
    a("buffer_store_dwordx4 v[60:63], v14, s[28:31], s44 offen offset:16")
    stamp_end(a, 2, 6)
    a.label("k3_exit")
    a("s_endpgm")


def descriptor(name, vgpr, sgpr):
    acc = (vgpr + 3) // 4 * 4
    return f""".p2align 6
.amdhsa_kernel {name}
  .amdhsa_next_free_vgpr {vgpr}
  .amdhsa_next_free_sgpr {sgpr}
  .amdhsa_accum_offset {acc}
  .amdhsa_group_segment_fixed_size 0
  .amdhsa_kernarg_size 112
  .amdhsa_user_sgpr_count 2
  .amdhsa_user_sgpr_kernarg_segment_ptr 1
  .amdhsa_system_sgpr_workgroup_id_x 1
.end_amdhsa_kernel
"""


def main(path):
    a = Asm()
    a.raw(f"; @launch kernel=k1_kernel grid=({N_K1},1,1) block=(512,1,1) lds={K1_LDS}")
    a.raw(f"; @launch kernel=k2_kernel grid=({N_G1+N_CV},1,1) block=(512,1,1) lds={K2_LDS}")
    a.raw(f"; @launch kernel=k3_kernel grid=({N_G2},1,1) block=(512,1,1) lds={K3_LDS}")
    a.raw('.amdgcn_target "amdgcn-amd-amdhsa--gfx950"')
    a.raw(".text")
    for k in ("k1_kernel", "k2_kernel", "k3_kernel"):
        a.raw(f".globl {k}")
        a.raw(f".type {k},@function")
    gen_k1(a)
    gen_k2(a)
    gen_k3(a)
    a.raw('.section .rodata,"a"')
    sg = 102 if PROF else 0
    a.raw(descriptor("k1_kernel", 164, max(sg, 72)))
    a.raw(descriptor("k2_kernel", 192, max(sg, 56)))
    a.raw(descriptor("k3_kernel", 136, max(sg, 56)))
    open(path, "w").write(a.text())


if __name__ == "__main__":
    if "--prof" in sys.argv:
        sys.argv.remove("--prof")
        PROF = True
    main(sys.argv[1] if len(sys.argv) > 1 else f"cdna_kernels/{NAME}.s")
```

```python
import struct
import sys

NAME = "parallel_sum__ssm_conv_s4d__glu_gated_reglu__prompt"

L, D, N, F = 2048, 512, 128, 1376
FP = 1408
WS_XN = 0x000000
WS_XNT = 0x200000
WS_KR = 0x440000
WS_H = 0x840000
WS_AT = 0xE00000
H_BYTES = L * FP * 2
XNT_STRIDE = 4096 + 128
XNT_BYTES = D * XNT_STRIDE
W_BYTES = D * F * 2

KA_U, KA_LAR, KA_AI, KA_CR, KA_CI, KA_LDT, KA_DSK, KA_BX, KA_WG, KA_WU, KA_WD, KA_OUT, KA_DBG, KA_WS = \
    [8 * i for i in range(14)]


def f32(x):
    return "0x%08x" % struct.unpack("<I", struct.pack("<f", x))[0]


class Asm:
    def __init__(self):
        self.lines = []

    def __call__(self, s):
        for ln in s.strip("\n").split("\n"):
            self.lines.append("  " + ln.strip())

    def label(self, s):
        self.lines.append(s + ":")

    def raw(self, s):
        self.lines.append(s)

    def text(self):
        return "\n".join(self.lines) + "\n"


PROF = False
PROF_BASE = 0x1000000
_stamp_n = [0]


def stamp_begin(a):
    _stamp_n[0] = 0
    if PROF:
        a("s_memrealtime s[80:81]")
        a("s_memtime s[82:83]")
        _stamp_n[0] = 1


def stamp(a):
    if PROF:
        k = _stamp_n[0]
        a(f"s_memtime s[{82+2*k}:{83+2*k}]")
        _stamp_n[0] += 1


def stamp_end(a, launch, ws_lo):
    if not PROF:
        return
    stamp(a)
    n = _stamp_n[0]
    a("s_waitcnt lgkmcnt(0)")
    a("s_memrealtime s[98:99]")
    a(f"s_add_u32 s76, s{ws_lo}, {PROF_BASE}")
    a(f"s_addc_u32 s77, s{ws_lo+1}, 0")
    a("s_mov_b32 s78, 0x1000000")
    a("s_mov_b32 s79, 0x00020000")
    a("v_lshrrev_b32 v2, 6, v0")
    a(f"s_add_u32 s75, s2, {launch*512}")
    a("s_lshl_b32 s75, s75, 10")
    a("v_lshlrev_b32 v2, 6, v2")
    a("v_add_u32 v2, s75, v2")
    a("s_waitcnt lgkmcnt(0)")
    a("v_mov_b32 v4, s80")
    a("v_mov_b32 v5, s98")
    a("buffer_store_dwordx2 v[4:5], v2, s[76:79], 0 offen")
    for k in range(n):
        a(f"v_mov_b32 v6, s{82+2*k}")
        a(f"buffer_store_dword v6, v2, s[76:79], 0 offen offset:{8+4*k}")
        a("s_nop 1")


def vr(b, n):
    return "v[%d:%d]" % (b, b + n - 1)


def sr(b, n):
    return "s[%d:%d]" % (b, b + n - 1)


def srd(a, dst, base, nbytes, add=0):
    if add:
        a(f"s_add_u32 s{dst}, s{base}, {add}")
        a(f"s_addc_u32 s{dst+1}, s{base+1}, 0")
    else:
        a(f"s_mov_b32 s{dst}, s{base}")
        a(f"s_mov_b32 s{dst+1}, s{base+1}")
    a(f"s_mov_b32 s{dst+2}, {nbytes}")
    a(f"s_mov_b32 s{dst+3}, 0x00020000")


def interleave(main, fill, every=1, start=0):
    out = []
    fill = list(fill)
    for i, m in enumerate(main):
        out.append(m)
        if i >= start and (i - start) % every == every - 1 and fill:
            out.append(fill.pop(0))
    out.extend(fill)
    return out


N_K1 = 256
LN_STRIDE = 1088
KG_ROW = 544
KG_XA, KG_YB, KG_T = 0, 24 * KG_ROW, 56 * KG_ROW
KG_CH = KG_T + 3072
LN_LDS = 2 * KG_CH
K1_LDS = LN_LDS + 8 * LN_STRIDE
LOG2E = 1.4426950408889634
L_HI = 47274.0 / 32768.0
C_LO = (LOG2E - L_HI) * 0.6931471805599453
T_BIAS = 0x3F7F
PF_W = 6


def dpp_reduce(a, regs):
    steps = ["row_shr:1 row_mask:0xf bank_mask:0xf bound_ctrl:0",
             "row_shr:2 row_mask:0xf bank_mask:0xf bound_ctrl:0",
             "row_shr:4 row_mask:0xf bank_mask:0xf bound_ctrl:0",
             "row_shr:8 row_mask:0xf bank_mask:0xf bound_ctrl:0",
             "row_bcast:15 row_mask:0xa bank_mask:0xf",
             "row_bcast:31 row_mask:0xc bank_mask:0xf"]
    a("s_nop 1")
    for st in steps:
        for r in regs:
            a(f"v_add_f32_dpp v{r}, v{r}, v{r} {st}")
    a("s_nop 1")


def bf16_round(a, dst, src):
    a(f"v_cvt_pk_bf16_f32 v{dst}, v{src}, v{src}")
    a(f"v_lshlrev_b32 v{dst}, 16, v{dst}")


def gen_ln(a):
    stamp_begin(a)
    a(f"s_load_dwordx2 s[4:5], s[0:1], {KA_U}")
    a(f"s_load_dwordx2 s[6:7], s[0:1], {KA_WS}")
    a(f"s_load_dwordx4 s[48:51], s[0:1], {KA_WG}")
    a(f"s_load_dwordx2 s[54:55], s[0:1], {KA_WD}")
    a("s_sub_u32 s22, s44, 4")
    a("s_and_b32 s20, s2, 7")
    a("s_lshr_b32 s21, s2, 3")
    a("s_lshl_b32 s20, s20, 8")
    a("s_lshl_b32 s23, s21, 3")
    a("s_add_u32 s20, s20, s23")
    a("s_lshl_b32 s23, s22, 1")
    a("s_add_u32 s23, s23, s20")
    a("s_lshl_b32 s24, s23, 10")
    a("v_lshlrev_b32 v3, 4, v1")
    a("s_lshl_b32 s52, s2, 2")
    a("s_add_u32 s52, s52, s22")
    a("s_lshl_b32 s52, s52, 11")
    a(f"s_mul_i32 s25, s22, {2*LN_STRIDE}")
    a(f"s_add_u32 s25, s25, {LN_LDS}")
    a("v_add_u32 v4, s25, v3")
    a("v_and_b32 v5, 15, v1")
    a("v_lshrrev_b32 v6, 2, v5")
    a("v_and_b32 v5, 3, v5")
    a("v_lshrrev_b32 v7, 4, v1")
    a(f"v_mul_u32_u24 v6, {LN_STRIDE}, v6")
    a("v_lshlrev_b32 v5, 3, v5")
    a("v_lshl_add_u32 v5, v7, 5, v5")
    a("v_add_u32 v5, v5, v6")
    a("s_lshl_b32 s26, s22, 8")
    a(f"s_add_u32 s26, s26, {LN_LDS}")
    a("v_add_u32 v5, s26, v5")
    a("s_lshl_b32 s27, s22, 7")
    a("v_add_u32 v6, s27, v1")
    a(f"v_mul_u32_u24 v6, {XNT_STRIDE}, v6")
    a("s_lshl_b32 s28, s20, 1")
    a(f"s_add_u32 s29, s28, {64*XNT_STRIDE}")
    a("s_waitcnt lgkmcnt(0)")
    srd(a, 8, 4, L * D * 2)
    for r in range(2):
        a(f"buffer_load_dwordx4 {vr(8+4*r,4)}, v3, s[8:11], s24 offen offset:{r*1024}")
    srd(a, 56, 48, W_BYTES)
    srd(a, 60, 50, W_BYTES)
    srd(a, 64, 54, W_BYTES)
    for i in range(2):
        for b in (56, 60, 64):
            a(f"buffer_load_dwordx4 v[72:75], v3, {sr(b,4)}, s52 offen offset:{i*1024}")
    srd(a, 12, 6, L * D * 2, WS_XN)
    srd(a, 16, 6, XNT_BYTES, WS_XNT)
    X = lambda r, e: 32 + 8 * r + e
    stamp(a)
    for r in range(2):
        a(f"s_waitcnt vmcnt({PF_W + 1 - r})")
        if r == 0:
            stamp(a)
        for k in range(4):
            a(f"v_lshlrev_b32 v{X(r,2*k)}, 16, v{8+4*r+k}")
            a(f"v_and_b32 v{X(r,2*k+1)}, 0xffff0000, v{8+4*r+k}")
        a(f"v_readfirstlane_b32 s{30+2*r}, v{X(r,0)}")
        a(f"v_pk_add_f32 v[48:49], {vr(X(r,0),2)}, {vr(X(r,2),2)}")
        a(f"v_pk_add_f32 v[50:51], {vr(X(r,4),2)}, {vr(X(r,6),2)}")
        a(f"s_mov_b32 s{31+2*r}, s{30+2*r}")
        a("v_pk_add_f32 v[48:49], v[48:49], v[50:51]")
        for k in range(4):
            a(f"v_pk_add_f32 {vr(52+2*k,2)}, {vr(X(r,2*k),2)}, {sr(30+2*r,2)} neg_lo:[0,1] neg_hi:[0,1]")
        a(f"v_add_f32 v{24+2*r}, v48, v49")
        a("v_pk_mul_f32 v[50:51], v[52:53], v[52:53]")
        a("v_pk_mul_f32 v[48:49], v[54:55], v[54:55]")
        a("v_pk_fma_f32 v[50:51], v[56:57], v[56:57], v[50:51]")
        a("v_pk_fma_f32 v[48:49], v[58:59], v[58:59], v[48:49]")
        a("v_pk_add_f32 v[48:49], v[48:49], v[50:51]")
        a(f"v_add_f32 v{25+2*r}, v48, v49")
    dpp_reduce(a, [24, 25, 26, 27])
    for r in range(2):
        a(f"v_mul_f32 v{24+2*r}, {f32(1.0/512)}, v{24+2*r}")
        a(f"v_mul_f32 v{25+2*r}, {f32(1.0/512)}, v{25+2*r}")
    for r in range(2):
        a(f"v_subrev_f32 v{28+r}, s{30+2*r}, v{24+2*r}")
        bf16_round(a, 24 + 2 * r, 24 + 2 * r)
    for r in range(2):
        a(f"v_fma_f32 v{25+2*r}, -v{28+r}, v{28+r}, v{25+2*r}")
        a(f"v_max_f32 v{25+2*r}, 0, v{25+2*r}")
    for r in range(2):
        bf16_round(a, 25 + 2 * r, 25 + 2 * r)
    for r in range(2):
        a(f"v_add_f32 v{25+2*r}, {f32(1e-5)}, v{25+2*r}")
        a(f"v_readlane_b32 s{36+2*r}, v{24+2*r}, 63")
    for r in range(2):
        bf16_round(a, 25 + 2 * r, 25 + 2 * r)
    for r in range(2):
        a(f"v_sqrt_f32 v{25+2*r}, v{25+2*r}")
    for r in range(2):
        a(f"s_mov_b32 s{37+2*r}, s{36+2*r}")
    for r in range(2):
        bf16_round(a, 25 + 2 * r, 25 + 2 * r)
    for r in range(2):
        a(f"v_rcp_f32 v{25+2*r}, v{25+2*r}")
    for r in range(2):
        for k in range(4):
            a(f"v_pk_add_f32 {vr(X(r,2*k),2)}, {vr(X(r,2*k),2)}, {sr(36+2*r,2)} neg_lo:[0,1] neg_hi:[0,1]")
    for r in range(2):
        a(f"v_readlane_b32 s{40+2*r}, v{25+2*r}, 63")
    for r in range(2):
        for k in range(4):
            a(f"v_cvt_pk_bf16_f32 v{8+4*r+k}, v{X(r,2*k)}, v{X(r,2*k+1)}")
    for r in range(2):
        a(f"s_mov_b32 s{41+2*r}, s{40+2*r}")
    for r in range(2):
        for k in range(4):
            a(f"v_lshlrev_b32 v{X(r,2*k)}, 16, v{8+4*r+k}")
            a(f"v_and_b32 v{X(r,2*k+1)}, 0xffff0000, v{8+4*r+k}")
        for k in range(4):
            a(f"v_pk_mul_f32 {vr(X(r,2*k),2)}, {vr(X(r,2*k),2)}, {sr(40+2*r,2)}")
        for k in range(4):
            a(f"v_cvt_pk_bf16_f32 v{16+4*r+k}, v{X(r,2*k)}, v{X(r,2*k+1)}")
        a(f"ds_write_b128 v4, {vr(16+4*r,4)} offset:{r*LN_STRIDE}")
        a(f"buffer_store_dwordx4 {vr(16+4*r,4)}, v3, s[12:15], s24 offen offset:{r*1024}")
    a("s_waitcnt lgkmcnt(0)")
    stamp(a)
    a("s_barrier")
    for blk in range(2):
        for tb in range(2):
            a(f"ds_read_b64_tr_b16 {vr(32+4*blk+2*tb,2)}, v5 offset:{blk*128 + tb*4*LN_STRIDE}")
    a("s_waitcnt lgkmcnt(2)")
    a("buffer_store_dwordx4 v[32:35], v6, s[16:19], s28 offen")
    a("s_waitcnt lgkmcnt(0)")
    a("buffer_store_dwordx4 v[36:39], v6, s[16:19], s29 offen")
    stamp_end(a, 0, 6)
    a("s_endpgm")


def exp_acc(a, dst, x, t):
    a(f"v_mul_f32 v{dst}, {f32(L_HI)}, v{x}")
    a(f"v_exp_f32 v{dst}, v{dst}")
    a(f"v_mul_f32 v{t}, {f32(C_LO)}, v{x}")
    a(f"v_fma_f32 v{dst}, v{dst}, v{t}, v{dst}")


def cmul(t, z, w):
    return [f"v_pk_mul_f32 {vr(t,2)}, {vr(z,2)}, {vr(w,2)} op_sel:[0,0] op_sel_hi:[1,0]",
            f"v_pk_fma_f32 {vr(t,2)}, {vr(z,2)}, {vr(w,2)}, {vr(t,2)} op_sel:[1,1,0] op_sel_hi:[0,1,1] "
            f"neg_lo:[1,0,0]"]


def gen_kgen(a):
    stamp_begin(a)
    a(f"s_load_dwordx8 s[4:11], s[0:1], {KA_LAR}")
    a(f"s_load_dwordx2 s[12:13], s[0:1], {KA_LDT}")
    a(f"s_load_dwordx2 s[14:15], s[0:1], {KA_WS}")
    a("s_and_b32 s41, s2, 7")
    a("s_lshr_b32 s42, s2, 3")
    a("s_lshr_b32 s43, s42, 2")
    a("s_lshl_b32 s43, s43, 6")
    a("s_lshl_b32 s41, s41, 3")
    a("s_add_u32 s41, s41, s43")
    a("s_and_b32 s42, s42, 3")
    a("s_lshl_b32 s42, s42, 1")
    a("s_add_u32 s41, s41, s42")
    a("s_lshr_b32 s45, s44, 1")
    a("s_and_b32 s46, s44, 1")
    a("s_add_u32 s47, s41, s45")
    a("s_lshl_b32 s48, s46, 6")
    a("v_add_u32 v3, s48, v1")
    a("s_lshl_b32 s49, s47, 8")
    a("v_lshlrev_b32 v4, 1, v3")
    a("s_lshl_b32 s50, s47, 1")
    a("v_mov_b32 v5, s50")
    a("s_waitcnt lgkmcnt(0)")
    srd(a, 16, 4, D * N * 2)
    srd(a, 32, 12, D * 2)
    a("buffer_load_ushort v8, v4, s[16:19], s49 offen")
    a("buffer_load_ushort v12, v5, s[32:35], 0 offen")
    srd(a, 20, 6, D * N * 2)
    a("buffer_load_ushort v9, v4, s[20:23], s49 offen")
    srd(a, 24, 8, D * N * 2)
    a("buffer_load_ushort v10, v4, s[24:27], s49 offen")
    srd(a, 28, 10, D * N * 2)
    a("buffer_load_ushort v11, v4, s[28:31], s49 offen")
    srd(a, 36, 14, D * 8192, WS_KR)
    a(f"s_mul_i32 s51, s45, {KG_CH}")
    a("v_lshlrev_b32 v6, 2, v3")
    a("v_add_u32 v6, s51, v6")
    a("v_and_b32 v7, 15, v1")
    a("v_lshrrev_b32 v2, 4, v1")
    a(f"v_mul_u32_u24 v13, {KG_ROW}, v7")
    a("v_lshl_add_u32 v13, v2, 4, v13")
    a("v_add_u32 v100, s51, v13")
    a(f"s_mul_i32 s52, s46, {16*KG_ROW}")
    a("v_add_u32 v101, s52, v100")
    quads = [(0, 1), (4, 1), (256, 2), (512, 256)], [(1536, 256), (516, 256), (4097, 0), (4097, 0)]
    a("s_cmp_eq_u32 s46, 0")
    for q in range(4):
        a(f"s_mov_b32 s64, {f32(float(quads[0][q][0]))}")
        a(f"s_mov_b32 s65, {f32(float(quads[0][q][1]))}")
        a(f"s_cselect_b32 s{56+q}, s64, {f32(float(quads[1][q][0]))}")
        a(f"s_cselect_b32 s{60+q}, s65, {f32(float(quads[1][q][1]))}")
    a("v_mov_b32 v14, s56")
    a("v_mov_b32 v15, s60")
    for q in range(1, 4):
        a(f"v_cmp_eq_u32 vcc, {q}, v2")
        a(f"v_mov_b32 v16, s{56+q}")
        a(f"v_mov_b32 v17, s{60+q}")
        a("v_cndmask_b32 v14, v14, v16, vcc")
        a("v_cndmask_b32 v15, v15, v17, vcc")
    a("v_cvt_f32_u32 v16, v7")
    a("v_fmac_f32 v14, 0x41000000, v16")
    a(f"s_add_u32 s53, s51, {KG_T - 2*T_BIAS}")
    a(f"s_add_u32 s54, s51, {KG_T + 3000}")
    a("v_mov_b32 v19, s54")
    TW = 102
    for jt in range(2):
        for r in range(4):
            p = 20 + 4 * jt + r
            if r == 0:
                a(f"v_mov_b32 v{p}, v14" if jt == 0 else f"v_add_f32 v{p}, 0x43000000, v14")
            else:
                a(f"v_add_f32 v{p}, v{p-1}, v15")
    for i in range(8):
        p, b = 20 + i, TW + i
        a(f"v_cvt_pk_bf16_f32 v{b}, v{p}, v{p}")
        a(f"v_and_b32 v16, 0xffff0000, v{b}")
        a(f"v_cmp_eq_u32 vcc, v16, v{p}")
        a(f"v_and_b32 v{b}, 0xffff, v{b}")
        a(f"v_max_u32 v{b}, {T_BIAS}, v{b}")
        a(f"v_lshl_add_u32 v{b}, v{b}, 1, s53")
        a(f"v_cndmask_b32 v{b}, v19, v{b}, vcc")
    GA = 110
    a("v_lshlrev_b32 v7, 3, v3")
    a("v_sub_u32 v7, 2047, v7")
    a("v_cvt_f32_i32 v14, v7")
    a("v_lshlrev_b32 v130, 4, v3")
    a("s_lshl_b32 s55, s47, 13")
    a("s_add_u32 s56, s55, 4096")
    for ch in range(2):
        for e in range(0, 10, 2):
            b = GA + 10 * ch + e
            a(f"v_subrev_f32 v{b}, {f32(float(e + 1024*ch))}, v14")
            a(f"v_subrev_f32 v{b+1}, {f32(float(e + 1 + 1024*ch))}, v14")
            a(f"v_cvt_pk_bf16_f32 v{b+1}, v{b}, v{b+1}")
            a(f"v_and_b32 v{b}, 0xffff, v{b+1}")
            a(f"v_lshrrev_b32 v{b+1}, 16, v{b+1}")
            for z in (b, b + 1):
                a(f"v_max_u32 v{z}, {T_BIAS}, v{z}")
                a(f"v_min_u32 v{z}, 0x4500, v{z}")
                a(f"v_lshl_add_u32 v{z}, v{z}, 1, s53")
    a("v_cmp_eq_u32 vcc, 127, v3")
    a("v_mov_b32 v14, 0x00003f80")
    a(f"ds_write_b32 v6, v14 offset:{KG_YB}")
    stamp(a)
    a("s_waitcnt vmcnt(3)")
    stamp(a)
    a("v_lshlrev_b32 v12, 16, v12")
    a("v_lshlrev_b32 v8, 16, v8")
    exp_acc(a, 13, 12, 14)
    exp_acc(a, 15, 8, 16)
    bf16_round(a, 13, 13)
    bf16_round(a, 15, 15)
    a("s_waitcnt vmcnt(2)")
    a("v_lshlrev_b32 v9, 16, v9")
    a("v_mul_f32 v15, v15, v13")
    a("v_mul_f32 v16, v9, v13")
    a(f"v_mul_f32 v15, {f32(-LOG2E)}, v15")
    a(f"v_mul_f32 v16, {f32(0.15915494309189535)}, v16")
    seeds = [(1, 20, 1), (256, 22, 1), (8, 24, -1), (64, 26, -1)]
    for i, (p, z, sg) in enumerate(seeds):
        a(f"v_mul_f32 v{32+i}, {f32(float(p))}, v15")
        a(f"v_mul_f32 v{36+i}, {f32(float(p*sg))}, v16")
    for i in range(4):
        a(f"v_exp_f32 v{32+i}, v{32+i}")
        a(f"v_fract_f32 v{36+i}, v{36+i}")
    for i, (p, z, sg) in enumerate(seeds):
        a(f"v_cos_f32 v{z}, v{36+i}")
        a(f"v_sin_f32 v{z+1}, v{36+i}")
    a("s_waitcnt vmcnt(0)")
    a("v_lshlrev_b32 v10, 16, v10")
    a("v_lshlrev_b32 v11, 16, v11")
    a("v_add_f32 v13, v13, v13")
    for i, (p, z, sg) in enumerate(seeds):
        a(f"v_mul_f32 v{z}, v{32+i}, v{z}")
        a(f"v_mul_f32 v{z+1}, v{32+i}, v{z+1}")
    a("v_mul_f32 v28, v10, v13")
    a("v_mul_f32 v29, v11, v13")
    E1, E256, Y8, Y64, C = 20, 22, 24, 26, 28
    E2, E4, Y128, Y192 = 40, 42, 44, 46

    def emit(z, off, t):
        return [f"v_cvt_pk_bf16_f32 v{t}, v{z}, v{z+1}", f"ds_write_b32 v6, v{t} offset:{off}"]

    xrow = lambda q, r: KG_XA + (4 * q + r) * KG_ROW
    yrow = lambda j: KG_YB + j * KG_ROW

    def chain(seed, ratio, offs, ra, rb, t, emit_seed=True):
        ops = []
        cur = seed
        for k, off in enumerate(offs):
            if k:
                nxt = ra if cur != ra else rb
                ops.append(cmul(nxt, cur, ratio))
                cur = nxt
            if k or emit_seed:
                ops.append(emit(cur, off, t))
        return ops

    pre = [cmul(E2, E1, E1), cmul(Y128, Y64, Y64), cmul(48, C, E256), cmul(E4, E2, E2), cmul(Y192, Y128, Y64)]
    for i in range(2):
        for op in pre[:3]:
            a(op[i])
    for i in range(2):
        for op in pre[3:]:
            a(op[i])
    a("\n".join(cmul(50, C, E4)))
    chains = [
        chain(Y8, Y8, [yrow(j) for j in range(1, 8)], 52, 54, 88),
        chain(Y64, Y8, [yrow(j) for j in range(8, 16)], 56, 58, 89),
        chain(Y128, Y8, [yrow(j) for j in range(16, 24)], 60, 62, 90),
        chain(Y192, Y8, [yrow(j) for j in range(24, 32)], 64, 66, 91),
        chain(C, E1, [xrow(0, r) for r in range(4)], 68, 70, 92)
        + chain(48, E2, [xrow(2, r) for r in range(4)], 68, 70, 92),
        chain(50, E1, [xrow(1, r) for r in range(4)], 72, 74, 93),
    ]
    far = []
    cur = 48
    offs = [xrow(3, 0), xrow(3, 1), xrow(3, 2), xrow(3, 3), xrow(4, 0), xrow(4, 1), xrow(4, 2)]
    for k, off in enumerate(offs):
        nxt = 76 if cur != 76 else 78
        far.append(cmul(nxt, cur, E256))
        cur = nxt
        far.append(emit(cur, off, 94))
        if k < 2:
            far.append(cmul(80, cur, E4))
            far.append(emit(80, xrow(5, k), 95))
    chains.append(far)
    while any(chains):
        units = [c.pop(0) for c in chains if c]
        for i in range(2):
            for u in units:
                a(u[i])
    a("s_waitcnt lgkmcnt(0)")
    stamp(a)
    a("s_barrier")
    for ks in range(8):
        a(f"ds_read_b128 {vr(132+4*ks,4)}, v101 offset:{KG_XA + ks*64}")
        a(f"ds_read_b128 {vr(32+4*ks,4)}, v100 offset:{KG_YB + ks*64}")
        a(f"ds_read_b128 {vr(64+4*ks,4)}, v100 offset:{KG_YB + 16*KG_ROW + ks*64}")
    for ks in range(8):
        a(f"s_waitcnt lgkmcnt({min(15, 3*(7-ks))})")
        c0 = "0" if ks == 0 else "v[20:23]"
        c1 = "0" if ks == 0 else "v[24:27]"
        a(f"v_mfma_f32_16x16x32_bf16 v[20:23], {vr(132+4*ks,4)}, {vr(32+4*ks,4)}, {c0}")
        a(f"v_mfma_f32_16x16x32_bf16 v[24:27], {vr(132+4*ks,4)}, {vr(64+4*ks,4)}, {c1}")
    a("s_nop 7")
    for i in range(8):
        a(f"v_cvt_pk_bf16_f32 v{20+i}, v{20+i}, v{20+i}")
        a(f"ds_write_b16 v{TW+i}, v{20+i}")
    a("s_waitcnt lgkmcnt(0)")
    stamp(a)
    a("s_barrier")
    for ch in range(2):
        for e in range(9):
            a(f"ds_read_u16 v{32+16*ch+e}, v{GA+10*ch+e}")
    for ch in range(2):
        a(f"s_waitcnt lgkmcnt({9*(1-ch)})")
        q = 32 + 16 * ch
        if ch == 1:
            a(f"v_cndmask_b32 v{q+8}, v{q+8}, 0, vcc")
        for k in range(4):
            a(f"v_lshl_or_b32 v{64+8*ch+k}, v{q+2*k+1}, 16, v{q+2*k}")
            a(f"v_lshl_or_b32 v{68+8*ch+k}, v{q+2*k+2}, 16, v{q+2*k+1}")
        a(f"buffer_store_dwordx4 {vr(64+8*ch,4)}, v130, s[36:39], s55 offen offset:{2048*ch}")
        a(f"buffer_store_dwordx4 {vr(68+8*ch,4)}, v130, s[36:39], s56 offen offset:{2048*ch}")
    stamp_end(a, 0, 14)
    a("s_endpgm")


def gen_k1(a):
    a.raw(".p2align 8")
    a.label("k1_kernel")
    a(f"s_cmp_ge_u32 s2, {N_K1}")
    a("s_cbranch_scc1 k1_exit")
    a("v_lshrrev_b32 v2, 6, v0")
    a("v_and_b32 v1, 63, v0")
    a("v_readfirstlane_b32 s44, v2")
    a("s_cmp_ge_u32 s44, 4")
    a("s_cbranch_scc1 k1_ln")
    gen_kgen(a)
    a.label("k1_ln")
    gen_ln(a)
    a.label("k1_exit")
    a("s_endpgm")


N_G1, N_CV = 176, 64
G1_STAGE = 49152
G1_W = 32768
K2_LDS = 3 * G1_STAGE
G1_NST = 8
CV_O, CV_Z, CV_U, CV_W = 4160, 8288, 8304, 12416


def gen_gemm1_loader(a):
    a("s_sub_u32 s30, s30, 8")
    a("v_lshrrev_b32 v3, 3, v1")
    a("v_and_b32 v4, 7, v1")
    a("v_lshrrev_b32 v5, 4, v1")
    for q in range(4):
        a(f"v_add_u32 v6, {4*q}, v5")
        a("v_and_b32 v6, 7, v6")
        a("v_xor_b32 v6, v6, v4")
        a("v_lshlrev_b32 v6, 4, v6")
        a("v_lshl_add_u32 v6, v3, 10, v6")
        a(f"v_add_u32 v{8+q}, {q*7168}, v6")
    a("v_and_b32 v6, 1, v5")
    a("v_lshrrev_b32 v7, 2, v4")
    a("v_xor_b32 v6, v6, v7")
    a("v_and_b32 v7, 3, v4")
    a("v_lshlrev_b32 v7, 3, v7")
    a("v_lshl_add_u32 v6, v6, 5, v7")
    a("s_lshl_b32 s31, s29, 6")
    a("v_add_u32 v6, s31, v6")
    a(f"v_mul_u32_u24 v12, {2*F}, v3")
    a("v_lshl_add_u32 v12, v6, 1, v12")
    a(f"v_add_u32 v13, {8*2*F-1024}, v12")
    a(f"v_cmp_le_u32 vcc, {F}, v6")
    a("v_mov_b32 v7, 0x40000000")
    a("s_lshl_b32 s32, s28, 18")
    a("v_cndmask_b32 v12, v12, v7, vcc")
    a("v_cndmask_b32 v13, v13, v7, vcc")
    a("s_lshl_b32 s33, s30, 16")
    a("s_add_u32 s32, s32, s33")
    a("s_add_u32 s36, s32, 32768")
    a(f"s_mul_i32 s33, s30, {16*2*F}")
    a("s_lshl_b32 s34, s30, 13")
    a("s_lshl_b32 s35, s30, 11")
    a(f"s_add_u32 s35, s35, {G1_W}")
    a("s_waitcnt lgkmcnt(0)")
    srd(a, 16, 4, W_BYTES)
    srd(a, 20, 6, W_BYTES)
    srd(a, 12, 8, L * D * 2, WS_XN)

    def dma(stage):
        b = (stage % 3) * G1_STAGE
        a(f"s_add_u32 m0, s35, {b}")
        a("s_nop 0")
        a("buffer_load_dwordx4 v12, s[16:19], s33 offen lds")
        a("buffer_load_dwordx4 v13, s[16:19], s33 offen offset:1024 lds")
        a(f"s_add_u32 m0, s35, {b+8192}")
        a("s_nop 0")
        a("buffer_load_dwordx4 v12, s[20:23], s33 offen lds")
        a("buffer_load_dwordx4 v13, s[20:23], s33 offen offset:1024 lds")
        a(f"s_add_u32 m0, s34, {b}")
        a(f"s_add_u32 s33, s33, {64*2*F}")
        for q in range(4):
            a(f"buffer_load_dwordx4 v{8+q}, s[12:15], s32 offen offset:{q*1024} lds")
        a(f"s_add_u32 m0, s34, {b+4096}")
        a("s_add_u32 s32, s32, 128")
        for q in range(4):
            a(f"buffer_load_dwordx4 v{8+q}, s[12:15], s36 offen offset:{q*1024} lds")
        a("s_add_u32 s36, s36, 128")

    dma(0)
    for st in range(G1_NST):
        if st + 1 < G1_NST:
            dma(st + 1)
        if st in (0, 1, 4):
            stamp(a)
        a(f"s_waitcnt vmcnt({12 if st + 1 < G1_NST else 0})")
        a("s_barrier")
    stamp_end(a, 1, 8)
    a("s_endpgm")


def gen_gemm1(a):
    stamp_begin(a)
    a(f"s_load_dwordx4 s[4:7], s[0:1], {KA_WG}")
    a(f"s_load_dwordx2 s[8:9], s[0:1], {KA_WS}")
    a("v_and_b32 v1, 63, v0")
    a("v_lshrrev_b32 v2, 6, v0")
    a("s_and_b32 s28, s2, 7")
    a("s_lshr_b32 s29, s2, 3")
    a("v_readfirstlane_b32 s30, v2")
    a("s_cmp_lt_u32 s30, 8")
    a("s_cbranch_scc1 k2_g1_compute")
    gen_gemm1_loader(a)
    a.label("k2_g1_compute")
    _stamp_n[0] = 1 if PROF else 0
    a("s_and_b32 s36, s30, 3")
    a("s_lshr_b32 s37, s30, 2")
    a("v_and_b32 v3, 31, v1")
    a("v_lshrrev_b32 v4, 5, v1")
    a("v_lshrrev_b32 v5, 1, v3")
    a("v_and_b32 v5, 7, v5")
    a("v_xor_b32 v5, v5, v4")
    a("v_lshlrev_b32 v6, 7, v3")
    a("s_lshl_b32 s38, s36, 13")
    a("v_add_u32 v6, s38, v6")
    for ks in range(4):
        a(f"v_xor_b32 v7, {2*ks}, v5")
        a(f"v_lshl_add_u32 v{16+ks}, v7, 4, v6")
    a("v_and_b32 v5, 15, v1")
    a("v_lshrrev_b32 v6, 2, v5")
    a("v_and_b32 v5, 3, v5")
    a("v_lshrrev_b32 v7, 4, v1")
    a("v_and_b32 v7, 1, v7")
    a("v_and_b32 v13, 1, v5")
    a("v_lshlrev_b32 v13, 5, v13")
    a("v_lshl_add_u32 v13, v7, 4, v13")
    a("v_lshrrev_b32 v5, 1, v5")
    a("v_lshl_add_u32 v13, v5, 3, v13")
    a("v_lshrrev_b32 v5, 1, v6")
    a("v_xor_b32 v5, s37, v5")
    a("v_lshl_add_u32 v13, v5, 6, v13")
    a("v_lshl_add_u32 v6, v4, 3, v6")
    a("v_lshl_add_u32 v13, v6, 7, v13")
    a(f"v_add_u32 v20, {G1_W}, v13")
    a("s_lshl_b32 s39, s28, 8")
    a("s_lshl_b32 s40, s36, 6")
    a("s_add_u32 s39, s39, s40")
    a("v_add_u32 v3, s39, v3")
    a(f"s_mov_b32 s41, {2*FP}")
    a("v_mul_lo_u32 v21, v3, s41")
    a("v_lshl_add_u32 v21, v4, 5, v21")
    a("s_lshl_b32 s42, s29, 7")
    a("s_lshl_b32 s43, s37, 6")
    a("s_add_u32 s42, s42, s43")
    a("s_waitcnt lgkmcnt(0)")
    srd(a, 24, 8, H_BYTES, WS_H)

    ACC = {("g", 0): 64, ("g", 1): 80, ("u", 0): 96, ("u", 1): 112}
    FS = [32, 48]

    def reads(n):
        ks = n & 3
        f = FS[n & 1]
        return [f"ds_read_b64_tr_b16 {vr(f,2)}, v20 offset:{ks*2048}",
                f"ds_read_b64_tr_b16 {vr(f+2,2)}, v20 offset:{ks*2048+512}",
                f"ds_read_b128 {vr(f+8,4)}, v{16+ks}",
                f"ds_read_b64_tr_b16 {vr(f+4,2)}, v20 offset:{8192+ks*2048}",
                f"ds_read_b64_tr_b16 {vr(f+6,2)}, v20 offset:{8192+ks*2048+512}",
                f"ds_read_b128 {vr(f+12,4)}, v{16+ks} offset:4096"]

    def mfmas(n):
        f = FS[n & 1]
        out = []
        for (w, j), fa, fb in ((("g", 0), f, f + 8), (("u", 0), f + 4, f + 8),
                               (("g", 1), f, f + 12), (("u", 1), f + 4, f + 12)):
            c = vr(ACC[(w, j)], 16)
            out.append(f"v_mfma_f32_32x32x16_bf16 {c}, {vr(fa,4)}, {vr(fb,4)}, {'0' if n == 0 else c}")
        return out

    NST = G1_NST
    for n in range(-1, 4 * NST):
        nx = n + 1
        if nx < 4 * NST:
            if nx & 3 == 0:
                st = nx >> 2
                if st in (0, 1, 4):
                    stamp(a)
                a("s_waitcnt lgkmcnt(0)")
                a("s_barrier")
                if st in (0,):
                    stamp(a)
                if st >= 1:
                    delta = G1_STAGE if st % 3 else -2 * G1_STAGE
                    for r in (16, 17, 18, 19, 20):
                        a(f"v_add_u32 v{r}, {delta & 0xffffffff:#x}, v{r}")
                for op in reads(nx):
                    a(op)
            else:
                for op in reads(nx):
                    a(op)
                if n >= 0:
                    a("s_waitcnt lgkmcnt(6)")
        else:
            a("s_waitcnt lgkmcnt(0)")
        if n >= 0:
            for op in mfmas(n):
                a(op)
    a("s_nop 15")
    stamp(a)
    for j in range(2):
        g, u = ACC[("g", j)], ACC[("u", j)]
        for k0 in range(0, 8, 2):
            for k, t in ((k0, 22), (k0 + 1, 26)):
                a(f"v_cvt_pk_bf16_f32 v{t}, v{g+2*k}, v{g+2*k+1}")
                a(f"v_cvt_pk_bf16_f32 v{t+1}, v{u+2*k}, v{u+2*k+1}")
            for k, t in ((k0, 22), (k0 + 1, 26)):
                a(f"v_pk_max_i16 v{t}, v{t}, 0")
                a(f"v_lshlrev_b32 v{g+2*k}, 16, v{t+1}")
                a(f"v_and_b32 v{g+2*k+1}, 0xffff0000, v{t+1}")
                a(f"v_lshlrev_b32 v{t+2}, 16, v{t}")
                a(f"v_and_b32 v{t+3}, 0xffff0000, v{t}")
            for k, t in ((k0, 22), (k0 + 1, 26)):
                a(f"v_pk_mul_f32 {vr(t+2,2)}, {vr(t+2,2)}, {vr(g+2*k,2)}")
            for k, t in ((k0, 22), (k0 + 1, 26)):
                a(f"v_cvt_pk_bf16_f32 v{32+8*j+k}, v{t+2}, v{t+3}")
        if j == 1:
            a(f"s_add_u32 s42, s42, {32*2*FP}")
        a(f"buffer_store_dwordx4 {vr(32+8*j,4)}, v21, s[24:27], s42 offen")
        a(f"buffer_store_dwordx4 {vr(36+8*j,4)}, v21, s[24:27], s42 offen offset:16")
    stamp_end(a, 1, 8)
    a("s_endpgm")


def gen_conv(a):
    stamp_begin(a)
    a(f"s_load_dwordx2 s[4:5], s[0:1], {KA_DSK}")
    a(f"s_load_dwordx2 s[8:9], s[0:1], {KA_WS}")
    a("v_and_b32 v1, 63, v0")
    a("v_lshrrev_b32 v2, 6, v0")
    a(f"s_sub_u32 s28, s2, {N_G1}")
    a("s_nop 0")
    a("v_readfirstlane_b32 s30, v2")
    a("s_cmp_ge_u32 s30, 8")
    a("s_cbranch_scc1 k2_exit")
    a("s_lshl_b32 s28, s28, 3")
    a("s_add_u32 s28, s28, s30")
    a(f"s_mul_i32 s31, s30, {CV_W}")
    a("s_lshl_b32 s32, s28, 13")
    a("s_add_u32 s33, s32, 4096")
    a("s_lshl_b32 s34, s28, 12")
    a("s_lshr_b32 s35, s28, 1")
    a("s_lshl_b32 s35, s35, 2")
    a("v_lshlrev_b32 v3, 4, v1")
    a("s_waitcnt lgkmcnt(0)")
    a("s_load_dword s36, s[4:5], s35")
    srd(a, 12, 8, D * 8192, WS_KR)
    srd(a, 16, 8, XNT_BYTES, WS_XNT)
    srd(a, 20, 8, L * D * 2, WS_AT)
    a(f"s_mul_i32 s44, s28, {XNT_STRIDE}")
    a(f"s_add_u32 m0, s31, {CV_U}")
    a("s_nop 0")
    for q in range(4):
        a(f"buffer_load_dwordx4 v3, s[16:19], s44 offen offset:{q*1024} lds")
    for qs in ((2, 3), (0, 1)):
        a("s_mov_b32 m0, s31")
        a("s_nop 0")
        for q in qs:
            a(f"buffer_load_dwordx4 v3, s[12:15], s32 offen offset:{q*1024} lds")
        a(f"s_add_u32 m0, s31, {CV_O}")
        a("s_nop 0")
        for q in qs:
            a(f"buffer_load_dwordx4 v3, s[12:15], s33 offen offset:{q*1024} lds")
    a("v_mov_b32 v4, 0")
    a("v_mov_b32 v5, 0")
    a("v_mov_b32 v6, 0")
    a("v_mov_b32 v7, 0")
    a(f"v_add_u32 v8, 4096, v3")
    a(f"v_add_u32 v9, {CV_O + 4096 - 32}, v3")
    a("v_cmp_gt_u32 vcc, 2, v1")
    a("s_nop 1")
    a("v_cndmask_b32 v8, v9, v8, vcc")
    a("v_add_u32 v8, s31, v8")
    a("v_cmp_gt_u32 vcc, 5, v1")
    a("s_and_saveexec_b64 s[38:39], vcc")
    a("ds_write_b128 v8, v[4:7]")
    a("s_mov_b64 exec, s[38:39]")
    a("v_and_b32 v4, 15, v1")
    a("v_lshrrev_b32 v5, 4, v1")
    a("v_lshlrev_b32 v6, 3, v5")
    a("v_sub_u32 v6, v6, v4")
    a("v_lshlrev_b32 v6, 1, v6")
    a("v_and_b32 v7, 1, v4")
    a(f"v_mov_b32 v8, {CV_O + 2*2030}")
    a(f"v_mov_b32 v9, {2*2031}")
    a("v_cmp_eq_u32 vcc, 1, v7")
    a("s_nop 1")
    a("v_cndmask_b32 v8, v8, v9, vcc")
    a("v_add_u32 v6, v6, v8")
    a("v_add_u32 v6, s31, v6")
    for P in range(4):
        a(f"v_subrev_u32 v{10+P}, {512*(2*P+1)+448}, v6")
    a("v_lshlrev_b32 v7, 5, v4")
    a("v_lshl_add_u32 v7, v5, 4, v7")
    a(f"s_add_u32 s37, s31, {CV_U - 32 - 448}")
    a("v_add_u32 v14, s37, v7")
    a(f"s_add_u32 s40, s31, {CV_Z}")
    for rho in range(8):
        a(f"v_add_u32 v{16+rho}, {64*(7-rho)}, v14")
        a(f"v_max_i32 v{16+rho}, s40, v{16+rho}")
    a("v_lshlrev_b32 v24, 5, v4")
    a("v_lshl_add_u32 v24, v5, 3, v24")
    a(f"s_add_u32 s41, s31, {CV_U}")
    a("v_add_u32 v25, s41, v24")

    ACC = 32
    SET = [64, 112]

    def loads(ph, rho):
        s = SET[rho & 1]
        out = []
        for m in range(8 if ph == 0 else 4):
            if m == 0:
                out.append(f"ds_read_b128 {vr(s+16,4)}, v{16+rho}")
            else:
                out.append(f"ds_read_b128 {vr(s+16+4*m,4)}, v14 offset:{512*m + 64*(7-rho)}")
            if m < 4:
                i = 4 * ph + m
                o = (64 * (7 - rho) + (0 if i & 1 else 512)) // 4
                out.append(f"ds_read2_b32 {vr(s+4*m,2)}, v{10+(i>>1)} offset0:{o} offset1:{o+1}")
                out.append(f"ds_read2_b32 {vr(s+4*m+2,2)}, v{10+(i>>1)} offset0:{o+2} offset1:{o+3}")
        return out

    def mfma(ph, rho, i, m):
        s = SET[rho & 1]
        c = vr(ACC + 4 * (i + m), 4)
        first = ph == 0 and rho == 0 and i == 0
        return (f"v_mfma_f32_16x16x32_bf16 {c}, {vr(s+4*(i-4*ph),4)}, {vr(s+16+4*m,4)}, "
                f"{'0' if first else c}")

    def mfmas(ph, rho):
        return [mfma(ph, rho, i, m) for i in range(4 * ph, 4 * ph + 4) for m in range(8 - i)]

    stamp(a)
    a("s_waitcnt vmcnt(4) lgkmcnt(0)")
    stamp(a)
    a("s_and_b32 s42, s28, 1")
    a("s_lshl_b32 s43, s36, 16")
    a("s_and_b32 s36, s36, 0xffff0000")
    a("s_cmp_eq_u32 s42, 0")
    a("s_cselect_b32 s36, s43, s36")
    for op in loads(0, 0):
        a(op)

    UREG = SET[0] + 32

    def tile_epilogue(t):
        y = ACC + 4 * t
        u = UREG + 2 * t
        w = 2 if t & 1 else SET[1] + 32
        return [f"v_lshlrev_b32 v{w}, 16, v{u}",
                f"v_and_b32 v{w+1}, 0xffff0000, v{u}",
                f"v_lshlrev_b32 v{w+2}, 16, v{u+1}",
                f"v_and_b32 v{w+3}, 0xffff0000, v{u+1}",
                f"v_pk_mul_f32 {vr(w,2)}, {vr(w,2)}, s[36:37]",
                f"v_pk_mul_f32 {vr(w+2,2)}, {vr(w+2,2)}, s[36:37]",
                f"v_cvt_pk_bf16_f32 v{u}, v{w}, v{w+1}",
                f"v_cvt_pk_bf16_f32 v{u+1}, v{w+2}, v{w+3}",
                f"v_cvt_pk_bf16_f32 v{w+5}, v{y}, v{y+1}",
                f"v_cvt_pk_bf16_f32 v{w+7}, v{y+2}, v{y+3}",
                f"v_lshlrev_b32 v{w}, 16, v{u}",
                f"v_and_b32 v{w+1}, 0xffff0000, v{u}",
                f"v_lshlrev_b32 v{w+2}, 16, v{u+1}",
                f"v_and_b32 v{w+3}, 0xffff0000, v{u+1}",
                f"v_lshlrev_b32 v{w+4}, 16, v{w+5}",
                f"v_and_b32 v{w+5}, 0xffff0000, v{w+5}",
                f"v_lshlrev_b32 v{w+6}, 16, v{w+7}",
                f"v_and_b32 v{w+7}, 0xffff0000, v{w+7}",
                f"v_pk_add_f32 {vr(w,2)}, {vr(w,2)}, {vr(w+4,2)}",
                f"v_pk_add_f32 {vr(w+2,2)}, {vr(w+2,2)}, {vr(w+6,2)}",
                f"v_cvt_pk_bf16_f32 v{u}, v{w}, v{w+1}",
                f"v_cvt_pk_bf16_f32 v{u+1}, v{w+2}, v{w+3}",
                f"buffer_store_dwordx2 {vr(u,2)}, v24, s[20:23], s34 offen offset:{512*t}"]

    a("s_mov_b32 s37, s36")
    for rho in range(8):
        a("s_waitcnt lgkmcnt(0)" if rho < 7 else "s_waitcnt vmcnt(0) lgkmcnt(0)")
        nxt = loads(0, rho + 1) if rho < 7 else loads(1, 0)
        if rho == 7:
            nxt += [f"ds_read_b64 {vr(UREG+2*t,2)}, v25 offset:{512*t}" for t in range(8)]
        for op in interleave(mfmas(0, rho), nxt):
            a(op)
    for rho in range(7):
        a("s_waitcnt lgkmcnt(0)")
        fill = loads(1, rho + 1)
        if 1 <= rho <= 4:
            fill = interleave(fill, tile_epilogue(rho - 1), every=1)
        mm = mfmas(1, rho)
        per = -(-len(fill) // len(mm))
        for i, m in enumerate(mm):
            a(m)
            for op in fill[i * per:(i + 1) * per]:
                a(op)
    a("s_waitcnt lgkmcnt(0)")
    seq = {t: [mfma(1, 7, i, t - i) for i in range(4, t + 1)] for t in range(4, 8)}
    for op in seq[4] + seq[5] + seq[6]:
        a(op)
    e4 = tile_epilogue(4)
    for i, m in enumerate(seq[7]):
        a(m)
        for op in e4[6 * i:6 * i + 6]:
            a(op)
    stamp(a)
    for op in interleave(tile_epilogue(5), tile_epilogue(6)) + tile_epilogue(7):
        a(op)
    stamp_end(a, 1, 8)
    a("s_endpgm")


def gen_k2(a):
    a.raw(".p2align 8")
    a.label("k2_kernel")
    a(f"s_cmp_ge_u32 s2, {N_G1 + N_CV}")
    a("s_cbranch_scc1 k2_exit")
    a(f"s_cmp_ge_u32 s2, {N_G1}")
    a("s_cbranch_scc1 k2_conv")
    gen_gemm1(a)
    a.label("k2_conv")
    gen_conv(a)
    a.label("k2_exit")
    a("s_endpgm")


N_G2 = 256
G2_NS = 8
G2_STAGE = 16384
G2_AT = G2_NS * G2_STAGE
K3_LDS = G2_AT + 8192
G2_NST = FP // 64
G2_LEAD = 4


def gen_k3(a):
    a.raw(".p2align 8")
    a.label("k3_kernel")
    a(f"s_cmp_ge_u32 s2, {N_G2}")
    a("s_cbranch_scc1 k3_exit")
    stamp_begin(a)
    a(f"s_load_dwordx2 s[4:5], s[0:1], {KA_U}")
    a(f"s_load_dwordx4 s[8:11], s[0:1], {KA_WD}")
    a(f"s_load_dwordx2 s[6:7], s[0:1], {KA_WS}")
    a("v_and_b32 v1, 63, v0")
    a("v_lshrrev_b32 v2, 6, v0")
    a("s_and_b32 s32, s2, 7")
    a("s_lshr_b32 s33, s2, 3")
    a("v_readfirstlane_b32 s34, v2")
    a("s_lshl_b32 s32, s32, 8")
    a("s_and_b32 s35, s33, 3")
    a("s_lshl_b32 s35, s35, 6")
    a("s_add_u32 s32, s32, s35")
    a("s_lshr_b32 s33, s33, 2")
    a("s_lshl_b32 s33, s33, 6")
    a("s_cmp_lt_u32 s34, 4")
    a("s_cbranch_scc1 k3_compute")
    a("s_sub_u32 s34, s34, 4")
    a("v_lshrrev_b32 v3, 3, v1")
    a("v_and_b32 v4, 7, v1")
    a("v_lshrrev_b32 v5, 4, v1")
    a(f"v_mul_u32_u24 v7, {2*FP}, v3")
    a("s_lshl_b32 s36, s34, 2")
    a("v_add_u32 v6, s36, v5")
    a("v_and_b32 v6, 7, v6")
    a("v_xor_b32 v6, v6, v4")
    a("v_lshl_add_u32 v8, v6, 4, v7")
    a("v_and_b32 v6, 1, v5")
    a("v_lshlrev_b32 v6, 2, v6")
    a("v_xor_b32 v6, v6, v4")
    a("v_lshlrev_b32 v6, 4, v6")
    a("v_lshl_add_u32 v10, v3, 10, v6")
    a("v_lshl_add_u32 v12, v3, 12, v6")
    a("s_lshl_b32 s36, s34, 3")
    a("s_add_u32 s37, s36, s32")
    a(f"s_mul_i32 s37, s37, {2*FP}")
    a("s_lshl_b32 s38, s36, 10")
    a("s_lshl_b32 s39, s33, 1")
    a("s_add_u32 s38, s38, s39")
    a("s_add_u32 s39, s36, s33")
    a("s_lshl_b32 s39, s39, 12")
    a("s_lshl_b32 s40, s32, 1")
    a("s_add_u32 s39, s39, s40")
    a("s_lshl_b32 s40, s34, 10")
    a("s_waitcnt lgkmcnt(0)")
    srd(a, 16, 8, W_BYTES)
    srd(a, 12, 6, H_BYTES, WS_H)
    srd(a, 20, 6, L * D * 2, WS_AT)

    def dma(stage):
        b = (stage % G2_NS) * G2_STAGE
        a(f"s_add_u32 m0, s40, {b+8192}")
        a("s_nop 0")
        a("buffer_load_dwordx4 v10, s[16:19], s38 offen lds")
        a(f"s_add_u32 m0, s40, {b}")
        a("s_add_u32 s38, s38, 65536")
        a("buffer_load_dwordx4 v8, s[12:15], s37 offen lds")
        a("s_add_u32 s37, s37, 128")

    AT_AFTER = 3
    issued = 0
    for st in range(G2_NST):
        want = min(G2_NST - 1, 2 * st + 2, st + G2_LEAD)
        while issued <= want:
            dma(issued)
            if issued == AT_AFTER:
                a(f"s_add_u32 m0, s40, {G2_AT}")
                a("s_nop 0")
                a("buffer_load_dwordx4 v12, s[20:23], s39 offen lds")
            issued += 1
        vm = 2 * (issued - 1 - st) + (1 if st <= AT_AFTER < issued else 0)
        if st in (0, 8, 16):
            stamp(a)
        a(f"s_waitcnt vmcnt({vm})")
        a("s_barrier")
    stamp_end(a, 2, 6)
    a("s_endpgm")
    a.label("k3_compute")
    _stamp_n[0] = 1 if PROF else 0
    a("s_and_b32 s41, s34, 1")
    a("s_lshr_b32 s42, s34, 1")
    a("v_and_b32 v3, 31, v1")
    a("v_lshrrev_b32 v4, 5, v1")
    a("s_lshl_b32 s43, s41, 5")
    a("s_add_u32 s43, s43, s32")
    a("v_add_u32 v14, s43, v3")
    a("v_lshlrev_b32 v14, 10, v14")
    a("v_lshl_add_u32 v14, v4, 5, v14")
    a("s_lshl_b32 s44, s42, 5")
    a("s_add_u32 s44, s44, s33")
    a("s_lshl_b32 s44, s44, 1")
    a("v_lshrrev_b32 v5, 1, v3")
    a("v_and_b32 v5, 7, v5")
    a("v_xor_b32 v5, v5, v4")
    a("v_lshlrev_b32 v6, 7, v3")
    a("s_lshl_b32 s45, s41, 12")
    a("v_add_u32 v6, s45, v6")
    for ks in range(4):
        a(f"v_xor_b32 v7, {2*ks}, v5")
        a(f"v_lshl_add_u32 v{16+ks}, v7, 4, v6")
    a("v_and_b32 v5, 15, v1")
    a("v_lshrrev_b32 v6, 2, v5")
    a("v_and_b32 v5, 3, v5")
    a("v_lshrrev_b32 v7, 4, v1")
    a("v_and_b32 v7, 1, v7")
    a("v_lshlrev_b32 v21, 3, v5")
    a("v_lshl_add_u32 v21, v7, 5, v21")
    a("v_lshrrev_b32 v22, 1, v6")
    a("v_xor_b32 v23, s41, v22")
    a("v_lshl_add_u32 v21, v23, 6, v21")
    a("v_lshl_add_u32 v23, v4, 4, v6")
    a("v_lshl_add_u32 v21, v23, 7, v21")
    a("s_lshl_b32 s45, s42, 12")
    a(f"s_add_u32 s45, s45, {G2_AT}")
    a("v_add_u32 v21, s45, v21")
    a("v_and_b32 v15, 1, v5")
    a("v_lshlrev_b32 v15, 5, v15")
    a("v_lshl_add_u32 v15, v7, 4, v15")
    a("v_lshrrev_b32 v5, 1, v5")
    a("v_lshl_add_u32 v15, v5, 3, v15")
    a("v_xor_b32 v22, s42, v22")
    a("v_lshl_add_u32 v15, v22, 6, v15")
    a("v_lshl_add_u32 v6, v4, 3, v6")
    a("v_lshl_add_u32 v15, v6, 7, v15")
    a("v_add_u32 v20, 8192, v15")
    a("s_waitcnt lgkmcnt(0)")
    srd(a, 24, 4, L * D * 2)
    srd(a, 28, 10, L * D * 2)
    a("buffer_load_dwordx4 v[24:27], v14, s[24:27], s44 offen")
    a("buffer_load_dwordx4 v[28:31], v14, s[24:27], s44 offen offset:16")

    ACC = 32
    FS = [48, 80]
    XA = 112
    ATR = 128
    AT_ST = 10

    def reads(st):
        f = FS[st & 1]
        o = (st % 4) * G2_STAGE
        out = []
        for ks in range(4):
            out.append(f"ds_read_b64_tr_b16 {vr(f+8*ks,2)}, v20 offset:{o+ks*2048}")
            out.append(f"ds_read_b64_tr_b16 {vr(f+8*ks+2,2)}, v20 offset:{o+ks*2048+512}")
            out.append(f"ds_read_b128 {vr(f+8*ks+4,4)}, v{16+ks} offset:{o}")
        return out

    def mfmas(st):
        f = FS[st & 1]
        c = vr(ACC, 16)
        return [f"v_mfma_f32_32x32x16_bf16 {c}, {vr(f+8*ks,4)}, {vr(f+8*ks+4,4)}, "
                f"{'0' if st == 0 and ks == 0 else c}" for ks in range(4)]

    def xa_ops(k):
        x, t = XA + 2 * k, 4
        return [f"v_lshlrev_b32 v{x}, 16, v{24+k}",
                f"v_and_b32 v{x+1}, 0xffff0000, v{24+k}",
                f"v_lshlrev_b32 v{t}, 16, v{ATR+k}",
                f"v_and_b32 v{t+1}, 0xffff0000, v{ATR+k}",
                f"v_pk_add_f32 {vr(x,2)}, {vr(x,2)}, {vr(t,2)}",
                f"v_cvt_pk_bf16_f32 v{x+1}, v{x}, v{x+1}",
                f"v_lshlrev_b32 v{x}, 16, v{x+1}",
                f"v_and_b32 v{x+1}, 0xffff0000, v{x+1}"]

    for st in range(-1, G2_NST):
        nx = st + 1
        body = []
        if nx < G2_NST:
            if nx in (0, 8, 16):
                stamp(a)
            a("s_waitcnt lgkmcnt(0)" if nx != AT_ST + 1 else "s_waitcnt vmcnt(0) lgkmcnt(0)")
            a("s_barrier")
            if nx and nx % 4 == 0:
                delta = 65536 if (nx % G2_NS) == 4 else -65536
                for r in (16, 17, 18, 19, 20):
                    a(f"v_add_u32 v{r}, {delta & 0xffffffff:#x}, v{r}")
            body = reads(nx)
            if nx == AT_ST:
                body += [f"ds_read_b64_tr_b16 {vr(ATR+2*i,2)}, v21 offset:{512*i}" for i in range(4)]
        else:
            a("s_waitcnt lgkmcnt(0)")
        if st >= 0:
            body = interleave(body, mfmas(st), every=3) if body else mfmas(st)
        if AT_ST < nx <= AT_ST + 4:
            k = 2 * (nx - AT_ST - 1)
            body += xa_ops(k) + xa_ops(k + 1)
        for op in body:
            a(op)
    a("s_nop 15")
    stamp(a)
    for k in range(8):
        a(f"v_cvt_pk_bf16_f32 v{48+k}, v{ACC+2*k}, v{ACC+2*k+1}")
    for k in range(8):
        a(f"v_lshlrev_b32 v{ACC+2*k}, 16, v{48+k}")
        a(f"v_and_b32 v{ACC+2*k+1}, 0xffff0000, v{48+k}")
    for k in range(8):
        a(f"v_pk_add_f32 {vr(ACC+2*k,2)}, {vr(ACC+2*k,2)}, {vr(XA+2*k,2)}")
    for k in range(8):
        a(f"v_cvt_pk_bf16_f32 v{56+k}, v{ACC+2*k}, v{ACC+2*k+1}")
        if k == 3:
            a("buffer_store_dwordx4 v[56:59], v14, s[28:31], s44 offen")
    a("buffer_store_dwordx4 v[60:63], v14, s[28:31], s44 offen offset:16")
    stamp_end(a, 2, 6)
    a.label("k3_exit")
    a("s_endpgm")


def descriptor(name, vgpr, sgpr):
    acc = (vgpr + 3) // 4 * 4
    return f""".p2align 6
.amdhsa_kernel {name}
  .amdhsa_next_free_vgpr {vgpr}
  .amdhsa_next_free_sgpr {sgpr}
  .amdhsa_accum_offset {acc}
  .amdhsa_group_segment_fixed_size 0
  .amdhsa_kernarg_size 112
  .amdhsa_user_sgpr_count 2
  .amdhsa_user_sgpr_kernarg_segment_ptr 1
  .amdhsa_system_sgpr_workgroup_id_x 1
.end_amdhsa_kernel
"""


def main(path):
    a = Asm()
    a.raw(f"; @launch kernel=k1_kernel grid=({N_K1},1,1) block=(512,1,1) lds={K1_LDS}")
    a.raw(f"; @launch kernel=k2_kernel grid=({N_G1+N_CV},1,1) block=(768,1,1) lds={K2_LDS}")
    a.raw(f"; @launch kernel=k3_kernel grid=({N_G2},1,1) block=(768,1,1) lds={K3_LDS}")
    a.raw('.amdgcn_target "amdgcn-amd-amdhsa--gfx950"')
    a.raw(".text")
    for k in ("k1_kernel", "k2_kernel", "k3_kernel"):
        a.raw(f".globl {k}")
        a.raw(f".type {k},@function")
    gen_k1(a)
    gen_k2(a)
    gen_k3(a)
    a.raw('.section .rodata,"a"')
    sg = 102 if PROF else 0
    a.raw(descriptor("k1_kernel", 164, max(sg, 72)))
    a.raw(descriptor("k2_kernel", 160, max(sg, 56)))
    a.raw(descriptor("k3_kernel", 136, max(sg, 56)))
    open(path, "w").write(a.text())


if __name__ == "__main__":
    if "--prof" in sys.argv:
        sys.argv.remove("--prof")
        PROF = True
    main(sys.argv[1] if len(sys.argv) > 1 else f"cdna_kernels/{NAME}.s")
```

```python
import struct
import sys

NAME = "parallel_sum__ssm_conv_s4d__glu_gated_reglu__prompt"

L, D, N, F = 2048, 512, 128, 1376
FP = 1408
WS_XN = 0x000000
WS_XNT = 0x240000
WS_KR = 0x480000
WS_H = 0x880000
WS_AT = 0xE80000
XN_STRIDE = 1024 + 128
XN_BYTES = L * XN_STRIDE
H_STRIDE = 2 * FP + 128
H_BYTES = L * H_STRIDE
XNT_STRIDE = 4096 + 128
XNT_BYTES = D * XNT_STRIDE
W_BYTES = D * F * 2
WS_END = WS_AT + L * D * 2
TOUCH = True

KA_U, KA_LAR, KA_AI, KA_CR, KA_CI, KA_LDT, KA_DSK, KA_BX, KA_WG, KA_WU, KA_WD, KA_OUT, KA_DBG, KA_WS = \
    [8 * i for i in range(14)]


def f32(x):
    return "0x%08x" % struct.unpack("<I", struct.pack("<f", x))[0]


class Asm:
    def __init__(self):
        self.lines = []

    def __call__(self, s):
        for ln in s.strip("\n").split("\n"):
            self.lines.append("  " + ln.strip())

    def label(self, s):
        self.lines.append(s + ":")

    def raw(self, s):
        self.lines.append(s)

    def text(self):
        return "\n".join(self.lines) + "\n"


PROF = False
PROF_BASE = 0x1400000
_stamp_n = [0]


def stamp_begin(a):
    _stamp_n[0] = 0
    if PROF:
        a("s_memrealtime s[80:81]")
        a("s_memtime s[82:83]")
        _stamp_n[0] = 1


def stamp(a):
    if PROF:
        k = _stamp_n[0]
        a(f"s_memtime s[{82+2*k}:{83+2*k}]")
        _stamp_n[0] += 1


def stamp_end(a, launch, ws_lo):
    if not PROF:
        return
    stamp(a)
    n = _stamp_n[0]
    a("s_waitcnt lgkmcnt(0)")
    a("s_memrealtime s[98:99]")
    a(f"s_add_u32 s76, s{ws_lo}, {PROF_BASE}")
    a(f"s_addc_u32 s77, s{ws_lo+1}, 0")
    a("s_mov_b32 s78, 0x1000000")
    a("s_mov_b32 s79, 0x00020000")
    a("v_lshrrev_b32 v2, 6, v0")
    a(f"s_add_u32 s75, s2, {launch*512}")
    a("s_lshl_b32 s75, s75, 10")
    a("v_lshlrev_b32 v2, 6, v2")
    a("v_add_u32 v2, s75, v2")
    a("s_waitcnt lgkmcnt(0)")
    a("v_mov_b32 v4, s80")
    a("v_mov_b32 v5, s98")
    a("buffer_store_dwordx2 v[4:5], v2, s[76:79], 0 offen")
    for k in range(n):
        a(f"v_mov_b32 v6, s{82+2*k}")
        a(f"buffer_store_dword v6, v2, s[76:79], 0 offen offset:{8+4*k}")
        a("s_nop 1")


def vr(b, n):
    return "v[%d:%d]" % (b, b + n - 1)


def sr(b, n):
    return "s[%d:%d]" % (b, b + n - 1)


def srd(a, dst, base, nbytes, add=0):
    if add:
        a(f"s_add_u32 s{dst}, s{base}, {add}")
        a(f"s_addc_u32 s{dst+1}, s{base+1}, 0")
    else:
        a(f"s_mov_b32 s{dst}, s{base}")
        a(f"s_mov_b32 s{dst+1}, s{base+1}")
    a(f"s_mov_b32 s{dst+2}, {nbytes}")
    a(f"s_mov_b32 s{dst+3}, 0x00020000")


def interleave(main, fill, every=1, start=0):
    out = []
    fill = list(fill)
    for i, m in enumerate(main):
        out.append(m)
        if i >= start and (i - start) % every == every - 1 and fill:
            out.append(fill.pop(0))
    out.extend(fill)
    return out


N_K1 = 256
LN_STRIDE = 1088
KG_ROW = 544
KG_XA, KG_YB, KG_T = 0, 24 * KG_ROW, 56 * KG_ROW
KG_CH = KG_T + 3072
LN_LDS = 2 * KG_CH
K1_LDS = LN_LDS + 8 * LN_STRIDE
LOG2E = 1.4426950408889634
L_HI = 47274.0 / 32768.0
C_LO = (LOG2E - L_HI) * 0.6931471805599453
T_BIAS = 0x3F7F
PF_W = 6


def dpp_reduce(a, regs):
    steps = ["row_shr:1 row_mask:0xf bank_mask:0xf bound_ctrl:0",
             "row_shr:2 row_mask:0xf bank_mask:0xf bound_ctrl:0",
             "row_shr:4 row_mask:0xf bank_mask:0xf bound_ctrl:0",
             "row_shr:8 row_mask:0xf bank_mask:0xf bound_ctrl:0",
             "row_bcast:15 row_mask:0xa bank_mask:0xf",
             "row_bcast:31 row_mask:0xc bank_mask:0xf"]
    a("s_nop 1")
    for st in steps:
        for r in regs:
            a(f"v_add_f32_dpp v{r}, v{r}, v{r} {st}")
    a("s_nop 1")


def bf16_round(a, dst, src):
    a(f"v_cvt_pk_bf16_f32 v{dst}, v{src}, v{src}")
    a(f"v_lshlrev_b32 v{dst}, 16, v{dst}")


def gen_ln(a):
    stamp_begin(a)
    a(f"s_load_dwordx2 s[4:5], s[0:1], {KA_U}")
    a(f"s_load_dwordx2 s[6:7], s[0:1], {KA_WS}")
    a(f"s_load_dwordx4 s[48:51], s[0:1], {KA_WG}")
    a(f"s_load_dwordx4 s[68:71], s[0:1], {KA_WD}")
    a(f"s_load_dwordx2 s[54:55], s[0:1], {KA_DSK}")
    a("s_sub_u32 s22, s44, 4")
    a("s_and_b32 s20, s2, 7")
    a("s_lshr_b32 s21, s2, 3")
    a("s_lshl_b32 s20, s20, 8")
    a("s_lshl_b32 s23, s21, 3")
    a("s_add_u32 s20, s20, s23")
    a("s_lshl_b32 s23, s22, 1")
    a("s_add_u32 s23, s23, s20")
    a("s_lshl_b32 s24, s23, 10")
    a(f"s_mul_i32 s53, s23, {XN_STRIDE}")
    a("v_lshlrev_b32 v3, 4, v1")
    a("s_lshl_b32 s52, s2, 2")
    a("s_add_u32 s52, s52, s22")
    a("s_lshl_b32 s52, s52, 11")
    a(f"s_mul_i32 s25, s22, {2*LN_STRIDE}")
    a(f"s_add_u32 s25, s25, {LN_LDS}")
    a("v_add_u32 v4, s25, v3")
    a("v_and_b32 v5, 15, v1")
    a("v_lshrrev_b32 v6, 2, v5")
    a("v_and_b32 v5, 3, v5")
    a("v_lshrrev_b32 v7, 4, v1")
    a(f"v_mul_u32_u24 v6, {LN_STRIDE}, v6")
    a("v_lshlrev_b32 v5, 3, v5")
    a("v_lshl_add_u32 v5, v7, 5, v5")
    a("v_add_u32 v5, v5, v6")
    a("s_lshl_b32 s26, s22, 8")
    a(f"s_add_u32 s26, s26, {LN_LDS}")
    a("v_add_u32 v5, s26, v5")
    a("s_lshl_b32 s27, s22, 7")
    a("v_add_u32 v6, s27, v1")
    a(f"v_mul_u32_u24 v6, {XNT_STRIDE}, v6")
    a("s_lshl_b32 s28, s20, 1")
    a(f"s_add_u32 s29, s28, {64*XNT_STRIDE}")
    a("s_waitcnt lgkmcnt(0)")
    srd(a, 8, 4, L * D * 2)
    for r in range(2):
        a(f"buffer_load_dwordx4 {vr(8+4*r,4)}, v3, s[8:11], s24 offen offset:{r*1024}")
    srd(a, 56, 48, W_BYTES)
    srd(a, 60, 50, W_BYTES)
    srd(a, 64, 68, W_BYTES)
    if TOUCH:
        a("s_cmp_ge_u32 s2, 16")
        a("s_cbranch_scc1 k1_no_touch")
        srd(a, 12, 6, WS_END)
        srd(a, 16, 70, L * D * 2)
        a("v_lshlrev_b32 v60, 18, v1")
        a("s_lshl_b32 s45, s22, 16")
        a("buffer_load_dword v61, v60, s[12:15], s45 offen")
        a("v_lshlrev_b32 v60, 15, v1")
        a(f"s_mov_b32 s45, {1 << 24}")
        a("buffer_load_dword v61, v60, s[12:15], s45 offen")
        a("buffer_load_dword v61, v60, s[16:19], 0 offen")
        srd(a, 16, 54, D * 2)
        a("buffer_load_dword v61, v3, s[16:19], 0 offen")
        for i in range(2):
            a(f"buffer_load_dwordx4 v[72:75], v3, s[56:59], s52 offen offset:{i*1024}")
        a("s_branch k1_touched")
        a.label("k1_no_touch")
    for i in range(2):
        for b in (56, 60, 64):
            a(f"buffer_load_dwordx4 v[72:75], v3, {sr(b,4)}, s52 offen offset:{i*1024}")
    if TOUCH:
        a.label("k1_touched")
    srd(a, 12, 6, XN_BYTES, WS_XN)
    srd(a, 16, 6, XNT_BYTES, WS_XNT)
    X = lambda r, e: 32 + 8 * r + e
    stamp(a)
    for r in range(2):
        a(f"s_waitcnt vmcnt({PF_W + 1 - r})")
        if r == 0:
            stamp(a)
        for k in range(4):
            a(f"v_lshlrev_b32 v{X(r,2*k)}, 16, v{8+4*r+k}")
            a(f"v_and_b32 v{X(r,2*k+1)}, 0xffff0000, v{8+4*r+k}")
        a(f"v_readfirstlane_b32 s{30+2*r}, v{X(r,0)}")
        a(f"v_pk_add_f32 v[48:49], {vr(X(r,0),2)}, {vr(X(r,2),2)}")
        a(f"v_pk_add_f32 v[50:51], {vr(X(r,4),2)}, {vr(X(r,6),2)}")
        a(f"s_mov_b32 s{31+2*r}, s{30+2*r}")
        a("v_pk_add_f32 v[48:49], v[48:49], v[50:51]")
        for k in range(4):
            a(f"v_pk_add_f32 {vr(52+2*k,2)}, {vr(X(r,2*k),2)}, {sr(30+2*r,2)} neg_lo:[0,1] neg_hi:[0,1]")
        a(f"v_add_f32 v{24+2*r}, v48, v49")
        a("v_pk_mul_f32 v[50:51], v[52:53], v[52:53]")
        a("v_pk_mul_f32 v[48:49], v[54:55], v[54:55]")
        a("v_pk_fma_f32 v[50:51], v[56:57], v[56:57], v[50:51]")
        a("v_pk_fma_f32 v[48:49], v[58:59], v[58:59], v[48:49]")
        a("v_pk_add_f32 v[48:49], v[48:49], v[50:51]")
        a(f"v_add_f32 v{25+2*r}, v48, v49")
    dpp_reduce(a, [24, 25, 26, 27])
    for r in range(2):
        a(f"v_mul_f32 v{24+2*r}, {f32(1.0/512)}, v{24+2*r}")
        a(f"v_mul_f32 v{25+2*r}, {f32(1.0/512)}, v{25+2*r}")
    for r in range(2):
        a(f"v_subrev_f32 v{28+r}, s{30+2*r}, v{24+2*r}")
        bf16_round(a, 24 + 2 * r, 24 + 2 * r)
    for r in range(2):
        a(f"v_fma_f32 v{25+2*r}, -v{28+r}, v{28+r}, v{25+2*r}")
        a(f"v_max_f32 v{25+2*r}, 0, v{25+2*r}")
    for r in range(2):
        bf16_round(a, 25 + 2 * r, 25 + 2 * r)
    for r in range(2):
        a(f"v_add_f32 v{25+2*r}, {f32(1e-5)}, v{25+2*r}")
        a(f"v_readlane_b32 s{36+2*r}, v{24+2*r}, 63")
    for r in range(2):
        bf16_round(a, 25 + 2 * r, 25 + 2 * r)
    for r in range(2):
        a(f"v_sqrt_f32 v{25+2*r}, v{25+2*r}")
    for r in range(2):
        a(f"s_mov_b32 s{37+2*r}, s{36+2*r}")
    for r in range(2):
        bf16_round(a, 25 + 2 * r, 25 + 2 * r)
    for r in range(2):
        a(f"v_rcp_f32 v{25+2*r}, v{25+2*r}")
    for r in range(2):
        for k in range(4):
            a(f"v_pk_add_f32 {vr(X(r,2*k),2)}, {vr(X(r,2*k),2)}, {sr(36+2*r,2)} neg_lo:[0,1] neg_hi:[0,1]")
    for r in range(2):
        a(f"v_readlane_b32 s{40+2*r}, v{25+2*r}, 63")
    for r in range(2):
        for k in range(4):
            a(f"v_cvt_pk_bf16_f32 v{8+4*r+k}, v{X(r,2*k)}, v{X(r,2*k+1)}")
    for r in range(2):
        a(f"s_mov_b32 s{41+2*r}, s{40+2*r}")
    for r in range(2):
        for k in range(4):
            a(f"v_lshlrev_b32 v{X(r,2*k)}, 16, v{8+4*r+k}")
            a(f"v_and_b32 v{X(r,2*k+1)}, 0xffff0000, v{8+4*r+k}")
        for k in range(4):
            a(f"v_pk_mul_f32 {vr(X(r,2*k),2)}, {vr(X(r,2*k),2)}, {sr(40+2*r,2)}")
        for k in range(4):
            a(f"v_cvt_pk_bf16_f32 v{16+4*r+k}, v{X(r,2*k)}, v{X(r,2*k+1)}")
        a(f"ds_write_b128 v4, {vr(16+4*r,4)} offset:{r*LN_STRIDE}")
        a(f"buffer_store_dwordx4 {vr(16+4*r,4)}, v3, s[12:15], s53 offen offset:{r*XN_STRIDE}")
    a("s_waitcnt lgkmcnt(0)")
    stamp(a)
    a("s_barrier")
    for blk in range(2):
        for tb in range(2):
            a(f"ds_read_b64_tr_b16 {vr(32+4*blk+2*tb,2)}, v5 offset:{blk*128 + tb*4*LN_STRIDE}")
    a("s_waitcnt lgkmcnt(2)")
    a("buffer_store_dwordx4 v[32:35], v6, s[16:19], s28 offen")
    a("s_waitcnt lgkmcnt(0)")
    a("buffer_store_dwordx4 v[36:39], v6, s[16:19], s29 offen")
    stamp_end(a, 0, 6)
    a("s_endpgm")


def exp_acc(a, dst, x, t):
    a(f"v_mul_f32 v{dst}, {f32(L_HI)}, v{x}")
    a(f"v_exp_f32 v{dst}, v{dst}")
    a(f"v_mul_f32 v{t}, {f32(C_LO)}, v{x}")
    a(f"v_fma_f32 v{dst}, v{dst}, v{t}, v{dst}")


def cmul(t, z, w):
    return [f"v_pk_mul_f32 {vr(t,2)}, {vr(z,2)}, {vr(w,2)} op_sel:[0,0] op_sel_hi:[1,0]",
            f"v_pk_fma_f32 {vr(t,2)}, {vr(z,2)}, {vr(w,2)}, {vr(t,2)} op_sel:[1,1,0] op_sel_hi:[0,1,1] "
            f"neg_lo:[1,0,0]"]


def gen_kgen(a):
    stamp_begin(a)
    a(f"s_load_dwordx8 s[4:11], s[0:1], {KA_LAR}")
    a(f"s_load_dwordx2 s[12:13], s[0:1], {KA_LDT}")
    a(f"s_load_dwordx2 s[14:15], s[0:1], {KA_WS}")
    a("s_and_b32 s41, s2, 7")
    a("s_lshr_b32 s42, s2, 3")
    a("s_lshr_b32 s43, s42, 2")
    a("s_lshl_b32 s43, s43, 6")
    a("s_lshl_b32 s41, s41, 3")
    a("s_add_u32 s41, s41, s43")
    a("s_and_b32 s42, s42, 3")
    a("s_lshl_b32 s42, s42, 1")
    a("s_add_u32 s41, s41, s42")
    a("s_lshr_b32 s45, s44, 1")
    a("s_and_b32 s46, s44, 1")
    a("s_add_u32 s47, s41, s45")
    a("s_lshl_b32 s48, s46, 6")
    a("v_add_u32 v3, s48, v1")
    a("s_lshl_b32 s49, s47, 8")
    a("v_lshlrev_b32 v4, 1, v3")
    a("s_lshl_b32 s50, s47, 1")
    a("v_mov_b32 v5, s50")
    a("s_waitcnt lgkmcnt(0)")
    srd(a, 16, 4, D * N * 2)
    srd(a, 32, 12, D * 2)
    a("buffer_load_ushort v8, v4, s[16:19], s49 offen")
    a("buffer_load_ushort v12, v5, s[32:35], 0 offen")
    srd(a, 20, 6, D * N * 2)
    a("buffer_load_ushort v9, v4, s[20:23], s49 offen")
    srd(a, 24, 8, D * N * 2)
    a("buffer_load_ushort v10, v4, s[24:27], s49 offen")
    srd(a, 28, 10, D * N * 2)
    a("buffer_load_ushort v11, v4, s[28:31], s49 offen")
    srd(a, 36, 14, D * 8192, WS_KR)
    a(f"s_mul_i32 s51, s45, {KG_CH}")
    a("v_lshlrev_b32 v6, 2, v3")
    a("v_add_u32 v6, s51, v6")
    a("v_and_b32 v7, 15, v1")
    a("v_lshrrev_b32 v2, 4, v1")
    a(f"v_mul_u32_u24 v13, {KG_ROW}, v7")
    a("v_lshl_add_u32 v13, v2, 4, v13")
    a("v_add_u32 v100, s51, v13")
    a(f"s_mul_i32 s52, s46, {16*KG_ROW}")
    a("v_add_u32 v101, s52, v100")
    quads = [(0, 1), (4, 1), (256, 2), (512, 256)], [(1536, 256), (516, 256), (4097, 0), (4097, 0)]
    a("s_cmp_eq_u32 s46, 0")
    for q in range(4):
        a(f"s_mov_b32 s64, {f32(float(quads[0][q][0]))}")
        a(f"s_mov_b32 s65, {f32(float(quads[0][q][1]))}")
        a(f"s_cselect_b32 s{56+q}, s64, {f32(float(quads[1][q][0]))}")
        a(f"s_cselect_b32 s{60+q}, s65, {f32(float(quads[1][q][1]))}")
    a("v_mov_b32 v14, s56")
    a("v_mov_b32 v15, s60")
    for q in range(1, 4):
        a(f"v_cmp_eq_u32 vcc, {q}, v2")
        a(f"v_mov_b32 v16, s{56+q}")
        a(f"v_mov_b32 v17, s{60+q}")
        a("v_cndmask_b32 v14, v14, v16, vcc")
        a("v_cndmask_b32 v15, v15, v17, vcc")
    a("v_cvt_f32_u32 v16, v7")
    a("v_fmac_f32 v14, 0x41000000, v16")
    a(f"s_add_u32 s53, s51, {KG_T - 2*T_BIAS}")
    a(f"s_add_u32 s54, s51, {KG_T + 3000}")
    a("v_mov_b32 v19, s54")
    TW = 102
    for jt in range(2):
        for r in range(4):
            p = 20 + 4 * jt + r
            if r == 0:
                a(f"v_mov_b32 v{p}, v14" if jt == 0 else f"v_add_f32 v{p}, 0x43000000, v14")
            else:
                a(f"v_add_f32 v{p}, v{p-1}, v15")
    for i in range(8):
        p, b = 20 + i, TW + i
        a(f"v_cvt_pk_bf16_f32 v{b}, v{p}, v{p}")
        a(f"v_and_b32 v16, 0xffff0000, v{b}")
        a(f"v_cmp_eq_u32 vcc, v16, v{p}")
        a(f"v_and_b32 v{b}, 0xffff, v{b}")
        a(f"v_max_u32 v{b}, {T_BIAS}, v{b}")
        a(f"v_lshl_add_u32 v{b}, v{b}, 1, s53")
        a(f"v_cndmask_b32 v{b}, v19, v{b}, vcc")
    GA = 110
    a("v_lshlrev_b32 v7, 3, v3")
    a("v_sub_u32 v7, 2047, v7")
    a("v_cvt_f32_i32 v14, v7")
    a("v_lshlrev_b32 v130, 4, v3")
    a("s_lshl_b32 s55, s47, 13")
    a("s_add_u32 s56, s55, 4096")
    for ch in range(2):
        for e in range(0, 10, 2):
            b = GA + 10 * ch + e
            a(f"v_subrev_f32 v{b}, {f32(float(e + 1024*ch))}, v14")
            a(f"v_subrev_f32 v{b+1}, {f32(float(e + 1 + 1024*ch))}, v14")
            a(f"v_cvt_pk_bf16_f32 v{b+1}, v{b}, v{b+1}")
            a(f"v_and_b32 v{b}, 0xffff, v{b+1}")
            a(f"v_lshrrev_b32 v{b+1}, 16, v{b+1}")
            for z in (b, b + 1):
                a(f"v_max_u32 v{z}, {T_BIAS}, v{z}")
                a(f"v_min_u32 v{z}, 0x4500, v{z}")
                a(f"v_lshl_add_u32 v{z}, v{z}, 1, s53")
    a("v_cmp_eq_u32 vcc, 127, v3")
    a("v_mov_b32 v14, 0x00003f80")
    a(f"ds_write_b32 v6, v14 offset:{KG_YB}")
    stamp(a)
    a("s_waitcnt vmcnt(3)")
    stamp(a)
    a("v_lshlrev_b32 v12, 16, v12")
    a("v_lshlrev_b32 v8, 16, v8")
    exp_acc(a, 13, 12, 14)
    exp_acc(a, 15, 8, 16)
    bf16_round(a, 13, 13)
    bf16_round(a, 15, 15)
    a("s_waitcnt vmcnt(2)")
    a("v_lshlrev_b32 v9, 16, v9")
    a("v_mul_f32 v15, v15, v13")
    a("v_mul_f32 v16, v9, v13")
    a(f"v_mul_f32 v15, {f32(-LOG2E)}, v15")
    a(f"v_mul_f32 v16, {f32(0.15915494309189535)}, v16")
    seeds = [(1, 20, 1), (256, 22, 1), (8, 24, -1), (64, 26, -1)]
    for i, (p, z, sg) in enumerate(seeds):
        a(f"v_mul_f32 v{32+i}, {f32(float(p))}, v15")
        a(f"v_mul_f32 v{36+i}, {f32(float(p*sg))}, v16")
    for i in range(4):
        a(f"v_exp_f32 v{32+i}, v{32+i}")
        a(f"v_fract_f32 v{36+i}, v{36+i}")
    for i, (p, z, sg) in enumerate(seeds):
        a(f"v_cos_f32 v{z}, v{36+i}")
        a(f"v_sin_f32 v{z+1}, v{36+i}")
    a("s_waitcnt vmcnt(0)")
    a("v_lshlrev_b32 v10, 16, v10")
    a("v_lshlrev_b32 v11, 16, v11")
    a("v_add_f32 v13, v13, v13")
    for i, (p, z, sg) in enumerate(seeds):
        a(f"v_mul_f32 v{z}, v{32+i}, v{z}")
        a(f"v_mul_f32 v{z+1}, v{32+i}, v{z+1}")
    a("v_mul_f32 v28, v10, v13")
    a("v_mul_f32 v29, v11, v13")
    E1, E256, Y8, Y64, C = 20, 22, 24, 26, 28
    E2, E4, Y128, Y192 = 40, 42, 44, 46

    def emit(z, off, t):
        return [f"v_cvt_pk_bf16_f32 v{t}, v{z}, v{z+1}", f"ds_write_b32 v6, v{t} offset:{off}"]

    xrow = lambda q, r: KG_XA + (4 * q + r) * KG_ROW
    yrow = lambda j: KG_YB + j * KG_ROW

    def chain(seed, ratio, offs, ra, rb, t, emit_seed=True):
        ops = []
        cur = seed
        for k, off in enumerate(offs):
            if k:
                nxt = ra if cur != ra else rb
                ops.append(cmul(nxt, cur, ratio))
                cur = nxt
            if k or emit_seed:
                ops.append(emit(cur, off, t))
        return ops

    pre = [cmul(E2, E1, E1), cmul(Y128, Y64, Y64), cmul(48, C, E256), cmul(E4, E2, E2), cmul(Y192, Y128, Y64)]
    for i in range(2):
        for op in pre[:3]:
            a(op[i])
    for i in range(2):
        for op in pre[3:]:
            a(op[i])
    a("\n".join(cmul(50, C, E4)))
    chains = [
        chain(Y8, Y8, [yrow(j) for j in range(1, 8)], 52, 54, 88),
        chain(Y64, Y8, [yrow(j) for j in range(8, 16)], 56, 58, 89),
        chain(Y128, Y8, [yrow(j) for j in range(16, 24)], 60, 62, 90),
        chain(Y192, Y8, [yrow(j) for j in range(24, 32)], 64, 66, 91),
        chain(C, E1, [xrow(0, r) for r in range(4)], 68, 70, 92)
        + chain(48, E2, [xrow(2, r) for r in range(4)], 68, 70, 92),
        chain(50, E1, [xrow(1, r) for r in range(4)], 72, 74, 93),
    ]
    far = []
    cur = 48
    offs = [xrow(3, 0), xrow(3, 1), xrow(3, 2), xrow(3, 3), xrow(4, 0), xrow(4, 1), xrow(4, 2)]
    for k, off in enumerate(offs):
        nxt = 76 if cur != 76 else 78
        far.append(cmul(nxt, cur, E256))
        cur = nxt
        far.append(emit(cur, off, 94))
        if k < 2:
            far.append(cmul(80, cur, E4))
            far.append(emit(80, xrow(5, k), 95))
    chains.append(far)
    while any(chains):
        units = [c.pop(0) for c in chains if c]
        for i in range(2):
            for u in units:
                a(u[i])
    a("s_waitcnt lgkmcnt(0)")
    stamp(a)
    a("s_barrier")
    for ks in range(8):
        a(f"ds_read_b128 {vr(132+4*ks,4)}, v101 offset:{KG_XA + ks*64}")
        a(f"ds_read_b128 {vr(32+4*ks,4)}, v100 offset:{KG_YB + ks*64}")
        a(f"ds_read_b128 {vr(64+4*ks,4)}, v100 offset:{KG_YB + 16*KG_ROW + ks*64}")
    for ks in range(8):
        a(f"s_waitcnt lgkmcnt({min(15, 3*(7-ks))})")
        c0 = "0" if ks == 0 else "v[20:23]"
        c1 = "0" if ks == 0 else "v[24:27]"
        a(f"v_mfma_f32_16x16x32_bf16 v[20:23], {vr(132+4*ks,4)}, {vr(32+4*ks,4)}, {c0}")
        a(f"v_mfma_f32_16x16x32_bf16 v[24:27], {vr(132+4*ks,4)}, {vr(64+4*ks,4)}, {c1}")
    a("s_nop 7")
    for i in range(8):
        a(f"v_cvt_pk_bf16_f32 v{20+i}, v{20+i}, v{20+i}")
        a(f"ds_write_b16 v{TW+i}, v{20+i}")
    a("s_waitcnt lgkmcnt(0)")
    stamp(a)
    a("s_barrier")
    for ch in range(2):
        for e in range(9):
            a(f"ds_read_u16 v{32+16*ch+e}, v{GA+10*ch+e}")
    for ch in range(2):
        a(f"s_waitcnt lgkmcnt({9*(1-ch)})")
        q = 32 + 16 * ch
        if ch == 1:
            a(f"v_cndmask_b32 v{q+8}, v{q+8}, 0, vcc")
        for k in range(4):
            a(f"v_lshl_or_b32 v{64+8*ch+k}, v{q+2*k+1}, 16, v{q+2*k}")
            a(f"v_lshl_or_b32 v{68+8*ch+k}, v{q+2*k+2}, 16, v{q+2*k+1}")
        a(f"buffer_store_dwordx4 {vr(64+8*ch,4)}, v130, s[36:39], s55 offen offset:{2048*ch}")
        a(f"buffer_store_dwordx4 {vr(68+8*ch,4)}, v130, s[36:39], s56 offen offset:{2048*ch}")
    stamp_end(a, 0, 14)
    a("s_endpgm")


def gen_k1(a):
    a.raw(".p2align 8")
    a.label("k1_kernel")
    a(f"s_cmp_ge_u32 s2, {N_K1}")
    a("s_cbranch_scc1 k1_exit")
    a("v_lshrrev_b32 v2, 6, v0")
    a("v_and_b32 v1, 63, v0")
    a("v_readfirstlane_b32 s44, v2")
    a("s_cmp_ge_u32 s44, 4")
    a("s_cbranch_scc1 k1_ln")
    gen_kgen(a)
    a.label("k1_ln")
    gen_ln(a)
    a.label("k1_exit")
    a("s_endpgm")


N_G1, N_CV = 176, 64
G1_STAGE = 49152
G1_W = 32768
K2_LDS = 3 * G1_STAGE
G1_NST = 8
CV_O, CV_Z, CV_U, CV_W = 4160, 8288, 8304, 12416


def gen_gemm1_loader(a):
    a("s_sub_u32 s30, s30, 4")
    a("v_lshrrev_b32 v3, 3, v1")
    a("v_and_b32 v4, 7, v1")
    a("v_lshrrev_b32 v5, 4, v1")
    a(f"v_mul_u32_u24 v14, {XN_STRIDE}, v3")
    for q in range(4):
        a(f"v_add_u32 v6, {4*q}, v5")
        a("v_and_b32 v6, 7, v6")
        a("v_xor_b32 v6, v6, v4")
        a("v_lshl_add_u32 v6, v6, 4, v14")
        a(f"v_add_u32 v{8+q}, {q*(8*XN_STRIDE-1024)}, v6")
    a("v_and_b32 v6, 1, v5")
    a("v_lshrrev_b32 v7, 2, v4")
    a("v_xor_b32 v6, v6, v7")
    a("v_and_b32 v7, 3, v4")
    a("v_lshlrev_b32 v7, 3, v7")
    a("v_lshl_add_u32 v6, v6, 5, v7")
    a("s_lshl_b32 s31, s29, 6")
    a("v_add_u32 v6, s31, v6")
    a(f"v_mul_u32_u24 v12, {2*F}, v3")
    a("v_lshl_add_u32 v12, v6, 1, v12")
    a(f"v_add_u32 v13, {8*2*F-1024}, v12")
    a(f"v_cmp_le_u32 vcc, {F}, v6")
    a("v_mov_b32 v7, 0x40000000")
    a(f"s_mul_i32 s32, s28, {256*XN_STRIDE}")
    a("v_cndmask_b32 v12, v12, v7, vcc")
    a("v_cndmask_b32 v13, v13, v7, vcc")
    a(f"s_mul_i32 s33, s30, {64*XN_STRIDE}")
    a("s_add_u32 s32, s32, s33")
    a(f"s_add_u32 s36, s32, {32*XN_STRIDE}")
    a(f"s_mul_i32 s33, s30, {16*2*F}")
    a("s_lshl_b32 s34, s30, 13")
    a("s_lshl_b32 s35, s30, 11")
    a(f"s_add_u32 s35, s35, {G1_W}")
    a("s_waitcnt lgkmcnt(0)")
    srd(a, 16, 4, W_BYTES)
    srd(a, 20, 6, W_BYTES)
    srd(a, 12, 8, XN_BYTES, WS_XN)

    def dma(stage, lo=0, hi=12):
        b = (stage % 3) * G1_STAGE
        if lo == 0:
            a(f"s_add_u32 m0, s35, {b}")
            a("s_nop 0")
            a("buffer_load_dwordx4 v12, s[16:19], s33 offen lds")
            a("buffer_load_dwordx4 v13, s[16:19], s33 offen offset:1024 lds")
            a(f"s_add_u32 m0, s35, {b+8192}")
            a("s_nop 0")
            a("buffer_load_dwordx4 v12, s[20:23], s33 offen lds")
            a("buffer_load_dwordx4 v13, s[20:23], s33 offen offset:1024 lds")
            a(f"s_add_u32 s33, s33, {64*2*F}")
        if hi == 12:
            a(f"s_add_u32 m0, s34, {b}")
            a("s_nop 0")
            for q in range(4):
                a(f"buffer_load_dwordx4 v{8+q}, s[12:15], s32 offen offset:{q*1024} lds")
            a(f"s_add_u32 m0, s34, {b+4096}")
            a("s_add_u32 s32, s32, 128")
            for q in range(4):
                a(f"buffer_load_dwordx4 v{8+q}, s[12:15], s36 offen offset:{q*1024} lds")
            a("s_add_u32 s36, s36, 128")

    dma(0)
    dma(1, 0, 4)
    for st in range(G1_NST):
        if st in (0, 3, 4):
            stamp(a)
        a(f"s_waitcnt vmcnt({4 if st == 0 else (12 if st + 1 < G1_NST else 0)})")
        if st in (0, 3, 4):
            stamp(a)
        a("s_barrier")
        if st in (3,):
            stamp(a)
        if st == 0:
            dma(1, 4, 12)
        if st + 2 < G1_NST:
            dma(st + 2)
    stamp_end(a, 1, 8)
    a("s_endpgm")


def gen_gemm1(a):
    stamp_begin(a)
    a(f"s_load_dwordx4 s[4:7], s[0:1], {KA_WG}")
    a(f"s_load_dwordx2 s[8:9], s[0:1], {KA_WS}")
    a("v_and_b32 v1, 63, v0")
    a("v_lshrrev_b32 v2, 6, v0")
    a("s_and_b32 s28, s2, 7")
    a("s_lshr_b32 s29, s2, 3")
    a("v_readfirstlane_b32 s30, v2")
    a("s_cmp_lt_u32 s30, 4")
    a("s_cbranch_scc1 k2_g1_compute")
    gen_gemm1_loader(a)
    a.label("k2_g1_compute")
    _stamp_n[0] = 1 if PROF else 0
    a("v_and_b32 v3, 31, v1")
    a("v_lshrrev_b32 v4, 5, v1")
    a("v_lshrrev_b32 v5, 1, v3")
    a("v_and_b32 v5, 7, v5")
    a("v_xor_b32 v5, v5, v4")
    a("v_lshlrev_b32 v6, 7, v3")
    a("s_lshl_b32 s38, s30, 13")
    a("v_add_u32 v6, s38, v6")
    for ks in range(4):
        a(f"v_xor_b32 v7, {2*ks}, v5")
        a(f"v_lshl_add_u32 v{16+ks}, v7, 4, v6")
    a("v_and_b32 v5, 15, v1")
    a("v_lshrrev_b32 v6, 2, v5")
    a("v_and_b32 v5, 3, v5")
    a("v_lshrrev_b32 v7, 4, v1")
    a("v_and_b32 v7, 1, v7")
    a("v_and_b32 v13, 1, v5")
    a("v_lshlrev_b32 v13, 5, v13")
    a("v_lshl_add_u32 v13, v7, 4, v13")
    a("v_lshrrev_b32 v5, 1, v5")
    a("v_lshl_add_u32 v13, v5, 3, v13")
    a("v_lshrrev_b32 v5, 1, v6")
    a("v_lshl_add_u32 v13, v5, 6, v13")
    a("v_lshl_add_u32 v6, v4, 3, v6")
    a("v_lshl_add_u32 v13, v6, 7, v13")
    a(f"v_add_u32 v20, {G1_W}, v13")
    a("v_xor_b32 v21, 64, v20")
    HS = 144
    a(f"s_mul_i32 s39, s30, {64*HS}")
    a(f"v_mul_u32_u24 v22, {HS}, v3")
    a("v_lshl_add_u32 v22, v4, 5, v22")
    a("v_add_u32 v22, s39, v22")
    a("v_lshrrev_b32 v5, 3, v1")
    a("v_and_b32 v6, 7, v1")
    a(f"v_mul_u32_u24 v23, {HS}, v5")
    a("v_lshl_add_u32 v23, v6, 4, v23")
    a("v_add_u32 v23, s39, v23")
    a(f"v_mul_u32_u24 v24, {H_STRIDE}, v5")
    a("v_lshl_add_u32 v24, v6, 4, v24")
    a("s_lshl_b32 s40, s28, 8")
    a("s_lshl_b32 s41, s30, 6")
    a("s_add_u32 s40, s40, s41")
    a(f"s_mul_i32 s42, s40, {H_STRIDE}")
    a("s_lshl_b32 s43, s29, 7")
    a("s_add_u32 s42, s42, s43")
    a("s_waitcnt lgkmcnt(0)")
    srd(a, 24, 8, H_BYTES, WS_H)

    ACC = lambda w, ft, tt: 128 + 64 * w + 32 * ft + 16 * tt
    FS = [32, 56, 80, 104]

    def reads(n, f):
        ks = n & 3
        out = []
        for w in range(2):
            for ft in range(2):
                o = 8192 * w + ks * 2048
                out.append(f"ds_read_b64_tr_b16 {vr(f+8*w+4*ft,2)}, v{20+ft} offset:{o}")
                out.append(f"ds_read_b64_tr_b16 {vr(f+8*w+4*ft+2,2)}, v{20+ft} offset:{o+512}")
            out.append(f"ds_read_b128 {vr(f+16+4*w,4)}, v{16+ks} offset:{4096*w}")
        return out

    def mfma(n, f, w, ft, tt):
        c = vr(ACC(w, ft, tt), 16)
        return (f"v_mfma_f32_32x32x16_bf16 {c}, {vr(f+8*w+4*ft,4)}, {vr(f+16+4*tt,4)}, "
                f"{'0' if n == 0 else c}")

    def mfmas(n, f):
        return [mfma(n, f, w, ft, tt) for tt in range(2) for w in range(2) for ft in range(2)]

    def boundary(st):
        if st in (3, 4):
            stamp(a)
        a("s_waitcnt lgkmcnt(0)")
        a("s_barrier")
        if st in (0, 3, 4):
            stamp(a)
        if st >= 1:
            delta = G1_STAGE if st % 3 else -2 * G1_STAGE
            for r in (16, 17, 18, 19, 20, 21):
                a(f"v_add_u32 v{r}, {delta & 0xffffffff:#x}, v{r}")

    LASTN = 4 * (G1_NST - 1)
    boundary(0)
    for op in reads(0, FS[0]):
        a(op)
    for n in range(LASTN):
        nx = n + 1
        if nx == LASTN:
            break
        if nx & 3 == 0:
            boundary(nx >> 2)
        else:
            a("s_waitcnt lgkmcnt(0)")
        rd = reads(nx, FS[nx & 1])
        cuts = [0, 3, 6, 8, 10, 10, 10, 10, 10]
        for i, m in enumerate(mfmas(n, FS[n & 1])):
            a(m)
            for op in rd[cuts[i]:cuts[i + 1]]:
                a(op)
    n = LASTN - 1
    boundary(G1_NST - 1)
    sets = {LASTN: FS[0], LASTN + 2: FS[2], LASTN + 3: FS[3], LASTN + 1: FS[1]}
    early = reads(LASTN, FS[0]) + reads(LASTN + 2, FS[2]) + reads(LASTN + 3, FS[3])
    mm = mfmas(n, FS[n & 1])
    for i, m in enumerate(mm):
        a(m)
        for op in early[4 * i:4 * i + 4]:
            a(op)
    for op in reads(LASTN + 1, FS[1]):
        a(op)

    def pair_epilogue(ft, tt):
        g, u = ACC(0, ft, tt), ACC(1, ft, tt)
        out = []
        for k0 in range(0, 8, 2):
            for k, t in ((k0, 4), (k0 + 1, 8)):
                out.append(f"v_cvt_pk_bf16_f32 v{t}, v{g+2*k}, v{g+2*k+1}")
                out.append(f"v_cvt_pk_bf16_f32 v{t+1}, v{u+2*k}, v{u+2*k+1}")
            for k, t in ((k0, 4), (k0 + 1, 8)):
                out.append(f"v_pk_max_i16 v{t}, v{t}, 0")
                out.append(f"v_lshlrev_b32 v{u+2*k}, 16, v{t+1}")
                out.append(f"v_and_b32 v{u+2*k+1}, 0xffff0000, v{t+1}")
                out.append(f"v_lshlrev_b32 v{t+2}, 16, v{t}")
                out.append(f"v_and_b32 v{t+3}, 0xffff0000, v{t}")
            for k, t in ((k0, 4), (k0 + 1, 8)):
                out.append(f"v_pk_mul_f32 {vr(t+2,2)}, {vr(t+2,2)}, {vr(u+2*k,2)}")
            for k, t in ((k0, 4), (k0 + 1, 8)):
                out.append(f"v_cvt_pk_bf16_f32 v{g+k}, v{t+2}, v{t+3}")
        out.append(f"ds_write_b128 v22, {vr(g,4)} offset:{32*HS*tt + 64*ft}")
        out.append(f"ds_write_b128 v22, {vr(g+4,4)} offset:{32*HS*tt + 64*ft + 16}")
        return out

    def flush(tt, regs):
        rd = [f"ds_read_b128 {vr(regs+4*i,4)}, v23 offset:{8*HS*(4*tt+i)}" for i in range(4)]
        st = []
        for i in range(4):
            st.append(f"s_waitcnt lgkmcnt({3-i})\n"
                      f"buffer_store_dwordx4 {vr(regs+4*i,4)}, v24, s[24:27], s42 offen\n"
                      f"s_add_u32 s42, s42, {8*H_STRIDE}")
        return rd, st

    order = [(0, 0), (1, 0), (0, 1), (1, 1)]
    korder = [LASTN, LASTN + 2, LASTN + 3, LASTN + 1]
    a("s_waitcnt lgkmcnt(10)")
    for pi, (ft, tt) in enumerate(order):
        mm = []
        for kn in korder:
            if pi == 0 and kn == LASTN + 1:
                mm.append("s_waitcnt lgkmcnt(0)\n" + mfma(kn, sets[kn], 0, ft, tt))
            else:
                mm.append(mfma(kn, sets[kn], 0, ft, tt))
            mm.append(mfma(kn, sets[kn], 1, ft, tt))
        fill = ["s_nop 8"] + pair_epilogue(*order[pi - 1]) if pi else []
        if pi == 3:
            rd, st = flush(0, ACC(1, 0, 0))
            fill = ["s_waitcnt lgkmcnt(0)"] + rd + fill[:40] + st + fill[40:]
        lead = 2
        per = -(-len(fill) // (len(mm) - lead)) if fill else 0
        for i, m in enumerate(mm):
            a(m)
            if i >= lead - 1 and fill:
                j = i - (lead - 1)
                for op in fill[j * per:(j + 1) * per]:
                    a(op)
    a("s_nop 15")
    stamp(a)
    for op in pair_epilogue(*order[3]):
        a(op)
    a("s_waitcnt lgkmcnt(0)")
    rd, st = flush(1, ACC(1, 0, 0))
    for op in rd + st:
        a(op)
    stamp_end(a, 1, 8)
    a("s_endpgm")


def gen_conv(a):
    stamp_begin(a)
    a(f"s_load_dwordx2 s[4:5], s[0:1], {KA_DSK}")
    a(f"s_load_dwordx2 s[8:9], s[0:1], {KA_WS}")
    a("v_and_b32 v1, 63, v0")
    a("v_lshrrev_b32 v2, 6, v0")
    a(f"s_sub_u32 s28, s2, {N_G1}")
    a("s_nop 0")
    a("v_readfirstlane_b32 s30, v2")
    a("s_lshl_b32 s28, s28, 3")
    a("s_add_u32 s28, s28, s30")
    a(f"s_mul_i32 s31, s30, {CV_W}")
    a("s_lshl_b32 s32, s28, 13")
    a("s_add_u32 s33, s32, 4096")
    a("s_lshl_b32 s34, s28, 12")
    a("s_lshr_b32 s35, s28, 1")
    a("s_lshl_b32 s35, s35, 2")
    a("v_lshlrev_b32 v3, 4, v1")
    a("s_waitcnt lgkmcnt(0)")
    a("s_load_dword s36, s[4:5], s35")
    srd(a, 12, 8, D * 8192, WS_KR)
    srd(a, 16, 8, XNT_BYTES, WS_XNT)
    srd(a, 20, 8, L * D * 2, WS_AT)
    a(f"s_mul_i32 s44, s28, {XNT_STRIDE}")
    a(f"s_add_u32 m0, s31, {CV_U}")
    a("s_nop 0")
    for q in range(4):
        a(f"buffer_load_dwordx4 v3, s[16:19], s44 offen offset:{q*1024} lds")
    for qs in ((2, 3), (0, 1)):
        a("s_mov_b32 m0, s31")
        a("s_nop 0")
        for q in qs:
            a(f"buffer_load_dwordx4 v3, s[12:15], s32 offen offset:{q*1024} lds")
        a(f"s_add_u32 m0, s31, {CV_O}")
        a("s_nop 0")
        for q in qs:
            a(f"buffer_load_dwordx4 v3, s[12:15], s33 offen offset:{q*1024} lds")
    a("v_mov_b32 v4, 0")
    a("v_mov_b32 v5, 0")
    a("v_mov_b32 v6, 0")
    a("v_mov_b32 v7, 0")
    a(f"v_add_u32 v8, 4096, v3")
    a(f"v_add_u32 v9, {CV_O + 4096 - 32}, v3")
    a("v_cmp_gt_u32 vcc, 2, v1")
    a("s_nop 1")
    a("v_cndmask_b32 v8, v9, v8, vcc")
    a("v_add_u32 v8, s31, v8")
    a("v_cmp_gt_u32 vcc, 5, v1")
    a("s_and_saveexec_b64 s[38:39], vcc")
    a("ds_write_b128 v8, v[4:7]")
    a("s_mov_b64 exec, s[38:39]")
    a("v_and_b32 v4, 15, v1")
    a("v_lshrrev_b32 v5, 4, v1")
    a("v_lshlrev_b32 v6, 3, v5")
    a("v_sub_u32 v6, v6, v4")
    a("v_lshlrev_b32 v6, 1, v6")
    a("v_and_b32 v7, 1, v4")
    a(f"v_mov_b32 v8, {CV_O + 2*2030}")
    a(f"v_mov_b32 v9, {2*2031}")
    a("v_cmp_eq_u32 vcc, 1, v7")
    a("s_nop 1")
    a("v_cndmask_b32 v8, v8, v9, vcc")
    a("v_add_u32 v6, v6, v8")
    a("v_add_u32 v6, s31, v6")
    for P in range(4):
        a(f"v_subrev_u32 v{10+P}, {512*(2*P+1)+448}, v6")
    a("v_lshlrev_b32 v7, 5, v4")
    a("v_lshl_add_u32 v7, v5, 4, v7")
    a(f"s_add_u32 s37, s31, {CV_U - 32 - 448}")
    a("v_add_u32 v14, s37, v7")
    a(f"s_add_u32 s40, s31, {CV_Z}")
    for rho in range(8):
        a(f"v_add_u32 v{16+rho}, {64*(7-rho)}, v14")
        a(f"v_max_i32 v{16+rho}, s40, v{16+rho}")
    a("v_lshlrev_b32 v24, 5, v4")
    a("v_lshl_add_u32 v24, v5, 3, v24")
    a(f"s_add_u32 s41, s31, {CV_U}")
    a("v_add_u32 v25, s41, v24")

    ACC = 32
    SET = [64, 112]

    def loads(ph, rho):
        s = SET[rho & 1]
        out = []
        for m in range(8 if ph == 0 else 4):
            if m == 0:
                out.append(f"ds_read_b128 {vr(s+16,4)}, v{16+rho}")
            else:
                out.append(f"ds_read_b128 {vr(s+16+4*m,4)}, v14 offset:{512*m + 64*(7-rho)}")
            if m < 4:
                i = 4 * ph + m
                o = (64 * (7 - rho) + (0 if i & 1 else 512)) // 4
                out.append(f"ds_read2_b32 {vr(s+4*m,2)}, v{10+(i>>1)} offset0:{o} offset1:{o+1}")
                out.append(f"ds_read2_b32 {vr(s+4*m+2,2)}, v{10+(i>>1)} offset0:{o+2} offset1:{o+3}")
        return out

    def mfma(ph, rho, i, m):
        s = SET[rho & 1]
        c = vr(ACC + 4 * (i + m), 4)
        first = ph == 0 and rho == 0 and i == 0
        return (f"v_mfma_f32_16x16x32_bf16 {c}, {vr(s+4*(i-4*ph),4)}, {vr(s+16+4*m,4)}, "
                f"{'0' if first else c}")

    def mfmas(ph, rho):
        return [mfma(ph, rho, i, m) for i in range(4 * ph, 4 * ph + 4) for m in range(8 - i)]

    stamp(a)
    a("s_waitcnt vmcnt(4) lgkmcnt(0)")
    stamp(a)
    a("s_and_b32 s42, s28, 1")
    a("s_lshl_b32 s43, s36, 16")
    a("s_and_b32 s36, s36, 0xffff0000")
    a("s_cmp_eq_u32 s42, 0")
    a("s_cselect_b32 s36, s43, s36")
    for op in loads(0, 0):
        a(op)

    UREG = SET[0] + 32

    def tile_epilogue(t):
        y = ACC + 4 * t
        u = UREG + 2 * t
        w = 2 if t & 1 else SET[1] + 32
        return [f"v_lshlrev_b32 v{w}, 16, v{u}",
                f"v_and_b32 v{w+1}, 0xffff0000, v{u}",
                f"v_lshlrev_b32 v{w+2}, 16, v{u+1}",
                f"v_and_b32 v{w+3}, 0xffff0000, v{u+1}",
                f"v_pk_mul_f32 {vr(w,2)}, {vr(w,2)}, s[36:37]",
                f"v_pk_mul_f32 {vr(w+2,2)}, {vr(w+2,2)}, s[36:37]",
                f"v_cvt_pk_bf16_f32 v{u}, v{w}, v{w+1}",
                f"v_cvt_pk_bf16_f32 v{u+1}, v{w+2}, v{w+3}",
                f"v_cvt_pk_bf16_f32 v{w+5}, v{y}, v{y+1}",
                f"v_cvt_pk_bf16_f32 v{w+7}, v{y+2}, v{y+3}",
                f"v_lshlrev_b32 v{w}, 16, v{u}",
                f"v_and_b32 v{w+1}, 0xffff0000, v{u}",
                f"v_lshlrev_b32 v{w+2}, 16, v{u+1}",
                f"v_and_b32 v{w+3}, 0xffff0000, v{u+1}",
                f"v_lshlrev_b32 v{w+4}, 16, v{w+5}",
                f"v_and_b32 v{w+5}, 0xffff0000, v{w+5}",
                f"v_lshlrev_b32 v{w+6}, 16, v{w+7}",
                f"v_and_b32 v{w+7}, 0xffff0000, v{w+7}",
                f"v_pk_add_f32 {vr(w,2)}, {vr(w,2)}, {vr(w+4,2)}",
                f"v_pk_add_f32 {vr(w+2,2)}, {vr(w+2,2)}, {vr(w+6,2)}",
                f"v_cvt_pk_bf16_f32 v{u}, v{w}, v{w+1}",
                f"v_cvt_pk_bf16_f32 v{u+1}, v{w+2}, v{w+3}",
                f"buffer_store_dwordx2 {vr(u,2)}, v24, s[20:23], s34 offen offset:{512*t}"]

    a("s_mov_b32 s37, s36")
    for rho in range(8):
        a("s_waitcnt lgkmcnt(0)" if rho < 7 else "s_waitcnt vmcnt(0) lgkmcnt(0)")
        nxt = loads(0, rho + 1) if rho < 7 else loads(1, 0)
        if rho == 7:
            nxt += [f"ds_read_b64 {vr(UREG+2*t,2)}, v25 offset:{512*t}" for t in range(8)]
        for op in interleave(mfmas(0, rho), nxt):
            a(op)
    for rho in range(7):
        a("s_waitcnt lgkmcnt(0)")
        fill = loads(1, rho + 1)
        if 1 <= rho <= 4:
            fill = interleave(fill, tile_epilogue(rho - 1), every=1)
        mm = mfmas(1, rho)
        per = -(-len(fill) // len(mm))
        for i, m in enumerate(mm):
            a(m)
            for op in fill[i * per:(i + 1) * per]:
                a(op)
    a("s_waitcnt lgkmcnt(0)")
    seq = {t: [mfma(1, 7, i, t - i) for i in range(4, t + 1)] for t in range(4, 8)}
    for op in seq[4] + seq[5] + seq[6]:
        a(op)
    e4 = tile_epilogue(4)
    for i, m in enumerate(seq[7]):
        a(m)
        for op in e4[6 * i:6 * i + 6]:
            a(op)
    stamp(a)
    for op in interleave(tile_epilogue(5), tile_epilogue(6)) + tile_epilogue(7):
        a(op)
    stamp_end(a, 1, 8)
    a("s_endpgm")


def gen_k2(a):
    a.raw(".p2align 8")
    a.label("k2_kernel")
    a(f"s_cmp_ge_u32 s2, {N_G1 + N_CV}")
    a("s_cbranch_scc1 k2_exit")
    a(f"s_cmp_ge_u32 s2, {N_G1}")
    a("s_cbranch_scc1 k2_conv")
    gen_gemm1(a)
    a.label("k2_conv")
    gen_conv(a)
    a.label("k2_exit")
    a("s_endpgm")


N_G2 = 256
G2_NS = 8
G2_STAGE = 16384
G2_AT = G2_NS * G2_STAGE
K3_LDS = G2_AT + 8192
G2_NST = FP // 64
G2_LEAD = 4


def gen_k3(a):
    a.raw(".p2align 8")
    a.label("k3_kernel")
    a(f"s_cmp_ge_u32 s2, {N_G2}")
    a("s_cbranch_scc1 k3_exit")
    stamp_begin(a)
    a(f"s_load_dwordx2 s[4:5], s[0:1], {KA_U}")
    a(f"s_load_dwordx4 s[8:11], s[0:1], {KA_WD}")
    a(f"s_load_dwordx2 s[6:7], s[0:1], {KA_WS}")
    a("v_and_b32 v1, 63, v0")
    a("v_lshrrev_b32 v2, 6, v0")
    a("s_and_b32 s32, s2, 7")
    a("s_lshr_b32 s33, s2, 3")
    a("v_readfirstlane_b32 s34, v2")
    a("s_lshl_b32 s32, s32, 8")
    a("s_and_b32 s35, s33, 3")
    a("s_lshl_b32 s35, s35, 6")
    a("s_add_u32 s32, s32, s35")
    a("s_lshr_b32 s33, s33, 2")
    a("s_lshl_b32 s33, s33, 6")
    a("s_cmp_lt_u32 s34, 4")
    a("s_cbranch_scc1 k3_compute")
    a("s_sub_u32 s34, s34, 4")
    a("v_lshrrev_b32 v3, 3, v1")
    a("v_and_b32 v4, 7, v1")
    a("v_lshrrev_b32 v5, 4, v1")
    a(f"v_mul_u32_u24 v7, {H_STRIDE}, v3")
    a("s_lshl_b32 s36, s34, 2")
    a("v_add_u32 v6, s36, v5")
    a("v_and_b32 v6, 7, v6")
    a("v_xor_b32 v6, v6, v4")
    a("v_lshl_add_u32 v8, v6, 4, v7")
    a("v_and_b32 v6, 1, v5")
    a("v_lshlrev_b32 v6, 2, v6")
    a("v_xor_b32 v6, v6, v4")
    a("v_lshlrev_b32 v6, 4, v6")
    a("v_lshl_add_u32 v10, v3, 10, v6")
    a("v_lshl_add_u32 v12, v3, 12, v6")
    a("s_lshl_b32 s36, s34, 3")
    a("s_add_u32 s37, s36, s32")
    a(f"s_mul_i32 s37, s37, {H_STRIDE}")
    a("s_lshl_b32 s38, s36, 10")
    a("s_lshl_b32 s39, s33, 1")
    a("s_add_u32 s38, s38, s39")
    a("s_add_u32 s39, s36, s33")
    a("s_lshl_b32 s39, s39, 12")
    a("s_lshl_b32 s40, s32, 1")
    a("s_add_u32 s39, s39, s40")
    a("s_lshl_b32 s40, s34, 10")
    a("s_waitcnt lgkmcnt(0)")
    srd(a, 16, 8, W_BYTES)
    srd(a, 12, 6, H_BYTES, WS_H)
    srd(a, 20, 6, L * D * 2, WS_AT)

    def dma(stage):
        b = (stage % G2_NS) * G2_STAGE
        a(f"s_add_u32 m0, s40, {b+8192}")
        a("s_nop 0")
        a("buffer_load_dwordx4 v10, s[16:19], s38 offen lds")
        a(f"s_add_u32 m0, s40, {b}")
        a("s_add_u32 s38, s38, 65536")
        a("buffer_load_dwordx4 v8, s[12:15], s37 offen lds")
        a("s_add_u32 s37, s37, 128")

    AT_AFTER = 3
    issued = 0
    for st in range(G2_NST):
        want = min(G2_NST - 1, 2 * st + 2, st + G2_LEAD)
        while issued <= want:
            dma(issued)
            if issued == AT_AFTER:
                a(f"s_add_u32 m0, s40, {G2_AT}")
                a("s_nop 0")
                a("buffer_load_dwordx4 v12, s[20:23], s39 offen lds")
            issued += 1
        vm = 2 * (issued - 1 - st) + (1 if st <= AT_AFTER < issued else 0)
        if st in (0, 8, 16):
            stamp(a)
        a(f"s_waitcnt vmcnt({vm})")
        a("s_barrier")
    stamp_end(a, 2, 6)
    a("s_endpgm")
    a.label("k3_compute")
    _stamp_n[0] = 1 if PROF else 0
    a("s_and_b32 s41, s34, 1")
    a("s_lshr_b32 s42, s34, 1")
    a("v_and_b32 v3, 31, v1")
    a("v_lshrrev_b32 v4, 5, v1")
    a("s_lshl_b32 s43, s41, 5")
    a("s_add_u32 s43, s43, s32")
    a("v_add_u32 v14, s43, v3")
    a("v_lshlrev_b32 v14, 10, v14")
    a("v_lshl_add_u32 v14, v4, 5, v14")
    a("s_lshl_b32 s44, s42, 5")
    a("s_add_u32 s44, s44, s33")
    a("s_lshl_b32 s44, s44, 1")
    a("v_lshrrev_b32 v5, 1, v3")
    a("v_and_b32 v5, 7, v5")
    a("v_xor_b32 v5, v5, v4")
    a("v_lshlrev_b32 v6, 7, v3")
    a("s_lshl_b32 s45, s41, 12")
    a("v_add_u32 v6, s45, v6")
    for ks in range(4):
        a(f"v_xor_b32 v7, {2*ks}, v5")
        a(f"v_lshl_add_u32 v{16+ks}, v7, 4, v6")
    a("v_and_b32 v5, 15, v1")
    a("v_lshrrev_b32 v6, 2, v5")
    a("v_and_b32 v5, 3, v5")
    a("v_lshrrev_b32 v7, 4, v1")
    a("v_and_b32 v7, 1, v7")
    a("v_lshlrev_b32 v21, 3, v5")
    a("v_lshl_add_u32 v21, v7, 5, v21")
    a("v_lshrrev_b32 v22, 1, v6")
    a("v_xor_b32 v23, s41, v22")
    a("v_lshl_add_u32 v21, v23, 6, v21")
    a("v_lshl_add_u32 v23, v4, 4, v6")
    a("v_lshl_add_u32 v21, v23, 7, v21")
    a("s_lshl_b32 s45, s42, 12")
    a(f"s_add_u32 s45, s45, {G2_AT}")
    a("v_add_u32 v21, s45, v21")
    a("v_and_b32 v15, 1, v5")
    a("v_lshlrev_b32 v15, 5, v15")
    a("v_lshl_add_u32 v15, v7, 4, v15")
    a("v_lshrrev_b32 v5, 1, v5")
    a("v_lshl_add_u32 v15, v5, 3, v15")
    a("v_xor_b32 v22, s42, v22")
    a("v_lshl_add_u32 v15, v22, 6, v15")
    a("v_lshl_add_u32 v6, v4, 3, v6")
    a("v_lshl_add_u32 v15, v6, 7, v15")
    a("v_add_u32 v20, 8192, v15")
    a("s_waitcnt lgkmcnt(0)")
    srd(a, 24, 4, L * D * 2)
    srd(a, 28, 10, L * D * 2)
    a("buffer_load_dwordx4 v[24:27], v14, s[24:27], s44 offen")
    a("buffer_load_dwordx4 v[28:31], v14, s[24:27], s44 offen offset:16")

    ACC = 32
    FS = [48, 80]
    XA = 112
    ATR = 128
    AT_ST = 10

    def reads(st):
        f = FS[st & 1]
        o = (st % 4) * G2_STAGE
        out = []
        for ks in range(4):
            out.append(f"ds_read_b64_tr_b16 {vr(f+8*ks,2)}, v20 offset:{o+ks*2048}")
            out.append(f"ds_read_b64_tr_b16 {vr(f+8*ks+2,2)}, v20 offset:{o+ks*2048+512}")
            out.append(f"ds_read_b128 {vr(f+8*ks+4,4)}, v{16+ks} offset:{o}")
        return out

    def mfmas(st):
        f = FS[st & 1]
        c = vr(ACC, 16)
        return [f"v_mfma_f32_32x32x16_bf16 {c}, {vr(f+8*ks,4)}, {vr(f+8*ks+4,4)}, "
                f"{'0' if st == 0 and ks == 0 else c}" for ks in range(4)]

    def xa_ops(k):
        x, t = XA + 2 * k, 4
        return [f"v_lshlrev_b32 v{x}, 16, v{24+k}",
                f"v_and_b32 v{x+1}, 0xffff0000, v{24+k}",
                f"v_lshlrev_b32 v{t}, 16, v{ATR+k}",
                f"v_and_b32 v{t+1}, 0xffff0000, v{ATR+k}",
                f"v_pk_add_f32 {vr(x,2)}, {vr(x,2)}, {vr(t,2)}",
                f"v_cvt_pk_bf16_f32 v{x+1}, v{x}, v{x+1}",
                f"v_lshlrev_b32 v{x}, 16, v{x+1}",
                f"v_and_b32 v{x+1}, 0xffff0000, v{x+1}"]

    for st in range(-1, G2_NST):
        nx = st + 1
        body = []
        if nx < G2_NST:
            if nx in (0, 8, 16):
                stamp(a)
            a("s_waitcnt lgkmcnt(0)" if nx != AT_ST + 1 else "s_waitcnt vmcnt(0) lgkmcnt(0)")
            a("s_barrier")
            if nx and nx % 4 == 0:
                delta = 65536 if (nx % G2_NS) == 4 else -65536
                for r in (16, 17, 18, 19, 20):
                    a(f"v_add_u32 v{r}, {delta & 0xffffffff:#x}, v{r}")
            body = reads(nx)
            if nx == AT_ST:
                body += [f"ds_read_b64_tr_b16 {vr(ATR+2*i,2)}, v21 offset:{512*i}" for i in range(4)]
        else:
            a("s_waitcnt lgkmcnt(0)")
        if st >= 0:
            body = interleave(body, mfmas(st), every=3) if body else mfmas(st)
        if AT_ST < nx <= AT_ST + 4:
            k = 2 * (nx - AT_ST - 1)
            body += xa_ops(k) + xa_ops(k + 1)
        for op in body:
            a(op)
    a("s_nop 15")
    stamp(a)
    for k in range(8):
        a(f"v_cvt_pk_bf16_f32 v{48+k}, v{ACC+2*k}, v{ACC+2*k+1}")
    for k in range(8):
        a(f"v_lshlrev_b32 v{ACC+2*k}, 16, v{48+k}")
        a(f"v_and_b32 v{ACC+2*k+1}, 0xffff0000, v{48+k}")
    for k in range(8):
        a(f"v_pk_add_f32 {vr(ACC+2*k,2)}, {vr(ACC+2*k,2)}, {vr(XA+2*k,2)}")
    for k in range(8):
        a(f"v_cvt_pk_bf16_f32 v{56+k}, v{ACC+2*k}, v{ACC+2*k+1}")
        if k == 3:
            a("buffer_store_dwordx4 v[56:59], v14, s[28:31], s44 offen")
    a("buffer_store_dwordx4 v[60:63], v14, s[28:31], s44 offen offset:16")
    stamp_end(a, 2, 6)
    a.label("k3_exit")
    a("s_endpgm")


def descriptor(name, vgpr, sgpr):
    acc = (vgpr + 3) // 4 * 4
    return f""".p2align 6
.amdhsa_kernel {name}
  .amdhsa_next_free_vgpr {vgpr}
  .amdhsa_next_free_sgpr {sgpr}
  .amdhsa_accum_offset {acc}
  .amdhsa_group_segment_fixed_size 0
  .amdhsa_kernarg_size 112
  .amdhsa_user_sgpr_count 2
  .amdhsa_user_sgpr_kernarg_segment_ptr 1
  .amdhsa_system_sgpr_workgroup_id_x 1
.end_amdhsa_kernel
"""


def main(path):
    a = Asm()
    a.raw(f"; @launch kernel=k1_kernel grid=({N_K1},1,1) block=(512,1,1) lds={K1_LDS}")
    a.raw(f"; @launch kernel=k2_kernel grid=({N_G1+N_CV},1,1) block=(512,1,1) lds={K2_LDS}")
    a.raw(f"; @launch kernel=k3_kernel grid=({N_G2},1,1) block=(768,1,1) lds={K3_LDS}")
    a.raw('.amdgcn_target "amdgcn-amd-amdhsa--gfx950"')
    a.raw(".text")
    for k in ("k1_kernel", "k2_kernel", "k3_kernel"):
        a.raw(f".globl {k}")
        a.raw(f".type {k},@function")
    gen_k1(a)
    gen_k2(a)
    gen_k3(a)
    a.raw('.section .rodata,"a"')
    sg = 102 if PROF else 0
    a.raw(descriptor("k1_kernel", 164, max(sg, 74)))
    a.raw(descriptor("k2_kernel", 256, max(sg, 56)))
    a.raw(descriptor("k3_kernel", 136, max(sg, 56)))
    open(path, "w").write(a.text())


if __name__ == "__main__":
    if "--notouch" in sys.argv:
        sys.argv.remove("--notouch")
        TOUCH = False
    if "--prof" in sys.argv:
        sys.argv.remove("--prof")
        PROF = True
    main(sys.argv[1] if len(sys.argv) > 1 else f"cdna_kernels/{NAME}.s")
```

```python
import struct
import sys

NAME = "parallel_sum__ssm_conv_s4d__glu_gated_reglu__prompt"

L, D, N, F = 2048, 512, 128, 1376
FP = 1408
WS_XN = 0x000000
WS_XNT = 0x240000
WS_KR = 0x480000
WS_H = 0x880000
WS_AT = 0xE80000
XN_STRIDE = 1024 + 128
XN_BYTES = L * XN_STRIDE
H_STRIDE = 2 * FP + 128
H_BYTES = L * H_STRIDE
XNT_STRIDE = 4096 + 128
XNT_BYTES = D * XNT_STRIDE
W_BYTES = D * F * 2
WS_END = WS_AT + L * D * 2
TOUCH = False

KA_U, KA_LAR, KA_AI, KA_CR, KA_CI, KA_LDT, KA_DSK, KA_BX, KA_WG, KA_WU, KA_WD, KA_OUT, KA_DBG, KA_WS = \
    [8 * i for i in range(14)]


def f32(x):
    return "0x%08x" % struct.unpack("<I", struct.pack("<f", x))[0]


class Asm:
    def __init__(self):
        self.lines = []

    def __call__(self, s):
        for ln in s.strip("\n").split("\n"):
            self.lines.append("  " + ln.strip())

    def label(self, s):
        self.lines.append(s + ":")

    def raw(self, s):
        self.lines.append(s)

    def text(self):
        return "\n".join(self.lines) + "\n"


PROF = False
K4 = False
PROF_BASE = 0x1400000
_stamp_n = [0]


def stamp_begin(a):
    _stamp_n[0] = 0
    if PROF:
        a("s_memrealtime s[80:81]")
        a("s_memtime s[82:83]")
        _stamp_n[0] = 1


def stamp(a):
    if PROF:
        k = _stamp_n[0]
        a(f"s_memtime s[{82+2*k}:{83+2*k}]")
        _stamp_n[0] += 1


def stamp_end(a, launch, ws_lo):
    if not PROF:
        return
    stamp(a)
    n = _stamp_n[0]
    a("s_waitcnt lgkmcnt(0)")
    a("s_memrealtime s[98:99]")
    a(f"s_add_u32 s76, s{ws_lo}, {PROF_BASE}")
    a(f"s_addc_u32 s77, s{ws_lo+1}, 0")
    a("s_mov_b32 s78, 0x1000000")
    a("s_mov_b32 s79, 0x00020000")
    a("v_lshrrev_b32 v2, 6, v0")
    a(f"s_add_u32 s75, s2, {launch*512}")
    a("s_lshl_b32 s75, s75, 10")
    a("v_lshlrev_b32 v2, 6, v2")
    a("v_add_u32 v2, s75, v2")
    a("s_waitcnt lgkmcnt(0)")
    a("v_mov_b32 v4, s80")
    a("v_mov_b32 v5, s98")
    a("buffer_store_dwordx2 v[4:5], v2, s[76:79], 0 offen")
    for k in range(n):
        a(f"v_mov_b32 v6, s{82+2*k}")
        a(f"buffer_store_dword v6, v2, s[76:79], 0 offen offset:{8+4*k}")
        a("s_nop 1")


def vr(b, n):
    return "v[%d:%d]" % (b, b + n - 1)


def sr(b, n):
    return "s[%d:%d]" % (b, b + n - 1)


def srd(a, dst, base, nbytes, add=0):
    if add:
        a(f"s_add_u32 s{dst}, s{base}, {add}")
        a(f"s_addc_u32 s{dst+1}, s{base+1}, 0")
    else:
        a(f"s_mov_b32 s{dst}, s{base}")
        a(f"s_mov_b32 s{dst+1}, s{base+1}")
    a(f"s_mov_b32 s{dst+2}, {nbytes}")
    a(f"s_mov_b32 s{dst+3}, 0x00020000")


def interleave(main, fill, every=1, start=0):
    out = []
    fill = list(fill)
    for i, m in enumerate(main):
        out.append(m)
        if i >= start and (i - start) % every == every - 1 and fill:
            out.append(fill.pop(0))
    out.extend(fill)
    return out


N_K1 = 256
LN_STRIDE = 1088
KG_ROW = 544
KG_XA, KG_YB, KG_T = 0, 24 * KG_ROW, 56 * KG_ROW
KG_CH = KG_T + 3072
LN_LDS = 2 * KG_CH
K1_LDS = LN_LDS + 8 * LN_STRIDE
LOG2E = 1.4426950408889634
L_HI = 47274.0 / 32768.0
C_LO = (LOG2E - L_HI) * 0.6931471805599453
T_BIAS = 0x3F7F
PF_W = 6


def dpp_reduce(a, regs):
    steps = ["row_shr:1 row_mask:0xf bank_mask:0xf bound_ctrl:0",
             "row_shr:2 row_mask:0xf bank_mask:0xf bound_ctrl:0",
             "row_shr:4 row_mask:0xf bank_mask:0xf bound_ctrl:0",
             "row_shr:8 row_mask:0xf bank_mask:0xf bound_ctrl:0",
             "row_bcast:15 row_mask:0xa bank_mask:0xf",
             "row_bcast:31 row_mask:0xc bank_mask:0xf"]
    a("s_nop 1")
    for st in steps:
        for r in regs:
            a(f"v_add_f32_dpp v{r}, v{r}, v{r} {st}")
    a("s_nop 1")


def bf16_round(a, dst, src):
    a(f"v_cvt_pk_bf16_f32 v{dst}, v{src}, v{src}")
    a(f"v_lshlrev_b32 v{dst}, 16, v{dst}")


def gen_ln(a):
    stamp_begin(a)
    a(f"s_load_dwordx2 s[4:5], s[0:1], {KA_U}")
    a(f"s_load_dwordx2 s[6:7], s[0:1], {KA_WS}")
    a(f"s_load_dwordx4 s[48:51], s[0:1], {KA_WG}")
    a(f"s_load_dwordx4 s[68:71], s[0:1], {KA_WD}")
    a(f"s_load_dwordx2 s[54:55], s[0:1], {KA_DSK}")
    a("s_sub_u32 s22, s44, 4")
    a("s_and_b32 s20, s2, 7")
    a("s_lshr_b32 s21, s2, 3")
    a("s_lshl_b32 s20, s20, 8")
    a("s_lshl_b32 s23, s21, 3")
    a("s_add_u32 s20, s20, s23")
    a("s_lshl_b32 s23, s22, 1")
    a("s_add_u32 s23, s23, s20")
    a("s_lshl_b32 s24, s23, 10")
    a(f"s_mul_i32 s53, s23, {XN_STRIDE}")
    a("v_lshlrev_b32 v3, 4, v1")
    a("s_lshl_b32 s52, s2, 2")
    a("s_add_u32 s52, s52, s22")
    a("s_lshl_b32 s52, s52, 11")
    a(f"s_mul_i32 s25, s22, {2*LN_STRIDE}")
    a(f"s_add_u32 s25, s25, {LN_LDS}")
    a("v_add_u32 v4, s25, v3")
    a("v_and_b32 v5, 15, v1")
    a("v_lshrrev_b32 v6, 2, v5")
    a("v_and_b32 v5, 3, v5")
    a("v_lshrrev_b32 v7, 4, v1")
    a(f"v_mul_u32_u24 v6, {LN_STRIDE}, v6")
    a("v_lshlrev_b32 v5, 3, v5")
    a("v_lshl_add_u32 v5, v7, 5, v5")
    a("v_add_u32 v5, v5, v6")
    a("s_lshl_b32 s26, s22, 8")
    a(f"s_add_u32 s26, s26, {LN_LDS}")
    a("v_add_u32 v5, s26, v5")
    a("s_lshl_b32 s27, s22, 7")
    a("v_add_u32 v6, s27, v1")
    a(f"v_mul_u32_u24 v6, {XNT_STRIDE}, v6")
    a("s_lshl_b32 s28, s20, 1")
    a(f"s_add_u32 s29, s28, {64*XNT_STRIDE}")
    a("s_waitcnt lgkmcnt(0)")
    srd(a, 8, 4, L * D * 2)
    for r in range(2):
        a(f"buffer_load_dwordx4 {vr(8+4*r,4)}, v3, s[8:11], s24 offen offset:{r*1024}")
    srd(a, 56, 48, W_BYTES)
    srd(a, 60, 50, W_BYTES)
    srd(a, 64, 68, W_BYTES)
    if TOUCH:
        a("s_cmp_ge_u32 s2, 16")
        a("s_cbranch_scc1 k1_no_touch")
        srd(a, 12, 6, WS_END)
        srd(a, 16, 70, L * D * 2)
        a("v_lshlrev_b32 v60, 18, v1")
        a("s_lshl_b32 s45, s22, 16")
        a("buffer_load_dword v61, v60, s[12:15], s45 offen")
        a("v_lshlrev_b32 v60, 15, v1")
        a(f"s_mov_b32 s45, {1 << 24}")
        a("buffer_load_dword v61, v60, s[12:15], s45 offen")
        a("buffer_load_dword v61, v60, s[16:19], 0 offen")
        srd(a, 16, 54, D * 2)
        a("buffer_load_dword v61, v3, s[16:19], 0 offen")
        for i in range(2):
            a(f"buffer_load_dwordx4 v[72:75], v3, s[56:59], s52 offen offset:{i*1024}")
        a("s_branch k1_touched")
        a.label("k1_no_touch")
    for i in range(2):
        for b in (56, 60, 64):
            a(f"buffer_load_dwordx4 v[72:75], v3, {sr(b,4)}, s52 offen offset:{i*1024}")
    if TOUCH:
        a.label("k1_touched")
    srd(a, 12, 6, XN_BYTES, WS_XN)
    srd(a, 16, 6, XNT_BYTES, WS_XNT)
    X = lambda r, e: 32 + 8 * r + e
    stamp(a)
    for r in range(2):
        a(f"s_waitcnt vmcnt({PF_W + 1 - r})")
        if r == 0:
            stamp(a)
        for k in range(4):
            a(f"v_lshlrev_b32 v{X(r,2*k)}, 16, v{8+4*r+k}")
            a(f"v_and_b32 v{X(r,2*k+1)}, 0xffff0000, v{8+4*r+k}")
        a(f"v_readfirstlane_b32 s{30+2*r}, v{X(r,0)}")
        a(f"v_pk_add_f32 v[48:49], {vr(X(r,0),2)}, {vr(X(r,2),2)}")
        a(f"v_pk_add_f32 v[50:51], {vr(X(r,4),2)}, {vr(X(r,6),2)}")
        a(f"s_mov_b32 s{31+2*r}, s{30+2*r}")
        a("v_pk_add_f32 v[48:49], v[48:49], v[50:51]")
        for k in range(4):
            a(f"v_pk_add_f32 {vr(52+2*k,2)}, {vr(X(r,2*k),2)}, {sr(30+2*r,2)} neg_lo:[0,1] neg_hi:[0,1]")
        a(f"v_add_f32 v{24+2*r}, v48, v49")
        a("v_pk_mul_f32 v[50:51], v[52:53], v[52:53]")
        a("v_pk_mul_f32 v[48:49], v[54:55], v[54:55]")
        a("v_pk_fma_f32 v[50:51], v[56:57], v[56:57], v[50:51]")
        a("v_pk_fma_f32 v[48:49], v[58:59], v[58:59], v[48:49]")
        a("v_pk_add_f32 v[48:49], v[48:49], v[50:51]")
        a(f"v_add_f32 v{25+2*r}, v48, v49")
    dpp_reduce(a, [24, 25, 26, 27])
    for r in range(2):
        a(f"v_mul_f32 v{24+2*r}, {f32(1.0/512)}, v{24+2*r}")
        a(f"v_mul_f32 v{25+2*r}, {f32(1.0/512)}, v{25+2*r}")
    for r in range(2):
        a(f"v_subrev_f32 v{28+r}, s{30+2*r}, v{24+2*r}")
        bf16_round(a, 24 + 2 * r, 24 + 2 * r)
    for r in range(2):
        a(f"v_fma_f32 v{25+2*r}, -v{28+r}, v{28+r}, v{25+2*r}")
        a(f"v_max_f32 v{25+2*r}, 0, v{25+2*r}")
    for r in range(2):
        bf16_round(a, 25 + 2 * r, 25 + 2 * r)
    for r in range(2):
        a(f"v_add_f32 v{25+2*r}, {f32(1e-5)}, v{25+2*r}")
        a(f"v_readlane_b32 s{36+2*r}, v{24+2*r}, 63")
    for r in range(2):
        bf16_round(a, 25 + 2 * r, 25 + 2 * r)
    for r in range(2):
        a(f"v_sqrt_f32 v{25+2*r}, v{25+2*r}")
    for r in range(2):
        a(f"s_mov_b32 s{37+2*r}, s{36+2*r}")
    for r in range(2):
        bf16_round(a, 25 + 2 * r, 25 + 2 * r)
    for r in range(2):
        a(f"v_rcp_f32 v{25+2*r}, v{25+2*r}")
    for r in range(2):
        for k in range(4):
            a(f"v_pk_add_f32 {vr(X(r,2*k),2)}, {vr(X(r,2*k),2)}, {sr(36+2*r,2)} neg_lo:[0,1] neg_hi:[0,1]")
    for r in range(2):
        a(f"v_readlane_b32 s{40+2*r}, v{25+2*r}, 63")
    for r in range(2):
        for k in range(4):
            a(f"v_cvt_pk_bf16_f32 v{8+4*r+k}, v{X(r,2*k)}, v{X(r,2*k+1)}")
    for r in range(2):
        a(f"s_mov_b32 s{41+2*r}, s{40+2*r}")
    for r in range(2):
        for k in range(4):
            a(f"v_lshlrev_b32 v{X(r,2*k)}, 16, v{8+4*r+k}")
            a(f"v_and_b32 v{X(r,2*k+1)}, 0xffff0000, v{8+4*r+k}")
        for k in range(4):
            a(f"v_pk_mul_f32 {vr(X(r,2*k),2)}, {vr(X(r,2*k),2)}, {sr(40+2*r,2)}")
        for k in range(4):
            a(f"v_cvt_pk_bf16_f32 v{16+4*r+k}, v{X(r,2*k)}, v{X(r,2*k+1)}")
        a(f"ds_write_b128 v4, {vr(16+4*r,4)} offset:{r*LN_STRIDE}")
        a(f"buffer_store_dwordx4 {vr(16+4*r,4)}, v3, s[12:15], s53 offen offset:{r*XN_STRIDE}")
    a("s_waitcnt lgkmcnt(0)")
    stamp(a)
    a("s_barrier")
    for blk in range(2):
        for tb in range(2):
            a(f"ds_read_b64_tr_b16 {vr(32+4*blk+2*tb,2)}, v5 offset:{blk*128 + tb*4*LN_STRIDE}")
    a("s_waitcnt lgkmcnt(2)")
    a("buffer_store_dwordx4 v[32:35], v6, s[16:19], s28 offen")
    a("s_waitcnt lgkmcnt(0)")
    a("buffer_store_dwordx4 v[36:39], v6, s[16:19], s29 offen")
    stamp_end(a, 0, 6)
    a("s_endpgm")


def exp_acc(a, dst, x, t):
    a(f"v_mul_f32 v{dst}, {f32(L_HI)}, v{x}")
    a(f"v_exp_f32 v{dst}, v{dst}")
    a(f"v_mul_f32 v{t}, {f32(C_LO)}, v{x}")
    a(f"v_fma_f32 v{dst}, v{dst}, v{t}, v{dst}")


def cmul(t, z, w):
    return [f"v_pk_mul_f32 {vr(t,2)}, {vr(z,2)}, {vr(w,2)} op_sel:[0,0] op_sel_hi:[1,0]",
            f"v_pk_fma_f32 {vr(t,2)}, {vr(z,2)}, {vr(w,2)}, {vr(t,2)} op_sel:[1,1,0] op_sel_hi:[0,1,1] "
            f"neg_lo:[1,0,0]"]


def gen_kgen(a):
    stamp_begin(a)
    a(f"s_load_dwordx8 s[4:11], s[0:1], {KA_LAR}")
    a(f"s_load_dwordx2 s[12:13], s[0:1], {KA_LDT}")
    a(f"s_load_dwordx2 s[14:15], s[0:1], {KA_WS}")
    a("s_and_b32 s41, s2, 7")
    a("s_lshr_b32 s42, s2, 3")
    a("s_lshr_b32 s43, s42, 2")
    a("s_lshl_b32 s43, s43, 6")
    a("s_lshl_b32 s41, s41, 3")
    a("s_add_u32 s41, s41, s43")
    a("s_and_b32 s42, s42, 3")
    a("s_lshl_b32 s42, s42, 1")
    a("s_add_u32 s41, s41, s42")
    a("s_lshr_b32 s45, s44, 1")
    a("s_and_b32 s46, s44, 1")
    a("s_add_u32 s47, s41, s45")
    a("s_lshl_b32 s48, s46, 6")
    a("v_add_u32 v3, s48, v1")
    a("s_lshl_b32 s49, s47, 8")
    a("v_lshlrev_b32 v4, 1, v3")
    a("s_lshl_b32 s50, s47, 1")
    a("v_mov_b32 v5, s50")
    a("s_waitcnt lgkmcnt(0)")
    srd(a, 16, 4, D * N * 2)
    srd(a, 32, 12, D * 2)
    a("buffer_load_ushort v8, v4, s[16:19], s49 offen")
    a("buffer_load_ushort v12, v5, s[32:35], 0 offen")
    srd(a, 20, 6, D * N * 2)
    a("buffer_load_ushort v9, v4, s[20:23], s49 offen")
    srd(a, 24, 8, D * N * 2)
    a("buffer_load_ushort v10, v4, s[24:27], s49 offen")
    srd(a, 28, 10, D * N * 2)
    a("buffer_load_ushort v11, v4, s[28:31], s49 offen")
    srd(a, 36, 14, D * 8192, WS_KR)
    a(f"s_mul_i32 s51, s45, {KG_CH}")
    a("v_lshlrev_b32 v6, 2, v3")
    a("v_add_u32 v6, s51, v6")
    a("v_and_b32 v7, 15, v1")
    a("v_lshrrev_b32 v2, 4, v1")
    a(f"v_mul_u32_u24 v13, {KG_ROW}, v7")
    a("v_lshl_add_u32 v13, v2, 4, v13")
    a("v_add_u32 v100, s51, v13")
    a(f"s_mul_i32 s52, s46, {16*KG_ROW}")
    a("v_add_u32 v101, s52, v100")
    quads = [(0, 1), (4, 1), (256, 2), (512, 256)], [(1536, 256), (516, 256), (4097, 0), (4097, 0)]
    a("s_cmp_eq_u32 s46, 0")
    for q in range(4):
        a(f"s_mov_b32 s64, {f32(float(quads[0][q][0]))}")
        a(f"s_mov_b32 s65, {f32(float(quads[0][q][1]))}")
        a(f"s_cselect_b32 s{56+q}, s64, {f32(float(quads[1][q][0]))}")
        a(f"s_cselect_b32 s{60+q}, s65, {f32(float(quads[1][q][1]))}")
    a("v_mov_b32 v14, s56")
    a("v_mov_b32 v15, s60")
    for q in range(1, 4):
        a(f"v_cmp_eq_u32 vcc, {q}, v2")
        a(f"v_mov_b32 v16, s{56+q}")
        a(f"v_mov_b32 v17, s{60+q}")
        a("v_cndmask_b32 v14, v14, v16, vcc")
        a("v_cndmask_b32 v15, v15, v17, vcc")
    a("v_cvt_f32_u32 v16, v7")
    a("v_fmac_f32 v14, 0x41000000, v16")
    a(f"s_add_u32 s53, s51, {KG_T - 2*T_BIAS}")
    a(f"s_add_u32 s54, s51, {KG_T + 3000}")
    a("v_mov_b32 v19, s54")
    TW = 102
    for jt in range(2):
        for r in range(4):
            p = 20 + 4 * jt + r
            if r == 0:
                a(f"v_mov_b32 v{p}, v14" if jt == 0 else f"v_add_f32 v{p}, 0x43000000, v14")
            else:
                a(f"v_add_f32 v{p}, v{p-1}, v15")
    for i in range(8):
        p, b = 20 + i, TW + i
        a(f"v_cvt_pk_bf16_f32 v{b}, v{p}, v{p}")
        a(f"v_and_b32 v16, 0xffff0000, v{b}")
        a(f"v_cmp_eq_u32 vcc, v16, v{p}")
        a(f"v_and_b32 v{b}, 0xffff, v{b}")
        a(f"v_max_u32 v{b}, {T_BIAS}, v{b}")
        a(f"v_lshl_add_u32 v{b}, v{b}, 1, s53")
        a(f"v_cndmask_b32 v{b}, v19, v{b}, vcc")
    GA = 110
    a("v_lshlrev_b32 v7, 3, v3")
    a("v_sub_u32 v7, 2047, v7")
    a("v_cvt_f32_i32 v14, v7")
    a("v_lshlrev_b32 v130, 4, v3")
    a("s_lshl_b32 s55, s47, 13")
    a("s_add_u32 s56, s55, 4096")
    for ch in range(2):
        for e in range(0, 10, 2):
            b = GA + 10 * ch + e
            a(f"v_subrev_f32 v{b}, {f32(float(e + 1024*ch))}, v14")
            a(f"v_subrev_f32 v{b+1}, {f32(float(e + 1 + 1024*ch))}, v14")
            a(f"v_cvt_pk_bf16_f32 v{b+1}, v{b}, v{b+1}")
            a(f"v_and_b32 v{b}, 0xffff, v{b+1}")
            a(f"v_lshrrev_b32 v{b+1}, 16, v{b+1}")
            for z in (b, b + 1):
                a(f"v_max_u32 v{z}, {T_BIAS}, v{z}")
                a(f"v_min_u32 v{z}, 0x4500, v{z}")
                a(f"v_lshl_add_u32 v{z}, v{z}, 1, s53")
    a("v_cmp_eq_u32 vcc, 127, v3")
    a("v_mov_b32 v14, 0x00003f80")
    a(f"ds_write_b32 v6, v14 offset:{KG_YB}")
    stamp(a)
    a("s_waitcnt vmcnt(3)")
    stamp(a)
    a("v_lshlrev_b32 v12, 16, v12")
    a("v_lshlrev_b32 v8, 16, v8")
    exp_acc(a, 13, 12, 14)
    exp_acc(a, 15, 8, 16)
    bf16_round(a, 13, 13)
    bf16_round(a, 15, 15)
    a("s_waitcnt vmcnt(2)")
    a("v_lshlrev_b32 v9, 16, v9")
    a("v_mul_f32 v15, v15, v13")
    a("v_mul_f32 v16, v9, v13")
    a(f"v_mul_f32 v15, {f32(-LOG2E)}, v15")
    a(f"v_mul_f32 v16, {f32(0.15915494309189535)}, v16")
    seeds = [(1, 20, 1), (256, 22, 1), (8, 24, -1), (64, 26, -1)]
    for i, (p, z, sg) in enumerate(seeds):
        a(f"v_mul_f32 v{32+i}, {f32(float(p))}, v15")
        a(f"v_mul_f32 v{36+i}, {f32(float(p*sg))}, v16")
    for i in range(4):
        a(f"v_exp_f32 v{32+i}, v{32+i}")
        a(f"v_fract_f32 v{36+i}, v{36+i}")
    for i, (p, z, sg) in enumerate(seeds):
        a(f"v_cos_f32 v{z}, v{36+i}")
        a(f"v_sin_f32 v{z+1}, v{36+i}")
    a("s_waitcnt vmcnt(0)")
    a("v_lshlrev_b32 v10, 16, v10")
    a("v_lshlrev_b32 v11, 16, v11")
    a("v_add_f32 v13, v13, v13")
    for i, (p, z, sg) in enumerate(seeds):
        a(f"v_mul_f32 v{z}, v{32+i}, v{z}")
        a(f"v_mul_f32 v{z+1}, v{32+i}, v{z+1}")
    a("v_mul_f32 v28, v10, v13")
    a("v_mul_f32 v29, v11, v13")
    E1, E256, Y8, Y64, C = 20, 22, 24, 26, 28
    E2, E4, Y128, Y192 = 40, 42, 44, 46

    def emit(z, off, t):
        return [f"v_cvt_pk_bf16_f32 v{t}, v{z}, v{z+1}", f"ds_write_b32 v6, v{t} offset:{off}"]

    xrow = lambda q, r: KG_XA + (4 * q + r) * KG_ROW
    yrow = lambda j: KG_YB + j * KG_ROW

    def chain(seed, ratio, offs, ra, rb, t, emit_seed=True):
        ops = []
        cur = seed
        for k, off in enumerate(offs):
            if k:
                nxt = ra if cur != ra else rb
                ops.append(cmul(nxt, cur, ratio))
                cur = nxt
            if k or emit_seed:
                ops.append(emit(cur, off, t))
        return ops

    pre = [cmul(E2, E1, E1), cmul(Y128, Y64, Y64), cmul(48, C, E256), cmul(E4, E2, E2), cmul(Y192, Y128, Y64)]
    for i in range(2):
        for op in pre[:3]:
            a(op[i])
    for i in range(2):
        for op in pre[3:]:
            a(op[i])
    a("\n".join(cmul(50, C, E4)))
    chains = [
        chain(Y8, Y8, [yrow(j) for j in range(1, 8)], 52, 54, 88),
        chain(Y64, Y8, [yrow(j) for j in range(8, 16)], 56, 58, 89),
        chain(Y128, Y8, [yrow(j) for j in range(16, 24)], 60, 62, 90),
        chain(Y192, Y8, [yrow(j) for j in range(24, 32)], 64, 66, 91),
        chain(C, E1, [xrow(0, r) for r in range(4)], 68, 70, 92)
        + chain(48, E2, [xrow(2, r) for r in range(4)], 68, 70, 92),
        chain(50, E1, [xrow(1, r) for r in range(4)], 72, 74, 93),
    ]
    far = []
    cur = 48
    offs = [xrow(3, 0), xrow(3, 1), xrow(3, 2), xrow(3, 3), xrow(4, 0), xrow(4, 1), xrow(4, 2)]
    for k, off in enumerate(offs):
        nxt = 76 if cur != 76 else 78
        far.append(cmul(nxt, cur, E256))
        cur = nxt
        far.append(emit(cur, off, 94))
        if k < 2:
            far.append(cmul(80, cur, E4))
            far.append(emit(80, xrow(5, k), 95))
    chains.append(far)
    while any(chains):
        units = [c.pop(0) for c in chains if c]
        for i in range(2):
            for u in units:
                a(u[i])
    a("s_waitcnt lgkmcnt(0)")
    stamp(a)
    a("s_barrier")
    for ks in range(8):
        a(f"ds_read_b128 {vr(132+4*ks,4)}, v101 offset:{KG_XA + ks*64}")
        a(f"ds_read_b128 {vr(32+4*ks,4)}, v100 offset:{KG_YB + ks*64}")
        a(f"ds_read_b128 {vr(64+4*ks,4)}, v100 offset:{KG_YB + 16*KG_ROW + ks*64}")
    for ks in range(8):
        a(f"s_waitcnt lgkmcnt({min(15, 3*(7-ks))})")
        c0 = "0" if ks == 0 else "v[20:23]"
        c1 = "0" if ks == 0 else "v[24:27]"
        a(f"v_mfma_f32_16x16x32_bf16 v[20:23], {vr(132+4*ks,4)}, {vr(32+4*ks,4)}, {c0}")
        a(f"v_mfma_f32_16x16x32_bf16 v[24:27], {vr(132+4*ks,4)}, {vr(64+4*ks,4)}, {c1}")
    a("s_nop 7")
    for i in range(8):
        a(f"v_cvt_pk_bf16_f32 v{20+i}, v{20+i}, v{20+i}")
        a(f"ds_write_b16 v{TW+i}, v{20+i}")
    a("s_waitcnt lgkmcnt(0)")
    stamp(a)
    a("s_barrier")
    for ch in range(2):
        for e in range(9):
            a(f"ds_read_u16 v{32+16*ch+e}, v{GA+10*ch+e}")
    for ch in range(2):
        a(f"s_waitcnt lgkmcnt({9*(1-ch)})")
        q = 32 + 16 * ch
        if ch == 1:
            a(f"v_cndmask_b32 v{q+8}, v{q+8}, 0, vcc")
        for k in range(4):
            a(f"v_lshl_or_b32 v{64+8*ch+k}, v{q+2*k+1}, 16, v{q+2*k}")
            a(f"v_lshl_or_b32 v{68+8*ch+k}, v{q+2*k+2}, 16, v{q+2*k+1}")
        a(f"buffer_store_dwordx4 {vr(64+8*ch,4)}, v130, s[36:39], s55 offen offset:{2048*ch}")
        a(f"buffer_store_dwordx4 {vr(68+8*ch,4)}, v130, s[36:39], s56 offen offset:{2048*ch}")
    stamp_end(a, 0, 14)
    a("s_endpgm")


def gen_k1(a):
    a.raw(".p2align 8")
    a.label("k1_kernel")
    a(f"s_cmp_ge_u32 s2, {N_K1}")
    a("s_cbranch_scc1 k1_exit")
    a("v_lshrrev_b32 v2, 6, v0")
    a("v_and_b32 v1, 63, v0")
    a("v_readfirstlane_b32 s44, v2")
    a("s_cmp_ge_u32 s44, 4")
    a("s_cbranch_scc1 k1_ln")
    gen_kgen(a)
    a.label("k1_ln")
    gen_ln(a)
    a.label("k1_exit")
    a("s_endpgm")


N_G1, N_CV = 176, 64
G1_STAGE = 49152
G1_W = 32768
K2_LDS = 3 * G1_STAGE
G1_NST = 8
CV_O, CV_Z, CV_U, CV_W = 4160, 8288, 8304, 12416


def gen_gemm1_loader(a):
    a("s_sub_u32 s30, s30, 4")
    a("v_lshrrev_b32 v3, 3, v1")
    a("v_and_b32 v4, 7, v1")
    a("v_lshrrev_b32 v5, 4, v1")
    a(f"v_mul_u32_u24 v14, {XN_STRIDE}, v3")
    for q in range(4):
        a(f"v_add_u32 v6, {4*q}, v5")
        a("v_and_b32 v6, 7, v6")
        a("v_xor_b32 v6, v6, v4")
        a("v_lshl_add_u32 v6, v6, 4, v14")
        a(f"v_add_u32 v{8+q}, {q*(8*XN_STRIDE-1024)}, v6")
    a("v_and_b32 v6, 1, v5")
    a("v_lshrrev_b32 v7, 2, v4")
    a("v_xor_b32 v6, v6, v7")
    a("v_and_b32 v7, 3, v4")
    a("v_lshlrev_b32 v7, 3, v7")
    a("v_lshl_add_u32 v6, v6, 5, v7")
    a("s_lshl_b32 s31, s29, 6")
    a("v_add_u32 v6, s31, v6")
    a(f"v_mul_u32_u24 v12, {2*F}, v3")
    a("v_lshl_add_u32 v12, v6, 1, v12")
    a(f"v_add_u32 v13, {8*2*F-1024}, v12")
    a(f"v_cmp_le_u32 vcc, {F}, v6")
    a("v_mov_b32 v7, 0x40000000")
    a(f"s_mul_i32 s32, s28, {256*XN_STRIDE}")
    a("v_cndmask_b32 v12, v12, v7, vcc")
    a("v_cndmask_b32 v13, v13, v7, vcc")
    a(f"s_mul_i32 s33, s30, {64*XN_STRIDE}")
    a("s_add_u32 s32, s32, s33")
    a(f"s_add_u32 s36, s32, {32*XN_STRIDE}")
    a(f"s_mul_i32 s33, s30, {16*2*F}")
    a("s_lshl_b32 s34, s30, 13")
    a("s_lshl_b32 s35, s30, 11")
    a(f"s_add_u32 s35, s35, {G1_W}")
    a("s_waitcnt lgkmcnt(0)")
    srd(a, 16, 4, W_BYTES)
    srd(a, 20, 6, W_BYTES)
    srd(a, 12, 8, XN_BYTES, WS_XN)

    def dma(stage, lo=0, hi=12):
        b = (stage % 3) * G1_STAGE
        if lo == 0:
            a(f"s_add_u32 m0, s35, {b}")
            a("s_nop 0")
            a("buffer_load_dwordx4 v12, s[16:19], s33 offen lds")
            a("buffer_load_dwordx4 v13, s[16:19], s33 offen offset:1024 lds")
            a(f"s_add_u32 m0, s35, {b+8192}")
            a("s_nop 0")
            a("buffer_load_dwordx4 v12, s[20:23], s33 offen lds")
            a("buffer_load_dwordx4 v13, s[20:23], s33 offen offset:1024 lds")
            a(f"s_add_u32 s33, s33, {64*2*F}")
        if hi == 12:
            a(f"s_add_u32 m0, s34, {b}")
            a("s_nop 0")
            for q in range(4):
                a(f"buffer_load_dwordx4 v{8+q}, s[12:15], s32 offen offset:{q*1024} lds")
            a(f"s_add_u32 m0, s34, {b+4096}")
            a("s_add_u32 s32, s32, 128")
            for q in range(4):
                a(f"buffer_load_dwordx4 v{8+q}, s[12:15], s36 offen offset:{q*1024} lds")
            a("s_add_u32 s36, s36, 128")

    dma(0)
    dma(1, 0, 4)
    for st in range(G1_NST):
        if st in (0, 3, 4):
            stamp(a)
        a(f"s_waitcnt vmcnt({4 if st == 0 else (12 if st + 1 < G1_NST else 0)})")
        if st in (0, 3, 4):
            stamp(a)
        a("s_barrier")
        if st in (3,):
            stamp(a)
        if st == 0:
            dma(1, 4, 12)
        if st + 2 < G1_NST:
            dma(st + 2)
    stamp_end(a, 1, 8)
    a("s_endpgm")


def gen_gemm1(a):
    stamp_begin(a)
    a(f"s_load_dwordx4 s[4:7], s[0:1], {KA_WG}")
    a(f"s_load_dwordx2 s[8:9], s[0:1], {KA_WS}")
    a("v_and_b32 v1, 63, v0")
    a("v_lshrrev_b32 v2, 6, v0")
    a("s_and_b32 s28, s2, 7")
    a("s_lshr_b32 s29, s2, 3")
    a("v_readfirstlane_b32 s30, v2")
    a("s_cmp_lt_u32 s30, 4")
    a("s_cbranch_scc1 k2_g1_compute")
    gen_gemm1_loader(a)
    a.label("k2_g1_compute")
    _stamp_n[0] = 1 if PROF else 0
    a("v_and_b32 v3, 31, v1")
    a("v_lshrrev_b32 v4, 5, v1")
    a("v_lshrrev_b32 v5, 1, v3")
    a("v_and_b32 v5, 7, v5")
    a("v_xor_b32 v5, v5, v4")
    a("v_lshlrev_b32 v6, 7, v3")
    a("s_lshl_b32 s38, s30, 13")
    a("v_add_u32 v6, s38, v6")
    for ks in range(4):
        a(f"v_xor_b32 v7, {2*ks}, v5")
        a(f"v_lshl_add_u32 v{16+ks}, v7, 4, v6")
    a("v_and_b32 v5, 15, v1")
    a("v_lshrrev_b32 v6, 2, v5")
    a("v_and_b32 v5, 3, v5")
    a("v_lshrrev_b32 v7, 4, v1")
    a("v_and_b32 v7, 1, v7")
    a("v_and_b32 v13, 1, v5")
    a("v_lshlrev_b32 v13, 5, v13")
    a("v_lshl_add_u32 v13, v7, 4, v13")
    a("v_lshrrev_b32 v5, 1, v5")
    a("v_lshl_add_u32 v13, v5, 3, v13")
    a("v_lshrrev_b32 v5, 1, v6")
    a("v_lshl_add_u32 v13, v5, 6, v13")
    a("v_lshl_add_u32 v6, v4, 3, v6")
    a("v_lshl_add_u32 v13, v6, 7, v13")
    a(f"v_add_u32 v20, {G1_W}, v13")
    a("v_xor_b32 v21, 64, v20")
    HS = 144
    a(f"s_mul_i32 s39, s30, {64*HS}")
    a(f"v_mul_u32_u24 v22, {HS}, v3")
    a("v_lshl_add_u32 v22, v4, 5, v22")
    a("v_add_u32 v22, s39, v22")
    a("v_lshrrev_b32 v5, 3, v1")
    a("v_and_b32 v6, 7, v1")
    a(f"v_mul_u32_u24 v23, {HS}, v5")
    a("v_lshl_add_u32 v23, v6, 4, v23")
    a("v_add_u32 v23, s39, v23")
    a(f"v_mul_u32_u24 v24, {H_STRIDE}, v5")
    a("v_lshl_add_u32 v24, v6, 4, v24")
    a("s_lshl_b32 s40, s28, 8")
    a("s_lshl_b32 s41, s30, 6")
    a("s_add_u32 s40, s40, s41")
    a(f"s_mul_i32 s42, s40, {H_STRIDE}")
    a("s_lshl_b32 s43, s29, 7")
    a("s_add_u32 s42, s42, s43")
    a("s_waitcnt lgkmcnt(0)")
    srd(a, 24, 8, H_BYTES, WS_H)

    ACC = lambda w, ft, tt: 128 + 64 * w + 32 * ft + 16 * tt
    FS = [32, 56, 80, 104]

    def reads(n, f):
        ks = n & 3
        out = []
        for w in range(2):
            for ft in range(2):
                o = 8192 * w + ks * 2048
                out.append(f"ds_read_b64_tr_b16 {vr(f+8*w+4*ft,2)}, v{20+ft} offset:{o}")
                out.append(f"ds_read_b64_tr_b16 {vr(f+8*w+4*ft+2,2)}, v{20+ft} offset:{o+512}")
            out.append(f"ds_read_b128 {vr(f+16+4*w,4)}, v{16+ks} offset:{4096*w}")
        return out

    def mfma(n, f, w, ft, tt):
        c = vr(ACC(w, ft, tt), 16)
        return (f"v_mfma_f32_32x32x16_bf16 {c}, {vr(f+8*w+4*ft,4)}, {vr(f+16+4*tt,4)}, "
                f"{'0' if n == 0 else c}")

    def mfmas(n, f):
        return [mfma(n, f, w, ft, tt) for tt in range(2) for w in range(2) for ft in range(2)]

    def boundary(st):
        if st in (3, 4):
            stamp(a)
        a("s_waitcnt lgkmcnt(0)")
        a("s_barrier")
        if st in (0, 3, 4):
            stamp(a)
        if st >= 1:
            delta = G1_STAGE if st % 3 else -2 * G1_STAGE
            for r in (16, 17, 18, 19, 20, 21):
                a(f"v_add_u32 v{r}, {delta & 0xffffffff:#x}, v{r}")

    LASTN = 4 * (G1_NST - 1)
    boundary(0)
    for op in reads(0, FS[0]):
        a(op)
    for n in range(LASTN):
        nx = n + 1
        if nx == LASTN:
            break
        if nx & 3 == 0:
            boundary(nx >> 2)
        else:
            a("s_waitcnt lgkmcnt(0)")
        rd = reads(nx, FS[nx & 1])
        cuts = [0, 3, 6, 8, 10, 10, 10, 10, 10]
        for i, m in enumerate(mfmas(n, FS[n & 1])):
            a(m)
            for op in rd[cuts[i]:cuts[i + 1]]:
                a(op)
    n = LASTN - 1
    boundary(G1_NST - 1)
    sets = {LASTN: FS[0], LASTN + 2: FS[2], LASTN + 3: FS[3], LASTN + 1: FS[1]}
    early = reads(LASTN, FS[0]) + reads(LASTN + 2, FS[2]) + reads(LASTN + 3, FS[3])
    mm = mfmas(n, FS[n & 1])
    for i, m in enumerate(mm):
        a(m)
        for op in early[4 * i:4 * i + 4]:
            a(op)
    for op in reads(LASTN + 1, FS[1]):
        a(op)

    def pair_epilogue(ft, tt):
        g, u = ACC(0, ft, tt), ACC(1, ft, tt)
        out = []
        for k0 in range(0, 8, 2):
            for k, t in ((k0, 4), (k0 + 1, 8)):
                out.append(f"v_cvt_pk_bf16_f32 v{t}, v{g+2*k}, v{g+2*k+1}")
                out.append(f"v_cvt_pk_bf16_f32 v{t+1}, v{u+2*k}, v{u+2*k+1}")
            for k, t in ((k0, 4), (k0 + 1, 8)):
                out.append(f"v_pk_max_i16 v{t}, v{t}, 0")
                out.append(f"v_lshlrev_b32 v{u+2*k}, 16, v{t+1}")
                out.append(f"v_and_b32 v{u+2*k+1}, 0xffff0000, v{t+1}")
                out.append(f"v_lshlrev_b32 v{t+2}, 16, v{t}")
                out.append(f"v_and_b32 v{t+3}, 0xffff0000, v{t}")
            for k, t in ((k0, 4), (k0 + 1, 8)):
                out.append(f"v_pk_mul_f32 {vr(t+2,2)}, {vr(t+2,2)}, {vr(u+2*k,2)}")
            for k, t in ((k0, 4), (k0 + 1, 8)):
                out.append(f"v_cvt_pk_bf16_f32 v{g+k}, v{t+2}, v{t+3}")
        out.append(f"ds_write_b128 v22, {vr(g,4)} offset:{32*HS*tt + 64*ft}")
        out.append(f"ds_write_b128 v22, {vr(g+4,4)} offset:{32*HS*tt + 64*ft + 16}")
        return out

    def flush(tt, regs):
        rd = [f"ds_read_b128 {vr(regs+4*i,4)}, v23 offset:{8*HS*(4*tt+i)}" for i in range(4)]
        st = []
        for i in range(4):
            st.append(f"s_waitcnt lgkmcnt({3-i})\n"
                      f"buffer_store_dwordx4 {vr(regs+4*i,4)}, v24, s[24:27], s42 offen\n"
                      f"s_add_u32 s42, s42, {8*H_STRIDE}")
        return rd, st

    order = [(0, 0), (1, 0), (0, 1), (1, 1)]
    korder = [LASTN, LASTN + 2, LASTN + 3, LASTN + 1]
    a("s_waitcnt lgkmcnt(10)")
    for pi, (ft, tt) in enumerate(order):
        mm = []
        for kn in korder:
            if pi == 0 and kn == LASTN + 1:
                mm.append("s_waitcnt lgkmcnt(0)\n" + mfma(kn, sets[kn], 0, ft, tt))
            else:
                mm.append(mfma(kn, sets[kn], 0, ft, tt))
            mm.append(mfma(kn, sets[kn], 1, ft, tt))
        fill = ["s_nop 8"] + pair_epilogue(*order[pi - 1]) if pi else []
        if pi == 3:
            rd, st = flush(0, ACC(1, 0, 0))
            fill = ["s_waitcnt lgkmcnt(0)"] + rd + fill[:40] + st + fill[40:]
        lead = 2
        per = -(-len(fill) // (len(mm) - lead)) if fill else 0
        for i, m in enumerate(mm):
            a(m)
            if i >= lead - 1 and fill:
                j = i - (lead - 1)
                for op in fill[j * per:(j + 1) * per]:
                    a(op)
    a("s_nop 15")
    stamp(a)
    for op in pair_epilogue(*order[3]):
        a(op)
    a("s_waitcnt lgkmcnt(0)")
    rd, st = flush(1, ACC(1, 0, 0))
    for op in rd + st:
        a(op)
    stamp_end(a, 1, 8)
    a("s_endpgm")


def gen_conv(a):
    stamp_begin(a)
    a(f"s_load_dwordx2 s[4:5], s[0:1], {KA_DSK}")
    a(f"s_load_dwordx2 s[8:9], s[0:1], {KA_WS}")
    a("v_and_b32 v1, 63, v0")
    a("v_lshrrev_b32 v2, 6, v0")
    a(f"s_sub_u32 s28, s2, {N_G1}")
    a("s_nop 0")
    a("v_readfirstlane_b32 s30, v2")
    a("s_lshl_b32 s28, s28, 3")
    a("s_add_u32 s28, s28, s30")
    a(f"s_mul_i32 s31, s30, {CV_W}")
    a("s_lshl_b32 s32, s28, 13")
    a("s_add_u32 s33, s32, 4096")
    a("s_lshl_b32 s34, s28, 12")
    a("s_lshr_b32 s35, s28, 1")
    a("s_lshl_b32 s35, s35, 2")
    a("v_lshlrev_b32 v3, 4, v1")
    a("s_waitcnt lgkmcnt(0)")
    a("s_load_dword s36, s[4:5], s35")
    srd(a, 12, 8, D * 8192, WS_KR)
    srd(a, 16, 8, XNT_BYTES, WS_XNT)
    srd(a, 20, 8, L * D * 2, WS_AT)
    a(f"s_mul_i32 s44, s28, {XNT_STRIDE}")
    a(f"s_add_u32 m0, s31, {CV_U}")
    a("s_nop 0")
    for q in range(4):
        a(f"buffer_load_dwordx4 v3, s[16:19], s44 offen offset:{q*1024} lds")
    for qs in ((2, 3), (0, 1)):
        a("s_mov_b32 m0, s31")
        a("s_nop 0")
        for q in qs:
            a(f"buffer_load_dwordx4 v3, s[12:15], s32 offen offset:{q*1024} lds")
        a(f"s_add_u32 m0, s31, {CV_O}")
        a("s_nop 0")
        for q in qs:
            a(f"buffer_load_dwordx4 v3, s[12:15], s33 offen offset:{q*1024} lds")
    a("v_mov_b32 v4, 0")
    a("v_mov_b32 v5, 0")
    a("v_mov_b32 v6, 0")
    a("v_mov_b32 v7, 0")
    a(f"v_add_u32 v8, 4096, v3")
    a(f"v_add_u32 v9, {CV_O + 4096 - 32}, v3")
    a("v_cmp_gt_u32 vcc, 2, v1")
    a("s_nop 1")
    a("v_cndmask_b32 v8, v9, v8, vcc")
    a("v_add_u32 v8, s31, v8")
    a("v_cmp_gt_u32 vcc, 5, v1")
    a("s_and_saveexec_b64 s[38:39], vcc")
    a("ds_write_b128 v8, v[4:7]")
    a("s_mov_b64 exec, s[38:39]")
    a("v_and_b32 v4, 15, v1")
    a("v_lshrrev_b32 v5, 4, v1")
    a("v_lshlrev_b32 v6, 3, v5")
    a("v_sub_u32 v6, v6, v4")
    a("v_lshlrev_b32 v6, 1, v6")
    a("v_and_b32 v7, 1, v4")
    a(f"v_mov_b32 v8, {CV_O + 2*2030}")
    a(f"v_mov_b32 v9, {2*2031}")
    a("v_cmp_eq_u32 vcc, 1, v7")
    a("s_nop 1")
    a("v_cndmask_b32 v8, v8, v9, vcc")
    a("v_add_u32 v6, v6, v8")
    a("v_add_u32 v6, s31, v6")
    for P in range(4):
        a(f"v_subrev_u32 v{10+P}, {512*(2*P+1)+448}, v6")
    a("v_lshlrev_b32 v7, 5, v4")
    a("v_lshl_add_u32 v7, v5, 4, v7")
    a(f"s_add_u32 s37, s31, {CV_U - 32 - 448}")
    a("v_add_u32 v14, s37, v7")
    a(f"s_add_u32 s40, s31, {CV_Z}")
    for rho in range(8):
        a(f"v_add_u32 v{16+rho}, {64*(7-rho)}, v14")
        a(f"v_max_i32 v{16+rho}, s40, v{16+rho}")
    a("v_lshlrev_b32 v24, 5, v4")
    a("v_lshl_add_u32 v24, v5, 3, v24")
    a(f"s_add_u32 s41, s31, {CV_U}")
    a("v_add_u32 v25, s41, v24")

    ACC = 32
    SET = [64, 112]

    def loads(ph, rho):
        s = SET[rho & 1]
        out = []
        for m in range(8 if ph == 0 else 4):
            if m == 0:
                out.append(f"ds_read_b128 {vr(s+16,4)}, v{16+rho}")
            else:
                out.append(f"ds_read_b128 {vr(s+16+4*m,4)}, v14 offset:{512*m + 64*(7-rho)}")
            if m < 4:
                i = 4 * ph + m
                o = (64 * (7 - rho) + (0 if i & 1 else 512)) // 4
                out.append(f"ds_read2_b32 {vr(s+4*m,2)}, v{10+(i>>1)} offset0:{o} offset1:{o+1}")
                out.append(f"ds_read2_b32 {vr(s+4*m+2,2)}, v{10+(i>>1)} offset0:{o+2} offset1:{o+3}")
        return out

    def mfma(ph, rho, i, m):
        s = SET[rho & 1]
        c = vr(ACC + 4 * (i + m), 4)
        first = ph == 0 and rho == 0 and i == 0
        return (f"v_mfma_f32_16x16x32_bf16 {c}, {vr(s+4*(i-4*ph),4)}, {vr(s+16+4*m,4)}, "
                f"{'0' if first else c}")

    def mfmas(ph, rho):
        return [mfma(ph, rho, i, m) for i in range(4 * ph, 4 * ph + 4) for m in range(8 - i)]

    stamp(a)
    a("s_waitcnt vmcnt(4) lgkmcnt(0)")
    stamp(a)
    a("s_and_b32 s42, s28, 1")
    a("s_lshl_b32 s43, s36, 16")
    a("s_and_b32 s36, s36, 0xffff0000")
    a("s_cmp_eq_u32 s42, 0")
    a("s_cselect_b32 s36, s43, s36")
    for op in loads(0, 0):
        a(op)

    UREG = SET[0] + 32

    def tile_epilogue(t):
        y = ACC + 4 * t
        u = UREG + 2 * t
        w = 2 if t & 1 else SET[1] + 32
        return [f"v_lshlrev_b32 v{w}, 16, v{u}",
                f"v_and_b32 v{w+1}, 0xffff0000, v{u}",
                f"v_lshlrev_b32 v{w+2}, 16, v{u+1}",
                f"v_and_b32 v{w+3}, 0xffff0000, v{u+1}",
                f"v_pk_mul_f32 {vr(w,2)}, {vr(w,2)}, s[36:37]",
                f"v_pk_mul_f32 {vr(w+2,2)}, {vr(w+2,2)}, s[36:37]",
                f"v_cvt_pk_bf16_f32 v{u}, v{w}, v{w+1}",
                f"v_cvt_pk_bf16_f32 v{u+1}, v{w+2}, v{w+3}",
                f"v_cvt_pk_bf16_f32 v{w+5}, v{y}, v{y+1}",
                f"v_cvt_pk_bf16_f32 v{w+7}, v{y+2}, v{y+3}",
                f"v_lshlrev_b32 v{w}, 16, v{u}",
                f"v_and_b32 v{w+1}, 0xffff0000, v{u}",
                f"v_lshlrev_b32 v{w+2}, 16, v{u+1}",
                f"v_and_b32 v{w+3}, 0xffff0000, v{u+1}",
                f"v_lshlrev_b32 v{w+4}, 16, v{w+5}",
                f"v_and_b32 v{w+5}, 0xffff0000, v{w+5}",
                f"v_lshlrev_b32 v{w+6}, 16, v{w+7}",
                f"v_and_b32 v{w+7}, 0xffff0000, v{w+7}",
                f"v_pk_add_f32 {vr(w,2)}, {vr(w,2)}, {vr(w+4,2)}",
                f"v_pk_add_f32 {vr(w+2,2)}, {vr(w+2,2)}, {vr(w+6,2)}",
                f"v_cvt_pk_bf16_f32 v{u}, v{w}, v{w+1}",
                f"v_cvt_pk_bf16_f32 v{u+1}, v{w+2}, v{w+3}",
                f"buffer_store_dwordx2 {vr(u,2)}, v24, s[20:23], s34 offen offset:{512*t}"]

    a("s_mov_b32 s37, s36")
    for rho in range(8):
        a("s_waitcnt lgkmcnt(0)" if rho < 7 else "s_waitcnt vmcnt(0) lgkmcnt(0)")
        nxt = loads(0, rho + 1) if rho < 7 else loads(1, 0)
        if rho == 7:
            nxt += [f"ds_read_b64 {vr(UREG+2*t,2)}, v25 offset:{512*t}" for t in range(8)]
        for op in interleave(mfmas(0, rho), nxt):
            a(op)
    for rho in range(7):
        a("s_waitcnt lgkmcnt(0)")
        fill = loads(1, rho + 1)
        if 1 <= rho <= 4:
            fill = interleave(fill, tile_epilogue(rho - 1), every=1)
        mm = mfmas(1, rho)
        per = -(-len(fill) // len(mm))
        for i, m in enumerate(mm):
            a(m)
            for op in fill[i * per:(i + 1) * per]:
                a(op)
    a("s_waitcnt lgkmcnt(0)")
    seq = {t: [mfma(1, 7, i, t - i) for i in range(4, t + 1)] for t in range(4, 8)}
    for op in seq[4] + seq[5] + seq[6]:
        a(op)
    e4 = tile_epilogue(4)
    for i, m in enumerate(seq[7]):
        a(m)
        for op in e4[6 * i:6 * i + 6]:
            a(op)
    stamp(a)
    for op in interleave(tile_epilogue(5), tile_epilogue(6)) + tile_epilogue(7):
        a(op)
    stamp_end(a, 1, 8)
    a("s_endpgm")


def gen_k2(a):
    a.raw(".p2align 8")
    a.label("k2_kernel")
    a(f"s_cmp_ge_u32 s2, {N_G1 + N_CV}")
    a("s_cbranch_scc1 k2_exit")
    a(f"s_cmp_ge_u32 s2, {N_G1}")
    a("s_cbranch_scc1 k2_conv")
    gen_gemm1(a)
    a.label("k2_conv")
    gen_conv(a)
    a.label("k2_exit")
    a("s_endpgm")


N_G2 = 256
G2_NS = 8
G2_STAGE = 16384
G2_AT = G2_NS * G2_STAGE
K3_LDS = G2_AT + 8192
G2_NST = FP // 64
G2_LEAD = 4


def gen_k3(a):
    a.raw(".p2align 8")
    a.label("k3_kernel")
    a(f"s_cmp_ge_u32 s2, {N_G2}")
    a("s_cbranch_scc1 k3_exit")
    stamp_begin(a)
    a(f"s_load_dwordx2 s[4:5], s[0:1], {KA_U}")
    a(f"s_load_dwordx4 s[8:11], s[0:1], {KA_WD}")
    a(f"s_load_dwordx2 s[6:7], s[0:1], {KA_WS}")
    a("v_and_b32 v1, 63, v0")
    a("v_lshrrev_b32 v2, 6, v0")
    a("s_and_b32 s32, s2, 7")
    a("s_lshr_b32 s33, s2, 3")
    a("v_readfirstlane_b32 s34, v2")
    a("s_lshl_b32 s32, s32, 8")
    a("s_and_b32 s35, s33, 3")
    a("s_lshl_b32 s35, s35, 6")
    a("s_add_u32 s32, s32, s35")
    a("s_lshr_b32 s33, s33, 2")
    a("s_lshl_b32 s33, s33, 6")
    a("s_cmp_lt_u32 s34, 4")
    a("s_cbranch_scc1 k3_compute")
    a("s_sub_u32 s34, s34, 4")
    a("v_lshrrev_b32 v3, 3, v1")
    a("v_and_b32 v4, 7, v1")
    a("v_lshrrev_b32 v5, 4, v1")
    a(f"v_mul_u32_u24 v7, {H_STRIDE}, v3")
    a("s_lshl_b32 s36, s34, 2")
    a("v_add_u32 v6, s36, v5")
    a("v_and_b32 v6, 7, v6")
    a("v_xor_b32 v6, v6, v4")
    a("v_lshl_add_u32 v8, v6, 4, v7")
    a("v_and_b32 v6, 1, v5")
    a("v_lshlrev_b32 v6, 2, v6")
    a("v_xor_b32 v6, v6, v4")
    a("v_lshlrev_b32 v6, 4, v6")
    a("v_lshl_add_u32 v10, v3, 10, v6")
    a("v_lshl_add_u32 v12, v3, 12, v6")
    a("s_lshl_b32 s36, s34, 3")
    a("s_add_u32 s37, s36, s32")
    a(f"s_mul_i32 s37, s37, {H_STRIDE}")
    a("s_lshl_b32 s38, s36, 10")
    a("s_lshl_b32 s39, s33, 1")
    a("s_add_u32 s38, s38, s39")
    a("s_add_u32 s39, s36, s33")
    a("s_lshl_b32 s39, s39, 12")
    a("s_lshl_b32 s40, s32, 1")
    a("s_add_u32 s39, s39, s40")
    a("s_lshl_b32 s40, s34, 10")
    a("s_waitcnt lgkmcnt(0)")
    srd(a, 16, 8, W_BYTES)
    srd(a, 12, 6, H_BYTES, WS_H)
    srd(a, 20, 6, L * D * 2, WS_AT)

    def dma(stage):
        b = (stage % G2_NS) * G2_STAGE
        a(f"s_add_u32 m0, s40, {b+8192}")
        a("s_nop 0")
        a("buffer_load_dwordx4 v10, s[16:19], s38 offen lds")
        a(f"s_add_u32 m0, s40, {b}")
        a("s_add_u32 s38, s38, 65536")
        a("buffer_load_dwordx4 v8, s[12:15], s37 offen lds")
        a("s_add_u32 s37, s37, 128")

    AT_AFTER = 3
    issued = 0
    for st in range(G2_NST):
        want = min(G2_NST - 1, 2 * st + 2, st + G2_LEAD)
        while issued <= want:
            dma(issued)
            if issued == AT_AFTER:
                a(f"s_add_u32 m0, s40, {G2_AT}")
                a("s_nop 0")
                a("buffer_load_dwordx4 v12, s[20:23], s39 offen lds")
            issued += 1
        vm = 2 * (issued - 1 - st) + (1 if st <= AT_AFTER < issued else 0)
        if st in (0, 8, 16):
            stamp(a)
        a(f"s_waitcnt vmcnt({vm})")
        a("s_barrier")
    stamp_end(a, 2, 6)
    a("s_endpgm")
    a.label("k3_compute")
    _stamp_n[0] = 1 if PROF else 0
    a("s_and_b32 s41, s34, 1")
    a("s_lshr_b32 s42, s34, 1")
    a("v_and_b32 v3, 31, v1")
    a("v_lshrrev_b32 v4, 5, v1")
    a("s_lshl_b32 s43, s41, 5")
    a("s_add_u32 s43, s43, s32")
    a("v_add_u32 v14, s43, v3")
    a("v_lshlrev_b32 v14, 10, v14")
    a("v_lshl_add_u32 v14, v4, 5, v14")
    a("s_lshl_b32 s44, s42, 5")
    a("s_add_u32 s44, s44, s33")
    a("s_lshl_b32 s44, s44, 1")
    a("v_lshrrev_b32 v5, 1, v3")
    a("v_and_b32 v5, 7, v5")
    a("v_xor_b32 v5, v5, v4")
    a("v_lshlrev_b32 v6, 7, v3")
    a("s_lshl_b32 s45, s41, 12")
    a("v_add_u32 v6, s45, v6")
    for ks in range(4):
        a(f"v_xor_b32 v7, {2*ks}, v5")
        a(f"v_lshl_add_u32 v{16+ks}, v7, 4, v6")
    a("v_and_b32 v5, 15, v1")
    a("v_lshrrev_b32 v6, 2, v5")
    a("v_and_b32 v5, 3, v5")
    a("v_lshrrev_b32 v7, 4, v1")
    a("v_and_b32 v7, 1, v7")
    a("v_lshlrev_b32 v21, 3, v5")
    a("v_lshl_add_u32 v21, v7, 5, v21")
    a("v_lshrrev_b32 v22, 1, v6")
    a("v_xor_b32 v23, s41, v22")
    a("v_lshl_add_u32 v21, v23, 6, v21")
    a("v_lshl_add_u32 v23, v4, 4, v6")
    a("v_lshl_add_u32 v21, v23, 7, v21")
    a("s_lshl_b32 s45, s42, 12")
    a(f"s_add_u32 s45, s45, {G2_AT}")
    a("v_add_u32 v21, s45, v21")
    a("v_and_b32 v15, 1, v5")
    a("v_lshlrev_b32 v15, 5, v15")
    a("v_lshl_add_u32 v15, v7, 4, v15")
    a("v_lshrrev_b32 v5, 1, v5")
    a("v_lshl_add_u32 v15, v5, 3, v15")
    a("v_xor_b32 v22, s42, v22")
    a("v_lshl_add_u32 v15, v22, 6, v15")
    a("v_lshl_add_u32 v6, v4, 3, v6")
    a("v_lshl_add_u32 v15, v6, 7, v15")
    a("v_add_u32 v20, 8192, v15")
    a("s_waitcnt lgkmcnt(0)")
    srd(a, 24, 4, L * D * 2)
    srd(a, 28, 10, L * D * 2)
    a("buffer_load_dwordx4 v[24:27], v14, s[24:27], s44 offen")
    a("buffer_load_dwordx4 v[28:31], v14, s[24:27], s44 offen offset:16")

    ACC = 32
    FS = [48, 80]
    XA = 112
    ATR = 128
    AT_ST = 10

    def reads(st):
        f = FS[st & 1]
        o = (st % 4) * G2_STAGE
        out = []
        for ks in range(4):
            out.append(f"ds_read_b64_tr_b16 {vr(f+8*ks,2)}, v20 offset:{o+ks*2048}")
            out.append(f"ds_read_b64_tr_b16 {vr(f+8*ks+2,2)}, v20 offset:{o+ks*2048+512}")
            out.append(f"ds_read_b128 {vr(f+8*ks+4,4)}, v{16+ks} offset:{o}")
        return out

    def mfmas(st):
        f = FS[st & 1]
        c = vr(ACC, 16)
        return [f"v_mfma_f32_32x32x16_bf16 {c}, {vr(f+8*ks,4)}, {vr(f+8*ks+4,4)}, "
                f"{'0' if st == 0 and ks == 0 else c}" for ks in range(4)]

    def xa_ops(k):
        x, t = XA + 2 * k, 4
        return [f"v_lshlrev_b32 v{x}, 16, v{24+k}",
                f"v_and_b32 v{x+1}, 0xffff0000, v{24+k}",
                f"v_lshlrev_b32 v{t}, 16, v{ATR+k}",
                f"v_and_b32 v{t+1}, 0xffff0000, v{ATR+k}",
                f"v_pk_add_f32 {vr(x,2)}, {vr(x,2)}, {vr(t,2)}",
                f"v_cvt_pk_bf16_f32 v{x+1}, v{x}, v{x+1}",
                f"v_lshlrev_b32 v{x}, 16, v{x+1}",
                f"v_and_b32 v{x+1}, 0xffff0000, v{x+1}"]

    for st in range(-1, G2_NST):
        nx = st + 1
        body = []
        if nx < G2_NST:
            if nx in (0, 8, 16):
                stamp(a)
            a("s_waitcnt lgkmcnt(0)" if nx != AT_ST + 1 else "s_waitcnt vmcnt(0) lgkmcnt(0)")
            a("s_barrier")
            if nx and nx % 4 == 0:
                delta = 65536 if (nx % G2_NS) == 4 else -65536
                for r in (16, 17, 18, 19, 20):
                    a(f"v_add_u32 v{r}, {delta & 0xffffffff:#x}, v{r}")
            body = reads(nx)
            if nx == AT_ST:
                body += [f"ds_read_b64_tr_b16 {vr(ATR+2*i,2)}, v21 offset:{512*i}" for i in range(4)]
        else:
            a("s_waitcnt lgkmcnt(0)")
        if st >= 0:
            body = interleave(body, mfmas(st), every=3) if body else mfmas(st)
        if AT_ST < nx <= AT_ST + 4:
            k = 2 * (nx - AT_ST - 1)
            body += xa_ops(k) + xa_ops(k + 1)
        for op in body:
            a(op)
    a("s_nop 15")
    stamp(a)
    for k in range(8):
        a(f"v_cvt_pk_bf16_f32 v{48+k}, v{ACC+2*k}, v{ACC+2*k+1}")
    for k in range(8):
        a(f"v_lshlrev_b32 v{ACC+2*k}, 16, v{48+k}")
        a(f"v_and_b32 v{ACC+2*k+1}, 0xffff0000, v{48+k}")
    for k in range(8):
        a(f"v_pk_add_f32 {vr(ACC+2*k,2)}, {vr(ACC+2*k,2)}, {vr(XA+2*k,2)}")
    for k in range(8):
        a(f"v_cvt_pk_bf16_f32 v{56+k}, v{ACC+2*k}, v{ACC+2*k+1}")
        if k == 3:
            a("buffer_store_dwordx4 v[56:59], v14, s[28:31], s44 offen")
    a("buffer_store_dwordx4 v[60:63], v14, s[28:31], s44 offen offset:16")
    stamp_end(a, 2, 6)
    a.label("k3_exit")
    a("s_endpgm")


def gen_k4(a):
    a.raw(".p2align 8")
    a.label("k4_kernel")
    a("s_cmp_ge_u32 s2, 1")
    a("s_cbranch_scc1 k4_exit")
    a(f"s_load_dwordx4 s[4:7], s[0:1], {KA_DBG}")
    a("s_memrealtime s[20:21]")
    a("s_waitcnt lgkmcnt(0)")
    srd(a, 8, 6, 0x1000000, PROF_BASE)
    srd(a, 12, 4, 256)
    groups = [(0, 0, 256, 0, 4), (0, 0, 256, 4, 8), (1, 0, 176, 0, 4), (1, 176, 240, 0, 8), (2, 0, 256, 0, 4)]
    for gi, (l, lo, hi, w0, w1) in enumerate(groups):
        a("v_mov_b32 v4, -1")
        a("v_mov_b32 v5, 0")
        for base in range(lo, hi, 64):
            n = min(64, hi - base)
            a(f"v_min_u32 v2, {n-1}, v0")
            a(f"v_add_u32 v2, {l*512 + base}, v2")
            a("v_lshlrev_b32 v2, 10, v2")
            for w in range(w0, w1):
                a(f"buffer_load_dwordx2 {vr(8+2*(w-w0),2)}, v2, s[8:11], 0 offen offset:{64*w}")
            a("s_waitcnt vmcnt(0)")
            for w in range(w0, w1):
                a(f"v_min_u32 v4, v4, v{8+2*(w-w0)}")
                a(f"v_max_u32 v5, v5, v{9+2*(w-w0)}")
        a("s_mov_b32 s22, -1")
        a("s_mov_b32 s23, 0")
        for ln in range(64):
            a(f"v_readlane_b32 s24, v4, {ln}")
            a(f"v_readlane_b32 s25, v5, {ln}")
            a("s_nop 1")
            a("s_min_u32 s22, s22, s24")
            a("s_max_u32 s23, s23, s25")
        a(f"s_mov_b32 s{30+2*gi}, s22")
        a(f"s_mov_b32 s{31+2*gi}, s23")
    a("v_mov_b32 v3, 0")
    for i in range(10):
        a(f"s_sub_u32 s24, s{30+i}, s30")
        a("v_mov_b32 v6, s24")
        a(f"buffer_store_dword v6, v3, s[12:15], 0 offen offset:{4*i}")
        a("s_nop 1")
    a("s_sub_u32 s24, s20, s30")
    a("v_mov_b32 v6, s24")
    a("buffer_store_dword v6, v3, s[12:15], 0 offen offset:40")
    a.label("k4_exit")
    a("s_endpgm")


def descriptor(name, vgpr, sgpr):
    acc = (vgpr + 3) // 4 * 4
    return f""".p2align 6
.amdhsa_kernel {name}
  .amdhsa_next_free_vgpr {vgpr}
  .amdhsa_next_free_sgpr {sgpr}
  .amdhsa_accum_offset {acc}
  .amdhsa_group_segment_fixed_size 0
  .amdhsa_kernarg_size 112
  .amdhsa_user_sgpr_count 2
  .amdhsa_user_sgpr_kernarg_segment_ptr 1
  .amdhsa_system_sgpr_workgroup_id_x 1
.end_amdhsa_kernel
"""


def main(path):
    a = Asm()
    a.raw(f"; @launch kernel=k1_kernel grid=({N_K1},1,1) block=(512,1,1) lds={K1_LDS}")
    a.raw(f"; @launch kernel=k2_kernel grid=({N_G1+N_CV},1,1) block=(512,1,1) lds={K2_LDS}")
    a.raw(f"; @launch kernel=k3_kernel grid=({N_G2},1,1) block=(768,1,1) lds={K3_LDS}")
    if K4:
        a.raw("; @launch kernel=k4_kernel grid=(1,1,1) block=(64,1,1) lds=0")
    a.raw('.amdgcn_target "amdgcn-amd-amdhsa--gfx950"')
    a.raw(".text")
    for k in ("k1_kernel", "k2_kernel", "k3_kernel") + (("k4_kernel",) if K4 else ()):
        a.raw(f".globl {k}")
        a.raw(f".type {k},@function")
    gen_k1(a)
    gen_k2(a)
    gen_k3(a)
    if K4:
        gen_k4(a)
    a.raw('.section .rodata,"a"')
    if K4:
        a.raw(descriptor("k4_kernel", 32, 48))
    sg = 102 if PROF else 0
    a.raw(descriptor("k1_kernel", 164, max(sg, 74)))
    a.raw(descriptor("k2_kernel", 256, max(sg, 56)))
    a.raw(descriptor("k3_kernel", 136, max(sg, 56)))
    open(path, "w").write(a.text())


if __name__ == "__main__":
    if "--notouch" in sys.argv:
        sys.argv.remove("--notouch")
        TOUCH = False
    if "--k4" in sys.argv:
        sys.argv.remove("--k4")
        K4 = PROF = True
    if "--prof" in sys.argv:
        sys.argv.remove("--prof")
        PROF = True
    main(sys.argv[1] if len(sys.argv) > 1 else f"cdna_kernels/{NAME}.s")
```

```python
import struct
import sys

NAME = "parallel_sum__ssm_conv_s4d__glu_gated_reglu__prompt"

L, D, N, F = 2048, 512, 128, 1376
FP = 1408
WS_XN = 0x000000
WS_XNT = 0x240000
WS_KR = 0x480000
WS_H = 0x880000
WS_AT = 0xE80000
XN_STRIDE = 1024 + 128
XN_BYTES = L * XN_STRIDE
H_STRIDE = 2 * FP + 128
H_BYTES = L * H_STRIDE
XNT_STRIDE = 4096 + 128
XNT_BYTES = D * XNT_STRIDE
W_BYTES = D * F * 2
WS_END = WS_AT + L * D * 2
TOUCH = False
CODE_PF = True

KA_U, KA_LAR, KA_AI, KA_CR, KA_CI, KA_LDT, KA_DSK, KA_BX, KA_WG, KA_WU, KA_WD, KA_OUT, KA_DBG, KA_WS = \
    [8 * i for i in range(14)]


def f32(x):
    return "0x%08x" % struct.unpack("<I", struct.pack("<f", x))[0]


class Asm:
    def __init__(self):
        self.lines = []

    def __call__(self, s):
        for ln in s.strip("\n").split("\n"):
            self.lines.append("  " + ln.strip())

    def label(self, s):
        self.lines.append(s + ":")

    def raw(self, s):
        self.lines.append(s)

    def text(self):
        return "\n".join(self.lines) + "\n"


PROF = False
K4 = False
PROF_BASE = 0x1400000
_stamp_n = [0]


def stamp_begin(a):
    _stamp_n[0] = 0
    if PROF:
        a("s_memrealtime s[80:81]")
        a("s_memtime s[82:83]")
        _stamp_n[0] = 1


def stamp(a):
    if PROF:
        k = _stamp_n[0]
        a(f"s_memtime s[{82+2*k}:{83+2*k}]")
        _stamp_n[0] += 1


def stamp_end(a, launch, ws_lo):
    if not PROF:
        return
    stamp(a)
    n = _stamp_n[0]
    a("s_waitcnt lgkmcnt(0)")
    a("s_memrealtime s[98:99]")
    a(f"s_add_u32 s76, s{ws_lo}, {PROF_BASE}")
    a(f"s_addc_u32 s77, s{ws_lo+1}, 0")
    a("s_mov_b32 s78, 0x1000000")
    a("s_mov_b32 s79, 0x00020000")
    a("v_lshrrev_b32 v2, 6, v0")
    a(f"s_add_u32 s75, s2, {launch*512}")
    a("s_lshl_b32 s75, s75, 10")
    a("v_lshlrev_b32 v2, 6, v2")
    a("v_add_u32 v2, s75, v2")
    a("s_waitcnt lgkmcnt(0)")
    a("v_mov_b32 v4, s80")
    a("v_mov_b32 v5, s98")
    a("buffer_store_dwordx2 v[4:5], v2, s[76:79], 0 offen")
    for k in range(n):
        a(f"v_mov_b32 v6, s{82+2*k}")
        a(f"buffer_store_dword v6, v2, s[76:79], 0 offen offset:{8+4*k}")
        a("s_nop 1")


def vr(b, n):
    return "v[%d:%d]" % (b, b + n - 1)


def sr(b, n):
    return "s[%d:%d]" % (b, b + n - 1)


def srd(a, dst, base, nbytes, add=0):
    if add:
        a(f"s_add_u32 s{dst}, s{base}, {add}")
        a(f"s_addc_u32 s{dst+1}, s{base+1}, 0")
    else:
        a(f"s_mov_b32 s{dst}, s{base}")
        a(f"s_mov_b32 s{dst+1}, s{base+1}")
    a(f"s_mov_b32 s{dst+2}, {nbytes}")
    a(f"s_mov_b32 s{dst+3}, 0x00020000")


_pc_n = [0]


def code_prefetch(a, lo, hi, slice_sgpr, lane16, dst, sbase):
    _pc_n[0] += 1
    lab = f"pc_ref{_pc_n[0]}"
    a(f"s_getpc_b64 {sr(sbase,2)}")
    a.label(lab)
    a(f"s_add_u32 s{sbase}, s{sbase}, ({lo} - {lab}) & 0xffffffff")
    a(f"s_addc_u32 s{sbase+1}, s{sbase+1}, (({lo} - {lab}) >> 32) & 0xffffffff")
    a(f"s_mov_b32 s{sbase+2}, {hi} - {lo}")
    a(f"s_mov_b32 s{sbase+3}, 0x00020000")
    a(f"s_lshl_b32 s{slice_sgpr}, s{slice_sgpr}, 10")
    a(f"buffer_load_dwordx4 {vr(dst,4)}, v{lane16}, {sr(sbase,4)}, s{slice_sgpr} offen")


def interleave(main, fill, every=1, start=0):
    out = []
    fill = list(fill)
    for i, m in enumerate(main):
        out.append(m)
        if i >= start and (i - start) % every == every - 1 and fill:
            out.append(fill.pop(0))
    out.extend(fill)
    return out


N_K1 = 256
LN_STRIDE = 1088
KG_ROW = 544
KG_XA, KG_YB, KG_T = 0, 24 * KG_ROW, 56 * KG_ROW
KG_CH = KG_T + 3072
LN_LDS = 2 * KG_CH
K1_LDS = LN_LDS + 8 * LN_STRIDE
LOG2E = 1.4426950408889634
L_HI = 47274.0 / 32768.0
C_LO = (LOG2E - L_HI) * 0.6931471805599453
T_BIAS = 0x3F7F
PF_W = 6


def dpp_reduce(a, regs):
    steps = ["row_shr:1 row_mask:0xf bank_mask:0xf bound_ctrl:0",
             "row_shr:2 row_mask:0xf bank_mask:0xf bound_ctrl:0",
             "row_shr:4 row_mask:0xf bank_mask:0xf bound_ctrl:0",
             "row_shr:8 row_mask:0xf bank_mask:0xf bound_ctrl:0",
             "row_bcast:15 row_mask:0xa bank_mask:0xf",
             "row_bcast:31 row_mask:0xc bank_mask:0xf"]
    a("s_nop 1")
    for st in steps:
        for r in regs:
            a(f"v_add_f32_dpp v{r}, v{r}, v{r} {st}")
    a("s_nop 1")


def bf16_round(a, dst, src):
    a(f"v_cvt_pk_bf16_f32 v{dst}, v{src}, v{src}")
    a(f"v_lshlrev_b32 v{dst}, 16, v{dst}")


def gen_ln(a):
    stamp_begin(a)
    if CODE_PF:
        a("v_lshlrev_b32 v3, 4, v1")
        a("s_lshr_b32 s45, s2, 3")
        a("s_lshl_b32 s45, s45, 1")
        a("s_sub_u32 s46, s44, 6")
        a("s_add_u32 s45, s45, s46")
        a("s_cmp_lt_u32 s44, 6")
        a("s_cbranch_scc1 k1_no_pf")
        code_prefetch(a, "k1_kernel", "code_end", 45, 3, 76, 56)
        a("s_branch k1_pf_done")
        a.label("k1_no_pf")
        a("s_nop 0")
        a.label("k1_pf_done")
    a(f"s_load_dwordx2 s[4:5], s[0:1], {KA_U}")
    a(f"s_load_dwordx2 s[6:7], s[0:1], {KA_WS}")
    a(f"s_load_dwordx4 s[48:51], s[0:1], {KA_WG}")
    a(f"s_load_dwordx4 s[68:71], s[0:1], {KA_WD}")
    a(f"s_load_dwordx2 s[54:55], s[0:1], {KA_DSK}")
    a("s_sub_u32 s22, s44, 4")
    a("s_and_b32 s20, s2, 7")
    a("s_lshr_b32 s21, s2, 3")
    a("s_lshl_b32 s20, s20, 8")
    a("s_lshl_b32 s23, s21, 3")
    a("s_add_u32 s20, s20, s23")
    a("s_lshl_b32 s23, s22, 1")
    a("s_add_u32 s23, s23, s20")
    a("s_lshl_b32 s24, s23, 10")
    a(f"s_mul_i32 s53, s23, {XN_STRIDE}")
    a("v_lshlrev_b32 v3, 4, v1")
    a("s_lshl_b32 s52, s2, 2")
    a("s_add_u32 s52, s52, s22")
    a("s_lshl_b32 s52, s52, 11")
    a(f"s_mul_i32 s25, s22, {2*LN_STRIDE}")
    a(f"s_add_u32 s25, s25, {LN_LDS}")
    a("v_add_u32 v4, s25, v3")
    a("v_and_b32 v5, 15, v1")
    a("v_lshrrev_b32 v6, 2, v5")
    a("v_and_b32 v5, 3, v5")
    a("v_lshrrev_b32 v7, 4, v1")
    a(f"v_mul_u32_u24 v6, {LN_STRIDE}, v6")
    a("v_lshlrev_b32 v5, 3, v5")
    a("v_lshl_add_u32 v5, v7, 5, v5")
    a("v_add_u32 v5, v5, v6")
    a("s_lshl_b32 s26, s22, 8")
    a(f"s_add_u32 s26, s26, {LN_LDS}")
    a("v_add_u32 v5, s26, v5")
    a("s_lshl_b32 s27, s22, 7")
    a("v_add_u32 v6, s27, v1")
    a(f"v_mul_u32_u24 v6, {XNT_STRIDE}, v6")
    a("s_lshl_b32 s28, s20, 1")
    a(f"s_add_u32 s29, s28, {64*XNT_STRIDE}")
    a("s_waitcnt lgkmcnt(0)")
    srd(a, 8, 4, L * D * 2)
    for r in range(2):
        a(f"buffer_load_dwordx4 {vr(8+4*r,4)}, v3, s[8:11], s24 offen offset:{r*1024}")
    srd(a, 56, 48, W_BYTES)
    srd(a, 60, 50, W_BYTES)
    srd(a, 64, 68, W_BYTES)
    if TOUCH:
        a("s_cmp_ge_u32 s2, 16")
        a("s_cbranch_scc1 k1_no_touch")
        srd(a, 12, 6, WS_END)
        srd(a, 16, 70, L * D * 2)
        a("v_lshlrev_b32 v60, 18, v1")
        a("s_lshl_b32 s45, s22, 16")
        a("buffer_load_dword v61, v60, s[12:15], s45 offen")
        a("v_lshlrev_b32 v60, 15, v1")
        a(f"s_mov_b32 s45, {1 << 24}")
        a("buffer_load_dword v61, v60, s[12:15], s45 offen")
        a("buffer_load_dword v61, v60, s[16:19], 0 offen")
        srd(a, 16, 54, D * 2)
        a("buffer_load_dword v61, v3, s[16:19], 0 offen")
        for i in range(2):
            a(f"buffer_load_dwordx4 v[72:75], v3, s[56:59], s52 offen offset:{i*1024}")
        a("s_branch k1_touched")
        a.label("k1_no_touch")
    for i in range(2):
        for b in (56, 60, 64):
            a(f"buffer_load_dwordx4 v[72:75], v3, {sr(b,4)}, s52 offen offset:{i*1024}")
    if TOUCH:
        a.label("k1_touched")
    srd(a, 12, 6, XN_BYTES, WS_XN)
    srd(a, 16, 6, XNT_BYTES, WS_XNT)
    X = lambda r, e: 32 + 8 * r + e
    stamp(a)
    for r in range(2):
        a(f"s_waitcnt vmcnt({PF_W + 1 - r})")
        if r == 0:
            stamp(a)
        for k in range(4):
            a(f"v_lshlrev_b32 v{X(r,2*k)}, 16, v{8+4*r+k}")
            a(f"v_and_b32 v{X(r,2*k+1)}, 0xffff0000, v{8+4*r+k}")
        a(f"v_readfirstlane_b32 s{30+2*r}, v{X(r,0)}")
        a(f"v_pk_add_f32 v[48:49], {vr(X(r,0),2)}, {vr(X(r,2),2)}")
        a(f"v_pk_add_f32 v[50:51], {vr(X(r,4),2)}, {vr(X(r,6),2)}")
        a(f"s_mov_b32 s{31+2*r}, s{30+2*r}")
        a("v_pk_add_f32 v[48:49], v[48:49], v[50:51]")
        for k in range(4):
            a(f"v_pk_add_f32 {vr(52+2*k,2)}, {vr(X(r,2*k),2)}, {sr(30+2*r,2)} neg_lo:[0,1] neg_hi:[0,1]")
        a(f"v_add_f32 v{24+2*r}, v48, v49")
        a("v_pk_mul_f32 v[50:51], v[52:53], v[52:53]")
        a("v_pk_mul_f32 v[48:49], v[54:55], v[54:55]")
        a("v_pk_fma_f32 v[50:51], v[56:57], v[56:57], v[50:51]")
        a("v_pk_fma_f32 v[48:49], v[58:59], v[58:59], v[48:49]")
        a("v_pk_add_f32 v[48:49], v[48:49], v[50:51]")
        a(f"v_add_f32 v{25+2*r}, v48, v49")
    dpp_reduce(a, [24, 25, 26, 27])
    for r in range(2):
        a(f"v_mul_f32 v{24+2*r}, {f32(1.0/512)}, v{24+2*r}")
        a(f"v_mul_f32 v{25+2*r}, {f32(1.0/512)}, v{25+2*r}")
    for r in range(2):
        a(f"v_subrev_f32 v{28+r}, s{30+2*r}, v{24+2*r}")
        bf16_round(a, 24 + 2 * r, 24 + 2 * r)
    for r in range(2):
        a(f"v_fma_f32 v{25+2*r}, -v{28+r}, v{28+r}, v{25+2*r}")
        a(f"v_max_f32 v{25+2*r}, 0, v{25+2*r}")
    for r in range(2):
        bf16_round(a, 25 + 2 * r, 25 + 2 * r)
    for r in range(2):
        a(f"v_add_f32 v{25+2*r}, {f32(1e-5)}, v{25+2*r}")
        a(f"v_readlane_b32 s{36+2*r}, v{24+2*r}, 63")
    for r in range(2):
        bf16_round(a, 25 + 2 * r, 25 + 2 * r)
    for r in range(2):
        a(f"v_sqrt_f32 v{25+2*r}, v{25+2*r}")
    for r in range(2):
        a(f"s_mov_b32 s{37+2*r}, s{36+2*r}")
    for r in range(2):
        bf16_round(a, 25 + 2 * r, 25 + 2 * r)
    for r in range(2):
        a(f"v_rcp_f32 v{25+2*r}, v{25+2*r}")
    for r in range(2):
        for k in range(4):
            a(f"v_pk_add_f32 {vr(X(r,2*k),2)}, {vr(X(r,2*k),2)}, {sr(36+2*r,2)} neg_lo:[0,1] neg_hi:[0,1]")
    for r in range(2):
        a(f"v_readlane_b32 s{40+2*r}, v{25+2*r}, 63")
    for r in range(2):
        for k in range(4):
            a(f"v_cvt_pk_bf16_f32 v{8+4*r+k}, v{X(r,2*k)}, v{X(r,2*k+1)}")
    for r in range(2):
        a(f"s_mov_b32 s{41+2*r}, s{40+2*r}")
    for r in range(2):
        for k in range(4):
            a(f"v_lshlrev_b32 v{X(r,2*k)}, 16, v{8+4*r+k}")
            a(f"v_and_b32 v{X(r,2*k+1)}, 0xffff0000, v{8+4*r+k}")
        for k in range(4):
            a(f"v_pk_mul_f32 {vr(X(r,2*k),2)}, {vr(X(r,2*k),2)}, {sr(40+2*r,2)}")
        for k in range(4):
            a(f"v_cvt_pk_bf16_f32 v{16+4*r+k}, v{X(r,2*k)}, v{X(r,2*k+1)}")
        a(f"ds_write_b128 v4, {vr(16+4*r,4)} offset:{r*LN_STRIDE}")
        a(f"buffer_store_dwordx4 {vr(16+4*r,4)}, v3, s[12:15], s53 offen offset:{r*XN_STRIDE}")
    a("s_waitcnt lgkmcnt(0)")
    stamp(a)
    a("s_barrier")
    for blk in range(2):
        for tb in range(2):
            a(f"ds_read_b64_tr_b16 {vr(32+4*blk+2*tb,2)}, v5 offset:{blk*128 + tb*4*LN_STRIDE}")
    a("s_waitcnt lgkmcnt(2)")
    a("buffer_store_dwordx4 v[32:35], v6, s[16:19], s28 offen")
    a("s_waitcnt lgkmcnt(0)")
    a("buffer_store_dwordx4 v[36:39], v6, s[16:19], s29 offen")
    stamp_end(a, 0, 6)
    a("s_endpgm")


def exp_acc(a, dst, x, t):
    a(f"v_mul_f32 v{dst}, {f32(L_HI)}, v{x}")
    a(f"v_exp_f32 v{dst}, v{dst}")
    a(f"v_mul_f32 v{t}, {f32(C_LO)}, v{x}")
    a(f"v_fma_f32 v{dst}, v{dst}, v{t}, v{dst}")


def cmul(t, z, w):
    return [f"v_pk_mul_f32 {vr(t,2)}, {vr(z,2)}, {vr(w,2)} op_sel:[0,0] op_sel_hi:[1,0]",
            f"v_pk_fma_f32 {vr(t,2)}, {vr(z,2)}, {vr(w,2)}, {vr(t,2)} op_sel:[1,1,0] op_sel_hi:[0,1,1] "
            f"neg_lo:[1,0,0]"]


def gen_kgen(a):
    stamp_begin(a)
    a(f"s_load_dwordx8 s[4:11], s[0:1], {KA_LAR}")
    a(f"s_load_dwordx2 s[12:13], s[0:1], {KA_LDT}")
    a(f"s_load_dwordx2 s[14:15], s[0:1], {KA_WS}")
    a("s_and_b32 s41, s2, 7")
    a("s_lshr_b32 s42, s2, 3")
    a("s_lshr_b32 s43, s42, 2")
    a("s_lshl_b32 s43, s43, 6")
    a("s_lshl_b32 s41, s41, 3")
    a("s_add_u32 s41, s41, s43")
    a("s_and_b32 s42, s42, 3")
    a("s_lshl_b32 s42, s42, 1")
    a("s_add_u32 s41, s41, s42")
    a("s_lshr_b32 s45, s44, 1")
    a("s_and_b32 s46, s44, 1")
    a("s_add_u32 s47, s41, s45")
    a("s_lshl_b32 s48, s46, 6")
    a("v_add_u32 v3, s48, v1")
    a("s_lshl_b32 s49, s47, 8")
    a("v_lshlrev_b32 v4, 1, v3")
    a("s_lshl_b32 s50, s47, 1")
    a("v_mov_b32 v5, s50")
    a("s_waitcnt lgkmcnt(0)")
    srd(a, 16, 4, D * N * 2)
    srd(a, 32, 12, D * 2)
    a("buffer_load_ushort v8, v4, s[16:19], s49 offen")
    a("buffer_load_ushort v12, v5, s[32:35], 0 offen")
    srd(a, 20, 6, D * N * 2)
    a("buffer_load_ushort v9, v4, s[20:23], s49 offen")
    srd(a, 24, 8, D * N * 2)
    a("buffer_load_ushort v10, v4, s[24:27], s49 offen")
    srd(a, 28, 10, D * N * 2)
    a("buffer_load_ushort v11, v4, s[28:31], s49 offen")
    srd(a, 36, 14, D * 8192, WS_KR)
    a(f"s_mul_i32 s51, s45, {KG_CH}")
    a("v_lshlrev_b32 v6, 2, v3")
    a("v_add_u32 v6, s51, v6")
    a("v_and_b32 v7, 15, v1")
    a("v_lshrrev_b32 v2, 4, v1")
    a(f"v_mul_u32_u24 v13, {KG_ROW}, v7")
    a("v_lshl_add_u32 v13, v2, 4, v13")
    a("v_add_u32 v100, s51, v13")
    a(f"s_mul_i32 s52, s46, {16*KG_ROW}")
    a("v_add_u32 v101, s52, v100")
    quads = [(0, 1), (4, 1), (256, 2), (512, 256)], [(1536, 256), (516, 256), (4097, 0), (4097, 0)]
    a("s_cmp_eq_u32 s46, 0")
    for q in range(4):
        a(f"s_mov_b32 s64, {f32(float(quads[0][q][0]))}")
        a(f"s_mov_b32 s65, {f32(float(quads[0][q][1]))}")
        a(f"s_cselect_b32 s{56+q}, s64, {f32(float(quads[1][q][0]))}")
        a(f"s_cselect_b32 s{60+q}, s65, {f32(float(quads[1][q][1]))}")
    a("v_mov_b32 v14, s56")
    a("v_mov_b32 v15, s60")
    for q in range(1, 4):
        a(f"v_cmp_eq_u32 vcc, {q}, v2")
        a(f"v_mov_b32 v16, s{56+q}")
        a(f"v_mov_b32 v17, s{60+q}")
        a("v_cndmask_b32 v14, v14, v16, vcc")
        a("v_cndmask_b32 v15, v15, v17, vcc")
    a("v_cvt_f32_u32 v16, v7")
    a("v_fmac_f32 v14, 0x41000000, v16")
    a(f"s_add_u32 s53, s51, {KG_T - 2*T_BIAS}")
    a(f"s_add_u32 s54, s51, {KG_T + 3000}")
    a("v_mov_b32 v19, s54")
    TW = 102
    for jt in range(2):
        for r in range(4):
            p = 20 + 4 * jt + r
            if r == 0:
                a(f"v_mov_b32 v{p}, v14" if jt == 0 else f"v_add_f32 v{p}, 0x43000000, v14")
            else:
                a(f"v_add_f32 v{p}, v{p-1}, v15")
    for i in range(8):
        p, b = 20 + i, TW + i
        a(f"v_cvt_pk_bf16_f32 v{b}, v{p}, v{p}")
        a(f"v_and_b32 v16, 0xffff0000, v{b}")
        a(f"v_cmp_eq_u32 vcc, v16, v{p}")
        a(f"v_and_b32 v{b}, 0xffff, v{b}")
        a(f"v_max_u32 v{b}, {T_BIAS}, v{b}")
        a(f"v_lshl_add_u32 v{b}, v{b}, 1, s53")
        a(f"v_cndmask_b32 v{b}, v19, v{b}, vcc")
    GA = 110
    a("v_lshlrev_b32 v7, 3, v3")
    a("v_sub_u32 v7, 2047, v7")
    a("v_cvt_f32_i32 v14, v7")
    a("v_lshlrev_b32 v130, 4, v3")
    a("s_lshl_b32 s55, s47, 13")
    a("s_add_u32 s56, s55, 4096")
    for ch in range(2):
        for e in range(0, 10, 2):
            b = GA + 10 * ch + e
            a(f"v_subrev_f32 v{b}, {f32(float(e + 1024*ch))}, v14")
            a(f"v_subrev_f32 v{b+1}, {f32(float(e + 1 + 1024*ch))}, v14")
            a(f"v_cvt_pk_bf16_f32 v{b+1}, v{b}, v{b+1}")
            a(f"v_and_b32 v{b}, 0xffff, v{b+1}")
            a(f"v_lshrrev_b32 v{b+1}, 16, v{b+1}")
            for z in (b, b + 1):
                a(f"v_max_u32 v{z}, {T_BIAS}, v{z}")
                a(f"v_min_u32 v{z}, 0x4500, v{z}")
                a(f"v_lshl_add_u32 v{z}, v{z}, 1, s53")
    a("v_cmp_eq_u32 vcc, 127, v3")
    a("v_mov_b32 v14, 0x00003f80")
    a(f"ds_write_b32 v6, v14 offset:{KG_YB}")
    stamp(a)
    a("s_waitcnt vmcnt(3)")
    stamp(a)
    a("v_lshlrev_b32 v12, 16, v12")
    a("v_lshlrev_b32 v8, 16, v8")
    exp_acc(a, 13, 12, 14)
    exp_acc(a, 15, 8, 16)
    bf16_round(a, 13, 13)
    bf16_round(a, 15, 15)
    a("s_waitcnt vmcnt(2)")
    a("v_lshlrev_b32 v9, 16, v9")
    a("v_mul_f32 v15, v15, v13")
    a("v_mul_f32 v16, v9, v13")
    a(f"v_mul_f32 v15, {f32(-LOG2E)}, v15")
    a(f"v_mul_f32 v16, {f32(0.15915494309189535)}, v16")
    seeds = [(1, 20, 1), (256, 22, 1), (8, 24, -1), (64, 26, -1)]
    for i, (p, z, sg) in enumerate(seeds):
        a(f"v_mul_f32 v{32+i}, {f32(float(p))}, v15")
        a(f"v_mul_f32 v{36+i}, {f32(float(p*sg))}, v16")
    for i in range(4):
        a(f"v_exp_f32 v{32+i}, v{32+i}")
        a(f"v_fract_f32 v{36+i}, v{36+i}")
    for i, (p, z, sg) in enumerate(seeds):
        a(f"v_cos_f32 v{z}, v{36+i}")
        a(f"v_sin_f32 v{z+1}, v{36+i}")
    a("s_waitcnt vmcnt(0)")
    a("v_lshlrev_b32 v10, 16, v10")
    a("v_lshlrev_b32 v11, 16, v11")
    a("v_add_f32 v13, v13, v13")
    for i, (p, z, sg) in enumerate(seeds):
        a(f"v_mul_f32 v{z}, v{32+i}, v{z}")
        a(f"v_mul_f32 v{z+1}, v{32+i}, v{z+1}")
    a("v_mul_f32 v28, v10, v13")
    a("v_mul_f32 v29, v11, v13")
    E1, E256, Y8, Y64, C = 20, 22, 24, 26, 28
    E2, E4, Y128, Y192 = 40, 42, 44, 46

    def emit(z, off, t):
        return [f"v_cvt_pk_bf16_f32 v{t}, v{z}, v{z+1}", f"ds_write_b32 v6, v{t} offset:{off}"]

    xrow = lambda q, r: KG_XA + (4 * q + r) * KG_ROW
    yrow = lambda j: KG_YB + j * KG_ROW

    def chain(seed, ratio, offs, ra, rb, t, emit_seed=True):
        ops = []
        cur = seed
        for k, off in enumerate(offs):
            if k:
                nxt = ra if cur != ra else rb
                ops.append(cmul(nxt, cur, ratio))
                cur = nxt
            if k or emit_seed:
                ops.append(emit(cur, off, t))
        return ops

    pre = [cmul(E2, E1, E1), cmul(Y128, Y64, Y64), cmul(48, C, E256), cmul(E4, E2, E2), cmul(Y192, Y128, Y64)]
    for i in range(2):
        for op in pre[:3]:
            a(op[i])
    for i in range(2):
        for op in pre[3:]:
            a(op[i])
    a("\n".join(cmul(50, C, E4)))
    chains = [
        chain(Y8, Y8, [yrow(j) for j in range(1, 8)], 52, 54, 88),
        chain(Y64, Y8, [yrow(j) for j in range(8, 16)], 56, 58, 89),
        chain(Y128, Y8, [yrow(j) for j in range(16, 24)], 60, 62, 90),
        chain(Y192, Y8, [yrow(j) for j in range(24, 32)], 64, 66, 91),
        chain(C, E1, [xrow(0, r) for r in range(4)], 68, 70, 92)
        + chain(48, E2, [xrow(2, r) for r in range(4)], 68, 70, 92),
        chain(50, E1, [xrow(1, r) for r in range(4)], 72, 74, 93),
    ]
    far = []
    cur = 48
    offs = [xrow(3, 0), xrow(3, 1), xrow(3, 2), xrow(3, 3), xrow(4, 0), xrow(4, 1), xrow(4, 2)]
    for k, off in enumerate(offs):
        nxt = 76 if cur != 76 else 78
        far.append(cmul(nxt, cur, E256))
        cur = nxt
        far.append(emit(cur, off, 94))
        if k < 2:
            far.append(cmul(80, cur, E4))
            far.append(emit(80, xrow(5, k), 95))
    chains.append(far)
    while any(chains):
        units = [c.pop(0) for c in chains if c]
        for i in range(2):
            for u in units:
                a(u[i])
    a("s_waitcnt lgkmcnt(0)")
    stamp(a)
    a("s_barrier")
    for ks in range(8):
        a(f"ds_read_b128 {vr(132+4*ks,4)}, v101 offset:{KG_XA + ks*64}")
        a(f"ds_read_b128 {vr(32+4*ks,4)}, v100 offset:{KG_YB + ks*64}")
        a(f"ds_read_b128 {vr(64+4*ks,4)}, v100 offset:{KG_YB + 16*KG_ROW + ks*64}")
    for ks in range(8):
        a(f"s_waitcnt lgkmcnt({min(15, 3*(7-ks))})")
        c0 = "0" if ks == 0 else "v[20:23]"
        c1 = "0" if ks == 0 else "v[24:27]"
        a(f"v_mfma_f32_16x16x32_bf16 v[20:23], {vr(132+4*ks,4)}, {vr(32+4*ks,4)}, {c0}")
        a(f"v_mfma_f32_16x16x32_bf16 v[24:27], {vr(132+4*ks,4)}, {vr(64+4*ks,4)}, {c1}")
    a("s_nop 7")
    for i in range(8):
        a(f"v_cvt_pk_bf16_f32 v{20+i}, v{20+i}, v{20+i}")
        a(f"ds_write_b16 v{TW+i}, v{20+i}")
    a("s_waitcnt lgkmcnt(0)")
    stamp(a)
    a("s_barrier")
    for ch in range(2):
        for e in range(9):
            a(f"ds_read_u16 v{32+16*ch+e}, v{GA+10*ch+e}")
    for ch in range(2):
        a(f"s_waitcnt lgkmcnt({9*(1-ch)})")
        q = 32 + 16 * ch
        if ch == 1:
            a(f"v_cndmask_b32 v{q+8}, v{q+8}, 0, vcc")
        for k in range(4):
            a(f"v_lshl_or_b32 v{64+8*ch+k}, v{q+2*k+1}, 16, v{q+2*k}")
            a(f"v_lshl_or_b32 v{68+8*ch+k}, v{q+2*k+2}, 16, v{q+2*k+1}")
        a(f"buffer_store_dwordx4 {vr(64+8*ch,4)}, v130, s[36:39], s55 offen offset:{2048*ch}")
        a(f"buffer_store_dwordx4 {vr(68+8*ch,4)}, v130, s[36:39], s56 offen offset:{2048*ch}")
    stamp_end(a, 0, 14)
    a("s_endpgm")


def gen_k1(a):
    a.raw(".p2align 8")
    a.label("k1_kernel")
    a(f"s_cmp_ge_u32 s2, {N_K1}")
    a("s_cbranch_scc1 k1_exit")
    a("v_lshrrev_b32 v2, 6, v0")
    a("v_and_b32 v1, 63, v0")
    a("v_readfirstlane_b32 s44, v2")
    a("s_cmp_ge_u32 s44, 4")
    a("s_cbranch_scc1 k1_ln")
    gen_kgen(a)
    a.label("k1_ln")
    gen_ln(a)
    a.label("k1_exit")
    a("s_endpgm")


N_G1, N_CV = 176, 64
G1_STAGE = 49152
G1_W = 32768
K2_LDS = 3 * G1_STAGE
G1_NST = 8
CV_O, CV_Z, CV_U, CV_W = 4160, 8288, 8304, 12416


def gen_gemm1_loader(a):
    a("s_sub_u32 s30, s30, 4")
    a("v_lshrrev_b32 v3, 3, v1")
    a("v_and_b32 v4, 7, v1")
    a("v_lshrrev_b32 v5, 4, v1")
    a(f"v_mul_u32_u24 v14, {XN_STRIDE}, v3")
    for q in range(4):
        a(f"v_add_u32 v6, {4*q}, v5")
        a("v_and_b32 v6, 7, v6")
        a("v_xor_b32 v6, v6, v4")
        a("v_lshl_add_u32 v6, v6, 4, v14")
        a(f"v_add_u32 v{8+q}, {q*(8*XN_STRIDE-1024)}, v6")
    a("v_and_b32 v6, 1, v5")
    a("v_lshrrev_b32 v7, 2, v4")
    a("v_xor_b32 v6, v6, v7")
    a("v_and_b32 v7, 3, v4")
    a("v_lshlrev_b32 v7, 3, v7")
    a("v_lshl_add_u32 v6, v6, 5, v7")
    a("s_lshl_b32 s31, s29, 6")
    a("v_add_u32 v6, s31, v6")
    a(f"v_mul_u32_u24 v12, {2*F}, v3")
    a("v_lshl_add_u32 v12, v6, 1, v12")
    a(f"v_add_u32 v13, {8*2*F-1024}, v12")
    a(f"v_cmp_le_u32 vcc, {F}, v6")
    a("v_mov_b32 v7, 0x40000000")
    a(f"s_mul_i32 s32, s28, {256*XN_STRIDE}")
    a("v_cndmask_b32 v12, v12, v7, vcc")
    a("v_cndmask_b32 v13, v13, v7, vcc")
    a(f"s_mul_i32 s33, s30, {64*XN_STRIDE}")
    a("s_add_u32 s32, s32, s33")
    a(f"s_add_u32 s36, s32, {32*XN_STRIDE}")
    a(f"s_mul_i32 s33, s30, {16*2*F}")
    a("s_lshl_b32 s34, s30, 13")
    a("s_lshl_b32 s35, s30, 11")
    a(f"s_add_u32 s35, s35, {G1_W}")
    a("s_waitcnt lgkmcnt(0)")
    srd(a, 16, 4, W_BYTES)
    srd(a, 20, 6, W_BYTES)
    srd(a, 12, 8, XN_BYTES, WS_XN)

    def dma(stage, lo=0, hi=12):
        b = (stage % 3) * G1_STAGE
        if lo == 0:
            a(f"s_add_u32 m0, s35, {b}")
            a("s_nop 0")
            a("buffer_load_dwordx4 v12, s[16:19], s33 offen lds")
            a("buffer_load_dwordx4 v13, s[16:19], s33 offen offset:1024 lds")
            a(f"s_add_u32 m0, s35, {b+8192}")
            a("s_nop 0")
            a("buffer_load_dwordx4 v12, s[20:23], s33 offen lds")
            a("buffer_load_dwordx4 v13, s[20:23], s33 offen offset:1024 lds")
            a(f"s_add_u32 s33, s33, {64*2*F}")
        if hi == 12:
            a(f"s_add_u32 m0, s34, {b}")
            a("s_nop 0")
            for q in range(4):
                a(f"buffer_load_dwordx4 v{8+q}, s[12:15], s32 offen offset:{q*1024} lds")
            a(f"s_add_u32 m0, s34, {b+4096}")
            a("s_add_u32 s32, s32, 128")
            for q in range(4):
                a(f"buffer_load_dwordx4 v{8+q}, s[12:15], s36 offen offset:{q*1024} lds")
            a("s_add_u32 s36, s36, 128")

    dma(0)
    dma(1, 0, 4)
    for st in range(G1_NST):
        if st in (0, 3, 4):
            stamp(a)
        a(f"s_waitcnt vmcnt({4 if st == 0 else (12 if st + 1 < G1_NST else 0)})")
        if st in (0, 3, 4):
            stamp(a)
        a("s_barrier")
        if st in (3,):
            stamp(a)
        if st == 0:
            dma(1, 4, 12)
        if st + 2 < G1_NST:
            dma(st + 2)
    stamp_end(a, 1, 8)
    a("s_endpgm")


def gen_gemm1(a):
    stamp_begin(a)
    a(f"s_load_dwordx4 s[4:7], s[0:1], {KA_WG}")
    a(f"s_load_dwordx2 s[8:9], s[0:1], {KA_WS}")
    a("v_and_b32 v1, 63, v0")
    a("v_lshrrev_b32 v2, 6, v0")
    a("s_and_b32 s28, s2, 7")
    a("s_lshr_b32 s29, s2, 3")
    a("v_readfirstlane_b32 s30, v2")
    a("s_cmp_lt_u32 s30, 4")
    a("s_cbranch_scc1 k2_g1_compute")
    gen_gemm1_loader(a)
    a.label("k2_g1_compute")
    _stamp_n[0] = 1 if PROF else 0
    a("v_and_b32 v3, 31, v1")
    a("v_lshrrev_b32 v4, 5, v1")
    a("v_lshrrev_b32 v5, 1, v3")
    a("v_and_b32 v5, 7, v5")
    a("v_xor_b32 v5, v5, v4")
    a("v_lshlrev_b32 v6, 7, v3")
    a("s_lshl_b32 s38, s30, 13")
    a("v_add_u32 v6, s38, v6")
    for ks in range(4):
        a(f"v_xor_b32 v7, {2*ks}, v5")
        a(f"v_lshl_add_u32 v{16+ks}, v7, 4, v6")
    a("v_and_b32 v5, 15, v1")
    a("v_lshrrev_b32 v6, 2, v5")
    a("v_and_b32 v5, 3, v5")
    a("v_lshrrev_b32 v7, 4, v1")
    a("v_and_b32 v7, 1, v7")
    a("v_and_b32 v13, 1, v5")
    a("v_lshlrev_b32 v13, 5, v13")
    a("v_lshl_add_u32 v13, v7, 4, v13")
    a("v_lshrrev_b32 v5, 1, v5")
    a("v_lshl_add_u32 v13, v5, 3, v13")
    a("v_lshrrev_b32 v5, 1, v6")
    a("v_lshl_add_u32 v13, v5, 6, v13")
    a("v_lshl_add_u32 v6, v4, 3, v6")
    a("v_lshl_add_u32 v13, v6, 7, v13")
    a(f"v_add_u32 v20, {G1_W}, v13")
    a("v_xor_b32 v21, 64, v20")
    HS = 144
    a(f"s_mul_i32 s39, s30, {64*HS}")
    a(f"v_mul_u32_u24 v22, {HS}, v3")
    a("v_lshl_add_u32 v22, v4, 5, v22")
    a("v_add_u32 v22, s39, v22")
    a("v_lshrrev_b32 v5, 3, v1")
    a("v_and_b32 v6, 7, v1")
    a(f"v_mul_u32_u24 v23, {HS}, v5")
    a("v_lshl_add_u32 v23, v6, 4, v23")
    a("v_add_u32 v23, s39, v23")
    a(f"v_mul_u32_u24 v24, {H_STRIDE}, v5")
    a("v_lshl_add_u32 v24, v6, 4, v24")
    a("s_lshl_b32 s40, s28, 8")
    a("s_lshl_b32 s41, s30, 6")
    a("s_add_u32 s40, s40, s41")
    a(f"s_mul_i32 s42, s40, {H_STRIDE}")
    a("s_lshl_b32 s43, s29, 7")
    a("s_add_u32 s42, s42, s43")
    a("s_waitcnt lgkmcnt(0)")
    srd(a, 24, 8, H_BYTES, WS_H)

    ACC = lambda w, ft, tt: 128 + 64 * w + 32 * ft + 16 * tt
    FS = [32, 56, 80, 104]

    def reads(n, f):
        ks = n & 3
        out = []
        for w in range(2):
            for ft in range(2):
                o = 8192 * w + ks * 2048
                out.append(f"ds_read_b64_tr_b16 {vr(f+8*w+4*ft,2)}, v{20+ft} offset:{o}")
                out.append(f"ds_read_b64_tr_b16 {vr(f+8*w+4*ft+2,2)}, v{20+ft} offset:{o+512}")
            out.append(f"ds_read_b128 {vr(f+16+4*w,4)}, v{16+ks} offset:{4096*w}")
        return out

    def mfma(n, f, w, ft, tt):
        c = vr(ACC(w, ft, tt), 16)
        return (f"v_mfma_f32_32x32x16_bf16 {c}, {vr(f+8*w+4*ft,4)}, {vr(f+16+4*tt,4)}, "
                f"{'0' if n == 0 else c}")

    def mfmas(n, f):
        return [mfma(n, f, w, ft, tt) for tt in range(2) for w in range(2) for ft in range(2)]

    def boundary(st):
        if st in (3, 4):
            stamp(a)
        a("s_waitcnt lgkmcnt(0)")
        a("s_barrier")
        if st in (0, 3, 4):
            stamp(a)
        if st >= 1:
            delta = G1_STAGE if st % 3 else -2 * G1_STAGE
            for r in (16, 17, 18, 19, 20, 21):
                a(f"v_add_u32 v{r}, {delta & 0xffffffff:#x}, v{r}")

    LASTN = 4 * (G1_NST - 1)
    boundary(0)
    for op in reads(0, FS[0]):
        a(op)
    for n in range(LASTN):
        nx = n + 1
        if nx == LASTN:
            break
        if nx & 3 == 0:
            boundary(nx >> 2)
        else:
            a("s_waitcnt lgkmcnt(0)")
        rd = reads(nx, FS[nx & 1])
        cuts = [0, 3, 6, 8, 10, 10, 10, 10, 10]
        for i, m in enumerate(mfmas(n, FS[n & 1])):
            a(m)
            for op in rd[cuts[i]:cuts[i + 1]]:
                a(op)
    n = LASTN - 1
    boundary(G1_NST - 1)
    sets = {LASTN: FS[0], LASTN + 2: FS[2], LASTN + 3: FS[3], LASTN + 1: FS[1]}
    early = reads(LASTN, FS[0]) + reads(LASTN + 2, FS[2]) + reads(LASTN + 3, FS[3])
    mm = mfmas(n, FS[n & 1])
    for i, m in enumerate(mm):
        a(m)
        for op in early[4 * i:4 * i + 4]:
            a(op)
    for op in reads(LASTN + 1, FS[1]):
        a(op)

    def pair_epilogue(ft, tt):
        g, u = ACC(0, ft, tt), ACC(1, ft, tt)
        out = []
        for k0 in range(0, 8, 2):
            for k, t in ((k0, 4), (k0 + 1, 8)):
                out.append(f"v_cvt_pk_bf16_f32 v{t}, v{g+2*k}, v{g+2*k+1}")
                out.append(f"v_cvt_pk_bf16_f32 v{t+1}, v{u+2*k}, v{u+2*k+1}")
            for k, t in ((k0, 4), (k0 + 1, 8)):
                out.append(f"v_pk_max_i16 v{t}, v{t}, 0")
                out.append(f"v_lshlrev_b32 v{u+2*k}, 16, v{t+1}")
                out.append(f"v_and_b32 v{u+2*k+1}, 0xffff0000, v{t+1}")
                out.append(f"v_lshlrev_b32 v{t+2}, 16, v{t}")
                out.append(f"v_and_b32 v{t+3}, 0xffff0000, v{t}")
            for k, t in ((k0, 4), (k0 + 1, 8)):
                out.append(f"v_pk_mul_f32 {vr(t+2,2)}, {vr(t+2,2)}, {vr(u+2*k,2)}")
            for k, t in ((k0, 4), (k0 + 1, 8)):
                out.append(f"v_cvt_pk_bf16_f32 v{g+k}, v{t+2}, v{t+3}")
        out.append(f"ds_write_b128 v22, {vr(g,4)} offset:{32*HS*tt + 64*ft}")
        out.append(f"ds_write_b128 v22, {vr(g+4,4)} offset:{32*HS*tt + 64*ft + 16}")
        return out

    def flush(tt, regs):
        rd = [f"ds_read_b128 {vr(regs+4*i,4)}, v23 offset:{8*HS*(4*tt+i)}" for i in range(4)]
        st = []
        for i in range(4):
            st.append(f"s_waitcnt lgkmcnt({3-i})\n"
                      f"buffer_store_dwordx4 {vr(regs+4*i,4)}, v24, s[24:27], s42 offen\n"
                      f"s_add_u32 s42, s42, {8*H_STRIDE}")
        return rd, st

    order = [(0, 0), (1, 0), (0, 1), (1, 1)]
    korder = [LASTN, LASTN + 2, LASTN + 3, LASTN + 1]
    a("s_waitcnt lgkmcnt(10)")
    for pi, (ft, tt) in enumerate(order):
        mm = []
        for kn in korder:
            if pi == 0 and kn == LASTN + 1:
                mm.append("s_waitcnt lgkmcnt(0)\n" + mfma(kn, sets[kn], 0, ft, tt))
            else:
                mm.append(mfma(kn, sets[kn], 0, ft, tt))
            mm.append(mfma(kn, sets[kn], 1, ft, tt))
        fill = ["s_nop 8"] + pair_epilogue(*order[pi - 1]) if pi else []
        if pi == 3:
            rd, st = flush(0, ACC(1, 0, 0))
            fill = ["s_waitcnt lgkmcnt(0)"] + rd + fill[:40] + st + fill[40:]
        lead = 2
        per = -(-len(fill) // (len(mm) - lead)) if fill else 0
        for i, m in enumerate(mm):
            a(m)
            if i >= lead - 1 and fill:
                j = i - (lead - 1)
                for op in fill[j * per:(j + 1) * per]:
                    a(op)
    a("s_nop 15")
    stamp(a)
    for op in pair_epilogue(*order[3]):
        a(op)
    a("s_waitcnt lgkmcnt(0)")
    rd, st = flush(1, ACC(1, 0, 0))
    for op in rd + st:
        a(op)
    stamp_end(a, 1, 8)
    a("s_endpgm")


def gen_conv(a):
    stamp_begin(a)
    a(f"s_load_dwordx2 s[4:5], s[0:1], {KA_DSK}")
    a(f"s_load_dwordx2 s[8:9], s[0:1], {KA_WS}")
    a("v_and_b32 v1, 63, v0")
    a("v_lshrrev_b32 v2, 6, v0")
    a(f"s_sub_u32 s28, s2, {N_G1}")
    a("s_nop 0")
    a("v_readfirstlane_b32 s30, v2")
    a("s_lshl_b32 s28, s28, 3")
    a("s_add_u32 s28, s28, s30")
    a(f"s_mul_i32 s31, s30, {CV_W}")
    a("s_lshl_b32 s32, s28, 13")
    a("s_add_u32 s33, s32, 4096")
    a("s_lshl_b32 s34, s28, 12")
    a("s_lshr_b32 s35, s28, 1")
    a("s_lshl_b32 s35, s35, 2")
    a("v_lshlrev_b32 v3, 4, v1")
    a("s_waitcnt lgkmcnt(0)")
    a("s_load_dword s36, s[4:5], s35")
    srd(a, 12, 8, D * 8192, WS_KR)
    srd(a, 16, 8, XNT_BYTES, WS_XNT)
    srd(a, 20, 8, L * D * 2, WS_AT)
    a(f"s_mul_i32 s44, s28, {XNT_STRIDE}")
    a(f"s_add_u32 m0, s31, {CV_U}")
    a("s_nop 0")
    for q in range(4):
        a(f"buffer_load_dwordx4 v3, s[16:19], s44 offen offset:{q*1024} lds")
    for qs in ((2, 3), (0, 1)):
        a("s_mov_b32 m0, s31")
        a("s_nop 0")
        for q in qs:
            a(f"buffer_load_dwordx4 v3, s[12:15], s32 offen offset:{q*1024} lds")
        a(f"s_add_u32 m0, s31, {CV_O}")
        a("s_nop 0")
        for q in qs:
            a(f"buffer_load_dwordx4 v3, s[12:15], s33 offen offset:{q*1024} lds")
    if CODE_PF:
        a(f"s_sub_u32 s45, s2, {N_G1}")
        a("s_lshr_b32 s45, s45, 3")
        a("s_lshl_b32 s45, s45, 3")
        a("s_add_u32 s45, s45, s30")
        code_prefetch(a, "k3_kernel", "code_end", 45, 3, 200, 48)
    a("v_mov_b32 v4, 0")
    a("v_mov_b32 v5, 0")
    a("v_mov_b32 v6, 0")
    a("v_mov_b32 v7, 0")
    a(f"v_add_u32 v8, 4096, v3")
    a(f"v_add_u32 v9, {CV_O + 4096 - 32}, v3")
    a("v_cmp_gt_u32 vcc, 2, v1")
    a("s_nop 1")
    a("v_cndmask_b32 v8, v9, v8, vcc")
    a("v_add_u32 v8, s31, v8")
    a("v_cmp_gt_u32 vcc, 5, v1")
    a("s_and_saveexec_b64 s[38:39], vcc")
    a("ds_write_b128 v8, v[4:7]")
    a("s_mov_b64 exec, s[38:39]")
    a("v_and_b32 v4, 15, v1")
    a("v_lshrrev_b32 v5, 4, v1")
    a("v_lshlrev_b32 v6, 3, v5")
    a("v_sub_u32 v6, v6, v4")
    a("v_lshlrev_b32 v6, 1, v6")
    a("v_and_b32 v7, 1, v4")
    a(f"v_mov_b32 v8, {CV_O + 2*2030}")
    a(f"v_mov_b32 v9, {2*2031}")
    a("v_cmp_eq_u32 vcc, 1, v7")
    a("s_nop 1")
    a("v_cndmask_b32 v8, v8, v9, vcc")
    a("v_add_u32 v6, v6, v8")
    a("v_add_u32 v6, s31, v6")
    for P in range(4):
        a(f"v_subrev_u32 v{10+P}, {512*(2*P+1)+448}, v6")
    a("v_lshlrev_b32 v7, 5, v4")
    a("v_lshl_add_u32 v7, v5, 4, v7")
    a(f"s_add_u32 s37, s31, {CV_U - 32 - 448}")
    a("v_add_u32 v14, s37, v7")
    a(f"s_add_u32 s40, s31, {CV_Z}")
    for rho in range(8):
        a(f"v_add_u32 v{16+rho}, {64*(7-rho)}, v14")
        a(f"v_max_i32 v{16+rho}, s40, v{16+rho}")
    a("v_lshlrev_b32 v24, 5, v4")
    a("v_lshl_add_u32 v24, v5, 3, v24")
    a(f"s_add_u32 s41, s31, {CV_U}")
    a("v_add_u32 v25, s41, v24")

    ACC = 32
    SET = [64, 112]

    def loads(ph, rho):
        s = SET[rho & 1]
        out = []
        for m in range(8 if ph == 0 else 4):
            if m == 0:
                out.append(f"ds_read_b128 {vr(s+16,4)}, v{16+rho}")
            else:
                out.append(f"ds_read_b128 {vr(s+16+4*m,4)}, v14 offset:{512*m + 64*(7-rho)}")
            if m < 4:
                i = 4 * ph + m
                o = (64 * (7 - rho) + (0 if i & 1 else 512)) // 4
                out.append(f"ds_read2_b32 {vr(s+4*m,2)}, v{10+(i>>1)} offset0:{o} offset1:{o+1}")
                out.append(f"ds_read2_b32 {vr(s+4*m+2,2)}, v{10+(i>>1)} offset0:{o+2} offset1:{o+3}")
        return out

    def mfma(ph, rho, i, m):
        s = SET[rho & 1]
        c = vr(ACC + 4 * (i + m), 4)
        first = ph == 0 and rho == 0 and i == 0
        return (f"v_mfma_f32_16x16x32_bf16 {c}, {vr(s+4*(i-4*ph),4)}, {vr(s+16+4*m,4)}, "
                f"{'0' if first else c}")

    def mfmas(ph, rho):
        return [mfma(ph, rho, i, m) for i in range(4 * ph, 4 * ph + 4) for m in range(8 - i)]

    stamp(a)
    a(f"s_waitcnt vmcnt({5 if CODE_PF else 4}) lgkmcnt(0)")
    stamp(a)
    a("s_and_b32 s42, s28, 1")
    a("s_lshl_b32 s43, s36, 16")
    a("s_and_b32 s36, s36, 0xffff0000")
    a("s_cmp_eq_u32 s42, 0")
    a("s_cselect_b32 s36, s43, s36")
    for op in loads(0, 0):
        a(op)

    UREG = SET[0] + 32

    def tile_epilogue(t):
        y = ACC + 4 * t
        u = UREG + 2 * t
        w = 2 if t & 1 else SET[1] + 32
        return [f"v_lshlrev_b32 v{w}, 16, v{u}",
                f"v_and_b32 v{w+1}, 0xffff0000, v{u}",
                f"v_lshlrev_b32 v{w+2}, 16, v{u+1}",
                f"v_and_b32 v{w+3}, 0xffff0000, v{u+1}",
                f"v_pk_mul_f32 {vr(w,2)}, {vr(w,2)}, s[36:37]",
                f"v_pk_mul_f32 {vr(w+2,2)}, {vr(w+2,2)}, s[36:37]",
                f"v_cvt_pk_bf16_f32 v{u}, v{w}, v{w+1}",
                f"v_cvt_pk_bf16_f32 v{u+1}, v{w+2}, v{w+3}",
                f"v_cvt_pk_bf16_f32 v{w+5}, v{y}, v{y+1}",
                f"v_cvt_pk_bf16_f32 v{w+7}, v{y+2}, v{y+3}",
                f"v_lshlrev_b32 v{w}, 16, v{u}",
                f"v_and_b32 v{w+1}, 0xffff0000, v{u}",
                f"v_lshlrev_b32 v{w+2}, 16, v{u+1}",
                f"v_and_b32 v{w+3}, 0xffff0000, v{u+1}",
                f"v_lshlrev_b32 v{w+4}, 16, v{w+5}",
                f"v_and_b32 v{w+5}, 0xffff0000, v{w+5}",
                f"v_lshlrev_b32 v{w+6}, 16, v{w+7}",
                f"v_and_b32 v{w+7}, 0xffff0000, v{w+7}",
                f"v_pk_add_f32 {vr(w,2)}, {vr(w,2)}, {vr(w+4,2)}",
                f"v_pk_add_f32 {vr(w+2,2)}, {vr(w+2,2)}, {vr(w+6,2)}",
                f"v_cvt_pk_bf16_f32 v{u}, v{w}, v{w+1}",
                f"v_cvt_pk_bf16_f32 v{u+1}, v{w+2}, v{w+3}",
                f"buffer_store_dwordx2 {vr(u,2)}, v24, s[20:23], s34 offen offset:{512*t}"]

    a("s_mov_b32 s37, s36")
    for rho in range(8):
        a("s_waitcnt lgkmcnt(0)" if rho < 7 else "s_waitcnt vmcnt(0) lgkmcnt(0)")
        nxt = loads(0, rho + 1) if rho < 7 else loads(1, 0)
        if rho == 7:
            nxt += [f"ds_read_b64 {vr(UREG+2*t,2)}, v25 offset:{512*t}" for t in range(8)]
        for op in interleave(mfmas(0, rho), nxt):
            a(op)
    for rho in range(7):
        a("s_waitcnt lgkmcnt(0)")
        fill = loads(1, rho + 1)
        if 1 <= rho <= 4:
            fill = interleave(fill, tile_epilogue(rho - 1), every=1)
        mm = mfmas(1, rho)
        per = -(-len(fill) // len(mm))
        for i, m in enumerate(mm):
            a(m)
            for op in fill[i * per:(i + 1) * per]:
                a(op)
    a("s_waitcnt lgkmcnt(0)")
    seq = {t: [mfma(1, 7, i, t - i) for i in range(4, t + 1)] for t in range(4, 8)}
    for op in seq[4] + seq[5] + seq[6]:
        a(op)
    e4 = tile_epilogue(4)
    for i, m in enumerate(seq[7]):
        a(m)
        for op in e4[6 * i:6 * i + 6]:
            a(op)
    stamp(a)
    for op in interleave(tile_epilogue(5), tile_epilogue(6)) + tile_epilogue(7):
        a(op)
    stamp_end(a, 1, 8)
    a("s_endpgm")


def gen_k2(a):
    a.raw(".p2align 8")
    a.label("k2_kernel")
    a(f"s_cmp_ge_u32 s2, {N_G1 + N_CV}")
    a("s_cbranch_scc1 k2_exit")
    a(f"s_cmp_ge_u32 s2, {N_G1}")
    a("s_cbranch_scc1 k2_conv")
    gen_gemm1(a)
    a.label("k2_conv")
    gen_conv(a)
    a.label("k2_exit")
    a("s_endpgm")


N_G2 = 256
G2_NS = 8
G2_STAGE = 16384
G2_AT = G2_NS * G2_STAGE
K3_LDS = G2_AT + 8192
G2_NST = FP // 64
G2_LEAD = 4


def gen_k3(a):
    a.raw(".p2align 8")
    a.label("k3_kernel")
    a(f"s_cmp_ge_u32 s2, {N_G2}")
    a("s_cbranch_scc1 k3_exit")
    stamp_begin(a)
    a(f"s_load_dwordx2 s[4:5], s[0:1], {KA_U}")
    a(f"s_load_dwordx4 s[8:11], s[0:1], {KA_WD}")
    a(f"s_load_dwordx2 s[6:7], s[0:1], {KA_WS}")
    a("v_and_b32 v1, 63, v0")
    a("v_lshrrev_b32 v2, 6, v0")
    a("s_and_b32 s32, s2, 7")
    a("s_lshr_b32 s33, s2, 3")
    a("v_readfirstlane_b32 s34, v2")
    a("s_lshl_b32 s32, s32, 8")
    a("s_and_b32 s35, s33, 3")
    a("s_lshl_b32 s35, s35, 6")
    a("s_add_u32 s32, s32, s35")
    a("s_lshr_b32 s33, s33, 2")
    a("s_lshl_b32 s33, s33, 6")
    a("s_cmp_lt_u32 s34, 4")
    a("s_cbranch_scc1 k3_compute")
    a("s_sub_u32 s34, s34, 4")
    a("v_lshrrev_b32 v3, 3, v1")
    a("v_and_b32 v4, 7, v1")
    a("v_lshrrev_b32 v5, 4, v1")
    a(f"v_mul_u32_u24 v7, {H_STRIDE}, v3")
    a("s_lshl_b32 s36, s34, 2")
    a("v_add_u32 v6, s36, v5")
    a("v_and_b32 v6, 7, v6")
    a("v_xor_b32 v6, v6, v4")
    a("v_lshl_add_u32 v8, v6, 4, v7")
    a("v_and_b32 v6, 1, v5")
    a("v_lshlrev_b32 v6, 2, v6")
    a("v_xor_b32 v6, v6, v4")
    a("v_lshlrev_b32 v6, 4, v6")
    a("v_lshl_add_u32 v10, v3, 10, v6")
    a("v_lshl_add_u32 v12, v3, 12, v6")
    a("s_lshl_b32 s36, s34, 3")
    a("s_add_u32 s37, s36, s32")
    a(f"s_mul_i32 s37, s37, {H_STRIDE}")
    a("s_lshl_b32 s38, s36, 10")
    a("s_lshl_b32 s39, s33, 1")
    a("s_add_u32 s38, s38, s39")
    a("s_add_u32 s39, s36, s33")
    a("s_lshl_b32 s39, s39, 12")
    a("s_lshl_b32 s40, s32, 1")
    a("s_add_u32 s39, s39, s40")
    a("s_lshl_b32 s40, s34, 10")
    a("s_waitcnt lgkmcnt(0)")
    srd(a, 16, 8, W_BYTES)
    srd(a, 12, 6, H_BYTES, WS_H)
    srd(a, 20, 6, L * D * 2, WS_AT)

    def dma(stage):
        b = (stage % G2_NS) * G2_STAGE
        a(f"s_add_u32 m0, s40, {b+8192}")
        a("s_nop 0")
        a("buffer_load_dwordx4 v10, s[16:19], s38 offen lds")
        a(f"s_add_u32 m0, s40, {b}")
        a("s_add_u32 s38, s38, 65536")
        a("buffer_load_dwordx4 v8, s[12:15], s37 offen lds")
        a("s_add_u32 s37, s37, 128")

    AT_AFTER = 3
    issued = 0
    for st in range(G2_NST):
        want = min(G2_NST - 1, 2 * st + 2, st + G2_LEAD)
        while issued <= want:
            dma(issued)
            if issued == AT_AFTER:
                a(f"s_add_u32 m0, s40, {G2_AT}")
                a("s_nop 0")
                a("buffer_load_dwordx4 v12, s[20:23], s39 offen lds")
            issued += 1
        vm = 2 * (issued - 1 - st) + (1 if st <= AT_AFTER < issued else 0)
        if st in (0, 8, 16):
            stamp(a)
        a(f"s_waitcnt vmcnt({vm})")
        a("s_barrier")
    stamp_end(a, 2, 6)
    a("s_endpgm")
    a.label("k3_compute")
    _stamp_n[0] = 1 if PROF else 0
    a("s_and_b32 s41, s34, 1")
    a("s_lshr_b32 s42, s34, 1")
    a("v_and_b32 v3, 31, v1")
    a("v_lshrrev_b32 v4, 5, v1")
    a("s_lshl_b32 s43, s41, 5")
    a("s_add_u32 s43, s43, s32")
    a("v_add_u32 v14, s43, v3")
    a("v_lshlrev_b32 v14, 10, v14")
    a("v_lshl_add_u32 v14, v4, 5, v14")
    a("s_lshl_b32 s44, s42, 5")
    a("s_add_u32 s44, s44, s33")
    a("s_lshl_b32 s44, s44, 1")
    a("v_lshrrev_b32 v5, 1, v3")
    a("v_and_b32 v5, 7, v5")
    a("v_xor_b32 v5, v5, v4")
    a("v_lshlrev_b32 v6, 7, v3")
    a("s_lshl_b32 s45, s41, 12")
    a("v_add_u32 v6, s45, v6")
    for ks in range(4):
        a(f"v_xor_b32 v7, {2*ks}, v5")
        a(f"v_lshl_add_u32 v{16+ks}, v7, 4, v6")
    a("v_and_b32 v5, 15, v1")
    a("v_lshrrev_b32 v6, 2, v5")
    a("v_and_b32 v5, 3, v5")
    a("v_lshrrev_b32 v7, 4, v1")
    a("v_and_b32 v7, 1, v7")
    a("v_lshlrev_b32 v21, 3, v5")
    a("v_lshl_add_u32 v21, v7, 5, v21")
    a("v_lshrrev_b32 v22, 1, v6")
    a("v_xor_b32 v23, s41, v22")
    a("v_lshl_add_u32 v21, v23, 6, v21")
    a("v_lshl_add_u32 v23, v4, 4, v6")
    a("v_lshl_add_u32 v21, v23, 7, v21")
    a("s_lshl_b32 s45, s42, 12")
    a(f"s_add_u32 s45, s45, {G2_AT}")
    a("v_add_u32 v21, s45, v21")
    a("v_and_b32 v15, 1, v5")
    a("v_lshlrev_b32 v15, 5, v15")
    a("v_lshl_add_u32 v15, v7, 4, v15")
    a("v_lshrrev_b32 v5, 1, v5")
    a("v_lshl_add_u32 v15, v5, 3, v15")
    a("v_xor_b32 v22, s42, v22")
    a("v_lshl_add_u32 v15, v22, 6, v15")
    a("v_lshl_add_u32 v6, v4, 3, v6")
    a("v_lshl_add_u32 v15, v6, 7, v15")
    a("v_add_u32 v20, 8192, v15")
    a("s_waitcnt lgkmcnt(0)")
    srd(a, 24, 4, L * D * 2)
    srd(a, 28, 10, L * D * 2)
    a("buffer_load_dwordx4 v[24:27], v14, s[24:27], s44 offen")
    a("buffer_load_dwordx4 v[28:31], v14, s[24:27], s44 offen offset:16")

    ACC = 32
    FS = [48, 80]
    XA = 112
    ATR = 128
    AT_ST = 10

    def reads(st):
        f = FS[st & 1]
        o = (st % 4) * G2_STAGE
        out = []
        for ks in range(4):
            out.append(f"ds_read_b64_tr_b16 {vr(f+8*ks,2)}, v20 offset:{o+ks*2048}")
            out.append(f"ds_read_b64_tr_b16 {vr(f+8*ks+2,2)}, v20 offset:{o+ks*2048+512}")
            out.append(f"ds_read_b128 {vr(f+8*ks+4,4)}, v{16+ks} offset:{o}")
        return out

    def mfmas(st):
        f = FS[st & 1]
        c = vr(ACC, 16)
        return [f"v_mfma_f32_32x32x16_bf16 {c}, {vr(f+8*ks,4)}, {vr(f+8*ks+4,4)}, "
                f"{'0' if st == 0 and ks == 0 else c}" for ks in range(4)]

    def xa_ops(k):
        x, t = XA + 2 * k, 4
        return [f"v_lshlrev_b32 v{x}, 16, v{24+k}",
                f"v_and_b32 v{x+1}, 0xffff0000, v{24+k}",
                f"v_lshlrev_b32 v{t}, 16, v{ATR+k}",
                f"v_and_b32 v{t+1}, 0xffff0000, v{ATR+k}",
                f"v_pk_add_f32 {vr(x,2)}, {vr(x,2)}, {vr(t,2)}",
                f"v_cvt_pk_bf16_f32 v{x+1}, v{x}, v{x+1}",
                f"v_lshlrev_b32 v{x}, 16, v{x+1}",
                f"v_and_b32 v{x+1}, 0xffff0000, v{x+1}"]

    for st in range(-1, G2_NST):
        nx = st + 1
        body = []
        if nx < G2_NST:
            if nx in (0, 8, 16):
                stamp(a)
            a("s_waitcnt lgkmcnt(0)" if nx != AT_ST + 1 else "s_waitcnt vmcnt(0) lgkmcnt(0)")
            a("s_barrier")
            if nx and nx % 4 == 0:
                delta = 65536 if (nx % G2_NS) == 4 else -65536
                for r in (16, 17, 18, 19, 20):
                    a(f"v_add_u32 v{r}, {delta & 0xffffffff:#x}, v{r}")
            body = reads(nx)
            if nx == AT_ST:
                body += [f"ds_read_b64_tr_b16 {vr(ATR+2*i,2)}, v21 offset:{512*i}" for i in range(4)]
        else:
            a("s_waitcnt lgkmcnt(0)")
        if st >= 0:
            body = interleave(body, mfmas(st), every=3) if body else mfmas(st)
        if AT_ST < nx <= AT_ST + 4:
            k = 2 * (nx - AT_ST - 1)
            body += xa_ops(k) + xa_ops(k + 1)
        for op in body:
            a(op)
    a("s_nop 15")
    stamp(a)
    for k in range(8):
        a(f"v_cvt_pk_bf16_f32 v{48+k}, v{ACC+2*k}, v{ACC+2*k+1}")
    for k in range(8):
        a(f"v_lshlrev_b32 v{ACC+2*k}, 16, v{48+k}")
        a(f"v_and_b32 v{ACC+2*k+1}, 0xffff0000, v{48+k}")
    for k in range(8):
        a(f"v_pk_add_f32 {vr(ACC+2*k,2)}, {vr(ACC+2*k,2)}, {vr(XA+2*k,2)}")
    for k in range(8):
        a(f"v_cvt_pk_bf16_f32 v{56+k}, v{ACC+2*k}, v{ACC+2*k+1}")
        if k == 3:
            a("buffer_store_dwordx4 v[56:59], v14, s[28:31], s44 offen")
    a("buffer_store_dwordx4 v[60:63], v14, s[28:31], s44 offen offset:16")
    stamp_end(a, 2, 6)
    a.label("k3_exit")
    a("s_endpgm")


def gen_k4(a):
    a.raw(".p2align 8")
    a.label("k4_kernel")
    a("s_cmp_ge_u32 s2, 1")
    a("s_cbranch_scc1 k4_exit")
    a(f"s_load_dwordx4 s[4:7], s[0:1], {KA_DBG}")
    a("s_memrealtime s[20:21]")
    a("s_waitcnt lgkmcnt(0)")
    srd(a, 8, 6, 0x1000000, PROF_BASE)
    srd(a, 12, 4, 256)
    groups = [(0, 0, 256, 0, 4), (0, 0, 256, 4, 8), (1, 0, 176, 0, 4), (1, 176, 240, 0, 8), (2, 0, 256, 0, 4)]
    for gi, (l, lo, hi, w0, w1) in enumerate(groups):
        a("v_mov_b32 v4, -1")
        a("v_mov_b32 v5, 0")
        for base in range(lo, hi, 64):
            n = min(64, hi - base)
            a(f"v_min_u32 v2, {n-1}, v0")
            a(f"v_add_u32 v2, {l*512 + base}, v2")
            a("v_lshlrev_b32 v2, 10, v2")
            for w in range(w0, w1):
                a(f"buffer_load_dwordx2 {vr(8+2*(w-w0),2)}, v2, s[8:11], 0 offen offset:{64*w}")
            a("s_waitcnt vmcnt(0)")
            for w in range(w0, w1):
                a(f"v_min_u32 v4, v4, v{8+2*(w-w0)}")
                a(f"v_max_u32 v5, v5, v{9+2*(w-w0)}")
        a("s_mov_b32 s22, -1")
        a("s_mov_b32 s23, 0")
        for ln in range(64):
            a(f"v_readlane_b32 s24, v4, {ln}")
            a(f"v_readlane_b32 s25, v5, {ln}")
            a("s_nop 1")
            a("s_min_u32 s22, s22, s24")
            a("s_max_u32 s23, s23, s25")
        a(f"s_mov_b32 s{30+2*gi}, s22")
        a(f"s_mov_b32 s{31+2*gi}, s23")
    a("v_mov_b32 v3, 0")
    for i in range(10):
        a(f"s_sub_u32 s24, s{30+i}, s30")
        a("v_mov_b32 v6, s24")
        a(f"buffer_store_dword v6, v3, s[12:15], 0 offen offset:{4*i}")
        a("s_nop 1")
    a("s_sub_u32 s24, s20, s30")
    a("v_mov_b32 v6, s24")
    a("buffer_store_dword v6, v3, s[12:15], 0 offen offset:40")
    a.label("k4_exit")
    a("s_endpgm")


def descriptor(name, vgpr, sgpr):
    acc = (vgpr + 3) // 4 * 4
    return f""".p2align 6
.amdhsa_kernel {name}
  .amdhsa_next_free_vgpr {vgpr}
  .amdhsa_next_free_sgpr {sgpr}
  .amdhsa_accum_offset {acc}
  .amdhsa_group_segment_fixed_size 0
  .amdhsa_kernarg_size 112
  .amdhsa_user_sgpr_count 2
  .amdhsa_user_sgpr_kernarg_segment_ptr 1
  .amdhsa_system_sgpr_workgroup_id_x 1
.end_amdhsa_kernel
"""


def main(path):
    a = Asm()
    a.raw(f"; @launch kernel=k1_kernel grid=({N_K1},1,1) block=(512,1,1) lds={K1_LDS}")
    a.raw(f"; @launch kernel=k2_kernel grid=({N_G1+N_CV},1,1) block=(512,1,1) lds={K2_LDS}")
    a.raw(f"; @launch kernel=k3_kernel grid=({N_G2},1,1) block=(768,1,1) lds={K3_LDS}")
    if K4:
        a.raw("; @launch kernel=k4_kernel grid=(1,1,1) block=(64,1,1) lds=0")
    a.raw('.amdgcn_target "amdgcn-amd-amdhsa--gfx950"')
    a.raw(".text")
    for k in ("k1_kernel", "k2_kernel", "k3_kernel") + (("k4_kernel",) if K4 else ()):
        a.raw(f".globl {k}")
        a.raw(f".type {k},@function")
    gen_k1(a)
    gen_k2(a)
    gen_k3(a)
    a.label("code_end")
    if K4:
        gen_k4(a)
    a.raw('.section .rodata,"a"')
    if K4:
        a.raw(descriptor("k4_kernel", 32, 48))
    sg = 102 if PROF else 0
    a.raw(descriptor("k1_kernel", 164, max(sg, 74)))
    a.raw(descriptor("k2_kernel", 256, max(sg, 56)))
    a.raw(descriptor("k3_kernel", 136, max(sg, 56)))
    open(path, "w").write(a.text())


if __name__ == "__main__":
    if "--nocodepf" in sys.argv:
        sys.argv.remove("--nocodepf")
        CODE_PF = False
    if "--notouch" in sys.argv:
        sys.argv.remove("--notouch")
        TOUCH = False
    if "--k4" in sys.argv:
        sys.argv.remove("--k4")
        K4 = PROF = True
    if "--prof" in sys.argv:
        sys.argv.remove("--prof")
        PROF = True
    main(sys.argv[1] if len(sys.argv) > 1 else f"cdna_kernels/{NAME}.s")
```

```python
import struct
import sys

NAME = "parallel_sum__ssm_conv_s4d__glu_gated_reglu__prompt"

L, D, N, F = 2048, 512, 128, 1376
FP = 1408
WS_XN = 0x000000
WS_XNT = 0x240000
WS_KR = 0x480000
WS_H = 0x880000
WS_AT = 0xE80000
XN_STRIDE = 1024 + 128
XN_BYTES = L * XN_STRIDE
H_STRIDE = 2 * FP + 128
H_BYTES = L * H_STRIDE
XNT_STRIDE = 4096 + 128
XNT_BYTES = D * XNT_STRIDE
W_BYTES = D * F * 2
WS_WDT = WS_AT + L * D * 2
WDT_TILE = FP * 128
WS_END = WS_WDT + 8 * WDT_TILE
TOUCH = False
CODE_PF = True
EPI = "dot"
WT = dict(xn="", xnt="", k="", at="", wdt="", h="", out="")

KA_U, KA_LAR, KA_AI, KA_CR, KA_CI, KA_LDT, KA_DSK, KA_BX, KA_WG, KA_WU, KA_WD, KA_OUT, KA_DBG, KA_WS = \
    [8 * i for i in range(14)]


def f32(x):
    return "0x%08x" % struct.unpack("<I", struct.pack("<f", x))[0]


class Asm:
    def __init__(self):
        self.lines = []

    def __call__(self, s):
        for ln in s.strip("\n").split("\n"):
            self.lines.append("  " + ln.strip())

    def label(self, s):
        self.lines.append(s + ":")

    def raw(self, s):
        self.lines.append(s)

    def text(self):
        return "\n".join(self.lines) + "\n"


PROF = False
K4 = False
PROF_BASE = 0x1400000
_stamp_n = [0]


def stamp_begin(a):
    _stamp_n[0] = 0
    if PROF:
        a("s_memrealtime s[80:81]")
        a("s_memtime s[82:83]")
        _stamp_n[0] = 1


def stamp(a):
    if PROF:
        k = _stamp_n[0]
        a(f"s_memtime s[{82+2*k}:{83+2*k}]")
        _stamp_n[0] += 1


def stamp_end(a, launch, ws_lo):
    if not PROF:
        return
    stamp(a)
    n = _stamp_n[0]
    a("s_waitcnt lgkmcnt(0)")
    a("s_memrealtime s[98:99]")
    a(f"s_add_u32 s76, s{ws_lo}, {PROF_BASE}")
    a(f"s_addc_u32 s77, s{ws_lo+1}, 0")
    a("s_mov_b32 s78, 0x1000000")
    a("s_mov_b32 s79, 0x00020000")
    a("v_lshrrev_b32 v2, 6, v0")
    a(f"s_add_u32 s75, s2, {launch*512}")
    a("s_lshl_b32 s75, s75, 10")
    a("v_lshlrev_b32 v2, 6, v2")
    a("v_add_u32 v2, s75, v2")
    a("s_waitcnt lgkmcnt(0)")
    a("v_mov_b32 v4, s80")
    a("v_mov_b32 v5, s98")
    a("buffer_store_dwordx2 v[4:5], v2, s[76:79], 0 offen")
    for k in range(n):
        a(f"v_mov_b32 v6, s{82+2*k}")
        a(f"buffer_store_dword v6, v2, s[76:79], 0 offen offset:{8+4*k}")
        a("s_nop 1")


def vr(b, n):
    return "v[%d:%d]" % (b, b + n - 1)


def sr(b, n):
    return "s[%d:%d]" % (b, b + n - 1)


def srd(a, dst, base, nbytes, add=0):
    if add:
        a(f"s_add_u32 s{dst}, s{base}, {add}")
        a(f"s_addc_u32 s{dst+1}, s{base+1}, 0")
    else:
        a(f"s_mov_b32 s{dst}, s{base}")
        a(f"s_mov_b32 s{dst+1}, s{base+1}")
    a(f"s_mov_b32 s{dst+2}, {nbytes}")
    a(f"s_mov_b32 s{dst+3}, 0x00020000")


_pc_n = [0]


def code_prefetch(a, lo, hi, slice_sgpr, lane16, dst, sbase):
    _pc_n[0] += 1
    lab = f"pc_ref{_pc_n[0]}"
    a(f"s_getpc_b64 {sr(sbase,2)}")
    a.label(lab)
    a(f"s_add_u32 s{sbase}, s{sbase}, ({lo} - {lab}) & 0xffffffff")
    a(f"s_addc_u32 s{sbase+1}, s{sbase+1}, (({lo} - {lab}) >> 32) & 0xffffffff")
    a(f"s_mov_b32 s{sbase+2}, {hi} - {lo}")
    a(f"s_mov_b32 s{sbase+3}, 0x00020000")
    a(f"s_lshl_b32 s{slice_sgpr}, s{slice_sgpr}, 10")
    a(f"buffer_load_dwordx4 {vr(dst,4)}, v{lane16}, {sr(sbase,4)}, s{slice_sgpr} offen")


def interleave(main, fill, every=1, start=0):
    out = []
    fill = list(fill)
    for i, m in enumerate(main):
        out.append(m)
        if i >= start and (i - start) % every == every - 1 and fill:
            out.append(fill.pop(0))
    out.extend(fill)
    return out


N_K1 = 256
LN_STRIDE = 1088
KG_ROW = 544
KG_XA, KG_YB, KG_T = 0, 24 * KG_ROW, 56 * KG_ROW
KG_CH = KG_T + 3072
LN_LDS = 2 * KG_CH
K1_LDS = LN_LDS + 8 * LN_STRIDE
LOG2E = 1.4426950408889634
L_HI = 47274.0 / 32768.0
C_LO = (LOG2E - L_HI) * 0.6931471805599453
T_BIAS = 0x3F7F
PF_W = 6


def dpp_reduce(a, regs):
    steps = ["row_shr:1 row_mask:0xf bank_mask:0xf bound_ctrl:0",
             "row_shr:2 row_mask:0xf bank_mask:0xf bound_ctrl:0",
             "row_shr:4 row_mask:0xf bank_mask:0xf bound_ctrl:0",
             "row_shr:8 row_mask:0xf bank_mask:0xf bound_ctrl:0",
             "row_bcast:15 row_mask:0xa bank_mask:0xf",
             "row_bcast:31 row_mask:0xc bank_mask:0xf"]
    a("s_nop 1")
    for st in steps:
        for r in regs:
            a(f"v_add_f32_dpp v{r}, v{r}, v{r} {st}")
    a("s_nop 1")


def bf16_round(a, dst, src):
    a(f"v_cvt_pk_bf16_f32 v{dst}, v{src}, v{src}")
    a(f"v_lshlrev_b32 v{dst}, 16, v{dst}")


def gen_ln(a):
    stamp_begin(a)
    if CODE_PF:
        a("v_lshlrev_b32 v3, 4, v1")
        a("s_lshr_b32 s45, s2, 3")
        a("s_lshl_b32 s45, s45, 1")
        a("s_sub_u32 s46, s44, 6")
        a("s_add_u32 s45, s45, s46")
        a("s_cmp_lt_u32 s44, 6")
        a("s_cbranch_scc1 k1_no_pf")
        code_prefetch(a, "k1_kernel", "code_end", 45, 3, 76, 56)
        a("s_branch k1_pf_done")
        a.label("k1_no_pf")
        a("s_nop 0")
        a.label("k1_pf_done")
    a(f"s_load_dwordx2 s[4:5], s[0:1], {KA_U}")
    a(f"s_load_dwordx2 s[6:7], s[0:1], {KA_WS}")
    a(f"s_load_dwordx4 s[48:51], s[0:1], {KA_WG}")
    a(f"s_load_dwordx4 s[68:71], s[0:1], {KA_WD}")
    a(f"s_load_dwordx2 s[54:55], s[0:1], {KA_DSK}")
    a("s_sub_u32 s22, s44, 4")
    a("s_and_b32 s20, s2, 7")
    a("s_lshr_b32 s21, s2, 3")
    a("s_lshl_b32 s20, s20, 8")
    a("s_lshl_b32 s23, s21, 3")
    a("s_add_u32 s20, s20, s23")
    a("s_lshl_b32 s23, s22, 1")
    a("s_add_u32 s23, s23, s20")
    a("s_lshl_b32 s24, s23, 10")
    a(f"s_mul_i32 s53, s23, {XN_STRIDE}")
    a("v_lshlrev_b32 v3, 4, v1")
    a("s_lshl_b32 s52, s2, 2")
    a("s_add_u32 s52, s52, s22")
    a("s_lshl_b32 s52, s52, 11")
    a(f"s_mul_i32 s25, s22, {2*LN_STRIDE}")
    a(f"s_add_u32 s25, s25, {LN_LDS}")
    a("v_add_u32 v4, s25, v3")
    a("v_and_b32 v5, 15, v1")
    a("v_lshrrev_b32 v6, 2, v5")
    a("v_and_b32 v5, 3, v5")
    a("v_lshrrev_b32 v7, 4, v1")
    a(f"v_mul_u32_u24 v6, {LN_STRIDE}, v6")
    a("v_lshlrev_b32 v5, 3, v5")
    a("v_lshl_add_u32 v5, v7, 5, v5")
    a("v_add_u32 v5, v5, v6")
    a("s_lshl_b32 s26, s22, 8")
    a(f"s_add_u32 s26, s26, {LN_LDS}")
    a("v_add_u32 v5, s26, v5")
    a("s_lshl_b32 s27, s22, 7")
    a("v_add_u32 v6, s27, v1")
    a(f"v_mul_u32_u24 v6, {XNT_STRIDE}, v6")
    a("s_lshl_b32 s28, s20, 1")
    a(f"s_add_u32 s29, s28, {64*XNT_STRIDE}")
    a("s_waitcnt lgkmcnt(0)")
    srd(a, 8, 4, L * D * 2)
    for r in range(2):
        a(f"buffer_load_dwordx4 {vr(8+4*r,4)}, v3, s[8:11], s24 offen offset:{r*1024}")
    srd(a, 56, 48, W_BYTES)
    srd(a, 60, 50, W_BYTES)
    srd(a, 64, 68, W_BYTES)
    if TOUCH:
        a("s_cmp_ge_u32 s2, 16")
        a("s_cbranch_scc1 k1_no_touch")
        srd(a, 12, 6, WS_END)
        srd(a, 16, 70, L * D * 2)
        a("v_lshlrev_b32 v60, 18, v1")
        a("s_lshl_b32 s45, s22, 16")
        a("buffer_load_dword v61, v60, s[12:15], s45 offen")
        a("v_lshlrev_b32 v60, 15, v1")
        a(f"s_mov_b32 s45, {1 << 24}")
        a("buffer_load_dword v61, v60, s[12:15], s45 offen")
        a("buffer_load_dword v61, v60, s[16:19], 0 offen")
        srd(a, 16, 54, D * 2)
        a("buffer_load_dword v61, v3, s[16:19], 0 offen")
        for i in range(2):
            a(f"buffer_load_dwordx4 v[72:75], v3, s[56:59], s52 offen offset:{i*1024}")
        a("s_branch k1_touched")
        a.label("k1_no_touch")
    for i in range(2):
        for b in (56, 60, 64):
            a(f"buffer_load_dwordx4 v[72:75], v3, {sr(b,4)}, s52 offen offset:{i*1024}")
    if TOUCH:
        a.label("k1_touched")
    srd(a, 12, 6, XN_BYTES, WS_XN)
    srd(a, 16, 6, XNT_BYTES, WS_XNT)
    X = lambda r, e: 32 + 8 * r + e
    stamp(a)
    for r in range(2):
        a(f"s_waitcnt vmcnt({PF_W + 1 - r})")
        if r == 0:
            stamp(a)
        for k in range(4):
            a(f"v_lshlrev_b32 v{X(r,2*k)}, 16, v{8+4*r+k}")
            a(f"v_and_b32 v{X(r,2*k+1)}, 0xffff0000, v{8+4*r+k}")
        a(f"v_readfirstlane_b32 s{30+2*r}, v{X(r,0)}")
        a(f"v_pk_add_f32 v[48:49], {vr(X(r,0),2)}, {vr(X(r,2),2)}")
        a(f"v_pk_add_f32 v[50:51], {vr(X(r,4),2)}, {vr(X(r,6),2)}")
        a(f"s_mov_b32 s{31+2*r}, s{30+2*r}")
        a("v_pk_add_f32 v[48:49], v[48:49], v[50:51]")
        for k in range(4):
            a(f"v_pk_add_f32 {vr(52+2*k,2)}, {vr(X(r,2*k),2)}, {sr(30+2*r,2)} neg_lo:[0,1] neg_hi:[0,1]")
        a(f"v_add_f32 v{24+2*r}, v48, v49")
        a("v_pk_mul_f32 v[50:51], v[52:53], v[52:53]")
        a("v_pk_mul_f32 v[48:49], v[54:55], v[54:55]")
        a("v_pk_fma_f32 v[50:51], v[56:57], v[56:57], v[50:51]")
        a("v_pk_fma_f32 v[48:49], v[58:59], v[58:59], v[48:49]")
        a("v_pk_add_f32 v[48:49], v[48:49], v[50:51]")
        a(f"v_add_f32 v{25+2*r}, v48, v49")
    dpp_reduce(a, [24, 25, 26, 27])
    for r in range(2):
        a(f"v_mul_f32 v{24+2*r}, {f32(1.0/512)}, v{24+2*r}")
        a(f"v_mul_f32 v{25+2*r}, {f32(1.0/512)}, v{25+2*r}")
    for r in range(2):
        a(f"v_subrev_f32 v{28+r}, s{30+2*r}, v{24+2*r}")
        bf16_round(a, 24 + 2 * r, 24 + 2 * r)
    for r in range(2):
        a(f"v_fma_f32 v{25+2*r}, -v{28+r}, v{28+r}, v{25+2*r}")
        a(f"v_max_f32 v{25+2*r}, 0, v{25+2*r}")
    for r in range(2):
        bf16_round(a, 25 + 2 * r, 25 + 2 * r)
    for r in range(2):
        a(f"v_add_f32 v{25+2*r}, {f32(1e-5)}, v{25+2*r}")
        a(f"v_readlane_b32 s{36+2*r}, v{24+2*r}, 63")
    for r in range(2):
        bf16_round(a, 25 + 2 * r, 25 + 2 * r)
    for r in range(2):
        a(f"v_sqrt_f32 v{25+2*r}, v{25+2*r}")
    for r in range(2):
        a(f"s_mov_b32 s{37+2*r}, s{36+2*r}")
    for r in range(2):
        bf16_round(a, 25 + 2 * r, 25 + 2 * r)
    for r in range(2):
        a(f"v_rcp_f32 v{25+2*r}, v{25+2*r}")
    for r in range(2):
        for k in range(4):
            a(f"v_pk_add_f32 {vr(X(r,2*k),2)}, {vr(X(r,2*k),2)}, {sr(36+2*r,2)} neg_lo:[0,1] neg_hi:[0,1]")
    for r in range(2):
        a(f"v_readlane_b32 s{40+2*r}, v{25+2*r}, 63")
    for r in range(2):
        for k in range(4):
            a(f"v_cvt_pk_bf16_f32 v{8+4*r+k}, v{X(r,2*k)}, v{X(r,2*k+1)}")
    for r in range(2):
        a(f"s_mov_b32 s{41+2*r}, s{40+2*r}")
    for r in range(2):
        for k in range(4):
            a(f"v_lshlrev_b32 v{X(r,2*k)}, 16, v{8+4*r+k}")
            a(f"v_and_b32 v{X(r,2*k+1)}, 0xffff0000, v{8+4*r+k}")
        for k in range(4):
            a(f"v_pk_mul_f32 {vr(X(r,2*k),2)}, {vr(X(r,2*k),2)}, {sr(40+2*r,2)}")
        for k in range(4):
            a(f"v_cvt_pk_bf16_f32 v{16+4*r+k}, v{X(r,2*k)}, v{X(r,2*k+1)}")
        a(f"ds_write_b128 v4, {vr(16+4*r,4)} offset:{r*LN_STRIDE}")
        a(f"buffer_store_dwordx4 {vr(16+4*r,4)}, v3, s[12:15], s53 offen offset:{r*XN_STRIDE}" + WT["xn"])
    a("s_waitcnt lgkmcnt(0)")
    stamp(a)
    a("s_barrier")
    for blk in range(2):
        for tb in range(2):
            a(f"ds_read_b64_tr_b16 {vr(32+4*blk+2*tb,2)}, v5 offset:{blk*128 + tb*4*LN_STRIDE}")
    a("s_waitcnt lgkmcnt(2)")
    a("buffer_store_dwordx4 v[32:35], v6, s[16:19], s28 offen" + WT["xnt"])
    a("s_waitcnt lgkmcnt(0)")
    a("buffer_store_dwordx4 v[36:39], v6, s[16:19], s29 offen" + WT["xnt"])
    stamp_end(a, 0, 6)
    a("s_endpgm")


def exp_acc(a, dst, x, t):
    a(f"v_mul_f32 v{dst}, {f32(L_HI)}, v{x}")
    a(f"v_exp_f32 v{dst}, v{dst}")
    a(f"v_mul_f32 v{t}, {f32(C_LO)}, v{x}")
    a(f"v_fma_f32 v{dst}, v{dst}, v{t}, v{dst}")


def cmul(t, z, w):
    return [f"v_pk_mul_f32 {vr(t,2)}, {vr(z,2)}, {vr(w,2)} op_sel:[0,0] op_sel_hi:[1,0]",
            f"v_pk_fma_f32 {vr(t,2)}, {vr(z,2)}, {vr(w,2)}, {vr(t,2)} op_sel:[1,1,0] op_sel_hi:[0,1,1] "
            f"neg_lo:[1,0,0]"]


def gen_kgen(a):
    stamp_begin(a)
    a(f"s_load_dwordx8 s[4:11], s[0:1], {KA_LAR}")
    a(f"s_load_dwordx2 s[12:13], s[0:1], {KA_LDT}")
    a(f"s_load_dwordx2 s[14:15], s[0:1], {KA_WS}")
    a("s_and_b32 s41, s2, 7")
    a("s_lshr_b32 s42, s2, 3")
    a("s_lshr_b32 s43, s42, 2")
    a("s_lshl_b32 s43, s43, 6")
    a("s_lshl_b32 s41, s41, 3")
    a("s_add_u32 s41, s41, s43")
    a("s_and_b32 s42, s42, 3")
    a("s_lshl_b32 s42, s42, 1")
    a("s_add_u32 s41, s41, s42")
    a("s_lshr_b32 s45, s44, 1")
    a("s_and_b32 s46, s44, 1")
    a("s_add_u32 s47, s41, s45")
    a("s_lshl_b32 s48, s46, 6")
    a("v_add_u32 v3, s48, v1")
    a("s_lshl_b32 s49, s47, 8")
    a("v_lshlrev_b32 v4, 1, v3")
    a("s_lshl_b32 s50, s47, 1")
    a("v_mov_b32 v5, s50")
    a("s_waitcnt lgkmcnt(0)")
    srd(a, 16, 4, D * N * 2)
    srd(a, 32, 12, D * 2)
    a("buffer_load_ushort v8, v4, s[16:19], s49 offen")
    a("buffer_load_ushort v12, v5, s[32:35], 0 offen")
    srd(a, 20, 6, D * N * 2)
    a("buffer_load_ushort v9, v4, s[20:23], s49 offen")
    srd(a, 24, 8, D * N * 2)
    a("buffer_load_ushort v10, v4, s[24:27], s49 offen")
    srd(a, 28, 10, D * N * 2)
    a("buffer_load_ushort v11, v4, s[28:31], s49 offen")
    srd(a, 36, 14, D * 8192, WS_KR)
    a(f"s_mul_i32 s51, s45, {KG_CH}")
    a("v_lshlrev_b32 v6, 2, v3")
    a("v_add_u32 v6, s51, v6")
    a("v_and_b32 v7, 15, v1")
    a("v_lshrrev_b32 v2, 4, v1")
    a(f"v_mul_u32_u24 v13, {KG_ROW}, v7")
    a("v_lshl_add_u32 v13, v2, 4, v13")
    a("v_add_u32 v100, s51, v13")
    a(f"s_mul_i32 s52, s46, {16*KG_ROW}")
    a("v_add_u32 v101, s52, v100")
    quads = [(0, 1), (4, 1), (256, 2), (512, 256)], [(1536, 256), (516, 256), (4097, 0), (4097, 0)]
    a("s_cmp_eq_u32 s46, 0")
    for q in range(4):
        a(f"s_mov_b32 s64, {f32(float(quads[0][q][0]))}")
        a(f"s_mov_b32 s65, {f32(float(quads[0][q][1]))}")
        a(f"s_cselect_b32 s{56+q}, s64, {f32(float(quads[1][q][0]))}")
        a(f"s_cselect_b32 s{60+q}, s65, {f32(float(quads[1][q][1]))}")
    a("v_mov_b32 v14, s56")
    a("v_mov_b32 v15, s60")
    for q in range(1, 4):
        a(f"v_cmp_eq_u32 vcc, {q}, v2")
        a(f"v_mov_b32 v16, s{56+q}")
        a(f"v_mov_b32 v17, s{60+q}")
        a("v_cndmask_b32 v14, v14, v16, vcc")
        a("v_cndmask_b32 v15, v15, v17, vcc")
    a("v_cvt_f32_u32 v16, v7")
    a("v_fmac_f32 v14, 0x41000000, v16")
    a(f"s_add_u32 s53, s51, {KG_T - 2*T_BIAS}")
    a(f"s_add_u32 s54, s51, {KG_T + 3000}")
    a("v_mov_b32 v19, s54")
    TW = 102
    for jt in range(2):
        for r in range(4):
            p = 20 + 4 * jt + r
            if r == 0:
                a(f"v_mov_b32 v{p}, v14" if jt == 0 else f"v_add_f32 v{p}, 0x43000000, v14")
            else:
                a(f"v_add_f32 v{p}, v{p-1}, v15")
    for i in range(8):
        p, b = 20 + i, TW + i
        a(f"v_cvt_pk_bf16_f32 v{b}, v{p}, v{p}")
        a(f"v_and_b32 v16, 0xffff0000, v{b}")
        a(f"v_cmp_eq_u32 vcc, v16, v{p}")
        a(f"v_and_b32 v{b}, 0xffff, v{b}")
        a(f"v_max_u32 v{b}, {T_BIAS}, v{b}")
        a(f"v_lshl_add_u32 v{b}, v{b}, 1, s53")
        a(f"v_cndmask_b32 v{b}, v19, v{b}, vcc")
    GA = 110
    a("v_lshlrev_b32 v7, 3, v3")
    a("v_sub_u32 v7, 2047, v7")
    a("v_cvt_f32_i32 v14, v7")
    a("v_lshlrev_b32 v130, 4, v3")
    a("s_lshl_b32 s55, s47, 13")
    a("s_add_u32 s56, s55, 4096")
    for ch in range(2):
        for e in range(0, 10, 2):
            b = GA + 10 * ch + e
            a(f"v_subrev_f32 v{b}, {f32(float(e + 1024*ch))}, v14")
            a(f"v_subrev_f32 v{b+1}, {f32(float(e + 1 + 1024*ch))}, v14")
            a(f"v_cvt_pk_bf16_f32 v{b+1}, v{b}, v{b+1}")
            a(f"v_and_b32 v{b}, 0xffff, v{b+1}")
            a(f"v_lshrrev_b32 v{b+1}, 16, v{b+1}")
            for z in (b, b + 1):
                a(f"v_max_u32 v{z}, {T_BIAS}, v{z}")
                a(f"v_min_u32 v{z}, 0x4500, v{z}")
                a(f"v_lshl_add_u32 v{z}, v{z}, 1, s53")
    a("v_cmp_eq_u32 vcc, 127, v3")
    a("v_mov_b32 v14, 0x00003f80")
    a(f"ds_write_b32 v6, v14 offset:{KG_YB}")
    stamp(a)
    a("s_waitcnt vmcnt(3)")
    stamp(a)
    a("v_lshlrev_b32 v12, 16, v12")
    a("v_lshlrev_b32 v8, 16, v8")
    exp_acc(a, 13, 12, 14)
    exp_acc(a, 15, 8, 16)
    bf16_round(a, 13, 13)
    bf16_round(a, 15, 15)
    a("s_waitcnt vmcnt(2)")
    a("v_lshlrev_b32 v9, 16, v9")
    a("v_mul_f32 v15, v15, v13")
    a("v_mul_f32 v16, v9, v13")
    a(f"v_mul_f32 v15, {f32(-LOG2E)}, v15")
    a(f"v_mul_f32 v16, {f32(0.15915494309189535)}, v16")
    seeds = [(1, 20, 1), (256, 22, 1), (8, 24, -1), (64, 26, -1)]
    for i, (p, z, sg) in enumerate(seeds):
        a(f"v_mul_f32 v{32+i}, {f32(float(p))}, v15")
        a(f"v_mul_f32 v{36+i}, {f32(float(p*sg))}, v16")
    for i in range(4):
        a(f"v_exp_f32 v{32+i}, v{32+i}")
        a(f"v_fract_f32 v{36+i}, v{36+i}")
    for i, (p, z, sg) in enumerate(seeds):
        a(f"v_cos_f32 v{z}, v{36+i}")
        a(f"v_sin_f32 v{z+1}, v{36+i}")
    a("s_waitcnt vmcnt(0)")
    a("v_lshlrev_b32 v10, 16, v10")
    a("v_lshlrev_b32 v11, 16, v11")
    a("v_add_f32 v13, v13, v13")
    for i, (p, z, sg) in enumerate(seeds):
        a(f"v_mul_f32 v{z}, v{32+i}, v{z}")
        a(f"v_mul_f32 v{z+1}, v{32+i}, v{z+1}")
    a("v_mul_f32 v28, v10, v13")
    a("v_mul_f32 v29, v11, v13")
    E1, E256, Y8, Y64, C = 20, 22, 24, 26, 28
    E2, E4, Y128, Y192 = 40, 42, 44, 46

    def emit(z, off, t):
        return [f"v_cvt_pk_bf16_f32 v{t}, v{z}, v{z+1}", f"ds_write_b32 v6, v{t} offset:{off}"]

    xrow = lambda q, r: KG_XA + (4 * q + r) * KG_ROW
    yrow = lambda j: KG_YB + j * KG_ROW

    def chain(seed, ratio, offs, ra, rb, t, emit_seed=True):
        ops = []
        cur = seed
        for k, off in enumerate(offs):
            if k:
                nxt = ra if cur != ra else rb
                ops.append(cmul(nxt, cur, ratio))
                cur = nxt
            if k or emit_seed:
                ops.append(emit(cur, off, t))
        return ops

    pre = [cmul(E2, E1, E1), cmul(Y128, Y64, Y64), cmul(48, C, E256), cmul(E4, E2, E2), cmul(Y192, Y128, Y64)]
    for i in range(2):
        for op in pre[:3]:
            a(op[i])
    for i in range(2):
        for op in pre[3:]:
            a(op[i])
    a("\n".join(cmul(50, C, E4)))
    chains = [
        chain(Y8, Y8, [yrow(j) for j in range(1, 8)], 52, 54, 88),
        chain(Y64, Y8, [yrow(j) for j in range(8, 16)], 56, 58, 89),
        chain(Y128, Y8, [yrow(j) for j in range(16, 24)], 60, 62, 90),
        chain(Y192, Y8, [yrow(j) for j in range(24, 32)], 64, 66, 91),
        chain(C, E1, [xrow(0, r) for r in range(4)], 68, 70, 92)
        + chain(48, E2, [xrow(2, r) for r in range(4)], 68, 70, 92),
        chain(50, E1, [xrow(1, r) for r in range(4)], 72, 74, 93),
    ]
    far = []
    cur = 48
    offs = [xrow(3, 0), xrow(3, 1), xrow(3, 2), xrow(3, 3), xrow(4, 0), xrow(4, 1), xrow(4, 2)]
    for k, off in enumerate(offs):
        nxt = 76 if cur != 76 else 78
        far.append(cmul(nxt, cur, E256))
        cur = nxt
        far.append(emit(cur, off, 94))
        if k < 2:
            far.append(cmul(80, cur, E4))
            far.append(emit(80, xrow(5, k), 95))
    chains.append(far)
    while any(chains):
        units = [c.pop(0) for c in chains if c]
        for i in range(2):
            for u in units:
                a(u[i])
    a("s_waitcnt lgkmcnt(0)")
    stamp(a)
    a("s_barrier")
    for ks in range(8):
        a(f"ds_read_b128 {vr(132+4*ks,4)}, v101 offset:{KG_XA + ks*64}")
        a(f"ds_read_b128 {vr(32+4*ks,4)}, v100 offset:{KG_YB + ks*64}")
        a(f"ds_read_b128 {vr(64+4*ks,4)}, v100 offset:{KG_YB + 16*KG_ROW + ks*64}")
    for ks in range(8):
        a(f"s_waitcnt lgkmcnt({min(15, 3*(7-ks))})")
        c0 = "0" if ks == 0 else "v[20:23]"
        c1 = "0" if ks == 0 else "v[24:27]"
        a(f"v_mfma_f32_16x16x32_bf16 v[20:23], {vr(132+4*ks,4)}, {vr(32+4*ks,4)}, {c0}")
        a(f"v_mfma_f32_16x16x32_bf16 v[24:27], {vr(132+4*ks,4)}, {vr(64+4*ks,4)}, {c1}")
    a("s_nop 7")
    for i in range(8):
        a(f"v_cvt_pk_bf16_f32 v{20+i}, v{20+i}, v{20+i}")
        a(f"ds_write_b16 v{TW+i}, v{20+i}")
    a("s_waitcnt lgkmcnt(0)")
    stamp(a)
    a("s_barrier")
    for ch in range(2):
        for e in range(9):
            a(f"ds_read_u16 v{32+16*ch+e}, v{GA+10*ch+e}")
    for ch in range(2):
        a(f"s_waitcnt lgkmcnt({9*(1-ch)})")
        q = 32 + 16 * ch
        if ch == 1:
            a(f"v_cndmask_b32 v{q+8}, v{q+8}, 0, vcc")
        for k in range(4):
            a(f"v_lshl_or_b32 v{64+8*ch+k}, v{q+2*k+1}, 16, v{q+2*k}")
            a(f"v_lshl_or_b32 v{68+8*ch+k}, v{q+2*k+2}, 16, v{q+2*k+1}")
        a(f"buffer_store_dwordx4 {vr(64+8*ch,4)}, v130, s[36:39], s55 offen offset:{2048*ch}" + WT["k"])
        a(f"buffer_store_dwordx4 {vr(68+8*ch,4)}, v130, s[36:39], s56 offen offset:{2048*ch}" + WT["k"])
    stamp_end(a, 0, 14)
    a("s_endpgm")


def gen_k1(a):
    a.raw(".p2align 8")
    a.label("k1_kernel")
    a(f"s_cmp_ge_u32 s2, {N_K1}")
    a("s_cbranch_scc1 k1_exit")
    a("v_lshrrev_b32 v2, 6, v0")
    a("v_and_b32 v1, 63, v0")
    a("v_readfirstlane_b32 s44, v2")
    a("s_cmp_ge_u32 s44, 4")
    a("s_cbranch_scc1 k1_ln")
    gen_kgen(a)
    a.label("k1_ln")
    gen_ln(a)
    a.label("k1_exit")
    a("s_endpgm")


N_G1, N_CV, N_RL = 176, 64, 16
G1_STAGE = 49152
G1_W = 32768
K2_LDS = 3 * G1_STAGE
G1_NST = 8
CV_O, CV_Z, CV_U, CV_W = 4160, 8288, 8304, 12416


def gen_gemm1_loader(a):
    a("s_sub_u32 s30, s30, 4")
    a("v_lshrrev_b32 v3, 3, v1")
    a("v_and_b32 v4, 7, v1")
    a("v_lshrrev_b32 v5, 4, v1")
    a(f"v_mul_u32_u24 v14, {XN_STRIDE}, v3")
    for q in range(4):
        a(f"v_add_u32 v6, {4*q}, v5")
        a("v_and_b32 v6, 7, v6")
        a("v_xor_b32 v6, v6, v4")
        a("v_lshl_add_u32 v6, v6, 4, v14")
        a(f"v_add_u32 v{8+q}, {q*(8*XN_STRIDE-1024)}, v6")
    a("v_and_b32 v6, 1, v5")
    a("v_lshrrev_b32 v7, 2, v4")
    a("v_xor_b32 v6, v6, v7")
    a("v_and_b32 v7, 3, v4")
    a("v_lshlrev_b32 v7, 3, v7")
    a("v_lshl_add_u32 v6, v6, 5, v7")
    a("s_lshl_b32 s31, s29, 6")
    a("v_add_u32 v6, s31, v6")
    a(f"v_mul_u32_u24 v12, {2*F}, v3")
    a("v_lshl_add_u32 v12, v6, 1, v12")
    a(f"v_add_u32 v13, {8*2*F-1024}, v12")
    a(f"v_cmp_le_u32 vcc, {F}, v6")
    a("v_mov_b32 v7, 0x40000000")
    a(f"s_mul_i32 s32, s28, {256*XN_STRIDE}")
    a("v_cndmask_b32 v12, v12, v7, vcc")
    a("v_cndmask_b32 v13, v13, v7, vcc")
    a(f"s_mul_i32 s33, s30, {64*XN_STRIDE}")
    a("s_add_u32 s32, s32, s33")
    a(f"s_add_u32 s36, s32, {32*XN_STRIDE}")
    a(f"s_mul_i32 s33, s30, {16*2*F}")
    a("s_lshl_b32 s34, s30, 13")
    a("s_lshl_b32 s35, s30, 11")
    a(f"s_add_u32 s35, s35, {G1_W}")
    a("s_waitcnt lgkmcnt(0)")
    srd(a, 16, 4, W_BYTES)
    srd(a, 20, 6, W_BYTES)
    srd(a, 12, 8, XN_BYTES, WS_XN)

    def dma(stage, lo=0, hi=12):
        b = (stage % 3) * G1_STAGE
        if lo == 0:
            a(f"s_add_u32 m0, s35, {b}")
            a("s_nop 0")
            a("buffer_load_dwordx4 v12, s[16:19], s33 offen lds")
            a("buffer_load_dwordx4 v13, s[16:19], s33 offen offset:1024 lds")
            a(f"s_add_u32 m0, s35, {b+8192}")
            a("s_nop 0")
            a("buffer_load_dwordx4 v12, s[20:23], s33 offen lds")
            a("buffer_load_dwordx4 v13, s[20:23], s33 offen offset:1024 lds")
            a(f"s_add_u32 s33, s33, {64*2*F}")
        if hi == 12:
            a(f"s_add_u32 m0, s34, {b}")
            a("s_nop 0")
            for q in range(4):
                a(f"buffer_load_dwordx4 v{8+q}, s[12:15], s32 offen offset:{q*1024} lds")
            a(f"s_add_u32 m0, s34, {b+4096}")
            a("s_add_u32 s32, s32, 128")
            for q in range(4):
                a(f"buffer_load_dwordx4 v{8+q}, s[12:15], s36 offen offset:{q*1024} lds")
            a("s_add_u32 s36, s36, 128")

    dma(0)
    dma(1, 0, 4)
    for st in range(G1_NST):
        if st in (0, 3, 4):
            stamp(a)
        a(f"s_waitcnt vmcnt({4 if st == 0 else (12 if st + 1 < G1_NST else 0)})")
        if st in (0, 3, 4):
            stamp(a)
        a("s_barrier")
        if st in (3,):
            stamp(a)
        if st == 0:
            dma(1, 4, 12)
        if st + 2 < G1_NST:
            dma(st + 2)
    stamp_end(a, 1, 8)
    a("s_endpgm")


def gen_gemm1(a):
    stamp_begin(a)
    a(f"s_load_dwordx4 s[4:7], s[0:1], {KA_WG}")
    a(f"s_load_dwordx2 s[8:9], s[0:1], {KA_WS}")
    a("v_and_b32 v1, 63, v0")
    a("v_lshrrev_b32 v2, 6, v0")
    a("s_and_b32 s28, s2, 7")
    a("s_lshr_b32 s29, s2, 3")
    a("v_readfirstlane_b32 s30, v2")
    a("s_cmp_lt_u32 s30, 4")
    a("s_cbranch_scc1 k2_g1_compute")
    gen_gemm1_loader(a)
    a.label("k2_g1_compute")
    _stamp_n[0] = 1 if PROF else 0
    a("v_and_b32 v3, 31, v1")
    a("v_lshrrev_b32 v4, 5, v1")
    a("v_lshrrev_b32 v5, 1, v3")
    a("v_and_b32 v5, 7, v5")
    a("v_xor_b32 v5, v5, v4")
    a("v_lshlrev_b32 v6, 7, v3")
    a("s_lshl_b32 s38, s30, 13")
    a("v_add_u32 v6, s38, v6")
    for ks in range(4):
        a(f"v_xor_b32 v7, {2*ks}, v5")
        a(f"v_lshl_add_u32 v{16+ks}, v7, 4, v6")
    a("v_and_b32 v5, 15, v1")
    a("v_lshrrev_b32 v6, 2, v5")
    a("v_and_b32 v5, 3, v5")
    a("v_lshrrev_b32 v7, 4, v1")
    a("v_and_b32 v7, 1, v7")
    a("v_and_b32 v13, 1, v5")
    a("v_lshlrev_b32 v13, 5, v13")
    a("v_lshl_add_u32 v13, v7, 4, v13")
    a("v_lshrrev_b32 v5, 1, v5")
    a("v_lshl_add_u32 v13, v5, 3, v13")
    a("v_lshrrev_b32 v5, 1, v6")
    a("v_lshl_add_u32 v13, v5, 6, v13")
    a("v_lshl_add_u32 v6, v4, 3, v6")
    a("v_lshl_add_u32 v13, v6, 7, v13")
    a(f"v_add_u32 v20, {G1_W}, v13")
    a("v_xor_b32 v21, 64, v20")
    a("v_mov_b32 v12, 0")
    HS = 144
    a(f"s_mul_i32 s39, s30, {64*HS}")
    a(f"v_mul_u32_u24 v22, {HS}, v3")
    a("v_lshl_add_u32 v22, v4, 5, v22")
    a("v_add_u32 v22, s39, v22")
    a("v_lshrrev_b32 v5, 3, v1")
    a("v_and_b32 v6, 7, v1")
    a(f"v_mul_u32_u24 v23, {HS}, v5")
    a("v_lshl_add_u32 v23, v6, 4, v23")
    a("v_add_u32 v23, s39, v23")
    a(f"v_mul_u32_u24 v14, {H_STRIDE}, v5")
    a("v_lshl_add_u32 v14, v6, 4, v14")
    a("s_lshl_b32 s40, s28, 8")
    a("s_lshl_b32 s41, s30, 6")
    a("s_add_u32 s40, s40, s41")
    a(f"s_mul_i32 s42, s40, {H_STRIDE}")
    a("s_lshl_b32 s43, s29, 7")
    a("s_add_u32 s42, s42, s43")
    a("s_waitcnt lgkmcnt(0)")
    srd(a, 24, 8, H_BYTES, WS_H)

    ACC = lambda w, ft, tt: 128 + 64 * w + 32 * ft + 16 * tt
    FS = [32, 56, 80, 104]

    def reads(n, f):
        ks = n & 3
        out = []
        for w in range(2):
            for ft in range(2):
                o = 8192 * w + ks * 2048
                out.append(f"ds_read_b64_tr_b16 {vr(f+8*w+4*ft,2)}, v{20+ft} offset:{o}")
                out.append(f"ds_read_b64_tr_b16 {vr(f+8*w+4*ft+2,2)}, v{20+ft} offset:{o+512}")
            out.append(f"ds_read_b128 {vr(f+16+4*w,4)}, v{16+ks} offset:{4096*w}")
        return out

    def mfma(n, f, w, ft, tt):
        c = vr(ACC(w, ft, tt), 16)
        return (f"v_mfma_f32_32x32x16_bf16 {c}, {vr(f+8*w+4*ft,4)}, {vr(f+16+4*tt,4)}, "
                f"{'0' if n == 0 else c}")

    def mfmas(n, f):
        return [mfma(n, f, w, ft, tt) for tt in range(2) for w in range(2) for ft in range(2)]

    def boundary(st):
        a("s_waitcnt lgkmcnt(0)")
        a("s_barrier")
        if st in (0, 6, 7):
            stamp(a)
        if st >= 1:
            delta = G1_STAGE if st % 3 else -2 * G1_STAGE
            for r in (16, 17, 18, 19, 20, 21):
                a(f"v_add_u32 v{r}, {delta & 0xffffffff:#x}, v{r}")

    LASTN = 4 * (G1_NST - 1)
    boundary(0)
    for op in reads(0, FS[0]):
        a(op)
    for n in range(LASTN):
        nx = n + 1
        if nx == LASTN:
            break
        if nx & 3 == 0:
            boundary(nx >> 2)
        else:
            a("s_waitcnt lgkmcnt(0)")
        rd = reads(nx, FS[nx & 1])
        cuts = [0, 3, 6, 8, 10, 10, 10, 10, 10]
        for i, m in enumerate(mfmas(n, FS[n & 1])):
            a(m)
            for op in rd[cuts[i]:cuts[i + 1]]:
                a(op)
    n = LASTN - 1
    boundary(G1_NST - 1)
    sets = {LASTN: FS[0], LASTN + 2: FS[2], LASTN + 3: FS[3], LASTN + 1: FS[1]}
    early = reads(LASTN, FS[0]) + reads(LASTN + 2, FS[2]) + reads(LASTN + 3, FS[3])
    mm = mfmas(n, FS[n & 1])
    for i, m in enumerate(mm):
        a(m)
        for op in early[4 * i:4 * i + 4]:
            a(op)
    for op in reads(LASTN + 1, FS[1]):
        a(op)

    def pair_epilogue(ft, tt):
        g, u = ACC(0, ft, tt), ACC(1, ft, tt)
        o = 4 if ft == 0 else 24
        out = []
        for k in range(8):
            out.append(f"v_cvt_pk_bf16_f32 v{g+2*k}, v{g+2*k}, v{g+2*k+1}")
            out.append(f"v_cvt_pk_bf16_f32 v{u+2*k}, v{u+2*k}, v{u+2*k+1}")
        for k in range(8):
            out.append(f"v_max_i16_sdwa v{g+2*k+1}, v{g+2*k}, v12 dst_sel:WORD_0 dst_unused:UNUSED_PAD "
                       "src0_sel:WORD_0 src1_sel:WORD_0")
            out.append(f"v_max_i16_sdwa v{u+2*k+1}, v{g+2*k}, v12 dst_sel:WORD_1 dst_unused:UNUSED_PAD "
                       "src0_sel:WORD_1 src1_sel:WORD_0")
        for k in range(8):
            out.append(f"v_dot2_f32_bf16 v{g+2*k+1}, v{g+2*k+1}, v{u+2*k}, 0")
            out.append(f"v_dot2_f32_bf16 v{u+2*k+1}, v{u+2*k+1}, v{u+2*k}, 0")
        for k in range(8):
            out.append(f"v_cvt_pk_bf16_f32 v{o+k}, v{g+2*k+1}, v{u+2*k+1}")
            if k == 3:
                out.append(f"ds_write_b128 v22, {vr(o,4)} offset:{32*HS*tt + 64*ft}")
        out.append(f"ds_write_b128 v22, {vr(o+4,4)} offset:{32*HS*tt + 64*ft + 16}")
        return out

    def flush(tt, regs):
        rd = [f"ds_read_b128 {vr(regs+4*i,4)}, v23 offset:{8*HS*(4*tt+i)}" for i in range(4)]
        st = []
        for i in range(4):
            st.append(f"s_waitcnt lgkmcnt({3-i})\n"
                      f"buffer_store_dwordx4 {vr(regs+4*i,4)}, v14, s[24:27], s42 offen{WT['h']}\n"
                      f"s_add_u32 s42, s42, {8*H_STRIDE}")
        return rd, st

    order = [(0, 0), (1, 0), (0, 1), (1, 1)]
    korder = [LASTN, LASTN + 2, LASTN + 3, LASTN + 1]
    a("s_waitcnt lgkmcnt(10)")
    for pi, (ft, tt) in enumerate(order):
        if pi < 3:
            stamp(a)
        mm = []
        for kn in korder:
            if pi == 0 and kn == LASTN + 1:
                mm.append("s_waitcnt lgkmcnt(0)\n" + mfma(kn, sets[kn], 0, ft, tt))
            else:
                mm.append(mfma(kn, sets[kn], 0, ft, tt))
            mm.append(mfma(kn, sets[kn], 1, ft, tt))
        fill = ["s_nop 8"] + pair_epilogue(*order[pi - 1]) if pi else []
        if pi == 3:
            rd, st = flush(0, ACC(1, 0, 0))
            fill = ["s_waitcnt lgkmcnt(0)"] + rd + fill[:33] + st + fill[33:]
        lead = 2
        per = -(-len(fill) // (len(mm) - lead)) if fill else 0
        for i, m in enumerate(mm):
            a(m)
            if i >= lead - 1 and fill:
                j = i - (lead - 1)
                for op in fill[j * per:(j + 1) * per]:
                    a(op)
    a("s_nop 15")
    stamp(a)
    for op in pair_epilogue(*order[3]):
        a(op)
    a("s_waitcnt lgkmcnt(0)")
    rd, st = flush(1, ACC(1, 0, 0))
    for op in rd + st:
        a(op)
    stamp_end(a, 1, 8)
    a("s_endpgm")


def gen_conv(a):
    stamp_begin(a)
    a(f"s_load_dwordx2 s[4:5], s[0:1], {KA_DSK}")
    a(f"s_load_dwordx2 s[8:9], s[0:1], {KA_WS}")
    a("v_and_b32 v1, 63, v0")
    a("v_lshrrev_b32 v2, 6, v0")
    a(f"s_sub_u32 s28, s2, {N_G1}")
    a("s_nop 0")
    a("v_readfirstlane_b32 s30, v2")
    a("s_lshl_b32 s28, s28, 3")
    a("s_add_u32 s28, s28, s30")
    a(f"s_mul_i32 s31, s30, {CV_W}")
    a("s_lshl_b32 s32, s28, 13")
    a("s_add_u32 s33, s32, 4096")
    a("s_lshl_b32 s34, s28, 12")
    a("s_lshr_b32 s35, s28, 1")
    a("s_lshl_b32 s35, s35, 2")
    a("v_lshlrev_b32 v3, 4, v1")
    a("s_waitcnt lgkmcnt(0)")
    a("s_load_dword s36, s[4:5], s35")
    srd(a, 12, 8, D * 8192, WS_KR)
    srd(a, 16, 8, XNT_BYTES, WS_XNT)
    srd(a, 20, 8, L * D * 2, WS_AT)
    a(f"s_mul_i32 s44, s28, {XNT_STRIDE}")
    a(f"s_add_u32 m0, s31, {CV_U}")
    a("s_nop 0")
    for q in range(4):
        a(f"buffer_load_dwordx4 v3, s[16:19], s44 offen offset:{q*1024} lds")
    for qs in ((2, 3), (0, 1)):
        a("s_mov_b32 m0, s31")
        a("s_nop 0")
        for q in qs:
            a(f"buffer_load_dwordx4 v3, s[12:15], s32 offen offset:{q*1024} lds")
        a(f"s_add_u32 m0, s31, {CV_O}")
        a("s_nop 0")
        for q in qs:
            a(f"buffer_load_dwordx4 v3, s[12:15], s33 offen offset:{q*1024} lds")
    if CODE_PF:
        a(f"s_sub_u32 s45, s2, {N_G1}")
        a("s_lshr_b32 s45, s45, 3")
        a("s_lshl_b32 s45, s45, 3")
        a("s_add_u32 s45, s45, s30")
        code_prefetch(a, "k3_kernel", "code_end", 45, 3, 200, 48)
    a("v_mov_b32 v4, 0")
    a("v_mov_b32 v5, 0")
    a("v_mov_b32 v6, 0")
    a("v_mov_b32 v7, 0")
    a(f"v_add_u32 v8, 4096, v3")
    a(f"v_add_u32 v9, {CV_O + 4096 - 32}, v3")
    a("v_cmp_gt_u32 vcc, 2, v1")
    a("s_nop 1")
    a("v_cndmask_b32 v8, v9, v8, vcc")
    a("v_add_u32 v8, s31, v8")
    a("v_cmp_gt_u32 vcc, 5, v1")
    a("s_and_saveexec_b64 s[38:39], vcc")
    a("ds_write_b128 v8, v[4:7]")
    a("s_mov_b64 exec, s[38:39]")
    a("v_and_b32 v4, 15, v1")
    a("v_lshrrev_b32 v5, 4, v1")
    a("v_lshlrev_b32 v6, 3, v5")
    a("v_sub_u32 v6, v6, v4")
    a("v_lshlrev_b32 v6, 1, v6")
    a("v_and_b32 v7, 1, v4")
    a(f"v_mov_b32 v8, {CV_O + 2*2030}")
    a(f"v_mov_b32 v9, {2*2031}")
    a("v_cmp_eq_u32 vcc, 1, v7")
    a("s_nop 1")
    a("v_cndmask_b32 v8, v8, v9, vcc")
    a("v_add_u32 v6, v6, v8")
    a("v_add_u32 v6, s31, v6")
    for P in range(4):
        a(f"v_subrev_u32 v{10+P}, {512*(2*P+1)+448}, v6")
    a("v_lshlrev_b32 v7, 5, v4")
    a("v_lshl_add_u32 v7, v5, 4, v7")
    a(f"s_add_u32 s37, s31, {CV_U - 32 - 448}")
    a("v_add_u32 v14, s37, v7")
    a(f"s_add_u32 s40, s31, {CV_Z}")
    for rho in range(8):
        a(f"v_add_u32 v{16+rho}, {64*(7-rho)}, v14")
        a(f"v_max_i32 v{16+rho}, s40, v{16+rho}")
    a("v_lshlrev_b32 v24, 5, v4")
    a("v_lshl_add_u32 v24, v5, 3, v24")
    a(f"s_add_u32 s41, s31, {CV_U}")
    a("v_add_u32 v25, s41, v24")

    ACC = 32
    SET = [64, 112]

    def loads(ph, rho):
        s = SET[rho & 1]
        out = []
        for m in range(8 if ph == 0 else 4):
            if m == 0:
                out.append(f"ds_read_b128 {vr(s+16,4)}, v{16+rho}")
            else:
                out.append(f"ds_read_b128 {vr(s+16+4*m,4)}, v14 offset:{512*m + 64*(7-rho)}")
            if m < 4:
                i = 4 * ph + m
                o = (64 * (7 - rho) + (0 if i & 1 else 512)) // 4
                out.append(f"ds_read2_b32 {vr(s+4*m,2)}, v{10+(i>>1)} offset0:{o} offset1:{o+1}")
                out.append(f"ds_read2_b32 {vr(s+4*m+2,2)}, v{10+(i>>1)} offset0:{o+2} offset1:{o+3}")
        return out

    def mfma(ph, rho, i, m):
        s = SET[rho & 1]
        c = vr(ACC + 4 * (i + m), 4)
        first = ph == 0 and rho == 0 and i == 0
        return (f"v_mfma_f32_16x16x32_bf16 {c}, {vr(s+4*(i-4*ph),4)}, {vr(s+16+4*m,4)}, "
                f"{'0' if first else c}")

    def mfmas(ph, rho):
        return [mfma(ph, rho, i, m) for i in range(4 * ph, 4 * ph + 4) for m in range(8 - i)]

    stamp(a)
    a(f"s_waitcnt vmcnt({5 if CODE_PF else 4}) lgkmcnt(0)")
    stamp(a)
    a("s_and_b32 s42, s28, 1")
    a("s_lshl_b32 s43, s36, 16")
    a("s_and_b32 s36, s36, 0xffff0000")
    a("s_cmp_eq_u32 s42, 0")
    a("s_cselect_b32 s36, s43, s36")
    for op in loads(0, 0):
        a(op)

    UREG = SET[0] + 32

    def tile_epilogue(t):
        y = ACC + 4 * t
        u = UREG + 2 * t
        w = 2 if t & 1 else SET[1] + 32
        return [f"v_lshlrev_b32 v{w}, 16, v{u}",
                f"v_and_b32 v{w+1}, 0xffff0000, v{u}",
                f"v_lshlrev_b32 v{w+2}, 16, v{u+1}",
                f"v_and_b32 v{w+3}, 0xffff0000, v{u+1}",
                f"v_pk_mul_f32 {vr(w,2)}, {vr(w,2)}, s[36:37]",
                f"v_pk_mul_f32 {vr(w+2,2)}, {vr(w+2,2)}, s[36:37]",
                f"v_cvt_pk_bf16_f32 v{u}, v{w}, v{w+1}",
                f"v_cvt_pk_bf16_f32 v{u+1}, v{w+2}, v{w+3}",
                f"v_cvt_pk_bf16_f32 v{w+5}, v{y}, v{y+1}",
                f"v_cvt_pk_bf16_f32 v{w+7}, v{y+2}, v{y+3}",
                f"v_lshlrev_b32 v{w}, 16, v{u}",
                f"v_and_b32 v{w+1}, 0xffff0000, v{u}",
                f"v_lshlrev_b32 v{w+2}, 16, v{u+1}",
                f"v_and_b32 v{w+3}, 0xffff0000, v{u+1}",
                f"v_lshlrev_b32 v{w+4}, 16, v{w+5}",
                f"v_and_b32 v{w+5}, 0xffff0000, v{w+5}",
                f"v_lshlrev_b32 v{w+6}, 16, v{w+7}",
                f"v_and_b32 v{w+7}, 0xffff0000, v{w+7}",
                f"v_pk_add_f32 {vr(w,2)}, {vr(w,2)}, {vr(w+4,2)}",
                f"v_pk_add_f32 {vr(w+2,2)}, {vr(w+2,2)}, {vr(w+6,2)}",
                f"v_cvt_pk_bf16_f32 v{u}, v{w}, v{w+1}",
                f"v_cvt_pk_bf16_f32 v{u+1}, v{w+2}, v{w+3}",
                f"buffer_store_dwordx2 {vr(u,2)}, v24, s[20:23], s34 offen offset:{512*t}" + WT["at"]]

    a("s_mov_b32 s37, s36")
    for rho in range(8):
        a("s_waitcnt lgkmcnt(0)" if rho < 7 else "s_waitcnt vmcnt(0) lgkmcnt(0)")
        nxt = loads(0, rho + 1) if rho < 7 else loads(1, 0)
        if rho == 7:
            nxt += [f"ds_read_b64 {vr(UREG+2*t,2)}, v25 offset:{512*t}" for t in range(8)]
        for op in interleave(mfmas(0, rho), nxt):
            a(op)
    for rho in range(7):
        a("s_waitcnt lgkmcnt(0)")
        fill = loads(1, rho + 1)
        if 1 <= rho <= 4:
            fill = interleave(fill, tile_epilogue(rho - 1), every=1)
        mm = mfmas(1, rho)
        per = -(-len(fill) // len(mm))
        for i, m in enumerate(mm):
            a(m)
            for op in fill[i * per:(i + 1) * per]:
                a(op)
    a("s_waitcnt lgkmcnt(0)")
    seq = {t: [mfma(1, 7, i, t - i) for i in range(4, t + 1)] for t in range(4, 8)}
    for op in seq[4] + seq[5] + seq[6]:
        a(op)
    e4 = tile_epilogue(4)
    for i, m in enumerate(seq[7]):
        a(m)
        for op in e4[6 * i:6 * i + 6]:
            a(op)
    stamp(a)
    for op in interleave(tile_epilogue(5), tile_epilogue(6)) + tile_epilogue(7):
        a(op)
    stamp_end(a, 1, 8)
    a("s_endpgm")


def gen_relayout(a):
    a(f"s_load_dwordx2 s[4:5], s[0:1], {KA_WD}")
    a(f"s_load_dwordx2 s[8:9], s[0:1], {KA_WS}")
    a("v_and_b32 v1, 63, v0")
    a("v_lshrrev_b32 v2, 6, v0")
    a(f"s_sub_u32 s28, s2, {N_G1 + N_CV}")
    a("s_mul_i32 s28, s28, 88")
    a("v_readfirstlane_b32 s30, v2")
    a("v_lshlrev_b32 v3, 4, v1")
    a("s_add_u32 s28, s28, s30")
    a("s_lshr_b32 s31, s28, 1")
    a("s_and_b32 s31, s31, 1")
    a("s_lshl_b32 s31, s31, 2")
    a("v_and_b32 v4, 7, v1")
    a("v_xor_b32 v4, s31, v4")
    a("v_lshrrev_b32 v5, 3, v1")
    a(f"s_mov_b32 s32, {WDT_TILE}")
    a("v_mul_lo_u32 v5, v5, s32")
    a("v_lshl_add_u32 v4, v4, 4, v5")
    a("s_lshl_b32 s33, s28, 10")
    a("s_lshl_b32 s34, s28, 7")
    a("s_waitcnt lgkmcnt(0)")
    srd(a, 12, 4, W_BYTES)
    srd(a, 16, 8, 8 * WDT_TILE, WS_WDT)
    for i in range(11):
        a(f"buffer_load_dwordx4 {vr(8+4*i,4)}, v3, s[12:15], s33 offen")
        a("s_add_u32 s33, s33, 8192")
    for i in range(11):
        a(f"s_waitcnt vmcnt(10)")
        a(f"buffer_store_dwordx4 {vr(8+4*i,4)}, v4, s[16:19], s34 offen offset:{(i%4)*1024}" + WT["wdt"])
        if i % 4 == 3:
            a("s_add_u32 s34, s34, 4096")
    a("s_endpgm")


def gen_k2(a):
    a.raw(".p2align 8")
    a.label("k2_kernel")
    a(f"s_cmp_ge_u32 s2, {N_G1 + N_CV + N_RL}")
    a("s_cbranch_scc1 k2_exit")
    a(f"s_cmp_ge_u32 s2, {N_G1 + N_CV}")
    a("s_cbranch_scc1 k2_relayout")
    a(f"s_cmp_ge_u32 s2, {N_G1}")
    a("s_cbranch_scc1 k2_conv")
    gen_gemm1(a)
    a.label("k2_conv")
    gen_conv(a)
    a.label("k2_relayout")
    gen_relayout(a)
    a.label("k2_exit")
    a("s_endpgm")


N_G2 = 256
G2_NS = 8
G2_STAGE = 16384
G2_AT = G2_NS * G2_STAGE
K3_LDS = G2_AT + 8192
G2_NST = FP // 64
G2_LEAD = 4


def gen_k3(a):
    a.raw(".p2align 8")
    a.label("k3_kernel")
    a(f"s_cmp_ge_u32 s2, {N_G2}")
    a("s_cbranch_scc1 k3_exit")
    stamp_begin(a)
    a(f"s_load_dwordx2 s[4:5], s[0:1], {KA_U}")
    a(f"s_load_dwordx4 s[8:11], s[0:1], {KA_WD}")
    a(f"s_load_dwordx2 s[6:7], s[0:1], {KA_WS}")
    a("v_and_b32 v1, 63, v0")
    a("v_lshrrev_b32 v2, 6, v0")
    a("s_and_b32 s32, s2, 7")
    a("s_lshr_b32 s33, s2, 3")
    a("v_readfirstlane_b32 s34, v2")
    a("s_lshl_b32 s32, s32, 8")
    a("s_and_b32 s35, s33, 3")
    a("s_lshl_b32 s35, s35, 6")
    a("s_add_u32 s32, s32, s35")
    a("s_lshr_b32 s33, s33, 2")
    a("s_lshl_b32 s33, s33, 6")
    a("s_cmp_lt_u32 s34, 4")
    a("s_cbranch_scc1 k3_compute")
    a("s_sub_u32 s34, s34, 4")
    a("v_lshrrev_b32 v3, 3, v1")
    a("v_and_b32 v4, 7, v1")
    a("v_lshrrev_b32 v5, 4, v1")
    a(f"v_mul_u32_u24 v7, {H_STRIDE}, v3")
    a("s_lshl_b32 s36, s34, 2")
    a("v_add_u32 v6, s36, v5")
    a("v_and_b32 v6, 7, v6")
    a("v_xor_b32 v6, v6, v4")
    a("v_lshl_add_u32 v8, v6, 4, v7")
    a("v_and_b32 v6, 1, v5")
    a("v_lshlrev_b32 v6, 2, v6")
    a("v_xor_b32 v6, v6, v4")
    a("v_lshlrev_b32 v6, 4, v6")
    a("v_lshlrev_b32 v10, 4, v1")
    a("v_lshl_add_u32 v12, v3, 12, v6")
    a("s_lshl_b32 s36, s34, 3")
    a("s_add_u32 s37, s36, s32")
    a(f"s_mul_i32 s37, s37, {H_STRIDE}")
    a(f"s_mul_i32 s38, s33, {WDT_TILE // 64}")
    a("s_lshl_b32 s39, s34, 10")
    a("s_add_u32 s38, s38, s39")
    a("s_add_u32 s39, s36, s33")
    a("s_lshl_b32 s39, s39, 12")
    a("s_lshl_b32 s40, s32, 1")
    a("s_add_u32 s39, s39, s40")
    a("s_lshl_b32 s40, s34, 10")
    a("s_waitcnt lgkmcnt(0)")
    srd(a, 16, 6, 8 * WDT_TILE, WS_WDT)
    srd(a, 12, 6, H_BYTES, WS_H)
    srd(a, 20, 6, L * D * 2, WS_AT)

    def dma(stage):
        b = (stage % G2_NS) * G2_STAGE
        a(f"s_add_u32 m0, s40, {b+8192}")
        a("s_nop 0")
        a("buffer_load_dwordx4 v10, s[16:19], s38 offen lds")
        a(f"s_add_u32 m0, s40, {b}")
        a("s_add_u32 s38, s38, 8192")
        a("buffer_load_dwordx4 v8, s[12:15], s37 offen lds")
        a("s_add_u32 s37, s37, 128")

    AT_AFTER = 3
    issued = 0
    for st in range(G2_NST):
        want = min(G2_NST - 1, 2 * st + 2, st + G2_LEAD)
        while issued <= want:
            dma(issued)
            if issued == AT_AFTER:
                a(f"s_add_u32 m0, s40, {G2_AT}")
                a("s_nop 0")
                a("buffer_load_dwordx4 v12, s[20:23], s39 offen lds")
            issued += 1
        vm = 2 * (issued - 1 - st) + (1 if st <= AT_AFTER < issued else 0)
        if st in (0, 8, 16):
            stamp(a)
        a(f"s_waitcnt vmcnt({vm})")
        a("s_barrier")
    stamp_end(a, 2, 6)
    a("s_endpgm")
    a.label("k3_compute")
    _stamp_n[0] = 1 if PROF else 0
    a("s_and_b32 s41, s34, 1")
    a("s_lshr_b32 s42, s34, 1")
    a("v_and_b32 v3, 31, v1")
    a("v_lshrrev_b32 v4, 5, v1")
    a("s_lshl_b32 s43, s41, 5")
    a("s_add_u32 s43, s43, s32")
    a("v_add_u32 v14, s43, v3")
    a("v_lshlrev_b32 v14, 10, v14")
    a("v_lshl_add_u32 v14, v4, 5, v14")
    a("s_lshl_b32 s44, s42, 5")
    a("s_add_u32 s44, s44, s33")
    a("s_lshl_b32 s44, s44, 1")
    a("v_lshrrev_b32 v5, 1, v3")
    a("v_and_b32 v5, 7, v5")
    a("v_xor_b32 v5, v5, v4")
    a("v_lshlrev_b32 v6, 7, v3")
    a("s_lshl_b32 s45, s41, 12")
    a("v_add_u32 v6, s45, v6")
    for ks in range(4):
        a(f"v_xor_b32 v7, {2*ks}, v5")
        a(f"v_lshl_add_u32 v{16+ks}, v7, 4, v6")
    a("v_and_b32 v5, 15, v1")
    a("v_lshrrev_b32 v6, 2, v5")
    a("v_and_b32 v5, 3, v5")
    a("v_lshrrev_b32 v7, 4, v1")
    a("v_and_b32 v7, 1, v7")
    a("v_lshlrev_b32 v21, 3, v5")
    a("v_lshl_add_u32 v21, v7, 5, v21")
    a("v_lshrrev_b32 v22, 1, v6")
    a("v_xor_b32 v23, s41, v22")
    a("v_lshl_add_u32 v21, v23, 6, v21")
    a("v_lshl_add_u32 v23, v4, 4, v6")
    a("v_lshl_add_u32 v21, v23, 7, v21")
    a("s_lshl_b32 s45, s42, 12")
    a(f"s_add_u32 s45, s45, {G2_AT}")
    a("v_add_u32 v21, s45, v21")
    a("v_and_b32 v15, 1, v5")
    a("v_lshlrev_b32 v15, 5, v15")
    a("v_lshl_add_u32 v15, v7, 4, v15")
    a("v_lshrrev_b32 v5, 1, v5")
    a("v_lshl_add_u32 v15, v5, 3, v15")
    a("v_xor_b32 v22, s42, v22")
    a("v_lshl_add_u32 v15, v22, 6, v15")
    a("v_lshl_add_u32 v6, v4, 3, v6")
    a("v_lshl_add_u32 v15, v6, 7, v15")
    a("v_add_u32 v20, 8192, v15")
    a("s_waitcnt lgkmcnt(0)")
    srd(a, 24, 4, L * D * 2)
    srd(a, 28, 10, L * D * 2)
    a("buffer_load_dwordx4 v[24:27], v14, s[24:27], s44 offen")
    a("buffer_load_dwordx4 v[28:31], v14, s[24:27], s44 offen offset:16")

    ACC = 32
    FS = [48, 80]
    XA = 112
    ATR = 128
    AT_ST = 10

    def reads(st):
        f = FS[st & 1]
        o = (st % 4) * G2_STAGE
        out = []
        for ks in range(4):
            out.append(f"ds_read_b64_tr_b16 {vr(f+8*ks,2)}, v20 offset:{o+ks*2048}")
            out.append(f"ds_read_b64_tr_b16 {vr(f+8*ks+2,2)}, v20 offset:{o+ks*2048+512}")
            out.append(f"ds_read_b128 {vr(f+8*ks+4,4)}, v{16+ks} offset:{o}")
        return out

    def mfmas(st):
        f = FS[st & 1]
        c = vr(ACC, 16)
        return [f"v_mfma_f32_32x32x16_bf16 {c}, {vr(f+8*ks,4)}, {vr(f+8*ks+4,4)}, "
                f"{'0' if st == 0 and ks == 0 else c}" for ks in range(4)]

    def xa_ops(k):
        x, t = XA + 2 * k, 4
        return [f"v_lshlrev_b32 v{x}, 16, v{24+k}",
                f"v_and_b32 v{x+1}, 0xffff0000, v{24+k}",
                f"v_lshlrev_b32 v{t}, 16, v{ATR+k}",
                f"v_and_b32 v{t+1}, 0xffff0000, v{ATR+k}",
                f"v_pk_add_f32 {vr(x,2)}, {vr(x,2)}, {vr(t,2)}",
                f"v_cvt_pk_bf16_f32 v{x+1}, v{x}, v{x+1}",
                f"v_lshlrev_b32 v{x}, 16, v{x+1}",
                f"v_and_b32 v{x+1}, 0xffff0000, v{x+1}"]

    for st in range(-1, G2_NST):
        nx = st + 1
        body = []
        if nx < G2_NST:
            if nx in (0, 8, 16):
                stamp(a)
            a("s_waitcnt lgkmcnt(0)" if nx != AT_ST + 1 else "s_waitcnt vmcnt(0) lgkmcnt(0)")
            a("s_barrier")
            if nx and nx % 4 == 0:
                delta = 65536 if (nx % G2_NS) == 4 else -65536
                for r in (16, 17, 18, 19, 20):
                    a(f"v_add_u32 v{r}, {delta & 0xffffffff:#x}, v{r}")
            body = reads(nx)
            if nx == AT_ST:
                body += [f"ds_read_b64_tr_b16 {vr(ATR+2*i,2)}, v21 offset:{512*i}" for i in range(4)]
        else:
            a("s_waitcnt lgkmcnt(0)")
        if st >= 0:
            body = interleave(body, mfmas(st), every=3) if body else mfmas(st)
        if AT_ST < nx <= AT_ST + 4:
            k = 2 * (nx - AT_ST - 1)
            body += xa_ops(k) + xa_ops(k + 1)
        for op in body:
            a(op)
    a("s_nop 15")
    stamp(a)
    for k in range(8):
        a(f"v_cvt_pk_bf16_f32 v{48+k}, v{ACC+2*k}, v{ACC+2*k+1}")
    for k in range(8):
        a(f"v_lshlrev_b32 v{ACC+2*k}, 16, v{48+k}")
        a(f"v_and_b32 v{ACC+2*k+1}, 0xffff0000, v{48+k}")
    for k in range(8):
        a(f"v_pk_add_f32 {vr(ACC+2*k,2)}, {vr(ACC+2*k,2)}, {vr(XA+2*k,2)}")
    for k in range(8):
        a(f"v_cvt_pk_bf16_f32 v{56+k}, v{ACC+2*k}, v{ACC+2*k+1}")
        if k == 3:
            a("buffer_store_dwordx4 v[56:59], v14, s[28:31], s44 offen" + WT["out"])
    a("buffer_store_dwordx4 v[60:63], v14, s[28:31], s44 offen offset:16" + WT["out"])
    stamp_end(a, 2, 6)
    a.label("k3_exit")
    a("s_endpgm")


def gen_k4(a):
    a.raw(".p2align 8")
    a.label("k4_kernel")
    a("s_cmp_ge_u32 s2, 1")
    a("s_cbranch_scc1 k4_exit")
    a(f"s_load_dwordx4 s[4:7], s[0:1], {KA_DBG}")
    a("s_memrealtime s[20:21]")
    a("s_waitcnt lgkmcnt(0)")
    srd(a, 8, 6, 0x1000000, PROF_BASE)
    srd(a, 12, 4, 256)
    groups = [(0, 0, 256, 0, 4), (0, 0, 256, 4, 8), (1, 0, 176, 0, 4), (1, 176, 240, 0, 8), (2, 0, 256, 0, 4)]
    for gi, (l, lo, hi, w0, w1) in enumerate(groups):
        a("v_mov_b32 v4, -1")
        a("v_mov_b32 v5, 0")
        for base in range(lo, hi, 64):
            n = min(64, hi - base)
            a(f"v_min_u32 v2, {n-1}, v0")
            a(f"v_add_u32 v2, {l*512 + base}, v2")
            a("v_lshlrev_b32 v2, 10, v2")
            for w in range(w0, w1):
                a(f"buffer_load_dwordx2 {vr(8+2*(w-w0),2)}, v2, s[8:11], 0 offen offset:{64*w}")
            a("s_waitcnt vmcnt(0)")
            for w in range(w0, w1):
                a(f"v_min_u32 v4, v4, v{8+2*(w-w0)}")
                a(f"v_max_u32 v5, v5, v{9+2*(w-w0)}")
        a("s_mov_b32 s22, -1")
        a("s_mov_b32 s23, 0")
        for ln in range(64):
            a(f"v_readlane_b32 s24, v4, {ln}")
            a(f"v_readlane_b32 s25, v5, {ln}")
            a("s_nop 1")
            a("s_min_u32 s22, s22, s24")
            a("s_max_u32 s23, s23, s25")
        a(f"s_mov_b32 s{30+2*gi}, s22")
        a(f"s_mov_b32 s{31+2*gi}, s23")
    a("v_mov_b32 v3, 0")
    for i in range(10):
        a(f"s_sub_u32 s24, s{30+i}, s30")
        a("v_mov_b32 v6, s24")
        a(f"buffer_store_dword v6, v3, s[12:15], 0 offen offset:{4*i}")
        a("s_nop 1")
    a("s_sub_u32 s24, s20, s30")
    a("v_mov_b32 v6, s24")
    a("buffer_store_dword v6, v3, s[12:15], 0 offen offset:40")
    a.label("k4_exit")
    a("s_endpgm")


def descriptor(name, vgpr, sgpr):
    acc = (vgpr + 3) // 4 * 4
    return f""".p2align 6
.amdhsa_kernel {name}
  .amdhsa_next_free_vgpr {vgpr}
  .amdhsa_next_free_sgpr {sgpr}
  .amdhsa_accum_offset {acc}
  .amdhsa_group_segment_fixed_size 0
  .amdhsa_kernarg_size 112
  .amdhsa_user_sgpr_count 2
  .amdhsa_user_sgpr_kernarg_segment_ptr 1
  .amdhsa_system_sgpr_workgroup_id_x 1
.end_amdhsa_kernel
"""


def main(path):
    a = Asm()
    a.raw(f"; @launch kernel=k1_kernel grid=({N_K1},1,1) block=(512,1,1) lds={K1_LDS}")
    a.raw(f"; @launch kernel=k2_kernel grid=({N_G1+N_CV+N_RL},1,1) block=(512,1,1) lds={K2_LDS}")
    a.raw(f"; @launch kernel=k3_kernel grid=({N_G2},1,1) block=(768,1,1) lds={K3_LDS}")
    if K4:
        a.raw("; @launch kernel=k4_kernel grid=(1,1,1) block=(64,1,1) lds=0")
    a.raw('.amdgcn_target "amdgcn-amd-amdhsa--gfx950"')
    a.raw(".text")
    for k in ("k1_kernel", "k2_kernel", "k3_kernel") + (("k4_kernel",) if K4 else ()):
        a.raw(f".globl {k}")
        a.raw(f".type {k},@function")
    gen_k1(a)
    gen_k2(a)
    gen_k3(a)
    a.label("code_end")
    if K4:
        gen_k4(a)
    a.raw('.section .rodata,"a"')
    if K4:
        a.raw(descriptor("k4_kernel", 32, 48))
    sg = 102 if PROF else 0
    a.raw(descriptor("k1_kernel", 164, max(sg, 74)))
    a.raw(descriptor("k2_kernel", 256, max(sg, 56)))
    a.raw(descriptor("k3_kernel", 136, max(sg, 56)))
    open(path, "w").write(a.text())


if __name__ == "__main__":
    for arg in list(sys.argv):
        if arg.startswith("--wt="):
            flag, names = arg[5:].split(":")
            for nm in names.split(","):
                WT[nm] = " " + flag.replace("+", " ")
            sys.argv.remove(arg)
        if arg.startswith("--epi="):
            EPI = arg[6:]
            sys.argv.remove(arg)
    if "--nocodepf" in sys.argv:
        sys.argv.remove("--nocodepf")
        CODE_PF = False
    if "--notouch" in sys.argv:
        sys.argv.remove("--notouch")
        TOUCH = False
    if "--k4" in sys.argv:
        sys.argv.remove("--k4")
        K4 = PROF = True
    if "--prof" in sys.argv:
        sys.argv.remove("--prof")
        PROF = True
    main(sys.argv[1] if len(sys.argv) > 1 else f"cdna_kernels/{NAME}.s")
```

```python
import struct
import sys

NAME = "parallel_sum__ssm_conv_s4d__glu_gated_reglu__prompt"

L, D, N, F = 2048, 512, 128, 1376
FP = 1408
WS_XN = 0x000000
WS_XNT = 0x240000
WS_KR = 0x480000
WS_H = 0x880000
WS_AT = 0xE80000
XN_STRIDE = 1024 + 128
XN_BYTES = L * XN_STRIDE
H_STRIDE = 2 * FP + 128
H_BYTES = L * H_STRIDE
XNT_STRIDE = 4096 + 128
XNT_BYTES = D * XNT_STRIDE
W_BYTES = D * F * 2
WS_WDT = WS_AT + L * D * 2
WDT_TILE = FP * 128
WS_END = WS_WDT + 8 * WDT_TILE
TOUCH = False
CODE_PF = True
EPI = "dot"
WT = dict(xn="", xnt="", k="", at="", wdt="", h="", out="")

KA_U, KA_LAR, KA_AI, KA_CR, KA_CI, KA_LDT, KA_DSK, KA_BX, KA_WG, KA_WU, KA_WD, KA_OUT, KA_DBG, KA_WS = \
    [8 * i for i in range(14)]


def f32(x):
    return "0x%08x" % struct.unpack("<I", struct.pack("<f", x))[0]


class Asm:
    def __init__(self):
        self.lines = []

    def __call__(self, s):
        for ln in s.strip("\n").split("\n"):
            self.lines.append("  " + ln.strip())

    def label(self, s):
        self.lines.append(s + ":")

    def raw(self, s):
        self.lines.append(s)

    def text(self):
        return "\n".join(self.lines) + "\n"


PROF = False
K4 = False
SPIN = None
PROF_BASE = 0x1400000
_stamp_n = [0]


def stamp_begin(a):
    _stamp_n[0] = 0
    if PROF:
        a("s_memrealtime s[80:81]")
        a("s_memtime s[82:83]")
        _stamp_n[0] = 1


def stamp(a):
    if PROF:
        k = _stamp_n[0]
        a(f"s_memtime s[{82+2*k}:{83+2*k}]")
        _stamp_n[0] += 1


def stamp_end(a, launch, ws_lo):
    if not PROF:
        return
    stamp(a)
    n = _stamp_n[0]
    a("s_waitcnt lgkmcnt(0)")
    a("s_memrealtime s[98:99]")
    a(f"s_add_u32 s76, s{ws_lo}, {PROF_BASE}")
    a(f"s_addc_u32 s77, s{ws_lo+1}, 0")
    a("s_mov_b32 s78, 0x1000000")
    a("s_mov_b32 s79, 0x00020000")
    a("v_lshrrev_b32 v2, 6, v0")
    a(f"s_add_u32 s75, s2, {launch*512}")
    a("s_lshl_b32 s75, s75, 10")
    a("v_lshlrev_b32 v2, 6, v2")
    a("v_add_u32 v2, s75, v2")
    a("s_waitcnt lgkmcnt(0)")
    a("v_mov_b32 v4, s80")
    a("v_mov_b32 v5, s98")
    a("buffer_store_dwordx2 v[4:5], v2, s[76:79], 0 offen")
    for k in range(n):
        a(f"v_mov_b32 v6, s{82+2*k}")
        a(f"buffer_store_dword v6, v2, s[76:79], 0 offen offset:{8+4*k}")
        a("s_nop 1")


def vr(b, n):
    return "v[%d:%d]" % (b, b + n - 1)


def sr(b, n):
    return "s[%d:%d]" % (b, b + n - 1)


def srd(a, dst, base, nbytes, add=0):
    if add:
        a(f"s_add_u32 s{dst}, s{base}, {add}")
        a(f"s_addc_u32 s{dst+1}, s{base+1}, 0")
    else:
        a(f"s_mov_b32 s{dst}, s{base}")
        a(f"s_mov_b32 s{dst+1}, s{base+1}")
    a(f"s_mov_b32 s{dst+2}, {nbytes}")
    a(f"s_mov_b32 s{dst+3}, 0x00020000")


_pc_n = [0]


def code_prefetch(a, lo, hi, slice_sgpr, lane16, dst, sbase):
    _pc_n[0] += 1
    lab = f"pc_ref{_pc_n[0]}"
    a(f"s_getpc_b64 {sr(sbase,2)}")
    a.label(lab)
    a(f"s_add_u32 s{sbase}, s{sbase}, ({lo} - {lab}) & 0xffffffff")
    a(f"s_addc_u32 s{sbase+1}, s{sbase+1}, (({lo} - {lab}) >> 32) & 0xffffffff")
    a(f"s_mov_b32 s{sbase+2}, {hi} - {lo}")
    a(f"s_mov_b32 s{sbase+3}, 0x00020000")
    a(f"s_lshl_b32 s{slice_sgpr}, s{slice_sgpr}, 10")
    a(f"buffer_load_dwordx4 {vr(dst,4)}, v{lane16}, {sr(sbase,4)}, s{slice_sgpr} offen")


def interleave(main, fill, every=1, start=0):
    out = []
    fill = list(fill)
    for i, m in enumerate(main):
        out.append(m)
        if i >= start and (i - start) % every == every - 1 and fill:
            out.append(fill.pop(0))
    out.extend(fill)
    return out


N_K1 = 256
LN_STRIDE = 1088
KG_ROW = 544
KG_XA, KG_YB, KG_T = 0, 24 * KG_ROW, 56 * KG_ROW
KG_CH = KG_T + 3072
LN_LDS = 2 * KG_CH
K1_LDS = LN_LDS + 8 * LN_STRIDE
LOG2E = 1.4426950408889634
L_HI = 47274.0 / 32768.0
C_LO = (LOG2E - L_HI) * 0.6931471805599453
T_BIAS = 0x3F7F
PF_W = 6


def dpp_reduce(a, regs):
    steps = ["row_shr:1 row_mask:0xf bank_mask:0xf bound_ctrl:0",
             "row_shr:2 row_mask:0xf bank_mask:0xf bound_ctrl:0",
             "row_shr:4 row_mask:0xf bank_mask:0xf bound_ctrl:0",
             "row_shr:8 row_mask:0xf bank_mask:0xf bound_ctrl:0",
             "row_bcast:15 row_mask:0xa bank_mask:0xf",
             "row_bcast:31 row_mask:0xc bank_mask:0xf"]
    a("s_nop 1")
    for st in steps:
        for r in regs:
            a(f"v_add_f32_dpp v{r}, v{r}, v{r} {st}")
    a("s_nop 1")


def bf16_round(a, dst, src):
    a(f"v_cvt_pk_bf16_f32 v{dst}, v{src}, v{src}")
    a(f"v_lshlrev_b32 v{dst}, 16, v{dst}")


def gen_ln(a):
    stamp_begin(a)
    if CODE_PF:
        a("v_lshlrev_b32 v3, 4, v1")
        a("s_lshr_b32 s45, s2, 3")
        a("s_lshl_b32 s45, s45, 1")
        a("s_sub_u32 s46, s44, 6")
        a("s_add_u32 s45, s45, s46")
        a("s_cmp_lt_u32 s44, 6")
        a("s_cbranch_scc1 k1_no_pf")
        code_prefetch(a, "k1_kernel", "code_end", 45, 3, 76, 56)
        a("s_branch k1_pf_done")
        a.label("k1_no_pf")
        a("s_nop 0")
        a.label("k1_pf_done")
    a(f"s_load_dwordx2 s[4:5], s[0:1], {KA_U}")
    a(f"s_load_dwordx2 s[6:7], s[0:1], {KA_WS}")
    a(f"s_load_dwordx4 s[48:51], s[0:1], {KA_WG}")
    a(f"s_load_dwordx4 s[68:71], s[0:1], {KA_WD}")
    a(f"s_load_dwordx2 s[54:55], s[0:1], {KA_DSK}")
    a("s_sub_u32 s22, s44, 4")
    a("s_and_b32 s20, s2, 7")
    a("s_lshr_b32 s21, s2, 3")
    a("s_lshl_b32 s20, s20, 8")
    a("s_lshl_b32 s23, s21, 3")
    a("s_add_u32 s20, s20, s23")
    a("s_lshl_b32 s23, s22, 1")
    a("s_add_u32 s23, s23, s20")
    a("s_lshl_b32 s24, s23, 10")
    a(f"s_mul_i32 s53, s23, {XN_STRIDE}")
    a("v_lshlrev_b32 v3, 4, v1")
    a("s_lshl_b32 s52, s2, 2")
    a("s_add_u32 s52, s52, s22")
    a("s_lshl_b32 s52, s52, 11")
    a(f"s_mul_i32 s25, s22, {2*LN_STRIDE}")
    a(f"s_add_u32 s25, s25, {LN_LDS}")
    a("v_add_u32 v4, s25, v3")
    a("v_and_b32 v5, 15, v1")
    a("v_lshrrev_b32 v6, 2, v5")
    a("v_and_b32 v5, 3, v5")
    a("v_lshrrev_b32 v7, 4, v1")
    a(f"v_mul_u32_u24 v6, {LN_STRIDE}, v6")
    a("v_lshlrev_b32 v5, 3, v5")
    a("v_lshl_add_u32 v5, v7, 5, v5")
    a("v_add_u32 v5, v5, v6")
    a("s_lshl_b32 s26, s22, 8")
    a(f"s_add_u32 s26, s26, {LN_LDS}")
    a("v_add_u32 v5, s26, v5")
    a("s_lshl_b32 s27, s22, 7")
    a("v_add_u32 v6, s27, v1")
    a(f"v_mul_u32_u24 v6, {XNT_STRIDE}, v6")
    a("s_lshl_b32 s28, s20, 1")
    a(f"s_add_u32 s29, s28, {64*XNT_STRIDE}")
    a("s_waitcnt lgkmcnt(0)")
    srd(a, 8, 4, L * D * 2)
    for r in range(2):
        a(f"buffer_load_dwordx4 {vr(8+4*r,4)}, v3, s[8:11], s24 offen offset:{r*1024}")
    srd(a, 56, 48, W_BYTES)
    srd(a, 60, 50, W_BYTES)
    srd(a, 64, 68, W_BYTES)
    if TOUCH:
        a("s_cmp_ge_u32 s2, 16")
        a("s_cbranch_scc1 k1_no_touch")
        srd(a, 12, 6, WS_END)
        srd(a, 16, 70, L * D * 2)
        a("v_lshlrev_b32 v60, 18, v1")
        a("s_lshl_b32 s45, s22, 16")
        a("buffer_load_dword v61, v60, s[12:15], s45 offen")
        a("v_lshlrev_b32 v60, 15, v1")
        a(f"s_mov_b32 s45, {1 << 24}")
        a("buffer_load_dword v61, v60, s[12:15], s45 offen")
        a("buffer_load_dword v61, v60, s[16:19], 0 offen")
        srd(a, 16, 54, D * 2)
        a("buffer_load_dword v61, v3, s[16:19], 0 offen")
        for i in range(2):
            a(f"buffer_load_dwordx4 v[72:75], v3, s[56:59], s52 offen offset:{i*1024}")
        a("s_branch k1_touched")
        a.label("k1_no_touch")
    for i in range(2):
        for b in (56, 60, 64):
            a(f"buffer_load_dwordx4 v[72:75], v3, {sr(b,4)}, s52 offen offset:{i*1024}")
    if TOUCH:
        a.label("k1_touched")
    srd(a, 12, 6, XN_BYTES, WS_XN)
    srd(a, 16, 6, XNT_BYTES, WS_XNT)
    X = lambda r, e: 32 + 8 * r + e
    stamp(a)
    for r in range(2):
        a(f"s_waitcnt vmcnt({PF_W + 1 - r})")
        if r == 0:
            stamp(a)
        for k in range(4):
            a(f"v_lshlrev_b32 v{X(r,2*k)}, 16, v{8+4*r+k}")
            a(f"v_and_b32 v{X(r,2*k+1)}, 0xffff0000, v{8+4*r+k}")
        a(f"v_readfirstlane_b32 s{30+2*r}, v{X(r,0)}")
        a(f"v_pk_add_f32 v[48:49], {vr(X(r,0),2)}, {vr(X(r,2),2)}")
        a(f"v_pk_add_f32 v[50:51], {vr(X(r,4),2)}, {vr(X(r,6),2)}")
        a(f"s_mov_b32 s{31+2*r}, s{30+2*r}")
        a("v_pk_add_f32 v[48:49], v[48:49], v[50:51]")
        for k in range(4):
            a(f"v_pk_add_f32 {vr(52+2*k,2)}, {vr(X(r,2*k),2)}, {sr(30+2*r,2)} neg_lo:[0,1] neg_hi:[0,1]")
        a(f"v_add_f32 v{24+2*r}, v48, v49")
        a("v_pk_mul_f32 v[50:51], v[52:53], v[52:53]")
        a("v_pk_mul_f32 v[48:49], v[54:55], v[54:55]")
        a("v_pk_fma_f32 v[50:51], v[56:57], v[56:57], v[50:51]")
        a("v_pk_fma_f32 v[48:49], v[58:59], v[58:59], v[48:49]")
        a("v_pk_add_f32 v[48:49], v[48:49], v[50:51]")
        a(f"v_add_f32 v{25+2*r}, v48, v49")
    dpp_reduce(a, [24, 25, 26, 27])
    for r in range(2):
        a(f"v_mul_f32 v{24+2*r}, {f32(1.0/512)}, v{24+2*r}")
        a(f"v_mul_f32 v{25+2*r}, {f32(1.0/512)}, v{25+2*r}")
    for r in range(2):
        a(f"v_subrev_f32 v{28+r}, s{30+2*r}, v{24+2*r}")
        bf16_round(a, 24 + 2 * r, 24 + 2 * r)
    for r in range(2):
        a(f"v_fma_f32 v{25+2*r}, -v{28+r}, v{28+r}, v{25+2*r}")
        a(f"v_max_f32 v{25+2*r}, 0, v{25+2*r}")
    for r in range(2):
        bf16_round(a, 25 + 2 * r, 25 + 2 * r)
    for r in range(2):
        a(f"v_add_f32 v{25+2*r}, {f32(1e-5)}, v{25+2*r}")
        a(f"v_readlane_b32 s{36+2*r}, v{24+2*r}, 63")
    for r in range(2):
        bf16_round(a, 25 + 2 * r, 25 + 2 * r)
    for r in range(2):
        a(f"v_sqrt_f32 v{25+2*r}, v{25+2*r}")
    for r in range(2):
        a(f"s_mov_b32 s{37+2*r}, s{36+2*r}")
    for r in range(2):
        bf16_round(a, 25 + 2 * r, 25 + 2 * r)
    for r in range(2):
        a(f"v_rcp_f32 v{25+2*r}, v{25+2*r}")
    for r in range(2):
        for k in range(4):
            a(f"v_pk_add_f32 {vr(X(r,2*k),2)}, {vr(X(r,2*k),2)}, {sr(36+2*r,2)} neg_lo:[0,1] neg_hi:[0,1]")
    for r in range(2):
        a(f"v_readlane_b32 s{40+2*r}, v{25+2*r}, 63")
    for r in range(2):
        for k in range(4):
            a(f"v_cvt_pk_bf16_f32 v{8+4*r+k}, v{X(r,2*k)}, v{X(r,2*k+1)}")
    for r in range(2):
        a(f"s_mov_b32 s{41+2*r}, s{40+2*r}")
    for r in range(2):
        for k in range(4):
            a(f"v_lshlrev_b32 v{X(r,2*k)}, 16, v{8+4*r+k}")
            a(f"v_and_b32 v{X(r,2*k+1)}, 0xffff0000, v{8+4*r+k}")
        for k in range(4):
            a(f"v_pk_mul_f32 {vr(X(r,2*k),2)}, {vr(X(r,2*k),2)}, {sr(40+2*r,2)}")
        for k in range(4):
            a(f"v_cvt_pk_bf16_f32 v{16+4*r+k}, v{X(r,2*k)}, v{X(r,2*k+1)}")
        a(f"ds_write_b128 v4, {vr(16+4*r,4)} offset:{r*LN_STRIDE}")
        a(f"buffer_store_dwordx4 {vr(16+4*r,4)}, v3, s[12:15], s53 offen offset:{r*XN_STRIDE}" + WT["xn"])
    a("s_waitcnt lgkmcnt(0)")
    stamp(a)
    a("s_barrier")
    for blk in range(2):
        for tb in range(2):
            a(f"ds_read_b64_tr_b16 {vr(32+4*blk+2*tb,2)}, v5 offset:{blk*128 + tb*4*LN_STRIDE}")
    a("s_waitcnt lgkmcnt(2)")
    a("buffer_store_dwordx4 v[32:35], v6, s[16:19], s28 offen" + WT["xnt"])
    a("s_waitcnt lgkmcnt(0)")
    a("buffer_store_dwordx4 v[36:39], v6, s[16:19], s29 offen" + WT["xnt"])
    stamp_end(a, 0, 6)
    a("s_endpgm")


def exp_acc(a, dst, x, t):
    a(f"v_mul_f32 v{dst}, {f32(L_HI)}, v{x}")
    a(f"v_exp_f32 v{dst}, v{dst}")
    a(f"v_mul_f32 v{t}, {f32(C_LO)}, v{x}")
    a(f"v_fma_f32 v{dst}, v{dst}, v{t}, v{dst}")


def cmul(t, z, w):
    return [f"v_pk_mul_f32 {vr(t,2)}, {vr(z,2)}, {vr(w,2)} op_sel:[0,0] op_sel_hi:[1,0]",
            f"v_pk_fma_f32 {vr(t,2)}, {vr(z,2)}, {vr(w,2)}, {vr(t,2)} op_sel:[1,1,0] op_sel_hi:[0,1,1] "
            f"neg_lo:[1,0,0]"]


def gen_kgen(a):
    stamp_begin(a)
    a(f"s_load_dwordx8 s[4:11], s[0:1], {KA_LAR}")
    a(f"s_load_dwordx2 s[12:13], s[0:1], {KA_LDT}")
    a(f"s_load_dwordx2 s[14:15], s[0:1], {KA_WS}")
    a("s_and_b32 s41, s2, 7")
    a("s_lshr_b32 s42, s2, 3")
    a("s_lshr_b32 s43, s42, 2")
    a("s_lshl_b32 s43, s43, 6")
    a("s_lshl_b32 s41, s41, 3")
    a("s_add_u32 s41, s41, s43")
    a("s_and_b32 s42, s42, 3")
    a("s_lshl_b32 s42, s42, 1")
    a("s_add_u32 s41, s41, s42")
    a("s_lshr_b32 s45, s44, 1")
    a("s_and_b32 s46, s44, 1")
    a("s_add_u32 s47, s41, s45")
    a("s_lshl_b32 s48, s46, 6")
    a("v_add_u32 v3, s48, v1")
    a("s_lshl_b32 s49, s47, 8")
    a("v_lshlrev_b32 v4, 1, v3")
    a("s_lshl_b32 s50, s47, 1")
    a("v_mov_b32 v5, s50")
    a("s_waitcnt lgkmcnt(0)")
    srd(a, 16, 4, D * N * 2)
    srd(a, 32, 12, D * 2)
    a("buffer_load_ushort v8, v4, s[16:19], s49 offen")
    a("buffer_load_ushort v12, v5, s[32:35], 0 offen")
    srd(a, 20, 6, D * N * 2)
    a("buffer_load_ushort v9, v4, s[20:23], s49 offen")
    srd(a, 24, 8, D * N * 2)
    a("buffer_load_ushort v10, v4, s[24:27], s49 offen")
    srd(a, 28, 10, D * N * 2)
    a("buffer_load_ushort v11, v4, s[28:31], s49 offen")
    srd(a, 36, 14, D * 8192, WS_KR)
    a(f"s_mul_i32 s51, s45, {KG_CH}")
    a("v_lshlrev_b32 v6, 2, v3")
    a("v_add_u32 v6, s51, v6")
    a("v_and_b32 v7, 15, v1")
    a("v_lshrrev_b32 v2, 4, v1")
    a(f"v_mul_u32_u24 v13, {KG_ROW}, v7")
    a("v_lshl_add_u32 v13, v2, 4, v13")
    a("v_add_u32 v100, s51, v13")
    a(f"s_mul_i32 s52, s46, {16*KG_ROW}")
    a("v_add_u32 v101, s52, v100")
    quads = [(0, 1), (4, 1), (256, 2), (512, 256)], [(1536, 256), (516, 256), (4097, 0), (4097, 0)]
    a("s_cmp_eq_u32 s46, 0")
    for q in range(4):
        a(f"s_mov_b32 s64, {f32(float(quads[0][q][0]))}")
        a(f"s_mov_b32 s65, {f32(float(quads[0][q][1]))}")
        a(f"s_cselect_b32 s{56+q}, s64, {f32(float(quads[1][q][0]))}")
        a(f"s_cselect_b32 s{60+q}, s65, {f32(float(quads[1][q][1]))}")
    a("v_mov_b32 v14, s56")
    a("v_mov_b32 v15, s60")
    for q in range(1, 4):
        a(f"v_cmp_eq_u32 vcc, {q}, v2")
        a(f"v_mov_b32 v16, s{56+q}")
        a(f"v_mov_b32 v17, s{60+q}")
        a("v_cndmask_b32 v14, v14, v16, vcc")
        a("v_cndmask_b32 v15, v15, v17, vcc")
    a("v_cvt_f32_u32 v16, v7")
    a("v_fmac_f32 v14, 0x41000000, v16")
    a(f"s_add_u32 s53, s51, {KG_T - 2*T_BIAS}")
    a(f"s_add_u32 s54, s51, {KG_T + 3000}")
    a("v_mov_b32 v19, s54")
    TW = 102
    for jt in range(2):
        for r in range(4):
            p = 20 + 4 * jt + r
            if r == 0:
                a(f"v_mov_b32 v{p}, v14" if jt == 0 else f"v_add_f32 v{p}, 0x43000000, v14")
            else:
                a(f"v_add_f32 v{p}, v{p-1}, v15")
    for i in range(8):
        p, b = 20 + i, TW + i
        a(f"v_cvt_pk_bf16_f32 v{b}, v{p}, v{p}")
        a(f"v_and_b32 v16, 0xffff0000, v{b}")
        a(f"v_cmp_eq_u32 vcc, v16, v{p}")
        a(f"v_and_b32 v{b}, 0xffff, v{b}")
        a(f"v_max_u32 v{b}, {T_BIAS}, v{b}")
        a(f"v_lshl_add_u32 v{b}, v{b}, 1, s53")
        a(f"v_cndmask_b32 v{b}, v19, v{b}, vcc")
    GA = 110
    a("v_lshlrev_b32 v7, 3, v3")
    a("v_sub_u32 v7, 2047, v7")
    a("v_cvt_f32_i32 v14, v7")
    a("v_lshlrev_b32 v130, 4, v3")
    a("s_lshl_b32 s55, s47, 13")
    a("s_add_u32 s56, s55, 4096")
    for ch in range(2):
        for e in range(0, 10, 2):
            b = GA + 10 * ch + e
            a(f"v_subrev_f32 v{b}, {f32(float(e + 1024*ch))}, v14")
            a(f"v_subrev_f32 v{b+1}, {f32(float(e + 1 + 1024*ch))}, v14")
            a(f"v_cvt_pk_bf16_f32 v{b+1}, v{b}, v{b+1}")
            a(f"v_and_b32 v{b}, 0xffff, v{b+1}")
            a(f"v_lshrrev_b32 v{b+1}, 16, v{b+1}")
            for z in (b, b + 1):
                a(f"v_max_u32 v{z}, {T_BIAS}, v{z}")
                a(f"v_min_u32 v{z}, 0x4500, v{z}")
                a(f"v_lshl_add_u32 v{z}, v{z}, 1, s53")
    a("v_cmp_eq_u32 vcc, 127, v3")
    a("v_mov_b32 v14, 0x00003f80")
    a(f"ds_write_b32 v6, v14 offset:{KG_YB}")
    stamp(a)
    a("s_waitcnt vmcnt(3)")
    stamp(a)
    a("v_lshlrev_b32 v12, 16, v12")
    a("v_lshlrev_b32 v8, 16, v8")
    exp_acc(a, 13, 12, 14)
    exp_acc(a, 15, 8, 16)
    bf16_round(a, 13, 13)
    bf16_round(a, 15, 15)
    a("s_waitcnt vmcnt(2)")
    a("v_lshlrev_b32 v9, 16, v9")
    a("v_mul_f32 v15, v15, v13")
    a("v_mul_f32 v16, v9, v13")
    a(f"v_mul_f32 v15, {f32(-LOG2E)}, v15")
    a(f"v_mul_f32 v16, {f32(0.15915494309189535)}, v16")
    seeds = [(1, 20, 1), (256, 22, 1), (8, 24, -1), (64, 26, -1)]
    for i, (p, z, sg) in enumerate(seeds):
        a(f"v_mul_f32 v{32+i}, {f32(float(p))}, v15")
        a(f"v_mul_f32 v{36+i}, {f32(float(p*sg))}, v16")
    for i in range(4):
        a(f"v_exp_f32 v{32+i}, v{32+i}")
        a(f"v_fract_f32 v{36+i}, v{36+i}")
    for i, (p, z, sg) in enumerate(seeds):
        a(f"v_cos_f32 v{z}, v{36+i}")
        a(f"v_sin_f32 v{z+1}, v{36+i}")
    a("s_waitcnt vmcnt(0)")
    a("v_lshlrev_b32 v10, 16, v10")
    a("v_lshlrev_b32 v11, 16, v11")
    a("v_add_f32 v13, v13, v13")
    for i, (p, z, sg) in enumerate(seeds):
        a(f"v_mul_f32 v{z}, v{32+i}, v{z}")
        a(f"v_mul_f32 v{z+1}, v{32+i}, v{z+1}")
    a("v_mul_f32 v28, v10, v13")
    a("v_mul_f32 v29, v11, v13")
    E1, E256, Y8, Y64, C = 20, 22, 24, 26, 28
    E2, E4, Y128, Y192 = 40, 42, 44, 46

    def emit(z, off, t):
        return [f"v_cvt_pk_bf16_f32 v{t}, v{z}, v{z+1}", f"ds_write_b32 v6, v{t} offset:{off}"]

    xrow = lambda q, r: KG_XA + (4 * q + r) * KG_ROW
    yrow = lambda j: KG_YB + j * KG_ROW

    def chain(seed, ratio, offs, ra, rb, t, emit_seed=True):
        ops = []
        cur = seed
        for k, off in enumerate(offs):
            if k:
                nxt = ra if cur != ra else rb
                ops.append(cmul(nxt, cur, ratio))
                cur = nxt
            if k or emit_seed:
                ops.append(emit(cur, off, t))
        return ops

    pre = [cmul(E2, E1, E1), cmul(Y128, Y64, Y64), cmul(48, C, E256), cmul(E4, E2, E2), cmul(Y192, Y128, Y64)]
    for i in range(2):
        for op in pre[:3]:
            a(op[i])
    for i in range(2):
        for op in pre[3:]:
            a(op[i])
    a("\n".join(cmul(50, C, E4)))
    chains = [
        chain(Y8, Y8, [yrow(j) for j in range(1, 8)], 52, 54, 88),
        chain(Y64, Y8, [yrow(j) for j in range(8, 16)], 56, 58, 89),
        chain(Y128, Y8, [yrow(j) for j in range(16, 24)], 60, 62, 90),
        chain(Y192, Y8, [yrow(j) for j in range(24, 32)], 64, 66, 91),
        chain(C, E1, [xrow(0, r) for r in range(4)], 68, 70, 92)
        + chain(48, E2, [xrow(2, r) for r in range(4)], 68, 70, 92),
        chain(50, E1, [xrow(1, r) for r in range(4)], 72, 74, 93),
    ]
    far = []
    cur = 48
    offs = [xrow(3, 0), xrow(3, 1), xrow(3, 2), xrow(3, 3), xrow(4, 0), xrow(4, 1), xrow(4, 2)]
    for k, off in enumerate(offs):
        nxt = 76 if cur != 76 else 78
        far.append(cmul(nxt, cur, E256))
        cur = nxt
        far.append(emit(cur, off, 94))
        if k < 2:
            far.append(cmul(80, cur, E4))
            far.append(emit(80, xrow(5, k), 95))
    chains.append(far)
    while any(chains):
        units = [c.pop(0) for c in chains if c]
        for i in range(2):
            for u in units:
                a(u[i])
    a("s_waitcnt lgkmcnt(0)")
    stamp(a)
    a("s_barrier")
    for ks in range(8):
        a(f"ds_read_b128 {vr(132+4*ks,4)}, v101 offset:{KG_XA + ks*64}")
        a(f"ds_read_b128 {vr(32+4*ks,4)}, v100 offset:{KG_YB + ks*64}")
        a(f"ds_read_b128 {vr(64+4*ks,4)}, v100 offset:{KG_YB + 16*KG_ROW + ks*64}")
    for ks in range(8):
        a(f"s_waitcnt lgkmcnt({min(15, 3*(7-ks))})")
        c0 = "0" if ks == 0 else "v[20:23]"
        c1 = "0" if ks == 0 else "v[24:27]"
        a(f"v_mfma_f32_16x16x32_bf16 v[20:23], {vr(132+4*ks,4)}, {vr(32+4*ks,4)}, {c0}")
        a(f"v_mfma_f32_16x16x32_bf16 v[24:27], {vr(132+4*ks,4)}, {vr(64+4*ks,4)}, {c1}")
    a("s_nop 7")
    for i in range(8):
        a(f"v_cvt_pk_bf16_f32 v{20+i}, v{20+i}, v{20+i}")
        a(f"ds_write_b16 v{TW+i}, v{20+i}")
    a("s_waitcnt lgkmcnt(0)")
    stamp(a)
    a("s_barrier")
    for ch in range(2):
        for e in range(9):
            a(f"ds_read_u16 v{32+16*ch+e}, v{GA+10*ch+e}")
    for ch in range(2):
        a(f"s_waitcnt lgkmcnt({9*(1-ch)})")
        q = 32 + 16 * ch
        if ch == 1:
            a(f"v_cndmask_b32 v{q+8}, v{q+8}, 0, vcc")
        for k in range(4):
            a(f"v_lshl_or_b32 v{64+8*ch+k}, v{q+2*k+1}, 16, v{q+2*k}")
            a(f"v_lshl_or_b32 v{68+8*ch+k}, v{q+2*k+2}, 16, v{q+2*k+1}")
        a(f"buffer_store_dwordx4 {vr(64+8*ch,4)}, v130, s[36:39], s55 offen offset:{2048*ch}" + WT["k"])
        a(f"buffer_store_dwordx4 {vr(68+8*ch,4)}, v130, s[36:39], s56 offen offset:{2048*ch}" + WT["k"])
    stamp_end(a, 0, 14)
    a("s_endpgm")


def gen_k1(a):
    a.raw(".p2align 8")
    a.label("k1_kernel")
    a(f"s_cmp_ge_u32 s2, {N_K1}")
    a("s_cbranch_scc1 k1_exit")
    a("v_lshrrev_b32 v2, 6, v0")
    a("v_and_b32 v1, 63, v0")
    a("v_readfirstlane_b32 s44, v2")
    a("s_cmp_ge_u32 s44, 4")
    a("s_cbranch_scc1 k1_ln")
    gen_kgen(a)
    a.label("k1_ln")
    gen_ln(a)
    a.label("k1_exit")
    a("s_endpgm")


N_G1, N_CV, N_RL = 176, 64, 16
G1_STAGE = 49152
G1_W = 32768
K2_LDS = 3 * G1_STAGE
G1_NST = 8
CV_O, CV_Z, CV_U, CV_W = 4160, 8288, 8304, 12416


def gen_gemm1_loader(a):
    a("s_sub_u32 s30, s30, 4")
    a("v_lshrrev_b32 v3, 3, v1")
    a("v_and_b32 v4, 7, v1")
    a("v_lshrrev_b32 v5, 4, v1")
    a(f"v_mul_u32_u24 v14, {XN_STRIDE}, v3")
    for q in range(4):
        a(f"v_add_u32 v6, {4*q}, v5")
        a("v_and_b32 v6, 7, v6")
        a("v_xor_b32 v6, v6, v4")
        a("v_lshl_add_u32 v6, v6, 4, v14")
        a(f"v_add_u32 v{8+q}, {q*(8*XN_STRIDE-1024)}, v6")
    a("v_and_b32 v6, 1, v5")
    a("v_lshrrev_b32 v7, 2, v4")
    a("v_xor_b32 v6, v6, v7")
    a("v_and_b32 v7, 3, v4")
    a("v_lshlrev_b32 v7, 3, v7")
    a("v_lshl_add_u32 v6, v6, 5, v7")
    a("s_lshl_b32 s31, s29, 6")
    a("v_add_u32 v6, s31, v6")
    a(f"v_mul_u32_u24 v12, {2*F}, v3")
    a("v_lshl_add_u32 v12, v6, 1, v12")
    a(f"v_add_u32 v13, {8*2*F-1024}, v12")
    a(f"v_cmp_le_u32 vcc, {F}, v6")
    a("v_mov_b32 v7, 0x40000000")
    a(f"s_mul_i32 s32, s28, {256*XN_STRIDE}")
    a("v_cndmask_b32 v12, v12, v7, vcc")
    a("v_cndmask_b32 v13, v13, v7, vcc")
    a(f"s_mul_i32 s33, s30, {64*XN_STRIDE}")
    a("s_add_u32 s32, s32, s33")
    a(f"s_add_u32 s36, s32, {32*XN_STRIDE}")
    a(f"s_mul_i32 s33, s30, {16*2*F}")
    a("s_lshl_b32 s34, s30, 13")
    a("s_lshl_b32 s35, s30, 11")
    a(f"s_add_u32 s35, s35, {G1_W}")
    a("s_waitcnt lgkmcnt(0)")
    srd(a, 16, 4, W_BYTES)
    srd(a, 20, 6, W_BYTES)
    srd(a, 12, 8, XN_BYTES, WS_XN)

    def dma(stage, lo=0, hi=12):
        b = (stage % 3) * G1_STAGE
        if lo == 0:
            a(f"s_add_u32 m0, s35, {b}")
            a("s_nop 0")
            a("buffer_load_dwordx4 v12, s[16:19], s33 offen lds")
            a("buffer_load_dwordx4 v13, s[16:19], s33 offen offset:1024 lds")
            a(f"s_add_u32 m0, s35, {b+8192}")
            a("s_nop 0")
            a("buffer_load_dwordx4 v12, s[20:23], s33 offen lds")
            a("buffer_load_dwordx4 v13, s[20:23], s33 offen offset:1024 lds")
            a(f"s_add_u32 s33, s33, {64*2*F}")
        if hi == 12:
            a(f"s_add_u32 m0, s34, {b}")
            a("s_nop 0")
            for q in range(4):
                a(f"buffer_load_dwordx4 v{8+q}, s[12:15], s32 offen offset:{q*1024} lds")
            a(f"s_add_u32 m0, s34, {b+4096}")
            a("s_add_u32 s32, s32, 128")
            for q in range(4):
                a(f"buffer_load_dwordx4 v{8+q}, s[12:15], s36 offen offset:{q*1024} lds")
            a("s_add_u32 s36, s36, 128")

    dma(0)
    dma(1, 0, 4)
    for st in range(G1_NST):
        if st in (0, 3, 4):
            stamp(a)
        a(f"s_waitcnt vmcnt({4 if st == 0 else (12 if st + 1 < G1_NST else 0)})")
        if st in (0, 3, 4):
            stamp(a)
        a("s_barrier")
        if st in (3,):
            stamp(a)
        if st == 0:
            dma(1, 4, 12)
        if st + 2 < G1_NST:
            dma(st + 2)
    stamp_end(a, 1, 8)
    a("s_endpgm")


def gen_gemm1(a):
    stamp_begin(a)
    a(f"s_load_dwordx4 s[4:7], s[0:1], {KA_WG}")
    a(f"s_load_dwordx2 s[8:9], s[0:1], {KA_WS}")
    a("v_and_b32 v1, 63, v0")
    a("v_lshrrev_b32 v2, 6, v0")
    a("s_and_b32 s28, s2, 7")
    a("s_lshr_b32 s29, s2, 3")
    a("v_readfirstlane_b32 s30, v2")
    a("s_cmp_lt_u32 s30, 4")
    a("s_cbranch_scc1 k2_g1_compute")
    gen_gemm1_loader(a)
    a.label("k2_g1_compute")
    _stamp_n[0] = 1 if PROF else 0
    a("v_and_b32 v3, 31, v1")
    a("v_lshrrev_b32 v4, 5, v1")
    a("v_lshrrev_b32 v5, 1, v3")
    a("v_and_b32 v5, 7, v5")
    a("v_xor_b32 v5, v5, v4")
    a("v_lshlrev_b32 v6, 7, v3")
    a("s_lshl_b32 s38, s30, 13")
    a("v_add_u32 v6, s38, v6")
    for ks in range(4):
        a(f"v_xor_b32 v7, {2*ks}, v5")
        a(f"v_lshl_add_u32 v{16+ks}, v7, 4, v6")
    a("v_and_b32 v5, 15, v1")
    a("v_lshrrev_b32 v6, 2, v5")
    a("v_and_b32 v5, 3, v5")
    a("v_lshrrev_b32 v7, 4, v1")
    a("v_and_b32 v7, 1, v7")
    a("v_and_b32 v13, 1, v5")
    a("v_lshlrev_b32 v13, 5, v13")
    a("v_lshl_add_u32 v13, v7, 4, v13")
    a("v_lshrrev_b32 v5, 1, v5")
    a("v_lshl_add_u32 v13, v5, 3, v13")
    a("v_lshrrev_b32 v5, 1, v6")
    a("v_lshl_add_u32 v13, v5, 6, v13")
    a("v_lshl_add_u32 v6, v4, 3, v6")
    a("v_lshl_add_u32 v13, v6, 7, v13")
    a(f"v_add_u32 v20, {G1_W}, v13")
    a("v_xor_b32 v21, 64, v20")
    a("v_mov_b32 v12, 0")
    HS = 144
    a(f"s_mul_i32 s39, s30, {64*HS}")
    a(f"v_mul_u32_u24 v22, {HS}, v3")
    a("v_lshl_add_u32 v22, v4, 5, v22")
    a("v_add_u32 v22, s39, v22")
    a("v_lshrrev_b32 v5, 3, v1")
    a("v_and_b32 v6, 7, v1")
    a(f"v_mul_u32_u24 v23, {HS}, v5")
    a("v_lshl_add_u32 v23, v6, 4, v23")
    a("v_add_u32 v23, s39, v23")
    a(f"v_mul_u32_u24 v14, {H_STRIDE}, v5")
    a("v_lshl_add_u32 v14, v6, 4, v14")
    a("s_lshl_b32 s40, s28, 8")
    a("s_lshl_b32 s41, s30, 6")
    a("s_add_u32 s40, s40, s41")
    a(f"s_mul_i32 s42, s40, {H_STRIDE}")
    a("s_lshl_b32 s43, s29, 7")
    a("s_add_u32 s42, s42, s43")
    a("s_waitcnt lgkmcnt(0)")
    srd(a, 24, 8, H_BYTES, WS_H)

    ACC = lambda w, ft, tt: 128 + 64 * w + 32 * ft + 16 * tt
    FS = [32, 56, 80, 104]

    def reads(n, f):
        ks = n & 3
        out = []
        for w in range(2):
            for ft in range(2):
                o = 8192 * w + ks * 2048
                out.append(f"ds_read_b64_tr_b16 {vr(f+8*w+4*ft,2)}, v{20+ft} offset:{o}")
                out.append(f"ds_read_b64_tr_b16 {vr(f+8*w+4*ft+2,2)}, v{20+ft} offset:{o+512}")
            out.append(f"ds_read_b128 {vr(f+16+4*w,4)}, v{16+ks} offset:{4096*w}")
        return out

    def mfma(n, f, w, ft, tt):
        c = vr(ACC(w, ft, tt), 16)
        return (f"v_mfma_f32_32x32x16_bf16 {c}, {vr(f+8*w+4*ft,4)}, {vr(f+16+4*tt,4)}, "
                f"{'0' if n == 0 else c}")

    def mfmas(n, f):
        return [mfma(n, f, w, ft, tt) for tt in range(2) for w in range(2) for ft in range(2)]

    def boundary(st):
        a("s_waitcnt lgkmcnt(0)")
        a("s_barrier")
        if st in (0, 6, 7):
            stamp(a)
        if st >= 1:
            delta = G1_STAGE if st % 3 else -2 * G1_STAGE
            for r in (16, 17, 18, 19, 20, 21):
                a(f"v_add_u32 v{r}, {delta & 0xffffffff:#x}, v{r}")

    LASTN = 4 * (G1_NST - 1)
    boundary(0)
    for op in reads(0, FS[0]):
        a(op)
    for n in range(LASTN):
        nx = n + 1
        if nx == LASTN:
            break
        if nx & 3 == 0:
            boundary(nx >> 2)
        else:
            a("s_waitcnt lgkmcnt(0)")
        rd = reads(nx, FS[nx & 1])
        cuts = [0, 3, 6, 8, 10, 10, 10, 10, 10]
        for i, m in enumerate(mfmas(n, FS[n & 1])):
            a(m)
            for op in rd[cuts[i]:cuts[i + 1]]:
                a(op)
    n = LASTN - 1
    boundary(G1_NST - 1)
    sets = {LASTN: FS[0], LASTN + 2: FS[2], LASTN + 3: FS[3], LASTN + 1: FS[1]}
    early = reads(LASTN, FS[0]) + reads(LASTN + 2, FS[2]) + reads(LASTN + 3, FS[3])
    mm = mfmas(n, FS[n & 1])
    for i, m in enumerate(mm):
        a(m)
        for op in early[4 * i:4 * i + 4]:
            a(op)
    for op in reads(LASTN + 1, FS[1]):
        a(op)

    def pair_epilogue(ft, tt):
        g, u = ACC(0, ft, tt), ACC(1, ft, tt)
        o = 4 if ft == 0 else 24
        out = []
        for k in range(8):
            out.append(f"v_cvt_pk_bf16_f32 v{g+2*k}, v{g+2*k}, v{g+2*k+1}")
            out.append(f"v_cvt_pk_bf16_f32 v{u+2*k}, v{u+2*k}, v{u+2*k+1}")
        for k in range(8):
            out.append(f"v_max_i16_sdwa v{g+2*k+1}, v{g+2*k}, v12 dst_sel:WORD_0 dst_unused:UNUSED_PAD "
                       "src0_sel:WORD_0 src1_sel:WORD_0")
            out.append(f"v_max_i16_sdwa v{u+2*k+1}, v{g+2*k}, v12 dst_sel:WORD_1 dst_unused:UNUSED_PAD "
                       "src0_sel:WORD_1 src1_sel:WORD_0")
        for k in range(8):
            out.append(f"v_dot2_f32_bf16 v{g+2*k+1}, v{g+2*k+1}, v{u+2*k}, 0")
            out.append(f"v_dot2_f32_bf16 v{u+2*k+1}, v{u+2*k+1}, v{u+2*k}, 0")
        for k in range(8):
            out.append(f"v_cvt_pk_bf16_f32 v{o+k}, v{g+2*k+1}, v{u+2*k+1}")
            if k == 3:
                out.append(f"ds_write_b128 v22, {vr(o,4)} offset:{32*HS*tt + 64*ft}")
        out.append(f"ds_write_b128 v22, {vr(o+4,4)} offset:{32*HS*tt + 64*ft + 16}")
        return out

    def flush(tt, regs):
        rd = [f"ds_read_b128 {vr(regs+4*i,4)}, v23 offset:{8*HS*(4*tt+i)}" for i in range(4)]
        st = []
        for i in range(4):
            st.append(f"s_waitcnt lgkmcnt({3-i})\n"
                      f"buffer_store_dwordx4 {vr(regs+4*i,4)}, v14, s[24:27], s42 offen{WT['h']}\n"
                      f"s_add_u32 s42, s42, {8*H_STRIDE}")
        return rd, st

    order = [(0, 0), (1, 0), (0, 1), (1, 1)]
    korder = [LASTN, LASTN + 2, LASTN + 3, LASTN + 1]
    a("s_waitcnt lgkmcnt(10)")
    for pi, (ft, tt) in enumerate(order):
        if pi < 3:
            stamp(a)
        mm = []
        for kn in korder:
            if pi == 0 and kn == LASTN + 1:
                mm.append("s_waitcnt lgkmcnt(0)\n" + mfma(kn, sets[kn], 0, ft, tt))
            else:
                mm.append(mfma(kn, sets[kn], 0, ft, tt))
            mm.append(mfma(kn, sets[kn], 1, ft, tt))
        fill = ["s_nop 8"] + pair_epilogue(*order[pi - 1]) if pi else []
        if pi == 3:
            rd, st = flush(0, ACC(1, 0, 0))
            fill = ["s_waitcnt lgkmcnt(0)"] + rd + fill[:33] + st + fill[33:]
        lead = 2
        per = -(-len(fill) // (len(mm) - lead)) if fill else 0
        for i, m in enumerate(mm):
            a(m)
            if i >= lead - 1 and fill:
                j = i - (lead - 1)
                for op in fill[j * per:(j + 1) * per]:
                    a(op)
    a("s_nop 15")
    stamp(a)
    for op in pair_epilogue(*order[3]):
        a(op)
    a("s_waitcnt lgkmcnt(0)")
    rd, st = flush(1, ACC(1, 0, 0))
    for op in rd + st:
        a(op)
    stamp_end(a, 1, 8)
    a("s_endpgm")


def gen_conv(a):
    stamp_begin(a)
    a(f"s_load_dwordx2 s[4:5], s[0:1], {KA_DSK}")
    a(f"s_load_dwordx2 s[8:9], s[0:1], {KA_WS}")
    a("v_and_b32 v1, 63, v0")
    a("v_lshrrev_b32 v2, 6, v0")
    a(f"s_sub_u32 s28, s2, {N_G1}")
    a("s_nop 0")
    a("v_readfirstlane_b32 s30, v2")
    a("s_lshl_b32 s28, s28, 3")
    a("s_add_u32 s28, s28, s30")
    a(f"s_mul_i32 s31, s30, {CV_W}")
    a("s_lshl_b32 s32, s28, 13")
    a("s_add_u32 s33, s32, 4096")
    a("s_lshl_b32 s34, s28, 12")
    a("s_lshr_b32 s35, s28, 1")
    a("s_lshl_b32 s35, s35, 2")
    a("v_lshlrev_b32 v3, 4, v1")
    a("s_waitcnt lgkmcnt(0)")
    a("s_load_dword s36, s[4:5], s35")
    srd(a, 12, 8, D * 8192, WS_KR)
    srd(a, 16, 8, XNT_BYTES, WS_XNT)
    srd(a, 20, 8, L * D * 2, WS_AT)
    a(f"s_mul_i32 s44, s28, {XNT_STRIDE}")
    a(f"s_add_u32 m0, s31, {CV_U}")
    a("s_nop 0")
    for q in range(4):
        a(f"buffer_load_dwordx4 v3, s[16:19], s44 offen offset:{q*1024} lds")
    for qs in ((2, 3), (0, 1)):
        a("s_mov_b32 m0, s31")
        a("s_nop 0")
        for q in qs:
            a(f"buffer_load_dwordx4 v3, s[12:15], s32 offen offset:{q*1024} lds")
        a(f"s_add_u32 m0, s31, {CV_O}")
        a("s_nop 0")
        for q in qs:
            a(f"buffer_load_dwordx4 v3, s[12:15], s33 offen offset:{q*1024} lds")
    if CODE_PF:
        a(f"s_sub_u32 s45, s2, {N_G1}")
        a("s_lshr_b32 s45, s45, 3")
        a("s_lshl_b32 s45, s45, 3")
        a("s_add_u32 s45, s45, s30")
        code_prefetch(a, "k3_kernel", "code_end", 45, 3, 200, 48)
    a("v_mov_b32 v4, 0")
    a("v_mov_b32 v5, 0")
    a("v_mov_b32 v6, 0")
    a("v_mov_b32 v7, 0")
    a(f"v_add_u32 v8, 4096, v3")
    a(f"v_add_u32 v9, {CV_O + 4096 - 32}, v3")
    a("v_cmp_gt_u32 vcc, 2, v1")
    a("s_nop 1")
    a("v_cndmask_b32 v8, v9, v8, vcc")
    a("v_add_u32 v8, s31, v8")
    a("v_cmp_gt_u32 vcc, 5, v1")
    a("s_and_saveexec_b64 s[38:39], vcc")
    a("ds_write_b128 v8, v[4:7]")
    a("s_mov_b64 exec, s[38:39]")
    a("v_and_b32 v4, 15, v1")
    a("v_lshrrev_b32 v5, 4, v1")
    a("v_lshlrev_b32 v6, 3, v5")
    a("v_sub_u32 v6, v6, v4")
    a("v_lshlrev_b32 v6, 1, v6")
    a("v_and_b32 v7, 1, v4")
    a(f"v_mov_b32 v8, {CV_O + 2*2030}")
    a(f"v_mov_b32 v9, {2*2031}")
    a("v_cmp_eq_u32 vcc, 1, v7")
    a("s_nop 1")
    a("v_cndmask_b32 v8, v8, v9, vcc")
    a("v_add_u32 v6, v6, v8")
    a("v_add_u32 v6, s31, v6")
    for P in range(4):
        a(f"v_subrev_u32 v{10+P}, {512*(2*P+1)+448}, v6")
    a("v_lshlrev_b32 v7, 5, v4")
    a("v_lshl_add_u32 v7, v5, 4, v7")
    a(f"s_add_u32 s37, s31, {CV_U - 32 - 448}")
    a("v_add_u32 v14, s37, v7")
    a(f"s_add_u32 s40, s31, {CV_Z}")
    for rho in range(8):
        a(f"v_add_u32 v{16+rho}, {64*(7-rho)}, v14")
        a(f"v_max_i32 v{16+rho}, s40, v{16+rho}")
    a("v_lshlrev_b32 v24, 5, v4")
    a("v_lshl_add_u32 v24, v5, 3, v24")
    a(f"s_add_u32 s41, s31, {CV_U}")
    a("v_add_u32 v25, s41, v24")

    ACC = 32
    SET = [64, 112]

    def loads(ph, rho):
        s = SET[rho & 1]
        out = []
        for m in range(8 if ph == 0 else 4):
            if m == 0:
                out.append(f"ds_read_b128 {vr(s+16,4)}, v{16+rho}")
            else:
                out.append(f"ds_read_b128 {vr(s+16+4*m,4)}, v14 offset:{512*m + 64*(7-rho)}")
            if m < 4:
                i = 4 * ph + m
                o = (64 * (7 - rho) + (0 if i & 1 else 512)) // 4
                out.append(f"ds_read2_b32 {vr(s+4*m,2)}, v{10+(i>>1)} offset0:{o} offset1:{o+1}")
                out.append(f"ds_read2_b32 {vr(s+4*m+2,2)}, v{10+(i>>1)} offset0:{o+2} offset1:{o+3}")
        return out

    def mfma(ph, rho, i, m):
        s = SET[rho & 1]
        c = vr(ACC + 4 * (i + m), 4)
        first = ph == 0 and rho == 0 and i == 0
        return (f"v_mfma_f32_16x16x32_bf16 {c}, {vr(s+4*(i-4*ph),4)}, {vr(s+16+4*m,4)}, "
                f"{'0' if first else c}")

    def mfmas(ph, rho):
        return [mfma(ph, rho, i, m) for i in range(4 * ph, 4 * ph + 4) for m in range(8 - i)]

    stamp(a)
    a(f"s_waitcnt vmcnt({5 if CODE_PF else 4}) lgkmcnt(0)")
    stamp(a)
    a("s_and_b32 s42, s28, 1")
    a("s_lshl_b32 s43, s36, 16")
    a("s_and_b32 s36, s36, 0xffff0000")
    a("s_cmp_eq_u32 s42, 0")
    a("s_cselect_b32 s36, s43, s36")
    for op in loads(0, 0):
        a(op)

    UREG = SET[0] + 32

    def tile_epilogue(t):
        y = ACC + 4 * t
        u = UREG + 2 * t
        w = 2 if t & 1 else SET[1] + 32
        return [f"v_lshlrev_b32 v{w}, 16, v{u}",
                f"v_and_b32 v{w+1}, 0xffff0000, v{u}",
                f"v_lshlrev_b32 v{w+2}, 16, v{u+1}",
                f"v_and_b32 v{w+3}, 0xffff0000, v{u+1}",
                f"v_pk_mul_f32 {vr(w,2)}, {vr(w,2)}, s[36:37]",
                f"v_pk_mul_f32 {vr(w+2,2)}, {vr(w+2,2)}, s[36:37]",
                f"v_cvt_pk_bf16_f32 v{u}, v{w}, v{w+1}",
                f"v_cvt_pk_bf16_f32 v{u+1}, v{w+2}, v{w+3}",
                f"v_cvt_pk_bf16_f32 v{w+5}, v{y}, v{y+1}",
                f"v_cvt_pk_bf16_f32 v{w+7}, v{y+2}, v{y+3}",
                f"v_lshlrev_b32 v{w}, 16, v{u}",
                f"v_and_b32 v{w+1}, 0xffff0000, v{u}",
                f"v_lshlrev_b32 v{w+2}, 16, v{u+1}",
                f"v_and_b32 v{w+3}, 0xffff0000, v{u+1}",
                f"v_lshlrev_b32 v{w+4}, 16, v{w+5}",
                f"v_and_b32 v{w+5}, 0xffff0000, v{w+5}",
                f"v_lshlrev_b32 v{w+6}, 16, v{w+7}",
                f"v_and_b32 v{w+7}, 0xffff0000, v{w+7}",
                f"v_pk_add_f32 {vr(w,2)}, {vr(w,2)}, {vr(w+4,2)}",
                f"v_pk_add_f32 {vr(w+2,2)}, {vr(w+2,2)}, {vr(w+6,2)}",
                f"v_cvt_pk_bf16_f32 v{u}, v{w}, v{w+1}",
                f"v_cvt_pk_bf16_f32 v{u+1}, v{w+2}, v{w+3}",
                f"buffer_store_dwordx2 {vr(u,2)}, v24, s[20:23], s34 offen offset:{512*t}" + WT["at"]]

    a("s_mov_b32 s37, s36")
    for rho in range(8):
        a("s_waitcnt lgkmcnt(0)" if rho < 7 else "s_waitcnt vmcnt(0) lgkmcnt(0)")
        nxt = loads(0, rho + 1) if rho < 7 else loads(1, 0)
        if rho == 7:
            nxt += [f"ds_read_b64 {vr(UREG+2*t,2)}, v25 offset:{512*t}" for t in range(8)]
        for op in interleave(mfmas(0, rho), nxt):
            a(op)
    for rho in range(7):
        a("s_waitcnt lgkmcnt(0)")
        fill = loads(1, rho + 1)
        if 1 <= rho <= 4:
            fill = interleave(fill, tile_epilogue(rho - 1), every=1)
        mm = mfmas(1, rho)
        per = -(-len(fill) // len(mm))
        for i, m in enumerate(mm):
            a(m)
            for op in fill[i * per:(i + 1) * per]:
                a(op)
    a("s_waitcnt lgkmcnt(0)")
    seq = {t: [mfma(1, 7, i, t - i) for i in range(4, t + 1)] for t in range(4, 8)}
    for op in seq[4] + seq[5] + seq[6]:
        a(op)
    e4 = tile_epilogue(4)
    for i, m in enumerate(seq[7]):
        a(m)
        for op in e4[6 * i:6 * i + 6]:
            a(op)
    stamp(a)
    for op in interleave(tile_epilogue(5), tile_epilogue(6)) + tile_epilogue(7):
        a(op)
    stamp_end(a, 1, 8)
    a("s_endpgm")


def gen_relayout(a):
    a(f"s_load_dwordx2 s[4:5], s[0:1], {KA_WD}")
    a(f"s_load_dwordx2 s[8:9], s[0:1], {KA_WS}")
    a("v_and_b32 v1, 63, v0")
    a("v_lshrrev_b32 v2, 6, v0")
    a(f"s_sub_u32 s28, s2, {N_G1 + N_CV}")
    a("s_mul_i32 s28, s28, 88")
    a("v_readfirstlane_b32 s30, v2")
    a("v_lshlrev_b32 v3, 4, v1")
    a("s_add_u32 s28, s28, s30")
    a("s_lshr_b32 s31, s28, 1")
    a("s_and_b32 s31, s31, 1")
    a("s_lshl_b32 s31, s31, 2")
    a("v_and_b32 v4, 7, v1")
    a("v_xor_b32 v4, s31, v4")
    a("v_lshrrev_b32 v5, 3, v1")
    a(f"s_mov_b32 s32, {WDT_TILE}")
    a("v_mul_lo_u32 v5, v5, s32")
    a("v_lshl_add_u32 v4, v4, 4, v5")
    a("s_lshl_b32 s33, s28, 10")
    a("s_lshl_b32 s34, s28, 7")
    a("s_waitcnt lgkmcnt(0)")
    srd(a, 12, 4, W_BYTES)
    srd(a, 16, 8, 8 * WDT_TILE, WS_WDT)
    for i in range(11):
        a(f"buffer_load_dwordx4 {vr(8+4*i,4)}, v3, s[12:15], s33 offen")
        a("s_add_u32 s33, s33, 8192")
    for i in range(11):
        a(f"s_waitcnt vmcnt(10)")
        a(f"buffer_store_dwordx4 {vr(8+4*i,4)}, v4, s[16:19], s34 offen offset:{(i%4)*1024}" + WT["wdt"])
        if i % 4 == 3:
            a("s_add_u32 s34, s34, 4096")
    a("s_endpgm")


def gen_k2(a):
    a.raw(".p2align 8")
    a.label("k2_kernel")
    a(f"s_cmp_ge_u32 s2, {N_G1 + N_CV + N_RL}")
    a("s_cbranch_scc1 k2_exit")
    a(f"s_cmp_ge_u32 s2, {N_G1 + N_CV}")
    a("s_cbranch_scc1 k2_relayout")
    a(f"s_cmp_ge_u32 s2, {N_G1}")
    a("s_cbranch_scc1 k2_conv")
    gen_gemm1(a)
    a.label("k2_conv")
    gen_conv(a)
    a.label("k2_relayout")
    gen_relayout(a)
    a.label("k2_exit")
    a("s_endpgm")


N_G2 = 256
G2_NS = 8
G2_STAGE = 16384
G2_AT = G2_NS * G2_STAGE
K3_LDS = G2_AT + 8192
G2_NST = FP // 64
G2_LEAD = 4


def gen_k3(a):
    a.raw(".p2align 8")
    a.label("k3_kernel")
    a(f"s_cmp_ge_u32 s2, {N_G2}")
    a("s_cbranch_scc1 k3_exit")
    stamp_begin(a)
    a(f"s_load_dwordx2 s[4:5], s[0:1], {KA_U}")
    a(f"s_load_dwordx4 s[8:11], s[0:1], {KA_WD}")
    a(f"s_load_dwordx2 s[6:7], s[0:1], {KA_WS}")
    a("v_and_b32 v1, 63, v0")
    a("v_lshrrev_b32 v2, 6, v0")
    a("s_and_b32 s32, s2, 7")
    a("s_lshr_b32 s33, s2, 3")
    a("v_readfirstlane_b32 s34, v2")
    a("s_lshl_b32 s32, s32, 8")
    a("s_and_b32 s35, s33, 3")
    a("s_lshl_b32 s35, s35, 6")
    a("s_add_u32 s32, s32, s35")
    a("s_lshr_b32 s33, s33, 2")
    a("s_lshl_b32 s33, s33, 6")
    a("s_cmp_lt_u32 s34, 4")
    a("s_cbranch_scc1 k3_compute")
    a("s_sub_u32 s34, s34, 4")
    a("v_lshrrev_b32 v3, 3, v1")
    a("v_and_b32 v4, 7, v1")
    a("v_lshrrev_b32 v5, 4, v1")
    a(f"v_mul_u32_u24 v7, {H_STRIDE}, v3")
    a("s_lshl_b32 s36, s34, 2")
    a("v_add_u32 v6, s36, v5")
    a("v_and_b32 v6, 7, v6")
    a("v_xor_b32 v6, v6, v4")
    a("v_lshl_add_u32 v8, v6, 4, v7")
    a("v_and_b32 v6, 1, v5")
    a("v_lshlrev_b32 v6, 2, v6")
    a("v_xor_b32 v6, v6, v4")
    a("v_lshlrev_b32 v6, 4, v6")
    a("v_lshlrev_b32 v10, 4, v1")
    a("v_lshl_add_u32 v12, v3, 12, v6")
    a("s_lshl_b32 s36, s34, 3")
    a("s_add_u32 s37, s36, s32")
    a(f"s_mul_i32 s37, s37, {H_STRIDE}")
    a(f"s_mul_i32 s38, s33, {WDT_TILE // 64}")
    a("s_lshl_b32 s39, s34, 10")
    a("s_add_u32 s38, s38, s39")
    a("s_add_u32 s39, s36, s33")
    a("s_lshl_b32 s39, s39, 12")
    a("s_lshl_b32 s40, s32, 1")
    a("s_add_u32 s39, s39, s40")
    a("s_lshl_b32 s40, s34, 10")
    a("s_waitcnt lgkmcnt(0)")
    srd(a, 16, 6, 8 * WDT_TILE, WS_WDT)
    srd(a, 12, 6, H_BYTES, WS_H)
    srd(a, 20, 6, L * D * 2, WS_AT)

    def dma(stage):
        b = (stage % G2_NS) * G2_STAGE
        a(f"s_add_u32 m0, s40, {b+8192}")
        a("s_nop 0")
        a("buffer_load_dwordx4 v10, s[16:19], s38 offen lds")
        a(f"s_add_u32 m0, s40, {b}")
        a("s_add_u32 s38, s38, 8192")
        a("buffer_load_dwordx4 v8, s[12:15], s37 offen lds")
        a("s_add_u32 s37, s37, 128")

    AT_AFTER = 3
    issued = 0
    for st in range(G2_NST):
        want = min(G2_NST - 1, 2 * st + 2, st + G2_LEAD)
        while issued <= want:
            dma(issued)
            if issued == AT_AFTER:
                a(f"s_add_u32 m0, s40, {G2_AT}")
                a("s_nop 0")
                a("buffer_load_dwordx4 v12, s[20:23], s39 offen lds")
            issued += 1
        vm = 2 * (issued - 1 - st) + (1 if st <= AT_AFTER < issued else 0)
        if st in (0, 8, 16):
            stamp(a)
        a(f"s_waitcnt vmcnt({vm})")
        a("s_barrier")
    stamp_end(a, 2, 6)
    a("s_endpgm")
    a.label("k3_compute")
    _stamp_n[0] = 1 if PROF else 0
    a("s_and_b32 s41, s34, 1")
    a("s_lshr_b32 s42, s34, 1")
    a("v_and_b32 v3, 31, v1")
    a("v_lshrrev_b32 v4, 5, v1")
    a("s_lshl_b32 s43, s41, 5")
    a("s_add_u32 s43, s43, s32")
    a("v_add_u32 v14, s43, v3")
    a("v_lshlrev_b32 v14, 10, v14")
    a("v_lshl_add_u32 v14, v4, 5, v14")
    a("s_lshl_b32 s44, s42, 5")
    a("s_add_u32 s44, s44, s33")
    a("s_lshl_b32 s44, s44, 1")
    a("v_lshrrev_b32 v5, 1, v3")
    a("v_and_b32 v5, 7, v5")
    a("v_xor_b32 v5, v5, v4")
    a("v_lshlrev_b32 v6, 7, v3")
    a("s_lshl_b32 s45, s41, 12")
    a("v_add_u32 v6, s45, v6")
    for ks in range(4):
        a(f"v_xor_b32 v7, {2*ks}, v5")
        a(f"v_lshl_add_u32 v{16+ks}, v7, 4, v6")
    a("v_and_b32 v5, 15, v1")
    a("v_lshrrev_b32 v6, 2, v5")
    a("v_and_b32 v5, 3, v5")
    a("v_lshrrev_b32 v7, 4, v1")
    a("v_and_b32 v7, 1, v7")
    a("v_lshlrev_b32 v21, 3, v5")
    a("v_lshl_add_u32 v21, v7, 5, v21")
    a("v_lshrrev_b32 v22, 1, v6")
    a("v_xor_b32 v23, s41, v22")
    a("v_lshl_add_u32 v21, v23, 6, v21")
    a("v_lshl_add_u32 v23, v4, 4, v6")
    a("v_lshl_add_u32 v21, v23, 7, v21")
    a("s_lshl_b32 s45, s42, 12")
    a(f"s_add_u32 s45, s45, {G2_AT}")
    a("v_add_u32 v21, s45, v21")
    a("v_and_b32 v15, 1, v5")
    a("v_lshlrev_b32 v15, 5, v15")
    a("v_lshl_add_u32 v15, v7, 4, v15")
    a("v_lshrrev_b32 v5, 1, v5")
    a("v_lshl_add_u32 v15, v5, 3, v15")
    a("v_xor_b32 v22, s42, v22")
    a("v_lshl_add_u32 v15, v22, 6, v15")
    a("v_lshl_add_u32 v6, v4, 3, v6")
    a("v_lshl_add_u32 v15, v6, 7, v15")
    a("v_add_u32 v20, 8192, v15")
    a("s_waitcnt lgkmcnt(0)")
    srd(a, 24, 4, L * D * 2)
    srd(a, 28, 10, L * D * 2)
    a("buffer_load_dwordx4 v[24:27], v14, s[24:27], s44 offen")
    a("buffer_load_dwordx4 v[28:31], v14, s[24:27], s44 offen offset:16")

    ACC = 32
    FS = [48, 80]
    XA = 112
    ATR = 128
    AT_ST = 10

    def reads(st):
        f = FS[st & 1]
        o = (st % 4) * G2_STAGE
        out = []
        for ks in range(4):
            out.append(f"ds_read_b64_tr_b16 {vr(f+8*ks,2)}, v20 offset:{o+ks*2048}")
            out.append(f"ds_read_b64_tr_b16 {vr(f+8*ks+2,2)}, v20 offset:{o+ks*2048+512}")
            out.append(f"ds_read_b128 {vr(f+8*ks+4,4)}, v{16+ks} offset:{o}")
        return out

    def mfmas(st):
        f = FS[st & 1]
        c = vr(ACC, 16)
        return [f"v_mfma_f32_32x32x16_bf16 {c}, {vr(f+8*ks,4)}, {vr(f+8*ks+4,4)}, "
                f"{'0' if st == 0 and ks == 0 else c}" for ks in range(4)]

    def xa_ops(k):
        x, t = XA + 2 * k, 4
        return [f"v_lshlrev_b32 v{x}, 16, v{24+k}",
                f"v_and_b32 v{x+1}, 0xffff0000, v{24+k}",
                f"v_lshlrev_b32 v{t}, 16, v{ATR+k}",
                f"v_and_b32 v{t+1}, 0xffff0000, v{ATR+k}",
                f"v_pk_add_f32 {vr(x,2)}, {vr(x,2)}, {vr(t,2)}",
                f"v_cvt_pk_bf16_f32 v{x+1}, v{x}, v{x+1}",
                f"v_lshlrev_b32 v{x}, 16, v{x+1}",
                f"v_and_b32 v{x+1}, 0xffff0000, v{x+1}"]

    for st in range(-1, G2_NST):
        nx = st + 1
        body = []
        if nx < G2_NST:
            if nx in (0, 8, 16):
                stamp(a)
            a("s_waitcnt lgkmcnt(0)" if nx != AT_ST + 1 else "s_waitcnt vmcnt(0) lgkmcnt(0)")
            a("s_barrier")
            if nx and nx % 4 == 0:
                delta = 65536 if (nx % G2_NS) == 4 else -65536
                for r in (16, 17, 18, 19, 20):
                    a(f"v_add_u32 v{r}, {delta & 0xffffffff:#x}, v{r}")
            body = reads(nx)
            if nx == AT_ST:
                body += [f"ds_read_b64_tr_b16 {vr(ATR+2*i,2)}, v21 offset:{512*i}" for i in range(4)]
        else:
            a("s_waitcnt lgkmcnt(0)")
        if st >= 0:
            body = interleave(body, mfmas(st), every=3) if body else mfmas(st)
        if AT_ST < nx <= AT_ST + 4:
            k = 2 * (nx - AT_ST - 1)
            body += xa_ops(k) + xa_ops(k + 1)
        for op in body:
            a(op)
    a("s_nop 15")
    stamp(a)
    for k in range(8):
        a(f"v_cvt_pk_bf16_f32 v{48+k}, v{ACC+2*k}, v{ACC+2*k+1}")
    for k in range(8):
        a(f"v_lshlrev_b32 v{ACC+2*k}, 16, v{48+k}")
        a(f"v_and_b32 v{ACC+2*k+1}, 0xffff0000, v{48+k}")
    for k in range(8):
        a(f"v_pk_add_f32 {vr(ACC+2*k,2)}, {vr(ACC+2*k,2)}, {vr(XA+2*k,2)}")
    for k in range(8):
        a(f"v_cvt_pk_bf16_f32 v{56+k}, v{ACC+2*k}, v{ACC+2*k+1}")
        if k == 3:
            a("buffer_store_dwordx4 v[56:59], v14, s[28:31], s44 offen" + WT["out"])
    a("buffer_store_dwordx4 v[60:63], v14, s[28:31], s44 offen offset:16" + WT["out"])
    stamp_end(a, 2, 6)
    a.label("k3_exit")
    a("s_endpgm")


def gen_k4(a):
    a.raw(".p2align 8")
    a.label("k4_kernel")
    a("s_cmp_ge_u32 s2, 1")
    a("s_cbranch_scc1 k4_exit")
    a(f"s_load_dwordx4 s[4:7], s[0:1], {KA_DBG}")
    a("s_memrealtime s[20:21]")
    a("s_waitcnt lgkmcnt(0)")
    srd(a, 8, 6, 0x1000000, PROF_BASE)
    srd(a, 12, 4, 256)
    groups = [(0, 0, 256, 0, 4), (0, 0, 256, 4, 8), (1, 0, 176, 0, 4), (1, 176, 240, 0, 8), (2, 0, 256, 0, 4)]
    for gi, (l, lo, hi, w0, w1) in enumerate(groups):
        a("v_mov_b32 v4, -1")
        a("v_mov_b32 v5, 0")
        for base in range(lo, hi, 64):
            n = min(64, hi - base)
            a(f"v_min_u32 v2, {n-1}, v0")
            a(f"v_add_u32 v2, {l*512 + base}, v2")
            a("v_lshlrev_b32 v2, 10, v2")
            for w in range(w0, w1):
                a(f"buffer_load_dwordx2 {vr(8+2*(w-w0),2)}, v2, s[8:11], 0 offen offset:{64*w}")
            a("s_waitcnt vmcnt(0)")
            for w in range(w0, w1):
                a(f"v_min_u32 v4, v4, v{8+2*(w-w0)}")
                a(f"v_max_u32 v5, v5, v{9+2*(w-w0)}")
        a("s_mov_b32 s22, -1")
        a("s_mov_b32 s23, 0")
        for ln in range(64):
            a(f"v_readlane_b32 s24, v4, {ln}")
            a(f"v_readlane_b32 s25, v5, {ln}")
            a("s_nop 1")
            a("s_min_u32 s22, s22, s24")
            a("s_max_u32 s23, s23, s25")
        a(f"s_mov_b32 s{30+2*gi}, s22")
        a(f"s_mov_b32 s{31+2*gi}, s23")
    a("v_mov_b32 v3, 0")
    for i in range(10):
        a(f"s_sub_u32 s24, s{30+i}, s30")
        a("v_mov_b32 v6, s24")
        a(f"buffer_store_dword v6, v3, s[12:15], 0 offen offset:{4*i}")
        a("s_nop 1")
    a("s_sub_u32 s24, s20, s30")
    a("v_mov_b32 v6, s24")
    a("buffer_store_dword v6, v3, s[12:15], 0 offen offset:40")
    if SPIN:
        hi, lo = SPIN
        a("s_max_u32 s31, s31, s33")
        a("s_min_u32 s34, s34, s36")
        a("s_max_u32 s35, s35, s37")
        a(f"s_sub_u32 s24, s{hi}, s{lo}")
        a("s_min_u32 s24, s24, 3000")
        a("s_lshl_b32 s24, s24, 2")
        a("s_memrealtime s[26:27]")
        a("s_waitcnt lgkmcnt(0)")
        a("s_add_u32 s24, s24, s26")
        a.label("k4_spin")
        a("s_memrealtime s[26:27]")
        a("s_waitcnt lgkmcnt(0)")
        a("s_sub_u32 s25, s24, s26")
        a("s_cmp_gt_i32 s25, 0")
        a("s_cbranch_scc1 k4_spin")
    a.label("k4_exit")
    a("s_endpgm")


def descriptor(name, vgpr, sgpr):
    acc = (vgpr + 3) // 4 * 4
    return f""".p2align 6
.amdhsa_kernel {name}
  .amdhsa_next_free_vgpr {vgpr}
  .amdhsa_next_free_sgpr {sgpr}
  .amdhsa_accum_offset {acc}
  .amdhsa_group_segment_fixed_size 0
  .amdhsa_kernarg_size 112
  .amdhsa_user_sgpr_count 2
  .amdhsa_user_sgpr_kernarg_segment_ptr 1
  .amdhsa_system_sgpr_workgroup_id_x 1
.end_amdhsa_kernel
"""


def main(path):
    a = Asm()
    a.raw(f"; @launch kernel=k1_kernel grid=({N_K1},1,1) block=(512,1,1) lds={K1_LDS}")
    a.raw(f"; @launch kernel=k2_kernel grid=({N_G1+N_CV+N_RL},1,1) block=(512,1,1) lds={K2_LDS}")
    a.raw(f"; @launch kernel=k3_kernel grid=({N_G2},1,1) block=(768,1,1) lds={K3_LDS}")
    if K4:
        a.raw("; @launch kernel=k4_kernel grid=(1,1,1) block=(64,1,1) lds=0")
    a.raw('.amdgcn_target "amdgcn-amd-amdhsa--gfx950"')
    a.raw(".text")
    for k in ("k1_kernel", "k2_kernel", "k3_kernel") + (("k4_kernel",) if K4 else ()):
        a.raw(f".globl {k}")
        a.raw(f".type {k},@function")
    gen_k1(a)
    gen_k2(a)
    gen_k3(a)
    a.label("code_end")
    if K4:
        gen_k4(a)
    a.raw('.section .rodata,"a"')
    if K4:
        a.raw(descriptor("k4_kernel", 32, 48))
    sg = 102 if PROF else 0
    a.raw(descriptor("k1_kernel", 164, max(sg, 74)))
    a.raw(descriptor("k2_kernel", 256, max(sg, 56)))
    a.raw(descriptor("k3_kernel", 136, max(sg, 56)))
    open(path, "w").write(a.text())


if __name__ == "__main__":
    for arg in list(sys.argv):
        if arg.startswith("--spin="):
            SPIN = tuple(int(x) for x in arg[7:].split(","))
            sys.argv.remove(arg)
        if arg.startswith("--wt="):
            flag, names = arg[5:].split(":")
            for nm in names.split(","):
                WT[nm] = " " + flag.replace("+", " ")
            sys.argv.remove(arg)
        if arg.startswith("--epi="):
            EPI = arg[6:]
            sys.argv.remove(arg)
    if "--nocodepf" in sys.argv:
        sys.argv.remove("--nocodepf")
        CODE_PF = False
    if "--notouch" in sys.argv:
        sys.argv.remove("--notouch")
        TOUCH = False
    if "--k4" in sys.argv:
        sys.argv.remove("--k4")
        K4 = PROF = True
    if "--prof" in sys.argv:
        sys.argv.remove("--prof")
        PROF = True
    main(sys.argv[1] if len(sys.argv) > 1 else f"cdna_kernels/{NAME}.s")
```

```python
import struct
import sys

NAME = "parallel_sum__ssm_conv_s4d__glu_gated_reglu__prompt"

L, D, N, F = 2048, 512, 128, 1376
FP = 1408
WS_XN = 0x000000
WS_XNT = 0x240000
WS_KR = 0x480000
WS_H = 0x880000
WS_AT = 0xE80000
XN_STRIDE = 1024 + 128
XN_BYTES = L * XN_STRIDE
H_STRIDE = 2 * FP + 128
H_BYTES = L * H_STRIDE
XNT_STRIDE = 8192 + 128
XNT_BYTES = (L // 8) * XNT_STRIDE
W_BYTES = D * F * 2
WS_WDT = WS_AT + L * D * 2
WDT_TILE = FP * 128
WS_END = WS_WDT + 8 * WDT_TILE
TOUCH = False
CODE_PF = True
EPI = "dot"
WT = dict(xn="", xnt="", k="", at="", wdt="", h="", out="")

KA_U, KA_LAR, KA_AI, KA_CR, KA_CI, KA_LDT, KA_DSK, KA_BX, KA_WG, KA_WU, KA_WD, KA_OUT, KA_DBG, KA_WS = \
    [8 * i for i in range(14)]


def f32(x):
    return "0x%08x" % struct.unpack("<I", struct.pack("<f", x))[0]


class Asm:
    def __init__(self):
        self.lines = []

    def __call__(self, s):
        for ln in s.strip("\n").split("\n"):
            self.lines.append("  " + ln.strip())

    def label(self, s):
        self.lines.append(s + ":")

    def raw(self, s):
        self.lines.append(s)

    def text(self):
        return "\n".join(self.lines) + "\n"


PROF = False
K4 = False
SPIN = None
PROF_BASE = 0x1400000
_stamp_n = [0]


def stamp_begin(a):
    _stamp_n[0] = 0
    if PROF:
        a("s_memrealtime s[80:81]")
        a("s_memtime s[82:83]")
        _stamp_n[0] = 1


def stamp(a):
    if PROF:
        k = _stamp_n[0]
        a(f"s_memtime s[{82+2*k}:{83+2*k}]")
        _stamp_n[0] += 1


def stamp_end(a, launch, ws_lo):
    if not PROF:
        return
    stamp(a)
    n = _stamp_n[0]
    a("s_waitcnt lgkmcnt(0)")
    a("s_memrealtime s[98:99]")
    a(f"s_add_u32 s76, s{ws_lo}, {PROF_BASE}")
    a(f"s_addc_u32 s77, s{ws_lo+1}, 0")
    a("s_mov_b32 s78, 0x1000000")
    a("s_mov_b32 s79, 0x00020000")
    a("v_lshrrev_b32 v2, 6, v0")
    a(f"s_add_u32 s75, s2, {launch*512}")
    a("s_lshl_b32 s75, s75, 10")
    a("v_lshlrev_b32 v2, 6, v2")
    a("v_add_u32 v2, s75, v2")
    a("s_waitcnt lgkmcnt(0)")
    a("v_mov_b32 v4, s80")
    a("v_mov_b32 v5, s98")
    a("buffer_store_dwordx2 v[4:5], v2, s[76:79], 0 offen")
    for k in range(n):
        a(f"v_mov_b32 v6, s{82+2*k}")
        a(f"buffer_store_dword v6, v2, s[76:79], 0 offen offset:{8+4*k}")
        a("s_nop 1")


def vr(b, n):
    return "v[%d:%d]" % (b, b + n - 1)


def sr(b, n):
    return "s[%d:%d]" % (b, b + n - 1)


def srd(a, dst, base, nbytes, add=0):
    if add:
        a(f"s_add_u32 s{dst}, s{base}, {add}")
        a(f"s_addc_u32 s{dst+1}, s{base+1}, 0")
    else:
        a(f"s_mov_b32 s{dst}, s{base}")
        a(f"s_mov_b32 s{dst+1}, s{base+1}")
    a(f"s_mov_b32 s{dst+2}, {nbytes}")
    a(f"s_mov_b32 s{dst+3}, 0x00020000")


_pc_n = [0]


def code_prefetch(a, lo, hi, slice_sgpr, lane16, dst, sbase):
    _pc_n[0] += 1
    lab = f"pc_ref{_pc_n[0]}"
    a(f"s_getpc_b64 {sr(sbase,2)}")
    a.label(lab)
    a(f"s_add_u32 s{sbase}, s{sbase}, ({lo} - {lab}) & 0xffffffff")
    a(f"s_addc_u32 s{sbase+1}, s{sbase+1}, (({lo} - {lab}) >> 32) & 0xffffffff")
    a(f"s_mov_b32 s{sbase+2}, {hi} - {lo}")
    a(f"s_mov_b32 s{sbase+3}, 0x00020000")
    a(f"s_lshl_b32 s{slice_sgpr}, s{slice_sgpr}, 10")
    a(f"buffer_load_dwordx4 {vr(dst,4)}, v{lane16}, {sr(sbase,4)}, s{slice_sgpr} offen")


def interleave(main, fill, every=1, start=0):
    out = []
    fill = list(fill)
    for i, m in enumerate(main):
        out.append(m)
        if i >= start and (i - start) % every == every - 1 and fill:
            out.append(fill.pop(0))
    out.extend(fill)
    return out


N_K1 = 256
LN_STRIDE = 1088
KG_ROW = 544
KG_XA, KG_YB, KG_T = 0, 24 * KG_ROW, 56 * KG_ROW
KG_CH = KG_T + 3072
LN_LDS = 2 * KG_CH
K1_LDS = LN_LDS + 8 * LN_STRIDE
LOG2E = 1.4426950408889634
L_HI = 47274.0 / 32768.0
C_LO = (LOG2E - L_HI) * 0.6931471805599453
T_BIAS = 0x3F7F
KT_BYTES = 3072
KT_O, KT_TAB = 1024, 2048
PF_W = 6


def dpp_reduce(a, regs):
    steps = ["row_shr:1 row_mask:0xf bank_mask:0xf bound_ctrl:0",
             "row_shr:2 row_mask:0xf bank_mask:0xf bound_ctrl:0",
             "row_shr:4 row_mask:0xf bank_mask:0xf bound_ctrl:0",
             "row_shr:8 row_mask:0xf bank_mask:0xf bound_ctrl:0",
             "row_bcast:15 row_mask:0xa bank_mask:0xf",
             "row_bcast:31 row_mask:0xc bank_mask:0xf"]
    a("s_nop 1")
    for st in steps:
        for r in regs:
            a(f"v_add_f32_dpp v{r}, v{r}, v{r} {st}")
    a("s_nop 1")


def bf16_round(a, dst, src):
    a(f"v_cvt_pk_bf16_f32 v{dst}, v{src}, v{src}")
    a(f"v_lshlrev_b32 v{dst}, 16, v{dst}")


def gen_ln(a):
    stamp_begin(a)
    if CODE_PF:
        a("v_lshlrev_b32 v3, 4, v1")
        a("s_lshr_b32 s45, s2, 3")
        a("s_lshl_b32 s45, s45, 1")
        a("s_sub_u32 s46, s44, 6")
        a("s_add_u32 s45, s45, s46")
        a("s_cmp_lt_u32 s44, 6")
        a("s_cbranch_scc1 k1_no_pf")
        code_prefetch(a, "k1_kernel", "code_end", 45, 3, 76, 56)
        a("s_branch k1_pf_done")
        a.label("k1_no_pf")
        a("s_nop 0")
        a.label("k1_pf_done")
    a(f"s_load_dwordx2 s[4:5], s[0:1], {KA_U}")
    a(f"s_load_dwordx2 s[6:7], s[0:1], {KA_WS}")
    a(f"s_load_dwordx4 s[48:51], s[0:1], {KA_WG}")
    a(f"s_load_dwordx4 s[68:71], s[0:1], {KA_WD}")
    a(f"s_load_dwordx2 s[54:55], s[0:1], {KA_DSK}")
    a("s_sub_u32 s22, s44, 4")
    a("s_and_b32 s20, s2, 7")
    a("s_lshr_b32 s21, s2, 3")
    a("s_lshl_b32 s20, s20, 8")
    a("s_lshl_b32 s23, s21, 3")
    a("s_add_u32 s20, s20, s23")
    a("s_lshl_b32 s23, s22, 1")
    a("s_add_u32 s23, s23, s20")
    a("s_lshl_b32 s24, s23, 10")
    a(f"s_mul_i32 s53, s23, {XN_STRIDE}")
    a("v_lshlrev_b32 v3, 4, v1")
    a("s_lshl_b32 s52, s2, 2")
    a("s_add_u32 s52, s52, s22")
    a("s_lshl_b32 s52, s52, 11")
    a(f"s_mul_i32 s25, s22, {2*LN_STRIDE}")
    a(f"s_add_u32 s25, s25, {LN_LDS}")
    a("v_add_u32 v4, s25, v3")
    a("v_and_b32 v5, 15, v1")
    a("v_lshrrev_b32 v6, 2, v5")
    a("v_and_b32 v5, 3, v5")
    a("v_lshrrev_b32 v7, 4, v1")
    a(f"v_mul_u32_u24 v6, {LN_STRIDE}, v6")
    a("v_lshlrev_b32 v5, 3, v5")
    a("v_lshl_add_u32 v5, v7, 5, v5")
    a("v_add_u32 v5, v5, v6")
    a("s_lshl_b32 s26, s22, 8")
    a(f"s_add_u32 s26, s26, {LN_LDS}")
    a("v_add_u32 v5, s26, v5")
    a("s_lshl_b32 s27, s22, 7")
    a("v_add_u32 v6, s27, v1")
    a("v_lshlrev_b32 v6, 4, v6")
    a(f"s_mul_i32 s28, s20, {XNT_STRIDE // 8}")
    a("s_waitcnt lgkmcnt(0)")
    srd(a, 8, 4, L * D * 2)
    for r in range(2):
        a(f"buffer_load_dwordx4 {vr(8+4*r,4)}, v3, s[8:11], s24 offen offset:{r*1024}")
    srd(a, 56, 48, W_BYTES)
    srd(a, 60, 50, W_BYTES)
    srd(a, 64, 68, W_BYTES)
    if TOUCH:
        a("s_cmp_ge_u32 s2, 16")
        a("s_cbranch_scc1 k1_no_touch")
        srd(a, 12, 6, WS_END)
        srd(a, 16, 70, L * D * 2)
        a("v_lshlrev_b32 v60, 18, v1")
        a("s_lshl_b32 s45, s22, 16")
        a("buffer_load_dword v61, v60, s[12:15], s45 offen")
        a("v_lshlrev_b32 v60, 15, v1")
        a(f"s_mov_b32 s45, {1 << 24}")
        a("buffer_load_dword v61, v60, s[12:15], s45 offen")
        a("buffer_load_dword v61, v60, s[16:19], 0 offen")
        srd(a, 16, 54, D * 2)
        a("buffer_load_dword v61, v3, s[16:19], 0 offen")
        for i in range(2):
            a(f"buffer_load_dwordx4 v[72:75], v3, s[56:59], s52 offen offset:{i*1024}")
        a("s_branch k1_touched")
        a.label("k1_no_touch")
    for i in range(2):
        for b in (56, 60, 64):
            a(f"buffer_load_dwordx4 v[72:75], v3, {sr(b,4)}, s52 offen offset:{i*1024}")
    if TOUCH:
        a.label("k1_touched")
    srd(a, 12, 6, XN_BYTES, WS_XN)
    srd(a, 16, 6, XNT_BYTES, WS_XNT)
    X = lambda r, e: 32 + 8 * r + e
    stamp(a)
    for r in range(2):
        a(f"s_waitcnt vmcnt({PF_W + 1 - r})")
        if r == 0:
            stamp(a)
        for k in range(4):
            a(f"v_lshlrev_b32 v{X(r,2*k)}, 16, v{8+4*r+k}")
            a(f"v_and_b32 v{X(r,2*k+1)}, 0xffff0000, v{8+4*r+k}")
        a(f"v_readfirstlane_b32 s{30+2*r}, v{X(r,0)}")
        a(f"v_pk_add_f32 v[48:49], {vr(X(r,0),2)}, {vr(X(r,2),2)}")
        a(f"v_pk_add_f32 v[50:51], {vr(X(r,4),2)}, {vr(X(r,6),2)}")
        a(f"s_mov_b32 s{31+2*r}, s{30+2*r}")
        a("v_pk_add_f32 v[48:49], v[48:49], v[50:51]")
        for k in range(4):
            a(f"v_pk_add_f32 {vr(52+2*k,2)}, {vr(X(r,2*k),2)}, {sr(30+2*r,2)} neg_lo:[0,1] neg_hi:[0,1]")
        a(f"v_add_f32 v{24+2*r}, v48, v49")
        a("v_pk_mul_f32 v[50:51], v[52:53], v[52:53]")
        a("v_pk_mul_f32 v[48:49], v[54:55], v[54:55]")
        a("v_pk_fma_f32 v[50:51], v[56:57], v[56:57], v[50:51]")
        a("v_pk_fma_f32 v[48:49], v[58:59], v[58:59], v[48:49]")
        a("v_pk_add_f32 v[48:49], v[48:49], v[50:51]")
        a(f"v_add_f32 v{25+2*r}, v48, v49")
    dpp_reduce(a, [24, 25, 26, 27])
    for r in range(2):
        a(f"v_mul_f32 v{24+2*r}, {f32(1.0/512)}, v{24+2*r}")
        a(f"v_mul_f32 v{25+2*r}, {f32(1.0/512)}, v{25+2*r}")
    for r in range(2):
        a(f"v_subrev_f32 v{28+r}, s{30+2*r}, v{24+2*r}")
        bf16_round(a, 24 + 2 * r, 24 + 2 * r)
    for r in range(2):
        a(f"v_fma_f32 v{25+2*r}, -v{28+r}, v{28+r}, v{25+2*r}")
        a(f"v_max_f32 v{25+2*r}, 0, v{25+2*r}")
    for r in range(2):
        bf16_round(a, 25 + 2 * r, 25 + 2 * r)
    for r in range(2):
        a(f"v_add_f32 v{25+2*r}, {f32(1e-5)}, v{25+2*r}")
        a(f"v_readlane_b32 s{36+2*r}, v{24+2*r}, 63")
    for r in range(2):
        bf16_round(a, 25 + 2 * r, 25 + 2 * r)
    for r in range(2):
        a(f"v_sqrt_f32 v{25+2*r}, v{25+2*r}")
    for r in range(2):
        a(f"s_mov_b32 s{37+2*r}, s{36+2*r}")
    for r in range(2):
        bf16_round(a, 25 + 2 * r, 25 + 2 * r)
    for r in range(2):
        a(f"v_rcp_f32 v{25+2*r}, v{25+2*r}")
    for r in range(2):
        for k in range(4):
            a(f"v_pk_add_f32 {vr(X(r,2*k),2)}, {vr(X(r,2*k),2)}, {sr(36+2*r,2)} neg_lo:[0,1] neg_hi:[0,1]")
    for r in range(2):
        a(f"v_readlane_b32 s{40+2*r}, v{25+2*r}, 63")
    for r in range(2):
        for k in range(4):
            a(f"v_cvt_pk_bf16_f32 v{8+4*r+k}, v{X(r,2*k)}, v{X(r,2*k+1)}")
    for r in range(2):
        a(f"s_mov_b32 s{41+2*r}, s{40+2*r}")
    for r in range(2):
        for k in range(4):
            a(f"v_lshlrev_b32 v{X(r,2*k)}, 16, v{8+4*r+k}")
            a(f"v_and_b32 v{X(r,2*k+1)}, 0xffff0000, v{8+4*r+k}")
        for k in range(4):
            a(f"v_pk_mul_f32 {vr(X(r,2*k),2)}, {vr(X(r,2*k),2)}, {sr(40+2*r,2)}")
        for k in range(4):
            a(f"v_cvt_pk_bf16_f32 v{16+4*r+k}, v{X(r,2*k)}, v{X(r,2*k+1)}")
        a(f"ds_write_b128 v4, {vr(16+4*r,4)} offset:{r*LN_STRIDE}")
        a(f"buffer_store_dwordx4 {vr(16+4*r,4)}, v3, s[12:15], s53 offen offset:{r*XN_STRIDE}" + WT["xn"])
    a("s_waitcnt lgkmcnt(0)")
    stamp(a)
    a("s_barrier")
    for blk in range(2):
        for tb in range(2):
            a(f"ds_read_b64_tr_b16 {vr(32+4*blk+2*tb,2)}, v5 offset:{blk*128 + tb*4*LN_STRIDE}")
    a("s_waitcnt lgkmcnt(2)")
    a("buffer_store_dwordx4 v[32:35], v6, s[16:19], s28 offen" + WT["xnt"])
    a("s_waitcnt lgkmcnt(0)")
    a("buffer_store_dwordx4 v[36:39], v6, s[16:19], s28 offen offset:1024" + WT["xnt"])
    stamp_end(a, 0, 6)
    a("s_endpgm")


def exp_acc(a, dst, x, t):
    a(f"v_mul_f32 v{dst}, {f32(L_HI)}, v{x}")
    a(f"v_exp_f32 v{dst}, v{dst}")
    a(f"v_mul_f32 v{t}, {f32(C_LO)}, v{x}")
    a(f"v_fma_f32 v{dst}, v{dst}, v{t}, v{dst}")


def cmul(t, z, w):
    return [f"v_pk_mul_f32 {vr(t,2)}, {vr(z,2)}, {vr(w,2)} op_sel:[0,0] op_sel_hi:[1,0]",
            f"v_pk_fma_f32 {vr(t,2)}, {vr(z,2)}, {vr(w,2)}, {vr(t,2)} op_sel:[1,1,0] op_sel_hi:[0,1,1] "
            f"neg_lo:[1,0,0]"]


def gen_kgen(a):
    stamp_begin(a)
    a(f"s_load_dwordx8 s[4:11], s[0:1], {KA_LAR}")
    a(f"s_load_dwordx2 s[12:13], s[0:1], {KA_LDT}")
    a(f"s_load_dwordx2 s[14:15], s[0:1], {KA_WS}")
    a("s_and_b32 s41, s2, 7")
    a("s_lshr_b32 s42, s2, 3")
    a("s_lshr_b32 s43, s42, 2")
    a("s_lshl_b32 s43, s43, 6")
    a("s_lshl_b32 s41, s41, 3")
    a("s_add_u32 s41, s41, s43")
    a("s_and_b32 s42, s42, 3")
    a("s_lshl_b32 s42, s42, 1")
    a("s_add_u32 s41, s41, s42")
    a("s_lshr_b32 s45, s44, 1")
    a("s_and_b32 s46, s44, 1")
    a("s_add_u32 s47, s41, s45")
    a("s_lshl_b32 s48, s46, 6")
    a("v_add_u32 v3, s48, v1")
    a("s_lshl_b32 s49, s47, 8")
    a("v_lshlrev_b32 v4, 1, v3")
    a("s_lshl_b32 s50, s47, 1")
    a("v_mov_b32 v5, s50")
    a("s_waitcnt lgkmcnt(0)")
    srd(a, 16, 4, D * N * 2)
    srd(a, 32, 12, D * 2)
    a("buffer_load_ushort v8, v4, s[16:19], s49 offen")
    a("buffer_load_ushort v12, v5, s[32:35], 0 offen")
    srd(a, 20, 6, D * N * 2)
    a("buffer_load_ushort v9, v4, s[20:23], s49 offen")
    srd(a, 24, 8, D * N * 2)
    a("buffer_load_ushort v10, v4, s[24:27], s49 offen")
    srd(a, 28, 10, D * N * 2)
    a("buffer_load_ushort v11, v4, s[28:31], s49 offen")
    srd(a, 36, 14, D * KT_BYTES, WS_KR)
    a(f"s_mul_i32 s51, s45, {KG_CH}")
    a("v_lshlrev_b32 v6, 2, v3")
    a("v_add_u32 v6, s51, v6")
    a("v_and_b32 v7, 15, v1")
    a("v_lshrrev_b32 v2, 4, v1")
    a(f"v_mul_u32_u24 v13, {KG_ROW}, v7")
    a("v_lshl_add_u32 v13, v2, 4, v13")
    a("v_add_u32 v100, s51, v13")
    a(f"s_mul_i32 s52, s46, {16*KG_ROW}")
    a("v_add_u32 v101, s52, v100")
    quads = [(0, 1), (4, 1), (256, 2), (512, 256)], [(1536, 256), (516, 256), (4097, 0), (4097, 0)]
    a("s_cmp_eq_u32 s46, 0")
    for q in range(4):
        a(f"s_mov_b32 s64, {f32(float(quads[0][q][0]))}")
        a(f"s_mov_b32 s65, {f32(float(quads[0][q][1]))}")
        a(f"s_cselect_b32 s{56+q}, s64, {f32(float(quads[1][q][0]))}")
        a(f"s_cselect_b32 s{60+q}, s65, {f32(float(quads[1][q][1]))}")
    a("v_mov_b32 v14, s56")
    a("v_mov_b32 v15, s60")
    for q in range(1, 4):
        a(f"v_cmp_eq_u32 vcc, {q}, v2")
        a(f"v_mov_b32 v16, s{56+q}")
        a(f"v_mov_b32 v17, s{60+q}")
        a("v_cndmask_b32 v14, v14, v16, vcc")
        a("v_cndmask_b32 v15, v15, v17, vcc")
    a("v_cvt_f32_u32 v16, v7")
    a("v_fmac_f32 v14, 0x41000000, v16")
    a(f"s_add_u32 s53, s51, {KG_T + KT_TAB - 2*0x4380}")
    a(f"s_add_u32 s54, s51, {KG_T + 3000}")
    a(f"s_add_u32 s57, s51, {KG_T + 510}")
    a(f"s_add_u32 s58, s51, {KG_T + KT_O + 512}")
    a("v_mov_b32 v19, s54")
    TW, TW2 = 102, 112
    for jt in range(2):
        for r in range(4):
            p = 20 + 4 * jt + r
            if r == 0:
                a(f"v_mov_b32 v{p}, v14" if jt == 0 else f"v_add_f32 v{p}, 0x43000000, v14")
            else:
                a(f"v_add_f32 v{p}, v{p-1}, v15")
    for i in range(8):
        p, b, b2 = 20 + i, TW + i, TW2 + i
        a(f"v_cvt_pk_bf16_f32 v{b}, v{p}, v{p}")
        a(f"v_cvt_u32_f32 v17, v{p}")
        a(f"v_and_b32 v16, 0xffff0000, v{b}")
        a(f"v_cmp_eq_u32 vcc, v16, v{p}")
        a(f"v_and_b32 v{b}, 0xffff, v{b}")
        a(f"v_lshl_add_u32 v{b}, v{b}, 1, s53")
        a(f"v_cndmask_b32 v{b}, v19, v{b}, vcc")
        a("v_lshlrev_b32 v16, 1, v17")
        a("v_cmp_gt_u32 vcc, 256, v17")
        a("v_sub_u32 v18, s57, v16")
        a(f"v_sub_u32 v{b2}, s58, v16")
        a(f"v_cndmask_b32 v{b}, v{b}, v18, vcc")
        a("v_cmp_ge_u32 vcc, 256, v17")
        a("s_nop 1")
        a(f"v_cndmask_b32 v{b2}, v19, v{b2}, vcc")
    a("v_mov_b32 v20, 0")
    a("v_mov_b32 v21, 0")
    a("v_mov_b32 v22, 0")
    a("v_mov_b32 v23, 0")
    a("v_and_b32 v16, 1, v1")
    a("v_lshlrev_b32 v16, 4, v16")
    a(f"s_mul_i32 s59, s46, {KT_O}")
    a("s_add_u32 s59, s59, s57")
    a("v_add_u32 v16, s59, v16")
    a("ds_write_b128 v16, v[20:23] offset:2")
    a("v_lshlrev_b32 v130, 4, v3")
    a(f"s_add_u32 s55, s51, {KG_T}")
    a("v_add_u32 v110, s55, v130")
    a(f"s_mul_i32 s55, s47, {KT_BYTES}")
    a("v_mov_b32 v14, 0x00003f80")
    a(f"ds_write_b32 v6, v14 offset:{KG_YB}")
    stamp(a)
    a("s_waitcnt vmcnt(3)")
    stamp(a)
    a("v_lshlrev_b32 v12, 16, v12")
    a("v_lshlrev_b32 v8, 16, v8")
    exp_acc(a, 13, 12, 14)
    exp_acc(a, 15, 8, 16)
    bf16_round(a, 13, 13)
    bf16_round(a, 15, 15)
    a("s_waitcnt vmcnt(2)")
    a("v_lshlrev_b32 v9, 16, v9")
    a("v_mul_f32 v15, v15, v13")
    a("v_mul_f32 v16, v9, v13")
    a(f"v_mul_f32 v15, {f32(-LOG2E)}, v15")
    a(f"v_mul_f32 v16, {f32(0.15915494309189535)}, v16")
    seeds = [(1, 20, 1), (256, 22, 1), (8, 24, -1), (64, 26, -1)]
    for i, (p, z, sg) in enumerate(seeds):
        a(f"v_mul_f32 v{32+i}, {f32(float(p))}, v15")
        a(f"v_mul_f32 v{36+i}, {f32(float(p*sg))}, v16")
    for i in range(4):
        a(f"v_exp_f32 v{32+i}, v{32+i}")
        a(f"v_fract_f32 v{36+i}, v{36+i}")
    for i, (p, z, sg) in enumerate(seeds):
        a(f"v_cos_f32 v{z}, v{36+i}")
        a(f"v_sin_f32 v{z+1}, v{36+i}")
    a("s_waitcnt vmcnt(0)")
    a("v_lshlrev_b32 v10, 16, v10")
    a("v_lshlrev_b32 v11, 16, v11")
    a("v_add_f32 v13, v13, v13")
    for i, (p, z, sg) in enumerate(seeds):
        a(f"v_mul_f32 v{z}, v{32+i}, v{z}")
        a(f"v_mul_f32 v{z+1}, v{32+i}, v{z+1}")
    a("v_mul_f32 v28, v10, v13")
    a("v_mul_f32 v29, v11, v13")
    E1, E256, Y8, Y64, C = 20, 22, 24, 26, 28
    E2, E4, Y128, Y192 = 40, 42, 44, 46

    def emit(z, off, t):
        return [f"v_cvt_pk_bf16_f32 v{t}, v{z}, v{z+1}", f"ds_write_b32 v6, v{t} offset:{off}"]

    xrow = lambda q, r: KG_XA + (4 * q + r) * KG_ROW
    yrow = lambda j: KG_YB + j * KG_ROW

    def chain(seed, ratio, offs, ra, rb, t, emit_seed=True):
        ops = []
        cur = seed
        for k, off in enumerate(offs):
            if k:
                nxt = ra if cur != ra else rb
                ops.append(cmul(nxt, cur, ratio))
                cur = nxt
            if k or emit_seed:
                ops.append(emit(cur, off, t))
        return ops

    pre = [cmul(E2, E1, E1), cmul(Y128, Y64, Y64), cmul(48, C, E256), cmul(E4, E2, E2), cmul(Y192, Y128, Y64)]
    for i in range(2):
        for op in pre[:3]:
            a(op[i])
    for i in range(2):
        for op in pre[3:]:
            a(op[i])
    a("\n".join(cmul(50, C, E4)))
    chains = [
        chain(Y8, Y8, [yrow(j) for j in range(1, 8)], 52, 54, 88),
        chain(Y64, Y8, [yrow(j) for j in range(8, 16)], 56, 58, 89),
        chain(Y128, Y8, [yrow(j) for j in range(16, 24)], 60, 62, 90),
        chain(Y192, Y8, [yrow(j) for j in range(24, 32)], 64, 66, 91),
        chain(C, E1, [xrow(0, r) for r in range(4)], 68, 70, 92)
        + chain(48, E2, [xrow(2, r) for r in range(4)], 68, 70, 92),
        chain(50, E1, [xrow(1, r) for r in range(4)], 72, 74, 93),
    ]
    far = []
    cur = 48
    offs = [xrow(3, 0), xrow(3, 1), xrow(3, 2), xrow(3, 3), xrow(4, 0), xrow(4, 1), xrow(4, 2)]
    for k, off in enumerate(offs):
        nxt = 76 if cur != 76 else 78
        far.append(cmul(nxt, cur, E256))
        cur = nxt
        far.append(emit(cur, off, 94))
        if k < 2:
            far.append(cmul(80, cur, E4))
            far.append(emit(80, xrow(5, k), 95))
    chains.append(far)
    while any(chains):
        units = [c.pop(0) for c in chains if c]
        for i in range(2):
            for u in units:
                a(u[i])
    a("s_waitcnt lgkmcnt(0)")
    stamp(a)
    a("s_barrier")
    for ks in range(8):
        a(f"ds_read_b128 {vr(132+4*ks,4)}, v101 offset:{KG_XA + ks*64}")
        a(f"ds_read_b128 {vr(32+4*ks,4)}, v100 offset:{KG_YB + ks*64}")
        a(f"ds_read_b128 {vr(64+4*ks,4)}, v100 offset:{KG_YB + 16*KG_ROW + ks*64}")
    for ks in range(8):
        a(f"s_waitcnt lgkmcnt({min(15, 3*(7-ks))})")
        c0 = "0" if ks == 0 else "v[20:23]"
        c1 = "0" if ks == 0 else "v[24:27]"
        a(f"v_mfma_f32_16x16x32_bf16 v[20:23], {vr(132+4*ks,4)}, {vr(32+4*ks,4)}, {c0}")
        a(f"v_mfma_f32_16x16x32_bf16 v[24:27], {vr(132+4*ks,4)}, {vr(64+4*ks,4)}, {c1}")
    a("s_nop 7")
    for i in range(8):
        a(f"v_cvt_pk_bf16_f32 v{20+i}, v{20+i}, v{20+i}")
        a(f"ds_write_b16 v{TW+i}, v{20+i}")
        a(f"ds_write_b16 v{TW2+i}, v{20+i}")
    a("s_waitcnt lgkmcnt(0)")
    stamp(a)
    a("s_barrier")
    a("ds_read_b128 v[32:35], v110")
    a("ds_read_b128 v[36:39], v110 offset:2048")
    a("s_waitcnt lgkmcnt(1)")
    a("buffer_store_dwordx4 v[32:35], v130, s[36:39], s55 offen" + WT["k"])
    a("s_cmp_lg_u32 s46, 0")
    a("s_cbranch_scc1 k1_kg_done")
    a("s_waitcnt lgkmcnt(0)")
    a("buffer_store_dwordx4 v[36:39], v130, s[36:39], s55 offen offset:2048" + WT["k"])
    a.label("k1_kg_done")
    stamp_end(a, 0, 14)
    a("s_endpgm")


def gen_k1(a):
    a.raw(".p2align 8")
    a.label("k1_kernel")
    a(f"s_cmp_ge_u32 s2, {N_K1}")
    a("s_cbranch_scc1 k1_exit")
    a("v_lshrrev_b32 v2, 6, v0")
    a("v_and_b32 v1, 63, v0")
    a("v_readfirstlane_b32 s44, v2")
    a("s_cmp_ge_u32 s44, 4")
    a("s_cbranch_scc1 k1_ln")
    gen_kgen(a)
    a.label("k1_ln")
    gen_ln(a)
    a.label("k1_exit")
    a("s_endpgm")


N_G1, N_CV, N_RL = 176, 64, 16
G1_STAGE = 49152
G1_W = 32768
K2_LDS = 3 * G1_STAGE
G1_NST = 8
CV_ZB, CV_PW = 32768, 32896
CV_O, CV_T, CV_G, CV_W = 2752, 5376, 6400, 7168


def gen_gemm1_loader(a):
    a("s_sub_u32 s30, s30, 4")
    a("v_lshrrev_b32 v3, 3, v1")
    a("v_and_b32 v4, 7, v1")
    a("v_lshrrev_b32 v5, 4, v1")
    a(f"v_mul_u32_u24 v14, {XN_STRIDE}, v3")
    for q in range(4):
        a(f"v_add_u32 v6, {4*q}, v5")
        a("v_and_b32 v6, 7, v6")
        a("v_xor_b32 v6, v6, v4")
        a("v_lshl_add_u32 v6, v6, 4, v14")
        a(f"v_add_u32 v{8+q}, {q*(8*XN_STRIDE-1024)}, v6")
    a("v_and_b32 v6, 1, v5")
    a("v_lshrrev_b32 v7, 2, v4")
    a("v_xor_b32 v6, v6, v7")
    a("v_and_b32 v7, 3, v4")
    a("v_lshlrev_b32 v7, 3, v7")
    a("v_lshl_add_u32 v6, v6, 5, v7")
    a("s_lshl_b32 s31, s29, 6")
    a("v_add_u32 v6, s31, v6")
    a(f"v_mul_u32_u24 v12, {2*F}, v3")
    a("v_lshl_add_u32 v12, v6, 1, v12")
    a(f"v_add_u32 v13, {8*2*F-1024}, v12")
    a(f"v_cmp_le_u32 vcc, {F}, v6")
    a("v_mov_b32 v7, 0x40000000")
    a(f"s_mul_i32 s32, s28, {256*XN_STRIDE}")
    a("v_cndmask_b32 v12, v12, v7, vcc")
    a("v_cndmask_b32 v13, v13, v7, vcc")
    a(f"s_mul_i32 s33, s30, {64*XN_STRIDE}")
    a("s_add_u32 s32, s32, s33")
    a(f"s_add_u32 s36, s32, {32*XN_STRIDE}")
    a(f"s_mul_i32 s33, s30, {16*2*F}")
    a("s_lshl_b32 s34, s30, 13")
    a("s_lshl_b32 s35, s30, 11")
    a(f"s_add_u32 s35, s35, {G1_W}")
    a("s_waitcnt lgkmcnt(0)")
    srd(a, 16, 4, W_BYTES)
    srd(a, 20, 6, W_BYTES)
    srd(a, 12, 8, XN_BYTES, WS_XN)

    def dma(stage, lo=0, hi=12):
        b = (stage % 3) * G1_STAGE
        if lo == 0:
            a(f"s_add_u32 m0, s35, {b}")
            a("s_nop 0")
            a("buffer_load_dwordx4 v12, s[16:19], s33 offen lds")
            a("buffer_load_dwordx4 v13, s[16:19], s33 offen offset:1024 lds")
            a(f"s_add_u32 m0, s35, {b+8192}")
            a("s_nop 0")
            a("buffer_load_dwordx4 v12, s[20:23], s33 offen lds")
            a("buffer_load_dwordx4 v13, s[20:23], s33 offen offset:1024 lds")
            a(f"s_add_u32 s33, s33, {64*2*F}")
        if hi == 12:
            a(f"s_add_u32 m0, s34, {b}")
            a("s_nop 0")
            for q in range(4):
                a(f"buffer_load_dwordx4 v{8+q}, s[12:15], s32 offen offset:{q*1024} lds")
            a(f"s_add_u32 m0, s34, {b+4096}")
            a("s_add_u32 s32, s32, 128")
            for q in range(4):
                a(f"buffer_load_dwordx4 v{8+q}, s[12:15], s36 offen offset:{q*1024} lds")
            a("s_add_u32 s36, s36, 128")

    dma(0)
    dma(1, 0, 4)
    for st in range(G1_NST):
        if st in (0, 3, 4):
            stamp(a)
        a(f"s_waitcnt vmcnt({4 if st == 0 else (12 if st + 1 < G1_NST else 0)})")
        if st in (0, 3, 4):
            stamp(a)
        a("s_barrier")
        if st in (3,):
            stamp(a)
        if st == 0:
            dma(1, 4, 12)
        if st + 2 < G1_NST:
            dma(st + 2)
    stamp_end(a, 1, 8)
    a("s_endpgm")


def gen_gemm1(a):
    stamp_begin(a)
    a(f"s_load_dwordx4 s[4:7], s[0:1], {KA_WG}")
    a(f"s_load_dwordx2 s[8:9], s[0:1], {KA_WS}")
    a("v_and_b32 v1, 63, v0")
    a("v_lshrrev_b32 v2, 6, v0")
    a("s_and_b32 s28, s2, 7")
    a("s_lshr_b32 s29, s2, 3")
    a("v_readfirstlane_b32 s30, v2")
    a("s_cmp_lt_u32 s30, 4")
    a("s_cbranch_scc1 k2_g1_compute")
    gen_gemm1_loader(a)
    a.label("k2_g1_compute")
    _stamp_n[0] = 1 if PROF else 0
    a("v_and_b32 v3, 31, v1")
    a("v_lshrrev_b32 v4, 5, v1")
    a("v_lshrrev_b32 v5, 1, v3")
    a("v_and_b32 v5, 7, v5")
    a("v_xor_b32 v5, v5, v4")
    a("v_lshlrev_b32 v6, 7, v3")
    a("s_lshl_b32 s38, s30, 13")
    a("v_add_u32 v6, s38, v6")
    for ks in range(4):
        a(f"v_xor_b32 v7, {2*ks}, v5")
        a(f"v_lshl_add_u32 v{16+ks}, v7, 4, v6")
    a("v_and_b32 v5, 15, v1")
    a("v_lshrrev_b32 v6, 2, v5")
    a("v_and_b32 v5, 3, v5")
    a("v_lshrrev_b32 v7, 4, v1")
    a("v_and_b32 v7, 1, v7")
    a("v_and_b32 v13, 1, v5")
    a("v_lshlrev_b32 v13, 5, v13")
    a("v_lshl_add_u32 v13, v7, 4, v13")
    a("v_lshrrev_b32 v5, 1, v5")
    a("v_lshl_add_u32 v13, v5, 3, v13")
    a("v_lshrrev_b32 v5, 1, v6")
    a("v_lshl_add_u32 v13, v5, 6, v13")
    a("v_lshl_add_u32 v6, v4, 3, v6")
    a("v_lshl_add_u32 v13, v6, 7, v13")
    a(f"v_add_u32 v20, {G1_W}, v13")
    a("v_xor_b32 v21, 64, v20")
    a("v_mov_b32 v12, 0")
    HS = 144
    a(f"s_mul_i32 s39, s30, {64*HS}")
    a(f"v_mul_u32_u24 v22, {HS}, v3")
    a("v_lshl_add_u32 v22, v4, 5, v22")
    a("v_add_u32 v22, s39, v22")
    a("v_lshrrev_b32 v5, 3, v1")
    a("v_and_b32 v6, 7, v1")
    a(f"v_mul_u32_u24 v23, {HS}, v5")
    a("v_lshl_add_u32 v23, v6, 4, v23")
    a("v_add_u32 v23, s39, v23")
    a(f"v_mul_u32_u24 v14, {H_STRIDE}, v5")
    a("v_lshl_add_u32 v14, v6, 4, v14")
    a("s_lshl_b32 s40, s28, 8")
    a("s_lshl_b32 s41, s30, 6")
    a("s_add_u32 s40, s40, s41")
    a(f"s_mul_i32 s42, s40, {H_STRIDE}")
    a("s_lshl_b32 s43, s29, 7")
    a("s_add_u32 s42, s42, s43")
    a("s_waitcnt lgkmcnt(0)")
    srd(a, 24, 8, H_BYTES, WS_H)

    ACC = lambda w, ft, tt: 128 + 64 * w + 32 * ft + 16 * tt
    FS = [32, 56, 80, 104]

    def reads(n, f):
        ks = n & 3
        out = []
        for w in range(2):
            for ft in range(2):
                o = 8192 * w + ks * 2048
                out.append(f"ds_read_b64_tr_b16 {vr(f+8*w+4*ft,2)}, v{20+ft} offset:{o}")
                out.append(f"ds_read_b64_tr_b16 {vr(f+8*w+4*ft+2,2)}, v{20+ft} offset:{o+512}")
            out.append(f"ds_read_b128 {vr(f+16+4*w,4)}, v{16+ks} offset:{4096*w}")
        return out

    def mfma(n, f, w, ft, tt):
        c = vr(ACC(w, ft, tt), 16)
        return (f"v_mfma_f32_32x32x16_bf16 {c}, {vr(f+8*w+4*ft,4)}, {vr(f+16+4*tt,4)}, "
                f"{'0' if n == 0 else c}")

    def mfmas(n, f):
        return [mfma(n, f, w, ft, tt) for tt in range(2) for w in range(2) for ft in range(2)]

    def boundary(st):
        a("s_waitcnt lgkmcnt(0)")
        a("s_barrier")
        if st in (0, 6, 7):
            stamp(a)
        if st >= 1:
            delta = G1_STAGE if st % 3 else -2 * G1_STAGE
            for r in (16, 17, 18, 19, 20, 21):
                a(f"v_add_u32 v{r}, {delta & 0xffffffff:#x}, v{r}")

    LASTN = 4 * (G1_NST - 1)
    boundary(0)
    for op in reads(0, FS[0]):
        a(op)
    for n in range(LASTN):
        nx = n + 1
        if nx == LASTN:
            break
        if nx & 3 == 0:
            boundary(nx >> 2)
        else:
            a("s_waitcnt lgkmcnt(0)")
        rd = reads(nx, FS[nx & 1])
        cuts = [0, 3, 6, 8, 10, 10, 10, 10, 10]
        for i, m in enumerate(mfmas(n, FS[n & 1])):
            a(m)
            for op in rd[cuts[i]:cuts[i + 1]]:
                a(op)
    n = LASTN - 1
    boundary(G1_NST - 1)
    sets = {LASTN: FS[0], LASTN + 2: FS[2], LASTN + 3: FS[3], LASTN + 1: FS[1]}
    early = reads(LASTN, FS[0]) + reads(LASTN + 2, FS[2]) + reads(LASTN + 3, FS[3])
    mm = mfmas(n, FS[n & 1])
    for i, m in enumerate(mm):
        a(m)
        for op in early[4 * i:4 * i + 4]:
            a(op)
    for op in reads(LASTN + 1, FS[1]):
        a(op)

    def pair_epilogue(ft, tt):
        g, u = ACC(0, ft, tt), ACC(1, ft, tt)
        o = 4 if ft == 0 else 24
        out = []
        if EPI == "fused":
            for k in range(16):
                out.append(f"v_max_f32 v{g+k}, 0, v{g+k}")
            for k in range(16):
                out.append(f"v_mul_f32 v{g+k}, v{g+k}, v{u+k}")
            for k in range(8):
                out.append(f"v_cvt_pk_bf16_f32 v{o+k}, v{g+2*k}, v{g+2*k+1}")
                if k == 3:
                    out.append(f"ds_write_b128 v22, {vr(o,4)} offset:{32*HS*tt + 64*ft}")
            out.append(f"ds_write_b128 v22, {vr(o+4,4)} offset:{32*HS*tt + 64*ft + 16}")
            return out
        for k in range(8):
            out.append(f"v_cvt_pk_bf16_f32 v{g+2*k}, v{g+2*k}, v{g+2*k+1}")
            out.append(f"v_cvt_pk_bf16_f32 v{u+2*k}, v{u+2*k}, v{u+2*k+1}")
        for k in range(8):
            out.append(f"v_max_i16_sdwa v{g+2*k+1}, v{g+2*k}, v12 dst_sel:WORD_0 dst_unused:UNUSED_PAD "
                       "src0_sel:WORD_0 src1_sel:WORD_0")
            out.append(f"v_max_i16_sdwa v{u+2*k+1}, v{g+2*k}, v12 dst_sel:WORD_1 dst_unused:UNUSED_PAD "
                       "src0_sel:WORD_1 src1_sel:WORD_0")
        for k in range(8):
            out.append(f"v_dot2_f32_bf16 v{g+2*k+1}, v{g+2*k+1}, v{u+2*k}, 0")
            out.append(f"v_dot2_f32_bf16 v{u+2*k+1}, v{u+2*k+1}, v{u+2*k}, 0")
        for k in range(8):
            out.append(f"v_cvt_pk_bf16_f32 v{o+k}, v{g+2*k+1}, v{u+2*k+1}")
            if k == 3:
                out.append(f"ds_write_b128 v22, {vr(o,4)} offset:{32*HS*tt + 64*ft}")
        out.append(f"ds_write_b128 v22, {vr(o+4,4)} offset:{32*HS*tt + 64*ft + 16}")
        return out

    def flush(tt, regs):
        rd = [f"ds_read_b128 {vr(regs+4*i,4)}, v23 offset:{8*HS*(4*tt+i)}" for i in range(4)]
        st = []
        for i in range(4):
            st.append(f"s_waitcnt lgkmcnt({3-i})\n"
                      f"buffer_store_dwordx4 {vr(regs+4*i,4)}, v14, s[24:27], s42 offen{WT['h']}\n"
                      f"s_add_u32 s42, s42, {8*H_STRIDE}")
        return rd, st

    order = [(0, 0), (1, 0), (0, 1), (1, 1)]
    korder = [LASTN, LASTN + 2, LASTN + 3, LASTN + 1]
    a("s_waitcnt lgkmcnt(10)")
    for pi, (ft, tt) in enumerate(order):
        if pi < 3:
            stamp(a)
        mm = []
        for kn in korder:
            if pi == 0 and kn == LASTN + 1:
                mm.append("s_waitcnt lgkmcnt(0)\n" + mfma(kn, sets[kn], 0, ft, tt))
            else:
                mm.append(mfma(kn, sets[kn], 0, ft, tt))
            mm.append(mfma(kn, sets[kn], 1, ft, tt))
        fill = ["s_nop 8"] + pair_epilogue(*order[pi - 1]) if pi else []
        if pi == 3:
            rd, st = flush(0, ACC(1, 0, 0))
            fill = ["s_waitcnt lgkmcnt(0)"] + rd + fill[:33] + st + fill[33:]
        lead = 2
        per = -(-len(fill) // (len(mm) - lead)) if fill else 0
        for i, m in enumerate(mm):
            a(m)
            if i >= lead - 1 and fill:
                j = i - (lead - 1)
                for op in fill[j * per:(j + 1) * per]:
                    a(op)
    a("s_nop 15")
    stamp(a)
    for op in pair_epilogue(*order[3]):
        a(op)
    a("s_waitcnt lgkmcnt(0)")
    rd, st = flush(1, ACC(1, 0, 0))
    for op in rd + st:
        a(op)
    stamp_end(a, 1, 8)
    a("s_endpgm")


def gen_conv(a):
    stamp_begin(a)
    a(f"s_load_dwordx2 s[4:5], s[0:1], {KA_DSK}")
    a(f"s_load_dwordx2 s[8:9], s[0:1], {KA_WS}")
    a("v_and_b32 v1, 63, v0")
    a("v_lshrrev_b32 v2, 6, v0")
    a(f"s_sub_u32 s28, s2, {N_G1}")
    a("s_lshl_b32 s29, s28, 7")
    a("v_readfirstlane_b32 s30, v2")
    a("s_lshl_b32 s28, s28, 3")
    a("s_add_u32 s28, s28, s30")
    a(f"s_mul_i32 s31, s30, {CV_W}")
    a(f"s_add_u32 s31, s31, {CV_PW}")
    a(f"s_mul_i32 s32, s28, {KT_BYTES}")
    a("s_lshl_b32 s34, s28, 12")
    a("s_lshr_b32 s35, s28, 1")
    a("s_lshl_b32 s35, s35, 2")
    a("v_lshlrev_b32 v3, 4, v1")
    a("v_lshrrev_b32 v4, 3, v1")
    a("v_and_b32 v5, 7, v1")
    a("v_lshrrev_b32 v6, 4, v1")
    a(f"v_mul_u32_u24 v4, {XNT_STRIDE}, v4")
    for q in range(2):
        a(f"v_add_u32 v7, {4*q}, v6")
        a("v_xor_b32 v7, v7, v5")
        a(f"v_lshl_add_u32 v{8+q}, v7, 4, v4")
    a(f"v_add_u32 v9, {8*XNT_STRIDE - 1024}, v9")
    a(f"s_mul_i32 s44, s30, {32*XNT_STRIDE}")
    a("s_add_u32 s44, s44, s29")
    a(f"s_add_u32 s45, s44, {16*XNT_STRIDE - 2048}")
    a("s_lshl_b32 s47, s30, 12")
    a("s_waitcnt lgkmcnt(0)")
    a("s_load_dword s36, s[4:5], s35")
    srd(a, 12, 8, D * KT_BYTES, WS_KR)
    srd(a, 16, 8, XNT_BYTES, WS_XNT)
    srd(a, 20, 8, L * D * 2, WS_AT)
    for q, dst in ((2, CV_T), (0, 1600), (1, CV_O + 1600)):
        a(f"s_add_u32 m0, s31, {dst - q*1024}")
        a("s_nop 0")
        a(f"buffer_load_dwordx4 v3, s[12:15], s32 offen offset:{q*1024} lds")
    a("s_mov_b32 m0, s47")
    a("s_nop 0")
    a("buffer_load_dwordx4 v8, s[16:19], s44 offen lds")
    a("buffer_load_dwordx4 v9, s[16:19], s44 offen offset:1024 lds")
    a("buffer_load_dwordx4 v8, s[16:19], s45 offen offset:2048 lds")
    a("buffer_load_dwordx4 v9, s[16:19], s45 offen offset:3072 lds")
    pf = 1 if CODE_PF else 0
    if CODE_PF:
        a(f"s_sub_u32 s45, s2, {N_G1}")
        a("s_lshr_b32 s45, s45, 3")
        a("s_lshl_b32 s45, s45, 3")
        a("s_add_u32 s45, s45, s30")
        code_prefetch(a, "k3_kernel", "code_end", 45, 3, 252, 48)
    for r in range(4, 8):
        a(f"v_mov_b32 v{r}, 0")
    a(f"v_add_u32 v10, {CV_G}, v3")
    for lo, base in ((48, 0), (51, CV_O)):
        a(f"v_cmp_le_u32 vcc, {lo}, v1")
        a(f"v_add_u32 v11, {(base - 16*lo) & 0xffffffff:#x}, v3")
        a("s_nop 0")
        a("v_cndmask_b32 v10, v10, v11, vcc")
    a("v_add_u32 v10, s31, v10")
    a("v_cmp_le_u32 vcc, 54, v1")
    a(f"v_mov_b32 v15, {CV_ZB}")
    a("s_nop 0")
    a("v_cndmask_b32 v238, v10, v15, vcc")
    a("v_and_b32 v4, 15, v1")
    a("v_lshrrev_b32 v5, 4, v1")
    a("v_lshlrev_b32 v6, 3, v5")
    a("v_sub_u32 v6, v6, v4")
    a("v_lshlrev_b32 v6, 1, v6")
    a("v_add_u32 v6, s31, v6")
    a("v_and_b32 v7, 1, v4")
    a("v_cmp_eq_u32 vcc, 1, v7")
    a(f"v_mov_b32 v8, {CV_O + 2*1040}")
    a(f"v_mov_b32 v9, {2*1039}")
    a("v_cndmask_b32 v8, v8, v9, vcc")
    a("v_add_u32 v8, v6, v8")
    for P in range(2):
        a(f"v_subrev_u32 v{10+P}, {512*(2*P+1)+448}, v8")
    a("v_subrev_u32 v12, 2048, v8")
    a(f"v_mov_b32 v8, {CV_G + 192 + 2*62 - 96}")
    a(f"v_mov_b32 v9, {CV_G + 2*63 - 96}")
    a("v_cndmask_b32 v8, v8, v9, vcc")
    a("v_lshlrev_b32 v9, 3, v5")
    a("v_sub_u32 v6, v6, v9")
    a("v_add_u32 v13, v6, v8")

    def uaddr(dst, gran, tmp):
        a(f"v_lshrrev_b32 v{tmp}, 1, v{gran}")
        a(f"v_and_b32 v{tmp}, 7, v{tmp}")
        a(f"v_xor_b32 v{tmp}, s30, v{tmp}")
        a(f"v_lshlrev_b32 v{tmp}, 4, v{tmp}")
        a(f"v_lshl_add_u32 v{dst}, v{gran}, 7, v{tmp}")

    UB, UC = 16, 24
    a("v_lshl_add_u32 v6, v4, 1, v5")
    for rho in range(4):
        a(f"v_add_u32 v7, {14 - 4*rho}, v6")
        uaddr(UB + rho, 7, 8)
    for rho in range(8):
        a(f"v_cmp_gt_u32 vcc, {4*rho + 2}, v6")
        a(f"v_subrev_u32 v7, {4096 if rho >= 4 else 2048}, v{UB + (rho & 3)}")
        a("s_nop 0")
        a(f"v_cndmask_b32 v{UC+rho}, v7, v15, vcc")
    a("v_lshrrev_b32 v7, 1, v5")
    a("v_lshl_add_u32 v7, v4, 1, v7")
    uaddr(246, 7, 8)
    a("v_and_b32 v7, 1, v5")
    a("v_lshl_add_u32 v246, v7, 3, v246")
    a("v_lshlrev_b32 v247, 5, v4")
    a("v_lshl_add_u32 v247, v5, 3, v247")
    BND = 224
    a("v_lshlrev_b32 v8, 3, v5")
    a("v_mov_b32 v9, 0x7f")
    a("v_add_u32 v7, 5, v4")
    a("v_lshlrev_b32 v240, v7, v9")
    a("v_mov_b32 v9, 0x1ff")
    a("v_lshlrev_b32 v241, v4, v9")
    a("v_lshrrev_b32 v241, 4, v241")
    a("v_mov_b32 v9, 0xf0000000")
    a("v_lshlrev_b32 v242, v4, v9")
    a("s_mov_b32 s40, 0x3f803f80")
    a("s_mov_b32 s41, 0xffff")
    for b in range(3):
        a(f"v_lshrrev_b32 v{240+b}, v8, v{240+b}")
    for b in range(3):
        for k in range(4):
            a(f"v_bfe_i32 v7, v{240+b}, {2*k}, 1")
            a(f"v_bfe_i32 v9, v{240+b}, {2*k+1}, 1")
            a("v_bfi_b32 v7, s41, v7, v9")
            a(f"v_and_b32 v{BND+4*b+k}, s40, v7")
    a(f"s_add_u32 s38, s31, {CV_T}")
    a("v_lshlrev_b32 v7, 2, v1")
    a("v_sub_u32 v249, s38, v7")
    a("v_lshlrev_b32 v7, 3, v1")
    a("v_min_u32 v7, 248, v7")
    a("v_sub_u32 v250, s38, v7")
    a("v_lshlrev_b32 v7, 2, v1")
    a("v_add_u32 v243, s38, v7")
    a("v_add_u32 v248, s31, v3")
    a("v_cmp_eq_u32 s[52:53], 63, v1")
    a("v_lshlrev_b32 v7, 1, v1")
    a(f"s_add_u32 s39, s31, {CV_G + 126}")
    a("v_sub_u32 v251, s39, v7")
    a("v_add_u32 v245, 190, v251")
    a("v_mov_b32 v7, s38")
    a("v_cndmask_b32 v245, v245, v7, s[52:53]")
    a("s_mov_b32 s42, 0x03020302")
    a("s_mov_b32 s43, 0x01000100")

    ACC = 32
    SET = [64, 112]
    A32 = 216
    WS9, WS7 = 160, 176
    FB = 192
    UREG = 160

    def loads(rho):
        s = SET[rho & 1]
        out = []
        for m in range(8):
            if m == 0:
                out.append(f"ds_read_b128 {vr(s+16,4)}, v{UC+rho}")
            else:
                o = 4096 * (m - 1) + (2048 if rho < 4 else 0)
                out.append(f"ds_read_b128 {vr(s+16+4*m,4)}, v{UB+(rho&3)} offset:{o}")
            if m < 4:
                o = (64 * (7 - rho) + (0 if m & 1 else 512)) // 4
                out.append(f"ds_read2_b32 {vr(s+4*m,2)}, v{10+(m>>1)} offset0:{o} offset1:{o+1}")
                out.append(f"ds_read2_b32 {vr(s+4*m+2,2)}, v{10+(m>>1)} offset0:{o+2} offset1:{o+3}")
        if rho == 0:
            out.append(f"ds_read2_b32 {vr(A32,2)}, v12 offset0:0 offset1:1")
            out.append(f"ds_read2_b32 {vr(A32+2,2)}, v12 offset0:2 offset1:3")
        return out

    def mfma(rho, i, m):
        s = SET[rho & 1]
        c = vr(ACC + 4 * (i + m), 4)
        fa = A32 if i == 4 else s + 4 * i
        return (f"v_mfma_f32_16x16x32_bf16 {c}, {vr(fa,4)}, {vr(s+16+4*m,4)}, "
                f"{'0' if rho == 0 and i == 0 else c}")

    def mfmas(rho):
        out = [mfma(rho, i, m) for i in range(5 if rho == 0 else 4) for m in range(8 - i)]
        s = SET[rho & 1]
        if rho == 0:
            for t in range(4):
                out.append(f"v_mfma_f32_16x16x32_bf16 {vr(WS7+4*t,4)}, {vr(s+16+4*t,4)}, {vr(BND,4)}, 0")
                out.append(f"v_mfma_f32_16x16x32_bf16 {vr(WS9+4*t,4)}, {vr(s+16+4*t,4)}, {vr(BND+4,4)}, 0")
        if rho == 1:
            for t in range(4):
                c = vr(WS9 + 4 * t, 4)
                out.insert(2 * t, f"v_mfma_f32_16x16x32_bf16 {c}, {vr(s+16+4*t,4)}, {vr(BND+8,4)}, {c}")
        return out

    def window_pack():
        out = []
        for base in (WS9, WS7):
            for t in range(4):
                out.append(f"v_cvt_pk_bf16_f32 v{base+2*t}, v{base+4*t}, v{base+4*t+1}")
                out.append(f"v_cvt_pk_bf16_f32 v{base+2*t+1}, v{base+4*t+2}, v{base+4*t+3}")
        return out

    def far_loads(par):
        out = []
        for dl in range(4):
            o = (96 - 32 * dl + 384 * par) // 4
            out.append(f"ds_read2_b32 {vr(FB+4*dl,2)}, v13 offset0:{o} offset1:{o+1}")
            out.append(f"ds_read2_b32 {vr(FB+4*dl+2,2)}, v13 offset0:{o+8} offset1:{o+9}")
        return out

    def far_mfmas(par):
        out = []
        for tp in range(4):
            for kb in range(2 if tp >= 2 else 1):
                c = vr(ACC + 4 * (4 + tp), 4)
                out.append(f"v_mfma_f32_16x16x32_bf16 {c}, {vr((WS9, WS7)[par]+4*kb,4)}, "
                           f"{vr(FB+4*(tp-2*kb),4)}, {c}")
        return out

    def tile_epilogue(t):
        y = ACC + 4 * t
        u = UREG + 2 * t
        w = 2 if t & 1 else 208
        return [f"v_lshlrev_b32 v{w}, 16, v{u}",
                f"v_and_b32 v{w+1}, 0xffff0000, v{u}",
                f"v_lshlrev_b32 v{w+2}, 16, v{u+1}",
                f"v_and_b32 v{w+3}, 0xffff0000, v{u+1}",
                f"v_pk_mul_f32 {vr(w,2)}, {vr(w,2)}, s[36:37]",
                f"v_pk_mul_f32 {vr(w+2,2)}, {vr(w+2,2)}, s[36:37]",
                f"v_cvt_pk_bf16_f32 v{u}, v{w}, v{w+1}",
                f"v_cvt_pk_bf16_f32 v{u+1}, v{w+2}, v{w+3}",
                f"v_cvt_pk_bf16_f32 v{w+5}, v{y}, v{y+1}",
                f"v_cvt_pk_bf16_f32 v{w+7}, v{y+2}, v{y+3}",
                f"v_lshlrev_b32 v{w}, 16, v{u}",
                f"v_and_b32 v{w+1}, 0xffff0000, v{u}",
                f"v_lshlrev_b32 v{w+2}, 16, v{u+1}",
                f"v_and_b32 v{w+3}, 0xffff0000, v{u+1}",
                f"v_lshlrev_b32 v{w+4}, 16, v{w+5}",
                f"v_and_b32 v{w+5}, 0xffff0000, v{w+5}",
                f"v_lshlrev_b32 v{w+6}, 16, v{w+7}",
                f"v_and_b32 v{w+7}, 0xffff0000, v{w+7}",
                f"v_pk_add_f32 {vr(w,2)}, {vr(w,2)}, {vr(w+4,2)}",
                f"v_pk_add_f32 {vr(w+2,2)}, {vr(w+2,2)}, {vr(w+6,2)}",
                f"v_cvt_pk_bf16_f32 v{u}, v{w}, v{w+1}",
                f"v_cvt_pk_bf16_f32 v{u+1}, v{w+2}, v{w+3}",
                f"buffer_store_dwordx2 {vr(u,2)}, v247, s[20:23], s34 offen offset:{512*t}" + WT["at"]]

    def spread(mm, fill):
        per = -(-len(fill) // len(mm)) if fill else 0
        for i, m in enumerate(mm):
            a(m)
            for op in fill[i * per:(i + 1) * per]:
                a(op)

    stamp(a)
    a(f"s_waitcnt vmcnt({4 + pf}) lgkmcnt(0)")
    a("ds_read_b32 v180, v249 offset:508")
    a("ds_read_u16 v181, v249 offset:512")
    a("ds_read_b64 v[182:183], v250 offset:248")
    a("ds_read_u16 v184, v250 offset:256")
    a("ds_read_u16 v185, v243 offset:514")
    a("ds_read_u16 v186, v243 offset:516")
    a("v_mov_b32 v4, 0")
    a("v_mov_b32 v5, 0")
    a("v_mov_b32 v6, 0")
    a("v_mov_b32 v7, 0")
    a("ds_write_b128 v238, v[4:7]")
    a("s_and_b32 s44, s28, 1")
    a("s_lshl_b32 s45, s36, 16")
    a("s_and_b32 s36, s36, 0xffff0000")
    a("s_cmp_eq_u32 s44, 0")
    a("s_cselect_b32 s36, s45, s36")
    a("s_mov_b32 s37, s36")
    a("s_waitcnt lgkmcnt(5)")
    a("v_lshl_or_b32 v188, v181, 16, v181")
    a("v_perm_b32 v189, v180, v180, s42")
    a("v_alignbit_b32 v190, v180, v180, 16")
    a("v_perm_b32 v191, v180, v180, s43")
    a("v_mov_b32 v192, v188")
    a("v_bfi_b32 v193, s41, v181, v180")
    a("v_mov_b32 v194, v189")
    a("v_mov_b32 v195, v191")
    a("ds_write_b128 v248, v[188:191] offset:64")
    a(f"ds_write_b128 v248, v[192:195] offset:{CV_O + 64}")
    a("v_lshlrev_b32 v5, 16, v181")
    a("v_mov_b32 v6, v188")
    a("v_mov_b32 v7, v188")
    a("v_mov_b32 v8, 0")
    a("v_mov_b32 v9, 0")
    a("v_mov_b32 v196, 0")
    a("v_mov_b32 v197, 0")
    a("v_mov_b32 v198, v188")
    a("v_mov_b32 v199, v188")
    a("s_mov_b64 s[54:55], exec")
    a("s_mov_b64 exec, 1")
    a("ds_write_b128 v248, v[4:7] offset:48")
    a(f"ds_write_b128 v248, v[196:199] offset:{CV_O + 48}")
    a("s_mov_b64 exec, s[54:55]")
    a("s_waitcnt lgkmcnt(7)")
    a("v_bfi_b32 v200, s41, v184, v183")
    a("v_perm_b32 v201, v183, v183, s43")
    a("v_bfi_b32 v202, s41, v183, v182")
    a("v_perm_b32 v203, v182, v182, s43")
    a("v_lshl_or_b32 v204, v184, 16, v184")
    a("v_alignbit_b32 v205, v183, v183, 16")
    a("v_mov_b32 v206, v201")
    a("v_alignbit_b32 v207, v182, v182, 16")
    a("s_mov_b32 exec_hi, 0")
    a(f"ds_write_b128 v248, v[200:203] offset:{68*16}")
    a(f"ds_write_b128 v248, v[204:207] offset:{CV_O + 68*16}")
    a("s_mov_b64 exec, s[54:55]")
    a("s_waitcnt lgkmcnt(7)")
    a("ds_write_b16 v251, v186")
    a("ds_write_b16 v245, v186")
    a("ds_write_b16 v251, v185 offset:384")
    a("ds_write_b16 v245, v185 offset:384")
    a(f"s_waitcnt vmcnt({pf}) lgkmcnt(0)")
    a("s_barrier")
    stamp(a)
    for op in loads(0):
        a(op)
    for rho in range(7):
        a("s_waitcnt lgkmcnt(0)")
        fill = loads(rho + 1)
        mm = mfmas(rho)
        if rho == 2:
            fill = window_pack() + fill + far_loads(0)
        elif rho == 3:
            mm = far_mfmas(0) + mm
            fill = fill + far_loads(1)
        elif rho == 4:
            mm = far_mfmas(1) + mm
        elif rho == 6:
            fill = fill + [f"ds_read_b64 {vr(UREG+2*t,2)}, v246 offset:{4096*t}" for t in range(8)]
        spread(mm, fill)
    a("s_waitcnt lgkmcnt(0)")
    seq = {t: [mfma(7, i, t - i) for i in range(min(t, 3) + 1)] for t in range(8)}
    for op in seq[0] + seq[1] + seq[2] + seq[3]:
        a(op)
    spread(seq[4] + seq[5], tile_epilogue(0) + tile_epilogue(1))
    spread(seq[6] + seq[7], tile_epilogue(2) + tile_epilogue(3))
    stamp(a)
    for op in interleave(tile_epilogue(4), tile_epilogue(5)) + interleave(tile_epilogue(6), tile_epilogue(7)):
        a(op)
    stamp_end(a, 1, 8)
    a("s_endpgm")


def gen_relayout(a):
    a(f"s_load_dwordx2 s[4:5], s[0:1], {KA_WD}")
    a(f"s_load_dwordx2 s[8:9], s[0:1], {KA_WS}")
    a("v_and_b32 v1, 63, v0")
    a("v_lshrrev_b32 v2, 6, v0")
    a(f"s_sub_u32 s28, s2, {N_G1 + N_CV}")
    a("s_mul_i32 s28, s28, 88")
    a("v_readfirstlane_b32 s30, v2")
    a("v_lshlrev_b32 v3, 4, v1")
    a("s_add_u32 s28, s28, s30")
    a("s_lshr_b32 s31, s28, 1")
    a("s_and_b32 s31, s31, 1")
    a("s_lshl_b32 s31, s31, 2")
    a("v_and_b32 v4, 7, v1")
    a("v_xor_b32 v4, s31, v4")
    a("v_lshrrev_b32 v5, 3, v1")
    a(f"s_mov_b32 s32, {WDT_TILE}")
    a("v_mul_lo_u32 v5, v5, s32")
    a("v_lshl_add_u32 v4, v4, 4, v5")
    a("s_lshl_b32 s33, s28, 10")
    a("s_lshl_b32 s34, s28, 7")
    a("s_waitcnt lgkmcnt(0)")
    srd(a, 12, 4, W_BYTES)
    srd(a, 16, 8, 8 * WDT_TILE, WS_WDT)
    for i in range(11):
        a(f"buffer_load_dwordx4 {vr(8+4*i,4)}, v3, s[12:15], s33 offen")
        a("s_add_u32 s33, s33, 8192")
    for i in range(11):
        a(f"s_waitcnt vmcnt(10)")
        a(f"buffer_store_dwordx4 {vr(8+4*i,4)}, v4, s[16:19], s34 offen offset:{(i%4)*1024}" + WT["wdt"])
        if i % 4 == 3:
            a("s_add_u32 s34, s34, 4096")
    a("s_endpgm")


def gen_k2(a):
    a.raw(".p2align 8")
    a.label("k2_kernel")
    a(f"s_cmp_ge_u32 s2, {N_G1 + N_CV + N_RL}")
    a("s_cbranch_scc1 k2_exit")
    a(f"s_cmp_ge_u32 s2, {N_G1 + N_CV}")
    a("s_cbranch_scc1 k2_relayout")
    a(f"s_cmp_ge_u32 s2, {N_G1}")
    a("s_cbranch_scc1 k2_conv")
    gen_gemm1(a)
    a.label("k2_conv")
    gen_conv(a)
    a.label("k2_relayout")
    gen_relayout(a)
    a.label("k2_exit")
    a("s_endpgm")


N_G2 = 256
G2_NS = 8
G2_STAGE = 16384
G2_AT = G2_NS * G2_STAGE
K3_LDS = G2_AT + 8192
G2_NST = FP // 64
G2_LEAD = 4


def gen_k3(a):
    a.raw(".p2align 8")
    a.label("k3_kernel")
    a(f"s_cmp_ge_u32 s2, {N_G2}")
    a("s_cbranch_scc1 k3_exit")
    stamp_begin(a)
    a(f"s_load_dwordx2 s[4:5], s[0:1], {KA_U}")
    a(f"s_load_dwordx4 s[8:11], s[0:1], {KA_WD}")
    a(f"s_load_dwordx2 s[6:7], s[0:1], {KA_WS}")
    a("v_and_b32 v1, 63, v0")
    a("v_lshrrev_b32 v2, 6, v0")
    a("s_and_b32 s32, s2, 7")
    a("s_lshr_b32 s33, s2, 3")
    a("v_readfirstlane_b32 s34, v2")
    a("s_lshl_b32 s32, s32, 8")
    a("s_and_b32 s35, s33, 3")
    a("s_lshl_b32 s35, s35, 6")
    a("s_add_u32 s32, s32, s35")
    a("s_lshr_b32 s33, s33, 2")
    a("s_lshl_b32 s33, s33, 6")
    a("s_cmp_lt_u32 s34, 4")
    a("s_cbranch_scc1 k3_compute")
    a("s_sub_u32 s34, s34, 4")
    a("v_lshrrev_b32 v3, 3, v1")
    a("v_and_b32 v4, 7, v1")
    a("v_lshrrev_b32 v5, 4, v1")
    a(f"v_mul_u32_u24 v7, {H_STRIDE}, v3")
    a("s_lshl_b32 s36, s34, 2")
    a("v_add_u32 v6, s36, v5")
    a("v_and_b32 v6, 7, v6")
    a("v_xor_b32 v6, v6, v4")
    a("v_lshl_add_u32 v8, v6, 4, v7")
    a("v_and_b32 v6, 1, v5")
    a("v_lshlrev_b32 v6, 2, v6")
    a("v_xor_b32 v6, v6, v4")
    a("v_lshlrev_b32 v6, 4, v6")
    a("v_lshlrev_b32 v10, 4, v1")
    a("v_lshl_add_u32 v12, v3, 12, v6")
    a("s_lshl_b32 s36, s34, 3")
    a("s_add_u32 s37, s36, s32")
    a(f"s_mul_i32 s37, s37, {H_STRIDE}")
    a(f"s_mul_i32 s38, s33, {WDT_TILE // 64}")
    a("s_lshl_b32 s39, s34, 10")
    a("s_add_u32 s38, s38, s39")
    a("s_add_u32 s39, s36, s33")
    a("s_lshl_b32 s39, s39, 12")
    a("s_lshl_b32 s40, s32, 1")
    a("s_add_u32 s39, s39, s40")
    a("s_lshl_b32 s40, s34, 10")
    a("s_waitcnt lgkmcnt(0)")
    srd(a, 16, 6, 8 * WDT_TILE, WS_WDT)
    srd(a, 12, 6, H_BYTES, WS_H)
    srd(a, 20, 6, L * D * 2, WS_AT)

    def dma(stage):
        b = (stage % G2_NS) * G2_STAGE
        a(f"s_add_u32 m0, s40, {b+8192}")
        a("s_nop 0")
        a("buffer_load_dwordx4 v10, s[16:19], s38 offen lds")
        a(f"s_add_u32 m0, s40, {b}")
        a("s_add_u32 s38, s38, 8192")
        a("buffer_load_dwordx4 v8, s[12:15], s37 offen lds")
        a("s_add_u32 s37, s37, 128")

    AT_AFTER = 3
    issued = 0
    for st in range(G2_NST):
        want = min(G2_NST - 1, 2 * st + 2, st + G2_LEAD)
        while issued <= want:
            dma(issued)
            if issued == AT_AFTER:
                a(f"s_add_u32 m0, s40, {G2_AT}")
                a("s_nop 0")
                a("buffer_load_dwordx4 v12, s[20:23], s39 offen lds")
            issued += 1
        vm = 2 * (issued - 1 - st) + (1 if st <= AT_AFTER < issued else 0)
        if st in (0, 8, 16):
            stamp(a)
        a(f"s_waitcnt vmcnt({vm})")
        a("s_barrier")
    stamp_end(a, 2, 6)
    a("s_endpgm")
    a.label("k3_compute")
    _stamp_n[0] = 1 if PROF else 0
    a("s_and_b32 s41, s34, 1")
    a("s_lshr_b32 s42, s34, 1")
    a("v_and_b32 v3, 31, v1")
    a("v_lshrrev_b32 v4, 5, v1")
    a("s_lshl_b32 s43, s41, 5")
    a("s_add_u32 s43, s43, s32")
    a("v_add_u32 v14, s43, v3")
    a("v_lshlrev_b32 v14, 10, v14")
    a("v_lshl_add_u32 v14, v4, 5, v14")
    a("s_lshl_b32 s44, s42, 5")
    a("s_add_u32 s44, s44, s33")
    a("s_lshl_b32 s44, s44, 1")
    a("v_lshrrev_b32 v5, 1, v3")
    a("v_and_b32 v5, 7, v5")
    a("v_xor_b32 v5, v5, v4")
    a("v_lshlrev_b32 v6, 7, v3")
    a("s_lshl_b32 s45, s41, 12")
    a("v_add_u32 v6, s45, v6")
    for ks in range(4):
        a(f"v_xor_b32 v7, {2*ks}, v5")
        a(f"v_lshl_add_u32 v{16+ks}, v7, 4, v6")
    a("v_and_b32 v5, 15, v1")
    a("v_lshrrev_b32 v6, 2, v5")
    a("v_and_b32 v5, 3, v5")
    a("v_lshrrev_b32 v7, 4, v1")
    a("v_and_b32 v7, 1, v7")
    a("v_lshlrev_b32 v21, 3, v5")
    a("v_lshl_add_u32 v21, v7, 5, v21")
    a("v_lshrrev_b32 v22, 1, v6")
    a("v_xor_b32 v23, s41, v22")
    a("v_lshl_add_u32 v21, v23, 6, v21")
    a("v_lshl_add_u32 v23, v4, 4, v6")
    a("v_lshl_add_u32 v21, v23, 7, v21")
    a("s_lshl_b32 s45, s42, 12")
    a(f"s_add_u32 s45, s45, {G2_AT}")
    a("v_add_u32 v21, s45, v21")
    a("v_and_b32 v15, 1, v5")
    a("v_lshlrev_b32 v15, 5, v15")
    a("v_lshl_add_u32 v15, v7, 4, v15")
    a("v_lshrrev_b32 v5, 1, v5")
    a("v_lshl_add_u32 v15, v5, 3, v15")
    a("v_xor_b32 v22, s42, v22")
    a("v_lshl_add_u32 v15, v22, 6, v15")
    a("v_lshl_add_u32 v6, v4, 3, v6")
    a("v_lshl_add_u32 v15, v6, 7, v15")
    a("v_add_u32 v20, 8192, v15")
    a("s_waitcnt lgkmcnt(0)")
    srd(a, 24, 4, L * D * 2)
    srd(a, 28, 10, L * D * 2)
    a("buffer_load_dwordx4 v[24:27], v14, s[24:27], s44 offen")
    a("buffer_load_dwordx4 v[28:31], v14, s[24:27], s44 offen offset:16")

    ACC = 32
    FS = [48, 80]
    XA = 112
    ATR = 128
    AT_ST = 10

    def reads(st):
        f = FS[st & 1]
        o = (st % 4) * G2_STAGE
        out = []
        for ks in range(4):
            out.append(f"ds_read_b64_tr_b16 {vr(f+8*ks,2)}, v20 offset:{o+ks*2048}")
            out.append(f"ds_read_b64_tr_b16 {vr(f+8*ks+2,2)}, v20 offset:{o+ks*2048+512}")
            out.append(f"ds_read_b128 {vr(f+8*ks+4,4)}, v{16+ks} offset:{o}")
        return out

    def mfmas(st):
        f = FS[st & 1]
        c = vr(ACC, 16)
        return [f"v_mfma_f32_32x32x16_bf16 {c}, {vr(f+8*ks,4)}, {vr(f+8*ks+4,4)}, "
                f"{'0' if st == 0 and ks == 0 else c}" for ks in range(4)]

    def xa_ops(k):
        x, t = XA + 2 * k, 4
        return [f"v_lshlrev_b32 v{x}, 16, v{24+k}",
                f"v_and_b32 v{x+1}, 0xffff0000, v{24+k}",
                f"v_lshlrev_b32 v{t}, 16, v{ATR+k}",
                f"v_and_b32 v{t+1}, 0xffff0000, v{ATR+k}",
                f"v_pk_add_f32 {vr(x,2)}, {vr(x,2)}, {vr(t,2)}",
                f"v_cvt_pk_bf16_f32 v{x+1}, v{x}, v{x+1}",
                f"v_lshlrev_b32 v{x}, 16, v{x+1}",
                f"v_and_b32 v{x+1}, 0xffff0000, v{x+1}"]

    for st in range(-1, G2_NST):
        nx = st + 1
        body = []
        if nx < G2_NST:
            if nx in (0, 8, 16):
                stamp(a)
            a("s_waitcnt lgkmcnt(0)" if nx != AT_ST + 1 else "s_waitcnt vmcnt(0) lgkmcnt(0)")
            a("s_barrier")
            if nx and nx % 4 == 0:
                delta = 65536 if (nx % G2_NS) == 4 else -65536
                for r in (16, 17, 18, 19, 20):
                    a(f"v_add_u32 v{r}, {delta & 0xffffffff:#x}, v{r}")
            body = reads(nx)
            if nx == AT_ST:
                body += [f"ds_read_b64_tr_b16 {vr(ATR+2*i,2)}, v21 offset:{512*i}" for i in range(4)]
        else:
            a("s_waitcnt lgkmcnt(0)")
        if st >= 0:
            body = interleave(body, mfmas(st), every=3) if body else mfmas(st)
        if AT_ST < nx <= AT_ST + 4:
            k = 2 * (nx - AT_ST - 1)
            body += xa_ops(k) + xa_ops(k + 1)
        for op in body:
            a(op)
    a("s_nop 15")
    stamp(a)
    for k in range(8):
        a(f"v_cvt_pk_bf16_f32 v{48+k}, v{ACC+2*k}, v{ACC+2*k+1}")
    for k in range(8):
        a(f"v_lshlrev_b32 v{ACC+2*k}, 16, v{48+k}")
        a(f"v_and_b32 v{ACC+2*k+1}, 0xffff0000, v{48+k}")
    for k in range(8):
        a(f"v_pk_add_f32 {vr(ACC+2*k,2)}, {vr(ACC+2*k,2)}, {vr(XA+2*k,2)}")
    for k in range(8):
        a(f"v_cvt_pk_bf16_f32 v{56+k}, v{ACC+2*k}, v{ACC+2*k+1}")
        if k == 3:
            a("buffer_store_dwordx4 v[56:59], v14, s[28:31], s44 offen" + WT["out"])
    a("buffer_store_dwordx4 v[60:63], v14, s[28:31], s44 offen offset:16" + WT["out"])
    stamp_end(a, 2, 6)
    a.label("k3_exit")
    a("s_endpgm")


def gen_k4(a):
    a.raw(".p2align 8")
    a.label("k4_kernel")
    a("s_cmp_ge_u32 s2, 1")
    a("s_cbranch_scc1 k4_exit")
    a(f"s_load_dwordx4 s[4:7], s[0:1], {KA_DBG}")
    a("s_memrealtime s[20:21]")
    a("s_waitcnt lgkmcnt(0)")
    srd(a, 8, 6, 0x1000000, PROF_BASE)
    srd(a, 12, 4, 256)
    groups = [(0, 0, 256, 0, 4), (0, 0, 256, 4, 8), (1, 0, 176, 0, 4), (1, 176, 240, 0, 8), (2, 0, 256, 0, 4)]
    for gi, (l, lo, hi, w0, w1) in enumerate(groups):
        a("v_mov_b32 v4, -1")
        a("v_mov_b32 v5, 0")
        for base in range(lo, hi, 64):
            n = min(64, hi - base)
            a(f"v_min_u32 v2, {n-1}, v0")
            a(f"v_add_u32 v2, {l*512 + base}, v2")
            a("v_lshlrev_b32 v2, 10, v2")
            for w in range(w0, w1):
                a(f"buffer_load_dwordx2 {vr(8+2*(w-w0),2)}, v2, s[8:11], 0 offen offset:{64*w}")
            a("s_waitcnt vmcnt(0)")
            for w in range(w0, w1):
                a(f"v_min_u32 v4, v4, v{8+2*(w-w0)}")
                a(f"v_max_u32 v5, v5, v{9+2*(w-w0)}")
        a("s_mov_b32 s22, -1")
        a("s_mov_b32 s23, 0")
        for ln in range(64):
            a(f"v_readlane_b32 s24, v4, {ln}")
            a(f"v_readlane_b32 s25, v5, {ln}")
            a("s_nop 1")
            a("s_min_u32 s22, s22, s24")
            a("s_max_u32 s23, s23, s25")
        a(f"s_mov_b32 s{30+2*gi}, s22")
        a(f"s_mov_b32 s{31+2*gi}, s23")
    a("v_mov_b32 v3, 0")
    for i in range(10):
        a(f"s_sub_u32 s24, s{30+i}, s30")
        a("v_mov_b32 v6, s24")
        a(f"buffer_store_dword v6, v3, s[12:15], 0 offen offset:{4*i}")
        a("s_nop 1")
    a("s_sub_u32 s24, s20, s30")
    a("v_mov_b32 v6, s24")
    a("buffer_store_dword v6, v3, s[12:15], 0 offen offset:40")
    if SPIN:
        hi, lo = SPIN
        a("s_max_u32 s31, s31, s33")
        a("s_min_u32 s34, s34, s36")
        a("s_max_u32 s35, s35, s37")
        a(f"s_sub_u32 s24, s{hi}, s{lo}")
        a("s_min_u32 s24, s24, 3000")
        a("s_lshl_b32 s24, s24, 2")
        a("s_memrealtime s[26:27]")
        a("s_waitcnt lgkmcnt(0)")
        a("s_add_u32 s24, s24, s26")
        a.label("k4_spin")
        a("s_memrealtime s[26:27]")
        a("s_waitcnt lgkmcnt(0)")
        a("s_sub_u32 s25, s24, s26")
        a("s_cmp_gt_i32 s25, 0")
        a("s_cbranch_scc1 k4_spin")
    a.label("k4_exit")
    a("s_endpgm")


def descriptor(name, vgpr, sgpr):
    acc = (vgpr + 3) // 4 * 4
    return f""".p2align 6
.amdhsa_kernel {name}
  .amdhsa_next_free_vgpr {vgpr}
  .amdhsa_next_free_sgpr {sgpr}
  .amdhsa_accum_offset {acc}
  .amdhsa_group_segment_fixed_size 0
  .amdhsa_kernarg_size 112
  .amdhsa_user_sgpr_count 2
  .amdhsa_user_sgpr_kernarg_segment_ptr 1
  .amdhsa_system_sgpr_workgroup_id_x 1
.end_amdhsa_kernel
"""


def main(path):
    a = Asm()
    a.raw(f"; @launch kernel=k1_kernel grid=({N_K1},1,1) block=(512,1,1) lds={K1_LDS}")
    a.raw(f"; @launch kernel=k2_kernel grid=({N_G1+N_CV+N_RL},1,1) block=(512,1,1) lds={K2_LDS}")
    a.raw(f"; @launch kernel=k3_kernel grid=({N_G2},1,1) block=(768,1,1) lds={K3_LDS}")
    if K4:
        a.raw("; @launch kernel=k4_kernel grid=(1,1,1) block=(64,1,1) lds=0")
    a.raw('.amdgcn_target "amdgcn-amd-amdhsa--gfx950"')
    a.raw(".text")
    for k in ("k1_kernel", "k2_kernel", "k3_kernel") + (("k4_kernel",) if K4 else ()):
        a.raw(f".globl {k}")
        a.raw(f".type {k},@function")
    gen_k1(a)
    gen_k2(a)
    gen_k3(a)
    a.label("code_end")
    if K4:
        gen_k4(a)
    a.raw('.section .rodata,"a"')
    if K4:
        a.raw(descriptor("k4_kernel", 32, 48))
    sg = 102 if PROF else 0
    a.raw(descriptor("k1_kernel", 164, max(sg, 74)))
    a.raw(descriptor("k2_kernel", 256, max(sg, 56)))
    a.raw(descriptor("k3_kernel", 136, max(sg, 56)))
    open(path, "w").write(a.text())


if __name__ == "__main__":
    for arg in list(sys.argv):
        if arg.startswith("--spin="):
            SPIN = tuple(int(x) for x in arg[7:].split(","))
            sys.argv.remove(arg)
        if arg.startswith("--wt="):
            flag, names = arg[5:].split(":")
            for nm in names.split(","):
                WT[nm] = " " + flag.replace("+", " ")
            sys.argv.remove(arg)
        if arg.startswith("--epi="):
            EPI = arg[6:]
            sys.argv.remove(arg)
    if "--nocodepf" in sys.argv:
        sys.argv.remove("--nocodepf")
        CODE_PF = False
    if "--notouch" in sys.argv:
        sys.argv.remove("--notouch")
        TOUCH = False
    if "--k4" in sys.argv:
        sys.argv.remove("--k4")
        K4 = PROF = True
    if "--prof" in sys.argv:
        sys.argv.remove("--prof")
        PROF = True
    main(sys.argv[1] if len(sys.argv) > 1 else f"cdna_kernels/{NAME}.s")
```

```python
import struct
import sys

NAME = "parallel_sum__ssm_conv_s4d__glu_gated_reglu__prompt"

L, D, N, F = 2048, 512, 128, 1376
FP = 1408
WS_XN = 0x000000
WS_XNT = 0x240000
WS_KR = 0x480000
WS_H = 0x880000
WS_AT = 0xE80000
XN_STRIDE = 1024 + 128
XN_BYTES = L * XN_STRIDE
H_STRIDE = 2 * FP + 128
H_BYTES = L * H_STRIDE
XNT_STRIDE = 8192 + 128
XNT_BYTES = (L // 8) * XNT_STRIDE
W_BYTES = D * F * 2
WS_WDT = WS_AT + L * D * 2
WDT_TILE = FP * 128
WS_END = WS_WDT + 8 * WDT_TILE
TOUCH = False
CODE_PF = True
G1_MAP = True
EPI = "dot"
WT = dict(xn="", xnt="", k="", at="", wdt="", h="", out="")

KA_U, KA_LAR, KA_AI, KA_CR, KA_CI, KA_LDT, KA_DSK, KA_BX, KA_WG, KA_WU, KA_WD, KA_OUT, KA_DBG, KA_WS = \
    [8 * i for i in range(14)]


def f32(x):
    return "0x%08x" % struct.unpack("<I", struct.pack("<f", x))[0]


class Asm:
    def __init__(self):
        self.lines = []

    def __call__(self, s):
        for ln in s.strip("\n").split("\n"):
            self.lines.append("  " + ln.strip())

    def label(self, s):
        self.lines.append(s + ":")

    def raw(self, s):
        self.lines.append(s)

    def text(self):
        return "\n".join(self.lines) + "\n"


PROF = False
K4 = False
SPIN = None
PROF_BASE = 0x1400000
_stamp_n = [0]


def stamp_begin(a):
    _stamp_n[0] = 0
    if PROF:
        a("s_memrealtime s[80:81]")
        a("s_memtime s[82:83]")
        _stamp_n[0] = 1


def stamp(a):
    if PROF:
        k = _stamp_n[0]
        a(f"s_memtime s[{82+2*k}:{83+2*k}]")
        _stamp_n[0] += 1


def stamp_end(a, launch, ws_lo):
    if not PROF:
        return
    stamp(a)
    n = _stamp_n[0]
    a("s_waitcnt lgkmcnt(0)")
    a("s_memrealtime s[98:99]")
    a(f"s_add_u32 s76, s{ws_lo}, {PROF_BASE}")
    a(f"s_addc_u32 s77, s{ws_lo+1}, 0")
    a("s_mov_b32 s78, 0x1000000")
    a("s_mov_b32 s79, 0x00020000")
    a("v_lshrrev_b32 v2, 6, v0")
    a(f"s_add_u32 s75, s2, {launch*512}")
    a("s_lshl_b32 s75, s75, 10")
    a("v_lshlrev_b32 v2, 6, v2")
    a("v_add_u32 v2, s75, v2")
    a("s_waitcnt lgkmcnt(0)")
    a("v_mov_b32 v4, s80")
    a("v_mov_b32 v5, s98")
    a("buffer_store_dwordx2 v[4:5], v2, s[76:79], 0 offen")
    for k in range(n):
        a(f"v_mov_b32 v6, s{82+2*k}")
        a(f"buffer_store_dword v6, v2, s[76:79], 0 offen offset:{8+4*k}")
        a("s_nop 1")


def vr(b, n):
    return "v[%d:%d]" % (b, b + n - 1)


def sr(b, n):
    return "s[%d:%d]" % (b, b + n - 1)


def srd(a, dst, base, nbytes, add=0):
    if add:
        a(f"s_add_u32 s{dst}, s{base}, {add}")
        a(f"s_addc_u32 s{dst+1}, s{base+1}, 0")
    else:
        a(f"s_mov_b32 s{dst}, s{base}")
        a(f"s_mov_b32 s{dst+1}, s{base+1}")
    a(f"s_mov_b32 s{dst+2}, {nbytes}")
    a(f"s_mov_b32 s{dst+3}, 0x00020000")


_pc_n = [0]


def code_prefetch(a, lo, hi, slice_sgpr, lane16, dst, sbase):
    _pc_n[0] += 1
    lab = f"pc_ref{_pc_n[0]}"
    a(f"s_getpc_b64 {sr(sbase,2)}")
    a.label(lab)
    a(f"s_add_u32 s{sbase}, s{sbase}, ({lo} - {lab}) & 0xffffffff")
    a(f"s_addc_u32 s{sbase+1}, s{sbase+1}, (({lo} - {lab}) >> 32) & 0xffffffff")
    a(f"s_mov_b32 s{sbase+2}, {hi} - {lo}")
    a(f"s_mov_b32 s{sbase+3}, 0x00020000")
    a(f"s_lshl_b32 s{slice_sgpr}, s{slice_sgpr}, 10")
    a(f"buffer_load_dwordx4 {vr(dst,4)}, v{lane16}, {sr(sbase,4)}, s{slice_sgpr} offen")


def interleave(main, fill, every=1, start=0):
    out = []
    fill = list(fill)
    for i, m in enumerate(main):
        out.append(m)
        if i >= start and (i - start) % every == every - 1 and fill:
            out.append(fill.pop(0))
    out.extend(fill)
    return out


N_K1 = 256
LN_STRIDE = 1088
KG_ROW = 544
KG_XA, KG_YB, KG_T = 0, 24 * KG_ROW, 56 * KG_ROW
KG_CH = KG_T + 3072
LN_LDS = 2 * KG_CH
K1_LDS = LN_LDS + 8 * LN_STRIDE
LOG2E = 1.4426950408889634
L_HI = 47274.0 / 32768.0
C_LO = (LOG2E - L_HI) * 0.6931471805599453
T_BIAS = 0x3F7F
KT_BYTES = 3072
KT_O, KT_TAB = 1024, 2048
PF_W = 6


def dpp_reduce(a, regs):
    steps = ["row_shr:1 row_mask:0xf bank_mask:0xf bound_ctrl:0",
             "row_shr:2 row_mask:0xf bank_mask:0xf bound_ctrl:0",
             "row_shr:4 row_mask:0xf bank_mask:0xf bound_ctrl:0",
             "row_shr:8 row_mask:0xf bank_mask:0xf bound_ctrl:0",
             "row_bcast:15 row_mask:0xa bank_mask:0xf",
             "row_bcast:31 row_mask:0xc bank_mask:0xf"]
    a("s_nop 1")
    for st in steps:
        for r in regs:
            a(f"v_add_f32_dpp v{r}, v{r}, v{r} {st}")
    a("s_nop 1")


def bf16_round(a, dst, src):
    a(f"v_cvt_pk_bf16_f32 v{dst}, v{src}, v{src}")
    a(f"v_lshlrev_b32 v{dst}, 16, v{dst}")


def gen_ln(a):
    stamp_begin(a)
    if CODE_PF:
        a("v_lshlrev_b32 v3, 4, v1")
        a("s_lshr_b32 s45, s2, 3")
        a("s_lshl_b32 s45, s45, 1")
        a("s_sub_u32 s46, s44, 6")
        a("s_add_u32 s45, s45, s46")
        a("s_cmp_lt_u32 s44, 6")
        a("s_cbranch_scc1 k1_no_pf")
        code_prefetch(a, "k1_kernel", "code_end", 45, 3, 76, 56)
        a("s_branch k1_pf_done")
        a.label("k1_no_pf")
        a("s_nop 0")
        a.label("k1_pf_done")
    a(f"s_load_dwordx2 s[4:5], s[0:1], {KA_U}")
    a(f"s_load_dwordx2 s[6:7], s[0:1], {KA_WS}")
    a(f"s_load_dwordx4 s[48:51], s[0:1], {KA_WG}")
    a(f"s_load_dwordx4 s[68:71], s[0:1], {KA_WD}")
    a(f"s_load_dwordx2 s[54:55], s[0:1], {KA_DSK}")
    a("s_sub_u32 s22, s44, 4")
    a("s_and_b32 s20, s2, 7")
    a("s_lshr_b32 s21, s2, 3")
    a("s_lshl_b32 s20, s20, 8")
    a("s_lshl_b32 s23, s21, 3")
    a("s_add_u32 s20, s20, s23")
    a("s_lshl_b32 s23, s22, 1")
    a("s_add_u32 s23, s23, s20")
    a("s_lshl_b32 s24, s23, 10")
    a(f"s_mul_i32 s53, s23, {XN_STRIDE}")
    a("v_lshlrev_b32 v3, 4, v1")
    a("s_lshl_b32 s52, s2, 2")
    a("s_add_u32 s52, s52, s22")
    a("s_lshl_b32 s52, s52, 11")
    a(f"s_mul_i32 s25, s22, {2*LN_STRIDE}")
    a(f"s_add_u32 s25, s25, {LN_LDS}")
    a("v_add_u32 v4, s25, v3")
    a("v_and_b32 v5, 15, v1")
    a("v_lshrrev_b32 v6, 2, v5")
    a("v_and_b32 v5, 3, v5")
    a("v_lshrrev_b32 v7, 4, v1")
    a(f"v_mul_u32_u24 v6, {LN_STRIDE}, v6")
    a("v_lshlrev_b32 v5, 3, v5")
    a("v_lshl_add_u32 v5, v7, 5, v5")
    a("v_add_u32 v5, v5, v6")
    a("s_lshl_b32 s26, s22, 8")
    a(f"s_add_u32 s26, s26, {LN_LDS}")
    a("v_add_u32 v5, s26, v5")
    a("s_lshl_b32 s27, s22, 7")
    a("v_add_u32 v6, s27, v1")
    a("v_lshlrev_b32 v6, 4, v6")
    a(f"s_mul_i32 s28, s20, {XNT_STRIDE // 8}")
    a("s_waitcnt lgkmcnt(0)")
    srd(a, 8, 4, L * D * 2)
    for r in range(2):
        a(f"buffer_load_dwordx4 {vr(8+4*r,4)}, v3, s[8:11], s24 offen offset:{r*1024}")
    srd(a, 56, 48, W_BYTES)
    srd(a, 60, 50, W_BYTES)
    srd(a, 64, 68, W_BYTES)
    if TOUCH:
        a("s_cmp_ge_u32 s2, 16")
        a("s_cbranch_scc1 k1_no_touch")
        srd(a, 12, 6, WS_END)
        srd(a, 16, 70, L * D * 2)
        a("v_lshlrev_b32 v60, 18, v1")
        a("s_lshl_b32 s45, s22, 16")
        a("buffer_load_dword v61, v60, s[12:15], s45 offen")
        a("v_lshlrev_b32 v60, 15, v1")
        a(f"s_mov_b32 s45, {1 << 24}")
        a("buffer_load_dword v61, v60, s[12:15], s45 offen")
        a("buffer_load_dword v61, v60, s[16:19], 0 offen")
        srd(a, 16, 54, D * 2)
        a("buffer_load_dword v61, v3, s[16:19], 0 offen")
        for i in range(2):
            a(f"buffer_load_dwordx4 v[72:75], v3, s[56:59], s52 offen offset:{i*1024}")
        a("s_branch k1_touched")
        a.label("k1_no_touch")
    for i in range(2):
        for b in (56, 60, 64):
            a(f"buffer_load_dwordx4 v[72:75], v3, {sr(b,4)}, s52 offen offset:{i*1024}")
    if TOUCH:
        a.label("k1_touched")
    srd(a, 12, 6, XN_BYTES, WS_XN)
    srd(a, 16, 6, XNT_BYTES, WS_XNT)
    X = lambda r, e: 32 + 8 * r + e
    stamp(a)
    for r in range(2):
        a(f"s_waitcnt vmcnt({PF_W + 1 - r})")
        if r == 0:
            stamp(a)
        for k in range(4):
            a(f"v_lshlrev_b32 v{X(r,2*k)}, 16, v{8+4*r+k}")
            a(f"v_and_b32 v{X(r,2*k+1)}, 0xffff0000, v{8+4*r+k}")
        a(f"v_readfirstlane_b32 s{30+2*r}, v{X(r,0)}")
        a(f"v_pk_add_f32 v[48:49], {vr(X(r,0),2)}, {vr(X(r,2),2)}")
        a(f"v_pk_add_f32 v[50:51], {vr(X(r,4),2)}, {vr(X(r,6),2)}")
        a(f"s_mov_b32 s{31+2*r}, s{30+2*r}")
        a("v_pk_add_f32 v[48:49], v[48:49], v[50:51]")
        for k in range(4):
            a(f"v_pk_add_f32 {vr(52+2*k,2)}, {vr(X(r,2*k),2)}, {sr(30+2*r,2)} neg_lo:[0,1] neg_hi:[0,1]")
        a(f"v_add_f32 v{24+2*r}, v48, v49")
        a("v_pk_mul_f32 v[50:51], v[52:53], v[52:53]")
        a("v_pk_mul_f32 v[48:49], v[54:55], v[54:55]")
        a("v_pk_fma_f32 v[50:51], v[56:57], v[56:57], v[50:51]")
        a("v_pk_fma_f32 v[48:49], v[58:59], v[58:59], v[48:49]")
        a("v_pk_add_f32 v[48:49], v[48:49], v[50:51]")
        a(f"v_add_f32 v{25+2*r}, v48, v49")
    dpp_reduce(a, [24, 25, 26, 27])
    for r in range(2):
        a(f"v_mul_f32 v{24+2*r}, {f32(1.0/512)}, v{24+2*r}")
        a(f"v_mul_f32 v{25+2*r}, {f32(1.0/512)}, v{25+2*r}")
    for r in range(2):
        a(f"v_subrev_f32 v{28+r}, s{30+2*r}, v{24+2*r}")
        bf16_round(a, 24 + 2 * r, 24 + 2 * r)
    for r in range(2):
        a(f"v_fma_f32 v{25+2*r}, -v{28+r}, v{28+r}, v{25+2*r}")
        a(f"v_max_f32 v{25+2*r}, 0, v{25+2*r}")
    for r in range(2):
        bf16_round(a, 25 + 2 * r, 25 + 2 * r)
    for r in range(2):
        a(f"v_add_f32 v{25+2*r}, {f32(1e-5)}, v{25+2*r}")
        a(f"v_readlane_b32 s{36+2*r}, v{24+2*r}, 63")
    for r in range(2):
        bf16_round(a, 25 + 2 * r, 25 + 2 * r)
    for r in range(2):
        a(f"v_sqrt_f32 v{25+2*r}, v{25+2*r}")
    for r in range(2):
        a(f"s_mov_b32 s{37+2*r}, s{36+2*r}")
    for r in range(2):
        bf16_round(a, 25 + 2 * r, 25 + 2 * r)
    for r in range(2):
        a(f"v_rcp_f32 v{25+2*r}, v{25+2*r}")
    for r in range(2):
        for k in range(4):
            a(f"v_pk_add_f32 {vr(X(r,2*k),2)}, {vr(X(r,2*k),2)}, {sr(36+2*r,2)} neg_lo:[0,1] neg_hi:[0,1]")
    for r in range(2):
        a(f"v_readlane_b32 s{40+2*r}, v{25+2*r}, 63")
    for r in range(2):
        for k in range(4):
            a(f"v_cvt_pk_bf16_f32 v{8+4*r+k}, v{X(r,2*k)}, v{X(r,2*k+1)}")
    for r in range(2):
        a(f"s_mov_b32 s{41+2*r}, s{40+2*r}")
    for r in range(2):
        for k in range(4):
            a(f"v_lshlrev_b32 v{X(r,2*k)}, 16, v{8+4*r+k}")
            a(f"v_and_b32 v{X(r,2*k+1)}, 0xffff0000, v{8+4*r+k}")
        for k in range(4):
            a(f"v_pk_mul_f32 {vr(X(r,2*k),2)}, {vr(X(r,2*k),2)}, {sr(40+2*r,2)}")
        for k in range(4):
            a(f"v_cvt_pk_bf16_f32 v{16+4*r+k}, v{X(r,2*k)}, v{X(r,2*k+1)}")
        a(f"ds_write_b128 v4, {vr(16+4*r,4)} offset:{r*LN_STRIDE}")
        a(f"buffer_store_dwordx4 {vr(16+4*r,4)}, v3, s[12:15], s53 offen offset:{r*XN_STRIDE}" + WT["xn"])
    a("s_waitcnt lgkmcnt(0)")
    stamp(a)
    a("s_barrier")
    for blk in range(2):
        for tb in range(2):
            a(f"ds_read_b64_tr_b16 {vr(32+4*blk+2*tb,2)}, v5 offset:{blk*128 + tb*4*LN_STRIDE}")
    a("s_waitcnt lgkmcnt(2)")
    a("buffer_store_dwordx4 v[32:35], v6, s[16:19], s28 offen" + WT["xnt"])
    a("s_waitcnt lgkmcnt(0)")
    a("buffer_store_dwordx4 v[36:39], v6, s[16:19], s28 offen offset:1024" + WT["xnt"])
    stamp_end(a, 0, 6)
    a("s_endpgm")


def exp_acc(a, dst, x, t):
    a(f"v_mul_f32 v{dst}, {f32(L_HI)}, v{x}")
    a(f"v_exp_f32 v{dst}, v{dst}")
    a(f"v_mul_f32 v{t}, {f32(C_LO)}, v{x}")
    a(f"v_fma_f32 v{dst}, v{dst}, v{t}, v{dst}")


def cmul(t, z, w):
    return [f"v_pk_mul_f32 {vr(t,2)}, {vr(z,2)}, {vr(w,2)} op_sel:[0,0] op_sel_hi:[1,0]",
            f"v_pk_fma_f32 {vr(t,2)}, {vr(z,2)}, {vr(w,2)}, {vr(t,2)} op_sel:[1,1,0] op_sel_hi:[0,1,1] "
            f"neg_lo:[1,0,0]"]


def gen_kgen(a):
    stamp_begin(a)
    a(f"s_load_dwordx8 s[4:11], s[0:1], {KA_LAR}")
    a(f"s_load_dwordx2 s[12:13], s[0:1], {KA_LDT}")
    a(f"s_load_dwordx2 s[14:15], s[0:1], {KA_WS}")
    a("s_and_b32 s41, s2, 7")
    a("s_lshr_b32 s42, s2, 3")
    a("s_lshr_b32 s43, s42, 2")
    a("s_lshl_b32 s43, s43, 6")
    a("s_lshl_b32 s41, s41, 3")
    a("s_add_u32 s41, s41, s43")
    a("s_and_b32 s42, s42, 3")
    a("s_lshl_b32 s42, s42, 1")
    a("s_add_u32 s41, s41, s42")
    a("s_lshr_b32 s45, s44, 1")
    a("s_and_b32 s46, s44, 1")
    a("s_add_u32 s47, s41, s45")
    a("s_lshl_b32 s48, s46, 6")
    a("v_add_u32 v3, s48, v1")
    a("s_lshl_b32 s49, s47, 8")
    a("v_lshlrev_b32 v4, 1, v3")
    a("s_lshl_b32 s50, s47, 1")
    a("v_mov_b32 v5, s50")
    a("s_waitcnt lgkmcnt(0)")
    srd(a, 16, 4, D * N * 2)
    srd(a, 32, 12, D * 2)
    a("buffer_load_ushort v8, v4, s[16:19], s49 offen")
    a("buffer_load_ushort v12, v5, s[32:35], 0 offen")
    srd(a, 20, 6, D * N * 2)
    a("buffer_load_ushort v9, v4, s[20:23], s49 offen")
    srd(a, 24, 8, D * N * 2)
    a("buffer_load_ushort v10, v4, s[24:27], s49 offen")
    srd(a, 28, 10, D * N * 2)
    a("buffer_load_ushort v11, v4, s[28:31], s49 offen")
    srd(a, 36, 14, D * KT_BYTES, WS_KR)
    a(f"s_mul_i32 s51, s45, {KG_CH}")
    a("v_lshlrev_b32 v6, 2, v3")
    a("v_add_u32 v6, s51, v6")
    a("v_and_b32 v7, 15, v1")
    a("v_lshrrev_b32 v2, 4, v1")
    a(f"v_mul_u32_u24 v13, {KG_ROW}, v7")
    a("v_lshl_add_u32 v13, v2, 4, v13")
    a("v_add_u32 v100, s51, v13")
    a(f"s_mul_i32 s52, s46, {16*KG_ROW}")
    a("v_add_u32 v101, s52, v100")
    quads = [(0, 1), (4, 1), (256, 2), (512, 256)], [(1536, 256), (516, 256), (4097, 0), (4097, 0)]
    a("s_cmp_eq_u32 s46, 0")
    for q in range(4):
        a(f"s_mov_b32 s64, {f32(float(quads[0][q][0]))}")
        a(f"s_mov_b32 s65, {f32(float(quads[0][q][1]))}")
        a(f"s_cselect_b32 s{56+q}, s64, {f32(float(quads[1][q][0]))}")
        a(f"s_cselect_b32 s{60+q}, s65, {f32(float(quads[1][q][1]))}")
    a("v_mov_b32 v14, s56")
    a("v_mov_b32 v15, s60")
    for q in range(1, 4):
        a(f"v_cmp_eq_u32 vcc, {q}, v2")
        a(f"v_mov_b32 v16, s{56+q}")
        a(f"v_mov_b32 v17, s{60+q}")
        a("v_cndmask_b32 v14, v14, v16, vcc")
        a("v_cndmask_b32 v15, v15, v17, vcc")
    a("v_cvt_f32_u32 v16, v7")
    a("v_fmac_f32 v14, 0x41000000, v16")
    a(f"s_add_u32 s53, s51, {KG_T + KT_TAB - 2*0x4380}")
    a(f"s_add_u32 s54, s51, {KG_T + 3000}")
    a(f"s_add_u32 s57, s51, {KG_T + 510}")
    a(f"s_add_u32 s58, s51, {KG_T + KT_O + 512}")
    a("v_mov_b32 v19, s54")
    TW, TW2 = 102, 112
    for jt in range(2):
        for r in range(4):
            p = 20 + 4 * jt + r
            if r == 0:
                a(f"v_mov_b32 v{p}, v14" if jt == 0 else f"v_add_f32 v{p}, 0x43000000, v14")
            else:
                a(f"v_add_f32 v{p}, v{p-1}, v15")
    for i in range(8):
        p, b, b2 = 20 + i, TW + i, TW2 + i
        a(f"v_cvt_pk_bf16_f32 v{b}, v{p}, v{p}")
        a(f"v_cvt_u32_f32 v17, v{p}")
        a(f"v_and_b32 v16, 0xffff0000, v{b}")
        a(f"v_cmp_eq_u32 vcc, v16, v{p}")
        a(f"v_and_b32 v{b}, 0xffff, v{b}")
        a(f"v_lshl_add_u32 v{b}, v{b}, 1, s53")
        a(f"v_cndmask_b32 v{b}, v19, v{b}, vcc")
        a("v_lshlrev_b32 v16, 1, v17")
        a("v_cmp_gt_u32 vcc, 256, v17")
        a("v_sub_u32 v18, s57, v16")
        a(f"v_sub_u32 v{b2}, s58, v16")
        a(f"v_cndmask_b32 v{b}, v{b}, v18, vcc")
        a("v_cmp_ge_u32 vcc, 256, v17")
        a("s_nop 1")
        a(f"v_cndmask_b32 v{b2}, v19, v{b2}, vcc")
    a("v_mov_b32 v20, 0")
    a("v_mov_b32 v21, 0")
    a("v_mov_b32 v22, 0")
    a("v_mov_b32 v23, 0")
    a("v_and_b32 v16, 1, v1")
    a("v_lshlrev_b32 v16, 4, v16")
    a(f"s_mul_i32 s59, s46, {KT_O}")
    a("s_add_u32 s59, s59, s57")
    a("v_add_u32 v16, s59, v16")
    a("ds_write_b128 v16, v[20:23] offset:2")
    a("v_lshlrev_b32 v130, 4, v3")
    a(f"s_add_u32 s55, s51, {KG_T}")
    a("v_add_u32 v110, s55, v130")
    a(f"s_mul_i32 s55, s47, {KT_BYTES}")
    a("v_mov_b32 v14, 0x00003f80")
    a(f"ds_write_b32 v6, v14 offset:{KG_YB}")
    stamp(a)
    a("s_waitcnt vmcnt(3)")
    stamp(a)
    a("v_lshlrev_b32 v12, 16, v12")
    a("v_lshlrev_b32 v8, 16, v8")
    exp_acc(a, 13, 12, 14)
    exp_acc(a, 15, 8, 16)
    bf16_round(a, 13, 13)
    bf16_round(a, 15, 15)
    a("s_waitcnt vmcnt(2)")
    a("v_lshlrev_b32 v9, 16, v9")
    a("v_mul_f32 v15, v15, v13")
    a("v_mul_f32 v16, v9, v13")
    a(f"v_mul_f32 v15, {f32(-LOG2E)}, v15")
    a(f"v_mul_f32 v16, {f32(0.15915494309189535)}, v16")
    seeds = [(1, 20, 1), (256, 22, 1), (8, 24, -1), (64, 26, -1)]
    for i, (p, z, sg) in enumerate(seeds):
        a(f"v_mul_f32 v{32+i}, {f32(float(p))}, v15")
        a(f"v_mul_f32 v{36+i}, {f32(float(p*sg))}, v16")
    for i in range(4):
        a(f"v_exp_f32 v{32+i}, v{32+i}")
        a(f"v_fract_f32 v{36+i}, v{36+i}")
    for i, (p, z, sg) in enumerate(seeds):
        a(f"v_cos_f32 v{z}, v{36+i}")
        a(f"v_sin_f32 v{z+1}, v{36+i}")
    a("s_waitcnt vmcnt(0)")
    a("v_lshlrev_b32 v10, 16, v10")
    a("v_lshlrev_b32 v11, 16, v11")
    a("v_add_f32 v13, v13, v13")
    for i, (p, z, sg) in enumerate(seeds):
        a(f"v_mul_f32 v{z}, v{32+i}, v{z}")
        a(f"v_mul_f32 v{z+1}, v{32+i}, v{z+1}")
    a("v_mul_f32 v28, v10, v13")
    a("v_mul_f32 v29, v11, v13")
    E1, E256, Y8, Y64, C = 20, 22, 24, 26, 28
    E2, E4, Y128, Y192 = 40, 42, 44, 46

    def emit(z, off, t):
        return [f"v_cvt_pk_bf16_f32 v{t}, v{z}, v{z+1}", f"ds_write_b32 v6, v{t} offset:{off}"]

    xrow = lambda q, r: KG_XA + (4 * q + r) * KG_ROW
    yrow = lambda j: KG_YB + j * KG_ROW

    def chain(seed, ratio, offs, ra, rb, t, emit_seed=True):
        ops = []
        cur = seed
        for k, off in enumerate(offs):
            if k:
                nxt = ra if cur != ra else rb
                ops.append(cmul(nxt, cur, ratio))
                cur = nxt
            if k or emit_seed:
                ops.append(emit(cur, off, t))
        return ops

    pre = [cmul(E2, E1, E1), cmul(Y128, Y64, Y64), cmul(48, C, E256), cmul(E4, E2, E2), cmul(Y192, Y128, Y64)]
    for i in range(2):
        for op in pre[:3]:
            a(op[i])
    for i in range(2):
        for op in pre[3:]:
            a(op[i])
    a("\n".join(cmul(50, C, E4)))
    chains = [
        chain(Y8, Y8, [yrow(j) for j in range(1, 8)], 52, 54, 88),
        chain(Y64, Y8, [yrow(j) for j in range(8, 16)], 56, 58, 89),
        chain(Y128, Y8, [yrow(j) for j in range(16, 24)], 60, 62, 90),
        chain(Y192, Y8, [yrow(j) for j in range(24, 32)], 64, 66, 91),
        chain(C, E1, [xrow(0, r) for r in range(4)], 68, 70, 92)
        + chain(48, E2, [xrow(2, r) for r in range(4)], 68, 70, 92),
        chain(50, E1, [xrow(1, r) for r in range(4)], 72, 74, 93),
    ]
    far = []
    cur = 48
    offs = [xrow(3, 0), xrow(3, 1), xrow(3, 2), xrow(3, 3), xrow(4, 0), xrow(4, 1), xrow(4, 2)]
    for k, off in enumerate(offs):
        nxt = 76 if cur != 76 else 78
        far.append(cmul(nxt, cur, E256))
        cur = nxt
        far.append(emit(cur, off, 94))
        if k < 2:
            far.append(cmul(80, cur, E4))
            far.append(emit(80, xrow(5, k), 95))
    chains.append(far)
    while any(chains):
        units = [c.pop(0) for c in chains if c]
        for i in range(2):
            for u in units:
                a(u[i])
    a("s_waitcnt lgkmcnt(0)")
    stamp(a)
    a("s_barrier")
    for ks in range(8):
        a(f"ds_read_b128 {vr(132+4*ks,4)}, v101 offset:{KG_XA + ks*64}")
        a(f"ds_read_b128 {vr(32+4*ks,4)}, v100 offset:{KG_YB + ks*64}")
        a(f"ds_read_b128 {vr(64+4*ks,4)}, v100 offset:{KG_YB + 16*KG_ROW + ks*64}")
    for ks in range(8):
        a(f"s_waitcnt lgkmcnt({min(15, 3*(7-ks))})")
        c0 = "0" if ks == 0 else "v[20:23]"
        c1 = "0" if ks == 0 else "v[24:27]"
        a(f"v_mfma_f32_16x16x32_bf16 v[20:23], {vr(132+4*ks,4)}, {vr(32+4*ks,4)}, {c0}")
        a(f"v_mfma_f32_16x16x32_bf16 v[24:27], {vr(132+4*ks,4)}, {vr(64+4*ks,4)}, {c1}")
    a("s_nop 7")
    for i in range(8):
        a(f"v_cvt_pk_bf16_f32 v{20+i}, v{20+i}, v{20+i}")
        a(f"ds_write_b16 v{TW+i}, v{20+i}")
        a(f"ds_write_b16 v{TW2+i}, v{20+i}")
    a("s_waitcnt lgkmcnt(0)")
    stamp(a)
    a("s_barrier")
    a("ds_read_b128 v[32:35], v110")
    a("ds_read_b128 v[36:39], v110 offset:2048")
    a("s_waitcnt lgkmcnt(1)")
    a("buffer_store_dwordx4 v[32:35], v130, s[36:39], s55 offen" + WT["k"])
    a("s_cmp_lg_u32 s46, 0")
    a("s_cbranch_scc1 k1_kg_done")
    a("s_waitcnt lgkmcnt(0)")
    a("buffer_store_dwordx4 v[36:39], v130, s[36:39], s55 offen offset:2048" + WT["k"])
    a.label("k1_kg_done")
    stamp_end(a, 0, 14)
    a("s_endpgm")


def gen_k1(a):
    a.raw(".p2align 8")
    a.label("k1_kernel")
    a(f"s_cmp_ge_u32 s2, {N_K1}")
    a("s_cbranch_scc1 k1_exit")
    a("v_lshrrev_b32 v2, 6, v0")
    a("v_and_b32 v1, 63, v0")
    a("v_readfirstlane_b32 s44, v2")
    a("s_cmp_ge_u32 s44, 4")
    a("s_cbranch_scc1 k1_ln")
    gen_kgen(a)
    a.label("k1_ln")
    gen_ln(a)
    a.label("k1_exit")
    a("s_endpgm")


N_G1, N_CV, N_RL = 176, 64, 16
G1_STAGE = 49152
G1_W = 32768
K2_LDS = 3 * G1_STAGE
G1_NST = 8
CV_ZB, CV_PW = 32768, 32896
CV_O, CV_T, CV_G, CV_W = 2752, 5376, 6400, 7168


def gen_gemm1_loader(a):
    a("s_sub_u32 s30, s30, 4")
    a("v_lshrrev_b32 v3, 3, v1")
    a("v_and_b32 v4, 7, v1")
    a("v_lshrrev_b32 v5, 4, v1")
    a(f"v_mul_u32_u24 v14, {XN_STRIDE}, v3")
    for q in range(4):
        a(f"v_add_u32 v6, {4*q}, v5")
        a("v_and_b32 v6, 7, v6")
        a("v_xor_b32 v6, v6, v4")
        a("v_lshl_add_u32 v6, v6, 4, v14")
        a(f"v_add_u32 v{8+q}, {q*(8*XN_STRIDE-1024)}, v6")
    a("v_and_b32 v6, 1, v5")
    a("v_lshrrev_b32 v7, 2, v4")
    a("v_xor_b32 v6, v6, v7")
    a("v_and_b32 v7, 3, v4")
    a("v_lshlrev_b32 v7, 3, v7")
    a("v_lshl_add_u32 v6, v6, 5, v7")
    a("s_lshl_b32 s31, s29, 6")
    a("v_add_u32 v6, s31, v6")
    a(f"v_mul_u32_u24 v12, {2*F}, v3")
    a("v_lshl_add_u32 v12, v6, 1, v12")
    a(f"v_add_u32 v13, {8*2*F-1024}, v12")
    a(f"v_cmp_le_u32 vcc, {F}, v6")
    a("v_mov_b32 v7, 0x40000000")
    a(f"s_mul_i32 s32, s28, {256*XN_STRIDE}")
    a("v_cndmask_b32 v12, v12, v7, vcc")
    a("v_cndmask_b32 v13, v13, v7, vcc")
    a(f"s_mul_i32 s33, s30, {64*XN_STRIDE}")
    a("s_add_u32 s32, s32, s33")
    a(f"s_add_u32 s36, s32, {32*XN_STRIDE}")
    a(f"s_mul_i32 s33, s30, {16*2*F}")
    a("s_lshl_b32 s34, s30, 13")
    a("s_lshl_b32 s35, s30, 11")
    a(f"s_add_u32 s35, s35, {G1_W}")
    a("s_waitcnt lgkmcnt(0)")
    srd(a, 16, 4, W_BYTES)
    srd(a, 20, 6, W_BYTES)
    srd(a, 12, 8, XN_BYTES, WS_XN)

    def dma(stage, lo=0, hi=12):
        b = (stage % 3) * G1_STAGE
        if lo == 0:
            a(f"s_add_u32 m0, s35, {b}")
            a("s_nop 0")
            a("buffer_load_dwordx4 v12, s[16:19], s33 offen lds")
            a("buffer_load_dwordx4 v13, s[16:19], s33 offen offset:1024 lds")
            a(f"s_add_u32 m0, s35, {b+8192}")
            a("s_nop 0")
            a("buffer_load_dwordx4 v12, s[20:23], s33 offen lds")
            a("buffer_load_dwordx4 v13, s[20:23], s33 offen offset:1024 lds")
            a(f"s_add_u32 s33, s33, {64*2*F}")
        if hi == 12:
            a(f"s_add_u32 m0, s34, {b}")
            a("s_nop 0")
            for q in range(4):
                a(f"buffer_load_dwordx4 v{8+q}, s[12:15], s32 offen offset:{q*1024} lds")
            a(f"s_add_u32 m0, s34, {b+4096}")
            a("s_add_u32 s32, s32, 128")
            for q in range(4):
                a(f"buffer_load_dwordx4 v{8+q}, s[12:15], s36 offen offset:{q*1024} lds")
            a("s_add_u32 s36, s36, 128")

    dma(0)
    dma(1, 0, 4)
    for st in range(G1_NST):
        if st in (0, 3, 4):
            stamp(a)
        a(f"s_waitcnt vmcnt({4 if st == 0 else (12 if st + 1 < G1_NST else 0)})")
        if st in (0, 3, 4):
            stamp(a)
        a("s_barrier")
        if st in (3,):
            stamp(a)
        if st == 0:
            dma(1, 4, 12)
        if st + 2 < G1_NST:
            dma(st + 2)
    stamp_end(a, 1, 8)
    a("s_endpgm")


def gen_gemm1(a):
    stamp_begin(a)
    a(f"s_load_dwordx4 s[4:7], s[0:1], {KA_WG}")
    a(f"s_load_dwordx2 s[8:9], s[0:1], {KA_WS}")
    a("v_and_b32 v1, 63, v0")
    a("v_lshrrev_b32 v2, 6, v0")
    if G1_MAP:
        a("s_lshr_b32 s29, s2, 3")
        a("s_and_b32 s28, s2, 6")
        a("s_and_b32 s31, s29, 1")
        a("s_add_u32 s28, s28, s31")
        a("s_lshr_b32 s29, s29, 1")
        a("s_and_b32 s31, s2, 1")
        a("s_mul_i32 s31, s31, 11")
        a("s_add_u32 s29, s29, s31")
    else:
        a("s_and_b32 s28, s2, 7")
        a("s_lshr_b32 s29, s2, 3")
    a("v_readfirstlane_b32 s30, v2")
    a("s_cmp_lt_u32 s30, 4")
    a("s_cbranch_scc1 k2_g1_compute")
    gen_gemm1_loader(a)
    a.label("k2_g1_compute")
    _stamp_n[0] = 1 if PROF else 0
    a("v_and_b32 v3, 31, v1")
    a("v_lshrrev_b32 v4, 5, v1")
    a("v_lshrrev_b32 v5, 1, v3")
    a("v_and_b32 v5, 7, v5")
    a("v_xor_b32 v5, v5, v4")
    a("v_lshlrev_b32 v6, 7, v3")
    a("s_lshl_b32 s38, s30, 13")
    a("v_add_u32 v6, s38, v6")
    for ks in range(4):
        a(f"v_xor_b32 v7, {2*ks}, v5")
        a(f"v_lshl_add_u32 v{16+ks}, v7, 4, v6")
    a("v_and_b32 v5, 15, v1")
    a("v_lshrrev_b32 v6, 2, v5")
    a("v_and_b32 v5, 3, v5")
    a("v_lshrrev_b32 v7, 4, v1")
    a("v_and_b32 v7, 1, v7")
    a("v_and_b32 v13, 1, v5")
    a("v_lshlrev_b32 v13, 5, v13")
    a("v_lshl_add_u32 v13, v7, 4, v13")
    a("v_lshrrev_b32 v5, 1, v5")
    a("v_lshl_add_u32 v13, v5, 3, v13")
    a("v_lshrrev_b32 v5, 1, v6")
    a("v_lshl_add_u32 v13, v5, 6, v13")
    a("v_lshl_add_u32 v6, v4, 3, v6")
    a("v_lshl_add_u32 v13, v6, 7, v13")
    a(f"v_add_u32 v20, {G1_W}, v13")
    a("v_xor_b32 v21, 64, v20")
    a("v_mov_b32 v12, 0")
    HS = 144
    a(f"s_mul_i32 s39, s30, {64*HS}")
    a(f"v_mul_u32_u24 v22, {HS}, v3")
    a("v_lshl_add_u32 v22, v4, 5, v22")
    a("v_add_u32 v22, s39, v22")
    a("v_lshrrev_b32 v5, 3, v1")
    a("v_and_b32 v6, 7, v1")
    a(f"v_mul_u32_u24 v23, {HS}, v5")
    a("v_lshl_add_u32 v23, v6, 4, v23")
    a("v_add_u32 v23, s39, v23")
    a(f"v_mul_u32_u24 v14, {H_STRIDE}, v5")
    a("v_lshl_add_u32 v14, v6, 4, v14")
    a("s_lshl_b32 s40, s28, 8")
    a("s_lshl_b32 s41, s30, 6")
    a("s_add_u32 s40, s40, s41")
    a(f"s_mul_i32 s42, s40, {H_STRIDE}")
    a("s_lshl_b32 s43, s29, 7")
    a("s_add_u32 s42, s42, s43")
    a("s_waitcnt lgkmcnt(0)")
    srd(a, 24, 8, H_BYTES, WS_H)

    ACC = lambda w, ft, tt: 128 + 64 * w + 32 * ft + 16 * tt
    FS = [32, 56, 80, 104]

    def reads(n, f):
        ks = n & 3
        out = []
        for w in range(2):
            for ft in range(2):
                o = 8192 * w + ks * 2048
                out.append(f"ds_read_b64_tr_b16 {vr(f+8*w+4*ft,2)}, v{20+ft} offset:{o}")
                out.append(f"ds_read_b64_tr_b16 {vr(f+8*w+4*ft+2,2)}, v{20+ft} offset:{o+512}")
            out.append(f"ds_read_b128 {vr(f+16+4*w,4)}, v{16+ks} offset:{4096*w}")
        return out

    def mfma(n, f, w, ft, tt):
        c = vr(ACC(w, ft, tt), 16)
        return (f"v_mfma_f32_32x32x16_bf16 {c}, {vr(f+8*w+4*ft,4)}, {vr(f+16+4*tt,4)}, "
                f"{'0' if n == 0 else c}")

    def mfmas(n, f):
        return [mfma(n, f, w, ft, tt) for tt in range(2) for w in range(2) for ft in range(2)]

    def boundary(st):
        a("s_waitcnt lgkmcnt(0)")
        a("s_barrier")
        if st in (0, 6, 7):
            stamp(a)
        if st >= 1:
            delta = G1_STAGE if st % 3 else -2 * G1_STAGE
            for r in (16, 17, 18, 19, 20, 21):
                a(f"v_add_u32 v{r}, {delta & 0xffffffff:#x}, v{r}")

    LASTN = 4 * (G1_NST - 1)
    boundary(0)
    for op in reads(0, FS[0]):
        a(op)
    for n in range(LASTN):
        nx = n + 1
        if nx == LASTN:
            break
        if nx & 3 == 0:
            boundary(nx >> 2)
        else:
            a("s_waitcnt lgkmcnt(0)")
        rd = reads(nx, FS[nx & 1])
        cuts = [0, 3, 6, 8, 10, 10, 10, 10, 10]
        for i, m in enumerate(mfmas(n, FS[n & 1])):
            a(m)
            for op in rd[cuts[i]:cuts[i + 1]]:
                a(op)
    n = LASTN - 1
    boundary(G1_NST - 1)
    sets = {LASTN: FS[0], LASTN + 2: FS[2], LASTN + 3: FS[3], LASTN + 1: FS[1]}
    early = reads(LASTN, FS[0]) + reads(LASTN + 2, FS[2]) + reads(LASTN + 3, FS[3])
    mm = mfmas(n, FS[n & 1])
    for i, m in enumerate(mm):
        a(m)
        for op in early[4 * i:4 * i + 4]:
            a(op)
    for op in reads(LASTN + 1, FS[1]):
        a(op)

    def pair_epilogue(ft, tt):
        g, u = ACC(0, ft, tt), ACC(1, ft, tt)
        o = 4 if ft == 0 else 24
        out = []
        if EPI == "fused":
            for k in range(16):
                out.append(f"v_max_f32 v{g+k}, 0, v{g+k}")
            for k in range(16):
                out.append(f"v_mul_f32 v{g+k}, v{g+k}, v{u+k}")
            for k in range(8):
                out.append(f"v_cvt_pk_bf16_f32 v{o+k}, v{g+2*k}, v{g+2*k+1}")
                if k == 3:
                    out.append(f"ds_write_b128 v22, {vr(o,4)} offset:{32*HS*tt + 64*ft}")
            out.append(f"ds_write_b128 v22, {vr(o+4,4)} offset:{32*HS*tt + 64*ft + 16}")
            return out
        for k in range(8):
            out.append(f"v_cvt_pk_bf16_f32 v{g+2*k}, v{g+2*k}, v{g+2*k+1}")
            out.append(f"v_cvt_pk_bf16_f32 v{u+2*k}, v{u+2*k}, v{u+2*k+1}")
        for k in range(8):
            out.append(f"v_max_i16_sdwa v{g+2*k+1}, v{g+2*k}, v12 dst_sel:WORD_0 dst_unused:UNUSED_PAD "
                       "src0_sel:WORD_0 src1_sel:WORD_0")
            out.append(f"v_max_i16_sdwa v{u+2*k+1}, v{g+2*k}, v12 dst_sel:WORD_1 dst_unused:UNUSED_PAD "
                       "src0_sel:WORD_1 src1_sel:WORD_0")
        for k in range(8):
            out.append(f"v_dot2_f32_bf16 v{g+2*k+1}, v{g+2*k+1}, v{u+2*k}, 0")
            out.append(f"v_dot2_f32_bf16 v{u+2*k+1}, v{u+2*k+1}, v{u+2*k}, 0")
        for k in range(8):
            out.append(f"v_cvt_pk_bf16_f32 v{o+k}, v{g+2*k+1}, v{u+2*k+1}")
            if k == 3:
                out.append(f"ds_write_b128 v22, {vr(o,4)} offset:{32*HS*tt + 64*ft}")
        out.append(f"ds_write_b128 v22, {vr(o+4,4)} offset:{32*HS*tt + 64*ft + 16}")
        return out

    def flush(tt, regs):
        rd = [f"ds_read_b128 {vr(regs+4*i,4)}, v23 offset:{8*HS*(4*tt+i)}" for i in range(4)]
        st = []
        for i in range(4):
            st.append(f"s_waitcnt lgkmcnt({3-i})\n"
                      f"buffer_store_dwordx4 {vr(regs+4*i,4)}, v14, s[24:27], s42 offen{WT['h']}\n"
                      f"s_add_u32 s42, s42, {8*H_STRIDE}")
        return rd, st

    order = [(0, 0), (1, 0), (0, 1), (1, 1)]
    korder = [LASTN, LASTN + 2, LASTN + 3, LASTN + 1]
    a("s_waitcnt lgkmcnt(10)")
    for pi, (ft, tt) in enumerate(order):
        if pi < 3:
            stamp(a)
        mm = []
        for kn in korder:
            if pi == 0 and kn == LASTN + 1:
                mm.append("s_waitcnt lgkmcnt(0)\n" + mfma(kn, sets[kn], 0, ft, tt))
            else:
                mm.append(mfma(kn, sets[kn], 0, ft, tt))
            mm.append(mfma(kn, sets[kn], 1, ft, tt))
        fill = ["s_nop 8"] + pair_epilogue(*order[pi - 1]) if pi else []
        if pi == 3:
            rd, st = flush(0, ACC(1, 0, 0))
            fill = ["s_waitcnt lgkmcnt(0)"] + rd + fill[:33] + st + fill[33:]
        lead = 2
        per = -(-len(fill) // (len(mm) - lead)) if fill else 0
        for i, m in enumerate(mm):
            a(m)
            if i >= lead - 1 and fill:
                j = i - (lead - 1)
                for op in fill[j * per:(j + 1) * per]:
                    a(op)
    a("s_nop 15")
    stamp(a)
    for op in pair_epilogue(*order[3]):
        a(op)
    a("s_waitcnt lgkmcnt(0)")
    rd, st = flush(1, ACC(1, 0, 0))
    for op in rd + st:
        a(op)
    stamp_end(a, 1, 8)
    a("s_endpgm")


def gen_conv(a):
    stamp_begin(a)
    a(f"s_load_dwordx2 s[4:5], s[0:1], {KA_DSK}")
    a(f"s_load_dwordx2 s[8:9], s[0:1], {KA_WS}")
    a("v_and_b32 v1, 63, v0")
    a("v_lshrrev_b32 v2, 6, v0")
    a(f"s_sub_u32 s28, s2, {N_G1}")
    a("s_lshl_b32 s29, s28, 7")
    a("v_readfirstlane_b32 s30, v2")
    a("s_lshl_b32 s28, s28, 3")
    a("s_add_u32 s28, s28, s30")
    a(f"s_mul_i32 s31, s30, {CV_W}")
    a(f"s_add_u32 s31, s31, {CV_PW}")
    a(f"s_mul_i32 s32, s28, {KT_BYTES}")
    a("s_lshl_b32 s34, s28, 12")
    a("s_lshr_b32 s35, s28, 1")
    a("s_lshl_b32 s35, s35, 2")
    a("v_lshlrev_b32 v3, 4, v1")
    a("v_lshrrev_b32 v4, 3, v1")
    a("v_and_b32 v5, 7, v1")
    a("v_lshrrev_b32 v6, 4, v1")
    a(f"v_mul_u32_u24 v4, {XNT_STRIDE}, v4")
    for q in range(2):
        a(f"v_add_u32 v7, {4*q}, v6")
        a("v_xor_b32 v7, v7, v5")
        a(f"v_lshl_add_u32 v{8+q}, v7, 4, v4")
    a(f"v_add_u32 v9, {8*XNT_STRIDE - 1024}, v9")
    a(f"s_mul_i32 s44, s30, {32*XNT_STRIDE}")
    a("s_add_u32 s44, s44, s29")
    a(f"s_add_u32 s45, s44, {16*XNT_STRIDE - 2048}")
    a("s_lshl_b32 s47, s30, 12")
    a("s_waitcnt lgkmcnt(0)")
    a("s_load_dword s36, s[4:5], s35")
    srd(a, 12, 8, D * KT_BYTES, WS_KR)
    srd(a, 16, 8, XNT_BYTES, WS_XNT)
    srd(a, 20, 8, L * D * 2, WS_AT)
    for q, dst in ((2, CV_T), (0, 1600), (1, CV_O + 1600)):
        a(f"s_add_u32 m0, s31, {dst - q*1024}")
        a("s_nop 0")
        a(f"buffer_load_dwordx4 v3, s[12:15], s32 offen offset:{q*1024} lds")
    a("s_mov_b32 m0, s47")
    a("s_nop 0")
    a("buffer_load_dwordx4 v8, s[16:19], s44 offen lds")
    a("buffer_load_dwordx4 v9, s[16:19], s44 offen offset:1024 lds")
    a("buffer_load_dwordx4 v8, s[16:19], s45 offen offset:2048 lds")
    a("buffer_load_dwordx4 v9, s[16:19], s45 offen offset:3072 lds")
    pf = 1 if CODE_PF else 0
    if CODE_PF:
        a(f"s_sub_u32 s45, s2, {N_G1}")
        a("s_lshr_b32 s45, s45, 3")
        a("s_lshl_b32 s45, s45, 3")
        a("s_add_u32 s45, s45, s30")
        code_prefetch(a, "k3_kernel", "code_end", 45, 3, 252, 48)
    for r in range(4, 8):
        a(f"v_mov_b32 v{r}, 0")
    a(f"v_add_u32 v10, {CV_G}, v3")
    for lo, base in ((48, 0), (51, CV_O)):
        a(f"v_cmp_le_u32 vcc, {lo}, v1")
        a(f"v_add_u32 v11, {(base - 16*lo) & 0xffffffff:#x}, v3")
        a("s_nop 0")
        a("v_cndmask_b32 v10, v10, v11, vcc")
    a("v_add_u32 v10, s31, v10")
    a("v_cmp_le_u32 vcc, 54, v1")
    a(f"v_mov_b32 v15, {CV_ZB}")
    a("s_nop 0")
    a("v_cndmask_b32 v238, v10, v15, vcc")
    a("v_and_b32 v4, 15, v1")
    a("v_lshrrev_b32 v5, 4, v1")
    a("v_lshlrev_b32 v6, 3, v5")
    a("v_sub_u32 v6, v6, v4")
    a("v_lshlrev_b32 v6, 1, v6")
    a("v_add_u32 v6, s31, v6")
    a("v_and_b32 v7, 1, v4")
    a("v_cmp_eq_u32 vcc, 1, v7")
    a(f"v_mov_b32 v8, {CV_O + 2*1040}")
    a(f"v_mov_b32 v9, {2*1039}")
    a("v_cndmask_b32 v8, v8, v9, vcc")
    a("v_add_u32 v8, v6, v8")
    for P in range(2):
        a(f"v_subrev_u32 v{10+P}, {512*(2*P+1)+448}, v8")
    a("v_subrev_u32 v12, 2048, v8")
    a(f"v_mov_b32 v8, {CV_G + 192 + 2*62 - 96}")
    a(f"v_mov_b32 v9, {CV_G + 2*63 - 96}")
    a("v_cndmask_b32 v8, v8, v9, vcc")
    a("v_lshlrev_b32 v9, 3, v5")
    a("v_sub_u32 v6, v6, v9")
    a("v_add_u32 v13, v6, v8")

    def uaddr(dst, gran, tmp):
        a(f"v_lshrrev_b32 v{tmp}, 1, v{gran}")
        a(f"v_and_b32 v{tmp}, 7, v{tmp}")
        a(f"v_xor_b32 v{tmp}, s30, v{tmp}")
        a(f"v_lshlrev_b32 v{tmp}, 4, v{tmp}")
        a(f"v_lshl_add_u32 v{dst}, v{gran}, 7, v{tmp}")

    UB, UC = 16, 24
    a("v_lshl_add_u32 v6, v4, 1, v5")
    for rho in range(4):
        a(f"v_add_u32 v7, {14 - 4*rho}, v6")
        uaddr(UB + rho, 7, 8)
    for rho in range(8):
        a(f"v_cmp_gt_u32 vcc, {4*rho + 2}, v6")
        a(f"v_subrev_u32 v7, {4096 if rho >= 4 else 2048}, v{UB + (rho & 3)}")
        a("s_nop 0")
        a(f"v_cndmask_b32 v{UC+rho}, v7, v15, vcc")
    a("v_lshrrev_b32 v7, 1, v5")
    a("v_lshl_add_u32 v7, v4, 1, v7")
    uaddr(246, 7, 8)
    a("v_and_b32 v7, 1, v5")
    a("v_lshl_add_u32 v246, v7, 3, v246")
    a("v_lshlrev_b32 v247, 5, v4")
    a("v_lshl_add_u32 v247, v5, 3, v247")
    BND = 224
    a("v_lshlrev_b32 v8, 3, v5")
    a("v_mov_b32 v9, 0x7f")
    a("v_add_u32 v7, 5, v4")
    a("v_lshlrev_b32 v240, v7, v9")
    a("v_mov_b32 v9, 0x1ff")
    a("v_lshlrev_b32 v241, v4, v9")
    a("v_lshrrev_b32 v241, 4, v241")
    a("v_mov_b32 v9, 0xf0000000")
    a("v_lshlrev_b32 v242, v4, v9")
    a("s_mov_b32 s40, 0x3f803f80")
    a("s_mov_b32 s41, 0xffff")
    for b in range(3):
        a(f"v_lshrrev_b32 v{240+b}, v8, v{240+b}")
    for b in range(3):
        for k in range(4):
            a(f"v_bfe_i32 v7, v{240+b}, {2*k}, 1")
            a(f"v_bfe_i32 v9, v{240+b}, {2*k+1}, 1")
            a("v_bfi_b32 v7, s41, v7, v9")
            a(f"v_and_b32 v{BND+4*b+k}, s40, v7")
    a(f"s_add_u32 s38, s31, {CV_T}")
    a("v_lshlrev_b32 v7, 2, v1")
    a("v_sub_u32 v249, s38, v7")
    a("v_lshlrev_b32 v7, 3, v1")
    a("v_min_u32 v7, 248, v7")
    a("v_sub_u32 v250, s38, v7")
    a("v_lshlrev_b32 v7, 2, v1")
    a("v_add_u32 v243, s38, v7")
    a("v_add_u32 v248, s31, v3")
    a("v_cmp_eq_u32 s[52:53], 63, v1")
    a("v_lshlrev_b32 v7, 1, v1")
    a(f"s_add_u32 s39, s31, {CV_G + 126}")
    a("v_sub_u32 v251, s39, v7")
    a("v_add_u32 v245, 190, v251")
    a("v_mov_b32 v7, s38")
    a("v_cndmask_b32 v245, v245, v7, s[52:53]")
    a("s_mov_b32 s42, 0x03020302")
    a("s_mov_b32 s43, 0x01000100")

    ACC = 32
    SET = [64, 112]
    A32 = 216
    WS9, WS7 = 160, 176
    FB = 192
    UREG = 160

    def loads(rho):
        s = SET[rho & 1]
        out = []
        for m in range(8):
            if m == 0:
                out.append(f"ds_read_b128 {vr(s+16,4)}, v{UC+rho}")
            else:
                o = 4096 * (m - 1) + (2048 if rho < 4 else 0)
                out.append(f"ds_read_b128 {vr(s+16+4*m,4)}, v{UB+(rho&3)} offset:{o}")
            if m < 4:
                o = (64 * (7 - rho) + (0 if m & 1 else 512)) // 4
                out.append(f"ds_read2_b32 {vr(s+4*m,2)}, v{10+(m>>1)} offset0:{o} offset1:{o+1}")
                out.append(f"ds_read2_b32 {vr(s+4*m+2,2)}, v{10+(m>>1)} offset0:{o+2} offset1:{o+3}")
        if rho == 0:
            out.append(f"ds_read2_b32 {vr(A32,2)}, v12 offset0:0 offset1:1")
            out.append(f"ds_read2_b32 {vr(A32+2,2)}, v12 offset0:2 offset1:3")
        return out

    def mfma(rho, i, m):
        s = SET[rho & 1]
        c = vr(ACC + 4 * (i + m), 4)
        fa = A32 if i == 4 else s + 4 * i
        return (f"v_mfma_f32_16x16x32_bf16 {c}, {vr(fa,4)}, {vr(s+16+4*m,4)}, "
                f"{'0' if rho == 0 and i == 0 else c}")

    def mfmas(rho):
        out = [mfma(rho, i, m) for i in range(5 if rho == 0 else 4) for m in range(8 - i)]
        s = SET[rho & 1]
        if rho == 0:
            for t in range(4):
                out.append(f"v_mfma_f32_16x16x32_bf16 {vr(WS7+4*t,4)}, {vr(s+16+4*t,4)}, {vr(BND,4)}, 0")
                out.append(f"v_mfma_f32_16x16x32_bf16 {vr(WS9+4*t,4)}, {vr(s+16+4*t,4)}, {vr(BND+4,4)}, 0")
        if rho == 1:
            for t in range(4):
                c = vr(WS9 + 4 * t, 4)
                out.insert(2 * t, f"v_mfma_f32_16x16x32_bf16 {c}, {vr(s+16+4*t,4)}, {vr(BND+8,4)}, {c}")
        return out

    def window_pack():
        out = []
        for base in (WS9, WS7):
            for t in range(4):
                out.append(f"v_cvt_pk_bf16_f32 v{base+2*t}, v{base+4*t}, v{base+4*t+1}")
                out.append(f"v_cvt_pk_bf16_f32 v{base+2*t+1}, v{base+4*t+2}, v{base+4*t+3}")
        return out

    def far_loads(par):
        out = []
        for dl in range(4):
            o = (96 - 32 * dl + 384 * par) // 4
            out.append(f"ds_read2_b32 {vr(FB+4*dl,2)}, v13 offset0:{o} offset1:{o+1}")
            out.append(f"ds_read2_b32 {vr(FB+4*dl+2,2)}, v13 offset0:{o+8} offset1:{o+9}")
        return out

    def far_mfmas(par):
        out = []
        for tp in range(4):
            for kb in range(2 if tp >= 2 else 1):
                c = vr(ACC + 4 * (4 + tp), 4)
                out.append(f"v_mfma_f32_16x16x32_bf16 {c}, {vr((WS9, WS7)[par]+4*kb,4)}, "
                           f"{vr(FB+4*(tp-2*kb),4)}, {c}")
        return out

    def tile_epilogue(t):
        y = ACC + 4 * t
        u = UREG + 2 * t
        w = 2 if t & 1 else 208
        return [f"v_lshlrev_b32 v{w}, 16, v{u}",
                f"v_and_b32 v{w+1}, 0xffff0000, v{u}",
                f"v_lshlrev_b32 v{w+2}, 16, v{u+1}",
                f"v_and_b32 v{w+3}, 0xffff0000, v{u+1}",
                f"v_pk_mul_f32 {vr(w,2)}, {vr(w,2)}, s[36:37]",
                f"v_pk_mul_f32 {vr(w+2,2)}, {vr(w+2,2)}, s[36:37]",
                f"v_cvt_pk_bf16_f32 v{u}, v{w}, v{w+1}",
                f"v_cvt_pk_bf16_f32 v{u+1}, v{w+2}, v{w+3}",
                f"v_cvt_pk_bf16_f32 v{w+5}, v{y}, v{y+1}",
                f"v_cvt_pk_bf16_f32 v{w+7}, v{y+2}, v{y+3}",
                f"v_lshlrev_b32 v{w}, 16, v{u}",
                f"v_and_b32 v{w+1}, 0xffff0000, v{u}",
                f"v_lshlrev_b32 v{w+2}, 16, v{u+1}",
                f"v_and_b32 v{w+3}, 0xffff0000, v{u+1}",
                f"v_lshlrev_b32 v{w+4}, 16, v{w+5}",
                f"v_and_b32 v{w+5}, 0xffff0000, v{w+5}",
                f"v_lshlrev_b32 v{w+6}, 16, v{w+7}",
                f"v_and_b32 v{w+7}, 0xffff0000, v{w+7}",
                f"v_pk_add_f32 {vr(w,2)}, {vr(w,2)}, {vr(w+4,2)}",
                f"v_pk_add_f32 {vr(w+2,2)}, {vr(w+2,2)}, {vr(w+6,2)}",
                f"v_cvt_pk_bf16_f32 v{u}, v{w}, v{w+1}",
                f"v_cvt_pk_bf16_f32 v{u+1}, v{w+2}, v{w+3}",
                f"buffer_store_dwordx2 {vr(u,2)}, v247, s[20:23], s34 offen offset:{512*t}" + WT["at"]]

    def spread(mm, fill):
        per = -(-len(fill) // len(mm)) if fill else 0
        for i, m in enumerate(mm):
            a(m)
            for op in fill[i * per:(i + 1) * per]:
                a(op)

    stamp(a)
    a(f"s_waitcnt vmcnt({4 + pf}) lgkmcnt(0)")
    a("ds_read_b32 v180, v249 offset:508")
    a("ds_read_u16 v181, v249 offset:512")
    a("ds_read_b64 v[182:183], v250 offset:248")
    a("ds_read_u16 v184, v250 offset:256")
    a("ds_read_u16 v185, v243 offset:514")
    a("ds_read_u16 v186, v243 offset:516")
    a("v_mov_b32 v4, 0")
    a("v_mov_b32 v5, 0")
    a("v_mov_b32 v6, 0")
    a("v_mov_b32 v7, 0")
    a("ds_write_b128 v238, v[4:7]")
    a("s_and_b32 s44, s28, 1")
    a("s_lshl_b32 s45, s36, 16")
    a("s_and_b32 s36, s36, 0xffff0000")
    a("s_cmp_eq_u32 s44, 0")
    a("s_cselect_b32 s36, s45, s36")
    a("s_mov_b32 s37, s36")
    a("s_waitcnt lgkmcnt(5)")
    a("v_lshl_or_b32 v188, v181, 16, v181")
    a("v_perm_b32 v189, v180, v180, s42")
    a("v_alignbit_b32 v190, v180, v180, 16")
    a("v_perm_b32 v191, v180, v180, s43")
    a("v_mov_b32 v192, v188")
    a("v_bfi_b32 v193, s41, v181, v180")
    a("v_mov_b32 v194, v189")
    a("v_mov_b32 v195, v191")
    a("ds_write_b128 v248, v[188:191] offset:64")
    a(f"ds_write_b128 v248, v[192:195] offset:{CV_O + 64}")
    a("v_lshlrev_b32 v5, 16, v181")
    a("v_mov_b32 v6, v188")
    a("v_mov_b32 v7, v188")
    a("v_mov_b32 v8, 0")
    a("v_mov_b32 v9, 0")
    a("v_mov_b32 v196, 0")
    a("v_mov_b32 v197, 0")
    a("v_mov_b32 v198, v188")
    a("v_mov_b32 v199, v188")
    a("s_mov_b64 s[54:55], exec")
    a("s_mov_b64 exec, 1")
    a("ds_write_b128 v248, v[4:7] offset:48")
    a(f"ds_write_b128 v248, v[196:199] offset:{CV_O + 48}")
    a("s_mov_b64 exec, s[54:55]")
    a("s_waitcnt lgkmcnt(7)")
    a("v_bfi_b32 v200, s41, v184, v183")
    a("v_perm_b32 v201, v183, v183, s43")
    a("v_bfi_b32 v202, s41, v183, v182")
    a("v_perm_b32 v203, v182, v182, s43")
    a("v_lshl_or_b32 v204, v184, 16, v184")
    a("v_alignbit_b32 v205, v183, v183, 16")
    a("v_mov_b32 v206, v201")
    a("v_alignbit_b32 v207, v182, v182, 16")
    a("s_mov_b32 exec_hi, 0")
    a(f"ds_write_b128 v248, v[200:203] offset:{68*16}")
    a(f"ds_write_b128 v248, v[204:207] offset:{CV_O + 68*16}")
    a("s_mov_b64 exec, s[54:55]")
    a("s_waitcnt lgkmcnt(7)")
    a("ds_write_b16 v251, v186")
    a("ds_write_b16 v245, v186")
    a("ds_write_b16 v251, v185 offset:384")
    a("ds_write_b16 v245, v185 offset:384")
    a(f"s_waitcnt vmcnt({pf}) lgkmcnt(0)")
    a("s_barrier")
    stamp(a)
    for op in loads(0):
        a(op)
    for rho in range(7):
        a("s_waitcnt lgkmcnt(0)")
        fill = loads(rho + 1)
        mm = mfmas(rho)
        if rho == 2:
            fill = window_pack() + fill + far_loads(0)
        elif rho == 3:
            mm = far_mfmas(0) + mm
            fill = fill + far_loads(1)
        elif rho == 4:
            mm = far_mfmas(1) + mm
        elif rho == 6:
            fill = fill + [f"ds_read_b64 {vr(UREG+2*t,2)}, v246 offset:{4096*t}" for t in range(8)]
        spread(mm, fill)
    a("s_waitcnt lgkmcnt(0)")
    seq = {t: [mfma(7, i, t - i) for i in range(min(t, 3) + 1)] for t in range(8)}
    for op in seq[0] + seq[1] + seq[2] + seq[3]:
        a(op)
    spread(seq[4] + seq[5], tile_epilogue(0) + tile_epilogue(1))
    spread(seq[6] + seq[7], tile_epilogue(2) + tile_epilogue(3))
    stamp(a)
    for op in interleave(tile_epilogue(4), tile_epilogue(5)) + interleave(tile_epilogue(6), tile_epilogue(7)):
        a(op)
    stamp_end(a, 1, 8)
    a("s_endpgm")


def gen_relayout(a):
    a(f"s_load_dwordx2 s[4:5], s[0:1], {KA_WD}")
    a(f"s_load_dwordx2 s[8:9], s[0:1], {KA_WS}")
    a("v_and_b32 v1, 63, v0")
    a("v_lshrrev_b32 v2, 6, v0")
    a(f"s_sub_u32 s28, s2, {N_G1 + N_CV}")
    a("s_mul_i32 s28, s28, 88")
    a("v_readfirstlane_b32 s30, v2")
    a("v_lshlrev_b32 v3, 4, v1")
    a("s_add_u32 s28, s28, s30")
    a("s_lshr_b32 s31, s28, 1")
    a("s_and_b32 s31, s31, 1")
    a("s_lshl_b32 s31, s31, 2")
    a("v_and_b32 v4, 7, v1")
    a("v_xor_b32 v4, s31, v4")
    a("v_lshrrev_b32 v5, 3, v1")
    a(f"s_mov_b32 s32, {WDT_TILE}")
    a("v_mul_lo_u32 v5, v5, s32")
    a("v_lshl_add_u32 v4, v4, 4, v5")
    a("s_lshl_b32 s33, s28, 10")
    a("s_lshl_b32 s34, s28, 7")
    a("s_waitcnt lgkmcnt(0)")
    srd(a, 12, 4, W_BYTES)
    srd(a, 16, 8, 8 * WDT_TILE, WS_WDT)
    for i in range(11):
        a(f"buffer_load_dwordx4 {vr(8+4*i,4)}, v3, s[12:15], s33 offen")
        a("s_add_u32 s33, s33, 8192")
    for i in range(11):
        a(f"s_waitcnt vmcnt(10)")
        a(f"buffer_store_dwordx4 {vr(8+4*i,4)}, v4, s[16:19], s34 offen offset:{(i%4)*1024}" + WT["wdt"])
        if i % 4 == 3:
            a("s_add_u32 s34, s34, 4096")
    a("s_endpgm")


def gen_k2(a):
    a.raw(".p2align 8")
    a.label("k2_kernel")
    a(f"s_cmp_ge_u32 s2, {N_G1 + N_CV + N_RL}")
    a("s_cbranch_scc1 k2_exit")
    a(f"s_cmp_ge_u32 s2, {N_G1 + N_CV}")
    a("s_cbranch_scc1 k2_relayout")
    a(f"s_cmp_ge_u32 s2, {N_G1}")
    a("s_cbranch_scc1 k2_conv")
    gen_gemm1(a)
    a.label("k2_conv")
    gen_conv(a)
    a.label("k2_relayout")
    gen_relayout(a)
    a.label("k2_exit")
    a("s_endpgm")


N_G2 = 256
G2_NS = 8
G2_STAGE = 16384
G2_AT = G2_NS * G2_STAGE
K3_LDS = G2_AT + 8192
G2_NST = FP // 64
G2_LEAD = 4


def gen_k3(a):
    a.raw(".p2align 8")
    a.label("k3_kernel")
    a(f"s_cmp_ge_u32 s2, {N_G2}")
    a("s_cbranch_scc1 k3_exit")
    stamp_begin(a)
    a(f"s_load_dwordx2 s[4:5], s[0:1], {KA_U}")
    a(f"s_load_dwordx4 s[8:11], s[0:1], {KA_WD}")
    a(f"s_load_dwordx2 s[6:7], s[0:1], {KA_WS}")
    a("v_and_b32 v1, 63, v0")
    a("v_lshrrev_b32 v2, 6, v0")
    a("s_and_b32 s32, s2, 7")
    a("s_lshr_b32 s33, s2, 3")
    a("v_readfirstlane_b32 s34, v2")
    a("s_lshl_b32 s32, s32, 8")
    a("s_and_b32 s35, s33, 3")
    a("s_lshl_b32 s35, s35, 6")
    a("s_add_u32 s32, s32, s35")
    a("s_lshr_b32 s33, s33, 2")
    a("s_lshl_b32 s33, s33, 6")
    a("s_cmp_lt_u32 s34, 4")
    a("s_cbranch_scc1 k3_compute")
    a("s_sub_u32 s34, s34, 4")
    a("v_lshrrev_b32 v3, 3, v1")
    a("v_and_b32 v4, 7, v1")
    a("v_lshrrev_b32 v5, 4, v1")
    a(f"v_mul_u32_u24 v7, {H_STRIDE}, v3")
    a("s_lshl_b32 s36, s34, 2")
    a("v_add_u32 v6, s36, v5")
    a("v_and_b32 v6, 7, v6")
    a("v_xor_b32 v6, v6, v4")
    a("v_lshl_add_u32 v8, v6, 4, v7")
    a("v_and_b32 v6, 1, v5")
    a("v_lshlrev_b32 v6, 2, v6")
    a("v_xor_b32 v6, v6, v4")
    a("v_lshlrev_b32 v6, 4, v6")
    a("v_lshlrev_b32 v10, 4, v1")
    a("v_lshl_add_u32 v12, v3, 12, v6")
    a("s_lshl_b32 s36, s34, 3")
    a("s_add_u32 s37, s36, s32")
    a(f"s_mul_i32 s37, s37, {H_STRIDE}")
    a(f"s_mul_i32 s38, s33, {WDT_TILE // 64}")
    a("s_lshl_b32 s39, s34, 10")
    a("s_add_u32 s38, s38, s39")
    a("s_add_u32 s39, s36, s33")
    a("s_lshl_b32 s39, s39, 12")
    a("s_lshl_b32 s40, s32, 1")
    a("s_add_u32 s39, s39, s40")
    a("s_lshl_b32 s40, s34, 10")
    a("s_waitcnt lgkmcnt(0)")
    srd(a, 16, 6, 8 * WDT_TILE, WS_WDT)
    srd(a, 12, 6, H_BYTES, WS_H)
    srd(a, 20, 6, L * D * 2, WS_AT)

    def dma(stage):
        b = (stage % G2_NS) * G2_STAGE
        a(f"s_add_u32 m0, s40, {b+8192}")
        a("s_nop 0")
        a("buffer_load_dwordx4 v10, s[16:19], s38 offen lds")
        a(f"s_add_u32 m0, s40, {b}")
        a("s_add_u32 s38, s38, 8192")
        a("buffer_load_dwordx4 v8, s[12:15], s37 offen lds")
        a("s_add_u32 s37, s37, 128")

    AT_AFTER = 3
    issued = 0
    for st in range(G2_NST):
        want = min(G2_NST - 1, 2 * st + 2, st + G2_LEAD)
        while issued <= want:
            dma(issued)
            if issued == AT_AFTER:
                a(f"s_add_u32 m0, s40, {G2_AT}")
                a("s_nop 0")
                a("buffer_load_dwordx4 v12, s[20:23], s39 offen lds")
            issued += 1
        vm = 2 * (issued - 1 - st) + (1 if st <= AT_AFTER < issued else 0)
        if st in (0, 8, 16):
            stamp(a)
        a(f"s_waitcnt vmcnt({vm})")
        a("s_barrier")
    stamp_end(a, 2, 6)
    a("s_endpgm")
    a.label("k3_compute")
    _stamp_n[0] = 1 if PROF else 0
    a("s_and_b32 s41, s34, 1")
    a("s_lshr_b32 s42, s34, 1")
    a("v_and_b32 v3, 31, v1")
    a("v_lshrrev_b32 v4, 5, v1")
    a("s_lshl_b32 s43, s41, 5")
    a("s_add_u32 s43, s43, s32")
    a("v_add_u32 v14, s43, v3")
    a("v_lshlrev_b32 v14, 10, v14")
    a("v_lshl_add_u32 v14, v4, 5, v14")
    a("s_lshl_b32 s44, s42, 5")
    a("s_add_u32 s44, s44, s33")
    a("s_lshl_b32 s44, s44, 1")
    a("v_lshrrev_b32 v5, 1, v3")
    a("v_and_b32 v5, 7, v5")
    a("v_xor_b32 v5, v5, v4")
    a("v_lshlrev_b32 v6, 7, v3")
    a("s_lshl_b32 s45, s41, 12")
    a("v_add_u32 v6, s45, v6")
    for ks in range(4):
        a(f"v_xor_b32 v7, {2*ks}, v5")
        a(f"v_lshl_add_u32 v{16+ks}, v7, 4, v6")
    a("v_and_b32 v5, 15, v1")
    a("v_lshrrev_b32 v6, 2, v5")
    a("v_and_b32 v5, 3, v5")
    a("v_lshrrev_b32 v7, 4, v1")
    a("v_and_b32 v7, 1, v7")
    a("v_lshlrev_b32 v21, 3, v5")
    a("v_lshl_add_u32 v21, v7, 5, v21")
    a("v_lshrrev_b32 v22, 1, v6")
    a("v_xor_b32 v23, s41, v22")
    a("v_lshl_add_u32 v21, v23, 6, v21")
    a("v_lshl_add_u32 v23, v4, 4, v6")
    a("v_lshl_add_u32 v21, v23, 7, v21")
    a("s_lshl_b32 s45, s42, 12")
    a(f"s_add_u32 s45, s45, {G2_AT}")
    a("v_add_u32 v21, s45, v21")
    a("v_and_b32 v15, 1, v5")
    a("v_lshlrev_b32 v15, 5, v15")
    a("v_lshl_add_u32 v15, v7, 4, v15")
    a("v_lshrrev_b32 v5, 1, v5")
    a("v_lshl_add_u32 v15, v5, 3, v15")
    a("v_xor_b32 v22, s42, v22")
    a("v_lshl_add_u32 v15, v22, 6, v15")
    a("v_lshl_add_u32 v6, v4, 3, v6")
    a("v_lshl_add_u32 v15, v6, 7, v15")
    a("v_add_u32 v20, 8192, v15")
    a("s_waitcnt lgkmcnt(0)")
    srd(a, 24, 4, L * D * 2)
    srd(a, 28, 10, L * D * 2)
    a("buffer_load_dwordx4 v[24:27], v14, s[24:27], s44 offen")
    a("buffer_load_dwordx4 v[28:31], v14, s[24:27], s44 offen offset:16")

    ACC = 32
    FS = [48, 80]
    XA = 112
    ATR = 128
    AT_ST = 10

    def reads(st):
        f = FS[st & 1]
        o = (st % 4) * G2_STAGE
        out = []
        for ks in range(4):
            out.append(f"ds_read_b64_tr_b16 {vr(f+8*ks,2)}, v20 offset:{o+ks*2048}")
            out.append(f"ds_read_b64_tr_b16 {vr(f+8*ks+2,2)}, v20 offset:{o+ks*2048+512}")
            out.append(f"ds_read_b128 {vr(f+8*ks+4,4)}, v{16+ks} offset:{o}")
        return out

    def mfmas(st):
        f = FS[st & 1]
        c = vr(ACC, 16)
        return [f"v_mfma_f32_32x32x16_bf16 {c}, {vr(f+8*ks,4)}, {vr(f+8*ks+4,4)}, "
                f"{'0' if st == 0 and ks == 0 else c}" for ks in range(4)]

    def xa_ops(k):
        x, t = XA + 2 * k, 4
        return [f"v_lshlrev_b32 v{x}, 16, v{24+k}",
                f"v_and_b32 v{x+1}, 0xffff0000, v{24+k}",
                f"v_lshlrev_b32 v{t}, 16, v{ATR+k}",
                f"v_and_b32 v{t+1}, 0xffff0000, v{ATR+k}",
                f"v_pk_add_f32 {vr(x,2)}, {vr(x,2)}, {vr(t,2)}",
                f"v_cvt_pk_bf16_f32 v{x+1}, v{x}, v{x+1}",
                f"v_lshlrev_b32 v{x}, 16, v{x+1}",
                f"v_and_b32 v{x+1}, 0xffff0000, v{x+1}"]

    for st in range(-1, G2_NST):
        nx = st + 1
        body = []
        if nx < G2_NST:
            if nx in (0, 8, 16):
                stamp(a)
            a("s_waitcnt lgkmcnt(0)" if nx != AT_ST + 1 else "s_waitcnt vmcnt(0) lgkmcnt(0)")
            a("s_barrier")
            if nx and nx % 4 == 0:
                delta = 65536 if (nx % G2_NS) == 4 else -65536
                for r in (16, 17, 18, 19, 20):
                    a(f"v_add_u32 v{r}, {delta & 0xffffffff:#x}, v{r}")
            body = reads(nx)
            if nx == AT_ST:
                body += [f"ds_read_b64_tr_b16 {vr(ATR+2*i,2)}, v21 offset:{512*i}" for i in range(4)]
        else:
            a("s_waitcnt lgkmcnt(0)")
        if st >= 0:
            body = interleave(body, mfmas(st), every=3) if body else mfmas(st)
        if AT_ST < nx <= AT_ST + 4:
            k = 2 * (nx - AT_ST - 1)
            body += xa_ops(k) + xa_ops(k + 1)
        for op in body:
            a(op)
    a("s_nop 15")
    stamp(a)
    for k in range(8):
        a(f"v_cvt_pk_bf16_f32 v{48+k}, v{ACC+2*k}, v{ACC+2*k+1}")
    for k in range(8):
        a(f"v_lshlrev_b32 v{ACC+2*k}, 16, v{48+k}")
        a(f"v_and_b32 v{ACC+2*k+1}, 0xffff0000, v{48+k}")
    for k in range(8):
        a(f"v_pk_add_f32 {vr(ACC+2*k,2)}, {vr(ACC+2*k,2)}, {vr(XA+2*k,2)}")
    for k in range(8):
        a(f"v_cvt_pk_bf16_f32 v{56+k}, v{ACC+2*k}, v{ACC+2*k+1}")
        if k == 3:
            a("buffer_store_dwordx4 v[56:59], v14, s[28:31], s44 offen" + WT["out"])
    a("buffer_store_dwordx4 v[60:63], v14, s[28:31], s44 offen offset:16" + WT["out"])
    stamp_end(a, 2, 6)
    a.label("k3_exit")
    a("s_endpgm")


def gen_k4(a):
    a.raw(".p2align 8")
    a.label("k4_kernel")
    a("s_cmp_ge_u32 s2, 1")
    a("s_cbranch_scc1 k4_exit")
    a(f"s_load_dwordx4 s[4:7], s[0:1], {KA_DBG}")
    a("s_memrealtime s[20:21]")
    a("s_waitcnt lgkmcnt(0)")
    srd(a, 8, 6, 0x1000000, PROF_BASE)
    srd(a, 12, 4, 256)
    groups = [(0, 0, 256, 0, 4), (0, 0, 256, 4, 8), (1, 0, 176, 0, 4), (1, 176, 240, 0, 8), (2, 0, 256, 0, 4)]
    for gi, (l, lo, hi, w0, w1) in enumerate(groups):
        a("v_mov_b32 v4, -1")
        a("v_mov_b32 v5, 0")
        for base in range(lo, hi, 64):
            n = min(64, hi - base)
            a(f"v_min_u32 v2, {n-1}, v0")
            a(f"v_add_u32 v2, {l*512 + base}, v2")
            a("v_lshlrev_b32 v2, 10, v2")
            for w in range(w0, w1):
                a(f"buffer_load_dwordx2 {vr(8+2*(w-w0),2)}, v2, s[8:11], 0 offen offset:{64*w}")
            a("s_waitcnt vmcnt(0)")
            for w in range(w0, w1):
                a(f"v_min_u32 v4, v4, v{8+2*(w-w0)}")
                a(f"v_max_u32 v5, v5, v{9+2*(w-w0)}")
        a("s_mov_b32 s22, -1")
        a("s_mov_b32 s23, 0")
        for ln in range(64):
            a(f"v_readlane_b32 s24, v4, {ln}")
            a(f"v_readlane_b32 s25, v5, {ln}")
            a("s_nop 1")
            a("s_min_u32 s22, s22, s24")
            a("s_max_u32 s23, s23, s25")
        a(f"s_mov_b32 s{30+2*gi}, s22")
        a(f"s_mov_b32 s{31+2*gi}, s23")
    a("v_mov_b32 v3, 0")
    for i in range(10):
        a(f"s_sub_u32 s24, s{30+i}, s30")
        a("v_mov_b32 v6, s24")
        a(f"buffer_store_dword v6, v3, s[12:15], 0 offen offset:{4*i}")
        a("s_nop 1")
    a("s_sub_u32 s24, s20, s30")
    a("v_mov_b32 v6, s24")
    a("buffer_store_dword v6, v3, s[12:15], 0 offen offset:40")
    if SPIN:
        hi, lo = SPIN
        a("s_max_u32 s31, s31, s33")
        a("s_min_u32 s34, s34, s36")
        a("s_max_u32 s35, s35, s37")
        a(f"s_sub_u32 s24, s{hi}, s{lo}")
        a("s_min_u32 s24, s24, 3000")
        a("s_lshl_b32 s24, s24, 2")
        a("s_memrealtime s[26:27]")
        a("s_waitcnt lgkmcnt(0)")
        a("s_add_u32 s24, s24, s26")
        a.label("k4_spin")
        a("s_memrealtime s[26:27]")
        a("s_waitcnt lgkmcnt(0)")
        a("s_sub_u32 s25, s24, s26")
        a("s_cmp_gt_i32 s25, 0")
        a("s_cbranch_scc1 k4_spin")
    a.label("k4_exit")
    a("s_endpgm")


def descriptor(name, vgpr, sgpr):
    acc = (vgpr + 3) // 4 * 4
    return f""".p2align 6
.amdhsa_kernel {name}
  .amdhsa_next_free_vgpr {vgpr}
  .amdhsa_next_free_sgpr {sgpr}
  .amdhsa_accum_offset {acc}
  .amdhsa_group_segment_fixed_size 0
  .amdhsa_kernarg_size 112
  .amdhsa_user_sgpr_count 2
  .amdhsa_user_sgpr_kernarg_segment_ptr 1
  .amdhsa_system_sgpr_workgroup_id_x 1
.end_amdhsa_kernel
"""


def main(path):
    a = Asm()
    a.raw(f"; @launch kernel=k1_kernel grid=({N_K1},1,1) block=(512,1,1) lds={K1_LDS}")
    a.raw(f"; @launch kernel=k2_kernel grid=({N_G1+N_CV+N_RL},1,1) block=(512,1,1) lds={K2_LDS}")
    a.raw(f"; @launch kernel=k3_kernel grid=({N_G2},1,1) block=(768,1,1) lds={K3_LDS}")
    if K4:
        a.raw("; @launch kernel=k4_kernel grid=(1,1,1) block=(64,1,1) lds=0")
    a.raw('.amdgcn_target "amdgcn-amd-amdhsa--gfx950"')
    a.raw(".text")
    for k in ("k1_kernel", "k2_kernel", "k3_kernel") + (("k4_kernel",) if K4 else ()):
        a.raw(f".globl {k}")
        a.raw(f".type {k},@function")
    gen_k1(a)
    gen_k2(a)
    gen_k3(a)
    a.label("code_end")
    if K4:
        gen_k4(a)
    a.raw('.section .rodata,"a"')
    if K4:
        a.raw(descriptor("k4_kernel", 32, 48))
    sg = 102 if PROF else 0
    a.raw(descriptor("k1_kernel", 164, max(sg, 74)))
    a.raw(descriptor("k2_kernel", 256, max(sg, 56)))
    a.raw(descriptor("k3_kernel", 136, max(sg, 56)))
    open(path, "w").write(a.text())


if __name__ == "__main__":
    for arg in list(sys.argv):
        if arg.startswith("--spin="):
            SPIN = tuple(int(x) for x in arg[7:].split(","))
            sys.argv.remove(arg)
        if arg.startswith("--wt="):
            flag, names = arg[5:].split(":")
            for nm in names.split(","):
                WT[nm] = " " + flag.replace("+", " ")
            sys.argv.remove(arg)
        if arg.startswith("--epi="):
            EPI = arg[6:]
            sys.argv.remove(arg)
    if "--nocodepf" in sys.argv:
        sys.argv.remove("--nocodepf")
        CODE_PF = False
    if "--notouch" in sys.argv:
        sys.argv.remove("--notouch")
        TOUCH = False
    if "--k4" in sys.argv:
        sys.argv.remove("--k4")
        K4 = PROF = True
    if "--prof" in sys.argv:
        sys.argv.remove("--prof")
        PROF = True
    main(sys.argv[1] if len(sys.argv) > 1 else f"cdna_kernels/{NAME}.s")
```

```python
import struct
import sys

NAME = "parallel_sum__ssm_conv_s4d__glu_gated_reglu__prompt"

L, D, N, F = 2048, 512, 128, 1376
FP = 1408
WS_XN = 0x000000
WS_XNT = 0x240000
WS_KR = 0x480000
WS_H = 0x880000
WS_AT = 0xE80000
XN_STRIDE = 1024 + 128
XN_BYTES = L * XN_STRIDE
H_STRIDE = 2 * FP + 128
H_BYTES = L * H_STRIDE
XNT_STRIDE = 8192 + 128
XNT_BYTES = (L // 8) * XNT_STRIDE
W_BYTES = D * F * 2
WS_WDT = WS_AT + L * D * 2
WDT_TILE = FP * 128
WS_END = WS_WDT + 8 * WDT_TILE
TOUCH = False
CODE_PF = True
PF_ROWS = 128
G1_MAP = True
EPI = "dot"
WT = dict(xn="", xnt="", k="", at="", wdt="", h="", out="")

KA_U, KA_LAR, KA_AI, KA_CR, KA_CI, KA_LDT, KA_DSK, KA_BX, KA_WG, KA_WU, KA_WD, KA_OUT, KA_DBG, KA_WS = \
    [8 * i for i in range(14)]


def f32(x):
    return "0x%08x" % struct.unpack("<I", struct.pack("<f", x))[0]


class Asm:
    def __init__(self):
        self.lines = []

    def __call__(self, s):
        for ln in s.strip("\n").split("\n"):
            self.lines.append("  " + ln.strip())

    def label(self, s):
        self.lines.append(s + ":")

    def raw(self, s):
        self.lines.append(s)

    def text(self):
        return "\n".join(self.lines) + "\n"


PROF = False
K4 = False
SPIN = None
PROF_BASE = 0x1400000
_stamp_n = [0]


def stamp_begin(a):
    _stamp_n[0] = 0
    if PROF:
        a("s_memrealtime s[80:81]")
        a("s_memtime s[82:83]")
        _stamp_n[0] = 1


def stamp(a):
    if PROF:
        k = _stamp_n[0]
        a(f"s_memtime s[{82+2*k}:{83+2*k}]")
        _stamp_n[0] += 1


def stamp_end(a, launch, ws_lo):
    if not PROF:
        return
    stamp(a)
    n = _stamp_n[0]
    a("s_waitcnt lgkmcnt(0)")
    a("s_memrealtime s[98:99]")
    a(f"s_add_u32 s76, s{ws_lo}, {PROF_BASE}")
    a(f"s_addc_u32 s77, s{ws_lo+1}, 0")
    a("s_mov_b32 s78, 0x1000000")
    a("s_mov_b32 s79, 0x00020000")
    a("v_lshrrev_b32 v2, 6, v0")
    a(f"s_add_u32 s75, s2, {launch*512}")
    a("s_lshl_b32 s75, s75, 10")
    a("v_lshlrev_b32 v2, 6, v2")
    a("v_add_u32 v2, s75, v2")
    a("s_waitcnt lgkmcnt(0)")
    a("v_mov_b32 v4, s80")
    a("v_mov_b32 v5, s98")
    a("buffer_store_dwordx2 v[4:5], v2, s[76:79], 0 offen")
    for k in range(n):
        a(f"v_mov_b32 v6, s{82+2*k}")
        a(f"buffer_store_dword v6, v2, s[76:79], 0 offen offset:{8+4*k}")
        a("s_nop 1")


def vr(b, n):
    return "v[%d:%d]" % (b, b + n - 1)


def sr(b, n):
    return "s[%d:%d]" % (b, b + n - 1)


def srd(a, dst, base, nbytes, add=0):
    if add:
        a(f"s_add_u32 s{dst}, s{base}, {add}")
        a(f"s_addc_u32 s{dst+1}, s{base+1}, 0")
    else:
        a(f"s_mov_b32 s{dst}, s{base}")
        a(f"s_mov_b32 s{dst+1}, s{base+1}")
    a(f"s_mov_b32 s{dst+2}, {nbytes}")
    a(f"s_mov_b32 s{dst+3}, 0x00020000")


_pc_n = [0]


def code_prefetch(a, lo, hi, slice_sgpr, lane16, dst, sbase):
    _pc_n[0] += 1
    lab = f"pc_ref{_pc_n[0]}"
    a(f"s_getpc_b64 {sr(sbase,2)}")
    a.label(lab)
    a(f"s_add_u32 s{sbase}, s{sbase}, ({lo} - {lab}) & 0xffffffff")
    a(f"s_addc_u32 s{sbase+1}, s{sbase+1}, (({lo} - {lab}) >> 32) & 0xffffffff")
    a(f"s_mov_b32 s{sbase+2}, {hi} - {lo}")
    a(f"s_mov_b32 s{sbase+3}, 0x00020000")
    a(f"s_lshl_b32 s{slice_sgpr}, s{slice_sgpr}, 10")
    a(f"buffer_load_dwordx4 {vr(dst,4)}, v{lane16}, {sr(sbase,4)}, s{slice_sgpr} offen")


def interleave(main, fill, every=1, start=0):
    out = []
    fill = list(fill)
    for i, m in enumerate(main):
        out.append(m)
        if i >= start and (i - start) % every == every - 1 and fill:
            out.append(fill.pop(0))
    out.extend(fill)
    return out


N_K1 = 256
LN_STRIDE = 1088
KG_ROW = 544
KG_XA, KG_YB, KG_T = 0, 24 * KG_ROW, 56 * KG_ROW
KG_CH = KG_T + 3072
LN_LDS = 2 * KG_CH
K1_LDS = LN_LDS + 8 * LN_STRIDE
LOG2E = 1.4426950408889634
L_HI = 47274.0 / 32768.0
C_LO = (LOG2E - L_HI) * 0.6931471805599453
T_BIAS = 0x3F7F
KT_BYTES = 3072
KT_O, KT_TAB = 1024, 2048
PF_W = 6


def dpp_reduce(a, regs):
    steps = ["row_shr:1 row_mask:0xf bank_mask:0xf bound_ctrl:0",
             "row_shr:2 row_mask:0xf bank_mask:0xf bound_ctrl:0",
             "row_shr:4 row_mask:0xf bank_mask:0xf bound_ctrl:0",
             "row_shr:8 row_mask:0xf bank_mask:0xf bound_ctrl:0",
             "row_bcast:15 row_mask:0xa bank_mask:0xf",
             "row_bcast:31 row_mask:0xc bank_mask:0xf"]
    a("s_nop 1")
    for st in steps:
        for r in regs:
            a(f"v_add_f32_dpp v{r}, v{r}, v{r} {st}")
    a("s_nop 1")


def bf16_round(a, dst, src):
    a(f"v_cvt_pk_bf16_f32 v{dst}, v{src}, v{src}")
    a(f"v_lshlrev_b32 v{dst}, 16, v{dst}")


def gen_ln(a):
    stamp_begin(a)
    if CODE_PF:
        a("v_lshlrev_b32 v3, 4, v1")
        a("s_lshr_b32 s45, s2, 3")
        a("s_lshl_b32 s45, s45, 1")
        a("s_sub_u32 s46, s44, 6")
        a("s_add_u32 s45, s45, s46")
        a("s_cmp_lt_u32 s44, 6")
        a("s_cbranch_scc1 k1_no_pf")
        code_prefetch(a, "k1_kernel", "code_end", 45, 3, 76, 56)
        a("s_branch k1_pf_done")
        a.label("k1_no_pf")
        a("s_nop 0")
        a.label("k1_pf_done")
    a(f"s_load_dwordx2 s[4:5], s[0:1], {KA_U}")
    a(f"s_load_dwordx2 s[6:7], s[0:1], {KA_WS}")
    a(f"s_load_dwordx4 s[48:51], s[0:1], {KA_WG}")
    a(f"s_load_dwordx4 s[68:71], s[0:1], {KA_WD}")
    a(f"s_load_dwordx2 s[54:55], s[0:1], {KA_DSK}")
    a("s_sub_u32 s22, s44, 4")
    a("s_and_b32 s20, s2, 7")
    a("s_lshr_b32 s21, s2, 3")
    a("s_lshl_b32 s20, s20, 8")
    a("s_lshl_b32 s23, s21, 3")
    a("s_add_u32 s20, s20, s23")
    a("s_lshl_b32 s23, s22, 1")
    a("s_add_u32 s23, s23, s20")
    a("s_lshl_b32 s24, s23, 10")
    a(f"s_mul_i32 s53, s23, {XN_STRIDE}")
    a("v_lshlrev_b32 v3, 4, v1")
    a("s_lshl_b32 s52, s2, 2")
    a("s_add_u32 s52, s52, s22")
    a("s_lshl_b32 s52, s52, 11")
    a(f"s_mul_i32 s25, s22, {2*LN_STRIDE}")
    a(f"s_add_u32 s25, s25, {LN_LDS}")
    a("v_add_u32 v4, s25, v3")
    a("v_and_b32 v5, 15, v1")
    a("v_lshrrev_b32 v6, 2, v5")
    a("v_and_b32 v5, 3, v5")
    a("v_lshrrev_b32 v7, 4, v1")
    a(f"v_mul_u32_u24 v6, {LN_STRIDE}, v6")
    a("v_lshlrev_b32 v5, 3, v5")
    a("v_lshl_add_u32 v5, v7, 5, v5")
    a("v_add_u32 v5, v5, v6")
    a("s_lshl_b32 s26, s22, 8")
    a(f"s_add_u32 s26, s26, {LN_LDS}")
    a("v_add_u32 v5, s26, v5")
    a("s_lshl_b32 s27, s22, 7")
    a("v_add_u32 v6, s27, v1")
    a("v_lshlrev_b32 v6, 4, v6")
    a(f"s_mul_i32 s28, s20, {XNT_STRIDE // 8}")
    a("s_waitcnt lgkmcnt(0)")
    srd(a, 8, 4, L * D * 2)
    for r in range(2):
        a(f"buffer_load_dwordx4 {vr(8+4*r,4)}, v3, s[8:11], s24 offen offset:{r*1024}")
    srd(a, 56, 48, W_BYTES)
    srd(a, 60, 50, W_BYTES)
    srd(a, 64, 68, W_BYTES)
    if TOUCH:
        a("s_cmp_ge_u32 s2, 16")
        a("s_cbranch_scc1 k1_no_touch")
        srd(a, 12, 6, WS_END)
        srd(a, 16, 70, L * D * 2)
        a("v_lshlrev_b32 v60, 18, v1")
        a("s_lshl_b32 s45, s22, 16")
        a("buffer_load_dword v61, v60, s[12:15], s45 offen")
        a("v_lshlrev_b32 v60, 15, v1")
        a(f"s_mov_b32 s45, {1 << 24}")
        a("buffer_load_dword v61, v60, s[12:15], s45 offen")
        a("buffer_load_dword v61, v60, s[16:19], 0 offen")
        srd(a, 16, 54, D * 2)
        a("buffer_load_dword v61, v3, s[16:19], 0 offen")
        for i in range(2):
            a(f"buffer_load_dwordx4 v[72:75], v3, s[56:59], s52 offen offset:{i*1024}")
        a("s_branch k1_touched")
        a.label("k1_no_touch")
    for i in range(2):
        for b in (56, 60, 64):
            a(f"buffer_load_dwordx4 v[72:75], v3, {sr(b,4)}, s52 offen offset:{i*1024}")
    if PF_ROWS:
        a(f"v_lshrrev_b32 v62, {6 - (PF_ROWS // 128).bit_length() + 1}, v1")
        a("v_and_b32 v63, 15, v1")
        a("v_lshlrev_b32 v63, 7, v63")
        a("v_min_u32 v63, 1404, v63")
        a(f"v_mul_u32_u24 v62, {2*F}, v62")
        a("v_add_u32 v62, v62, v63")
        a("s_lshl_b32 s54, s21, 2")
        a("s_add_u32 s54, s54, s22")
        a(f"s_mul_i32 s54, s54, {(PF_ROWS // 128)*2*F}")
        a("s_and_b32 s55, s2, 1")
        a("s_mul_i32 s55, s55, 1408")
        a("s_add_u32 s54, s54, s55")
        a("buffer_load_dword v72, v62, s[56:59], s54 offen")
        a("buffer_load_dword v73, v62, s[60:63], s54 offen")
    if TOUCH:
        a.label("k1_touched")
    srd(a, 12, 6, XN_BYTES, WS_XN)
    srd(a, 16, 6, XNT_BYTES, WS_XNT)
    X = lambda r, e: 32 + 8 * r + e
    stamp(a)
    for r in range(2):
        a(f"s_waitcnt vmcnt({PF_W + (2 if PF_ROWS else 0) + 1 - r})")
        if r == 0:
            stamp(a)
        for k in range(4):
            a(f"v_lshlrev_b32 v{X(r,2*k)}, 16, v{8+4*r+k}")
            a(f"v_and_b32 v{X(r,2*k+1)}, 0xffff0000, v{8+4*r+k}")
        a(f"v_readfirstlane_b32 s{30+2*r}, v{X(r,0)}")
        a(f"v_pk_add_f32 v[48:49], {vr(X(r,0),2)}, {vr(X(r,2),2)}")
        a(f"v_pk_add_f32 v[50:51], {vr(X(r,4),2)}, {vr(X(r,6),2)}")
        a(f"s_mov_b32 s{31+2*r}, s{30+2*r}")
        a("v_pk_add_f32 v[48:49], v[48:49], v[50:51]")
        for k in range(4):
            a(f"v_pk_add_f32 {vr(52+2*k,2)}, {vr(X(r,2*k),2)}, {sr(30+2*r,2)} neg_lo:[0,1] neg_hi:[0,1]")
        a(f"v_add_f32 v{24+2*r}, v48, v49")
        a("v_pk_mul_f32 v[50:51], v[52:53], v[52:53]")
        a("v_pk_mul_f32 v[48:49], v[54:55], v[54:55]")
        a("v_pk_fma_f32 v[50:51], v[56:57], v[56:57], v[50:51]")
        a("v_pk_fma_f32 v[48:49], v[58:59], v[58:59], v[48:49]")
        a("v_pk_add_f32 v[48:49], v[48:49], v[50:51]")
        a(f"v_add_f32 v{25+2*r}, v48, v49")
    dpp_reduce(a, [24, 25, 26, 27])
    for r in range(2):
        a(f"v_mul_f32 v{24+2*r}, {f32(1.0/512)}, v{24+2*r}")
        a(f"v_mul_f32 v{25+2*r}, {f32(1.0/512)}, v{25+2*r}")
    for r in range(2):
        a(f"v_subrev_f32 v{28+r}, s{30+2*r}, v{24+2*r}")
        bf16_round(a, 24 + 2 * r, 24 + 2 * r)
    for r in range(2):
        a(f"v_fma_f32 v{25+2*r}, -v{28+r}, v{28+r}, v{25+2*r}")
        a(f"v_max_f32 v{25+2*r}, 0, v{25+2*r}")
    for r in range(2):
        bf16_round(a, 25 + 2 * r, 25 + 2 * r)
    for r in range(2):
        a(f"v_add_f32 v{25+2*r}, {f32(1e-5)}, v{25+2*r}")
        a(f"v_readlane_b32 s{36+2*r}, v{24+2*r}, 63")
    for r in range(2):
        bf16_round(a, 25 + 2 * r, 25 + 2 * r)
    for r in range(2):
        a(f"v_sqrt_f32 v{25+2*r}, v{25+2*r}")
    for r in range(2):
        a(f"s_mov_b32 s{37+2*r}, s{36+2*r}")
    for r in range(2):
        bf16_round(a, 25 + 2 * r, 25 + 2 * r)
    for r in range(2):
        a(f"v_rcp_f32 v{25+2*r}, v{25+2*r}")
    for r in range(2):
        for k in range(4):
            a(f"v_pk_add_f32 {vr(X(r,2*k),2)}, {vr(X(r,2*k),2)}, {sr(36+2*r,2)} neg_lo:[0,1] neg_hi:[0,1]")
    for r in range(2):
        a(f"v_readlane_b32 s{40+2*r}, v{25+2*r}, 63")
    for r in range(2):
        for k in range(4):
            a(f"v_cvt_pk_bf16_f32 v{8+4*r+k}, v{X(r,2*k)}, v{X(r,2*k+1)}")
    for r in range(2):
        a(f"s_mov_b32 s{41+2*r}, s{40+2*r}")
    for r in range(2):
        for k in range(4):
            a(f"v_lshlrev_b32 v{X(r,2*k)}, 16, v{8+4*r+k}")
            a(f"v_and_b32 v{X(r,2*k+1)}, 0xffff0000, v{8+4*r+k}")
        for k in range(4):
            a(f"v_pk_mul_f32 {vr(X(r,2*k),2)}, {vr(X(r,2*k),2)}, {sr(40+2*r,2)}")
        for k in range(4):
            a(f"v_cvt_pk_bf16_f32 v{16+4*r+k}, v{X(r,2*k)}, v{X(r,2*k+1)}")
        a(f"ds_write_b128 v4, {vr(16+4*r,4)} offset:{r*LN_STRIDE}")
        a(f"buffer_store_dwordx4 {vr(16+4*r,4)}, v3, s[12:15], s53 offen offset:{r*XN_STRIDE}" + WT["xn"])
    a("s_waitcnt lgkmcnt(0)")
    stamp(a)
    a("s_barrier")
    for blk in range(2):
        for tb in range(2):
            a(f"ds_read_b64_tr_b16 {vr(32+4*blk+2*tb,2)}, v5 offset:{blk*128 + tb*4*LN_STRIDE}")
    a("s_waitcnt lgkmcnt(2)")
    a("buffer_store_dwordx4 v[32:35], v6, s[16:19], s28 offen" + WT["xnt"])
    a("s_waitcnt lgkmcnt(0)")
    a("buffer_store_dwordx4 v[36:39], v6, s[16:19], s28 offen offset:1024" + WT["xnt"])
    stamp_end(a, 0, 6)
    a("s_endpgm")


def exp_acc(a, dst, x, t):
    a(f"v_mul_f32 v{dst}, {f32(L_HI)}, v{x}")
    a(f"v_exp_f32 v{dst}, v{dst}")
    a(f"v_mul_f32 v{t}, {f32(C_LO)}, v{x}")
    a(f"v_fma_f32 v{dst}, v{dst}, v{t}, v{dst}")


def cmul(t, z, w):
    return [f"v_pk_mul_f32 {vr(t,2)}, {vr(z,2)}, {vr(w,2)} op_sel:[0,0] op_sel_hi:[1,0]",
            f"v_pk_fma_f32 {vr(t,2)}, {vr(z,2)}, {vr(w,2)}, {vr(t,2)} op_sel:[1,1,0] op_sel_hi:[0,1,1] "
            f"neg_lo:[1,0,0]"]


def gen_kgen(a):
    stamp_begin(a)
    a(f"s_load_dwordx8 s[4:11], s[0:1], {KA_LAR}")
    a(f"s_load_dwordx2 s[12:13], s[0:1], {KA_LDT}")
    a(f"s_load_dwordx2 s[14:15], s[0:1], {KA_WS}")
    a("s_and_b32 s41, s2, 7")
    a("s_lshr_b32 s42, s2, 3")
    a("s_lshr_b32 s43, s42, 2")
    a("s_lshl_b32 s43, s43, 6")
    a("s_lshl_b32 s41, s41, 3")
    a("s_add_u32 s41, s41, s43")
    a("s_and_b32 s42, s42, 3")
    a("s_lshl_b32 s42, s42, 1")
    a("s_add_u32 s41, s41, s42")
    a("s_lshr_b32 s45, s44, 1")
    a("s_and_b32 s46, s44, 1")
    a("s_add_u32 s47, s41, s45")
    a("s_lshl_b32 s48, s46, 6")
    a("v_add_u32 v3, s48, v1")
    a("s_lshl_b32 s49, s47, 8")
    a("v_lshlrev_b32 v4, 1, v3")
    a("s_lshl_b32 s50, s47, 1")
    a("v_mov_b32 v5, s50")
    a("s_waitcnt lgkmcnt(0)")
    srd(a, 16, 4, D * N * 2)
    srd(a, 32, 12, D * 2)
    a("buffer_load_ushort v8, v4, s[16:19], s49 offen")
    a("buffer_load_ushort v12, v5, s[32:35], 0 offen")
    srd(a, 20, 6, D * N * 2)
    a("buffer_load_ushort v9, v4, s[20:23], s49 offen")
    srd(a, 24, 8, D * N * 2)
    a("buffer_load_ushort v10, v4, s[24:27], s49 offen")
    srd(a, 28, 10, D * N * 2)
    a("buffer_load_ushort v11, v4, s[28:31], s49 offen")
    srd(a, 36, 14, D * KT_BYTES, WS_KR)
    a(f"s_mul_i32 s51, s45, {KG_CH}")
    a("v_lshlrev_b32 v6, 2, v3")
    a("v_add_u32 v6, s51, v6")
    a("v_and_b32 v7, 15, v1")
    a("v_lshrrev_b32 v2, 4, v1")
    a(f"v_mul_u32_u24 v13, {KG_ROW}, v7")
    a("v_lshl_add_u32 v13, v2, 4, v13")
    a("v_add_u32 v100, s51, v13")
    a(f"s_mul_i32 s52, s46, {16*KG_ROW}")
    a("v_add_u32 v101, s52, v100")
    quads = [(0, 1), (4, 1), (256, 2), (512, 256)], [(1536, 256), (516, 256), (4097, 0), (4097, 0)]
    a("s_cmp_eq_u32 s46, 0")
    for q in range(4):
        a(f"s_mov_b32 s64, {f32(float(quads[0][q][0]))}")
        a(f"s_mov_b32 s65, {f32(float(quads[0][q][1]))}")
        a(f"s_cselect_b32 s{56+q}, s64, {f32(float(quads[1][q][0]))}")
        a(f"s_cselect_b32 s{60+q}, s65, {f32(float(quads[1][q][1]))}")
    a("v_mov_b32 v14, s56")
    a("v_mov_b32 v15, s60")
    for q in range(1, 4):
        a(f"v_cmp_eq_u32 vcc, {q}, v2")
        a(f"v_mov_b32 v16, s{56+q}")
        a(f"v_mov_b32 v17, s{60+q}")
        a("v_cndmask_b32 v14, v14, v16, vcc")
        a("v_cndmask_b32 v15, v15, v17, vcc")
    a("v_cvt_f32_u32 v16, v7")
    a("v_fmac_f32 v14, 0x41000000, v16")
    a(f"s_add_u32 s53, s51, {KG_T + KT_TAB - 2*0x4380}")
    a(f"s_add_u32 s54, s51, {KG_T + 3000}")
    a(f"s_add_u32 s57, s51, {KG_T + 510}")
    a(f"s_add_u32 s58, s51, {KG_T + KT_O + 512}")
    a("v_mov_b32 v19, s54")
    TW, TW2 = 102, 112
    for jt in range(2):
        for r in range(4):
            p = 20 + 4 * jt + r
            if r == 0:
                a(f"v_mov_b32 v{p}, v14" if jt == 0 else f"v_add_f32 v{p}, 0x43000000, v14")
            else:
                a(f"v_add_f32 v{p}, v{p-1}, v15")
    for i in range(8):
        p, b, b2 = 20 + i, TW + i, TW2 + i
        a(f"v_cvt_pk_bf16_f32 v{b}, v{p}, v{p}")
        a(f"v_cvt_u32_f32 v17, v{p}")
        a(f"v_and_b32 v16, 0xffff0000, v{b}")
        a(f"v_cmp_eq_u32 vcc, v16, v{p}")
        a(f"v_and_b32 v{b}, 0xffff, v{b}")
        a(f"v_lshl_add_u32 v{b}, v{b}, 1, s53")
        a(f"v_cndmask_b32 v{b}, v19, v{b}, vcc")
        a("v_lshlrev_b32 v16, 1, v17")
        a("v_cmp_gt_u32 vcc, 256, v17")
        a("v_sub_u32 v18, s57, v16")
        a(f"v_sub_u32 v{b2}, s58, v16")
        a(f"v_cndmask_b32 v{b}, v{b}, v18, vcc")
        a("v_cmp_ge_u32 vcc, 256, v17")
        a("s_nop 1")
        a(f"v_cndmask_b32 v{b2}, v19, v{b2}, vcc")
    a("v_mov_b32 v20, 0")
    a("v_mov_b32 v21, 0")
    a("v_mov_b32 v22, 0")
    a("v_mov_b32 v23, 0")
    a("v_and_b32 v16, 1, v1")
    a("v_lshlrev_b32 v16, 4, v16")
    a(f"s_mul_i32 s59, s46, {KT_O}")
    a("s_add_u32 s59, s59, s57")
    a("v_add_u32 v16, s59, v16")
    a("ds_write_b128 v16, v[20:23] offset:2")
    a("v_lshlrev_b32 v130, 4, v3")
    a(f"s_add_u32 s55, s51, {KG_T}")
    a("v_add_u32 v110, s55, v130")
    a(f"s_mul_i32 s55, s47, {KT_BYTES}")
    a("v_mov_b32 v14, 0x00003f80")
    a(f"ds_write_b32 v6, v14 offset:{KG_YB}")
    stamp(a)
    a("s_waitcnt vmcnt(3)")
    stamp(a)
    a("v_lshlrev_b32 v12, 16, v12")
    a("v_lshlrev_b32 v8, 16, v8")
    exp_acc(a, 13, 12, 14)
    exp_acc(a, 15, 8, 16)
    bf16_round(a, 13, 13)
    bf16_round(a, 15, 15)
    a("s_waitcnt vmcnt(2)")
    a("v_lshlrev_b32 v9, 16, v9")
    a("v_mul_f32 v15, v15, v13")
    a("v_mul_f32 v16, v9, v13")
    a(f"v_mul_f32 v15, {f32(-LOG2E)}, v15")
    a(f"v_mul_f32 v16, {f32(0.15915494309189535)}, v16")
    seeds = [(1, 20, 1), (256, 22, 1), (8, 24, -1), (64, 26, -1)]
    for i, (p, z, sg) in enumerate(seeds):
        a(f"v_mul_f32 v{32+i}, {f32(float(p))}, v15")
        a(f"v_mul_f32 v{36+i}, {f32(float(p*sg))}, v16")
    for i in range(4):
        a(f"v_exp_f32 v{32+i}, v{32+i}")
        a(f"v_fract_f32 v{36+i}, v{36+i}")
    for i, (p, z, sg) in enumerate(seeds):
        a(f"v_cos_f32 v{z}, v{36+i}")
        a(f"v_sin_f32 v{z+1}, v{36+i}")
    a("s_waitcnt vmcnt(0)")
    a("v_lshlrev_b32 v10, 16, v10")
    a("v_lshlrev_b32 v11, 16, v11")
    a("v_add_f32 v13, v13, v13")
    for i, (p, z, sg) in enumerate(seeds):
        a(f"v_mul_f32 v{z}, v{32+i}, v{z}")
        a(f"v_mul_f32 v{z+1}, v{32+i}, v{z+1}")
    a("v_mul_f32 v28, v10, v13")
    a("v_mul_f32 v29, v11, v13")
    E1, E256, Y8, Y64, C = 20, 22, 24, 26, 28
    E2, E4, Y128, Y192 = 40, 42, 44, 46

    def emit(z, off, t):
        return [f"v_cvt_pk_bf16_f32 v{t}, v{z}, v{z+1}", f"ds_write_b32 v6, v{t} offset:{off}"]

    xrow = lambda q, r: KG_XA + (4 * q + r) * KG_ROW
    yrow = lambda j: KG_YB + j * KG_ROW

    def chain(seed, ratio, offs, ra, rb, t, emit_seed=True):
        ops = []
        cur = seed
        for k, off in enumerate(offs):
            if k:
                nxt = ra if cur != ra else rb
                ops.append(cmul(nxt, cur, ratio))
                cur = nxt
            if k or emit_seed:
                ops.append(emit(cur, off, t))
        return ops

    pre = [cmul(E2, E1, E1), cmul(Y128, Y64, Y64), cmul(48, C, E256), cmul(E4, E2, E2), cmul(Y192, Y128, Y64)]
    for i in range(2):
        for op in pre[:3]:
            a(op[i])
    for i in range(2):
        for op in pre[3:]:
            a(op[i])
    a("\n".join(cmul(50, C, E4)))
    chains = [
        chain(Y8, Y8, [yrow(j) for j in range(1, 8)], 52, 54, 88),
        chain(Y64, Y8, [yrow(j) for j in range(8, 16)], 56, 58, 89),
        chain(Y128, Y8, [yrow(j) for j in range(16, 24)], 60, 62, 90),
        chain(Y192, Y8, [yrow(j) for j in range(24, 32)], 64, 66, 91),
        chain(C, E1, [xrow(0, r) for r in range(4)], 68, 70, 92)
        + chain(48, E2, [xrow(2, r) for r in range(4)], 68, 70, 92),
        chain(50, E1, [xrow(1, r) for r in range(4)], 72, 74, 93),
    ]
    far = []
    cur = 48
    offs = [xrow(3, 0), xrow(3, 1), xrow(3, 2), xrow(3, 3), xrow(4, 0), xrow(4, 1), xrow(4, 2)]
    for k, off in enumerate(offs):
        nxt = 76 if cur != 76 else 78
        far.append(cmul(nxt, cur, E256))
        cur = nxt
        far.append(emit(cur, off, 94))
        if k < 2:
            far.append(cmul(80, cur, E4))
            far.append(emit(80, xrow(5, k), 95))
    chains.append(far)
    while any(chains):
        units = [c.pop(0) for c in chains if c]
        for i in range(2):
            for u in units:
                a(u[i])
    a("s_waitcnt lgkmcnt(0)")
    stamp(a)
    a("s_barrier")
    for ks in range(8):
        a(f"ds_read_b128 {vr(132+4*ks,4)}, v101 offset:{KG_XA + ks*64}")
        a(f"ds_read_b128 {vr(32+4*ks,4)}, v100 offset:{KG_YB + ks*64}")
        a(f"ds_read_b128 {vr(64+4*ks,4)}, v100 offset:{KG_YB + 16*KG_ROW + ks*64}")
    for ks in range(8):
        a(f"s_waitcnt lgkmcnt({min(15, 3*(7-ks))})")
        c0 = "0" if ks == 0 else "v[20:23]"
        c1 = "0" if ks == 0 else "v[24:27]"
        a(f"v_mfma_f32_16x16x32_bf16 v[20:23], {vr(132+4*ks,4)}, {vr(32+4*ks,4)}, {c0}")
        a(f"v_mfma_f32_16x16x32_bf16 v[24:27], {vr(132+4*ks,4)}, {vr(64+4*ks,4)}, {c1}")
    a("s_nop 7")
    for i in range(8):
        a(f"v_cvt_pk_bf16_f32 v{20+i}, v{20+i}, v{20+i}")
        a(f"ds_write_b16 v{TW+i}, v{20+i}")
        a(f"ds_write_b16 v{TW2+i}, v{20+i}")
    a("s_waitcnt lgkmcnt(0)")
    stamp(a)
    a("s_barrier")
    a("ds_read_b128 v[32:35], v110")
    a("ds_read_b128 v[36:39], v110 offset:2048")
    a("s_waitcnt lgkmcnt(1)")
    a("buffer_store_dwordx4 v[32:35], v130, s[36:39], s55 offen" + WT["k"])
    a("s_cmp_lg_u32 s46, 0")
    a("s_cbranch_scc1 k1_kg_done")
    a("s_waitcnt lgkmcnt(0)")
    a("buffer_store_dwordx4 v[36:39], v130, s[36:39], s55 offen offset:2048" + WT["k"])
    a.label("k1_kg_done")
    stamp_end(a, 0, 14)
    a("s_endpgm")


def gen_k1(a):
    a.raw(".p2align 8")
    a.label("k1_kernel")
    a(f"s_cmp_ge_u32 s2, {N_K1}")
    a("s_cbranch_scc1 k1_exit")
    a("v_lshrrev_b32 v2, 6, v0")
    a("v_and_b32 v1, 63, v0")
    a("v_readfirstlane_b32 s44, v2")
    a("s_cmp_ge_u32 s44, 4")
    a("s_cbranch_scc1 k1_ln")
    gen_kgen(a)
    a.label("k1_ln")
    gen_ln(a)
    a.label("k1_exit")
    a("s_endpgm")


N_G1, N_CV, N_RL = 176, 64, 16
G1_STAGE = 49152
G1_W = 32768
K2_LDS = 3 * G1_STAGE
G1_NST = 8
CV_ZB, CV_PW = 32768, 32896
CV_O, CV_T, CV_G, CV_W = 2752, 5376, 6400, 7168


def gen_gemm1_loader(a):
    a("s_sub_u32 s30, s30, 4")
    a("v_lshrrev_b32 v3, 3, v1")
    a("v_and_b32 v4, 7, v1")
    a("v_lshrrev_b32 v5, 4, v1")
    a(f"v_mul_u32_u24 v14, {XN_STRIDE}, v3")
    for q in range(4):
        a(f"v_add_u32 v6, {4*q}, v5")
        a("v_and_b32 v6, 7, v6")
        a("v_xor_b32 v6, v6, v4")
        a("v_lshl_add_u32 v6, v6, 4, v14")
        a(f"v_add_u32 v{8+q}, {q*(8*XN_STRIDE-1024)}, v6")
    a("v_and_b32 v6, 1, v5")
    a("v_lshrrev_b32 v7, 2, v4")
    a("v_xor_b32 v6, v6, v7")
    a("v_and_b32 v7, 3, v4")
    a("v_lshlrev_b32 v7, 3, v7")
    a("v_lshl_add_u32 v6, v6, 5, v7")
    a("s_lshl_b32 s31, s29, 6")
    a("v_add_u32 v6, s31, v6")
    a(f"v_mul_u32_u24 v12, {2*F}, v3")
    a("v_lshl_add_u32 v12, v6, 1, v12")
    a(f"v_add_u32 v13, {8*2*F-1024}, v12")
    a(f"v_cmp_le_u32 vcc, {F}, v6")
    a("v_mov_b32 v7, 0x40000000")
    a(f"s_mul_i32 s32, s28, {256*XN_STRIDE}")
    a("v_cndmask_b32 v12, v12, v7, vcc")
    a("v_cndmask_b32 v13, v13, v7, vcc")
    a(f"s_mul_i32 s33, s30, {64*XN_STRIDE}")
    a("s_add_u32 s32, s32, s33")
    a(f"s_add_u32 s36, s32, {32*XN_STRIDE}")
    a(f"s_mul_i32 s33, s30, {16*2*F}")
    a("s_lshl_b32 s34, s30, 13")
    a("s_lshl_b32 s35, s30, 11")
    a(f"s_add_u32 s35, s35, {G1_W}")
    a("s_waitcnt lgkmcnt(0)")
    srd(a, 16, 4, W_BYTES)
    srd(a, 20, 6, W_BYTES)
    srd(a, 12, 8, XN_BYTES, WS_XN)

    def dma(stage, lo=0, hi=12):
        b = (stage % 3) * G1_STAGE
        if lo == 0:
            a(f"s_add_u32 m0, s35, {b}")
            a("s_nop 0")
            a("buffer_load_dwordx4 v12, s[16:19], s33 offen lds")
            a("buffer_load_dwordx4 v13, s[16:19], s33 offen offset:1024 lds")
            a(f"s_add_u32 m0, s35, {b+8192}")
            a("s_nop 0")
            a("buffer_load_dwordx4 v12, s[20:23], s33 offen lds")
            a("buffer_load_dwordx4 v13, s[20:23], s33 offen offset:1024 lds")
            a(f"s_add_u32 s33, s33, {64*2*F}")
        if hi == 12:
            a(f"s_add_u32 m0, s34, {b}")
            a("s_nop 0")
            for q in range(4):
                a(f"buffer_load_dwordx4 v{8+q}, s[12:15], s32 offen offset:{q*1024} lds")
            a(f"s_add_u32 m0, s34, {b+4096}")
            a("s_add_u32 s32, s32, 128")
            for q in range(4):
                a(f"buffer_load_dwordx4 v{8+q}, s[12:15], s36 offen offset:{q*1024} lds")
            a("s_add_u32 s36, s36, 128")

    dma(0)
    dma(1, 0, 4)
    for st in range(G1_NST):
        if st in (0, 3, 4):
            stamp(a)
        a(f"s_waitcnt vmcnt({4 if st == 0 else (12 if st + 1 < G1_NST else 0)})")
        if st in (0, 3, 4):
            stamp(a)
        a("s_barrier")
        if st in (3,):
            stamp(a)
        if st == 0:
            dma(1, 4, 12)
        if st + 2 < G1_NST:
            dma(st + 2)
    stamp_end(a, 1, 8)
    a("s_endpgm")


def gen_gemm1(a):
    stamp_begin(a)
    a(f"s_load_dwordx4 s[4:7], s[0:1], {KA_WG}")
    a(f"s_load_dwordx2 s[8:9], s[0:1], {KA_WS}")
    a("v_and_b32 v1, 63, v0")
    a("v_lshrrev_b32 v2, 6, v0")
    if G1_MAP:
        a("s_lshr_b32 s29, s2, 3")
        a("s_and_b32 s28, s2, 6")
        a("s_and_b32 s31, s29, 1")
        a("s_add_u32 s28, s28, s31")
        a("s_lshr_b32 s29, s29, 1")
        a("s_and_b32 s31, s2, 1")
        a("s_mul_i32 s31, s31, 11")
        a("s_add_u32 s29, s29, s31")
    else:
        a("s_and_b32 s28, s2, 7")
        a("s_lshr_b32 s29, s2, 3")
    a("v_readfirstlane_b32 s30, v2")
    a("s_cmp_lt_u32 s30, 4")
    a("s_cbranch_scc1 k2_g1_compute")
    gen_gemm1_loader(a)
    a.label("k2_g1_compute")
    _stamp_n[0] = 1 if PROF else 0
    a("v_and_b32 v3, 31, v1")
    a("v_lshrrev_b32 v4, 5, v1")
    a("v_lshrrev_b32 v5, 1, v3")
    a("v_and_b32 v5, 7, v5")
    a("v_xor_b32 v5, v5, v4")
    a("v_lshlrev_b32 v6, 7, v3")
    a("s_lshl_b32 s38, s30, 13")
    a("v_add_u32 v6, s38, v6")
    for ks in range(4):
        a(f"v_xor_b32 v7, {2*ks}, v5")
        a(f"v_lshl_add_u32 v{16+ks}, v7, 4, v6")
    a("v_and_b32 v5, 15, v1")
    a("v_lshrrev_b32 v6, 2, v5")
    a("v_and_b32 v5, 3, v5")
    a("v_lshrrev_b32 v7, 4, v1")
    a("v_and_b32 v7, 1, v7")
    a("v_and_b32 v13, 1, v5")
    a("v_lshlrev_b32 v13, 5, v13")
    a("v_lshl_add_u32 v13, v7, 4, v13")
    a("v_lshrrev_b32 v5, 1, v5")
    a("v_lshl_add_u32 v13, v5, 3, v13")
    a("v_lshrrev_b32 v5, 1, v6")
    a("v_lshl_add_u32 v13, v5, 6, v13")
    a("v_lshl_add_u32 v6, v4, 3, v6")
    a("v_lshl_add_u32 v13, v6, 7, v13")
    a(f"v_add_u32 v20, {G1_W}, v13")
    a("v_xor_b32 v21, 64, v20")
    a("v_mov_b32 v12, 0")
    HS = 144
    a(f"s_mul_i32 s39, s30, {64*HS}")
    a(f"v_mul_u32_u24 v22, {HS}, v3")
    a("v_lshl_add_u32 v22, v4, 5, v22")
    a("v_add_u32 v22, s39, v22")
    a("v_lshrrev_b32 v5, 3, v1")
    a("v_and_b32 v6, 7, v1")
    a(f"v_mul_u32_u24 v23, {HS}, v5")
    a("v_lshl_add_u32 v23, v6, 4, v23")
    a("v_add_u32 v23, s39, v23")
    a(f"v_mul_u32_u24 v14, {H_STRIDE}, v5")
    a("v_lshl_add_u32 v14, v6, 4, v14")
    a("s_lshl_b32 s40, s28, 8")
    a("s_lshl_b32 s41, s30, 6")
    a("s_add_u32 s40, s40, s41")
    a(f"s_mul_i32 s42, s40, {H_STRIDE}")
    a("s_lshl_b32 s43, s29, 7")
    a("s_add_u32 s42, s42, s43")
    a("s_waitcnt lgkmcnt(0)")
    srd(a, 24, 8, H_BYTES, WS_H)

    ACC = lambda w, ft, tt: 128 + 64 * w + 32 * ft + 16 * tt
    FS = [32, 56, 80, 104]

    def reads(n, f):
        ks = n & 3
        out = []
        for w in range(2):
            for ft in range(2):
                o = 8192 * w + ks * 2048
                out.append(f"ds_read_b64_tr_b16 {vr(f+8*w+4*ft,2)}, v{20+ft} offset:{o}")
                out.append(f"ds_read_b64_tr_b16 {vr(f+8*w+4*ft+2,2)}, v{20+ft} offset:{o+512}")
            out.append(f"ds_read_b128 {vr(f+16+4*w,4)}, v{16+ks} offset:{4096*w}")
        return out

    def mfma(n, f, w, ft, tt):
        c = vr(ACC(w, ft, tt), 16)
        return (f"v_mfma_f32_32x32x16_bf16 {c}, {vr(f+8*w+4*ft,4)}, {vr(f+16+4*tt,4)}, "
                f"{'0' if n == 0 else c}")

    def mfmas(n, f):
        return [mfma(n, f, w, ft, tt) for tt in range(2) for w in range(2) for ft in range(2)]

    def boundary(st):
        a("s_waitcnt lgkmcnt(0)")
        a("s_barrier")
        if st in (0, 6, 7):
            stamp(a)
        if st >= 1:
            delta = G1_STAGE if st % 3 else -2 * G1_STAGE
            for r in (16, 17, 18, 19, 20, 21):
                a(f"v_add_u32 v{r}, {delta & 0xffffffff:#x}, v{r}")

    LASTN = 4 * (G1_NST - 1)
    boundary(0)
    for op in reads(0, FS[0]):
        a(op)
    for n in range(LASTN):
        nx = n + 1
        if nx == LASTN:
            break
        if nx & 3 == 0:
            boundary(nx >> 2)
        else:
            a("s_waitcnt lgkmcnt(0)")
        rd = reads(nx, FS[nx & 1])
        cuts = [0, 3, 6, 8, 10, 10, 10, 10, 10]
        for i, m in enumerate(mfmas(n, FS[n & 1])):
            a(m)
            for op in rd[cuts[i]:cuts[i + 1]]:
                a(op)
    n = LASTN - 1
    boundary(G1_NST - 1)
    sets = {LASTN: FS[0], LASTN + 2: FS[2], LASTN + 3: FS[3], LASTN + 1: FS[1]}
    early = reads(LASTN, FS[0]) + reads(LASTN + 2, FS[2]) + reads(LASTN + 3, FS[3])
    mm = mfmas(n, FS[n & 1])
    for i, m in enumerate(mm):
        a(m)
        for op in early[4 * i:4 * i + 4]:
            a(op)
    for op in reads(LASTN + 1, FS[1]):
        a(op)

    def pair_epilogue(ft, tt):
        g, u = ACC(0, ft, tt), ACC(1, ft, tt)
        o = 4 if ft == 0 else 24
        out = []
        if EPI == "fused":
            for k in range(16):
                out.append(f"v_max_f32 v{g+k}, 0, v{g+k}")
            for k in range(16):
                out.append(f"v_mul_f32 v{g+k}, v{g+k}, v{u+k}")
            for k in range(8):
                out.append(f"v_cvt_pk_bf16_f32 v{o+k}, v{g+2*k}, v{g+2*k+1}")
                if k == 3:
                    out.append(f"ds_write_b128 v22, {vr(o,4)} offset:{32*HS*tt + 64*ft}")
            out.append(f"ds_write_b128 v22, {vr(o+4,4)} offset:{32*HS*tt + 64*ft + 16}")
            return out
        for k in range(8):
            out.append(f"v_cvt_pk_bf16_f32 v{g+2*k}, v{g+2*k}, v{g+2*k+1}")
            out.append(f"v_cvt_pk_bf16_f32 v{u+2*k}, v{u+2*k}, v{u+2*k+1}")
        for k in range(8):
            out.append(f"v_max_i16_sdwa v{g+2*k+1}, v{g+2*k}, v12 dst_sel:WORD_0 dst_unused:UNUSED_PAD "
                       "src0_sel:WORD_0 src1_sel:WORD_0")
            out.append(f"v_max_i16_sdwa v{u+2*k+1}, v{g+2*k}, v12 dst_sel:WORD_1 dst_unused:UNUSED_PAD "
                       "src0_sel:WORD_1 src1_sel:WORD_0")
        for k in range(8):
            out.append(f"v_dot2_f32_bf16 v{g+2*k+1}, v{g+2*k+1}, v{u+2*k}, 0")
            out.append(f"v_dot2_f32_bf16 v{u+2*k+1}, v{u+2*k+1}, v{u+2*k}, 0")
        for k in range(8):
            out.append(f"v_cvt_pk_bf16_f32 v{o+k}, v{g+2*k+1}, v{u+2*k+1}")
            if k == 3:
                out.append(f"ds_write_b128 v22, {vr(o,4)} offset:{32*HS*tt + 64*ft}")
        out.append(f"ds_write_b128 v22, {vr(o+4,4)} offset:{32*HS*tt + 64*ft + 16}")
        return out

    def flush(tt, regs):
        rd = [f"ds_read_b128 {vr(regs+4*i,4)}, v23 offset:{8*HS*(4*tt+i)}" for i in range(4)]
        st = []
        for i in range(4):
            st.append(f"s_waitcnt lgkmcnt({3-i})\n"
                      f"buffer_store_dwordx4 {vr(regs+4*i,4)}, v14, s[24:27], s42 offen{WT['h']}\n"
                      f"s_add_u32 s42, s42, {8*H_STRIDE}")
        return rd, st

    order = [(0, 0), (1, 0), (0, 1), (1, 1)]
    korder = [LASTN, LASTN + 2, LASTN + 3, LASTN + 1]
    a("s_waitcnt lgkmcnt(10)")
    for pi, (ft, tt) in enumerate(order):
        if pi < 3:
            stamp(a)
        mm = []
        for kn in korder:
            if pi == 0 and kn == LASTN + 1:
                mm.append("s_waitcnt lgkmcnt(0)\n" + mfma(kn, sets[kn], 0, ft, tt))
            else:
                mm.append(mfma(kn, sets[kn], 0, ft, tt))
            mm.append(mfma(kn, sets[kn], 1, ft, tt))
        fill = ["s_nop 8"] + pair_epilogue(*order[pi - 1]) if pi else []
        if pi == 3:
            rd, st = flush(0, ACC(1, 0, 0))
            fill = ["s_waitcnt lgkmcnt(0)"] + rd + fill[:33] + st + fill[33:]
        lead = 2
        per = -(-len(fill) // (len(mm) - lead)) if fill else 0
        for i, m in enumerate(mm):
            a(m)
            if i >= lead - 1 and fill:
                j = i - (lead - 1)
                for op in fill[j * per:(j + 1) * per]:
                    a(op)
    a("s_nop 15")
    stamp(a)
    for op in pair_epilogue(*order[3]):
        a(op)
    a("s_waitcnt lgkmcnt(0)")
    rd, st = flush(1, ACC(1, 0, 0))
    for op in rd + st:
        a(op)
    stamp_end(a, 1, 8)
    a("s_endpgm")


def gen_conv(a):
    stamp_begin(a)
    a(f"s_load_dwordx2 s[4:5], s[0:1], {KA_DSK}")
    a(f"s_load_dwordx2 s[8:9], s[0:1], {KA_WS}")
    a("v_and_b32 v1, 63, v0")
    a("v_lshrrev_b32 v2, 6, v0")
    a(f"s_sub_u32 s28, s2, {N_G1}")
    a("s_lshl_b32 s29, s28, 7")
    a("v_readfirstlane_b32 s30, v2")
    a("s_lshl_b32 s28, s28, 3")
    a("s_add_u32 s28, s28, s30")
    a(f"s_mul_i32 s31, s30, {CV_W}")
    a(f"s_add_u32 s31, s31, {CV_PW}")
    a(f"s_mul_i32 s32, s28, {KT_BYTES}")
    a("s_lshl_b32 s34, s28, 12")
    a("s_lshr_b32 s35, s28, 1")
    a("s_lshl_b32 s35, s35, 2")
    a("v_lshlrev_b32 v3, 4, v1")
    a("v_lshrrev_b32 v4, 3, v1")
    a("v_and_b32 v5, 7, v1")
    a("v_lshrrev_b32 v6, 4, v1")
    a(f"v_mul_u32_u24 v4, {XNT_STRIDE}, v4")
    for q in range(2):
        a(f"v_add_u32 v7, {4*q}, v6")
        a("v_xor_b32 v7, v7, v5")
        a(f"v_lshl_add_u32 v{8+q}, v7, 4, v4")
    a(f"v_add_u32 v9, {8*XNT_STRIDE - 1024}, v9")
    a(f"s_mul_i32 s44, s30, {32*XNT_STRIDE}")
    a("s_add_u32 s44, s44, s29")
    a(f"s_add_u32 s45, s44, {16*XNT_STRIDE - 2048}")
    a("s_lshl_b32 s47, s30, 12")
    a("s_waitcnt lgkmcnt(0)")
    a("s_load_dword s36, s[4:5], s35")
    srd(a, 12, 8, D * KT_BYTES, WS_KR)
    srd(a, 16, 8, XNT_BYTES, WS_XNT)
    srd(a, 20, 8, L * D * 2, WS_AT)
    for q, dst in ((2, CV_T), (0, 1600), (1, CV_O + 1600)):
        a(f"s_add_u32 m0, s31, {dst - q*1024}")
        a("s_nop 0")
        a(f"buffer_load_dwordx4 v3, s[12:15], s32 offen offset:{q*1024} lds")
    a("s_mov_b32 m0, s47")
    a("s_nop 0")
    a("buffer_load_dwordx4 v8, s[16:19], s44 offen lds")
    a("buffer_load_dwordx4 v9, s[16:19], s44 offen offset:1024 lds")
    a("buffer_load_dwordx4 v8, s[16:19], s45 offen offset:2048 lds")
    a("buffer_load_dwordx4 v9, s[16:19], s45 offen offset:3072 lds")
    pf = 1 if CODE_PF else 0
    if CODE_PF:
        a(f"s_sub_u32 s45, s2, {N_G1}")
        a("s_lshr_b32 s45, s45, 3")
        a("s_lshl_b32 s45, s45, 3")
        a("s_add_u32 s45, s45, s30")
        code_prefetch(a, "k3_kernel", "code_end", 45, 3, 252, 48)
    for r in range(4, 8):
        a(f"v_mov_b32 v{r}, 0")
    a(f"v_add_u32 v10, {CV_G}, v3")
    for lo, base in ((48, 0), (51, CV_O)):
        a(f"v_cmp_le_u32 vcc, {lo}, v1")
        a(f"v_add_u32 v11, {(base - 16*lo) & 0xffffffff:#x}, v3")
        a("s_nop 0")
        a("v_cndmask_b32 v10, v10, v11, vcc")
    a("v_add_u32 v10, s31, v10")
    a("v_cmp_le_u32 vcc, 54, v1")
    a(f"v_mov_b32 v15, {CV_ZB}")
    a("s_nop 0")
    a("v_cndmask_b32 v238, v10, v15, vcc")
    a("v_and_b32 v4, 15, v1")
    a("v_lshrrev_b32 v5, 4, v1")
    a("v_lshlrev_b32 v6, 3, v5")
    a("v_sub_u32 v6, v6, v4")
    a("v_lshlrev_b32 v6, 1, v6")
    a("v_add_u32 v6, s31, v6")
    a("v_and_b32 v7, 1, v4")
    a("v_cmp_eq_u32 vcc, 1, v7")
    a(f"v_mov_b32 v8, {CV_O + 2*1040}")
    a(f"v_mov_b32 v9, {2*1039}")
    a("v_cndmask_b32 v8, v8, v9, vcc")
    a("v_add_u32 v8, v6, v8")
    for P in range(2):
        a(f"v_subrev_u32 v{10+P}, {512*(2*P+1)+448}, v8")
    a("v_subrev_u32 v12, 2048, v8")
    a(f"v_mov_b32 v8, {CV_G + 192 + 2*62 - 96}")
    a(f"v_mov_b32 v9, {CV_G + 2*63 - 96}")
    a("v_cndmask_b32 v8, v8, v9, vcc")
    a("v_lshlrev_b32 v9, 3, v5")
    a("v_sub_u32 v6, v6, v9")
    a("v_add_u32 v13, v6, v8")

    def uaddr(dst, gran, tmp):
        a(f"v_lshrrev_b32 v{tmp}, 1, v{gran}")
        a(f"v_and_b32 v{tmp}, 7, v{tmp}")
        a(f"v_xor_b32 v{tmp}, s30, v{tmp}")
        a(f"v_lshlrev_b32 v{tmp}, 4, v{tmp}")
        a(f"v_lshl_add_u32 v{dst}, v{gran}, 7, v{tmp}")

    UB, UC = 16, 24
    a("v_lshl_add_u32 v6, v4, 1, v5")
    for rho in range(4):
        a(f"v_add_u32 v7, {14 - 4*rho}, v6")
        uaddr(UB + rho, 7, 8)
    for rho in range(8):
        a(f"v_cmp_gt_u32 vcc, {4*rho + 2}, v6")
        a(f"v_subrev_u32 v7, {4096 if rho >= 4 else 2048}, v{UB + (rho & 3)}")
        a("s_nop 0")
        a(f"v_cndmask_b32 v{UC+rho}, v7, v15, vcc")
    a("v_lshrrev_b32 v7, 1, v5")
    a("v_lshl_add_u32 v7, v4, 1, v7")
    uaddr(246, 7, 8)
    a("v_and_b32 v7, 1, v5")
    a("v_lshl_add_u32 v246, v7, 3, v246")
    a("v_lshlrev_b32 v247, 5, v4")
    a("v_lshl_add_u32 v247, v5, 3, v247")
    BND = 224
    a("v_lshlrev_b32 v8, 3, v5")
    a("v_mov_b32 v9, 0x7f")
    a("v_add_u32 v7, 5, v4")
    a("v_lshlrev_b32 v240, v7, v9")
    a("v_mov_b32 v9, 0x1ff")
    a("v_lshlrev_b32 v241, v4, v9")
    a("v_lshrrev_b32 v241, 4, v241")
    a("v_mov_b32 v9, 0xf0000000")
    a("v_lshlrev_b32 v242, v4, v9")
    a("s_mov_b32 s40, 0x3f803f80")
    a("s_mov_b32 s41, 0xffff")
    for b in range(3):
        a(f"v_lshrrev_b32 v{240+b}, v8, v{240+b}")
    for b in range(3):
        for k in range(4):
            a(f"v_bfe_i32 v7, v{240+b}, {2*k}, 1")
            a(f"v_bfe_i32 v9, v{240+b}, {2*k+1}, 1")
            a("v_bfi_b32 v7, s41, v7, v9")
            a(f"v_and_b32 v{BND+4*b+k}, s40, v7")
    a(f"s_add_u32 s38, s31, {CV_T}")
    a("v_lshlrev_b32 v7, 2, v1")
    a("v_sub_u32 v249, s38, v7")
    a("v_lshlrev_b32 v7, 3, v1")
    a("v_min_u32 v7, 248, v7")
    a("v_sub_u32 v250, s38, v7")
    a("v_lshlrev_b32 v7, 2, v1")
    a("v_add_u32 v243, s38, v7")
    a("v_add_u32 v248, s31, v3")
    a("v_cmp_eq_u32 s[52:53], 63, v1")
    a("v_lshlrev_b32 v7, 1, v1")
    a(f"s_add_u32 s39, s31, {CV_G + 126}")
    a("v_sub_u32 v251, s39, v7")
    a("v_add_u32 v245, 190, v251")
    a("v_mov_b32 v7, s38")
    a("v_cndmask_b32 v245, v245, v7, s[52:53]")
    a("s_mov_b32 s42, 0x03020302")
    a("s_mov_b32 s43, 0x01000100")

    ACC = 32
    SET = [64, 112]
    A32 = 216
    WS9, WS7 = 160, 176
    FB = 192
    UREG = 160

    def loads(rho):
        s = SET[rho & 1]
        out = []
        for m in range(8):
            if m == 0:
                out.append(f"ds_read_b128 {vr(s+16,4)}, v{UC+rho}")
            else:
                o = 4096 * (m - 1) + (2048 if rho < 4 else 0)
                out.append(f"ds_read_b128 {vr(s+16+4*m,4)}, v{UB+(rho&3)} offset:{o}")
            if m < 4:
                o = (64 * (7 - rho) + (0 if m & 1 else 512)) // 4
                out.append(f"ds_read2_b32 {vr(s+4*m,2)}, v{10+(m>>1)} offset0:{o} offset1:{o+1}")
                out.append(f"ds_read2_b32 {vr(s+4*m+2,2)}, v{10+(m>>1)} offset0:{o+2} offset1:{o+3}")
        if rho == 0:
            out.append(f"ds_read2_b32 {vr(A32,2)}, v12 offset0:0 offset1:1")
            out.append(f"ds_read2_b32 {vr(A32+2,2)}, v12 offset0:2 offset1:3")
        return out

    def mfma(rho, i, m):
        s = SET[rho & 1]
        c = vr(ACC + 4 * (i + m), 4)
        fa = A32 if i == 4 else s + 4 * i
        return (f"v_mfma_f32_16x16x32_bf16 {c}, {vr(fa,4)}, {vr(s+16+4*m,4)}, "
                f"{'0' if rho == 0 and i == 0 else c}")

    def mfmas(rho):
        out = [mfma(rho, i, m) for i in range(5 if rho == 0 else 4) for m in range(8 - i)]
        s = SET[rho & 1]
        if rho == 0:
            for t in range(4):
                out.append(f"v_mfma_f32_16x16x32_bf16 {vr(WS7+4*t,4)}, {vr(s+16+4*t,4)}, {vr(BND,4)}, 0")
                out.append(f"v_mfma_f32_16x16x32_bf16 {vr(WS9+4*t,4)}, {vr(s+16+4*t,4)}, {vr(BND+4,4)}, 0")
        if rho == 1:
            for t in range(4):
                c = vr(WS9 + 4 * t, 4)
                out.insert(2 * t, f"v_mfma_f32_16x16x32_bf16 {c}, {vr(s+16+4*t,4)}, {vr(BND+8,4)}, {c}")
        return out

    def window_pack():
        out = []
        for base in (WS9, WS7):
            for t in range(4):
                out.append(f"v_cvt_pk_bf16_f32 v{base+2*t}, v{base+4*t}, v{base+4*t+1}")
                out.append(f"v_cvt_pk_bf16_f32 v{base+2*t+1}, v{base+4*t+2}, v{base+4*t+3}")
        return out

    def far_loads(par):
        out = []
        for dl in range(4):
            o = (96 - 32 * dl + 384 * par) // 4
            out.append(f"ds_read2_b32 {vr(FB+4*dl,2)}, v13 offset0:{o} offset1:{o+1}")
            out.append(f"ds_read2_b32 {vr(FB+4*dl+2,2)}, v13 offset0:{o+8} offset1:{o+9}")
        return out

    def far_mfmas(par):
        out = []
        for tp in range(4):
            for kb in range(2 if tp >= 2 else 1):
                c = vr(ACC + 4 * (4 + tp), 4)
                out.append(f"v_mfma_f32_16x16x32_bf16 {c}, {vr((WS9, WS7)[par]+4*kb,4)}, "
                           f"{vr(FB+4*(tp-2*kb),4)}, {c}")
        return out

    def tile_epilogue(t):
        y = ACC + 4 * t
        u = UREG + 2 * t
        w = 2 if t & 1 else 208
        return [f"v_lshlrev_b32 v{w}, 16, v{u}",
                f"v_and_b32 v{w+1}, 0xffff0000, v{u}",
                f"v_lshlrev_b32 v{w+2}, 16, v{u+1}",
                f"v_and_b32 v{w+3}, 0xffff0000, v{u+1}",
                f"v_pk_mul_f32 {vr(w,2)}, {vr(w,2)}, s[36:37]",
                f"v_pk_mul_f32 {vr(w+2,2)}, {vr(w+2,2)}, s[36:37]",
                f"v_cvt_pk_bf16_f32 v{u}, v{w}, v{w+1}",
                f"v_cvt_pk_bf16_f32 v{u+1}, v{w+2}, v{w+3}",
                f"v_cvt_pk_bf16_f32 v{w+5}, v{y}, v{y+1}",
                f"v_cvt_pk_bf16_f32 v{w+7}, v{y+2}, v{y+3}",
                f"v_lshlrev_b32 v{w}, 16, v{u}",
                f"v_and_b32 v{w+1}, 0xffff0000, v{u}",
                f"v_lshlrev_b32 v{w+2}, 16, v{u+1}",
                f"v_and_b32 v{w+3}, 0xffff0000, v{u+1}",
                f"v_lshlrev_b32 v{w+4}, 16, v{w+5}",
                f"v_and_b32 v{w+5}, 0xffff0000, v{w+5}",
                f"v_lshlrev_b32 v{w+6}, 16, v{w+7}",
                f"v_and_b32 v{w+7}, 0xffff0000, v{w+7}",
                f"v_pk_add_f32 {vr(w,2)}, {vr(w,2)}, {vr(w+4,2)}",
                f"v_pk_add_f32 {vr(w+2,2)}, {vr(w+2,2)}, {vr(w+6,2)}",
                f"v_cvt_pk_bf16_f32 v{u}, v{w}, v{w+1}",
                f"v_cvt_pk_bf16_f32 v{u+1}, v{w+2}, v{w+3}",
                f"buffer_store_dwordx2 {vr(u,2)}, v247, s[20:23], s34 offen offset:{512*t}" + WT["at"]]

    def spread(mm, fill):
        per = -(-len(fill) // len(mm)) if fill else 0
        for i, m in enumerate(mm):
            a(m)
            for op in fill[i * per:(i + 1) * per]:
                a(op)

    stamp(a)
    a(f"s_waitcnt vmcnt({4 + pf}) lgkmcnt(0)")
    a("ds_read_b32 v180, v249 offset:508")
    a("ds_read_u16 v181, v249 offset:512")
    a("ds_read_b64 v[182:183], v250 offset:248")
    a("ds_read_u16 v184, v250 offset:256")
    a("ds_read_u16 v185, v243 offset:514")
    a("ds_read_u16 v186, v243 offset:516")
    a("v_mov_b32 v4, 0")
    a("v_mov_b32 v5, 0")
    a("v_mov_b32 v6, 0")
    a("v_mov_b32 v7, 0")
    a("ds_write_b128 v238, v[4:7]")
    a("s_and_b32 s44, s28, 1")
    a("s_lshl_b32 s45, s36, 16")
    a("s_and_b32 s36, s36, 0xffff0000")
    a("s_cmp_eq_u32 s44, 0")
    a("s_cselect_b32 s36, s45, s36")
    a("s_mov_b32 s37, s36")
    a("s_waitcnt lgkmcnt(5)")
    a("v_lshl_or_b32 v188, v181, 16, v181")
    a("v_perm_b32 v189, v180, v180, s42")
    a("v_alignbit_b32 v190, v180, v180, 16")
    a("v_perm_b32 v191, v180, v180, s43")
    a("v_mov_b32 v192, v188")
    a("v_bfi_b32 v193, s41, v181, v180")
    a("v_mov_b32 v194, v189")
    a("v_mov_b32 v195, v191")
    a("ds_write_b128 v248, v[188:191] offset:64")
    a(f"ds_write_b128 v248, v[192:195] offset:{CV_O + 64}")
    a("v_lshlrev_b32 v5, 16, v181")
    a("v_mov_b32 v6, v188")
    a("v_mov_b32 v7, v188")
    a("v_mov_b32 v8, 0")
    a("v_mov_b32 v9, 0")
    a("v_mov_b32 v196, 0")
    a("v_mov_b32 v197, 0")
    a("v_mov_b32 v198, v188")
    a("v_mov_b32 v199, v188")
    a("s_mov_b64 s[54:55], exec")
    a("s_mov_b64 exec, 1")
    a("ds_write_b128 v248, v[4:7] offset:48")
    a(f"ds_write_b128 v248, v[196:199] offset:{CV_O + 48}")
    a("s_mov_b64 exec, s[54:55]")
    a("s_waitcnt lgkmcnt(7)")
    a("v_bfi_b32 v200, s41, v184, v183")
    a("v_perm_b32 v201, v183, v183, s43")
    a("v_bfi_b32 v202, s41, v183, v182")
    a("v_perm_b32 v203, v182, v182, s43")
    a("v_lshl_or_b32 v204, v184, 16, v184")
    a("v_alignbit_b32 v205, v183, v183, 16")
    a("v_mov_b32 v206, v201")
    a("v_alignbit_b32 v207, v182, v182, 16")
    a("s_mov_b32 exec_hi, 0")
    a(f"ds_write_b128 v248, v[200:203] offset:{68*16}")
    a(f"ds_write_b128 v248, v[204:207] offset:{CV_O + 68*16}")
    a("s_mov_b64 exec, s[54:55]")
    a("s_waitcnt lgkmcnt(7)")
    a("ds_write_b16 v251, v186")
    a("ds_write_b16 v245, v186")
    a("ds_write_b16 v251, v185 offset:384")
    a("ds_write_b16 v245, v185 offset:384")
    a(f"s_waitcnt vmcnt({pf}) lgkmcnt(0)")
    a("s_barrier")
    stamp(a)
    for op in loads(0):
        a(op)
    for rho in range(7):
        a("s_waitcnt lgkmcnt(0)")
        fill = loads(rho + 1)
        mm = mfmas(rho)
        if rho == 2:
            fill = window_pack() + fill + far_loads(0)
        elif rho == 3:
            mm = far_mfmas(0) + mm
            fill = fill + far_loads(1)
        elif rho == 4:
            mm = far_mfmas(1) + mm
        elif rho == 6:
            fill = fill + [f"ds_read_b64 {vr(UREG+2*t,2)}, v246 offset:{4096*t}" for t in range(8)]
        spread(mm, fill)
    a("s_waitcnt lgkmcnt(0)")
    seq = {t: [mfma(7, i, t - i) for i in range(min(t, 3) + 1)] for t in range(8)}
    for op in seq[0] + seq[1] + seq[2] + seq[3]:
        a(op)
    spread(seq[4] + seq[5], tile_epilogue(0) + tile_epilogue(1))
    spread(seq[6] + seq[7], tile_epilogue(2) + tile_epilogue(3))
    stamp(a)
    for op in interleave(tile_epilogue(4), tile_epilogue(5)) + interleave(tile_epilogue(6), tile_epilogue(7)):
        a(op)
    stamp_end(a, 1, 8)
    a("s_endpgm")


def gen_relayout(a):
    a(f"s_load_dwordx2 s[4:5], s[0:1], {KA_WD}")
    a(f"s_load_dwordx2 s[8:9], s[0:1], {KA_WS}")
    a("v_and_b32 v1, 63, v0")
    a("v_lshrrev_b32 v2, 6, v0")
    a(f"s_sub_u32 s28, s2, {N_G1 + N_CV}")
    a("s_mul_i32 s28, s28, 88")
    a("v_readfirstlane_b32 s30, v2")
    a("v_lshlrev_b32 v3, 4, v1")
    a("s_add_u32 s28, s28, s30")
    a("s_lshr_b32 s31, s28, 1")
    a("s_and_b32 s31, s31, 1")
    a("s_lshl_b32 s31, s31, 2")
    a("v_and_b32 v4, 7, v1")
    a("v_xor_b32 v4, s31, v4")
    a("v_lshrrev_b32 v5, 3, v1")
    a(f"s_mov_b32 s32, {WDT_TILE}")
    a("v_mul_lo_u32 v5, v5, s32")
    a("v_lshl_add_u32 v4, v4, 4, v5")
    a("s_lshl_b32 s33, s28, 10")
    a("s_lshl_b32 s34, s28, 7")
    a("s_waitcnt lgkmcnt(0)")
    srd(a, 12, 4, W_BYTES)
    srd(a, 16, 8, 8 * WDT_TILE, WS_WDT)
    for i in range(11):
        a(f"buffer_load_dwordx4 {vr(8+4*i,4)}, v3, s[12:15], s33 offen")
        a("s_add_u32 s33, s33, 8192")
    for i in range(11):
        a(f"s_waitcnt vmcnt(10)")
        a(f"buffer_store_dwordx4 {vr(8+4*i,4)}, v4, s[16:19], s34 offen offset:{(i%4)*1024}" + WT["wdt"])
        if i % 4 == 3:
            a("s_add_u32 s34, s34, 4096")
    a("s_endpgm")


def gen_k2(a):
    a.raw(".p2align 8")
    a.label("k2_kernel")
    a(f"s_cmp_ge_u32 s2, {N_G1 + N_CV + N_RL}")
    a("s_cbranch_scc1 k2_exit")
    a(f"s_cmp_ge_u32 s2, {N_G1 + N_CV}")
    a("s_cbranch_scc1 k2_relayout")
    a(f"s_cmp_ge_u32 s2, {N_G1}")
    a("s_cbranch_scc1 k2_conv")
    gen_gemm1(a)
    a.label("k2_conv")
    gen_conv(a)
    a.label("k2_relayout")
    gen_relayout(a)
    a.label("k2_exit")
    a("s_endpgm")


N_G2 = 256
G2_NS = 8
G2_STAGE = 16384
G2_AT = G2_NS * G2_STAGE
K3_LDS = G2_AT + 8192
G2_NST = FP // 64
G2_LEAD = 4


def gen_k3(a):
    a.raw(".p2align 8")
    a.label("k3_kernel")
    a(f"s_cmp_ge_u32 s2, {N_G2}")
    a("s_cbranch_scc1 k3_exit")
    stamp_begin(a)
    a(f"s_load_dwordx2 s[4:5], s[0:1], {KA_U}")
    a(f"s_load_dwordx4 s[8:11], s[0:1], {KA_WD}")
    a(f"s_load_dwordx2 s[6:7], s[0:1], {KA_WS}")
    a("v_and_b32 v1, 63, v0")
    a("v_lshrrev_b32 v2, 6, v0")
    a("s_and_b32 s32, s2, 7")
    a("s_lshr_b32 s33, s2, 3")
    a("v_readfirstlane_b32 s34, v2")
    a("s_lshl_b32 s32, s32, 8")
    a("s_and_b32 s35, s33, 3")
    a("s_lshl_b32 s35, s35, 6")
    a("s_add_u32 s32, s32, s35")
    a("s_lshr_b32 s33, s33, 2")
    a("s_lshl_b32 s33, s33, 6")
    a("s_cmp_lt_u32 s34, 4")
    a("s_cbranch_scc1 k3_compute")
    a("s_sub_u32 s34, s34, 4")
    a("v_lshrrev_b32 v3, 3, v1")
    a("v_and_b32 v4, 7, v1")
    a("v_lshrrev_b32 v5, 4, v1")
    a(f"v_mul_u32_u24 v7, {H_STRIDE}, v3")
    a("s_lshl_b32 s36, s34, 2")
    a("v_add_u32 v6, s36, v5")
    a("v_and_b32 v6, 7, v6")
    a("v_xor_b32 v6, v6, v4")
    a("v_lshl_add_u32 v8, v6, 4, v7")
    a("v_and_b32 v6, 1, v5")
    a("v_lshlrev_b32 v6, 2, v6")
    a("v_xor_b32 v6, v6, v4")
    a("v_lshlrev_b32 v6, 4, v6")
    a("v_lshlrev_b32 v10, 4, v1")
    a("v_lshl_add_u32 v12, v3, 12, v6")
    a("s_lshl_b32 s36, s34, 3")
    a("s_add_u32 s37, s36, s32")
    a(f"s_mul_i32 s37, s37, {H_STRIDE}")
    a(f"s_mul_i32 s38, s33, {WDT_TILE // 64}")
    a("s_lshl_b32 s39, s34, 10")
    a("s_add_u32 s38, s38, s39")
    a("s_add_u32 s39, s36, s33")
    a("s_lshl_b32 s39, s39, 12")
    a("s_lshl_b32 s40, s32, 1")
    a("s_add_u32 s39, s39, s40")
    a("s_lshl_b32 s40, s34, 10")
    a("s_waitcnt lgkmcnt(0)")
    srd(a, 16, 6, 8 * WDT_TILE, WS_WDT)
    srd(a, 12, 6, H_BYTES, WS_H)
    srd(a, 20, 6, L * D * 2, WS_AT)

    def dma(stage):
        b = (stage % G2_NS) * G2_STAGE
        a(f"s_add_u32 m0, s40, {b+8192}")
        a("s_nop 0")
        a("buffer_load_dwordx4 v10, s[16:19], s38 offen lds")
        a(f"s_add_u32 m0, s40, {b}")
        a("s_add_u32 s38, s38, 8192")
        a("buffer_load_dwordx4 v8, s[12:15], s37 offen lds")
        a("s_add_u32 s37, s37, 128")

    AT_AFTER = 3
    issued = 0
    for st in range(G2_NST):
        want = min(G2_NST - 1, 2 * st + 2, st + G2_LEAD)
        while issued <= want:
            dma(issued)
            if issued == AT_AFTER:
                a(f"s_add_u32 m0, s40, {G2_AT}")
                a("s_nop 0")
                a("buffer_load_dwordx4 v12, s[20:23], s39 offen lds")
            issued += 1
        vm = 2 * (issued - 1 - st) + (1 if st <= AT_AFTER < issued else 0)
        if st in (0, 8, 16):
            stamp(a)
        a(f"s_waitcnt vmcnt({vm})")
        a("s_barrier")
    stamp_end(a, 2, 6)
    a("s_endpgm")
    a.label("k3_compute")
    _stamp_n[0] = 1 if PROF else 0
    a("s_and_b32 s41, s34, 1")
    a("s_lshr_b32 s42, s34, 1")
    a("v_and_b32 v3, 31, v1")
    a("v_lshrrev_b32 v4, 5, v1")
    a("s_lshl_b32 s43, s41, 5")
    a("s_add_u32 s43, s43, s32")
    a("v_add_u32 v14, s43, v3")
    a("v_lshlrev_b32 v14, 10, v14")
    a("v_lshl_add_u32 v14, v4, 5, v14")
    a("s_lshl_b32 s44, s42, 5")
    a("s_add_u32 s44, s44, s33")
    a("s_lshl_b32 s44, s44, 1")
    a("v_lshrrev_b32 v5, 1, v3")
    a("v_and_b32 v5, 7, v5")
    a("v_xor_b32 v5, v5, v4")
    a("v_lshlrev_b32 v6, 7, v3")
    a("s_lshl_b32 s45, s41, 12")
    a("v_add_u32 v6, s45, v6")
    for ks in range(4):
        a(f"v_xor_b32 v7, {2*ks}, v5")
        a(f"v_lshl_add_u32 v{16+ks}, v7, 4, v6")
    a("v_and_b32 v5, 15, v1")
    a("v_lshrrev_b32 v6, 2, v5")
    a("v_and_b32 v5, 3, v5")
    a("v_lshrrev_b32 v7, 4, v1")
    a("v_and_b32 v7, 1, v7")
    a("v_lshlrev_b32 v21, 3, v5")
    a("v_lshl_add_u32 v21, v7, 5, v21")
    a("v_lshrrev_b32 v22, 1, v6")
    a("v_xor_b32 v23, s41, v22")
    a("v_lshl_add_u32 v21, v23, 6, v21")
    a("v_lshl_add_u32 v23, v4, 4, v6")
    a("v_lshl_add_u32 v21, v23, 7, v21")
    a("s_lshl_b32 s45, s42, 12")
    a(f"s_add_u32 s45, s45, {G2_AT}")
    a("v_add_u32 v21, s45, v21")
    a("v_and_b32 v15, 1, v5")
    a("v_lshlrev_b32 v15, 5, v15")
    a("v_lshl_add_u32 v15, v7, 4, v15")
    a("v_lshrrev_b32 v5, 1, v5")
    a("v_lshl_add_u32 v15, v5, 3, v15")
    a("v_xor_b32 v22, s42, v22")
    a("v_lshl_add_u32 v15, v22, 6, v15")
    a("v_lshl_add_u32 v6, v4, 3, v6")
    a("v_lshl_add_u32 v15, v6, 7, v15")
    a("v_add_u32 v20, 8192, v15")
    a("s_waitcnt lgkmcnt(0)")
    srd(a, 24, 4, L * D * 2)
    srd(a, 28, 10, L * D * 2)
    a("buffer_load_dwordx4 v[24:27], v14, s[24:27], s44 offen")
    a("buffer_load_dwordx4 v[28:31], v14, s[24:27], s44 offen offset:16")

    ACC = 32
    FS = [48, 80]
    XA = 112
    ATR = 128
    AT_ST = 10

    def reads(st):
        f = FS[st & 1]
        o = (st % 4) * G2_STAGE
        out = []
        for ks in range(4):
            out.append(f"ds_read_b64_tr_b16 {vr(f+8*ks,2)}, v20 offset:{o+ks*2048}")
            out.append(f"ds_read_b64_tr_b16 {vr(f+8*ks+2,2)}, v20 offset:{o+ks*2048+512}")
            out.append(f"ds_read_b128 {vr(f+8*ks+4,4)}, v{16+ks} offset:{o}")
        return out

    def mfmas(st):
        f = FS[st & 1]
        c = vr(ACC, 16)
        return [f"v_mfma_f32_32x32x16_bf16 {c}, {vr(f+8*ks,4)}, {vr(f+8*ks+4,4)}, "
                f"{'0' if st == 0 and ks == 0 else c}" for ks in range(4)]

    def xa_ops(k):
        x, t = XA + 2 * k, 4
        return [f"v_lshlrev_b32 v{x}, 16, v{24+k}",
                f"v_and_b32 v{x+1}, 0xffff0000, v{24+k}",
                f"v_lshlrev_b32 v{t}, 16, v{ATR+k}",
                f"v_and_b32 v{t+1}, 0xffff0000, v{ATR+k}",
                f"v_pk_add_f32 {vr(x,2)}, {vr(x,2)}, {vr(t,2)}",
                f"v_cvt_pk_bf16_f32 v{x+1}, v{x}, v{x+1}",
                f"v_lshlrev_b32 v{x}, 16, v{x+1}",
                f"v_and_b32 v{x+1}, 0xffff0000, v{x+1}"]

    for st in range(-1, G2_NST):
        nx = st + 1
        body = []
        if nx < G2_NST:
            if nx in (0, 8, 16):
                stamp(a)
            a("s_waitcnt lgkmcnt(0)" if nx != AT_ST + 1 else "s_waitcnt vmcnt(0) lgkmcnt(0)")
            a("s_barrier")
            if nx and nx % 4 == 0:
                delta = 65536 if (nx % G2_NS) == 4 else -65536
                for r in (16, 17, 18, 19, 20):
                    a(f"v_add_u32 v{r}, {delta & 0xffffffff:#x}, v{r}")
            body = reads(nx)
            if nx == AT_ST:
                body += [f"ds_read_b64_tr_b16 {vr(ATR+2*i,2)}, v21 offset:{512*i}" for i in range(4)]
        else:
            a("s_waitcnt lgkmcnt(0)")
        if st >= 0:
            body = interleave(body, mfmas(st), every=3) if body else mfmas(st)
        if AT_ST < nx <= AT_ST + 4:
            k = 2 * (nx - AT_ST - 1)
            body += xa_ops(k) + xa_ops(k + 1)
        for op in body:
            a(op)
    a("s_nop 15")
    stamp(a)
    for k in range(8):
        a(f"v_cvt_pk_bf16_f32 v{48+k}, v{ACC+2*k}, v{ACC+2*k+1}")
    for k in range(8):
        a(f"v_lshlrev_b32 v{ACC+2*k}, 16, v{48+k}")
        a(f"v_and_b32 v{ACC+2*k+1}, 0xffff0000, v{48+k}")
    for k in range(8):
        a(f"v_pk_add_f32 {vr(ACC+2*k,2)}, {vr(ACC+2*k,2)}, {vr(XA+2*k,2)}")
    for k in range(8):
        a(f"v_cvt_pk_bf16_f32 v{56+k}, v{ACC+2*k}, v{ACC+2*k+1}")
        if k == 3:
            a("buffer_store_dwordx4 v[56:59], v14, s[28:31], s44 offen" + WT["out"])
    a("buffer_store_dwordx4 v[60:63], v14, s[28:31], s44 offen offset:16" + WT["out"])
    stamp_end(a, 2, 6)
    a.label("k3_exit")
    a("s_endpgm")


def gen_k4(a):
    a.raw(".p2align 8")
    a.label("k4_kernel")
    a("s_cmp_ge_u32 s2, 1")
    a("s_cbranch_scc1 k4_exit")
    a(f"s_load_dwordx4 s[4:7], s[0:1], {KA_DBG}")
    a("s_memrealtime s[20:21]")
    a("s_waitcnt lgkmcnt(0)")
    srd(a, 8, 6, 0x1000000, PROF_BASE)
    srd(a, 12, 4, 256)
    groups = [(0, 0, 256, 0, 4), (0, 0, 256, 4, 8), (1, 0, 176, 0, 4), (1, 176, 240, 0, 8), (2, 0, 256, 0, 4)]
    for gi, (l, lo, hi, w0, w1) in enumerate(groups):
        a("v_mov_b32 v4, -1")
        a("v_mov_b32 v5, 0")
        for base in range(lo, hi, 64):
            n = min(64, hi - base)
            a(f"v_min_u32 v2, {n-1}, v0")
            a(f"v_add_u32 v2, {l*512 + base}, v2")
            a("v_lshlrev_b32 v2, 10, v2")
            for w in range(w0, w1):
                a(f"buffer_load_dwordx2 {vr(8+2*(w-w0),2)}, v2, s[8:11], 0 offen offset:{64*w}")
            a("s_waitcnt vmcnt(0)")
            for w in range(w0, w1):
                a(f"v_min_u32 v4, v4, v{8+2*(w-w0)}")
                a(f"v_max_u32 v5, v5, v{9+2*(w-w0)}")
        a("s_mov_b32 s22, -1")
        a("s_mov_b32 s23, 0")
        for ln in range(64):
            a(f"v_readlane_b32 s24, v4, {ln}")
            a(f"v_readlane_b32 s25, v5, {ln}")
            a("s_nop 1")
            a("s_min_u32 s22, s22, s24")
            a("s_max_u32 s23, s23, s25")
        a(f"s_mov_b32 s{30+2*gi}, s22")
        a(f"s_mov_b32 s{31+2*gi}, s23")
    a("v_mov_b32 v3, 0")
    for i in range(10):
        a(f"s_sub_u32 s24, s{30+i}, s30")
        a("v_mov_b32 v6, s24")
        a(f"buffer_store_dword v6, v3, s[12:15], 0 offen offset:{4*i}")
        a("s_nop 1")
    a("s_sub_u32 s24, s20, s30")
    a("v_mov_b32 v6, s24")
    a("buffer_store_dword v6, v3, s[12:15], 0 offen offset:40")
    if SPIN:
        hi, lo = SPIN
        a("s_max_u32 s31, s31, s33")
        a("s_min_u32 s34, s34, s36")
        a("s_max_u32 s35, s35, s37")
        a(f"s_sub_u32 s24, s{hi}, s{lo}")
        a("s_min_u32 s24, s24, 3000")
        a("s_lshl_b32 s24, s24, 2")
        a("s_memrealtime s[26:27]")
        a("s_waitcnt lgkmcnt(0)")
        a("s_add_u32 s24, s24, s26")
        a.label("k4_spin")
        a("s_memrealtime s[26:27]")
        a("s_waitcnt lgkmcnt(0)")
        a("s_sub_u32 s25, s24, s26")
        a("s_cmp_gt_i32 s25, 0")
        a("s_cbranch_scc1 k4_spin")
    a.label("k4_exit")
    a("s_endpgm")


def descriptor(name, vgpr, sgpr):
    acc = (vgpr + 3) // 4 * 4
    return f""".p2align 6
.amdhsa_kernel {name}
  .amdhsa_next_free_vgpr {vgpr}
  .amdhsa_next_free_sgpr {sgpr}
  .amdhsa_accum_offset {acc}
  .amdhsa_group_segment_fixed_size 0
  .amdhsa_kernarg_size 112
  .amdhsa_user_sgpr_count 2
  .amdhsa_user_sgpr_kernarg_segment_ptr 1
  .amdhsa_system_sgpr_workgroup_id_x 1
.end_amdhsa_kernel
"""


def main(path):
    a = Asm()
    a.raw(f"; @launch kernel=k1_kernel grid=({N_K1},1,1) block=(512,1,1) lds={K1_LDS}")
    a.raw(f"; @launch kernel=k2_kernel grid=({N_G1+N_CV+N_RL},1,1) block=(512,1,1) lds={K2_LDS}")
    a.raw(f"; @launch kernel=k3_kernel grid=({N_G2},1,1) block=(768,1,1) lds={K3_LDS}")
    if K4:
        a.raw("; @launch kernel=k4_kernel grid=(1,1,1) block=(64,1,1) lds=0")
    a.raw('.amdgcn_target "amdgcn-amd-amdhsa--gfx950"')
    a.raw(".text")
    for k in ("k1_kernel", "k2_kernel", "k3_kernel") + (("k4_kernel",) if K4 else ()):
        a.raw(f".globl {k}")
        a.raw(f".type {k},@function")
    gen_k1(a)
    gen_k2(a)
    gen_k3(a)
    a.label("code_end")
    if K4:
        gen_k4(a)
    a.raw('.section .rodata,"a"')
    if K4:
        a.raw(descriptor("k4_kernel", 32, 48))
    sg = 102 if PROF else 0
    a.raw(descriptor("k1_kernel", 164, max(sg, 74)))
    a.raw(descriptor("k2_kernel", 256, max(sg, 56)))
    a.raw(descriptor("k3_kernel", 136, max(sg, 56)))
    open(path, "w").write(a.text())


if __name__ == "__main__":
    for arg in list(sys.argv):
        if arg.startswith("--pfrows="):
            PF_ROWS = int(arg[9:])
            sys.argv.remove(arg)
        if arg.startswith("--spin="):
            SPIN = tuple(int(x) for x in arg[7:].split(","))
            sys.argv.remove(arg)
        if arg.startswith("--wt="):
            flag, names = arg[5:].split(":")
            for nm in names.split(","):
                WT[nm] = " " + flag.replace("+", " ")
            sys.argv.remove(arg)
        if arg.startswith("--epi="):
            EPI = arg[6:]
            sys.argv.remove(arg)
    if "--nocodepf" in sys.argv:
        sys.argv.remove("--nocodepf")
        CODE_PF = False
    if "--notouch" in sys.argv:
        sys.argv.remove("--notouch")
        TOUCH = False
    if "--k4" in sys.argv:
        sys.argv.remove("--k4")
        K4 = PROF = True
    if "--prof" in sys.argv:
        sys.argv.remove("--prof")
        PROF = True
    main(sys.argv[1] if len(sys.argv) > 1 else f"cdna_kernels/{NAME}.s")
```

```python
import struct
import sys

NAME = "parallel_sum__ssm_conv_s4d__glu_gated_reglu__prompt"

L, D, N, F = 2048, 512, 128, 1376
FP = 1408
WS_XN = 0x000000
WS_XNT = 0x240000
WS_KR = 0x480000
WS_H = 0x880000
WS_AT = 0xE80000
XN_STRIDE = 1024 + 128
XN_BYTES = L * XN_STRIDE
H_STRIDE = 2 * FP + 128
H_BYTES = L * H_STRIDE
XNT_STRIDE = 8192 + 128
XNT_BYTES = (L // 8) * XNT_STRIDE
W_BYTES = D * F * 2
WS_WDT = WS_AT + L * D * 2
WDT_TILE = FP * 128
WS_END = WS_WDT + 8 * WDT_TILE
TOUCH = False
CODE_PF = True
PRIO = 0
G2_MAP = 0
G1_MAP = True
EPI = "dot"
WT = dict(xn="", xnt="", k="", at="", wdt="", h="", out="")

KA_U, KA_LAR, KA_AI, KA_CR, KA_CI, KA_LDT, KA_DSK, KA_BX, KA_WG, KA_WU, KA_WD, KA_OUT, KA_DBG, KA_WS = \
    [8 * i for i in range(14)]


def f32(x):
    return "0x%08x" % struct.unpack("<I", struct.pack("<f", x))[0]


class Asm:
    def __init__(self):
        self.lines = []

    def __call__(self, s):
        for ln in s.strip("\n").split("\n"):
            self.lines.append("  " + ln.strip())

    def label(self, s):
        self.lines.append(s + ":")

    def raw(self, s):
        self.lines.append(s)

    def text(self):
        return "\n".join(self.lines) + "\n"


PROF = False
K4 = False
SPIN = None
PROF_BASE = 0x1400000
_stamp_n = [0]


def stamp_begin(a):
    _stamp_n[0] = 0
    if PROF:
        a("s_memrealtime s[80:81]")
        a("s_memtime s[82:83]")
        _stamp_n[0] = 1


def stamp(a):
    if PROF:
        k = _stamp_n[0]
        a(f"s_memtime s[{82+2*k}:{83+2*k}]")
        _stamp_n[0] += 1


def stamp_end(a, launch, ws_lo):
    if not PROF:
        return
    stamp(a)
    n = _stamp_n[0]
    a("s_waitcnt lgkmcnt(0)")
    a("s_memrealtime s[98:99]")
    a(f"s_add_u32 s76, s{ws_lo}, {PROF_BASE}")
    a(f"s_addc_u32 s77, s{ws_lo+1}, 0")
    a("s_mov_b32 s78, 0x1000000")
    a("s_mov_b32 s79, 0x00020000")
    a("v_lshrrev_b32 v2, 6, v0")
    a(f"s_add_u32 s75, s2, {launch*512}")
    a("s_lshl_b32 s75, s75, 10")
    a("v_lshlrev_b32 v2, 6, v2")
    a("v_add_u32 v2, s75, v2")
    a("s_waitcnt lgkmcnt(0)")
    a("v_mov_b32 v4, s80")
    a("v_mov_b32 v5, s98")
    a("buffer_store_dwordx2 v[4:5], v2, s[76:79], 0 offen")
    for k in range(n):
        a(f"v_mov_b32 v6, s{82+2*k}")
        a(f"buffer_store_dword v6, v2, s[76:79], 0 offen offset:{8+4*k}")
        a("s_nop 1")


def vr(b, n):
    return "v[%d:%d]" % (b, b + n - 1)


def sr(b, n):
    return "s[%d:%d]" % (b, b + n - 1)


def srd(a, dst, base, nbytes, add=0):
    if add:
        a(f"s_add_u32 s{dst}, s{base}, {add}")
        a(f"s_addc_u32 s{dst+1}, s{base+1}, 0")
    else:
        a(f"s_mov_b32 s{dst}, s{base}")
        a(f"s_mov_b32 s{dst+1}, s{base+1}")
    a(f"s_mov_b32 s{dst+2}, {nbytes}")
    a(f"s_mov_b32 s{dst+3}, 0x00020000")


_pc_n = [0]


def code_prefetch(a, lo, hi, slice_sgpr, lane16, dst, sbase):
    _pc_n[0] += 1
    lab = f"pc_ref{_pc_n[0]}"
    a(f"s_getpc_b64 {sr(sbase,2)}")
    a.label(lab)
    a(f"s_add_u32 s{sbase}, s{sbase}, ({lo} - {lab}) & 0xffffffff")
    a(f"s_addc_u32 s{sbase+1}, s{sbase+1}, (({lo} - {lab}) >> 32) & 0xffffffff")
    a(f"s_mov_b32 s{sbase+2}, {hi} - {lo}")
    a(f"s_mov_b32 s{sbase+3}, 0x00020000")
    a(f"s_lshl_b32 s{slice_sgpr}, s{slice_sgpr}, 10")
    a(f"buffer_load_dwordx4 {vr(dst,4)}, v{lane16}, {sr(sbase,4)}, s{slice_sgpr} offen")


def interleave(main, fill, every=1, start=0):
    out = []
    fill = list(fill)
    for i, m in enumerate(main):
        out.append(m)
        if i >= start and (i - start) % every == every - 1 and fill:
            out.append(fill.pop(0))
    out.extend(fill)
    return out


N_K1 = 256
LN_STRIDE = 1088
KG_ROW = 544
KG_XA, KG_YB, KG_T = 0, 24 * KG_ROW, 56 * KG_ROW
KG_CH = KG_T + 3072
LN_LDS = 2 * KG_CH
K1_LDS = LN_LDS + 8 * LN_STRIDE
LOG2E = 1.4426950408889634
L_HI = 47274.0 / 32768.0
C_LO = (LOG2E - L_HI) * 0.6931471805599453
T_BIAS = 0x3F7F
KT_BYTES = 3072
KT_O, KT_TAB = 1024, 2048
PF_W = 6


def dpp_reduce(a, regs):
    steps = ["row_shr:1 row_mask:0xf bank_mask:0xf bound_ctrl:0",
             "row_shr:2 row_mask:0xf bank_mask:0xf bound_ctrl:0",
             "row_shr:4 row_mask:0xf bank_mask:0xf bound_ctrl:0",
             "row_shr:8 row_mask:0xf bank_mask:0xf bound_ctrl:0",
             "row_bcast:15 row_mask:0xa bank_mask:0xf",
             "row_bcast:31 row_mask:0xc bank_mask:0xf"]
    a("s_nop 1")
    for st in steps:
        for r in regs:
            a(f"v_add_f32_dpp v{r}, v{r}, v{r} {st}")
    a("s_nop 1")


def bf16_round(a, dst, src):
    a(f"v_cvt_pk_bf16_f32 v{dst}, v{src}, v{src}")
    a(f"v_lshlrev_b32 v{dst}, 16, v{dst}")


def gen_ln(a):
    stamp_begin(a)
    if CODE_PF:
        a("v_lshlrev_b32 v3, 4, v1")
        a("s_lshr_b32 s45, s2, 3")
        a("s_lshl_b32 s45, s45, 1")
        a("s_sub_u32 s46, s44, 6")
        a("s_add_u32 s45, s45, s46")
        a("s_cmp_lt_u32 s44, 6")
        a("s_cbranch_scc1 k1_no_pf")
        code_prefetch(a, "k1_kernel", "code_end", 45, 3, 76, 56)
        a("s_branch k1_pf_done")
        a.label("k1_no_pf")
        a("s_nop 0")
        a.label("k1_pf_done")
    a(f"s_load_dwordx2 s[4:5], s[0:1], {KA_U}")
    a(f"s_load_dwordx2 s[6:7], s[0:1], {KA_WS}")
    a(f"s_load_dwordx4 s[48:51], s[0:1], {KA_WG}")
    a(f"s_load_dwordx4 s[68:71], s[0:1], {KA_WD}")
    a(f"s_load_dwordx2 s[54:55], s[0:1], {KA_DSK}")
    a("s_sub_u32 s22, s44, 4")
    a("s_and_b32 s20, s2, 7")
    a("s_lshr_b32 s21, s2, 3")
    a("s_lshl_b32 s20, s20, 8")
    a("s_lshl_b32 s23, s21, 3")
    a("s_add_u32 s20, s20, s23")
    a("s_lshl_b32 s23, s22, 1")
    a("s_add_u32 s23, s23, s20")
    a("s_lshl_b32 s24, s23, 10")
    a(f"s_mul_i32 s53, s23, {XN_STRIDE}")
    a("v_lshlrev_b32 v3, 4, v1")
    a("s_lshl_b32 s52, s2, 2")
    a("s_add_u32 s52, s52, s22")
    a("s_lshl_b32 s52, s52, 11")
    a(f"s_mul_i32 s25, s22, {2*LN_STRIDE}")
    a(f"s_add_u32 s25, s25, {LN_LDS}")
    a("v_add_u32 v4, s25, v3")
    a("v_and_b32 v5, 15, v1")
    a("v_lshrrev_b32 v6, 2, v5")
    a("v_and_b32 v5, 3, v5")
    a("v_lshrrev_b32 v7, 4, v1")
    a(f"v_mul_u32_u24 v6, {LN_STRIDE}, v6")
    a("v_lshlrev_b32 v5, 3, v5")
    a("v_lshl_add_u32 v5, v7, 5, v5")
    a("v_add_u32 v5, v5, v6")
    a("s_lshl_b32 s26, s22, 8")
    a(f"s_add_u32 s26, s26, {LN_LDS}")
    a("v_add_u32 v5, s26, v5")
    a("s_lshl_b32 s27, s22, 7")
    a("v_add_u32 v6, s27, v1")
    a("v_lshlrev_b32 v6, 4, v6")
    a(f"s_mul_i32 s28, s20, {XNT_STRIDE // 8}")
    a("s_waitcnt lgkmcnt(0)")
    srd(a, 8, 4, L * D * 2)
    for r in range(2):
        a(f"buffer_load_dwordx4 {vr(8+4*r,4)}, v3, s[8:11], s24 offen offset:{r*1024}")
    srd(a, 56, 48, W_BYTES)
    srd(a, 60, 50, W_BYTES)
    srd(a, 64, 68, W_BYTES)
    if TOUCH:
        a("s_cmp_ge_u32 s2, 16")
        a("s_cbranch_scc1 k1_no_touch")
        srd(a, 12, 6, WS_END)
        srd(a, 16, 70, L * D * 2)
        a("v_lshlrev_b32 v60, 18, v1")
        a("s_lshl_b32 s45, s22, 16")
        a("buffer_load_dword v61, v60, s[12:15], s45 offen")
        a("v_lshlrev_b32 v60, 15, v1")
        a(f"s_mov_b32 s45, {1 << 24}")
        a("buffer_load_dword v61, v60, s[12:15], s45 offen")
        a("buffer_load_dword v61, v60, s[16:19], 0 offen")
        srd(a, 16, 54, D * 2)
        a("buffer_load_dword v61, v3, s[16:19], 0 offen")
        for i in range(2):
            a(f"buffer_load_dwordx4 v[72:75], v3, s[56:59], s52 offen offset:{i*1024}")
        a("s_branch k1_touched")
        a.label("k1_no_touch")
    for i in range(2):
        for b in (56, 60, 64):
            a(f"buffer_load_dwordx4 v[72:75], v3, {sr(b,4)}, s52 offen offset:{i*1024}")
    if TOUCH:
        a.label("k1_touched")
    srd(a, 12, 6, XN_BYTES, WS_XN)
    srd(a, 16, 6, XNT_BYTES, WS_XNT)
    X = lambda r, e: 32 + 8 * r + e
    stamp(a)
    for r in range(2):
        a(f"s_waitcnt vmcnt({PF_W + 1 - r})")
        if r == 0:
            stamp(a)
        for k in range(4):
            a(f"v_lshlrev_b32 v{X(r,2*k)}, 16, v{8+4*r+k}")
            a(f"v_and_b32 v{X(r,2*k+1)}, 0xffff0000, v{8+4*r+k}")
        a(f"v_readfirstlane_b32 s{30+2*r}, v{X(r,0)}")
        a(f"v_pk_add_f32 v[48:49], {vr(X(r,0),2)}, {vr(X(r,2),2)}")
        a(f"v_pk_add_f32 v[50:51], {vr(X(r,4),2)}, {vr(X(r,6),2)}")
        a(f"s_mov_b32 s{31+2*r}, s{30+2*r}")
        a("v_pk_add_f32 v[48:49], v[48:49], v[50:51]")
        for k in range(4):
            a(f"v_pk_add_f32 {vr(52+2*k,2)}, {vr(X(r,2*k),2)}, {sr(30+2*r,2)} neg_lo:[0,1] neg_hi:[0,1]")
        a(f"v_add_f32 v{24+2*r}, v48, v49")
        a("v_pk_mul_f32 v[50:51], v[52:53], v[52:53]")
        a("v_pk_mul_f32 v[48:49], v[54:55], v[54:55]")
        a("v_pk_fma_f32 v[50:51], v[56:57], v[56:57], v[50:51]")
        a("v_pk_fma_f32 v[48:49], v[58:59], v[58:59], v[48:49]")
        a("v_pk_add_f32 v[48:49], v[48:49], v[50:51]")
        a(f"v_add_f32 v{25+2*r}, v48, v49")
    dpp_reduce(a, [24, 25, 26, 27])
    for r in range(2):
        a(f"v_mul_f32 v{24+2*r}, {f32(1.0/512)}, v{24+2*r}")
        a(f"v_mul_f32 v{25+2*r}, {f32(1.0/512)}, v{25+2*r}")
    for r in range(2):
        a(f"v_subrev_f32 v{28+r}, s{30+2*r}, v{24+2*r}")
        bf16_round(a, 24 + 2 * r, 24 + 2 * r)
    for r in range(2):
        a(f"v_fma_f32 v{25+2*r}, -v{28+r}, v{28+r}, v{25+2*r}")
        a(f"v_max_f32 v{25+2*r}, 0, v{25+2*r}")
    for r in range(2):
        bf16_round(a, 25 + 2 * r, 25 + 2 * r)
    for r in range(2):
        a(f"v_add_f32 v{25+2*r}, {f32(1e-5)}, v{25+2*r}")
        a(f"v_readlane_b32 s{36+2*r}, v{24+2*r}, 63")
    for r in range(2):
        bf16_round(a, 25 + 2 * r, 25 + 2 * r)
    for r in range(2):
        a(f"v_sqrt_f32 v{25+2*r}, v{25+2*r}")
    for r in range(2):
        a(f"s_mov_b32 s{37+2*r}, s{36+2*r}")
    for r in range(2):
        bf16_round(a, 25 + 2 * r, 25 + 2 * r)
    for r in range(2):
        a(f"v_rcp_f32 v{25+2*r}, v{25+2*r}")
    for r in range(2):
        for k in range(4):
            a(f"v_pk_add_f32 {vr(X(r,2*k),2)}, {vr(X(r,2*k),2)}, {sr(36+2*r,2)} neg_lo:[0,1] neg_hi:[0,1]")
    for r in range(2):
        a(f"v_readlane_b32 s{40+2*r}, v{25+2*r}, 63")
    for r in range(2):
        for k in range(4):
            a(f"v_cvt_pk_bf16_f32 v{8+4*r+k}, v{X(r,2*k)}, v{X(r,2*k+1)}")
    for r in range(2):
        a(f"s_mov_b32 s{41+2*r}, s{40+2*r}")
    for r in range(2):
        for k in range(4):
            a(f"v_lshlrev_b32 v{X(r,2*k)}, 16, v{8+4*r+k}")
            a(f"v_and_b32 v{X(r,2*k+1)}, 0xffff0000, v{8+4*r+k}")
        for k in range(4):
            a(f"v_pk_mul_f32 {vr(X(r,2*k),2)}, {vr(X(r,2*k),2)}, {sr(40+2*r,2)}")
        for k in range(4):
            a(f"v_cvt_pk_bf16_f32 v{16+4*r+k}, v{X(r,2*k)}, v{X(r,2*k+1)}")
        a(f"ds_write_b128 v4, {vr(16+4*r,4)} offset:{r*LN_STRIDE}")
        a(f"buffer_store_dwordx4 {vr(16+4*r,4)}, v3, s[12:15], s53 offen offset:{r*XN_STRIDE}" + WT["xn"])
    a("s_waitcnt lgkmcnt(0)")
    stamp(a)
    a("s_barrier")
    for blk in range(2):
        for tb in range(2):
            a(f"ds_read_b64_tr_b16 {vr(32+4*blk+2*tb,2)}, v5 offset:{blk*128 + tb*4*LN_STRIDE}")
    a("s_waitcnt lgkmcnt(2)")
    a("buffer_store_dwordx4 v[32:35], v6, s[16:19], s28 offen" + WT["xnt"])
    a("s_waitcnt lgkmcnt(0)")
    a("buffer_store_dwordx4 v[36:39], v6, s[16:19], s28 offen offset:1024" + WT["xnt"])
    stamp_end(a, 0, 6)
    a("s_endpgm")


def exp_acc(a, dst, x, t):
    a(f"v_mul_f32 v{dst}, {f32(L_HI)}, v{x}")
    a(f"v_exp_f32 v{dst}, v{dst}")
    a(f"v_mul_f32 v{t}, {f32(C_LO)}, v{x}")
    a(f"v_fma_f32 v{dst}, v{dst}, v{t}, v{dst}")


def cmul(t, z, w):
    return [f"v_pk_mul_f32 {vr(t,2)}, {vr(z,2)}, {vr(w,2)} op_sel:[0,0] op_sel_hi:[1,0]",
            f"v_pk_fma_f32 {vr(t,2)}, {vr(z,2)}, {vr(w,2)}, {vr(t,2)} op_sel:[1,1,0] op_sel_hi:[0,1,1] "
            f"neg_lo:[1,0,0]"]


def gen_kgen(a):
    stamp_begin(a)
    a(f"s_load_dwordx8 s[4:11], s[0:1], {KA_LAR}")
    a(f"s_load_dwordx2 s[12:13], s[0:1], {KA_LDT}")
    a(f"s_load_dwordx2 s[14:15], s[0:1], {KA_WS}")
    a("s_and_b32 s41, s2, 7")
    a("s_lshr_b32 s42, s2, 3")
    a("s_lshr_b32 s43, s42, 2")
    a("s_lshl_b32 s43, s43, 6")
    a("s_lshl_b32 s41, s41, 3")
    a("s_add_u32 s41, s41, s43")
    a("s_and_b32 s42, s42, 3")
    a("s_lshl_b32 s42, s42, 1")
    a("s_add_u32 s41, s41, s42")
    a("s_lshr_b32 s45, s44, 1")
    a("s_and_b32 s46, s44, 1")
    a("s_add_u32 s47, s41, s45")
    a("s_lshl_b32 s48, s46, 6")
    a("v_add_u32 v3, s48, v1")
    a("s_lshl_b32 s49, s47, 8")
    a("v_lshlrev_b32 v4, 1, v3")
    a("s_lshl_b32 s50, s47, 1")
    a("v_mov_b32 v5, s50")
    a("s_waitcnt lgkmcnt(0)")
    srd(a, 16, 4, D * N * 2)
    srd(a, 32, 12, D * 2)
    a("buffer_load_ushort v8, v4, s[16:19], s49 offen")
    a("buffer_load_ushort v12, v5, s[32:35], 0 offen")
    srd(a, 20, 6, D * N * 2)
    a("buffer_load_ushort v9, v4, s[20:23], s49 offen")
    srd(a, 24, 8, D * N * 2)
    a("buffer_load_ushort v10, v4, s[24:27], s49 offen")
    srd(a, 28, 10, D * N * 2)
    a("buffer_load_ushort v11, v4, s[28:31], s49 offen")
    srd(a, 36, 14, D * KT_BYTES, WS_KR)
    a(f"s_mul_i32 s51, s45, {KG_CH}")
    a("v_lshlrev_b32 v6, 2, v3")
    a("v_add_u32 v6, s51, v6")
    a("v_and_b32 v7, 15, v1")
    a("v_lshrrev_b32 v2, 4, v1")
    a(f"v_mul_u32_u24 v13, {KG_ROW}, v7")
    a("v_lshl_add_u32 v13, v2, 4, v13")
    a("v_add_u32 v100, s51, v13")
    a(f"s_mul_i32 s52, s46, {16*KG_ROW}")
    a("v_add_u32 v101, s52, v100")
    quads = [(0, 1), (4, 1), (256, 2), (512, 256)], [(1536, 256), (516, 256), (4097, 0), (4097, 0)]
    a("s_cmp_eq_u32 s46, 0")
    for q in range(4):
        a(f"s_mov_b32 s64, {f32(float(quads[0][q][0]))}")
        a(f"s_mov_b32 s65, {f32(float(quads[0][q][1]))}")
        a(f"s_cselect_b32 s{56+q}, s64, {f32(float(quads[1][q][0]))}")
        a(f"s_cselect_b32 s{60+q}, s65, {f32(float(quads[1][q][1]))}")
    a("v_mov_b32 v14, s56")
    a("v_mov_b32 v15, s60")
    for q in range(1, 4):
        a(f"v_cmp_eq_u32 vcc, {q}, v2")
        a(f"v_mov_b32 v16, s{56+q}")
        a(f"v_mov_b32 v17, s{60+q}")
        a("v_cndmask_b32 v14, v14, v16, vcc")
        a("v_cndmask_b32 v15, v15, v17, vcc")
    a("v_cvt_f32_u32 v16, v7")
    a("v_fmac_f32 v14, 0x41000000, v16")
    a(f"s_add_u32 s53, s51, {KG_T + KT_TAB - 2*0x4380}")
    a(f"s_add_u32 s54, s51, {KG_T + 3000}")
    a(f"s_add_u32 s57, s51, {KG_T + 510}")
    a(f"s_add_u32 s58, s51, {KG_T + KT_O + 512}")
    a("v_mov_b32 v19, s54")
    TW, TW2 = 102, 112
    for jt in range(2):
        for r in range(4):
            p = 20 + 4 * jt + r
            if r == 0:
                a(f"v_mov_b32 v{p}, v14" if jt == 0 else f"v_add_f32 v{p}, 0x43000000, v14")
            else:
                a(f"v_add_f32 v{p}, v{p-1}, v15")
    for i in range(8):
        p, b, b2 = 20 + i, TW + i, TW2 + i
        a(f"v_cvt_pk_bf16_f32 v{b}, v{p}, v{p}")
        a(f"v_cvt_u32_f32 v17, v{p}")
        a(f"v_and_b32 v16, 0xffff0000, v{b}")
        a(f"v_cmp_eq_u32 vcc, v16, v{p}")
        a(f"v_and_b32 v{b}, 0xffff, v{b}")
        a(f"v_lshl_add_u32 v{b}, v{b}, 1, s53")
        a(f"v_cndmask_b32 v{b}, v19, v{b}, vcc")
        a("v_lshlrev_b32 v16, 1, v17")
        a("v_cmp_gt_u32 vcc, 256, v17")
        a("v_sub_u32 v18, s57, v16")
        a(f"v_sub_u32 v{b2}, s58, v16")
        a(f"v_cndmask_b32 v{b}, v{b}, v18, vcc")
        a("v_cmp_ge_u32 vcc, 256, v17")
        a("s_nop 1")
        a(f"v_cndmask_b32 v{b2}, v19, v{b2}, vcc")
    a("v_mov_b32 v20, 0")
    a("v_mov_b32 v21, 0")
    a("v_mov_b32 v22, 0")
    a("v_mov_b32 v23, 0")
    a("v_and_b32 v16, 1, v1")
    a("v_lshlrev_b32 v16, 4, v16")
    a(f"s_mul_i32 s59, s46, {KT_O}")
    a("s_add_u32 s59, s59, s57")
    a("v_add_u32 v16, s59, v16")
    a("ds_write_b128 v16, v[20:23] offset:2")
    a("v_lshlrev_b32 v130, 4, v3")
    a(f"s_add_u32 s55, s51, {KG_T}")
    a("v_add_u32 v110, s55, v130")
    a(f"s_mul_i32 s55, s47, {KT_BYTES}")
    a("v_mov_b32 v14, 0x00003f80")
    a(f"ds_write_b32 v6, v14 offset:{KG_YB}")
    stamp(a)
    a("s_waitcnt vmcnt(3)")
    stamp(a)
    a("v_lshlrev_b32 v12, 16, v12")
    a("v_lshlrev_b32 v8, 16, v8")
    exp_acc(a, 13, 12, 14)
    exp_acc(a, 15, 8, 16)
    bf16_round(a, 13, 13)
    bf16_round(a, 15, 15)
    a("s_waitcnt vmcnt(2)")
    a("v_lshlrev_b32 v9, 16, v9")
    a("v_mul_f32 v15, v15, v13")
    a("v_mul_f32 v16, v9, v13")
    a(f"v_mul_f32 v15, {f32(-LOG2E)}, v15")
    a(f"v_mul_f32 v16, {f32(0.15915494309189535)}, v16")
    seeds = [(1, 20, 1), (256, 22, 1), (8, 24, -1), (64, 26, -1)]
    for i, (p, z, sg) in enumerate(seeds):
        a(f"v_mul_f32 v{32+i}, {f32(float(p))}, v15")
        a(f"v_mul_f32 v{36+i}, {f32(float(p*sg))}, v16")
    for i in range(4):
        a(f"v_exp_f32 v{32+i}, v{32+i}")
        a(f"v_fract_f32 v{36+i}, v{36+i}")
    for i, (p, z, sg) in enumerate(seeds):
        a(f"v_cos_f32 v{z}, v{36+i}")
        a(f"v_sin_f32 v{z+1}, v{36+i}")
    a("s_waitcnt vmcnt(0)")
    a("v_lshlrev_b32 v10, 16, v10")
    a("v_lshlrev_b32 v11, 16, v11")
    a("v_add_f32 v13, v13, v13")
    for i, (p, z, sg) in enumerate(seeds):
        a(f"v_mul_f32 v{z}, v{32+i}, v{z}")
        a(f"v_mul_f32 v{z+1}, v{32+i}, v{z+1}")
    a("v_mul_f32 v28, v10, v13")
    a("v_mul_f32 v29, v11, v13")
    E1, E256, Y8, Y64, C = 20, 22, 24, 26, 28
    E2, E4, Y128, Y192 = 40, 42, 44, 46

    def emit(z, off, t):
        return [f"v_cvt_pk_bf16_f32 v{t}, v{z}, v{z+1}", f"ds_write_b32 v6, v{t} offset:{off}"]

    xrow = lambda q, r: KG_XA + (4 * q + r) * KG_ROW
    yrow = lambda j: KG_YB + j * KG_ROW

    def chain(seed, ratio, offs, ra, rb, t, emit_seed=True):
        ops = []
        cur = seed
        for k, off in enumerate(offs):
            if k:
                nxt = ra if cur != ra else rb
                ops.append(cmul(nxt, cur, ratio))
                cur = nxt
            if k or emit_seed:
                ops.append(emit(cur, off, t))
        return ops

    pre = [cmul(E2, E1, E1), cmul(Y128, Y64, Y64), cmul(48, C, E256), cmul(E4, E2, E2), cmul(Y192, Y128, Y64)]
    for i in range(2):
        for op in pre[:3]:
            a(op[i])
    for i in range(2):
        for op in pre[3:]:
            a(op[i])
    a("\n".join(cmul(50, C, E4)))
    chains = [
        chain(Y8, Y8, [yrow(j) for j in range(1, 8)], 52, 54, 88),
        chain(Y64, Y8, [yrow(j) for j in range(8, 16)], 56, 58, 89),
        chain(Y128, Y8, [yrow(j) for j in range(16, 24)], 60, 62, 90),
        chain(Y192, Y8, [yrow(j) for j in range(24, 32)], 64, 66, 91),
        chain(C, E1, [xrow(0, r) for r in range(4)], 68, 70, 92)
        + chain(48, E2, [xrow(2, r) for r in range(4)], 68, 70, 92),
        chain(50, E1, [xrow(1, r) for r in range(4)], 72, 74, 93),
    ]
    far = []
    cur = 48
    offs = [xrow(3, 0), xrow(3, 1), xrow(3, 2), xrow(3, 3), xrow(4, 0), xrow(4, 1), xrow(4, 2)]
    for k, off in enumerate(offs):
        nxt = 76 if cur != 76 else 78
        far.append(cmul(nxt, cur, E256))
        cur = nxt
        far.append(emit(cur, off, 94))
        if k < 2:
            far.append(cmul(80, cur, E4))
            far.append(emit(80, xrow(5, k), 95))
    chains.append(far)
    while any(chains):
        units = [c.pop(0) for c in chains if c]
        for i in range(2):
            for u in units:
                a(u[i])
    a("s_waitcnt lgkmcnt(0)")
    stamp(a)
    a("s_barrier")
    for ks in range(8):
        a(f"ds_read_b128 {vr(132+4*ks,4)}, v101 offset:{KG_XA + ks*64}")
        a(f"ds_read_b128 {vr(32+4*ks,4)}, v100 offset:{KG_YB + ks*64}")
        a(f"ds_read_b128 {vr(64+4*ks,4)}, v100 offset:{KG_YB + 16*KG_ROW + ks*64}")
    for ks in range(8):
        a(f"s_waitcnt lgkmcnt({min(15, 3*(7-ks))})")
        c0 = "0" if ks == 0 else "v[20:23]"
        c1 = "0" if ks == 0 else "v[24:27]"
        a(f"v_mfma_f32_16x16x32_bf16 v[20:23], {vr(132+4*ks,4)}, {vr(32+4*ks,4)}, {c0}")
        a(f"v_mfma_f32_16x16x32_bf16 v[24:27], {vr(132+4*ks,4)}, {vr(64+4*ks,4)}, {c1}")
    a("s_nop 7")
    for i in range(8):
        a(f"v_cvt_pk_bf16_f32 v{20+i}, v{20+i}, v{20+i}")
        a(f"ds_write_b16 v{TW+i}, v{20+i}")
        a(f"ds_write_b16 v{TW2+i}, v{20+i}")
    a("s_waitcnt lgkmcnt(0)")
    stamp(a)
    a("s_barrier")
    a("ds_read_b128 v[32:35], v110")
    a("ds_read_b128 v[36:39], v110 offset:2048")
    a("s_waitcnt lgkmcnt(1)")
    a("buffer_store_dwordx4 v[32:35], v130, s[36:39], s55 offen" + WT["k"])
    a("s_cmp_lg_u32 s46, 0")
    a("s_cbranch_scc1 k1_kg_done")
    a("s_waitcnt lgkmcnt(0)")
    a("buffer_store_dwordx4 v[36:39], v130, s[36:39], s55 offen offset:2048" + WT["k"])
    a.label("k1_kg_done")
    stamp_end(a, 0, 14)
    a("s_endpgm")


def gen_k1(a):
    a.raw(".p2align 8")
    a.label("k1_kernel")
    a(f"s_cmp_ge_u32 s2, {N_K1}")
    a("s_cbranch_scc1 k1_exit")
    a("v_lshrrev_b32 v2, 6, v0")
    a("v_and_b32 v1, 63, v0")
    a("v_readfirstlane_b32 s44, v2")
    a("s_cmp_ge_u32 s44, 4")
    a("s_cbranch_scc1 k1_ln")
    gen_kgen(a)
    a.label("k1_ln")
    gen_ln(a)
    a.label("k1_exit")
    a("s_endpgm")


N_G1, N_CV, N_RL = 176, 64, 16
G1_STAGE = 49152
G1_W = 32768
K2_LDS = 3 * G1_STAGE
G1_NST = 8
CV_ZB, CV_PW = 32768, 32896
CV_O, CV_T, CV_G, CV_W = 2752, 5376, 6400, 7168


def gen_gemm1_loader(a):
    a("s_sub_u32 s30, s30, 4")
    a("v_lshrrev_b32 v3, 3, v1")
    a("v_and_b32 v4, 7, v1")
    a("v_lshrrev_b32 v5, 4, v1")
    a(f"v_mul_u32_u24 v14, {XN_STRIDE}, v3")
    for q in range(4):
        a(f"v_add_u32 v6, {4*q}, v5")
        a("v_and_b32 v6, 7, v6")
        a("v_xor_b32 v6, v6, v4")
        a("v_lshl_add_u32 v6, v6, 4, v14")
        a(f"v_add_u32 v{8+q}, {q*(8*XN_STRIDE-1024)}, v6")
    a("v_and_b32 v6, 1, v5")
    a("v_lshrrev_b32 v7, 2, v4")
    a("v_xor_b32 v6, v6, v7")
    a("v_and_b32 v7, 3, v4")
    a("v_lshlrev_b32 v7, 3, v7")
    a("v_lshl_add_u32 v6, v6, 5, v7")
    a("s_lshl_b32 s31, s29, 6")
    a("v_add_u32 v6, s31, v6")
    a(f"v_mul_u32_u24 v12, {2*F}, v3")
    a("v_lshl_add_u32 v12, v6, 1, v12")
    a(f"v_add_u32 v13, {8*2*F-1024}, v12")
    a(f"v_cmp_le_u32 vcc, {F}, v6")
    a("v_mov_b32 v7, 0x40000000")
    a(f"s_mul_i32 s32, s28, {256*XN_STRIDE}")
    a("v_cndmask_b32 v12, v12, v7, vcc")
    a("v_cndmask_b32 v13, v13, v7, vcc")
    a(f"s_mul_i32 s33, s30, {64*XN_STRIDE}")
    a("s_add_u32 s32, s32, s33")
    a(f"s_add_u32 s36, s32, {32*XN_STRIDE}")
    a(f"s_mul_i32 s33, s30, {16*2*F}")
    a("s_lshl_b32 s34, s30, 13")
    a("s_lshl_b32 s35, s30, 11")
    a(f"s_add_u32 s35, s35, {G1_W}")
    a("s_waitcnt lgkmcnt(0)")
    srd(a, 16, 4, W_BYTES)
    srd(a, 20, 6, W_BYTES)
    srd(a, 12, 8, XN_BYTES, WS_XN)

    def dma(stage, lo=0, hi=12):
        b = (stage % 3) * G1_STAGE
        if lo == 0:
            a(f"s_add_u32 m0, s35, {b}")
            a("s_nop 0")
            a("buffer_load_dwordx4 v12, s[16:19], s33 offen lds")
            a("buffer_load_dwordx4 v13, s[16:19], s33 offen offset:1024 lds")
            a(f"s_add_u32 m0, s35, {b+8192}")
            a("s_nop 0")
            a("buffer_load_dwordx4 v12, s[20:23], s33 offen lds")
            a("buffer_load_dwordx4 v13, s[20:23], s33 offen offset:1024 lds")
            a(f"s_add_u32 s33, s33, {64*2*F}")
        if hi == 12:
            a(f"s_add_u32 m0, s34, {b}")
            a("s_nop 0")
            for q in range(4):
                a(f"buffer_load_dwordx4 v{8+q}, s[12:15], s32 offen offset:{q*1024} lds")
            a(f"s_add_u32 m0, s34, {b+4096}")
            a("s_add_u32 s32, s32, 128")
            for q in range(4):
                a(f"buffer_load_dwordx4 v{8+q}, s[12:15], s36 offen offset:{q*1024} lds")
            a("s_add_u32 s36, s36, 128")

    dma(0)
    dma(1, 0, 4)
    for st in range(G1_NST):
        if st in (0, 3, 4):
            stamp(a)
        a(f"s_waitcnt vmcnt({4 if st == 0 else (12 if st + 1 < G1_NST else 0)})")
        if st in (0, 3, 4):
            stamp(a)
        a("s_barrier")
        if st in (3,):
            stamp(a)
        if st == 0:
            dma(1, 4, 12)
        if st + 2 < G1_NST:
            dma(st + 2)
    stamp_end(a, 1, 8)
    a("s_endpgm")


def gen_gemm1(a):
    stamp_begin(a)
    a(f"s_load_dwordx4 s[4:7], s[0:1], {KA_WG}")
    a(f"s_load_dwordx2 s[8:9], s[0:1], {KA_WS}")
    a("v_and_b32 v1, 63, v0")
    a("v_lshrrev_b32 v2, 6, v0")
    if G1_MAP:
        a("s_lshr_b32 s29, s2, 3")
        a("s_and_b32 s28, s2, 6")
        a("s_and_b32 s31, s29, 1")
        a("s_add_u32 s28, s28, s31")
        a("s_lshr_b32 s29, s29, 1")
        a("s_and_b32 s31, s2, 1")
        a("s_mul_i32 s31, s31, 11")
        a("s_add_u32 s29, s29, s31")
    else:
        a("s_and_b32 s28, s2, 7")
        a("s_lshr_b32 s29, s2, 3")
    a("v_readfirstlane_b32 s30, v2")
    a("s_cmp_lt_u32 s30, 4")
    a("s_cbranch_scc1 k2_g1_compute")
    gen_gemm1_loader(a)
    a.label("k2_g1_compute")
    if PRIO:
        a(f"s_setprio {PRIO}")
    _stamp_n[0] = 1 if PROF else 0
    a("v_and_b32 v3, 31, v1")
    a("v_lshrrev_b32 v4, 5, v1")
    a("v_lshrrev_b32 v5, 1, v3")
    a("v_and_b32 v5, 7, v5")
    a("v_xor_b32 v5, v5, v4")
    a("v_lshlrev_b32 v6, 7, v3")
    a("s_lshl_b32 s38, s30, 13")
    a("v_add_u32 v6, s38, v6")
    for ks in range(4):
        a(f"v_xor_b32 v7, {2*ks}, v5")
        a(f"v_lshl_add_u32 v{16+ks}, v7, 4, v6")
    a("v_and_b32 v5, 15, v1")
    a("v_lshrrev_b32 v6, 2, v5")
    a("v_and_b32 v5, 3, v5")
    a("v_lshrrev_b32 v7, 4, v1")
    a("v_and_b32 v7, 1, v7")
    a("v_and_b32 v13, 1, v5")
    a("v_lshlrev_b32 v13, 5, v13")
    a("v_lshl_add_u32 v13, v7, 4, v13")
    a("v_lshrrev_b32 v5, 1, v5")
    a("v_lshl_add_u32 v13, v5, 3, v13")
    a("v_lshrrev_b32 v5, 1, v6")
    a("v_lshl_add_u32 v13, v5, 6, v13")
    a("v_lshl_add_u32 v6, v4, 3, v6")
    a("v_lshl_add_u32 v13, v6, 7, v13")
    a(f"v_add_u32 v20, {G1_W}, v13")
    a("v_xor_b32 v21, 64, v20")
    a("v_mov_b32 v12, 0")
    HS = 144
    a(f"s_mul_i32 s39, s30, {64*HS}")
    a(f"v_mul_u32_u24 v22, {HS}, v3")
    a("v_lshl_add_u32 v22, v4, 5, v22")
    a("v_add_u32 v22, s39, v22")
    a("v_lshrrev_b32 v5, 3, v1")
    a("v_and_b32 v6, 7, v1")
    a(f"v_mul_u32_u24 v23, {HS}, v5")
    a("v_lshl_add_u32 v23, v6, 4, v23")
    a("v_add_u32 v23, s39, v23")
    a(f"v_mul_u32_u24 v14, {H_STRIDE}, v5")
    a("v_lshl_add_u32 v14, v6, 4, v14")
    a("s_lshl_b32 s40, s28, 8")
    a("s_lshl_b32 s41, s30, 6")
    a("s_add_u32 s40, s40, s41")
    a(f"s_mul_i32 s42, s40, {H_STRIDE}")
    a("s_lshl_b32 s43, s29, 7")
    a("s_add_u32 s42, s42, s43")
    a("s_waitcnt lgkmcnt(0)")
    srd(a, 24, 8, H_BYTES, WS_H)

    ACC = lambda w, ft, tt: 128 + 64 * w + 32 * ft + 16 * tt
    FS = [32, 56, 80, 104]

    def reads(n, f):
        ks = n & 3
        out = []
        for w in range(2):
            for ft in range(2):
                o = 8192 * w + ks * 2048
                out.append(f"ds_read_b64_tr_b16 {vr(f+8*w+4*ft,2)}, v{20+ft} offset:{o}")
                out.append(f"ds_read_b64_tr_b16 {vr(f+8*w+4*ft+2,2)}, v{20+ft} offset:{o+512}")
            out.append(f"ds_read_b128 {vr(f+16+4*w,4)}, v{16+ks} offset:{4096*w}")
        return out

    def mfma(n, f, w, ft, tt):
        c = vr(ACC(w, ft, tt), 16)
        return (f"v_mfma_f32_32x32x16_bf16 {c}, {vr(f+8*w+4*ft,4)}, {vr(f+16+4*tt,4)}, "
                f"{'0' if n == 0 else c}")

    def mfmas(n, f):
        return [mfma(n, f, w, ft, tt) for tt in range(2) for w in range(2) for ft in range(2)]

    def boundary(st):
        a("s_waitcnt lgkmcnt(0)")
        a("s_barrier")
        if st in (0, 6, 7):
            stamp(a)
        if st >= 1:
            delta = G1_STAGE if st % 3 else -2 * G1_STAGE
            for r in (16, 17, 18, 19, 20, 21):
                a(f"v_add_u32 v{r}, {delta & 0xffffffff:#x}, v{r}")

    LASTN = 4 * (G1_NST - 1)
    boundary(0)
    for op in reads(0, FS[0]):
        a(op)
    for n in range(LASTN):
        nx = n + 1
        if nx == LASTN:
            break
        if nx & 3 == 0:
            boundary(nx >> 2)
        else:
            a("s_waitcnt lgkmcnt(0)")
        rd = reads(nx, FS[nx & 1])
        cuts = [0, 3, 6, 8, 10, 10, 10, 10, 10]
        for i, m in enumerate(mfmas(n, FS[n & 1])):
            a(m)
            for op in rd[cuts[i]:cuts[i + 1]]:
                a(op)
    n = LASTN - 1
    boundary(G1_NST - 1)
    sets = {LASTN: FS[0], LASTN + 2: FS[2], LASTN + 3: FS[3], LASTN + 1: FS[1]}
    early = reads(LASTN, FS[0]) + reads(LASTN + 2, FS[2]) + reads(LASTN + 3, FS[3])
    mm = mfmas(n, FS[n & 1])
    for i, m in enumerate(mm):
        a(m)
        for op in early[4 * i:4 * i + 4]:
            a(op)
    for op in reads(LASTN + 1, FS[1]):
        a(op)

    def pair_epilogue(ft, tt):
        g, u = ACC(0, ft, tt), ACC(1, ft, tt)
        o = 4 if ft == 0 else 24
        out = []
        if EPI == "fused":
            for k in range(16):
                out.append(f"v_max_f32 v{g+k}, 0, v{g+k}")
            for k in range(16):
                out.append(f"v_mul_f32 v{g+k}, v{g+k}, v{u+k}")
            for k in range(8):
                out.append(f"v_cvt_pk_bf16_f32 v{o+k}, v{g+2*k}, v{g+2*k+1}")
                if k == 3:
                    out.append(f"ds_write_b128 v22, {vr(o,4)} offset:{32*HS*tt + 64*ft}")
            out.append(f"ds_write_b128 v22, {vr(o+4,4)} offset:{32*HS*tt + 64*ft + 16}")
            return out
        for k in range(8):
            out.append(f"v_cvt_pk_bf16_f32 v{g+2*k}, v{g+2*k}, v{g+2*k+1}")
            out.append(f"v_cvt_pk_bf16_f32 v{u+2*k}, v{u+2*k}, v{u+2*k+1}")
        for k in range(8):
            out.append(f"v_max_i16_sdwa v{g+2*k+1}, v{g+2*k}, v12 dst_sel:WORD_0 dst_unused:UNUSED_PAD "
                       "src0_sel:WORD_0 src1_sel:WORD_0")
            out.append(f"v_max_i16_sdwa v{u+2*k+1}, v{g+2*k}, v12 dst_sel:WORD_1 dst_unused:UNUSED_PAD "
                       "src0_sel:WORD_1 src1_sel:WORD_0")
        for k in range(8):
            out.append(f"v_dot2_f32_bf16 v{g+2*k+1}, v{g+2*k+1}, v{u+2*k}, 0")
            out.append(f"v_dot2_f32_bf16 v{u+2*k+1}, v{u+2*k+1}, v{u+2*k}, 0")
        for k in range(8):
            out.append(f"v_cvt_pk_bf16_f32 v{o+k}, v{g+2*k+1}, v{u+2*k+1}")
            if k == 3:
                out.append(f"ds_write_b128 v22, {vr(o,4)} offset:{32*HS*tt + 64*ft}")
        out.append(f"ds_write_b128 v22, {vr(o+4,4)} offset:{32*HS*tt + 64*ft + 16}")
        return out

    def flush(tt, regs):
        rd = [f"ds_read_b128 {vr(regs+4*i,4)}, v23 offset:{8*HS*(4*tt+i)}" for i in range(4)]
        st = []
        for i in range(4):
            st.append(f"s_waitcnt lgkmcnt({3-i})\n"
                      f"buffer_store_dwordx4 {vr(regs+4*i,4)}, v14, s[24:27], s42 offen{WT['h']}\n"
                      f"s_add_u32 s42, s42, {8*H_STRIDE}")
        return rd, st

    order = [(0, 0), (1, 0), (0, 1), (1, 1)]
    korder = [LASTN, LASTN + 2, LASTN + 3, LASTN + 1]
    a("s_waitcnt lgkmcnt(10)")
    for pi, (ft, tt) in enumerate(order):
        if pi < 3:
            stamp(a)
        mm = []
        for kn in korder:
            if pi == 0 and kn == LASTN + 1:
                mm.append("s_waitcnt lgkmcnt(0)\n" + mfma(kn, sets[kn], 0, ft, tt))
            else:
                mm.append(mfma(kn, sets[kn], 0, ft, tt))
            mm.append(mfma(kn, sets[kn], 1, ft, tt))
        fill = ["s_nop 8"] + pair_epilogue(*order[pi - 1]) if pi else []
        if pi == 3:
            rd, st = flush(0, ACC(1, 0, 0))
            fill = ["s_waitcnt lgkmcnt(0)"] + rd + fill[:33] + st + fill[33:]
        lead = 2
        per = -(-len(fill) // (len(mm) - lead)) if fill else 0
        for i, m in enumerate(mm):
            a(m)
            if i >= lead - 1 and fill:
                j = i - (lead - 1)
                for op in fill[j * per:(j + 1) * per]:
                    a(op)
    a("s_nop 15")
    stamp(a)
    for op in pair_epilogue(*order[3]):
        a(op)
    a("s_waitcnt lgkmcnt(0)")
    rd, st = flush(1, ACC(1, 0, 0))
    for op in rd + st:
        a(op)
    stamp_end(a, 1, 8)
    a("s_endpgm")


def gen_conv(a):
    stamp_begin(a)
    a(f"s_load_dwordx2 s[4:5], s[0:1], {KA_DSK}")
    a(f"s_load_dwordx2 s[8:9], s[0:1], {KA_WS}")
    a("v_and_b32 v1, 63, v0")
    a("v_lshrrev_b32 v2, 6, v0")
    a(f"s_sub_u32 s28, s2, {N_G1}")
    a("s_lshl_b32 s29, s28, 7")
    a("v_readfirstlane_b32 s30, v2")
    a("s_lshl_b32 s28, s28, 3")
    a("s_add_u32 s28, s28, s30")
    a(f"s_mul_i32 s31, s30, {CV_W}")
    a(f"s_add_u32 s31, s31, {CV_PW}")
    a(f"s_mul_i32 s32, s28, {KT_BYTES}")
    a("s_lshl_b32 s34, s28, 12")
    a("s_lshr_b32 s35, s28, 1")
    a("s_lshl_b32 s35, s35, 2")
    a("v_lshlrev_b32 v3, 4, v1")
    a("v_lshrrev_b32 v4, 3, v1")
    a("v_and_b32 v5, 7, v1")
    a("v_lshrrev_b32 v6, 4, v1")
    a(f"v_mul_u32_u24 v4, {XNT_STRIDE}, v4")
    for q in range(2):
        a(f"v_add_u32 v7, {4*q}, v6")
        a("v_xor_b32 v7, v7, v5")
        a(f"v_lshl_add_u32 v{8+q}, v7, 4, v4")
    a(f"v_add_u32 v9, {8*XNT_STRIDE - 1024}, v9")
    a(f"s_mul_i32 s44, s30, {32*XNT_STRIDE}")
    a("s_add_u32 s44, s44, s29")
    a(f"s_add_u32 s45, s44, {16*XNT_STRIDE - 2048}")
    a("s_lshl_b32 s47, s30, 12")
    a("s_waitcnt lgkmcnt(0)")
    a("s_load_dword s36, s[4:5], s35")
    srd(a, 12, 8, D * KT_BYTES, WS_KR)
    srd(a, 16, 8, XNT_BYTES, WS_XNT)
    srd(a, 20, 8, L * D * 2, WS_AT)
    for q, dst in ((2, CV_T), (0, 1600), (1, CV_O + 1600)):
        a(f"s_add_u32 m0, s31, {dst - q*1024}")
        a("s_nop 0")
        a(f"buffer_load_dwordx4 v3, s[12:15], s32 offen offset:{q*1024} lds")
    a("s_mov_b32 m0, s47")
    a("s_nop 0")
    a("buffer_load_dwordx4 v8, s[16:19], s44 offen lds")
    a("buffer_load_dwordx4 v9, s[16:19], s44 offen offset:1024 lds")
    a("buffer_load_dwordx4 v8, s[16:19], s45 offen offset:2048 lds")
    a("buffer_load_dwordx4 v9, s[16:19], s45 offen offset:3072 lds")
    pf = 1 if CODE_PF else 0
    if CODE_PF:
        a(f"s_sub_u32 s45, s2, {N_G1}")
        a("s_lshr_b32 s45, s45, 3")
        a("s_lshl_b32 s45, s45, 3")
        a("s_add_u32 s45, s45, s30")
        code_prefetch(a, "k3_kernel", "code_end", 45, 3, 252, 48)
    for r in range(4, 8):
        a(f"v_mov_b32 v{r}, 0")
    a(f"v_add_u32 v10, {CV_G}, v3")
    for lo, base in ((48, 0), (51, CV_O)):
        a(f"v_cmp_le_u32 vcc, {lo}, v1")
        a(f"v_add_u32 v11, {(base - 16*lo) & 0xffffffff:#x}, v3")
        a("s_nop 0")
        a("v_cndmask_b32 v10, v10, v11, vcc")
    a("v_add_u32 v10, s31, v10")
    a("v_cmp_le_u32 vcc, 54, v1")
    a(f"v_mov_b32 v15, {CV_ZB}")
    a("s_nop 0")
    a("v_cndmask_b32 v238, v10, v15, vcc")
    a("v_and_b32 v4, 15, v1")
    a("v_lshrrev_b32 v5, 4, v1")
    a("v_lshlrev_b32 v6, 3, v5")
    a("v_sub_u32 v6, v6, v4")
    a("v_lshlrev_b32 v6, 1, v6")
    a("v_add_u32 v6, s31, v6")
    a("v_and_b32 v7, 1, v4")
    a("v_cmp_eq_u32 vcc, 1, v7")
    a(f"v_mov_b32 v8, {CV_O + 2*1040}")
    a(f"v_mov_b32 v9, {2*1039}")
    a("v_cndmask_b32 v8, v8, v9, vcc")
    a("v_add_u32 v8, v6, v8")
    for P in range(2):
        a(f"v_subrev_u32 v{10+P}, {512*(2*P+1)+448}, v8")
    a("v_subrev_u32 v12, 2048, v8")
    a(f"v_mov_b32 v8, {CV_G + 192 + 2*62 - 96}")
    a(f"v_mov_b32 v9, {CV_G + 2*63 - 96}")
    a("v_cndmask_b32 v8, v8, v9, vcc")
    a("v_lshlrev_b32 v9, 3, v5")
    a("v_sub_u32 v6, v6, v9")
    a("v_add_u32 v13, v6, v8")

    def uaddr(dst, gran, tmp):
        a(f"v_lshrrev_b32 v{tmp}, 1, v{gran}")
        a(f"v_and_b32 v{tmp}, 7, v{tmp}")
        a(f"v_xor_b32 v{tmp}, s30, v{tmp}")
        a(f"v_lshlrev_b32 v{tmp}, 4, v{tmp}")
        a(f"v_lshl_add_u32 v{dst}, v{gran}, 7, v{tmp}")

    UB, UC = 16, 24
    a("v_lshl_add_u32 v6, v4, 1, v5")
    for rho in range(4):
        a(f"v_add_u32 v7, {14 - 4*rho}, v6")
        uaddr(UB + rho, 7, 8)
    for rho in range(8):
        a(f"v_cmp_gt_u32 vcc, {4*rho + 2}, v6")
        a(f"v_subrev_u32 v7, {4096 if rho >= 4 else 2048}, v{UB + (rho & 3)}")
        a("s_nop 0")
        a(f"v_cndmask_b32 v{UC+rho}, v7, v15, vcc")
    a("v_lshrrev_b32 v7, 1, v5")
    a("v_lshl_add_u32 v7, v4, 1, v7")
    uaddr(246, 7, 8)
    a("v_and_b32 v7, 1, v5")
    a("v_lshl_add_u32 v246, v7, 3, v246")
    a("v_lshlrev_b32 v247, 5, v4")
    a("v_lshl_add_u32 v247, v5, 3, v247")
    BND = 224
    a("v_lshlrev_b32 v8, 3, v5")
    a("v_mov_b32 v9, 0x7f")
    a("v_add_u32 v7, 5, v4")
    a("v_lshlrev_b32 v240, v7, v9")
    a("v_mov_b32 v9, 0x1ff")
    a("v_lshlrev_b32 v241, v4, v9")
    a("v_lshrrev_b32 v241, 4, v241")
    a("v_mov_b32 v9, 0xf0000000")
    a("v_lshlrev_b32 v242, v4, v9")
    a("s_mov_b32 s40, 0x3f803f80")
    a("s_mov_b32 s41, 0xffff")
    for b in range(3):
        a(f"v_lshrrev_b32 v{240+b}, v8, v{240+b}")
    for b in range(3):
        for k in range(4):
            a(f"v_bfe_i32 v7, v{240+b}, {2*k}, 1")
            a(f"v_bfe_i32 v9, v{240+b}, {2*k+1}, 1")
            a("v_bfi_b32 v7, s41, v7, v9")
            a(f"v_and_b32 v{BND+4*b+k}, s40, v7")
    a(f"s_add_u32 s38, s31, {CV_T}")
    a("v_lshlrev_b32 v7, 2, v1")
    a("v_sub_u32 v249, s38, v7")
    a("v_lshlrev_b32 v7, 3, v1")
    a("v_min_u32 v7, 248, v7")
    a("v_sub_u32 v250, s38, v7")
    a("v_lshlrev_b32 v7, 2, v1")
    a("v_add_u32 v243, s38, v7")
    a("v_add_u32 v248, s31, v3")
    a("v_cmp_eq_u32 s[52:53], 63, v1")
    a("v_lshlrev_b32 v7, 1, v1")
    a(f"s_add_u32 s39, s31, {CV_G + 126}")
    a("v_sub_u32 v251, s39, v7")
    a("v_add_u32 v245, 190, v251")
    a("v_mov_b32 v7, s38")
    a("v_cndmask_b32 v245, v245, v7, s[52:53]")
    a("s_mov_b32 s42, 0x03020302")
    a("s_mov_b32 s43, 0x01000100")

    ACC = 32
    SET = [64, 112]
    A32 = 216
    WS9, WS7 = 160, 176
    FB = 192
    UREG = 160

    def loads(rho):
        s = SET[rho & 1]
        out = []
        for m in range(8):
            if m == 0:
                out.append(f"ds_read_b128 {vr(s+16,4)}, v{UC+rho}")
            else:
                o = 4096 * (m - 1) + (2048 if rho < 4 else 0)
                out.append(f"ds_read_b128 {vr(s+16+4*m,4)}, v{UB+(rho&3)} offset:{o}")
            if m < 4:
                o = (64 * (7 - rho) + (0 if m & 1 else 512)) // 4
                out.append(f"ds_read2_b32 {vr(s+4*m,2)}, v{10+(m>>1)} offset0:{o} offset1:{o+1}")
                out.append(f"ds_read2_b32 {vr(s+4*m+2,2)}, v{10+(m>>1)} offset0:{o+2} offset1:{o+3}")
        if rho == 0:
            out.append(f"ds_read2_b32 {vr(A32,2)}, v12 offset0:0 offset1:1")
            out.append(f"ds_read2_b32 {vr(A32+2,2)}, v12 offset0:2 offset1:3")
        return out

    def mfma(rho, i, m):
        s = SET[rho & 1]
        c = vr(ACC + 4 * (i + m), 4)
        fa = A32 if i == 4 else s + 4 * i
        return (f"v_mfma_f32_16x16x32_bf16 {c}, {vr(fa,4)}, {vr(s+16+4*m,4)}, "
                f"{'0' if rho == 0 and i == 0 else c}")

    def mfmas(rho):
        out = [mfma(rho, i, m) for i in range(5 if rho == 0 else 4) for m in range(8 - i)]
        s = SET[rho & 1]
        if rho == 0:
            for t in range(4):
                out.append(f"v_mfma_f32_16x16x32_bf16 {vr(WS7+4*t,4)}, {vr(s+16+4*t,4)}, {vr(BND,4)}, 0")
                out.append(f"v_mfma_f32_16x16x32_bf16 {vr(WS9+4*t,4)}, {vr(s+16+4*t,4)}, {vr(BND+4,4)}, 0")
        if rho == 1:
            for t in range(4):
                c = vr(WS9 + 4 * t, 4)
                out.insert(2 * t, f"v_mfma_f32_16x16x32_bf16 {c}, {vr(s+16+4*t,4)}, {vr(BND+8,4)}, {c}")
        return out

    def window_pack():
        out = []
        for base in (WS9, WS7):
            for t in range(4):
                out.append(f"v_cvt_pk_bf16_f32 v{base+2*t}, v{base+4*t}, v{base+4*t+1}")
                out.append(f"v_cvt_pk_bf16_f32 v{base+2*t+1}, v{base+4*t+2}, v{base+4*t+3}")
        return out

    def far_loads(par):
        out = []
        for dl in range(4):
            o = (96 - 32 * dl + 384 * par) // 4
            out.append(f"ds_read2_b32 {vr(FB+4*dl,2)}, v13 offset0:{o} offset1:{o+1}")
            out.append(f"ds_read2_b32 {vr(FB+4*dl+2,2)}, v13 offset0:{o+8} offset1:{o+9}")
        return out

    def far_mfmas(par):
        out = []
        for tp in range(4):
            for kb in range(2 if tp >= 2 else 1):
                c = vr(ACC + 4 * (4 + tp), 4)
                out.append(f"v_mfma_f32_16x16x32_bf16 {c}, {vr((WS9, WS7)[par]+4*kb,4)}, "
                           f"{vr(FB+4*(tp-2*kb),4)}, {c}")
        return out

    def tile_epilogue(t):
        y = ACC + 4 * t
        u = UREG + 2 * t
        w = 2 if t & 1 else 208
        return [f"v_lshlrev_b32 v{w}, 16, v{u}",
                f"v_and_b32 v{w+1}, 0xffff0000, v{u}",
                f"v_lshlrev_b32 v{w+2}, 16, v{u+1}",
                f"v_and_b32 v{w+3}, 0xffff0000, v{u+1}",
                f"v_pk_mul_f32 {vr(w,2)}, {vr(w,2)}, s[36:37]",
                f"v_pk_mul_f32 {vr(w+2,2)}, {vr(w+2,2)}, s[36:37]",
                f"v_cvt_pk_bf16_f32 v{u}, v{w}, v{w+1}",
                f"v_cvt_pk_bf16_f32 v{u+1}, v{w+2}, v{w+3}",
                f"v_cvt_pk_bf16_f32 v{w+5}, v{y}, v{y+1}",
                f"v_cvt_pk_bf16_f32 v{w+7}, v{y+2}, v{y+3}",
                f"v_lshlrev_b32 v{w}, 16, v{u}",
                f"v_and_b32 v{w+1}, 0xffff0000, v{u}",
                f"v_lshlrev_b32 v{w+2}, 16, v{u+1}",
                f"v_and_b32 v{w+3}, 0xffff0000, v{u+1}",
                f"v_lshlrev_b32 v{w+4}, 16, v{w+5}",
                f"v_and_b32 v{w+5}, 0xffff0000, v{w+5}",
                f"v_lshlrev_b32 v{w+6}, 16, v{w+7}",
                f"v_and_b32 v{w+7}, 0xffff0000, v{w+7}",
                f"v_pk_add_f32 {vr(w,2)}, {vr(w,2)}, {vr(w+4,2)}",
                f"v_pk_add_f32 {vr(w+2,2)}, {vr(w+2,2)}, {vr(w+6,2)}",
                f"v_cvt_pk_bf16_f32 v{u}, v{w}, v{w+1}",
                f"v_cvt_pk_bf16_f32 v{u+1}, v{w+2}, v{w+3}",
                f"buffer_store_dwordx2 {vr(u,2)}, v247, s[20:23], s34 offen offset:{512*t}" + WT["at"]]

    def spread(mm, fill):
        per = -(-len(fill) // len(mm)) if fill else 0
        for i, m in enumerate(mm):
            a(m)
            for op in fill[i * per:(i + 1) * per]:
                a(op)

    stamp(a)
    a(f"s_waitcnt vmcnt({4 + pf}) lgkmcnt(0)")
    a("ds_read_b32 v180, v249 offset:508")
    a("ds_read_u16 v181, v249 offset:512")
    a("ds_read_b64 v[182:183], v250 offset:248")
    a("ds_read_u16 v184, v250 offset:256")
    a("ds_read_u16 v185, v243 offset:514")
    a("ds_read_u16 v186, v243 offset:516")
    a("v_mov_b32 v4, 0")
    a("v_mov_b32 v5, 0")
    a("v_mov_b32 v6, 0")
    a("v_mov_b32 v7, 0")
    a("ds_write_b128 v238, v[4:7]")
    a("s_and_b32 s44, s28, 1")
    a("s_lshl_b32 s45, s36, 16")
    a("s_and_b32 s36, s36, 0xffff0000")
    a("s_cmp_eq_u32 s44, 0")
    a("s_cselect_b32 s36, s45, s36")
    a("s_mov_b32 s37, s36")
    a("s_waitcnt lgkmcnt(5)")
    a("v_lshl_or_b32 v188, v181, 16, v181")
    a("v_perm_b32 v189, v180, v180, s42")
    a("v_alignbit_b32 v190, v180, v180, 16")
    a("v_perm_b32 v191, v180, v180, s43")
    a("v_mov_b32 v192, v188")
    a("v_bfi_b32 v193, s41, v181, v180")
    a("v_mov_b32 v194, v189")
    a("v_mov_b32 v195, v191")
    a("ds_write_b128 v248, v[188:191] offset:64")
    a(f"ds_write_b128 v248, v[192:195] offset:{CV_O + 64}")
    a("v_lshlrev_b32 v5, 16, v181")
    a("v_mov_b32 v6, v188")
    a("v_mov_b32 v7, v188")
    a("v_mov_b32 v8, 0")
    a("v_mov_b32 v9, 0")
    a("v_mov_b32 v196, 0")
    a("v_mov_b32 v197, 0")
    a("v_mov_b32 v198, v188")
    a("v_mov_b32 v199, v188")
    a("s_mov_b64 s[54:55], exec")
    a("s_mov_b64 exec, 1")
    a("ds_write_b128 v248, v[4:7] offset:48")
    a(f"ds_write_b128 v248, v[196:199] offset:{CV_O + 48}")
    a("s_mov_b64 exec, s[54:55]")
    a("s_waitcnt lgkmcnt(7)")
    a("v_bfi_b32 v200, s41, v184, v183")
    a("v_perm_b32 v201, v183, v183, s43")
    a("v_bfi_b32 v202, s41, v183, v182")
    a("v_perm_b32 v203, v182, v182, s43")
    a("v_lshl_or_b32 v204, v184, 16, v184")
    a("v_alignbit_b32 v205, v183, v183, 16")
    a("v_mov_b32 v206, v201")
    a("v_alignbit_b32 v207, v182, v182, 16")
    a("s_mov_b32 exec_hi, 0")
    a(f"ds_write_b128 v248, v[200:203] offset:{68*16}")
    a(f"ds_write_b128 v248, v[204:207] offset:{CV_O + 68*16}")
    a("s_mov_b64 exec, s[54:55]")
    a("s_waitcnt lgkmcnt(7)")
    a("ds_write_b16 v251, v186")
    a("ds_write_b16 v245, v186")
    a("ds_write_b16 v251, v185 offset:384")
    a("ds_write_b16 v245, v185 offset:384")
    a(f"s_waitcnt vmcnt({pf}) lgkmcnt(0)")
    a("s_barrier")
    stamp(a)
    for op in loads(0):
        a(op)
    for rho in range(7):
        a("s_waitcnt lgkmcnt(0)")
        fill = loads(rho + 1)
        mm = mfmas(rho)
        if rho == 2:
            fill = window_pack() + fill + far_loads(0)
        elif rho == 3:
            mm = far_mfmas(0) + mm
            fill = fill + far_loads(1)
        elif rho == 4:
            mm = far_mfmas(1) + mm
        elif rho == 6:
            fill = fill + [f"ds_read_b64 {vr(UREG+2*t,2)}, v246 offset:{4096*t}" for t in range(8)]
        spread(mm, fill)
    a("s_waitcnt lgkmcnt(0)")
    seq = {t: [mfma(7, i, t - i) for i in range(min(t, 3) + 1)] for t in range(8)}
    for op in seq[0] + seq[1] + seq[2] + seq[3]:
        a(op)
    spread(seq[4] + seq[5], tile_epilogue(0) + tile_epilogue(1))
    spread(seq[6] + seq[7], tile_epilogue(2) + tile_epilogue(3))
    stamp(a)
    for op in interleave(tile_epilogue(4), tile_epilogue(5)) + interleave(tile_epilogue(6), tile_epilogue(7)):
        a(op)
    stamp_end(a, 1, 8)
    a("s_endpgm")


def gen_relayout(a):
    a(f"s_load_dwordx2 s[4:5], s[0:1], {KA_WD}")
    a(f"s_load_dwordx2 s[8:9], s[0:1], {KA_WS}")
    a("v_and_b32 v1, 63, v0")
    a("v_lshrrev_b32 v2, 6, v0")
    a(f"s_sub_u32 s28, s2, {N_G1 + N_CV}")
    a("s_mul_i32 s28, s28, 88")
    a("v_readfirstlane_b32 s30, v2")
    a("v_lshlrev_b32 v3, 4, v1")
    a("s_add_u32 s28, s28, s30")
    a("s_lshr_b32 s31, s28, 1")
    a("s_and_b32 s31, s31, 1")
    a("s_lshl_b32 s31, s31, 2")
    a("v_and_b32 v4, 7, v1")
    a("v_xor_b32 v4, s31, v4")
    a("v_lshrrev_b32 v5, 3, v1")
    a(f"s_mov_b32 s32, {WDT_TILE}")
    a("v_mul_lo_u32 v5, v5, s32")
    a("v_lshl_add_u32 v4, v4, 4, v5")
    a("s_lshl_b32 s33, s28, 10")
    a("s_lshl_b32 s34, s28, 7")
    a("s_waitcnt lgkmcnt(0)")
    srd(a, 12, 4, W_BYTES)
    srd(a, 16, 8, 8 * WDT_TILE, WS_WDT)
    for i in range(11):
        a(f"buffer_load_dwordx4 {vr(8+4*i,4)}, v3, s[12:15], s33 offen")
        a("s_add_u32 s33, s33, 8192")
    for i in range(11):
        a(f"s_waitcnt vmcnt(10)")
        a(f"buffer_store_dwordx4 {vr(8+4*i,4)}, v4, s[16:19], s34 offen offset:{(i%4)*1024}" + WT["wdt"])
        if i % 4 == 3:
            a("s_add_u32 s34, s34, 4096")
    a("s_endpgm")


def gen_k2(a):
    a.raw(".p2align 8")
    a.label("k2_kernel")
    a(f"s_cmp_ge_u32 s2, {N_G1 + N_CV + N_RL}")
    a("s_cbranch_scc1 k2_exit")
    a(f"s_cmp_ge_u32 s2, {N_G1 + N_CV}")
    a("s_cbranch_scc1 k2_relayout")
    a(f"s_cmp_ge_u32 s2, {N_G1}")
    a("s_cbranch_scc1 k2_conv")
    gen_gemm1(a)
    a.label("k2_conv")
    gen_conv(a)
    a.label("k2_relayout")
    gen_relayout(a)
    a.label("k2_exit")
    a("s_endpgm")


N_G2 = 256
G2_NS = 8
G2_STAGE = 16384
G2_AT = G2_NS * G2_STAGE
K3_LDS = G2_AT + 8192
G2_NST = FP // 64
G2_LEAD = 4


def gen_k3(a):
    a.raw(".p2align 8")
    a.label("k3_kernel")
    a(f"s_cmp_ge_u32 s2, {N_G2}")
    a("s_cbranch_scc1 k3_exit")
    stamp_begin(a)
    a(f"s_load_dwordx2 s[4:5], s[0:1], {KA_U}")
    a(f"s_load_dwordx4 s[8:11], s[0:1], {KA_WD}")
    a(f"s_load_dwordx2 s[6:7], s[0:1], {KA_WS}")
    a("v_and_b32 v1, 63, v0")
    a("v_lshrrev_b32 v2, 6, v0")
    if G2_MAP == 0:
        a("s_and_b32 s32, s2, 7")
        a("s_lshr_b32 s33, s2, 3")
        a("s_lshl_b32 s32, s32, 8")
        a("s_and_b32 s35, s33, 3")
        a("s_lshl_b32 s35, s35, 6")
        a("s_add_u32 s32, s32, s35")
        a("s_lshr_b32 s33, s33, 2")
        a("s_lshl_b32 s33, s33, 6")
    else:
        a("s_and_b32 s32, s2, 6")
        a("s_lshr_b32 s33, s2, 3")
        a("s_lshl_b32 s32, s32, 8")
        a("s_and_b32 s35, s33, 7")
        a("s_lshl_b32 s35, s35, 6")
        a("s_add_u32 s32, s32, s35")
        a("s_lshr_b32 s33, s33, 3")
        a("s_and_b32 s35, s2, 1")
        a("s_lshl_b32 s35, s35, 2")
        a("s_add_u32 s33, s33, s35")
        a("s_lshl_b32 s33, s33, 6")
    a("v_readfirstlane_b32 s34, v2")
    a("s_cmp_lt_u32 s34, 4")
    a("s_cbranch_scc1 k3_compute")
    a("s_sub_u32 s34, s34, 4")
    a("v_lshrrev_b32 v3, 3, v1")
    a("v_and_b32 v4, 7, v1")
    a("v_lshrrev_b32 v5, 4, v1")
    a(f"v_mul_u32_u24 v7, {H_STRIDE}, v3")
    a("s_lshl_b32 s36, s34, 2")
    a("v_add_u32 v6, s36, v5")
    a("v_and_b32 v6, 7, v6")
    a("v_xor_b32 v6, v6, v4")
    a("v_lshl_add_u32 v8, v6, 4, v7")
    a("v_and_b32 v6, 1, v5")
    a("v_lshlrev_b32 v6, 2, v6")
    a("v_xor_b32 v6, v6, v4")
    a("v_lshlrev_b32 v6, 4, v6")
    a("v_lshlrev_b32 v10, 4, v1")
    a("v_lshl_add_u32 v12, v3, 12, v6")
    a("s_lshl_b32 s36, s34, 3")
    a("s_add_u32 s37, s36, s32")
    a(f"s_mul_i32 s37, s37, {H_STRIDE}")
    a(f"s_mul_i32 s38, s33, {WDT_TILE // 64}")
    a("s_lshl_b32 s39, s34, 10")
    a("s_add_u32 s38, s38, s39")
    a("s_add_u32 s39, s36, s33")
    a("s_lshl_b32 s39, s39, 12")
    a("s_lshl_b32 s40, s32, 1")
    a("s_add_u32 s39, s39, s40")
    a("s_lshl_b32 s40, s34, 10")
    a("s_waitcnt lgkmcnt(0)")
    srd(a, 16, 6, 8 * WDT_TILE, WS_WDT)
    srd(a, 12, 6, H_BYTES, WS_H)
    srd(a, 20, 6, L * D * 2, WS_AT)

    def dma(stage):
        b = (stage % G2_NS) * G2_STAGE
        a(f"s_add_u32 m0, s40, {b+8192}")
        a("s_nop 0")
        a("buffer_load_dwordx4 v10, s[16:19], s38 offen lds")
        a(f"s_add_u32 m0, s40, {b}")
        a("s_add_u32 s38, s38, 8192")
        a("buffer_load_dwordx4 v8, s[12:15], s37 offen lds")
        a("s_add_u32 s37, s37, 128")

    AT_AFTER = 3
    issued = 0
    for st in range(G2_NST):
        want = min(G2_NST - 1, 2 * st + 2, st + G2_LEAD)
        while issued <= want:
            dma(issued)
            if issued == AT_AFTER:
                a(f"s_add_u32 m0, s40, {G2_AT}")
                a("s_nop 0")
                a("buffer_load_dwordx4 v12, s[20:23], s39 offen lds")
            issued += 1
        vm = 2 * (issued - 1 - st) + (1 if st <= AT_AFTER < issued else 0)
        if st in (0, 8, 16):
            stamp(a)
        a(f"s_waitcnt vmcnt({vm})")
        a("s_barrier")
    stamp_end(a, 2, 6)
    a("s_endpgm")
    a.label("k3_compute")
    if PRIO:
        a(f"s_setprio {PRIO}")
    _stamp_n[0] = 1 if PROF else 0
    a("s_and_b32 s41, s34, 1")
    a("s_lshr_b32 s42, s34, 1")
    a("v_and_b32 v3, 31, v1")
    a("v_lshrrev_b32 v4, 5, v1")
    a("s_lshl_b32 s43, s41, 5")
    a("s_add_u32 s43, s43, s32")
    a("v_add_u32 v14, s43, v3")
    a("v_lshlrev_b32 v14, 10, v14")
    a("v_lshl_add_u32 v14, v4, 5, v14")
    a("s_lshl_b32 s44, s42, 5")
    a("s_add_u32 s44, s44, s33")
    a("s_lshl_b32 s44, s44, 1")
    a("v_lshrrev_b32 v5, 1, v3")
    a("v_and_b32 v5, 7, v5")
    a("v_xor_b32 v5, v5, v4")
    a("v_lshlrev_b32 v6, 7, v3")
    a("s_lshl_b32 s45, s41, 12")
    a("v_add_u32 v6, s45, v6")
    for ks in range(4):
        a(f"v_xor_b32 v7, {2*ks}, v5")
        a(f"v_lshl_add_u32 v{16+ks}, v7, 4, v6")
    a("v_and_b32 v5, 15, v1")
    a("v_lshrrev_b32 v6, 2, v5")
    a("v_and_b32 v5, 3, v5")
    a("v_lshrrev_b32 v7, 4, v1")
    a("v_and_b32 v7, 1, v7")
    a("v_lshlrev_b32 v21, 3, v5")
    a("v_lshl_add_u32 v21, v7, 5, v21")
    a("v_lshrrev_b32 v22, 1, v6")
    a("v_xor_b32 v23, s41, v22")
    a("v_lshl_add_u32 v21, v23, 6, v21")
    a("v_lshl_add_u32 v23, v4, 4, v6")
    a("v_lshl_add_u32 v21, v23, 7, v21")
    a("s_lshl_b32 s45, s42, 12")
    a(f"s_add_u32 s45, s45, {G2_AT}")
    a("v_add_u32 v21, s45, v21")
    a("v_and_b32 v15, 1, v5")
    a("v_lshlrev_b32 v15, 5, v15")
    a("v_lshl_add_u32 v15, v7, 4, v15")
    a("v_lshrrev_b32 v5, 1, v5")
    a("v_lshl_add_u32 v15, v5, 3, v15")
    a("v_xor_b32 v22, s42, v22")
    a("v_lshl_add_u32 v15, v22, 6, v15")
    a("v_lshl_add_u32 v6, v4, 3, v6")
    a("v_lshl_add_u32 v15, v6, 7, v15")
    a("v_add_u32 v20, 8192, v15")
    a("s_waitcnt lgkmcnt(0)")
    srd(a, 24, 4, L * D * 2)
    srd(a, 28, 10, L * D * 2)
    a("buffer_load_dwordx4 v[24:27], v14, s[24:27], s44 offen")
    a("buffer_load_dwordx4 v[28:31], v14, s[24:27], s44 offen offset:16")

    ACC = 32
    FS = [48, 80]
    XA = 112
    ATR = 128
    AT_ST = 10

    def reads(st):
        f = FS[st & 1]
        o = (st % 4) * G2_STAGE
        out = []
        for ks in range(4):
            out.append(f"ds_read_b64_tr_b16 {vr(f+8*ks,2)}, v20 offset:{o+ks*2048}")
            out.append(f"ds_read_b64_tr_b16 {vr(f+8*ks+2,2)}, v20 offset:{o+ks*2048+512}")
            out.append(f"ds_read_b128 {vr(f+8*ks+4,4)}, v{16+ks} offset:{o}")
        return out

    def mfmas(st):
        f = FS[st & 1]
        c = vr(ACC, 16)
        return [f"v_mfma_f32_32x32x16_bf16 {c}, {vr(f+8*ks,4)}, {vr(f+8*ks+4,4)}, "
                f"{'0' if st == 0 and ks == 0 else c}" for ks in range(4)]

    def xa_ops(k):
        x, t = XA + 2 * k, 4
        return [f"v_lshlrev_b32 v{x}, 16, v{24+k}",
                f"v_and_b32 v{x+1}, 0xffff0000, v{24+k}",
                f"v_lshlrev_b32 v{t}, 16, v{ATR+k}",
                f"v_and_b32 v{t+1}, 0xffff0000, v{ATR+k}",
                f"v_pk_add_f32 {vr(x,2)}, {vr(x,2)}, {vr(t,2)}",
                f"v_cvt_pk_bf16_f32 v{x+1}, v{x}, v{x+1}",
                f"v_lshlrev_b32 v{x}, 16, v{x+1}",
                f"v_and_b32 v{x+1}, 0xffff0000, v{x+1}"]

    for st in range(-1, G2_NST):
        nx = st + 1
        body = []
        if nx < G2_NST:
            if nx in (0, 8, 16):
                stamp(a)
            a("s_waitcnt lgkmcnt(0)" if nx != AT_ST + 1 else "s_waitcnt vmcnt(0) lgkmcnt(0)")
            a("s_barrier")
            if nx and nx % 4 == 0:
                delta = 65536 if (nx % G2_NS) == 4 else -65536
                for r in (16, 17, 18, 19, 20):
                    a(f"v_add_u32 v{r}, {delta & 0xffffffff:#x}, v{r}")
            body = reads(nx)
            if nx == AT_ST:
                body += [f"ds_read_b64_tr_b16 {vr(ATR+2*i,2)}, v21 offset:{512*i}" for i in range(4)]
        else:
            a("s_waitcnt lgkmcnt(0)")
        if st >= 0:
            body = interleave(body, mfmas(st), every=3) if body else mfmas(st)
        if AT_ST < nx <= AT_ST + 4:
            k = 2 * (nx - AT_ST - 1)
            body += xa_ops(k) + xa_ops(k + 1)
        for op in body:
            a(op)
    a("s_nop 15")
    stamp(a)
    for k in range(8):
        a(f"v_cvt_pk_bf16_f32 v{48+k}, v{ACC+2*k}, v{ACC+2*k+1}")
    for k in range(8):
        a(f"v_lshlrev_b32 v{ACC+2*k}, 16, v{48+k}")
        a(f"v_and_b32 v{ACC+2*k+1}, 0xffff0000, v{48+k}")
    for k in range(8):
        a(f"v_pk_add_f32 {vr(ACC+2*k,2)}, {vr(ACC+2*k,2)}, {vr(XA+2*k,2)}")
    for k in range(8):
        a(f"v_cvt_pk_bf16_f32 v{56+k}, v{ACC+2*k}, v{ACC+2*k+1}")
        if k == 3:
            a("buffer_store_dwordx4 v[56:59], v14, s[28:31], s44 offen" + WT["out"])
    a("buffer_store_dwordx4 v[60:63], v14, s[28:31], s44 offen offset:16" + WT["out"])
    stamp_end(a, 2, 6)
    a.label("k3_exit")
    a("s_endpgm")


def gen_k4(a):
    a.raw(".p2align 8")
    a.label("k4_kernel")
    a("s_cmp_ge_u32 s2, 1")
    a("s_cbranch_scc1 k4_exit")
    a(f"s_load_dwordx4 s[4:7], s[0:1], {KA_DBG}")
    a("s_memrealtime s[20:21]")
    a("s_waitcnt lgkmcnt(0)")
    srd(a, 8, 6, 0x1000000, PROF_BASE)
    srd(a, 12, 4, 256)
    groups = [(0, 0, 256, 0, 4), (0, 0, 256, 4, 8), (1, 0, 176, 0, 4), (1, 176, 240, 0, 8), (2, 0, 256, 0, 4)]
    for gi, (l, lo, hi, w0, w1) in enumerate(groups):
        a("v_mov_b32 v4, -1")
        a("v_mov_b32 v5, 0")
        for base in range(lo, hi, 64):
            n = min(64, hi - base)
            a(f"v_min_u32 v2, {n-1}, v0")
            a(f"v_add_u32 v2, {l*512 + base}, v2")
            a("v_lshlrev_b32 v2, 10, v2")
            for w in range(w0, w1):
                a(f"buffer_load_dwordx2 {vr(8+2*(w-w0),2)}, v2, s[8:11], 0 offen offset:{64*w}")
            a("s_waitcnt vmcnt(0)")
            for w in range(w0, w1):
                a(f"v_min_u32 v4, v4, v{8+2*(w-w0)}")
                a(f"v_max_u32 v5, v5, v{9+2*(w-w0)}")
        a("s_mov_b32 s22, -1")
        a("s_mov_b32 s23, 0")
        for ln in range(64):
            a(f"v_readlane_b32 s24, v4, {ln}")
            a(f"v_readlane_b32 s25, v5, {ln}")
            a("s_nop 1")
            a("s_min_u32 s22, s22, s24")
            a("s_max_u32 s23, s23, s25")
        a(f"s_mov_b32 s{30+2*gi}, s22")
        a(f"s_mov_b32 s{31+2*gi}, s23")
    a("v_mov_b32 v3, 0")
    for i in range(10):
        a(f"s_sub_u32 s24, s{30+i}, s30")
        a("v_mov_b32 v6, s24")
        a(f"buffer_store_dword v6, v3, s[12:15], 0 offen offset:{4*i}")
        a("s_nop 1")
    a("s_sub_u32 s24, s20, s30")
    a("v_mov_b32 v6, s24")
    a("buffer_store_dword v6, v3, s[12:15], 0 offen offset:40")
    if SPIN:
        hi, lo = SPIN
        a("s_max_u32 s31, s31, s33")
        a("s_min_u32 s34, s34, s36")
        a("s_max_u32 s35, s35, s37")
        a(f"s_sub_u32 s24, s{hi}, s{lo}")
        a("s_min_u32 s24, s24, 3000")
        a("s_lshl_b32 s24, s24, 2")
        a("s_memrealtime s[26:27]")
        a("s_waitcnt lgkmcnt(0)")
        a("s_add_u32 s24, s24, s26")
        a.label("k4_spin")
        a("s_memrealtime s[26:27]")
        a("s_waitcnt lgkmcnt(0)")
        a("s_sub_u32 s25, s24, s26")
        a("s_cmp_gt_i32 s25, 0")
        a("s_cbranch_scc1 k4_spin")
    a.label("k4_exit")
    a("s_endpgm")


def descriptor(name, vgpr, sgpr):
    acc = (vgpr + 3) // 4 * 4
    return f""".p2align 6
.amdhsa_kernel {name}
  .amdhsa_next_free_vgpr {vgpr}
  .amdhsa_next_free_sgpr {sgpr}
  .amdhsa_accum_offset {acc}
  .amdhsa_group_segment_fixed_size 0
  .amdhsa_kernarg_size 112
  .amdhsa_user_sgpr_count 2
  .amdhsa_user_sgpr_kernarg_segment_ptr 1
  .amdhsa_system_sgpr_workgroup_id_x 1
.end_amdhsa_kernel
"""


def main(path):
    a = Asm()
    a.raw(f"; @launch kernel=k1_kernel grid=({N_K1},1,1) block=(512,1,1) lds={K1_LDS}")
    a.raw(f"; @launch kernel=k2_kernel grid=({N_G1+N_CV+N_RL},1,1) block=(512,1,1) lds={K2_LDS}")
    a.raw(f"; @launch kernel=k3_kernel grid=({N_G2},1,1) block=(768,1,1) lds={K3_LDS}")
    if K4:
        a.raw("; @launch kernel=k4_kernel grid=(1,1,1) block=(64,1,1) lds=0")
    a.raw('.amdgcn_target "amdgcn-amd-amdhsa--gfx950"')
    a.raw(".text")
    for k in ("k1_kernel", "k2_kernel", "k3_kernel") + (("k4_kernel",) if K4 else ()):
        a.raw(f".globl {k}")
        a.raw(f".type {k},@function")
    gen_k1(a)
    gen_k2(a)
    gen_k3(a)
    a.label("code_end")
    if K4:
        gen_k4(a)
    a.raw('.section .rodata,"a"')
    if K4:
        a.raw(descriptor("k4_kernel", 32, 48))
    sg = 102 if PROF else 0
    a.raw(descriptor("k1_kernel", 164, max(sg, 74)))
    a.raw(descriptor("k2_kernel", 256, max(sg, 56)))
    a.raw(descriptor("k3_kernel", 136, max(sg, 56)))
    open(path, "w").write(a.text())


if __name__ == "__main__":
    for arg in list(sys.argv):
        if arg.startswith("--prio="):
            PRIO = int(arg[7:])
            sys.argv.remove(arg)
        if arg.startswith("--g2map="):
            G2_MAP = int(arg[8:])
            sys.argv.remove(arg)
        if arg.startswith("--lead="):
            G2_LEAD = int(arg[7:])
            sys.argv.remove(arg)
        if arg.startswith("--spin="):
            SPIN = tuple(int(x) for x in arg[7:].split(","))
            sys.argv.remove(arg)
        if arg.startswith("--wt="):
            flag, names = arg[5:].split(":")
            for nm in names.split(","):
                WT[nm] = " " + flag.replace("+", " ")
            sys.argv.remove(arg)
        if arg.startswith("--epi="):
            EPI = arg[6:]
            sys.argv.remove(arg)
    if "--nocodepf" in sys.argv:
        sys.argv.remove("--nocodepf")
        CODE_PF = False
    if "--notouch" in sys.argv:
        sys.argv.remove("--notouch")
        TOUCH = False
    if "--k4" in sys.argv:
        sys.argv.remove("--k4")
        K4 = PROF = True
    if "--prof" in sys.argv:
        sys.argv.remove("--prof")
        PROF = True
    main(sys.argv[1] if len(sys.argv) > 1 else f"cdna_kernels/{NAME}.s")
```

```python
import struct
import sys

NAME = "parallel_sum__ssm_conv_s4d__glu_gated_reglu__prompt"

L, D, N, F = 2048, 512, 128, 1376
FP = 1408
WS_XN = 0x000000
WS_XNT = 0x240000
WS_KR = 0x480000
WS_H = 0x880000
WS_AT = 0xE80000
XN_STRIDE = 1024 + 128
XN_BYTES = L * XN_STRIDE
H_STRIDE = 2 * FP + 128
H_BYTES = L * H_STRIDE
XNT_STRIDE = 8192 + 128
XNT_BYTES = (L // 8) * XNT_STRIDE
W_BYTES = D * F * 2
WS_WDT = WS_AT + L * D * 2
WDT_TILE = FP * 128
WS_END = WS_WDT + 8 * WDT_TILE
TOUCH = False
CODE_PF = True
PRIO = 0
G2_MAP = 0
G1_MAP = True
EPI = "dot"
WT = dict(xn="", xnt="", k="", at="", wdt="", h="", out="")

KA_U, KA_LAR, KA_AI, KA_CR, KA_CI, KA_LDT, KA_DSK, KA_BX, KA_WG, KA_WU, KA_WD, KA_OUT, KA_DBG, KA_WS = \
    [8 * i for i in range(14)]


def f32(x):
    return "0x%08x" % struct.unpack("<I", struct.pack("<f", x))[0]


class Asm:
    def __init__(self):
        self.lines = []

    def __call__(self, s):
        for ln in s.strip("\n").split("\n"):
            self.lines.append("  " + ln.strip())

    def label(self, s):
        self.lines.append(s + ":")

    def raw(self, s):
        self.lines.append(s)

    def text(self):
        return "\n".join(self.lines) + "\n"


PROF = False
K4 = False
SPIN = None
PROF_BASE = 0x1400000
_stamp_n = [0]


def stamp_begin(a):
    _stamp_n[0] = 0
    if PROF:
        a("s_memrealtime s[80:81]")
        a("s_memtime s[82:83]")
        _stamp_n[0] = 1


def stamp(a):
    if PROF:
        k = _stamp_n[0]
        a(f"s_memtime s[{82+2*k}:{83+2*k}]")
        _stamp_n[0] += 1


def stamp_end(a, launch, ws_lo):
    if not PROF:
        return
    stamp(a)
    n = _stamp_n[0]
    a("s_waitcnt lgkmcnt(0)")
    a("s_memrealtime s[98:99]")
    a(f"s_add_u32 s76, s{ws_lo}, {PROF_BASE}")
    a(f"s_addc_u32 s77, s{ws_lo+1}, 0")
    a("s_mov_b32 s78, 0x1000000")
    a("s_mov_b32 s79, 0x00020000")
    a("v_lshrrev_b32 v2, 6, v0")
    a(f"s_add_u32 s75, s2, {launch*512}")
    a("s_lshl_b32 s75, s75, 10")
    a("v_lshlrev_b32 v2, 6, v2")
    a("v_add_u32 v2, s75, v2")
    a("s_waitcnt lgkmcnt(0)")
    a("v_mov_b32 v4, s80")
    a("v_mov_b32 v5, s98")
    a("buffer_store_dwordx2 v[4:5], v2, s[76:79], 0 offen")
    for k in range(n):
        a(f"v_mov_b32 v6, s{82+2*k}")
        a(f"buffer_store_dword v6, v2, s[76:79], 0 offen offset:{8+4*k}")
        a("s_nop 1")


def vr(b, n):
    return "v[%d:%d]" % (b, b + n - 1)


def sr(b, n):
    return "s[%d:%d]" % (b, b + n - 1)


def srd(a, dst, base, nbytes, add=0):
    if add:
        a(f"s_add_u32 s{dst}, s{base}, {add}")
        a(f"s_addc_u32 s{dst+1}, s{base+1}, 0")
    else:
        a(f"s_mov_b32 s{dst}, s{base}")
        a(f"s_mov_b32 s{dst+1}, s{base+1}")
    a(f"s_mov_b32 s{dst+2}, {nbytes}")
    a(f"s_mov_b32 s{dst+3}, 0x00020000")


_pc_n = [0]


def code_prefetch(a, lo, hi, slice_sgpr, lane16, dst, sbase):
    _pc_n[0] += 1
    lab = f"pc_ref{_pc_n[0]}"
    a(f"s_getpc_b64 {sr(sbase,2)}")
    a.label(lab)
    a(f"s_add_u32 s{sbase}, s{sbase}, ({lo} - {lab}) & 0xffffffff")
    a(f"s_addc_u32 s{sbase+1}, s{sbase+1}, (({lo} - {lab}) >> 32) & 0xffffffff")
    a(f"s_mov_b32 s{sbase+2}, {hi} - {lo}")
    a(f"s_mov_b32 s{sbase+3}, 0x00020000")
    a(f"s_lshl_b32 s{slice_sgpr}, s{slice_sgpr}, 10")
    a(f"buffer_load_dwordx4 {vr(dst,4)}, v{lane16}, {sr(sbase,4)}, s{slice_sgpr} offen")


def interleave(main, fill, every=1, start=0):
    out = []
    fill = list(fill)
    for i, m in enumerate(main):
        out.append(m)
        if i >= start and (i - start) % every == every - 1 and fill:
            out.append(fill.pop(0))
    out.extend(fill)
    return out


N_K1 = 256
LN_STRIDE = 1088
KG_ROW = 544
KG_XA, KG_YB, KG_T = 0, 24 * KG_ROW, 56 * KG_ROW
KG_CH = KG_T + 3072
LN_LDS = 2 * KG_CH
K1_LDS = LN_LDS + 8 * LN_STRIDE
LOG2E = 1.4426950408889634
L_HI = 47274.0 / 32768.0
C_LO = (LOG2E - L_HI) * 0.6931471805599453
T_BIAS = 0x3F7F
KT_BYTES = 3072
KT_O, KT_TAB = 1024, 2048
PF_W = 6


def dpp_reduce(a, regs):
    steps = ["row_shr:1 row_mask:0xf bank_mask:0xf bound_ctrl:0",
             "row_shr:2 row_mask:0xf bank_mask:0xf bound_ctrl:0",
             "row_shr:4 row_mask:0xf bank_mask:0xf bound_ctrl:0",
             "row_shr:8 row_mask:0xf bank_mask:0xf bound_ctrl:0",
             "row_bcast:15 row_mask:0xa bank_mask:0xf",
             "row_bcast:31 row_mask:0xc bank_mask:0xf"]
    a("s_nop 1")
    for st in steps:
        for r in regs:
            a(f"v_add_f32_dpp v{r}, v{r}, v{r} {st}")
    a("s_nop 1")


def bf16_round(a, dst, src):
    a(f"v_cvt_pk_bf16_f32 v{dst}, v{src}, v{src}")
    a(f"v_lshlrev_b32 v{dst}, 16, v{dst}")


def gen_ln(a):
    stamp_begin(a)
    if CODE_PF:
        a("v_lshlrev_b32 v3, 4, v1")
        a("s_lshr_b32 s45, s2, 3")
        a("s_lshl_b32 s45, s45, 1")
        a("s_sub_u32 s46, s44, 6")
        a("s_add_u32 s45, s45, s46")
        a("s_cmp_lt_u32 s44, 6")
        a("s_cbranch_scc1 k1_no_pf")
        code_prefetch(a, "k1_kernel", "code_end", 45, 3, 76, 56)
        a("s_branch k1_pf_done")
        a.label("k1_no_pf")
        a("s_nop 0")
        a.label("k1_pf_done")
    a(f"s_load_dwordx2 s[4:5], s[0:1], {KA_U}")
    a(f"s_load_dwordx2 s[6:7], s[0:1], {KA_WS}")
    a(f"s_load_dwordx4 s[48:51], s[0:1], {KA_WG}")
    a(f"s_load_dwordx4 s[68:71], s[0:1], {KA_WD}")
    a(f"s_load_dwordx2 s[54:55], s[0:1], {KA_DSK}")
    a("s_sub_u32 s22, s44, 4")
    a("s_and_b32 s20, s2, 7")
    a("s_lshr_b32 s21, s2, 3")
    a("s_lshl_b32 s20, s20, 8")
    a("s_lshl_b32 s23, s21, 3")
    a("s_add_u32 s20, s20, s23")
    a("s_lshl_b32 s23, s22, 1")
    a("s_add_u32 s23, s23, s20")
    a("s_lshl_b32 s24, s23, 10")
    a(f"s_mul_i32 s53, s23, {XN_STRIDE}")
    a("v_lshlrev_b32 v3, 4, v1")
    a("s_lshl_b32 s52, s2, 2")
    a("s_add_u32 s52, s52, s22")
    a("s_lshl_b32 s52, s52, 11")
    a(f"s_mul_i32 s25, s22, {2*LN_STRIDE}")
    a(f"s_add_u32 s25, s25, {LN_LDS}")
    a("v_add_u32 v4, s25, v3")
    a("v_and_b32 v5, 15, v1")
    a("v_lshrrev_b32 v6, 2, v5")
    a("v_and_b32 v5, 3, v5")
    a("v_lshrrev_b32 v7, 4, v1")
    a(f"v_mul_u32_u24 v6, {LN_STRIDE}, v6")
    a("v_lshlrev_b32 v5, 3, v5")
    a("v_lshl_add_u32 v5, v7, 5, v5")
    a("v_add_u32 v5, v5, v6")
    a("s_lshl_b32 s26, s22, 8")
    a(f"s_add_u32 s26, s26, {LN_LDS}")
    a("v_add_u32 v5, s26, v5")
    a("s_lshl_b32 s27, s22, 7")
    a("v_add_u32 v6, s27, v1")
    a("v_lshlrev_b32 v6, 4, v6")
    a(f"s_mul_i32 s28, s20, {XNT_STRIDE // 8}")
    a("s_waitcnt lgkmcnt(0)")
    srd(a, 8, 4, L * D * 2)
    for r in range(2):
        a(f"buffer_load_dwordx4 {vr(8+4*r,4)}, v3, s[8:11], s24 offen offset:{r*1024}")
    srd(a, 56, 48, W_BYTES)
    srd(a, 60, 50, W_BYTES)
    srd(a, 64, 68, W_BYTES)
    if TOUCH:
        a("s_cmp_ge_u32 s2, 16")
        a("s_cbranch_scc1 k1_no_touch")
        srd(a, 12, 6, WS_END)
        srd(a, 16, 70, L * D * 2)
        a("v_lshlrev_b32 v60, 18, v1")
        a("s_lshl_b32 s45, s22, 16")
        a("buffer_load_dword v61, v60, s[12:15], s45 offen")
        a("v_lshlrev_b32 v60, 15, v1")
        a(f"s_mov_b32 s45, {1 << 24}")
        a("buffer_load_dword v61, v60, s[12:15], s45 offen")
        a("buffer_load_dword v61, v60, s[16:19], 0 offen")
        srd(a, 16, 54, D * 2)
        a("buffer_load_dword v61, v3, s[16:19], 0 offen")
        for i in range(2):
            a(f"buffer_load_dwordx4 v[72:75], v3, s[56:59], s52 offen offset:{i*1024}")
        a("s_branch k1_touched")
        a.label("k1_no_touch")
    for i in range(2):
        for b in (56, 60, 64):
            a(f"buffer_load_dwordx4 v[72:75], v3, {sr(b,4)}, s52 offen offset:{i*1024}")
    if TOUCH:
        a.label("k1_touched")
    srd(a, 12, 6, XN_BYTES, WS_XN)
    srd(a, 16, 6, XNT_BYTES, WS_XNT)
    X = lambda r, e: 32 + 8 * r + e
    stamp(a)
    for r in range(2):
        a(f"s_waitcnt vmcnt({PF_W + 1 - r})")
        if r == 0:
            stamp(a)
        for k in range(4):
            a(f"v_lshlrev_b32 v{X(r,2*k)}, 16, v{8+4*r+k}")
            a(f"v_and_b32 v{X(r,2*k+1)}, 0xffff0000, v{8+4*r+k}")
        a(f"v_readfirstlane_b32 s{30+2*r}, v{X(r,0)}")
        a(f"v_pk_add_f32 v[48:49], {vr(X(r,0),2)}, {vr(X(r,2),2)}")
        a(f"v_pk_add_f32 v[50:51], {vr(X(r,4),2)}, {vr(X(r,6),2)}")
        a(f"s_mov_b32 s{31+2*r}, s{30+2*r}")
        a("v_pk_add_f32 v[48:49], v[48:49], v[50:51]")
        for k in range(4):
            a(f"v_pk_add_f32 {vr(52+2*k,2)}, {vr(X(r,2*k),2)}, {sr(30+2*r,2)} neg_lo:[0,1] neg_hi:[0,1]")
        a(f"v_add_f32 v{24+2*r}, v48, v49")
        a("v_pk_mul_f32 v[50:51], v[52:53], v[52:53]")
        a("v_pk_mul_f32 v[48:49], v[54:55], v[54:55]")
        a("v_pk_fma_f32 v[50:51], v[56:57], v[56:57], v[50:51]")
        a("v_pk_fma_f32 v[48:49], v[58:59], v[58:59], v[48:49]")
        a("v_pk_add_f32 v[48:49], v[48:49], v[50:51]")
        a(f"v_add_f32 v{25+2*r}, v48, v49")
    dpp_reduce(a, [24, 25, 26, 27])
    for r in range(2):
        a(f"v_mul_f32 v{24+2*r}, {f32(1.0/512)}, v{24+2*r}")
        a(f"v_mul_f32 v{25+2*r}, {f32(1.0/512)}, v{25+2*r}")
    for r in range(2):
        a(f"v_subrev_f32 v{28+r}, s{30+2*r}, v{24+2*r}")
        bf16_round(a, 24 + 2 * r, 24 + 2 * r)
    for r in range(2):
        a(f"v_fma_f32 v{25+2*r}, -v{28+r}, v{28+r}, v{25+2*r}")
        a(f"v_max_f32 v{25+2*r}, 0, v{25+2*r}")
    for r in range(2):
        bf16_round(a, 25 + 2 * r, 25 + 2 * r)
    for r in range(2):
        a(f"v_add_f32 v{25+2*r}, {f32(1e-5)}, v{25+2*r}")
        a(f"v_readlane_b32 s{36+2*r}, v{24+2*r}, 63")
    for r in range(2):
        bf16_round(a, 25 + 2 * r, 25 + 2 * r)
    for r in range(2):
        a(f"v_sqrt_f32 v{25+2*r}, v{25+2*r}")
    for r in range(2):
        a(f"s_mov_b32 s{37+2*r}, s{36+2*r}")
    for r in range(2):
        bf16_round(a, 25 + 2 * r, 25 + 2 * r)
    for r in range(2):
        a(f"v_rcp_f32 v{25+2*r}, v{25+2*r}")
    for r in range(2):
        for k in range(4):
            a(f"v_pk_add_f32 {vr(X(r,2*k),2)}, {vr(X(r,2*k),2)}, {sr(36+2*r,2)} neg_lo:[0,1] neg_hi:[0,1]")
    for r in range(2):
        a(f"v_readlane_b32 s{40+2*r}, v{25+2*r}, 63")
    for r in range(2):
        for k in range(4):
            a(f"v_cvt_pk_bf16_f32 v{8+4*r+k}, v{X(r,2*k)}, v{X(r,2*k+1)}")
    for r in range(2):
        a(f"s_mov_b32 s{41+2*r}, s{40+2*r}")
    for r in range(2):
        for k in range(4):
            a(f"v_lshlrev_b32 v{X(r,2*k)}, 16, v{8+4*r+k}")
            a(f"v_and_b32 v{X(r,2*k+1)}, 0xffff0000, v{8+4*r+k}")
        for k in range(4):
            a(f"v_pk_mul_f32 {vr(X(r,2*k),2)}, {vr(X(r,2*k),2)}, {sr(40+2*r,2)}")
        for k in range(4):
            a(f"v_cvt_pk_bf16_f32 v{16+4*r+k}, v{X(r,2*k)}, v{X(r,2*k+1)}")
        a(f"ds_write_b128 v4, {vr(16+4*r,4)} offset:{r*LN_STRIDE}")
        a(f"buffer_store_dwordx4 {vr(16+4*r,4)}, v3, s[12:15], s53 offen offset:{r*XN_STRIDE}" + WT["xn"])
    a("s_waitcnt lgkmcnt(0)")
    stamp(a)
    a("s_barrier")
    for blk in range(2):
        for tb in range(2):
            a(f"ds_read_b64_tr_b16 {vr(32+4*blk+2*tb,2)}, v5 offset:{blk*128 + tb*4*LN_STRIDE}")
    a("s_waitcnt lgkmcnt(2)")
    a("buffer_store_dwordx4 v[32:35], v6, s[16:19], s28 offen" + WT["xnt"])
    a("s_waitcnt lgkmcnt(0)")
    a("buffer_store_dwordx4 v[36:39], v6, s[16:19], s28 offen offset:1024" + WT["xnt"])
    stamp_end(a, 0, 6)
    a("s_endpgm")


def exp_acc(a, dst, x, t):
    a(f"v_mul_f32 v{dst}, {f32(L_HI)}, v{x}")
    a(f"v_exp_f32 v{dst}, v{dst}")
    a(f"v_mul_f32 v{t}, {f32(C_LO)}, v{x}")
    a(f"v_fma_f32 v{dst}, v{dst}, v{t}, v{dst}")


def cmul(t, z, w):
    return [f"v_pk_mul_f32 {vr(t,2)}, {vr(z,2)}, {vr(w,2)} op_sel:[0,0] op_sel_hi:[1,0]",
            f"v_pk_fma_f32 {vr(t,2)}, {vr(z,2)}, {vr(w,2)}, {vr(t,2)} op_sel:[1,1,0] op_sel_hi:[0,1,1] "
            f"neg_lo:[1,0,0]"]


def gen_kgen(a):
    stamp_begin(a)
    a(f"s_load_dwordx8 s[4:11], s[0:1], {KA_LAR}")
    a(f"s_load_dwordx2 s[12:13], s[0:1], {KA_LDT}")
    a(f"s_load_dwordx2 s[14:15], s[0:1], {KA_WS}")
    a("s_and_b32 s41, s2, 7")
    a("s_lshr_b32 s42, s2, 3")
    a("s_lshr_b32 s43, s42, 2")
    a("s_lshl_b32 s43, s43, 6")
    a("s_lshl_b32 s41, s41, 3")
    a("s_add_u32 s41, s41, s43")
    a("s_and_b32 s42, s42, 3")
    a("s_lshl_b32 s42, s42, 1")
    a("s_add_u32 s41, s41, s42")
    a("s_lshr_b32 s45, s44, 1")
    a("s_and_b32 s46, s44, 1")
    a("s_add_u32 s47, s41, s45")
    a("s_lshl_b32 s48, s46, 6")
    a("v_add_u32 v3, s48, v1")
    a("s_lshl_b32 s49, s47, 8")
    a("v_lshlrev_b32 v4, 1, v3")
    a("s_lshl_b32 s50, s47, 1")
    a("v_mov_b32 v5, s50")
    a("s_waitcnt lgkmcnt(0)")
    srd(a, 16, 4, D * N * 2)
    srd(a, 32, 12, D * 2)
    a("buffer_load_ushort v8, v4, s[16:19], s49 offen")
    a("buffer_load_ushort v12, v5, s[32:35], 0 offen")
    srd(a, 20, 6, D * N * 2)
    a("buffer_load_ushort v9, v4, s[20:23], s49 offen")
    srd(a, 24, 8, D * N * 2)
    a("buffer_load_ushort v10, v4, s[24:27], s49 offen")
    srd(a, 28, 10, D * N * 2)
    a("buffer_load_ushort v11, v4, s[28:31], s49 offen")
    srd(a, 36, 14, D * KT_BYTES, WS_KR)
    a(f"s_mul_i32 s51, s45, {KG_CH}")
    a("v_lshlrev_b32 v6, 2, v3")
    a("v_add_u32 v6, s51, v6")
    a("v_and_b32 v7, 15, v1")
    a("v_lshrrev_b32 v2, 4, v1")
    a(f"v_mul_u32_u24 v13, {KG_ROW}, v7")
    a("v_lshl_add_u32 v13, v2, 4, v13")
    a("v_add_u32 v100, s51, v13")
    a(f"s_mul_i32 s52, s46, {16*KG_ROW}")
    a("v_add_u32 v101, s52, v100")
    quads = [(0, 1), (4, 1), (256, 2), (512, 256)], [(1536, 256), (516, 256), (4097, 0), (4097, 0)]
    a("s_cmp_eq_u32 s46, 0")
    for q in range(4):
        a(f"s_mov_b32 s64, {f32(float(quads[0][q][0]))}")
        a(f"s_mov_b32 s65, {f32(float(quads[0][q][1]))}")
        a(f"s_cselect_b32 s{56+q}, s64, {f32(float(quads[1][q][0]))}")
        a(f"s_cselect_b32 s{60+q}, s65, {f32(float(quads[1][q][1]))}")
    a("v_mov_b32 v14, s56")
    a("v_mov_b32 v15, s60")
    for q in range(1, 4):
        a(f"v_cmp_eq_u32 vcc, {q}, v2")
        a(f"v_mov_b32 v16, s{56+q}")
        a(f"v_mov_b32 v17, s{60+q}")
        a("v_cndmask_b32 v14, v14, v16, vcc")
        a("v_cndmask_b32 v15, v15, v17, vcc")
    a("v_cvt_f32_u32 v16, v7")
    a("v_fmac_f32 v14, 0x41000000, v16")
    a(f"s_add_u32 s53, s51, {KG_T + KT_TAB - 2*0x4380}")
    a(f"s_add_u32 s54, s51, {KG_T + 3000}")
    a(f"s_add_u32 s57, s51, {KG_T + 510}")
    a(f"s_add_u32 s58, s51, {KG_T + KT_O + 512}")
    a("v_mov_b32 v19, s54")
    TW, TW2 = 102, 112
    for jt in range(2):
        for r in range(4):
            p = 20 + 4 * jt + r
            if r == 0:
                a(f"v_mov_b32 v{p}, v14" if jt == 0 else f"v_add_f32 v{p}, 0x43000000, v14")
            else:
                a(f"v_add_f32 v{p}, v{p-1}, v15")
    for i in range(8):
        p, b, b2 = 20 + i, TW + i, TW2 + i
        a(f"v_cvt_pk_bf16_f32 v{b}, v{p}, v{p}")
        a(f"v_cvt_u32_f32 v17, v{p}")
        a(f"v_and_b32 v16, 0xffff0000, v{b}")
        a(f"v_cmp_eq_u32 vcc, v16, v{p}")
        a(f"v_and_b32 v{b}, 0xffff, v{b}")
        a(f"v_lshl_add_u32 v{b}, v{b}, 1, s53")
        a(f"v_cndmask_b32 v{b}, v19, v{b}, vcc")
        a("v_lshlrev_b32 v16, 1, v17")
        a("v_cmp_gt_u32 vcc, 256, v17")
        a("v_sub_u32 v18, s57, v16")
        a(f"v_sub_u32 v{b2}, s58, v16")
        a(f"v_cndmask_b32 v{b}, v{b}, v18, vcc")
        a("v_cmp_ge_u32 vcc, 256, v17")
        a("s_nop 1")
        a(f"v_cndmask_b32 v{b2}, v19, v{b2}, vcc")
    a("v_mov_b32 v20, 0")
    a("v_mov_b32 v21, 0")
    a("v_mov_b32 v22, 0")
    a("v_mov_b32 v23, 0")
    a("v_and_b32 v16, 1, v1")
    a("v_lshlrev_b32 v16, 4, v16")
    a(f"s_mul_i32 s59, s46, {KT_O}")
    a("s_add_u32 s59, s59, s57")
    a("v_add_u32 v16, s59, v16")
    a("ds_write_b128 v16, v[20:23] offset:2")
    a("v_lshlrev_b32 v130, 4, v3")
    a(f"s_add_u32 s55, s51, {KG_T}")
    a("v_add_u32 v110, s55, v130")
    a(f"s_mul_i32 s55, s47, {KT_BYTES}")
    a("v_mov_b32 v14, 0x00003f80")
    a(f"ds_write_b32 v6, v14 offset:{KG_YB}")
    stamp(a)
    a("s_waitcnt vmcnt(3)")
    stamp(a)
    a("v_lshlrev_b32 v12, 16, v12")
    a("v_lshlrev_b32 v8, 16, v8")
    exp_acc(a, 13, 12, 14)
    exp_acc(a, 15, 8, 16)
    bf16_round(a, 13, 13)
    bf16_round(a, 15, 15)
    a("s_waitcnt vmcnt(2)")
    a("v_lshlrev_b32 v9, 16, v9")
    a("v_mul_f32 v15, v15, v13")
    a("v_mul_f32 v16, v9, v13")
    a(f"v_mul_f32 v15, {f32(-LOG2E)}, v15")
    a(f"v_mul_f32 v16, {f32(0.15915494309189535)}, v16")
    seeds = [(1, 20, 1), (256, 22, 1), (8, 24, -1), (64, 26, -1)]
    for i, (p, z, sg) in enumerate(seeds):
        a(f"v_mul_f32 v{32+i}, {f32(float(p))}, v15")
        a(f"v_mul_f32 v{36+i}, {f32(float(p*sg))}, v16")
    for i in range(4):
        a(f"v_exp_f32 v{32+i}, v{32+i}")
        a(f"v_fract_f32 v{36+i}, v{36+i}")
    for i, (p, z, sg) in enumerate(seeds):
        a(f"v_cos_f32 v{z}, v{36+i}")
        a(f"v_sin_f32 v{z+1}, v{36+i}")
    a("s_waitcnt vmcnt(0)")
    a("v_lshlrev_b32 v10, 16, v10")
    a("v_lshlrev_b32 v11, 16, v11")
    a("v_add_f32 v13, v13, v13")
    for i, (p, z, sg) in enumerate(seeds):
        a(f"v_mul_f32 v{z}, v{32+i}, v{z}")
        a(f"v_mul_f32 v{z+1}, v{32+i}, v{z+1}")
    a("v_mul_f32 v28, v10, v13")
    a("v_mul_f32 v29, v11, v13")
    E1, E256, Y8, Y64, C = 20, 22, 24, 26, 28
    E2, E4, Y128, Y192 = 40, 42, 44, 46

    def emit(z, off, t):
        return [f"v_cvt_pk_bf16_f32 v{t}, v{z}, v{z+1}", f"ds_write_b32 v6, v{t} offset:{off}"]

    xrow = lambda q, r: KG_XA + (4 * q + r) * KG_ROW
    yrow = lambda j: KG_YB + j * KG_ROW

    def chain(seed, ratio, offs, ra, rb, t, emit_seed=True):
        ops = []
        cur = seed
        for k, off in enumerate(offs):
            if k:
                nxt = ra if cur != ra else rb
                ops.append(cmul(nxt, cur, ratio))
                cur = nxt
            if k or emit_seed:
                ops.append(emit(cur, off, t))
        return ops

    pre = [cmul(E2, E1, E1), cmul(Y128, Y64, Y64), cmul(48, C, E256), cmul(E4, E2, E2), cmul(Y192, Y128, Y64)]
    for i in range(2):
        for op in pre[:3]:
            a(op[i])
    for i in range(2):
        for op in pre[3:]:
            a(op[i])
    a("\n".join(cmul(50, C, E4)))
    chains = [
        chain(Y8, Y8, [yrow(j) for j in range(1, 8)], 52, 54, 88),
        chain(Y64, Y8, [yrow(j) for j in range(8, 16)], 56, 58, 89),
        chain(Y128, Y8, [yrow(j) for j in range(16, 24)], 60, 62, 90),
        chain(Y192, Y8, [yrow(j) for j in range(24, 32)], 64, 66, 91),
        chain(C, E1, [xrow(0, r) for r in range(4)], 68, 70, 92)
        + chain(48, E2, [xrow(2, r) for r in range(4)], 68, 70, 92),
        chain(50, E1, [xrow(1, r) for r in range(4)], 72, 74, 93),
    ]
    far = []
    cur = 48
    offs = [xrow(3, 0), xrow(3, 1), xrow(3, 2), xrow(3, 3), xrow(4, 0), xrow(4, 1), xrow(4, 2)]
    for k, off in enumerate(offs):
        nxt = 76 if cur != 76 else 78
        far.append(cmul(nxt, cur, E256))
        cur = nxt
        far.append(emit(cur, off, 94))
        if k < 2:
            far.append(cmul(80, cur, E4))
            far.append(emit(80, xrow(5, k), 95))
    chains.append(far)
    while any(chains):
        units = [c.pop(0) for c in chains if c]
        for i in range(2):
            for u in units:
                a(u[i])
    a("s_waitcnt lgkmcnt(0)")
    stamp(a)
    a("s_barrier")
    for ks in range(8):
        a(f"ds_read_b128 {vr(132+4*ks,4)}, v101 offset:{KG_XA + ks*64}")
        a(f"ds_read_b128 {vr(32+4*ks,4)}, v100 offset:{KG_YB + ks*64}")
        a(f"ds_read_b128 {vr(64+4*ks,4)}, v100 offset:{KG_YB + 16*KG_ROW + ks*64}")
    for ks in range(8):
        a(f"s_waitcnt lgkmcnt({min(15, 3*(7-ks))})")
        c0 = "0" if ks == 0 else "v[20:23]"
        c1 = "0" if ks == 0 else "v[24:27]"
        a(f"v_mfma_f32_16x16x32_bf16 v[20:23], {vr(132+4*ks,4)}, {vr(32+4*ks,4)}, {c0}")
        a(f"v_mfma_f32_16x16x32_bf16 v[24:27], {vr(132+4*ks,4)}, {vr(64+4*ks,4)}, {c1}")
    a("s_nop 7")
    for i in range(8):
        a(f"v_cvt_pk_bf16_f32 v{20+i}, v{20+i}, v{20+i}")
        a(f"ds_write_b16 v{TW+i}, v{20+i}")
        a(f"ds_write_b16 v{TW2+i}, v{20+i}")
    a("s_waitcnt lgkmcnt(0)")
    stamp(a)
    a("s_barrier")
    a("ds_read_b128 v[32:35], v110")
    a("ds_read_b128 v[36:39], v110 offset:2048")
    a("s_waitcnt lgkmcnt(1)")
    a("buffer_store_dwordx4 v[32:35], v130, s[36:39], s55 offen" + WT["k"])
    a("s_cmp_lg_u32 s46, 0")
    a("s_cbranch_scc1 k1_kg_done")
    a("s_waitcnt lgkmcnt(0)")
    a("buffer_store_dwordx4 v[36:39], v130, s[36:39], s55 offen offset:2048" + WT["k"])
    a.label("k1_kg_done")
    stamp_end(a, 0, 14)
    a("s_endpgm")


def gen_k1(a):
    a.raw(".p2align 8")
    a.label("k1_kernel")
    a(f"s_cmp_ge_u32 s2, {N_K1}")
    a("s_cbranch_scc1 k1_exit")
    a("v_lshrrev_b32 v2, 6, v0")
    a("v_and_b32 v1, 63, v0")
    a("v_readfirstlane_b32 s44, v2")
    a("s_cmp_ge_u32 s44, 4")
    a("s_cbranch_scc1 k1_ln")
    gen_kgen(a)
    a.label("k1_ln")
    gen_ln(a)
    a.label("k1_exit")
    a("s_endpgm")


N_G1, N_CV, N_RL = 176, 64, 16
G1_STAGE = 49152
G1_W = 32768
K2_LDS = 3 * G1_STAGE
G1_NST = 8
CV_ZB, CV_PW = 32768, 32896
CV_O, CV_T, CV_G, CV_W = 2752, 5376, 6400, 7168


def gen_gemm1_loader(a):
    a("s_sub_u32 s30, s30, 4")
    a("v_lshrrev_b32 v3, 3, v1")
    a("v_and_b32 v4, 7, v1")
    a("v_lshrrev_b32 v5, 4, v1")
    a(f"v_mul_u32_u24 v14, {XN_STRIDE}, v3")
    for q in range(4):
        a(f"v_add_u32 v6, {4*q}, v5")
        a("v_and_b32 v6, 7, v6")
        a("v_xor_b32 v6, v6, v4")
        a("v_lshl_add_u32 v6, v6, 4, v14")
        a(f"v_add_u32 v{8+q}, {q*(8*XN_STRIDE-1024)}, v6")
    a("v_and_b32 v6, 1, v5")
    a("v_lshrrev_b32 v7, 2, v4")
    a("v_xor_b32 v6, v6, v7")
    a("v_and_b32 v7, 3, v4")
    a("v_lshlrev_b32 v7, 3, v7")
    a("v_lshl_add_u32 v6, v6, 5, v7")
    a("s_lshl_b32 s31, s29, 6")
    a("v_add_u32 v6, s31, v6")
    a(f"v_mul_u32_u24 v12, {2*F}, v3")
    a("v_lshl_add_u32 v12, v6, 1, v12")
    a(f"v_add_u32 v13, {8*2*F-1024}, v12")
    a(f"v_cmp_le_u32 vcc, {F}, v6")
    a("v_mov_b32 v7, 0x40000000")
    a(f"s_mul_i32 s32, s28, {256*XN_STRIDE}")
    a("v_cndmask_b32 v12, v12, v7, vcc")
    a("v_cndmask_b32 v13, v13, v7, vcc")
    a(f"s_mul_i32 s33, s30, {64*XN_STRIDE}")
    a("s_add_u32 s32, s32, s33")
    a(f"s_add_u32 s36, s32, {32*XN_STRIDE}")
    a(f"s_mul_i32 s33, s30, {16*2*F}")
    a("s_lshl_b32 s34, s30, 13")
    a("s_lshl_b32 s35, s30, 11")
    a(f"s_add_u32 s35, s35, {G1_W}")
    a("s_waitcnt lgkmcnt(0)")
    srd(a, 16, 4, W_BYTES)
    srd(a, 20, 6, W_BYTES)
    srd(a, 12, 8, XN_BYTES, WS_XN)

    def dma(stage, lo=0, hi=12):
        b = (stage % 3) * G1_STAGE
        if lo == 0:
            a(f"s_add_u32 m0, s35, {b}")
            a("s_nop 0")
            a("buffer_load_dwordx4 v12, s[16:19], s33 offen lds")
            a("buffer_load_dwordx4 v13, s[16:19], s33 offen offset:1024 lds")
            a(f"s_add_u32 m0, s35, {b+8192}")
            a("s_nop 0")
            a("buffer_load_dwordx4 v12, s[20:23], s33 offen lds")
            a("buffer_load_dwordx4 v13, s[20:23], s33 offen offset:1024 lds")
            a(f"s_add_u32 s33, s33, {64*2*F}")
        if hi == 12:
            a(f"s_add_u32 m0, s34, {b}")
            a("s_nop 0")
            for q in range(4):
                a(f"buffer_load_dwordx4 v{8+q}, s[12:15], s32 offen offset:{q*1024} lds")
            a(f"s_add_u32 m0, s34, {b+4096}")
            a("s_add_u32 s32, s32, 128")
            for q in range(4):
                a(f"buffer_load_dwordx4 v{8+q}, s[12:15], s36 offen offset:{q*1024} lds")
            a("s_add_u32 s36, s36, 128")

    dma(0)
    dma(1, 0, 4)
    for st in range(G1_NST):
        if st in (0, 3, 4):
            stamp(a)
        a(f"s_waitcnt vmcnt({4 if st == 0 else (12 if st + 1 < G1_NST else 0)})")
        if st in (0, 3, 4):
            stamp(a)
        a("s_barrier")
        if st in (3,):
            stamp(a)
        if st == 0:
            dma(1, 4, 12)
        if st + 2 < G1_NST:
            dma(st + 2)
    stamp_end(a, 1, 8)
    a("s_endpgm")


def gen_gemm1(a):
    stamp_begin(a)
    a(f"s_load_dwordx4 s[4:7], s[0:1], {KA_WG}")
    a(f"s_load_dwordx2 s[8:9], s[0:1], {KA_WS}")
    a("v_and_b32 v1, 63, v0")
    a("v_lshrrev_b32 v2, 6, v0")
    if G1_MAP:
        a("s_lshr_b32 s29, s2, 3")
        a("s_and_b32 s28, s2, 6")
        a("s_and_b32 s31, s29, 1")
        a("s_add_u32 s28, s28, s31")
        a("s_lshr_b32 s29, s29, 1")
        a("s_and_b32 s31, s2, 1")
        a("s_mul_i32 s31, s31, 11")
        a("s_add_u32 s29, s29, s31")
    else:
        a("s_and_b32 s28, s2, 7")
        a("s_lshr_b32 s29, s2, 3")
    a("v_readfirstlane_b32 s30, v2")
    a("s_cmp_lt_u32 s30, 4")
    a("s_cbranch_scc1 k2_g1_compute")
    gen_gemm1_loader(a)
    a.label("k2_g1_compute")
    if PRIO:
        a(f"s_setprio {PRIO}")
    _stamp_n[0] = 1 if PROF else 0
    a("v_and_b32 v3, 31, v1")
    a("v_lshrrev_b32 v4, 5, v1")
    a("v_lshrrev_b32 v5, 1, v3")
    a("v_and_b32 v5, 7, v5")
    a("v_xor_b32 v5, v5, v4")
    a("v_lshlrev_b32 v6, 7, v3")
    a("s_lshl_b32 s38, s30, 13")
    a("v_add_u32 v6, s38, v6")
    for ks in range(4):
        a(f"v_xor_b32 v7, {2*ks}, v5")
        a(f"v_lshl_add_u32 v{16+ks}, v7, 4, v6")
    a("v_and_b32 v5, 15, v1")
    a("v_lshrrev_b32 v6, 2, v5")
    a("v_and_b32 v5, 3, v5")
    a("v_lshrrev_b32 v7, 4, v1")
    a("v_and_b32 v7, 1, v7")
    a("v_and_b32 v13, 1, v5")
    a("v_lshlrev_b32 v13, 5, v13")
    a("v_lshl_add_u32 v13, v7, 4, v13")
    a("v_lshrrev_b32 v5, 1, v5")
    a("v_lshl_add_u32 v13, v5, 3, v13")
    a("v_lshrrev_b32 v5, 1, v6")
    a("v_lshl_add_u32 v13, v5, 6, v13")
    a("v_lshl_add_u32 v6, v4, 3, v6")
    a("v_lshl_add_u32 v13, v6, 7, v13")
    a(f"v_add_u32 v20, {G1_W}, v13")
    a("v_xor_b32 v21, 64, v20")
    a("v_mov_b32 v12, 0")
    HS = 144
    a(f"s_mul_i32 s39, s30, {64*HS}")
    a(f"v_mul_u32_u24 v22, {HS}, v3")
    a("v_lshl_add_u32 v22, v4, 5, v22")
    a("v_add_u32 v22, s39, v22")
    a("v_lshrrev_b32 v5, 3, v1")
    a("v_and_b32 v6, 7, v1")
    a(f"v_mul_u32_u24 v23, {HS}, v5")
    a("v_lshl_add_u32 v23, v6, 4, v23")
    a("v_add_u32 v23, s39, v23")
    a(f"v_mul_u32_u24 v14, {H_STRIDE}, v5")
    a("v_lshl_add_u32 v14, v6, 4, v14")
    a("s_lshl_b32 s40, s28, 8")
    a("s_lshl_b32 s41, s30, 6")
    a("s_add_u32 s40, s40, s41")
    a(f"s_mul_i32 s42, s40, {H_STRIDE}")
    a("s_lshl_b32 s43, s29, 7")
    a("s_add_u32 s42, s42, s43")
    a("s_waitcnt lgkmcnt(0)")
    srd(a, 24, 8, H_BYTES, WS_H)

    ACC = lambda w, ft, tt: 128 + 64 * w + 32 * ft + 16 * tt
    FS = [32, 56, 80, 104]

    def reads(n, f):
        ks = n & 3
        out = []
        for w in range(2):
            for ft in range(2):
                o = 8192 * w + ks * 2048
                out.append(f"ds_read_b64_tr_b16 {vr(f+8*w+4*ft,2)}, v{20+ft} offset:{o}")
                out.append(f"ds_read_b64_tr_b16 {vr(f+8*w+4*ft+2,2)}, v{20+ft} offset:{o+512}")
            out.append(f"ds_read_b128 {vr(f+16+4*w,4)}, v{16+ks} offset:{4096*w}")
        return out

    def mfma(n, f, w, ft, tt):
        c = vr(ACC(w, ft, tt), 16)
        return (f"v_mfma_f32_32x32x16_bf16 {c}, {vr(f+8*w+4*ft,4)}, {vr(f+16+4*tt,4)}, "
                f"{'0' if n == 0 else c}")

    def mfmas(n, f):
        return [mfma(n, f, w, ft, tt) for tt in range(2) for w in range(2) for ft in range(2)]

    def boundary(st):
        a("s_waitcnt lgkmcnt(0)")
        a("s_barrier")
        if st in (0, 6, 7):
            stamp(a)
        if st >= 1:
            delta = G1_STAGE if st % 3 else -2 * G1_STAGE
            for r in (16, 17, 18, 19, 20, 21):
                a(f"v_add_u32 v{r}, {delta & 0xffffffff:#x}, v{r}")

    LASTN = 4 * (G1_NST - 1)
    boundary(0)
    for op in reads(0, FS[0]):
        a(op)
    for n in range(LASTN):
        nx = n + 1
        if nx == LASTN:
            break
        if nx & 3 == 0:
            boundary(nx >> 2)
        else:
            a("s_waitcnt lgkmcnt(0)")
        rd = reads(nx, FS[nx & 1])
        cuts = [0, 3, 6, 8, 10, 10, 10, 10, 10]
        for i, m in enumerate(mfmas(n, FS[n & 1])):
            a(m)
            for op in rd[cuts[i]:cuts[i + 1]]:
                a(op)
    n = LASTN - 1
    boundary(G1_NST - 1)
    sets = {LASTN: FS[0], LASTN + 2: FS[2], LASTN + 3: FS[3], LASTN + 1: FS[1]}
    early = reads(LASTN, FS[0]) + reads(LASTN + 2, FS[2]) + reads(LASTN + 3, FS[3])
    mm = mfmas(n, FS[n & 1])
    for i, m in enumerate(mm):
        a(m)
        for op in early[4 * i:4 * i + 4]:
            a(op)
    for op in reads(LASTN + 1, FS[1]):
        a(op)

    def pair_epilogue(ft, tt):
        g, u = ACC(0, ft, tt), ACC(1, ft, tt)
        o = 4 if ft == 0 else 24
        out = []
        if EPI == "fused":
            for k in range(16):
                out.append(f"v_max_f32 v{g+k}, 0, v{g+k}")
            for k in range(16):
                out.append(f"v_mul_f32 v{g+k}, v{g+k}, v{u+k}")
            for k in range(8):
                out.append(f"v_cvt_pk_bf16_f32 v{o+k}, v{g+2*k}, v{g+2*k+1}")
                if k == 3:
                    out.append(f"ds_write_b128 v22, {vr(o,4)} offset:{32*HS*tt + 64*ft}")
            out.append(f"ds_write_b128 v22, {vr(o+4,4)} offset:{32*HS*tt + 64*ft + 16}")
            return out
        for k in range(8):
            out.append(f"v_cvt_pk_bf16_f32 v{g+2*k}, v{g+2*k}, v{g+2*k+1}")
            out.append(f"v_cvt_pk_bf16_f32 v{u+2*k}, v{u+2*k}, v{u+2*k+1}")
        for k in range(8):
            out.append(f"v_max_i16_sdwa v{g+2*k+1}, v{g+2*k}, v12 dst_sel:WORD_0 dst_unused:UNUSED_PAD "
                       "src0_sel:WORD_0 src1_sel:WORD_0")
            out.append(f"v_max_i16_sdwa v{u+2*k+1}, v{g+2*k}, v12 dst_sel:WORD_1 dst_unused:UNUSED_PAD "
                       "src0_sel:WORD_1 src1_sel:WORD_0")
        for k in range(8):
            out.append(f"v_dot2_f32_bf16 v{g+2*k+1}, v{g+2*k+1}, v{u+2*k}, 0")
            out.append(f"v_dot2_f32_bf16 v{u+2*k+1}, v{u+2*k+1}, v{u+2*k}, 0")
        for k in range(8):
            out.append(f"v_cvt_pk_bf16_f32 v{o+k}, v{g+2*k+1}, v{u+2*k+1}")
            if k == 3:
                out.append(f"ds_write_b128 v22, {vr(o,4)} offset:{32*HS*tt + 64*ft}")
        out.append(f"ds_write_b128 v22, {vr(o+4,4)} offset:{32*HS*tt + 64*ft + 16}")
        return out

    def flush(tt, regs):
        rd = [f"ds_read_b128 {vr(regs+4*i,4)}, v23 offset:{8*HS*(4*tt+i)}" for i in range(4)]
        st = []
        for i in range(4):
            st.append(f"s_waitcnt lgkmcnt({3-i})\n"
                      f"buffer_store_dwordx4 {vr(regs+4*i,4)}, v14, s[24:27], s42 offen{WT['h']}\n"
                      f"s_add_u32 s42, s42, {8*H_STRIDE}")
        return rd, st

    order = [(0, 0), (1, 0), (0, 1), (1, 1)]
    korder = [LASTN, LASTN + 2, LASTN + 3, LASTN + 1]
    a("s_waitcnt lgkmcnt(10)")
    for pi, (ft, tt) in enumerate(order):
        if pi < 3:
            stamp(a)
        mm = []
        for kn in korder:
            if pi == 0 and kn == LASTN + 1:
                mm.append("s_waitcnt lgkmcnt(0)\n" + mfma(kn, sets[kn], 0, ft, tt))
            else:
                mm.append(mfma(kn, sets[kn], 0, ft, tt))
            mm.append(mfma(kn, sets[kn], 1, ft, tt))
        fill = ["s_nop 8"] + pair_epilogue(*order[pi - 1]) if pi else []
        if pi == 3:
            rd, st = flush(0, ACC(1, 0, 0))
            fill = ["s_waitcnt lgkmcnt(0)"] + rd + fill[:33] + st + fill[33:]
        lead = 2
        per = -(-len(fill) // (len(mm) - lead)) if fill else 0
        for i, m in enumerate(mm):
            a(m)
            if i >= lead - 1 and fill:
                j = i - (lead - 1)
                for op in fill[j * per:(j + 1) * per]:
                    a(op)
    a("s_nop 15")
    stamp(a)
    for op in pair_epilogue(*order[3]):
        a(op)
    a("s_waitcnt lgkmcnt(0)")
    rd, st = flush(1, ACC(1, 0, 0))
    for op in rd + st:
        a(op)
    stamp_end(a, 1, 8)
    a("s_endpgm")


def gen_conv(a):
    stamp_begin(a)
    a(f"s_load_dwordx2 s[4:5], s[0:1], {KA_DSK}")
    a(f"s_load_dwordx2 s[8:9], s[0:1], {KA_WS}")
    a("v_and_b32 v1, 63, v0")
    a("v_lshrrev_b32 v2, 6, v0")
    a(f"s_sub_u32 s28, s2, {N_G1}")
    a("s_lshl_b32 s29, s28, 7")
    a("v_readfirstlane_b32 s30, v2")
    a("s_lshl_b32 s28, s28, 3")
    a("s_add_u32 s28, s28, s30")
    a(f"s_mul_i32 s31, s30, {CV_W}")
    a(f"s_add_u32 s31, s31, {CV_PW}")
    a(f"s_mul_i32 s32, s28, {KT_BYTES}")
    a("s_lshl_b32 s34, s28, 12")
    a("s_lshr_b32 s35, s28, 1")
    a("s_lshl_b32 s35, s35, 2")
    a("v_lshlrev_b32 v3, 4, v1")
    a("v_lshrrev_b32 v4, 3, v1")
    a("v_and_b32 v5, 7, v1")
    a("v_lshrrev_b32 v6, 4, v1")
    a(f"v_mul_u32_u24 v4, {XNT_STRIDE}, v4")
    for q in range(2):
        a(f"v_add_u32 v7, {4*q}, v6")
        a("v_xor_b32 v7, v7, v5")
        a(f"v_lshl_add_u32 v{8+q}, v7, 4, v4")
    a(f"v_add_u32 v9, {8*XNT_STRIDE - 1024}, v9")
    a(f"s_mul_i32 s44, s30, {32*XNT_STRIDE}")
    a("s_add_u32 s44, s44, s29")
    a(f"s_add_u32 s45, s44, {16*XNT_STRIDE - 2048}")
    a("s_lshl_b32 s47, s30, 12")
    a("s_waitcnt lgkmcnt(0)")
    a("s_load_dword s36, s[4:5], s35")
    srd(a, 12, 8, D * KT_BYTES, WS_KR)
    srd(a, 16, 8, XNT_BYTES, WS_XNT)
    srd(a, 20, 8, L * D * 2, WS_AT)
    for q, dst in ((2, CV_T), (0, 1600), (1, CV_O + 1600)):
        a(f"s_add_u32 m0, s31, {dst - q*1024}")
        a("s_nop 0")
        a(f"buffer_load_dwordx4 v3, s[12:15], s32 offen offset:{q*1024} lds")
    a("s_mov_b32 m0, s47")
    a("s_nop 0")
    a("buffer_load_dwordx4 v8, s[16:19], s44 offen lds")
    a("buffer_load_dwordx4 v9, s[16:19], s44 offen offset:1024 lds")
    a("buffer_load_dwordx4 v8, s[16:19], s45 offen offset:2048 lds")
    a("buffer_load_dwordx4 v9, s[16:19], s45 offen offset:3072 lds")
    pf = 1 if CODE_PF else 0
    if CODE_PF:
        a(f"s_sub_u32 s45, s2, {N_G1}")
        a("s_lshr_b32 s45, s45, 3")
        a("s_lshl_b32 s45, s45, 3")
        a("s_add_u32 s45, s45, s30")
        code_prefetch(a, "k3_kernel", "code_end", 45, 3, 252, 48)
    for r in range(4, 8):
        a(f"v_mov_b32 v{r}, 0")
    a(f"v_add_u32 v10, {CV_G}, v3")
    for lo, base in ((48, 0), (51, CV_O)):
        a(f"v_cmp_le_u32 vcc, {lo}, v1")
        a(f"v_add_u32 v11, {(base - 16*lo) & 0xffffffff:#x}, v3")
        a("s_nop 0")
        a("v_cndmask_b32 v10, v10, v11, vcc")
    a("v_add_u32 v10, s31, v10")
    a("v_cmp_le_u32 vcc, 54, v1")
    a(f"v_mov_b32 v15, {CV_ZB}")
    a("s_nop 0")
    a("v_cndmask_b32 v238, v10, v15, vcc")
    a("v_and_b32 v4, 15, v1")
    a("v_lshrrev_b32 v5, 4, v1")
    a("v_lshlrev_b32 v6, 3, v5")
    a("v_sub_u32 v6, v6, v4")
    a("v_lshlrev_b32 v6, 1, v6")
    a("v_add_u32 v6, s31, v6")
    a("v_and_b32 v7, 1, v4")
    a("v_cmp_eq_u32 vcc, 1, v7")
    a(f"v_mov_b32 v8, {CV_O + 2*1040}")
    a(f"v_mov_b32 v9, {2*1039}")
    a("v_cndmask_b32 v8, v8, v9, vcc")
    a("v_add_u32 v8, v6, v8")
    for P in range(2):
        a(f"v_subrev_u32 v{10+P}, {512*(2*P+1)+448}, v8")
    a("v_subrev_u32 v12, 2048, v8")
    a(f"v_mov_b32 v8, {CV_G + 192 + 2*62 - 96}")
    a(f"v_mov_b32 v9, {CV_G + 2*63 - 96}")
    a("v_cndmask_b32 v8, v8, v9, vcc")
    a("v_lshlrev_b32 v9, 3, v5")
    a("v_sub_u32 v6, v6, v9")
    a("v_add_u32 v13, v6, v8")

    def uaddr(dst, gran, tmp):
        a(f"v_lshrrev_b32 v{tmp}, 1, v{gran}")
        a(f"v_and_b32 v{tmp}, 7, v{tmp}")
        a(f"v_xor_b32 v{tmp}, s30, v{tmp}")
        a(f"v_lshlrev_b32 v{tmp}, 4, v{tmp}")
        a(f"v_lshl_add_u32 v{dst}, v{gran}, 7, v{tmp}")

    UB, UC = 16, 24
    a("v_lshl_add_u32 v6, v4, 1, v5")
    for rho in range(4):
        a(f"v_add_u32 v7, {14 - 4*rho}, v6")
        uaddr(UB + rho, 7, 8)
    for rho in range(8):
        a(f"v_cmp_gt_u32 vcc, {4*rho + 2}, v6")
        a(f"v_subrev_u32 v7, {4096 if rho >= 4 else 2048}, v{UB + (rho & 3)}")
        a("s_nop 0")
        a(f"v_cndmask_b32 v{UC+rho}, v7, v15, vcc")
    a("v_lshrrev_b32 v7, 1, v5")
    a("v_lshl_add_u32 v7, v4, 1, v7")
    uaddr(246, 7, 8)
    a("v_and_b32 v7, 1, v5")
    a("v_lshl_add_u32 v246, v7, 3, v246")
    a("v_lshlrev_b32 v247, 5, v4")
    a("v_lshl_add_u32 v247, v5, 3, v247")
    BND = 224
    a("v_lshlrev_b32 v8, 3, v5")
    a("v_mov_b32 v9, 0x7f")
    a("v_add_u32 v7, 5, v4")
    a("v_lshlrev_b32 v240, v7, v9")
    a("v_mov_b32 v9, 0x1ff")
    a("v_lshlrev_b32 v241, v4, v9")
    a("v_lshrrev_b32 v241, 4, v241")
    a("v_mov_b32 v9, 0xf0000000")
    a("v_lshlrev_b32 v242, v4, v9")
    a("s_mov_b32 s40, 0x3f803f80")
    a("s_mov_b32 s41, 0xffff")
    for b in range(3):
        a(f"v_lshrrev_b32 v{240+b}, v8, v{240+b}")
    for b in range(3):
        for k in range(4):
            a(f"v_bfe_i32 v7, v{240+b}, {2*k}, 1")
            a(f"v_bfe_i32 v9, v{240+b}, {2*k+1}, 1")
            a("v_bfi_b32 v7, s41, v7, v9")
            a(f"v_and_b32 v{BND+4*b+k}, s40, v7")
    a(f"s_add_u32 s38, s31, {CV_T}")
    a("v_lshlrev_b32 v7, 2, v1")
    a("v_sub_u32 v249, s38, v7")
    a("v_lshlrev_b32 v7, 3, v1")
    a("v_min_u32 v7, 248, v7")
    a("v_sub_u32 v250, s38, v7")
    a("v_lshlrev_b32 v7, 2, v1")
    a("v_add_u32 v243, s38, v7")
    a("v_add_u32 v248, s31, v3")
    a("v_cmp_eq_u32 s[52:53], 63, v1")
    a("v_lshlrev_b32 v7, 1, v1")
    a(f"s_add_u32 s39, s31, {CV_G + 126}")
    a("v_sub_u32 v251, s39, v7")
    a("v_add_u32 v245, 190, v251")
    a("v_mov_b32 v7, s38")
    a("v_cndmask_b32 v245, v245, v7, s[52:53]")
    a("s_mov_b32 s42, 0x03020302")
    a("s_mov_b32 s43, 0x01000100")

    ACC = 32
    SET = [64, 112]
    A32 = 216
    WS9, WS7 = 160, 176
    FB = 192
    UREG = 160

    def loads(rho):
        s = SET[rho & 1]
        out = []
        for m in range(8):
            if m == 0:
                out.append(f"ds_read_b128 {vr(s+16,4)}, v{UC+rho}")
            else:
                o = 4096 * (m - 1) + (2048 if rho < 4 else 0)
                out.append(f"ds_read_b128 {vr(s+16+4*m,4)}, v{UB+(rho&3)} offset:{o}")
            if m < 4:
                o = (64 * (7 - rho) + (0 if m & 1 else 512)) // 4
                out.append(f"ds_read2_b32 {vr(s+4*m,2)}, v{10+(m>>1)} offset0:{o} offset1:{o+1}")
                out.append(f"ds_read2_b32 {vr(s+4*m+2,2)}, v{10+(m>>1)} offset0:{o+2} offset1:{o+3}")
        if rho == 0:
            out.append(f"ds_read2_b32 {vr(A32,2)}, v12 offset0:0 offset1:1")
            out.append(f"ds_read2_b32 {vr(A32+2,2)}, v12 offset0:2 offset1:3")
        return out

    def mfma(rho, i, m):
        s = SET[rho & 1]
        c = vr(ACC + 4 * (i + m), 4)
        fa = A32 if i == 4 else s + 4 * i
        return (f"v_mfma_f32_16x16x32_bf16 {c}, {vr(fa,4)}, {vr(s+16+4*m,4)}, "
                f"{'0' if rho == 0 and i == 0 else c}")

    def mfmas(rho):
        out = [mfma(rho, i, m) for i in range(5 if rho == 0 else 4) for m in range(8 - i)]
        s = SET[rho & 1]
        if rho == 0:
            for t in range(4):
                out.append(f"v_mfma_f32_16x16x32_bf16 {vr(WS7+4*t,4)}, {vr(s+16+4*t,4)}, {vr(BND,4)}, 0")
                out.append(f"v_mfma_f32_16x16x32_bf16 {vr(WS9+4*t,4)}, {vr(s+16+4*t,4)}, {vr(BND+4,4)}, 0")
        if rho == 1:
            for t in range(4):
                c = vr(WS9 + 4 * t, 4)
                out.insert(2 * t, f"v_mfma_f32_16x16x32_bf16 {c}, {vr(s+16+4*t,4)}, {vr(BND+8,4)}, {c}")
        return out

    def window_pack():
        out = []
        for base in (WS9, WS7):
            for t in range(4):
                out.append(f"v_cvt_pk_bf16_f32 v{base+2*t}, v{base+4*t}, v{base+4*t+1}")
                out.append(f"v_cvt_pk_bf16_f32 v{base+2*t+1}, v{base+4*t+2}, v{base+4*t+3}")
        return out

    def far_loads(par):
        out = []
        for dl in range(4):
            o = (96 - 32 * dl + 384 * par) // 4
            out.append(f"ds_read2_b32 {vr(FB+4*dl,2)}, v13 offset0:{o} offset1:{o+1}")
            out.append(f"ds_read2_b32 {vr(FB+4*dl+2,2)}, v13 offset0:{o+8} offset1:{o+9}")
        return out

    def far_mfmas(par):
        out = []
        for tp in range(4):
            for kb in range(2 if tp >= 2 else 1):
                c = vr(ACC + 4 * (4 + tp), 4)
                out.append(f"v_mfma_f32_16x16x32_bf16 {c}, {vr((WS9, WS7)[par]+4*kb,4)}, "
                           f"{vr(FB+4*(tp-2*kb),4)}, {c}")
        return out

    def tile_epilogue(t):
        y = ACC + 4 * t
        u = UREG + 2 * t
        w = 2 if t & 1 else 208
        return [f"v_lshlrev_b32 v{w}, 16, v{u}",
                f"v_and_b32 v{w+1}, 0xffff0000, v{u}",
                f"v_lshlrev_b32 v{w+2}, 16, v{u+1}",
                f"v_and_b32 v{w+3}, 0xffff0000, v{u+1}",
                f"v_pk_mul_f32 {vr(w,2)}, {vr(w,2)}, s[36:37]",
                f"v_pk_mul_f32 {vr(w+2,2)}, {vr(w+2,2)}, s[36:37]",
                f"v_cvt_pk_bf16_f32 v{u}, v{w}, v{w+1}",
                f"v_cvt_pk_bf16_f32 v{u+1}, v{w+2}, v{w+3}",
                f"v_cvt_pk_bf16_f32 v{w+5}, v{y}, v{y+1}",
                f"v_cvt_pk_bf16_f32 v{w+7}, v{y+2}, v{y+3}",
                f"v_lshlrev_b32 v{w}, 16, v{u}",
                f"v_and_b32 v{w+1}, 0xffff0000, v{u}",
                f"v_lshlrev_b32 v{w+2}, 16, v{u+1}",
                f"v_and_b32 v{w+3}, 0xffff0000, v{u+1}",
                f"v_lshlrev_b32 v{w+4}, 16, v{w+5}",
                f"v_and_b32 v{w+5}, 0xffff0000, v{w+5}",
                f"v_lshlrev_b32 v{w+6}, 16, v{w+7}",
                f"v_and_b32 v{w+7}, 0xffff0000, v{w+7}",
                f"v_pk_add_f32 {vr(w,2)}, {vr(w,2)}, {vr(w+4,2)}",
                f"v_pk_add_f32 {vr(w+2,2)}, {vr(w+2,2)}, {vr(w+6,2)}",
                f"v_cvt_pk_bf16_f32 v{u}, v{w}, v{w+1}",
                f"v_cvt_pk_bf16_f32 v{u+1}, v{w+2}, v{w+3}",
                f"buffer_store_dwordx2 {vr(u,2)}, v247, s[20:23], s34 offen offset:{512*t}" + WT["at"]]

    def spread(mm, fill):
        per = -(-len(fill) // len(mm)) if fill else 0
        for i, m in enumerate(mm):
            a(m)
            for op in fill[i * per:(i + 1) * per]:
                a(op)

    stamp(a)
    a(f"s_waitcnt vmcnt({4 + pf}) lgkmcnt(0)")
    a("ds_read_b32 v180, v249 offset:508")
    a("ds_read_u16 v181, v249 offset:512")
    a("ds_read_b64 v[182:183], v250 offset:248")
    a("ds_read_u16 v184, v250 offset:256")
    a("ds_read_u16 v185, v243 offset:514")
    a("ds_read_u16 v186, v243 offset:516")
    a("v_mov_b32 v4, 0")
    a("v_mov_b32 v5, 0")
    a("v_mov_b32 v6, 0")
    a("v_mov_b32 v7, 0")
    a("ds_write_b128 v238, v[4:7]")
    a("s_and_b32 s44, s28, 1")
    a("s_lshl_b32 s45, s36, 16")
    a("s_and_b32 s36, s36, 0xffff0000")
    a("s_cmp_eq_u32 s44, 0")
    a("s_cselect_b32 s36, s45, s36")
    a("s_mov_b32 s37, s36")
    a("s_waitcnt lgkmcnt(5)")
    a("v_lshl_or_b32 v188, v181, 16, v181")
    a("v_perm_b32 v189, v180, v180, s42")
    a("v_alignbit_b32 v190, v180, v180, 16")
    a("v_perm_b32 v191, v180, v180, s43")
    a("v_mov_b32 v192, v188")
    a("v_bfi_b32 v193, s41, v181, v180")
    a("v_mov_b32 v194, v189")
    a("v_mov_b32 v195, v191")
    a("ds_write_b128 v248, v[188:191] offset:64")
    a(f"ds_write_b128 v248, v[192:195] offset:{CV_O + 64}")
    a("v_lshlrev_b32 v5, 16, v181")
    a("v_mov_b32 v6, v188")
    a("v_mov_b32 v7, v188")
    a("v_mov_b32 v8, 0")
    a("v_mov_b32 v9, 0")
    a("v_mov_b32 v196, 0")
    a("v_mov_b32 v197, 0")
    a("v_mov_b32 v198, v188")
    a("v_mov_b32 v199, v188")
    a("s_mov_b64 s[54:55], exec")
    a("s_mov_b64 exec, 1")
    a("ds_write_b128 v248, v[4:7] offset:48")
    a(f"ds_write_b128 v248, v[196:199] offset:{CV_O + 48}")
    a("s_mov_b64 exec, s[54:55]")
    a("s_waitcnt lgkmcnt(7)")
    a("v_bfi_b32 v200, s41, v184, v183")
    a("v_perm_b32 v201, v183, v183, s43")
    a("v_bfi_b32 v202, s41, v183, v182")
    a("v_perm_b32 v203, v182, v182, s43")
    a("v_lshl_or_b32 v204, v184, 16, v184")
    a("v_alignbit_b32 v205, v183, v183, 16")
    a("v_mov_b32 v206, v201")
    a("v_alignbit_b32 v207, v182, v182, 16")
    a("s_mov_b32 exec_hi, 0")
    a(f"ds_write_b128 v248, v[200:203] offset:{68*16}")
    a(f"ds_write_b128 v248, v[204:207] offset:{CV_O + 68*16}")
    a("s_mov_b64 exec, s[54:55]")
    a("s_waitcnt lgkmcnt(7)")
    a("ds_write_b16 v251, v186")
    a("ds_write_b16 v245, v186")
    a("ds_write_b16 v251, v185 offset:384")
    a("ds_write_b16 v245, v185 offset:384")
    a(f"s_waitcnt vmcnt({pf}) lgkmcnt(0)")
    a("s_barrier")
    stamp(a)
    for op in loads(0):
        a(op)
    for rho in range(7):
        a("s_waitcnt lgkmcnt(0)")
        fill = loads(rho + 1)
        mm = mfmas(rho)
        if rho == 2:
            fill = window_pack() + fill + far_loads(0)
        elif rho == 3:
            mm = far_mfmas(0) + mm
            fill = fill + far_loads(1)
        elif rho == 4:
            mm = far_mfmas(1) + mm
        elif rho == 6:
            fill = fill + [f"ds_read_b64 {vr(UREG+2*t,2)}, v246 offset:{4096*t}" for t in range(8)]
        spread(mm, fill)
    a("s_waitcnt lgkmcnt(0)")
    seq = {t: [mfma(7, i, t - i) for i in range(min(t, 3) + 1)] for t in range(8)}
    for op in seq[0] + seq[1] + seq[2] + seq[3]:
        a(op)
    spread(seq[4] + seq[5], tile_epilogue(0) + tile_epilogue(1))
    spread(seq[6] + seq[7], tile_epilogue(2) + tile_epilogue(3))
    stamp(a)
    for op in interleave(tile_epilogue(4), tile_epilogue(5)) + interleave(tile_epilogue(6), tile_epilogue(7)):
        a(op)
    stamp_end(a, 1, 8)
    a("s_endpgm")


def gen_relayout(a):
    a(f"s_load_dwordx2 s[4:5], s[0:1], {KA_WD}")
    a(f"s_load_dwordx2 s[8:9], s[0:1], {KA_WS}")
    a("v_and_b32 v1, 63, v0")
    a("v_lshrrev_b32 v2, 6, v0")
    a(f"s_sub_u32 s28, s2, {N_G1 + N_CV}")
    a("s_mul_i32 s28, s28, 88")
    a("v_readfirstlane_b32 s30, v2")
    a("v_lshlrev_b32 v3, 4, v1")
    a("s_add_u32 s28, s28, s30")
    a("s_lshr_b32 s31, s28, 1")
    a("s_and_b32 s31, s31, 1")
    a("s_lshl_b32 s31, s31, 2")
    a("v_and_b32 v4, 7, v1")
    a("v_xor_b32 v4, s31, v4")
    a("v_lshrrev_b32 v5, 3, v1")
    a(f"s_mov_b32 s32, {WDT_TILE}")
    a("v_mul_lo_u32 v5, v5, s32")
    a("v_lshl_add_u32 v4, v4, 4, v5")
    a("s_lshl_b32 s33, s28, 10")
    a("s_lshl_b32 s34, s28, 7")
    a("s_waitcnt lgkmcnt(0)")
    srd(a, 12, 4, W_BYTES)
    srd(a, 16, 8, 8 * WDT_TILE, WS_WDT)
    for i in range(11):
        a(f"buffer_load_dwordx4 {vr(8+4*i,4)}, v3, s[12:15], s33 offen")
        a("s_add_u32 s33, s33, 8192")
    for i in range(11):
        a(f"s_waitcnt vmcnt(10)")
        a(f"buffer_store_dwordx4 {vr(8+4*i,4)}, v4, s[16:19], s34 offen offset:{(i%4)*1024}" + WT["wdt"])
        if i % 4 == 3:
            a("s_add_u32 s34, s34, 4096")
    a("s_endpgm")


def gen_k2(a):
    a.raw(".p2align 8")
    a.label("k2_kernel")
    a(f"s_cmp_ge_u32 s2, {N_G1 + N_CV + N_RL}")
    a("s_cbranch_scc1 k2_exit")
    a(f"s_cmp_ge_u32 s2, {N_G1 + N_CV}")
    a("s_cbranch_scc1 k2_relayout")
    a(f"s_cmp_ge_u32 s2, {N_G1}")
    a("s_cbranch_scc1 k2_conv")
    gen_gemm1(a)
    a.label("k2_conv")
    gen_conv(a)
    a.label("k2_relayout")
    gen_relayout(a)
    a.label("k2_exit")
    a("s_endpgm")


N_G2 = 256
G2_NS = 8
G2_STAGE = 16384
G2_AT = G2_NS * G2_STAGE
K3_LDS = G2_AT + 8192
G2_NST = FP // 64
G2_LEAD = 3


def gen_k3(a):
    a.raw(".p2align 8")
    a.label("k3_kernel")
    a(f"s_cmp_ge_u32 s2, {N_G2}")
    a("s_cbranch_scc1 k3_exit")
    stamp_begin(a)
    a(f"s_load_dwordx2 s[4:5], s[0:1], {KA_U}")
    a(f"s_load_dwordx4 s[8:11], s[0:1], {KA_WD}")
    a(f"s_load_dwordx2 s[6:7], s[0:1], {KA_WS}")
    a("v_and_b32 v1, 63, v0")
    a("v_lshrrev_b32 v2, 6, v0")
    if G2_MAP == 0:
        a("s_and_b32 s32, s2, 7")
        a("s_lshr_b32 s33, s2, 3")
        a("s_lshl_b32 s32, s32, 8")
        a("s_and_b32 s35, s33, 3")
        a("s_lshl_b32 s35, s35, 6")
        a("s_add_u32 s32, s32, s35")
        a("s_lshr_b32 s33, s33, 2")
        a("s_lshl_b32 s33, s33, 6")
    else:
        a("s_and_b32 s32, s2, 6")
        a("s_lshr_b32 s33, s2, 3")
        a("s_lshl_b32 s32, s32, 8")
        a("s_and_b32 s35, s33, 7")
        a("s_lshl_b32 s35, s35, 6")
        a("s_add_u32 s32, s32, s35")
        a("s_lshr_b32 s33, s33, 3")
        a("s_and_b32 s35, s2, 1")
        a("s_lshl_b32 s35, s35, 2")
        a("s_add_u32 s33, s33, s35")
        a("s_lshl_b32 s33, s33, 6")
    a("v_readfirstlane_b32 s34, v2")
    a("s_cmp_lt_u32 s34, 4")
    a("s_cbranch_scc1 k3_compute")
    a("s_sub_u32 s34, s34, 4")
    a("v_lshrrev_b32 v3, 3, v1")
    a("v_and_b32 v4, 7, v1")
    a("v_lshrrev_b32 v5, 4, v1")
    a(f"v_mul_u32_u24 v7, {H_STRIDE}, v3")
    a("s_lshl_b32 s36, s34, 2")
    a("v_add_u32 v6, s36, v5")
    a("v_and_b32 v6, 7, v6")
    a("v_xor_b32 v6, v6, v4")
    a("v_lshl_add_u32 v8, v6, 4, v7")
    a("v_and_b32 v6, 1, v5")
    a("v_lshlrev_b32 v6, 2, v6")
    a("v_xor_b32 v6, v6, v4")
    a("v_lshlrev_b32 v6, 4, v6")
    a("v_lshlrev_b32 v10, 4, v1")
    a("v_lshl_add_u32 v12, v3, 12, v6")
    a("s_lshl_b32 s36, s34, 3")
    a("s_add_u32 s37, s36, s32")
    a(f"s_mul_i32 s37, s37, {H_STRIDE}")
    a(f"s_mul_i32 s38, s33, {WDT_TILE // 64}")
    a("s_lshl_b32 s39, s34, 10")
    a("s_add_u32 s38, s38, s39")
    a("s_add_u32 s39, s36, s33")
    a("s_lshl_b32 s39, s39, 12")
    a("s_lshl_b32 s40, s32, 1")
    a("s_add_u32 s39, s39, s40")
    a("s_lshl_b32 s40, s34, 10")
    a("s_waitcnt lgkmcnt(0)")
    srd(a, 16, 6, 8 * WDT_TILE, WS_WDT)
    srd(a, 12, 6, H_BYTES, WS_H)
    srd(a, 20, 6, L * D * 2, WS_AT)

    def dma(stage):
        b = (stage % G2_NS) * G2_STAGE
        a(f"s_add_u32 m0, s40, {b+8192}")
        a("s_nop 0")
        a("buffer_load_dwordx4 v10, s[16:19], s38 offen lds")
        a(f"s_add_u32 m0, s40, {b}")
        a("s_add_u32 s38, s38, 8192")
        a("buffer_load_dwordx4 v8, s[12:15], s37 offen lds")
        a("s_add_u32 s37, s37, 128")

    AT_AFTER = 3
    issued = 0
    for st in range(G2_NST):
        want = min(G2_NST - 1, 2 * st + 2, st + G2_LEAD)
        while issued <= want:
            dma(issued)
            if issued == AT_AFTER:
                a(f"s_add_u32 m0, s40, {G2_AT}")
                a("s_nop 0")
                a("buffer_load_dwordx4 v12, s[20:23], s39 offen lds")
            issued += 1
        vm = 2 * (issued - 1 - st) + (1 if st <= AT_AFTER < issued else 0)
        if st in (0, 8, 16):
            stamp(a)
        a(f"s_waitcnt vmcnt({vm})")
        a("s_barrier")
    stamp_end(a, 2, 6)
    a("s_endpgm")
    a.label("k3_compute")
    if PRIO:
        a(f"s_setprio {PRIO}")
    _stamp_n[0] = 1 if PROF else 0
    a("s_and_b32 s41, s34, 1")
    a("s_lshr_b32 s42, s34, 1")
    a("v_and_b32 v3, 31, v1")
    a("v_lshrrev_b32 v4, 5, v1")
    a("s_lshl_b32 s43, s41, 5")
    a("s_add_u32 s43, s43, s32")
    a("v_add_u32 v14, s43, v3")
    a("v_lshlrev_b32 v14, 10, v14")
    a("v_lshl_add_u32 v14, v4, 5, v14")
    a("s_lshl_b32 s44, s42, 5")
    a("s_add_u32 s44, s44, s33")
    a("s_lshl_b32 s44, s44, 1")
    a("v_lshrrev_b32 v5, 1, v3")
    a("v_and_b32 v5, 7, v5")
    a("v_xor_b32 v5, v5, v4")
    a("v_lshlrev_b32 v6, 7, v3")
    a("s_lshl_b32 s45, s41, 12")
    a("v_add_u32 v6, s45, v6")
    for ks in range(4):
        a(f"v_xor_b32 v7, {2*ks}, v5")
        a(f"v_lshl_add_u32 v{16+ks}, v7, 4, v6")
    a("v_and_b32 v5, 15, v1")
    a("v_lshrrev_b32 v6, 2, v5")
    a("v_and_b32 v5, 3, v5")
    a("v_lshrrev_b32 v7, 4, v1")
    a("v_and_b32 v7, 1, v7")
    a("v_lshlrev_b32 v21, 3, v5")
    a("v_lshl_add_u32 v21, v7, 5, v21")
    a("v_lshrrev_b32 v22, 1, v6")
    a("v_xor_b32 v23, s41, v22")
    a("v_lshl_add_u32 v21, v23, 6, v21")
    a("v_lshl_add_u32 v23, v4, 4, v6")
    a("v_lshl_add_u32 v21, v23, 7, v21")
    a("s_lshl_b32 s45, s42, 12")
    a(f"s_add_u32 s45, s45, {G2_AT}")
    a("v_add_u32 v21, s45, v21")
    a("v_and_b32 v15, 1, v5")
    a("v_lshlrev_b32 v15, 5, v15")
    a("v_lshl_add_u32 v15, v7, 4, v15")
    a("v_lshrrev_b32 v5, 1, v5")
    a("v_lshl_add_u32 v15, v5, 3, v15")
    a("v_xor_b32 v22, s42, v22")
    a("v_lshl_add_u32 v15, v22, 6, v15")
    a("v_lshl_add_u32 v6, v4, 3, v6")
    a("v_lshl_add_u32 v15, v6, 7, v15")
    a("v_add_u32 v20, 8192, v15")
    a("s_waitcnt lgkmcnt(0)")
    srd(a, 24, 4, L * D * 2)
    srd(a, 28, 10, L * D * 2)
    a("buffer_load_dwordx4 v[24:27], v14, s[24:27], s44 offen")
    a("buffer_load_dwordx4 v[28:31], v14, s[24:27], s44 offen offset:16")

    ACC = 32
    FS = [48, 80]
    XA = 112
    ATR = 128
    AT_ST = 10

    def reads(st):
        f = FS[st & 1]
        o = (st % 4) * G2_STAGE
        out = []
        for ks in range(4):
            out.append(f"ds_read_b64_tr_b16 {vr(f+8*ks,2)}, v20 offset:{o+ks*2048}")
            out.append(f"ds_read_b64_tr_b16 {vr(f+8*ks+2,2)}, v20 offset:{o+ks*2048+512}")
            out.append(f"ds_read_b128 {vr(f+8*ks+4,4)}, v{16+ks} offset:{o}")
        return out

    def mfmas(st):
        f = FS[st & 1]
        c = vr(ACC, 16)
        return [f"v_mfma_f32_32x32x16_bf16 {c}, {vr(f+8*ks,4)}, {vr(f+8*ks+4,4)}, "
                f"{'0' if st == 0 and ks == 0 else c}" for ks in range(4)]

    def xa_ops(k):
        x, t = XA + 2 * k, 4
        return [f"v_lshlrev_b32 v{x}, 16, v{24+k}",
                f"v_and_b32 v{x+1}, 0xffff0000, v{24+k}",
                f"v_lshlrev_b32 v{t}, 16, v{ATR+k}",
                f"v_and_b32 v{t+1}, 0xffff0000, v{ATR+k}",
                f"v_pk_add_f32 {vr(x,2)}, {vr(x,2)}, {vr(t,2)}",
                f"v_cvt_pk_bf16_f32 v{x+1}, v{x}, v{x+1}",
                f"v_lshlrev_b32 v{x}, 16, v{x+1}",
                f"v_and_b32 v{x+1}, 0xffff0000, v{x+1}"]

    for st in range(-1, G2_NST):
        nx = st + 1
        body = []
        if nx < G2_NST:
            if nx in (0, 8, 16):
                stamp(a)
            a("s_waitcnt lgkmcnt(0)" if nx != AT_ST + 1 else "s_waitcnt vmcnt(0) lgkmcnt(0)")
            a("s_barrier")
            if nx and nx % 4 == 0:
                delta = 65536 if (nx % G2_NS) == 4 else -65536
                for r in (16, 17, 18, 19, 20):
                    a(f"v_add_u32 v{r}, {delta & 0xffffffff:#x}, v{r}")
            body = reads(nx)
            if nx == AT_ST:
                body += [f"ds_read_b64_tr_b16 {vr(ATR+2*i,2)}, v21 offset:{512*i}" for i in range(4)]
        else:
            a("s_waitcnt lgkmcnt(0)")
        if st >= 0:
            body = interleave(body, mfmas(st), every=3) if body else mfmas(st)
        if AT_ST < nx <= AT_ST + 4:
            k = 2 * (nx - AT_ST - 1)
            body += xa_ops(k) + xa_ops(k + 1)
        for op in body:
            a(op)
    a("s_nop 15")
    stamp(a)
    for k in range(8):
        a(f"v_cvt_pk_bf16_f32 v{48+k}, v{ACC+2*k}, v{ACC+2*k+1}")
    for k in range(8):
        a(f"v_lshlrev_b32 v{ACC+2*k}, 16, v{48+k}")
        a(f"v_and_b32 v{ACC+2*k+1}, 0xffff0000, v{48+k}")
    for k in range(8):
        a(f"v_pk_add_f32 {vr(ACC+2*k,2)}, {vr(ACC+2*k,2)}, {vr(XA+2*k,2)}")
    for k in range(8):
        a(f"v_cvt_pk_bf16_f32 v{56+k}, v{ACC+2*k}, v{ACC+2*k+1}")
        if k == 3:
            a("buffer_store_dwordx4 v[56:59], v14, s[28:31], s44 offen" + WT["out"])
    a("buffer_store_dwordx4 v[60:63], v14, s[28:31], s44 offen offset:16" + WT["out"])
    stamp_end(a, 2, 6)
    a.label("k3_exit")
    a("s_endpgm")


def gen_k4(a):
    a.raw(".p2align 8")
    a.label("k4_kernel")
    a("s_cmp_ge_u32 s2, 1")
    a("s_cbranch_scc1 k4_exit")
    a(f"s_load_dwordx4 s[4:7], s[0:1], {KA_DBG}")
    a("s_memrealtime s[20:21]")
    a("s_waitcnt lgkmcnt(0)")
    srd(a, 8, 6, 0x1000000, PROF_BASE)
    srd(a, 12, 4, 256)
    groups = [(0, 0, 256, 0, 4), (0, 0, 256, 4, 8), (1, 0, 176, 0, 4), (1, 176, 240, 0, 8), (2, 0, 256, 0, 4)]
    for gi, (l, lo, hi, w0, w1) in enumerate(groups):
        a("v_mov_b32 v4, -1")
        a("v_mov_b32 v5, 0")
        for base in range(lo, hi, 64):
            n = min(64, hi - base)
            a(f"v_min_u32 v2, {n-1}, v0")
            a(f"v_add_u32 v2, {l*512 + base}, v2")
            a("v_lshlrev_b32 v2, 10, v2")
            for w in range(w0, w1):
                a(f"buffer_load_dwordx2 {vr(8+2*(w-w0),2)}, v2, s[8:11], 0 offen offset:{64*w}")
            a("s_waitcnt vmcnt(0)")
            for w in range(w0, w1):
                a(f"v_min_u32 v4, v4, v{8+2*(w-w0)}")
                a(f"v_max_u32 v5, v5, v{9+2*(w-w0)}")
        a("s_mov_b32 s22, -1")
        a("s_mov_b32 s23, 0")
        for ln in range(64):
            a(f"v_readlane_b32 s24, v4, {ln}")
            a(f"v_readlane_b32 s25, v5, {ln}")
            a("s_nop 1")
            a("s_min_u32 s22, s22, s24")
            a("s_max_u32 s23, s23, s25")
        a(f"s_mov_b32 s{30+2*gi}, s22")
        a(f"s_mov_b32 s{31+2*gi}, s23")
    a("v_mov_b32 v3, 0")
    for i in range(10):
        a(f"s_sub_u32 s24, s{30+i}, s30")
        a("v_mov_b32 v6, s24")
        a(f"buffer_store_dword v6, v3, s[12:15], 0 offen offset:{4*i}")
        a("s_nop 1")
    a("s_sub_u32 s24, s20, s30")
    a("v_mov_b32 v6, s24")
    a("buffer_store_dword v6, v3, s[12:15], 0 offen offset:40")
    if SPIN:
        hi, lo = SPIN
        a("s_max_u32 s31, s31, s33")
        a("s_min_u32 s34, s34, s36")
        a("s_max_u32 s35, s35, s37")
        a(f"s_sub_u32 s24, s{hi}, s{lo}")
        a("s_min_u32 s24, s24, 3000")
        a("s_lshl_b32 s24, s24, 2")
        a("s_memrealtime s[26:27]")
        a("s_waitcnt lgkmcnt(0)")
        a("s_add_u32 s24, s24, s26")
        a.label("k4_spin")
        a("s_memrealtime s[26:27]")
        a("s_waitcnt lgkmcnt(0)")
        a("s_sub_u32 s25, s24, s26")
        a("s_cmp_gt_i32 s25, 0")
        a("s_cbranch_scc1 k4_spin")
    a.label("k4_exit")
    a("s_endpgm")


def descriptor(name, vgpr, sgpr):
    acc = (vgpr + 3) // 4 * 4
    return f""".p2align 6
.amdhsa_kernel {name}
  .amdhsa_next_free_vgpr {vgpr}
  .amdhsa_next_free_sgpr {sgpr}
  .amdhsa_accum_offset {acc}
  .amdhsa_group_segment_fixed_size 0
  .amdhsa_kernarg_size 112
  .amdhsa_user_sgpr_count 2
  .amdhsa_user_sgpr_kernarg_segment_ptr 1
  .amdhsa_system_sgpr_workgroup_id_x 1
.end_amdhsa_kernel
"""


HEADER = """
out = x + (S4D causal conv(xn) + xn*D) + ReGLU-MLP(xn), xn = LayerNorm(x); bf16 rounding points follow the reference.
kernarg: A_u, log_A_real, A_imag, C_real, C_imag, log_dt, D_skip, B_x, W_gate, W_up, W_down, out, dbg, ws
k1: waves 0-3 build the S4D kernel table of 2 channels (exp(a*p) factorised as X[hi] * Y[lo], summed over n by MFMA,
    only the 641 positions a bf16 index can take); waves 4-7 LayerNorm 8 rows -> xn and time-blocked xn^T.
k2: WGs 0-175 gate/up GEMM (256 x 64 tiles, 4 MFMA waves + 4 LDS-DMA waves) -> h; WGs 176-239 causal convolution,
    one channel per wave, Toeplitz fragments by MFMA (taps >= 1029 through exact window sums, K is constant over
    each bf16 rounding group); WGs 240-255 rewrite W_down tile by tile.
k3: down GEMM (64 x 64 tiles, 4 MFMA waves + 8 LDS-DMA waves) and the final sum.
"""


def main(path):
    a = Asm()
    for ln in HEADER.strip("\n").split("\n"):
        a.raw(("; " + ln).rstrip())
    a.raw(f"; @launch kernel=k1_kernel grid=({N_K1},1,1) block=(512,1,1) lds={K1_LDS}")
    a.raw(f"; @launch kernel=k2_kernel grid=({N_G1+N_CV+N_RL},1,1) block=(512,1,1) lds={K2_LDS}")
    a.raw(f"; @launch kernel=k3_kernel grid=({N_G2},1,1) block=(768,1,1) lds={K3_LDS}")
    if K4:
        a.raw("; @launch kernel=k4_kernel grid=(1,1,1) block=(64,1,1) lds=0")
    a.raw('.amdgcn_target "amdgcn-amd-amdhsa--gfx950"')
    a.raw(".text")
    for k in ("k1_kernel", "k2_kernel", "k3_kernel") + (("k4_kernel",) if K4 else ()):
        a.raw(f".globl {k}")
        a.raw(f".type {k},@function")
    gen_k1(a)
    gen_k2(a)
    gen_k3(a)
    a.label("code_end")
    if K4:
        gen_k4(a)
    a.raw('.section .rodata,"a"')
    if K4:
        a.raw(descriptor("k4_kernel", 32, 48))
    sg = 102 if PROF else 0
    a.raw(descriptor("k1_kernel", 164, max(sg, 74)))
    a.raw(descriptor("k2_kernel", 256, max(sg, 56)))
    a.raw(descriptor("k3_kernel", 136, max(sg, 56)))
    open(path, "w").write(a.text())


if __name__ == "__main__":
    for arg in list(sys.argv):
        if arg.startswith("--prio="):
            PRIO = int(arg[7:])
            sys.argv.remove(arg)
        if arg.startswith("--g2map="):
            G2_MAP = int(arg[8:])
            sys.argv.remove(arg)
        if arg.startswith("--lead="):
            G2_LEAD = int(arg[7:])
            sys.argv.remove(arg)
        if arg.startswith("--spin="):
            SPIN = tuple(int(x) for x in arg[7:].split(","))
            sys.argv.remove(arg)
        if arg.startswith("--wt="):
            flag, names = arg[5:].split(":")
            for nm in names.split(","):
                WT[nm] = " " + flag.replace("+", " ")
            sys.argv.remove(arg)
        if arg.startswith("--epi="):
            EPI = arg[6:]
            sys.argv.remove(arg)
    if "--nocodepf" in sys.argv:
        sys.argv.remove("--nocodepf")
        CODE_PF = False
    if "--notouch" in sys.argv:
        sys.argv.remove("--notouch")
        TOUCH = False
    if "--k4" in sys.argv:
        sys.argv.remove("--k4")
        K4 = PROF = True
    if "--prof" in sys.argv:
        sys.argv.remove("--prof")
        PROF = True
    main(sys.argv[1] if len(sys.argv) > 1 else f"cdna_kernels/{NAME}.s")
```

```python
import struct
import sys

NAME = "parallel_sum__ssm_conv_s4d__glu_gated_reglu__prompt"

L, D, N, F = 2048, 512, 128, 1376
FP = 1408
WS_XN = 0x000000
WS_XNT = 0x240000
WS_KR = 0x480000
WS_H = 0x880000
WS_AT = 0xE80000
XN_STRIDE = 1024 + 128
XN_BYTES = L * XN_STRIDE
H_STRIDE = 2 * FP + 128
H_BYTES = L * H_STRIDE
XNT_STRIDE = 8192 + 128
XNT_BYTES = (L // 8) * XNT_STRIDE
W_BYTES = D * F * 2
WS_WDT = WS_AT + L * D * 2
WDT_TILE = FP * 128
WS_END = WS_WDT + 8 * WDT_TILE
TOUCH = False
CODE_PF = True
PRIO = 0
G2_MAP = 0
G1_MAP = True
EPI = "dot"
WT = dict(xn=" sc1", xnt=" sc1", k="", at=" sc1", wdt=" sc1", h=" sc1", out="")

KA_U, KA_LAR, KA_AI, KA_CR, KA_CI, KA_LDT, KA_DSK, KA_BX, KA_WG, KA_WU, KA_WD, KA_OUT, KA_DBG, KA_WS = \
    [8 * i for i in range(14)]


def f32(x):
    return "0x%08x" % struct.unpack("<I", struct.pack("<f", x))[0]


class Asm:
    def __init__(self):
        self.lines = []

    def __call__(self, s):
        for ln in s.strip("\n").split("\n"):
            self.lines.append("  " + ln.strip())

    def label(self, s):
        self.lines.append(s + ":")

    def raw(self, s):
        self.lines.append(s)

    def text(self):
        return "\n".join(self.lines) + "\n"


PROF = False
K4 = False
SPIN = None
PROF_BASE = 0x1400000
_stamp_n = [0]


def stamp_begin(a):
    _stamp_n[0] = 0
    if PROF:
        a("s_memrealtime s[80:81]")
        a("s_memtime s[82:83]")
        _stamp_n[0] = 1


def stamp(a):
    if PROF:
        k = _stamp_n[0]
        a(f"s_memtime s[{82+2*k}:{83+2*k}]")
        _stamp_n[0] += 1


def stamp_end(a, launch, ws_lo):
    if not PROF:
        return
    stamp(a)
    n = _stamp_n[0]
    a("s_waitcnt lgkmcnt(0)")
    a("s_memrealtime s[98:99]")
    a(f"s_add_u32 s76, s{ws_lo}, {PROF_BASE}")
    a(f"s_addc_u32 s77, s{ws_lo+1}, 0")
    a("s_mov_b32 s78, 0x1000000")
    a("s_mov_b32 s79, 0x00020000")
    a("v_lshrrev_b32 v2, 6, v0")
    a(f"s_add_u32 s75, s2, {launch*512}")
    a("s_lshl_b32 s75, s75, 10")
    a("v_lshlrev_b32 v2, 6, v2")
    a("v_add_u32 v2, s75, v2")
    a("s_waitcnt lgkmcnt(0)")
    a("v_mov_b32 v4, s80")
    a("v_mov_b32 v5, s98")
    a("buffer_store_dwordx2 v[4:5], v2, s[76:79], 0 offen")
    for k in range(n):
        a(f"v_mov_b32 v6, s{82+2*k}")
        a(f"buffer_store_dword v6, v2, s[76:79], 0 offen offset:{8+4*k}")
        a("s_nop 1")


def vr(b, n):
    return "v[%d:%d]" % (b, b + n - 1)


def sr(b, n):
    return "s[%d:%d]" % (b, b + n - 1)


def srd(a, dst, base, nbytes, add=0):
    if add:
        a(f"s_add_u32 s{dst}, s{base}, {add}")
        a(f"s_addc_u32 s{dst+1}, s{base+1}, 0")
    else:
        a(f"s_mov_b32 s{dst}, s{base}")
        a(f"s_mov_b32 s{dst+1}, s{base+1}")
    a(f"s_mov_b32 s{dst+2}, {nbytes}")
    a(f"s_mov_b32 s{dst+3}, 0x00020000")


_pc_n = [0]


def code_prefetch(a, lo, hi, slice_sgpr, lane16, dst, sbase):
    _pc_n[0] += 1
    lab = f"pc_ref{_pc_n[0]}"
    a(f"s_getpc_b64 {sr(sbase,2)}")
    a.label(lab)
    a(f"s_add_u32 s{sbase}, s{sbase}, ({lo} - {lab}) & 0xffffffff")
    a(f"s_addc_u32 s{sbase+1}, s{sbase+1}, (({lo} - {lab}) >> 32) & 0xffffffff")
    a(f"s_mov_b32 s{sbase+2}, {hi} - {lo}")
    a(f"s_mov_b32 s{sbase+3}, 0x00020000")
    a(f"s_lshl_b32 s{slice_sgpr}, s{slice_sgpr}, 10")
    a(f"buffer_load_dwordx4 {vr(dst,4)}, v{lane16}, {sr(sbase,4)}, s{slice_sgpr} offen")


def interleave(main, fill, every=1, start=0):
    out = []
    fill = list(fill)
    for i, m in enumerate(main):
        out.append(m)
        if i >= start and (i - start) % every == every - 1 and fill:
            out.append(fill.pop(0))
    out.extend(fill)
    return out


N_K1 = 256
LN_STRIDE = 1088
KG_ROW = 544
KG_XA, KG_YB, KG_T = 0, 24 * KG_ROW, 56 * KG_ROW
KG_CH = KG_T + 3072
LN_LDS = 2 * KG_CH
K1_LDS = LN_LDS + 8 * LN_STRIDE
LOG2E = 1.4426950408889634
L_HI = 47274.0 / 32768.0
C_LO = (LOG2E - L_HI) * 0.6931471805599453
T_BIAS = 0x3F7F
KT_BYTES = 3072
KT_O, KT_TAB = 1024, 2048
PF_W = 6


def dpp_reduce(a, regs):
    steps = ["row_shr:1 row_mask:0xf bank_mask:0xf bound_ctrl:0",
             "row_shr:2 row_mask:0xf bank_mask:0xf bound_ctrl:0",
             "row_shr:4 row_mask:0xf bank_mask:0xf bound_ctrl:0",
             "row_shr:8 row_mask:0xf bank_mask:0xf bound_ctrl:0",
             "row_bcast:15 row_mask:0xa bank_mask:0xf",
             "row_bcast:31 row_mask:0xc bank_mask:0xf"]
    a("s_nop 1")
    for st in steps:
        for r in regs:
            a(f"v_add_f32_dpp v{r}, v{r}, v{r} {st}")
    a("s_nop 1")


def bf16_round(a, dst, src):
    a(f"v_cvt_pk_bf16_f32 v{dst}, v{src}, v{src}")
    a(f"v_lshlrev_b32 v{dst}, 16, v{dst}")


def gen_ln(a):
    stamp_begin(a)
    if CODE_PF:
        a("v_lshlrev_b32 v3, 4, v1")
        a("s_lshr_b32 s45, s2, 3")
        a("s_lshl_b32 s45, s45, 1")
        a("s_sub_u32 s46, s44, 6")
        a("s_add_u32 s45, s45, s46")
        a("s_cmp_lt_u32 s44, 6")
        a("s_cbranch_scc1 k1_no_pf")
        code_prefetch(a, "k1_kernel", "code_end", 45, 3, 76, 56)
        a("s_branch k1_pf_done")
        a.label("k1_no_pf")
        a("s_nop 0")
        a.label("k1_pf_done")
    a(f"s_load_dwordx2 s[4:5], s[0:1], {KA_U}")
    a(f"s_load_dwordx2 s[6:7], s[0:1], {KA_WS}")
    a(f"s_load_dwordx4 s[48:51], s[0:1], {KA_WG}")
    a(f"s_load_dwordx4 s[68:71], s[0:1], {KA_WD}")
    a(f"s_load_dwordx2 s[54:55], s[0:1], {KA_DSK}")
    a("s_sub_u32 s22, s44, 4")
    a("s_and_b32 s20, s2, 7")
    a("s_lshr_b32 s21, s2, 3")
    a("s_lshl_b32 s20, s20, 8")
    a("s_lshl_b32 s23, s21, 3")
    a("s_add_u32 s20, s20, s23")
    a("s_lshl_b32 s23, s22, 1")
    a("s_add_u32 s23, s23, s20")
    a("s_lshl_b32 s24, s23, 10")
    a(f"s_mul_i32 s53, s23, {XN_STRIDE}")
    a("v_lshlrev_b32 v3, 4, v1")
    a("s_lshl_b32 s52, s2, 2")
    a("s_add_u32 s52, s52, s22")
    a("s_lshl_b32 s52, s52, 11")
    a(f"s_mul_i32 s25, s22, {2*LN_STRIDE}")
    a(f"s_add_u32 s25, s25, {LN_LDS}")
    a("v_add_u32 v4, s25, v3")
    a("v_and_b32 v5, 15, v1")
    a("v_lshrrev_b32 v6, 2, v5")
    a("v_and_b32 v5, 3, v5")
    a("v_lshrrev_b32 v7, 4, v1")
    a(f"v_mul_u32_u24 v6, {LN_STRIDE}, v6")
    a("v_lshlrev_b32 v5, 3, v5")
    a("v_lshl_add_u32 v5, v7, 5, v5")
    a("v_add_u32 v5, v5, v6")
    a("s_lshl_b32 s26, s22, 8")
    a(f"s_add_u32 s26, s26, {LN_LDS}")
    a("v_add_u32 v5, s26, v5")
    a("s_lshl_b32 s27, s22, 7")
    a("v_add_u32 v6, s27, v1")
    a("v_lshlrev_b32 v6, 4, v6")
    a(f"s_mul_i32 s28, s20, {XNT_STRIDE // 8}")
    a("s_waitcnt lgkmcnt(0)")
    srd(a, 8, 4, L * D * 2)
    for r in range(2):
        a(f"buffer_load_dwordx4 {vr(8+4*r,4)}, v3, s[8:11], s24 offen offset:{r*1024}")
    srd(a, 56, 48, W_BYTES)
    srd(a, 60, 50, W_BYTES)
    srd(a, 64, 68, W_BYTES)
    if TOUCH:
        a("s_cmp_ge_u32 s2, 16")
        a("s_cbranch_scc1 k1_no_touch")
        srd(a, 12, 6, WS_END)
        srd(a, 16, 70, L * D * 2)
        a("v_lshlrev_b32 v60, 18, v1")
        a("s_lshl_b32 s45, s22, 16")
        a("buffer_load_dword v61, v60, s[12:15], s45 offen")
        a("v_lshlrev_b32 v60, 15, v1")
        a(f"s_mov_b32 s45, {1 << 24}")
        a("buffer_load_dword v61, v60, s[12:15], s45 offen")
        a("buffer_load_dword v61, v60, s[16:19], 0 offen")
        srd(a, 16, 54, D * 2)
        a("buffer_load_dword v61, v3, s[16:19], 0 offen")
        for i in range(2):
            a(f"buffer_load_dwordx4 v[72:75], v3, s[56:59], s52 offen offset:{i*1024}")
        a("s_branch k1_touched")
        a.label("k1_no_touch")
    for i in range(2):
        for b in (56, 60, 64):
            a(f"buffer_load_dwordx4 v[72:75], v3, {sr(b,4)}, s52 offen offset:{i*1024}")
    if TOUCH:
        a.label("k1_touched")
    srd(a, 12, 6, XN_BYTES, WS_XN)
    srd(a, 16, 6, XNT_BYTES, WS_XNT)
    X = lambda r, e: 32 + 8 * r + e
    stamp(a)
    for r in range(2):
        a(f"s_waitcnt vmcnt({PF_W + 1 - r})")
        if r == 0:
            stamp(a)
        for k in range(4):
            a(f"v_lshlrev_b32 v{X(r,2*k)}, 16, v{8+4*r+k}")
            a(f"v_and_b32 v{X(r,2*k+1)}, 0xffff0000, v{8+4*r+k}")
        a(f"v_readfirstlane_b32 s{30+2*r}, v{X(r,0)}")
        a(f"v_pk_add_f32 v[48:49], {vr(X(r,0),2)}, {vr(X(r,2),2)}")
        a(f"v_pk_add_f32 v[50:51], {vr(X(r,4),2)}, {vr(X(r,6),2)}")
        a(f"s_mov_b32 s{31+2*r}, s{30+2*r}")
        a("v_pk_add_f32 v[48:49], v[48:49], v[50:51]")
        for k in range(4):
            a(f"v_pk_add_f32 {vr(52+2*k,2)}, {vr(X(r,2*k),2)}, {sr(30+2*r,2)} neg_lo:[0,1] neg_hi:[0,1]")
        a(f"v_add_f32 v{24+2*r}, v48, v49")
        a("v_pk_mul_f32 v[50:51], v[52:53], v[52:53]")
        a("v_pk_mul_f32 v[48:49], v[54:55], v[54:55]")
        a("v_pk_fma_f32 v[50:51], v[56:57], v[56:57], v[50:51]")
        a("v_pk_fma_f32 v[48:49], v[58:59], v[58:59], v[48:49]")
        a("v_pk_add_f32 v[48:49], v[48:49], v[50:51]")
        a(f"v_add_f32 v{25+2*r}, v48, v49")
    dpp_reduce(a, [24, 25, 26, 27])
    for r in range(2):
        a(f"v_mul_f32 v{24+2*r}, {f32(1.0/512)}, v{24+2*r}")
        a(f"v_mul_f32 v{25+2*r}, {f32(1.0/512)}, v{25+2*r}")
    for r in range(2):
        a(f"v_subrev_f32 v{28+r}, s{30+2*r}, v{24+2*r}")
        bf16_round(a, 24 + 2 * r, 24 + 2 * r)
    for r in range(2):
        a(f"v_fma_f32 v{25+2*r}, -v{28+r}, v{28+r}, v{25+2*r}")
        a(f"v_max_f32 v{25+2*r}, 0, v{25+2*r}")
    for r in range(2):
        bf16_round(a, 25 + 2 * r, 25 + 2 * r)
    for r in range(2):
        a(f"v_add_f32 v{25+2*r}, {f32(1e-5)}, v{25+2*r}")
        a(f"v_readlane_b32 s{36+2*r}, v{24+2*r}, 63")
    for r in range(2):
        bf16_round(a, 25 + 2 * r, 25 + 2 * r)
    for r in range(2):
        a(f"v_sqrt_f32 v{25+2*r}, v{25+2*r}")
    for r in range(2):
        a(f"s_mov_b32 s{37+2*r}, s{36+2*r}")
    for r in range(2):
        bf16_round(a, 25 + 2 * r, 25 + 2 * r)
    for r in range(2):
        a(f"v_rcp_f32 v{25+2*r}, v{25+2*r}")
    for r in range(2):
        for k in range(4):
            a(f"v_pk_add_f32 {vr(X(r,2*k),2)}, {vr(X(r,2*k),2)}, {sr(36+2*r,2)} neg_lo:[0,1] neg_hi:[0,1]")
    for r in range(2):
        a(f"v_readlane_b32 s{40+2*r}, v{25+2*r}, 63")
    for r in range(2):
        for k in range(4):
            a(f"v_cvt_pk_bf16_f32 v{8+4*r+k}, v{X(r,2*k)}, v{X(r,2*k+1)}")
    for r in range(2):
        a(f"s_mov_b32 s{41+2*r}, s{40+2*r}")
    for r in range(2):
        for k in range(4):
            a(f"v_lshlrev_b32 v{X(r,2*k)}, 16, v{8+4*r+k}")
            a(f"v_and_b32 v{X(r,2*k+1)}, 0xffff0000, v{8+4*r+k}")
        for k in range(4):
            a(f"v_pk_mul_f32 {vr(X(r,2*k),2)}, {vr(X(r,2*k),2)}, {sr(40+2*r,2)}")
        for k in range(4):
            a(f"v_cvt_pk_bf16_f32 v{16+4*r+k}, v{X(r,2*k)}, v{X(r,2*k+1)}")
        a(f"ds_write_b128 v4, {vr(16+4*r,4)} offset:{r*LN_STRIDE}")
        a(f"buffer_store_dwordx4 {vr(16+4*r,4)}, v3, s[12:15], s53 offen offset:{r*XN_STRIDE}" + WT["xn"])
    a("s_waitcnt lgkmcnt(0)")
    stamp(a)
    a("s_barrier")
    for blk in range(2):
        for tb in range(2):
            a(f"ds_read_b64_tr_b16 {vr(32+4*blk+2*tb,2)}, v5 offset:{blk*128 + tb*4*LN_STRIDE}")
    a("s_waitcnt lgkmcnt(2)")
    a("buffer_store_dwordx4 v[32:35], v6, s[16:19], s28 offen" + WT["xnt"])
    a("s_waitcnt lgkmcnt(0)")
    a("buffer_store_dwordx4 v[36:39], v6, s[16:19], s28 offen offset:1024" + WT["xnt"])
    stamp_end(a, 0, 6)
    a("s_endpgm")


def exp_acc(a, dst, x, t):
    a(f"v_mul_f32 v{dst}, {f32(L_HI)}, v{x}")
    a(f"v_exp_f32 v{dst}, v{dst}")
    a(f"v_mul_f32 v{t}, {f32(C_LO)}, v{x}")
    a(f"v_fma_f32 v{dst}, v{dst}, v{t}, v{dst}")


def cmul(t, z, w):
    return [f"v_pk_mul_f32 {vr(t,2)}, {vr(z,2)}, {vr(w,2)} op_sel:[0,0] op_sel_hi:[1,0]",
            f"v_pk_fma_f32 {vr(t,2)}, {vr(z,2)}, {vr(w,2)}, {vr(t,2)} op_sel:[1,1,0] op_sel_hi:[0,1,1] "
            f"neg_lo:[1,0,0]"]


def gen_kgen(a):
    stamp_begin(a)
    a(f"s_load_dwordx8 s[4:11], s[0:1], {KA_LAR}")
    a(f"s_load_dwordx2 s[12:13], s[0:1], {KA_LDT}")
    a(f"s_load_dwordx2 s[14:15], s[0:1], {KA_WS}")
    a("s_and_b32 s41, s2, 7")
    a("s_lshr_b32 s42, s2, 3")
    a("s_lshr_b32 s43, s42, 2")
    a("s_lshl_b32 s43, s43, 6")
    a("s_lshl_b32 s41, s41, 3")
    a("s_add_u32 s41, s41, s43")
    a("s_and_b32 s42, s42, 3")
    a("s_lshl_b32 s42, s42, 1")
    a("s_add_u32 s41, s41, s42")
    a("s_lshr_b32 s45, s44, 1")
    a("s_and_b32 s46, s44, 1")
    a("s_add_u32 s47, s41, s45")
    a("s_lshl_b32 s48, s46, 6")
    a("v_add_u32 v3, s48, v1")
    a("s_lshl_b32 s49, s47, 8")
    a("v_lshlrev_b32 v4, 1, v3")
    a("s_lshl_b32 s50, s47, 1")
    a("v_mov_b32 v5, s50")
    a("s_waitcnt lgkmcnt(0)")
    srd(a, 16, 4, D * N * 2)
    srd(a, 32, 12, D * 2)
    a("buffer_load_ushort v8, v4, s[16:19], s49 offen")
    a("buffer_load_ushort v12, v5, s[32:35], 0 offen")
    srd(a, 20, 6, D * N * 2)
    a("buffer_load_ushort v9, v4, s[20:23], s49 offen")
    srd(a, 24, 8, D * N * 2)
    a("buffer_load_ushort v10, v4, s[24:27], s49 offen")
    srd(a, 28, 10, D * N * 2)
    a("buffer_load_ushort v11, v4, s[28:31], s49 offen")
    srd(a, 36, 14, D * KT_BYTES, WS_KR)
    a(f"s_mul_i32 s51, s45, {KG_CH}")
    a("v_lshlrev_b32 v6, 2, v3")
    a("v_add_u32 v6, s51, v6")
    a("v_and_b32 v7, 15, v1")
    a("v_lshrrev_b32 v2, 4, v1")
    a(f"v_mul_u32_u24 v13, {KG_ROW}, v7")
    a("v_lshl_add_u32 v13, v2, 4, v13")
    a("v_add_u32 v100, s51, v13")
    a(f"s_mul_i32 s52, s46, {16*KG_ROW}")
    a("v_add_u32 v101, s52, v100")
    quads = [(0, 1), (4, 1), (256, 2), (512, 256)], [(1536, 256), (516, 256), (4097, 0), (4097, 0)]
    a("s_cmp_eq_u32 s46, 0")
    for q in range(4):
        a(f"s_mov_b32 s64, {f32(float(quads[0][q][0]))}")
        a(f"s_mov_b32 s65, {f32(float(quads[0][q][1]))}")
        a(f"s_cselect_b32 s{56+q}, s64, {f32(float(quads[1][q][0]))}")
        a(f"s_cselect_b32 s{60+q}, s65, {f32(float(quads[1][q][1]))}")
    a("v_mov_b32 v14, s56")
    a("v_mov_b32 v15, s60")
    for q in range(1, 4):
        a(f"v_cmp_eq_u32 vcc, {q}, v2")
        a(f"v_mov_b32 v16, s{56+q}")
        a(f"v_mov_b32 v17, s{60+q}")
        a("v_cndmask_b32 v14, v14, v16, vcc")
        a("v_cndmask_b32 v15, v15, v17, vcc")
    a("v_cvt_f32_u32 v16, v7")
    a("v_fmac_f32 v14, 0x41000000, v16")
    a(f"s_add_u32 s53, s51, {KG_T + KT_TAB - 2*0x4380}")
    a(f"s_add_u32 s54, s51, {KG_T + 3000}")
    a(f"s_add_u32 s57, s51, {KG_T + 510}")
    a(f"s_add_u32 s58, s51, {KG_T + KT_O + 512}")
    a("v_mov_b32 v19, s54")
    TW, TW2 = 102, 112
    for jt in range(2):
        for r in range(4):
            p = 20 + 4 * jt + r
            if r == 0:
                a(f"v_mov_b32 v{p}, v14" if jt == 0 else f"v_add_f32 v{p}, 0x43000000, v14")
            else:
                a(f"v_add_f32 v{p}, v{p-1}, v15")
    for i in range(8):
        p, b, b2 = 20 + i, TW + i, TW2 + i
        a(f"v_cvt_pk_bf16_f32 v{b}, v{p}, v{p}")
        a(f"v_cvt_u32_f32 v17, v{p}")
        a(f"v_and_b32 v16, 0xffff0000, v{b}")
        a(f"v_cmp_eq_u32 vcc, v16, v{p}")
        a(f"v_and_b32 v{b}, 0xffff, v{b}")
        a(f"v_lshl_add_u32 v{b}, v{b}, 1, s53")
        a(f"v_cndmask_b32 v{b}, v19, v{b}, vcc")
        a("v_lshlrev_b32 v16, 1, v17")
        a("v_cmp_gt_u32 vcc, 256, v17")
        a("v_sub_u32 v18, s57, v16")
        a(f"v_sub_u32 v{b2}, s58, v16")
        a(f"v_cndmask_b32 v{b}, v{b}, v18, vcc")
        a("v_cmp_ge_u32 vcc, 256, v17")
        a("s_nop 1")
        a(f"v_cndmask_b32 v{b2}, v19, v{b2}, vcc")
    a("v_mov_b32 v20, 0")
    a("v_mov_b32 v21, 0")
    a("v_mov_b32 v22, 0")
    a("v_mov_b32 v23, 0")
    a("v_and_b32 v16, 1, v1")
    a("v_lshlrev_b32 v16, 4, v16")
    a(f"s_mul_i32 s59, s46, {KT_O}")
    a("s_add_u32 s59, s59, s57")
    a("v_add_u32 v16, s59, v16")
    a("ds_write_b128 v16, v[20:23] offset:2")
    a("v_lshlrev_b32 v130, 4, v3")
    a(f"s_add_u32 s55, s51, {KG_T}")
    a("v_add_u32 v110, s55, v130")
    a(f"s_mul_i32 s55, s47, {KT_BYTES}")
    a("v_mov_b32 v14, 0x00003f80")
    a(f"ds_write_b32 v6, v14 offset:{KG_YB}")
    stamp(a)
    a("s_waitcnt vmcnt(3)")
    stamp(a)
    a("v_lshlrev_b32 v12, 16, v12")
    a("v_lshlrev_b32 v8, 16, v8")
    exp_acc(a, 13, 12, 14)
    exp_acc(a, 15, 8, 16)
    bf16_round(a, 13, 13)
    bf16_round(a, 15, 15)
    a("s_waitcnt vmcnt(2)")
    a("v_lshlrev_b32 v9, 16, v9")
    a("v_mul_f32 v15, v15, v13")
    a("v_mul_f32 v16, v9, v13")
    a(f"v_mul_f32 v15, {f32(-LOG2E)}, v15")
    a(f"v_mul_f32 v16, {f32(0.15915494309189535)}, v16")
    seeds = [(1, 20, 1), (256, 22, 1), (8, 24, -1), (64, 26, -1)]
    for i, (p, z, sg) in enumerate(seeds):
        a(f"v_mul_f32 v{32+i}, {f32(float(p))}, v15")
        a(f"v_mul_f32 v{36+i}, {f32(float(p*sg))}, v16")
    for i in range(4):
        a(f"v_exp_f32 v{32+i}, v{32+i}")
        a(f"v_fract_f32 v{36+i}, v{36+i}")
    for i, (p, z, sg) in enumerate(seeds):
        a(f"v_cos_f32 v{z}, v{36+i}")
        a(f"v_sin_f32 v{z+1}, v{36+i}")
    a("s_waitcnt vmcnt(0)")
    a("v_lshlrev_b32 v10, 16, v10")
    a("v_lshlrev_b32 v11, 16, v11")
    a("v_add_f32 v13, v13, v13")
    for i, (p, z, sg) in enumerate(seeds):
        a(f"v_mul_f32 v{z}, v{32+i}, v{z}")
        a(f"v_mul_f32 v{z+1}, v{32+i}, v{z+1}")
    a("v_mul_f32 v28, v10, v13")
    a("v_mul_f32 v29, v11, v13")
    E1, E256, Y8, Y64, C = 20, 22, 24, 26, 28
    E2, E4, Y128, Y192 = 40, 42, 44, 46

    def emit(z, off, t):
        return [f"v_cvt_pk_bf16_f32 v{t}, v{z}, v{z+1}", f"ds_write_b32 v6, v{t} offset:{off}"]

    xrow = lambda q, r: KG_XA + (4 * q + r) * KG_ROW
    yrow = lambda j: KG_YB + j * KG_ROW

    def chain(seed, ratio, offs, ra, rb, t, emit_seed=True):
        ops = []
        cur = seed
        for k, off in enumerate(offs):
            if k:
                nxt = ra if cur != ra else rb
                ops.append(cmul(nxt, cur, ratio))
                cur = nxt
            if k or emit_seed:
                ops.append(emit(cur, off, t))
        return ops

    pre = [cmul(E2, E1, E1), cmul(Y128, Y64, Y64), cmul(48, C, E256), cmul(E4, E2, E2), cmul(Y192, Y128, Y64)]
    for i in range(2):
        for op in pre[:3]:
            a(op[i])
    for i in range(2):
        for op in pre[3:]:
            a(op[i])
    a("\n".join(cmul(50, C, E4)))
    chains = [
        chain(Y8, Y8, [yrow(j) for j in range(1, 8)], 52, 54, 88),
        chain(Y64, Y8, [yrow(j) for j in range(8, 16)], 56, 58, 89),
        chain(Y128, Y8, [yrow(j) for j in range(16, 24)], 60, 62, 90),
        chain(Y192, Y8, [yrow(j) for j in range(24, 32)], 64, 66, 91),
        chain(C, E1, [xrow(0, r) for r in range(4)], 68, 70, 92)
        + chain(48, E2, [xrow(2, r) for r in range(4)], 68, 70, 92),
        chain(50, E1, [xrow(1, r) for r in range(4)], 72, 74, 93),
    ]
    far = []
    cur = 48
    offs = [xrow(3, 0), xrow(3, 1), xrow(3, 2), xrow(3, 3), xrow(4, 0), xrow(4, 1), xrow(4, 2)]
    for k, off in enumerate(offs):
        nxt = 76 if cur != 76 else 78
        far.append(cmul(nxt, cur, E256))
        cur = nxt
        far.append(emit(cur, off, 94))
        if k < 2:
            far.append(cmul(80, cur, E4))
            far.append(emit(80, xrow(5, k), 95))
    chains.append(far)
    while any(chains):
        units = [c.pop(0) for c in chains if c]
        for i in range(2):
            for u in units:
                a(u[i])
    a("s_waitcnt lgkmcnt(0)")
    stamp(a)
    a("s_barrier")
    for ks in range(8):
        a(f"ds_read_b128 {vr(132+4*ks,4)}, v101 offset:{KG_XA + ks*64}")
        a(f"ds_read_b128 {vr(32+4*ks,4)}, v100 offset:{KG_YB + ks*64}")
        a(f"ds_read_b128 {vr(64+4*ks,4)}, v100 offset:{KG_YB + 16*KG_ROW + ks*64}")
    for ks in range(8):
        a(f"s_waitcnt lgkmcnt({min(15, 3*(7-ks))})")
        c0 = "0" if ks == 0 else "v[20:23]"
        c1 = "0" if ks == 0 else "v[24:27]"
        a(f"v_mfma_f32_16x16x32_bf16 v[20:23], {vr(132+4*ks,4)}, {vr(32+4*ks,4)}, {c0}")
        a(f"v_mfma_f32_16x16x32_bf16 v[24:27], {vr(132+4*ks,4)}, {vr(64+4*ks,4)}, {c1}")
    a("s_nop 7")
    for i in range(8):
        a(f"v_cvt_pk_bf16_f32 v{20+i}, v{20+i}, v{20+i}")
        a(f"ds_write_b16 v{TW+i}, v{20+i}")
        a(f"ds_write_b16 v{TW2+i}, v{20+i}")
    a("s_waitcnt lgkmcnt(0)")
    stamp(a)
    a("s_barrier")
    a("ds_read_b128 v[32:35], v110")
    a("ds_read_b128 v[36:39], v110 offset:2048")
    a("s_waitcnt lgkmcnt(1)")
    a("buffer_store_dwordx4 v[32:35], v130, s[36:39], s55 offen" + WT["k"])
    a("s_cmp_lg_u32 s46, 0")
    a("s_cbranch_scc1 k1_kg_done")
    a("s_waitcnt lgkmcnt(0)")
    a("buffer_store_dwordx4 v[36:39], v130, s[36:39], s55 offen offset:2048" + WT["k"])
    a.label("k1_kg_done")
    stamp_end(a, 0, 14)
    a("s_endpgm")


def gen_k1(a):
    a.raw(".p2align 8")
    a.label("k1_kernel")
    a(f"s_cmp_ge_u32 s2, {N_K1}")
    a("s_cbranch_scc1 k1_exit")
    a("v_lshrrev_b32 v2, 6, v0")
    a("v_and_b32 v1, 63, v0")
    a("v_readfirstlane_b32 s44, v2")
    a("s_cmp_ge_u32 s44, 4")
    a("s_cbranch_scc1 k1_ln")
    gen_kgen(a)
    a.label("k1_ln")
    gen_ln(a)
    a.label("k1_exit")
    a("s_endpgm")


N_G1, N_CV, N_RL = 176, 64, 16
G1_STAGE = 49152
G1_W = 32768
K2_LDS = 3 * G1_STAGE
G1_NST = 8
CV_ZB, CV_PW = 32768, 32896
CV_O, CV_T, CV_G, CV_W = 2752, 5376, 6400, 7168


def gen_gemm1_loader(a):
    a("s_sub_u32 s30, s30, 4")
    a("v_lshrrev_b32 v3, 3, v1")
    a("v_and_b32 v4, 7, v1")
    a("v_lshrrev_b32 v5, 4, v1")
    a(f"v_mul_u32_u24 v14, {XN_STRIDE}, v3")
    for q in range(4):
        a(f"v_add_u32 v6, {4*q}, v5")
        a("v_and_b32 v6, 7, v6")
        a("v_xor_b32 v6, v6, v4")
        a("v_lshl_add_u32 v6, v6, 4, v14")
        a(f"v_add_u32 v{8+q}, {q*(8*XN_STRIDE-1024)}, v6")
    a("v_and_b32 v6, 1, v5")
    a("v_lshrrev_b32 v7, 2, v4")
    a("v_xor_b32 v6, v6, v7")
    a("v_and_b32 v7, 3, v4")
    a("v_lshlrev_b32 v7, 3, v7")
    a("v_lshl_add_u32 v6, v6, 5, v7")
    a("s_lshl_b32 s31, s29, 6")
    a("v_add_u32 v6, s31, v6")
    a(f"v_mul_u32_u24 v12, {2*F}, v3")
    a("v_lshl_add_u32 v12, v6, 1, v12")
    a(f"v_add_u32 v13, {8*2*F-1024}, v12")
    a(f"v_cmp_le_u32 vcc, {F}, v6")
    a("v_mov_b32 v7, 0x40000000")
    a(f"s_mul_i32 s32, s28, {256*XN_STRIDE}")
    a("v_cndmask_b32 v12, v12, v7, vcc")
    a("v_cndmask_b32 v13, v13, v7, vcc")
    a(f"s_mul_i32 s33, s30, {64*XN_STRIDE}")
    a("s_add_u32 s32, s32, s33")
    a(f"s_add_u32 s36, s32, {32*XN_STRIDE}")
    a(f"s_mul_i32 s33, s30, {16*2*F}")
    a("s_lshl_b32 s34, s30, 13")
    a("s_lshl_b32 s35, s30, 11")
    a(f"s_add_u32 s35, s35, {G1_W}")
    a("s_waitcnt lgkmcnt(0)")
    srd(a, 16, 4, W_BYTES)
    srd(a, 20, 6, W_BYTES)
    srd(a, 12, 8, XN_BYTES, WS_XN)

    def dma(stage, lo=0, hi=12):
        b = (stage % 3) * G1_STAGE
        if lo == 0:
            a(f"s_add_u32 m0, s35, {b}")
            a("s_nop 0")
            a("buffer_load_dwordx4 v12, s[16:19], s33 offen lds")
            a("buffer_load_dwordx4 v13, s[16:19], s33 offen offset:1024 lds")
            a(f"s_add_u32 m0, s35, {b+8192}")
            a("s_nop 0")
            a("buffer_load_dwordx4 v12, s[20:23], s33 offen lds")
            a("buffer_load_dwordx4 v13, s[20:23], s33 offen offset:1024 lds")
            a(f"s_add_u32 s33, s33, {64*2*F}")
        if hi == 12:
            a(f"s_add_u32 m0, s34, {b}")
            a("s_nop 0")
            for q in range(4):
                a(f"buffer_load_dwordx4 v{8+q}, s[12:15], s32 offen offset:{q*1024} lds")
            a(f"s_add_u32 m0, s34, {b+4096}")
            a("s_add_u32 s32, s32, 128")
            for q in range(4):
                a(f"buffer_load_dwordx4 v{8+q}, s[12:15], s36 offen offset:{q*1024} lds")
            a("s_add_u32 s36, s36, 128")

    dma(0)
    dma(1, 0, 4)
    for st in range(G1_NST):
        if st in (0, 3, 4):
            stamp(a)
        a(f"s_waitcnt vmcnt({4 if st == 0 else (12 if st + 1 < G1_NST else 0)})")
        if st in (0, 3, 4):
            stamp(a)
        a("s_barrier")
        if st in (3,):
            stamp(a)
        if st == 0:
            dma(1, 4, 12)
        if st + 2 < G1_NST:
            dma(st + 2)
    stamp_end(a, 1, 8)
    a("s_endpgm")


def gen_gemm1(a):
    stamp_begin(a)
    a(f"s_load_dwordx4 s[4:7], s[0:1], {KA_WG}")
    a(f"s_load_dwordx2 s[8:9], s[0:1], {KA_WS}")
    a("v_and_b32 v1, 63, v0")
    a("v_lshrrev_b32 v2, 6, v0")
    if G1_MAP:
        a("s_lshr_b32 s29, s2, 3")
        a("s_and_b32 s28, s2, 6")
        a("s_and_b32 s31, s29, 1")
        a("s_add_u32 s28, s28, s31")
        a("s_lshr_b32 s29, s29, 1")
        a("s_and_b32 s31, s2, 1")
        a("s_mul_i32 s31, s31, 11")
        a("s_add_u32 s29, s29, s31")
    else:
        a("s_and_b32 s28, s2, 7")
        a("s_lshr_b32 s29, s2, 3")
    a("v_readfirstlane_b32 s30, v2")
    a("s_cmp_lt_u32 s30, 4")
    a("s_cbranch_scc1 k2_g1_compute")
    gen_gemm1_loader(a)
    a.label("k2_g1_compute")
    if PRIO:
        a(f"s_setprio {PRIO}")
    _stamp_n[0] = 1 if PROF else 0
    a("v_and_b32 v3, 31, v1")
    a("v_lshrrev_b32 v4, 5, v1")
    a("v_lshrrev_b32 v5, 1, v3")
    a("v_and_b32 v5, 7, v5")
    a("v_xor_b32 v5, v5, v4")
    a("v_lshlrev_b32 v6, 7, v3")
    a("s_lshl_b32 s38, s30, 13")
    a("v_add_u32 v6, s38, v6")
    for ks in range(4):
        a(f"v_xor_b32 v7, {2*ks}, v5")
        a(f"v_lshl_add_u32 v{16+ks}, v7, 4, v6")
    a("v_and_b32 v5, 15, v1")
    a("v_lshrrev_b32 v6, 2, v5")
    a("v_and_b32 v5, 3, v5")
    a("v_lshrrev_b32 v7, 4, v1")
    a("v_and_b32 v7, 1, v7")
    a("v_and_b32 v13, 1, v5")
    a("v_lshlrev_b32 v13, 5, v13")
    a("v_lshl_add_u32 v13, v7, 4, v13")
    a("v_lshrrev_b32 v5, 1, v5")
    a("v_lshl_add_u32 v13, v5, 3, v13")
    a("v_lshrrev_b32 v5, 1, v6")
    a("v_lshl_add_u32 v13, v5, 6, v13")
    a("v_lshl_add_u32 v6, v4, 3, v6")
    a("v_lshl_add_u32 v13, v6, 7, v13")
    a(f"v_add_u32 v20, {G1_W}, v13")
    a("v_xor_b32 v21, 64, v20")
    a("v_mov_b32 v12, 0")
    HS = 144
    a(f"s_mul_i32 s39, s30, {64*HS}")
    a(f"v_mul_u32_u24 v22, {HS}, v3")
    a("v_lshl_add_u32 v22, v4, 5, v22")
    a("v_add_u32 v22, s39, v22")
    a("v_lshrrev_b32 v5, 3, v1")
    a("v_and_b32 v6, 7, v1")
    a(f"v_mul_u32_u24 v23, {HS}, v5")
    a("v_lshl_add_u32 v23, v6, 4, v23")
    a("v_add_u32 v23, s39, v23")
    a(f"v_mul_u32_u24 v14, {H_STRIDE}, v5")
    a("v_lshl_add_u32 v14, v6, 4, v14")
    a("s_lshl_b32 s40, s28, 8")
    a("s_lshl_b32 s41, s30, 6")
    a("s_add_u32 s40, s40, s41")
    a(f"s_mul_i32 s42, s40, {H_STRIDE}")
    a("s_lshl_b32 s43, s29, 7")
    a("s_add_u32 s42, s42, s43")
    a("s_waitcnt lgkmcnt(0)")
    srd(a, 24, 8, H_BYTES, WS_H)

    ACC = lambda w, ft, tt: 128 + 64 * w + 32 * ft + 16 * tt
    FS = [32, 56, 80, 104]

    def reads(n, f):
        ks = n & 3
        out = []
        for w in range(2):
            for ft in range(2):
                o = 8192 * w + ks * 2048
                out.append(f"ds_read_b64_tr_b16 {vr(f+8*w+4*ft,2)}, v{20+ft} offset:{o}")
                out.append(f"ds_read_b64_tr_b16 {vr(f+8*w+4*ft+2,2)}, v{20+ft} offset:{o+512}")
            out.append(f"ds_read_b128 {vr(f+16+4*w,4)}, v{16+ks} offset:{4096*w}")
        return out

    def mfma(n, f, w, ft, tt):
        c = vr(ACC(w, ft, tt), 16)
        return (f"v_mfma_f32_32x32x16_bf16 {c}, {vr(f+8*w+4*ft,4)}, {vr(f+16+4*tt,4)}, "
                f"{'0' if n == 0 else c}")

    def mfmas(n, f):
        return [mfma(n, f, w, ft, tt) for tt in range(2) for w in range(2) for ft in range(2)]

    def boundary(st):
        a("s_waitcnt lgkmcnt(0)")
        a("s_barrier")
        if st in (0, 6, 7):
            stamp(a)
        if st >= 1:
            delta = G1_STAGE if st % 3 else -2 * G1_STAGE
            for r in (16, 17, 18, 19, 20, 21):
                a(f"v_add_u32 v{r}, {delta & 0xffffffff:#x}, v{r}")

    LASTN = 4 * (G1_NST - 1)
    boundary(0)
    for op in reads(0, FS[0]):
        a(op)
    for n in range(LASTN):
        nx = n + 1
        if nx == LASTN:
            break
        if nx & 3 == 0:
            boundary(nx >> 2)
        else:
            a("s_waitcnt lgkmcnt(0)")
        rd = reads(nx, FS[nx & 1])
        cuts = [0, 3, 6, 8, 10, 10, 10, 10, 10]
        for i, m in enumerate(mfmas(n, FS[n & 1])):
            a(m)
            for op in rd[cuts[i]:cuts[i + 1]]:
                a(op)
    n = LASTN - 1
    boundary(G1_NST - 1)
    sets = {LASTN: FS[0], LASTN + 2: FS[2], LASTN + 3: FS[3], LASTN + 1: FS[1]}
    early = reads(LASTN, FS[0]) + reads(LASTN + 2, FS[2]) + reads(LASTN + 3, FS[3])
    mm = mfmas(n, FS[n & 1])
    for i, m in enumerate(mm):
        a(m)
        for op in early[4 * i:4 * i + 4]:
            a(op)
    for op in reads(LASTN + 1, FS[1]):
        a(op)

    def pair_epilogue(ft, tt):
        g, u = ACC(0, ft, tt), ACC(1, ft, tt)
        o = 4 if ft == 0 else 24
        out = []
        if EPI == "fused":
            for k in range(16):
                out.append(f"v_max_f32 v{g+k}, 0, v{g+k}")
            for k in range(16):
                out.append(f"v_mul_f32 v{g+k}, v{g+k}, v{u+k}")
            for k in range(8):
                out.append(f"v_cvt_pk_bf16_f32 v{o+k}, v{g+2*k}, v{g+2*k+1}")
                if k == 3:
                    out.append(f"ds_write_b128 v22, {vr(o,4)} offset:{32*HS*tt + 64*ft}")
            out.append(f"ds_write_b128 v22, {vr(o+4,4)} offset:{32*HS*tt + 64*ft + 16}")
            return out
        for k in range(8):
            out.append(f"v_cvt_pk_bf16_f32 v{g+2*k}, v{g+2*k}, v{g+2*k+1}")
            out.append(f"v_cvt_pk_bf16_f32 v{u+2*k}, v{u+2*k}, v{u+2*k+1}")
        for k in range(8):
            out.append(f"v_max_i16_sdwa v{g+2*k+1}, v{g+2*k}, v12 dst_sel:WORD_0 dst_unused:UNUSED_PAD "
                       "src0_sel:WORD_0 src1_sel:WORD_0")
            out.append(f"v_max_i16_sdwa v{u+2*k+1}, v{g+2*k}, v12 dst_sel:WORD_1 dst_unused:UNUSED_PAD "
                       "src0_sel:WORD_1 src1_sel:WORD_0")
        for k in range(8):
            out.append(f"v_dot2_f32_bf16 v{g+2*k+1}, v{g+2*k+1}, v{u+2*k}, 0")
            out.append(f"v_dot2_f32_bf16 v{u+2*k+1}, v{u+2*k+1}, v{u+2*k}, 0")
        for k in range(8):
            out.append(f"v_cvt_pk_bf16_f32 v{o+k}, v{g+2*k+1}, v{u+2*k+1}")
            if k == 3:
                out.append(f"ds_write_b128 v22, {vr(o,4)} offset:{32*HS*tt + 64*ft}")
        out.append(f"ds_write_b128 v22, {vr(o+4,4)} offset:{32*HS*tt + 64*ft + 16}")
        return out

    def flush(tt, regs):
        rd = [f"ds_read_b128 {vr(regs+4*i,4)}, v23 offset:{8*HS*(4*tt+i)}" for i in range(4)]
        st = []
        for i in range(4):
            st.append(f"s_waitcnt lgkmcnt({3-i})\n"
                      f"buffer_store_dwordx4 {vr(regs+4*i,4)}, v14, s[24:27], s42 offen{WT['h']}\n"
                      f"s_add_u32 s42, s42, {8*H_STRIDE}")
        return rd, st

    order = [(0, 0), (1, 0), (0, 1), (1, 1)]
    korder = [LASTN, LASTN + 2, LASTN + 3, LASTN + 1]
    a("s_waitcnt lgkmcnt(10)")
    for pi, (ft, tt) in enumerate(order):
        if pi < 3:
            stamp(a)
        mm = []
        for kn in korder:
            if pi == 0 and kn == LASTN + 1:
                mm.append("s_waitcnt lgkmcnt(0)\n" + mfma(kn, sets[kn], 0, ft, tt))
            else:
                mm.append(mfma(kn, sets[kn], 0, ft, tt))
            mm.append(mfma(kn, sets[kn], 1, ft, tt))
        fill = ["s_nop 8"] + pair_epilogue(*order[pi - 1]) if pi else []
        if pi == 3:
            rd, st = flush(0, ACC(1, 0, 0))
            fill = ["s_waitcnt lgkmcnt(0)"] + rd + fill[:33] + st + fill[33:]
        lead = 2
        per = -(-len(fill) // (len(mm) - lead)) if fill else 0
        for i, m in enumerate(mm):
            a(m)
            if i >= lead - 1 and fill:
                j = i - (lead - 1)
                for op in fill[j * per:(j + 1) * per]:
                    a(op)
    a("s_nop 15")
    stamp(a)
    for op in pair_epilogue(*order[3]):
        a(op)
    a("s_waitcnt lgkmcnt(0)")
    rd, st = flush(1, ACC(1, 0, 0))
    for op in rd + st:
        a(op)
    stamp_end(a, 1, 8)
    a("s_endpgm")


def gen_conv(a):
    stamp_begin(a)
    a(f"s_load_dwordx2 s[4:5], s[0:1], {KA_DSK}")
    a(f"s_load_dwordx2 s[8:9], s[0:1], {KA_WS}")
    a("v_and_b32 v1, 63, v0")
    a("v_lshrrev_b32 v2, 6, v0")
    a(f"s_sub_u32 s28, s2, {N_G1}")
    a("s_lshl_b32 s29, s28, 7")
    a("v_readfirstlane_b32 s30, v2")
    a("s_lshl_b32 s28, s28, 3")
    a("s_add_u32 s28, s28, s30")
    a(f"s_mul_i32 s31, s30, {CV_W}")
    a(f"s_add_u32 s31, s31, {CV_PW}")
    a(f"s_mul_i32 s32, s28, {KT_BYTES}")
    a("s_lshl_b32 s34, s28, 12")
    a("s_lshr_b32 s35, s28, 1")
    a("s_lshl_b32 s35, s35, 2")
    a("v_lshlrev_b32 v3, 4, v1")
    a("v_lshrrev_b32 v4, 3, v1")
    a("v_and_b32 v5, 7, v1")
    a("v_lshrrev_b32 v6, 4, v1")
    a(f"v_mul_u32_u24 v4, {XNT_STRIDE}, v4")
    for q in range(2):
        a(f"v_add_u32 v7, {4*q}, v6")
        a("v_xor_b32 v7, v7, v5")
        a(f"v_lshl_add_u32 v{8+q}, v7, 4, v4")
    a(f"v_add_u32 v9, {8*XNT_STRIDE - 1024}, v9")
    a(f"s_mul_i32 s44, s30, {32*XNT_STRIDE}")
    a("s_add_u32 s44, s44, s29")
    a(f"s_add_u32 s45, s44, {16*XNT_STRIDE - 2048}")
    a("s_lshl_b32 s47, s30, 12")
    a("s_waitcnt lgkmcnt(0)")
    a("s_load_dword s36, s[4:5], s35")
    srd(a, 12, 8, D * KT_BYTES, WS_KR)
    srd(a, 16, 8, XNT_BYTES, WS_XNT)
    srd(a, 20, 8, L * D * 2, WS_AT)
    for q, dst in ((2, CV_T), (0, 1600), (1, CV_O + 1600)):
        a(f"s_add_u32 m0, s31, {dst - q*1024}")
        a("s_nop 0")
        a(f"buffer_load_dwordx4 v3, s[12:15], s32 offen offset:{q*1024} lds")
    a("s_mov_b32 m0, s47")
    a("s_nop 0")
    a("buffer_load_dwordx4 v8, s[16:19], s44 offen lds")
    a("buffer_load_dwordx4 v9, s[16:19], s44 offen offset:1024 lds")
    a("buffer_load_dwordx4 v8, s[16:19], s45 offen offset:2048 lds")
    a("buffer_load_dwordx4 v9, s[16:19], s45 offen offset:3072 lds")
    pf = 1 if CODE_PF else 0
    if CODE_PF:
        a(f"s_sub_u32 s45, s2, {N_G1}")
        a("s_lshr_b32 s45, s45, 3")
        a("s_lshl_b32 s45, s45, 3")
        a("s_add_u32 s45, s45, s30")
        code_prefetch(a, "k3_kernel", "code_end", 45, 3, 252, 48)
    for r in range(4, 8):
        a(f"v_mov_b32 v{r}, 0")
    a(f"v_add_u32 v10, {CV_G}, v3")
    for lo, base in ((48, 0), (51, CV_O)):
        a(f"v_cmp_le_u32 vcc, {lo}, v1")
        a(f"v_add_u32 v11, {(base - 16*lo) & 0xffffffff:#x}, v3")
        a("s_nop 0")
        a("v_cndmask_b32 v10, v10, v11, vcc")
    a("v_add_u32 v10, s31, v10")
    a("v_cmp_le_u32 vcc, 54, v1")
    a(f"v_mov_b32 v15, {CV_ZB}")
    a("s_nop 0")
    a("v_cndmask_b32 v238, v10, v15, vcc")
    a("v_and_b32 v4, 15, v1")
    a("v_lshrrev_b32 v5, 4, v1")
    a("v_lshlrev_b32 v6, 3, v5")
    a("v_sub_u32 v6, v6, v4")
    a("v_lshlrev_b32 v6, 1, v6")
    a("v_add_u32 v6, s31, v6")
    a("v_and_b32 v7, 1, v4")
    a("v_cmp_eq_u32 vcc, 1, v7")
    a(f"v_mov_b32 v8, {CV_O + 2*1040}")
    a(f"v_mov_b32 v9, {2*1039}")
    a("v_cndmask_b32 v8, v8, v9, vcc")
    a("v_add_u32 v8, v6, v8")
    for P in range(2):
        a(f"v_subrev_u32 v{10+P}, {512*(2*P+1)+448}, v8")
    a("v_subrev_u32 v12, 2048, v8")
    a(f"v_mov_b32 v8, {CV_G + 192 + 2*62 - 96}")
    a(f"v_mov_b32 v9, {CV_G + 2*63 - 96}")
    a("v_cndmask_b32 v8, v8, v9, vcc")
    a("v_lshlrev_b32 v9, 3, v5")
    a("v_sub_u32 v6, v6, v9")
    a("v_add_u32 v13, v6, v8")

    def uaddr(dst, gran, tmp):
        a(f"v_lshrrev_b32 v{tmp}, 1, v{gran}")
        a(f"v_and_b32 v{tmp}, 7, v{tmp}")
        a(f"v_xor_b32 v{tmp}, s30, v{tmp}")
        a(f"v_lshlrev_b32 v{tmp}, 4, v{tmp}")
        a(f"v_lshl_add_u32 v{dst}, v{gran}, 7, v{tmp}")

    UB, UC = 16, 24
    a("v_lshl_add_u32 v6, v4, 1, v5")
    for rho in range(4):
        a(f"v_add_u32 v7, {14 - 4*rho}, v6")
        uaddr(UB + rho, 7, 8)
    for rho in range(8):
        a(f"v_cmp_gt_u32 vcc, {4*rho + 2}, v6")
        a(f"v_subrev_u32 v7, {4096 if rho >= 4 else 2048}, v{UB + (rho & 3)}")
        a("s_nop 0")
        a(f"v_cndmask_b32 v{UC+rho}, v7, v15, vcc")
    a("v_lshrrev_b32 v7, 1, v5")
    a("v_lshl_add_u32 v7, v4, 1, v7")
    uaddr(246, 7, 8)
    a("v_and_b32 v7, 1, v5")
    a("v_lshl_add_u32 v246, v7, 3, v246")
    a("v_lshlrev_b32 v247, 5, v4")
    a("v_lshl_add_u32 v247, v5, 3, v247")
    BND = 224
    a("v_lshlrev_b32 v8, 3, v5")
    a("v_mov_b32 v9, 0x7f")
    a("v_add_u32 v7, 5, v4")
    a("v_lshlrev_b32 v240, v7, v9")
    a("v_mov_b32 v9, 0x1ff")
    a("v_lshlrev_b32 v241, v4, v9")
    a("v_lshrrev_b32 v241, 4, v241")
    a("v_mov_b32 v9, 0xf0000000")
    a("v_lshlrev_b32 v242, v4, v9")
    a("s_mov_b32 s40, 0x3f803f80")
    a("s_mov_b32 s41, 0xffff")
    for b in range(3):
        a(f"v_lshrrev_b32 v{240+b}, v8, v{240+b}")
    for b in range(3):
        for k in range(4):
            a(f"v_bfe_i32 v7, v{240+b}, {2*k}, 1")
            a(f"v_bfe_i32 v9, v{240+b}, {2*k+1}, 1")
            a("v_bfi_b32 v7, s41, v7, v9")
            a(f"v_and_b32 v{BND+4*b+k}, s40, v7")
    a(f"s_add_u32 s38, s31, {CV_T}")
    a("v_lshlrev_b32 v7, 2, v1")
    a("v_sub_u32 v249, s38, v7")
    a("v_lshlrev_b32 v7, 3, v1")
    a("v_min_u32 v7, 248, v7")
    a("v_sub_u32 v250, s38, v7")
    a("v_lshlrev_b32 v7, 2, v1")
    a("v_add_u32 v243, s38, v7")
    a("v_add_u32 v248, s31, v3")
    a("v_cmp_eq_u32 s[52:53], 63, v1")
    a("v_lshlrev_b32 v7, 1, v1")
    a(f"s_add_u32 s39, s31, {CV_G + 126}")
    a("v_sub_u32 v251, s39, v7")
    a("v_add_u32 v245, 190, v251")
    a("v_mov_b32 v7, s38")
    a("v_cndmask_b32 v245, v245, v7, s[52:53]")
    a("s_mov_b32 s42, 0x03020302")
    a("s_mov_b32 s43, 0x01000100")

    ACC = 32
    SET = [64, 112]
    A32 = 216
    WS9, WS7 = 160, 176
    FB = 192
    UREG = 160

    def loads(rho):
        s = SET[rho & 1]
        out = []
        for m in range(8):
            if m == 0:
                out.append(f"ds_read_b128 {vr(s+16,4)}, v{UC+rho}")
            else:
                o = 4096 * (m - 1) + (2048 if rho < 4 else 0)
                out.append(f"ds_read_b128 {vr(s+16+4*m,4)}, v{UB+(rho&3)} offset:{o}")
            if m < 4:
                o = (64 * (7 - rho) + (0 if m & 1 else 512)) // 4
                out.append(f"ds_read2_b32 {vr(s+4*m,2)}, v{10+(m>>1)} offset0:{o} offset1:{o+1}")
                out.append(f"ds_read2_b32 {vr(s+4*m+2,2)}, v{10+(m>>1)} offset0:{o+2} offset1:{o+3}")
        if rho == 0:
            out.append(f"ds_read2_b32 {vr(A32,2)}, v12 offset0:0 offset1:1")
            out.append(f"ds_read2_b32 {vr(A32+2,2)}, v12 offset0:2 offset1:3")
        return out

    def mfma(rho, i, m):
        s = SET[rho & 1]
        c = vr(ACC + 4 * (i + m), 4)
        fa = A32 if i == 4 else s + 4 * i
        return (f"v_mfma_f32_16x16x32_bf16 {c}, {vr(fa,4)}, {vr(s+16+4*m,4)}, "
                f"{'0' if rho == 0 and i == 0 else c}")

    def mfmas(rho):
        out = [mfma(rho, i, m) for i in range(5 if rho == 0 else 4) for m in range(8 - i)]
        s = SET[rho & 1]
        if rho == 0:
            for t in range(4):
                out.append(f"v_mfma_f32_16x16x32_bf16 {vr(WS7+4*t,4)}, {vr(s+16+4*t,4)}, {vr(BND,4)}, 0")
                out.append(f"v_mfma_f32_16x16x32_bf16 {vr(WS9+4*t,4)}, {vr(s+16+4*t,4)}, {vr(BND+4,4)}, 0")
        if rho == 1:
            for t in range(4):
                c = vr(WS9 + 4 * t, 4)
                out.insert(2 * t, f"v_mfma_f32_16x16x32_bf16 {c}, {vr(s+16+4*t,4)}, {vr(BND+8,4)}, {c}")
        return out

    def window_pack():
        out = []
        for base in (WS9, WS7):
            for t in range(4):
                out.append(f"v_cvt_pk_bf16_f32 v{base+2*t}, v{base+4*t}, v{base+4*t+1}")
                out.append(f"v_cvt_pk_bf16_f32 v{base+2*t+1}, v{base+4*t+2}, v{base+4*t+3}")
        return out

    def far_loads(par):
        out = []
        for dl in range(4):
            o = (96 - 32 * dl + 384 * par) // 4
            out.append(f"ds_read2_b32 {vr(FB+4*dl,2)}, v13 offset0:{o} offset1:{o+1}")
            out.append(f"ds_read2_b32 {vr(FB+4*dl+2,2)}, v13 offset0:{o+8} offset1:{o+9}")
        return out

    def far_mfmas(par):
        out = []
        for tp in range(4):
            for kb in range(2 if tp >= 2 else 1):
                c = vr(ACC + 4 * (4 + tp), 4)
                out.append(f"v_mfma_f32_16x16x32_bf16 {c}, {vr((WS9, WS7)[par]+4*kb,4)}, "
                           f"{vr(FB+4*(tp-2*kb),4)}, {c}")
        return out

    def tile_epilogue(t):
        y = ACC + 4 * t
        u = UREG + 2 * t
        w = 2 if t & 1 else 208
        return [f"v_lshlrev_b32 v{w}, 16, v{u}",
                f"v_and_b32 v{w+1}, 0xffff0000, v{u}",
                f"v_lshlrev_b32 v{w+2}, 16, v{u+1}",
                f"v_and_b32 v{w+3}, 0xffff0000, v{u+1}",
                f"v_pk_mul_f32 {vr(w,2)}, {vr(w,2)}, s[36:37]",
                f"v_pk_mul_f32 {vr(w+2,2)}, {vr(w+2,2)}, s[36:37]",
                f"v_cvt_pk_bf16_f32 v{u}, v{w}, v{w+1}",
                f"v_cvt_pk_bf16_f32 v{u+1}, v{w+2}, v{w+3}",
                f"v_cvt_pk_bf16_f32 v{w+5}, v{y}, v{y+1}",
                f"v_cvt_pk_bf16_f32 v{w+7}, v{y+2}, v{y+3}",
                f"v_lshlrev_b32 v{w}, 16, v{u}",
                f"v_and_b32 v{w+1}, 0xffff0000, v{u}",
                f"v_lshlrev_b32 v{w+2}, 16, v{u+1}",
                f"v_and_b32 v{w+3}, 0xffff0000, v{u+1}",
                f"v_lshlrev_b32 v{w+4}, 16, v{w+5}",
                f"v_and_b32 v{w+5}, 0xffff0000, v{w+5}",
                f"v_lshlrev_b32 v{w+6}, 16, v{w+7}",
                f"v_and_b32 v{w+7}, 0xffff0000, v{w+7}",
                f"v_pk_add_f32 {vr(w,2)}, {vr(w,2)}, {vr(w+4,2)}",
                f"v_pk_add_f32 {vr(w+2,2)}, {vr(w+2,2)}, {vr(w+6,2)}",
                f"v_cvt_pk_bf16_f32 v{u}, v{w}, v{w+1}",
                f"v_cvt_pk_bf16_f32 v{u+1}, v{w+2}, v{w+3}",
                f"buffer_store_dwordx2 {vr(u,2)}, v247, s[20:23], s34 offen offset:{512*t}" + WT["at"]]

    def spread(mm, fill):
        per = -(-len(fill) // len(mm)) if fill else 0
        for i, m in enumerate(mm):
            a(m)
            for op in fill[i * per:(i + 1) * per]:
                a(op)

    stamp(a)
    a(f"s_waitcnt vmcnt({4 + pf}) lgkmcnt(0)")
    a("ds_read_b32 v180, v249 offset:508")
    a("ds_read_u16 v181, v249 offset:512")
    a("ds_read_b64 v[182:183], v250 offset:248")
    a("ds_read_u16 v184, v250 offset:256")
    a("ds_read_u16 v185, v243 offset:514")
    a("ds_read_u16 v186, v243 offset:516")
    a("v_mov_b32 v4, 0")
    a("v_mov_b32 v5, 0")
    a("v_mov_b32 v6, 0")
    a("v_mov_b32 v7, 0")
    a("ds_write_b128 v238, v[4:7]")
    a("s_and_b32 s44, s28, 1")
    a("s_lshl_b32 s45, s36, 16")
    a("s_and_b32 s36, s36, 0xffff0000")
    a("s_cmp_eq_u32 s44, 0")
    a("s_cselect_b32 s36, s45, s36")
    a("s_mov_b32 s37, s36")
    a("s_waitcnt lgkmcnt(5)")
    a("v_lshl_or_b32 v188, v181, 16, v181")
    a("v_perm_b32 v189, v180, v180, s42")
    a("v_alignbit_b32 v190, v180, v180, 16")
    a("v_perm_b32 v191, v180, v180, s43")
    a("v_mov_b32 v192, v188")
    a("v_bfi_b32 v193, s41, v181, v180")
    a("v_mov_b32 v194, v189")
    a("v_mov_b32 v195, v191")
    a("ds_write_b128 v248, v[188:191] offset:64")
    a(f"ds_write_b128 v248, v[192:195] offset:{CV_O + 64}")
    a("v_lshlrev_b32 v5, 16, v181")
    a("v_mov_b32 v6, v188")
    a("v_mov_b32 v7, v188")
    a("v_mov_b32 v8, 0")
    a("v_mov_b32 v9, 0")
    a("v_mov_b32 v196, 0")
    a("v_mov_b32 v197, 0")
    a("v_mov_b32 v198, v188")
    a("v_mov_b32 v199, v188")
    a("s_mov_b64 s[54:55], exec")
    a("s_mov_b64 exec, 1")
    a("ds_write_b128 v248, v[4:7] offset:48")
    a(f"ds_write_b128 v248, v[196:199] offset:{CV_O + 48}")
    a("s_mov_b64 exec, s[54:55]")
    a("s_waitcnt lgkmcnt(7)")
    a("v_bfi_b32 v200, s41, v184, v183")
    a("v_perm_b32 v201, v183, v183, s43")
    a("v_bfi_b32 v202, s41, v183, v182")
    a("v_perm_b32 v203, v182, v182, s43")
    a("v_lshl_or_b32 v204, v184, 16, v184")
    a("v_alignbit_b32 v205, v183, v183, 16")
    a("v_mov_b32 v206, v201")
    a("v_alignbit_b32 v207, v182, v182, 16")
    a("s_mov_b32 exec_hi, 0")
    a(f"ds_write_b128 v248, v[200:203] offset:{68*16}")
    a(f"ds_write_b128 v248, v[204:207] offset:{CV_O + 68*16}")
    a("s_mov_b64 exec, s[54:55]")
    a("s_waitcnt lgkmcnt(7)")
    a("ds_write_b16 v251, v186")
    a("ds_write_b16 v245, v186")
    a("ds_write_b16 v251, v185 offset:384")
    a("ds_write_b16 v245, v185 offset:384")
    a(f"s_waitcnt vmcnt({pf}) lgkmcnt(0)")
    a("s_barrier")
    stamp(a)
    for op in loads(0):
        a(op)
    for rho in range(7):
        a("s_waitcnt lgkmcnt(0)")
        fill = loads(rho + 1)
        mm = mfmas(rho)
        if rho == 2:
            fill = window_pack() + fill + far_loads(0)
        elif rho == 3:
            mm = far_mfmas(0) + mm
            fill = fill + far_loads(1)
        elif rho == 4:
            mm = far_mfmas(1) + mm
        elif rho == 6:
            fill = fill + [f"ds_read_b64 {vr(UREG+2*t,2)}, v246 offset:{4096*t}" for t in range(8)]
        spread(mm, fill)
    a("s_waitcnt lgkmcnt(0)")
    seq = {t: [mfma(7, i, t - i) for i in range(min(t, 3) + 1)] for t in range(8)}
    for op in seq[0] + seq[1] + seq[2] + seq[3]:
        a(op)
    spread(seq[4] + seq[5], tile_epilogue(0) + tile_epilogue(1))
    spread(seq[6] + seq[7], tile_epilogue(2) + tile_epilogue(3))
    stamp(a)
    for op in interleave(tile_epilogue(4), tile_epilogue(5)) + interleave(tile_epilogue(6), tile_epilogue(7)):
        a(op)
    stamp_end(a, 1, 8)
    a("s_endpgm")


def gen_relayout(a):
    a(f"s_load_dwordx2 s[4:5], s[0:1], {KA_WD}")
    a(f"s_load_dwordx2 s[8:9], s[0:1], {KA_WS}")
    a("v_and_b32 v1, 63, v0")
    a("v_lshrrev_b32 v2, 6, v0")
    a(f"s_sub_u32 s28, s2, {N_G1 + N_CV}")
    a("s_mul_i32 s28, s28, 88")
    a("v_readfirstlane_b32 s30, v2")
    a("v_lshlrev_b32 v3, 4, v1")
    a("s_add_u32 s28, s28, s30")
    a("s_lshr_b32 s31, s28, 1")
    a("s_and_b32 s31, s31, 1")
    a("s_lshl_b32 s31, s31, 2")
    a("v_and_b32 v4, 7, v1")
    a("v_xor_b32 v4, s31, v4")
    a("v_lshrrev_b32 v5, 3, v1")
    a(f"s_mov_b32 s32, {WDT_TILE}")
    a("v_mul_lo_u32 v5, v5, s32")
    a("v_lshl_add_u32 v4, v4, 4, v5")
    a("s_lshl_b32 s33, s28, 10")
    a("s_lshl_b32 s34, s28, 7")
    a("s_waitcnt lgkmcnt(0)")
    srd(a, 12, 4, W_BYTES)
    srd(a, 16, 8, 8 * WDT_TILE, WS_WDT)
    for i in range(11):
        a(f"buffer_load_dwordx4 {vr(8+4*i,4)}, v3, s[12:15], s33 offen")
        a("s_add_u32 s33, s33, 8192")
    for i in range(11):
        a(f"s_waitcnt vmcnt(10)")
        a(f"buffer_store_dwordx4 {vr(8+4*i,4)}, v4, s[16:19], s34 offen offset:{(i%4)*1024}" + WT["wdt"])
        if i % 4 == 3:
            a("s_add_u32 s34, s34, 4096")
    a("s_endpgm")


def gen_k2(a):
    a.raw(".p2align 8")
    a.label("k2_kernel")
    a(f"s_cmp_ge_u32 s2, {N_G1 + N_CV + N_RL}")
    a("s_cbranch_scc1 k2_exit")
    a(f"s_cmp_ge_u32 s2, {N_G1 + N_CV}")
    a("s_cbranch_scc1 k2_relayout")
    a(f"s_cmp_ge_u32 s2, {N_G1}")
    a("s_cbranch_scc1 k2_conv")
    gen_gemm1(a)
    a.label("k2_conv")
    gen_conv(a)
    a.label("k2_relayout")
    gen_relayout(a)
    a.label("k2_exit")
    a("s_endpgm")


N_G2 = 256
G2_NS = 8
G2_STAGE = 16384
G2_AT = G2_NS * G2_STAGE
G2_OUT = G2_AT + 8192
K3_LDS = G2_OUT + 64 * 144
OUT_STAGE = True
G2_NST = FP // 64
G2_LEAD = 3


def gen_k3(a):
    a.raw(".p2align 8")
    a.label("k3_kernel")
    a(f"s_cmp_ge_u32 s2, {N_G2}")
    a("s_cbranch_scc1 k3_exit")
    stamp_begin(a)
    a(f"s_load_dwordx2 s[4:5], s[0:1], {KA_U}")
    a(f"s_load_dwordx4 s[8:11], s[0:1], {KA_WD}")
    a(f"s_load_dwordx2 s[6:7], s[0:1], {KA_WS}")
    a("v_and_b32 v1, 63, v0")
    a("v_lshrrev_b32 v2, 6, v0")
    if G2_MAP == 0:
        a("s_and_b32 s32, s2, 7")
        a("s_lshr_b32 s33, s2, 3")
        a("s_lshl_b32 s32, s32, 8")
        a("s_and_b32 s35, s33, 3")
        a("s_lshl_b32 s35, s35, 6")
        a("s_add_u32 s32, s32, s35")
        a("s_lshr_b32 s33, s33, 2")
        a("s_lshl_b32 s33, s33, 6")
    else:
        a("s_and_b32 s32, s2, 6")
        a("s_lshr_b32 s33, s2, 3")
        a("s_lshl_b32 s32, s32, 8")
        a("s_and_b32 s35, s33, 7")
        a("s_lshl_b32 s35, s35, 6")
        a("s_add_u32 s32, s32, s35")
        a("s_lshr_b32 s33, s33, 3")
        a("s_and_b32 s35, s2, 1")
        a("s_lshl_b32 s35, s35, 2")
        a("s_add_u32 s33, s33, s35")
        a("s_lshl_b32 s33, s33, 6")
    a("v_readfirstlane_b32 s34, v2")
    a("s_cmp_lt_u32 s34, 4")
    a("s_cbranch_scc1 k3_compute")
    a("s_sub_u32 s34, s34, 4")
    a("v_lshrrev_b32 v3, 3, v1")
    a("v_and_b32 v4, 7, v1")
    a("v_lshrrev_b32 v5, 4, v1")
    a(f"v_mul_u32_u24 v7, {H_STRIDE}, v3")
    a("s_lshl_b32 s36, s34, 2")
    a("v_add_u32 v6, s36, v5")
    a("v_and_b32 v6, 7, v6")
    a("v_xor_b32 v6, v6, v4")
    a("v_lshl_add_u32 v8, v6, 4, v7")
    a("v_and_b32 v6, 1, v5")
    a("v_lshlrev_b32 v6, 2, v6")
    a("v_xor_b32 v6, v6, v4")
    a("v_lshlrev_b32 v6, 4, v6")
    a("v_lshlrev_b32 v10, 4, v1")
    a("v_lshl_add_u32 v12, v3, 12, v6")
    a("s_lshl_b32 s36, s34, 3")
    a("s_add_u32 s37, s36, s32")
    a(f"s_mul_i32 s37, s37, {H_STRIDE}")
    a(f"s_mul_i32 s38, s33, {WDT_TILE // 64}")
    a("s_lshl_b32 s39, s34, 10")
    a("s_add_u32 s38, s38, s39")
    a("s_add_u32 s39, s36, s33")
    a("s_lshl_b32 s39, s39, 12")
    a("s_lshl_b32 s40, s32, 1")
    a("s_add_u32 s39, s39, s40")
    a("s_lshl_b32 s40, s34, 10")
    a("s_waitcnt lgkmcnt(0)")
    srd(a, 16, 6, 8 * WDT_TILE, WS_WDT)
    srd(a, 12, 6, H_BYTES, WS_H)
    srd(a, 20, 6, L * D * 2, WS_AT)

    def dma(stage):
        b = (stage % G2_NS) * G2_STAGE
        a(f"s_add_u32 m0, s40, {b+8192}")
        a("s_nop 0")
        a("buffer_load_dwordx4 v10, s[16:19], s38 offen lds")
        a(f"s_add_u32 m0, s40, {b}")
        a("s_add_u32 s38, s38, 8192")
        a("buffer_load_dwordx4 v8, s[12:15], s37 offen lds")
        a("s_add_u32 s37, s37, 128")

    AT_AFTER = 3
    issued = 0
    for st in range(G2_NST):
        want = min(G2_NST - 1, 2 * st + 2, st + G2_LEAD)
        while issued <= want:
            dma(issued)
            if issued == AT_AFTER:
                a(f"s_add_u32 m0, s40, {G2_AT}")
                a("s_nop 0")
                a("buffer_load_dwordx4 v12, s[20:23], s39 offen lds")
            issued += 1
        vm = 2 * (issued - 1 - st) + (1 if st <= AT_AFTER < issued else 0)
        if st in (0, 8, 16):
            stamp(a)
        a(f"s_waitcnt vmcnt({vm})")
        a("s_barrier")
    stamp_end(a, 2, 6)
    a("s_endpgm")
    a.label("k3_compute")
    if PRIO:
        a(f"s_setprio {PRIO}")
    _stamp_n[0] = 1 if PROF else 0
    a("s_and_b32 s41, s34, 1")
    a("s_lshr_b32 s42, s34, 1")
    a("v_and_b32 v3, 31, v1")
    a("v_lshrrev_b32 v4, 5, v1")
    a("s_lshl_b32 s43, s41, 5")
    a("s_add_u32 s43, s43, s32")
    a("v_add_u32 v14, s43, v3")
    a("v_lshlrev_b32 v14, 10, v14")
    a("v_lshl_add_u32 v14, v4, 5, v14")
    a("s_lshl_b32 s44, s42, 5")
    a("s_add_u32 s44, s44, s33")
    a("s_lshl_b32 s44, s44, 1")
    a("v_lshrrev_b32 v5, 1, v3")
    a("v_and_b32 v5, 7, v5")
    a("v_xor_b32 v5, v5, v4")
    a("v_lshlrev_b32 v6, 7, v3")
    a("s_lshl_b32 s45, s41, 12")
    a("v_add_u32 v6, s45, v6")
    for ks in range(4):
        a(f"v_xor_b32 v7, {2*ks}, v5")
        a(f"v_lshl_add_u32 v{16+ks}, v7, 4, v6")
    a("v_and_b32 v5, 15, v1")
    a("v_lshrrev_b32 v6, 2, v5")
    a("v_and_b32 v5, 3, v5")
    a("v_lshrrev_b32 v7, 4, v1")
    a("v_and_b32 v7, 1, v7")
    a("v_lshlrev_b32 v21, 3, v5")
    a("v_lshl_add_u32 v21, v7, 5, v21")
    a("v_lshrrev_b32 v22, 1, v6")
    a("v_xor_b32 v23, s41, v22")
    a("v_lshl_add_u32 v21, v23, 6, v21")
    a("v_lshl_add_u32 v23, v4, 4, v6")
    a("v_lshl_add_u32 v21, v23, 7, v21")
    a("s_lshl_b32 s45, s42, 12")
    a(f"s_add_u32 s45, s45, {G2_AT}")
    a("v_add_u32 v21, s45, v21")
    a("v_and_b32 v15, 1, v5")
    a("v_lshlrev_b32 v15, 5, v15")
    a("v_lshl_add_u32 v15, v7, 4, v15")
    a("v_lshrrev_b32 v5, 1, v5")
    a("v_lshl_add_u32 v15, v5, 3, v15")
    a("v_xor_b32 v22, s42, v22")
    a("v_lshl_add_u32 v15, v22, 6, v15")
    a("v_lshl_add_u32 v6, v4, 3, v6")
    a("v_lshl_add_u32 v15, v6, 7, v15")
    a("v_add_u32 v20, 8192, v15")
    if OUT_STAGE:
        a("s_lshl_b32 s45, s41, 5")
        a("v_add_u32 v8, s45, v3")
        a("v_mul_u32_u24 v8, 144, v8")
        a("v_lshl_add_u32 v8, v4, 5, v8")
        a("s_lshl_b32 s45, s42, 6")
        a(f"s_add_u32 s45, s45, {G2_OUT}")
        a("v_add_u32 v8, s45, v8")
        a("v_lshrrev_b32 v10, 3, v1")
        a("v_and_b32 v11, 7, v1")
        a("v_mul_u32_u24 v9, 144, v10")
        a("v_lshl_add_u32 v9, v11, 4, v9")
        a(f"s_mul_i32 s45, s34, {16*144}")
        a(f"s_add_u32 s45, s45, {G2_OUT}")
        a("v_add_u32 v9, s45, v9")
        a("v_lshlrev_b32 v10, 10, v10")
        a("v_lshl_add_u32 v10, v11, 4, v10")
        a("s_lshl_b32 s46, s34, 4")
        a("s_add_u32 s46, s46, s32")
        a("s_lshl_b32 s46, s46, 10")
        a("s_lshl_b32 s47, s33, 1")
        a("s_add_u32 s46, s46, s47")
        a("s_add_u32 s47, s46, 8192")
    a("s_waitcnt lgkmcnt(0)")
    srd(a, 24, 4, L * D * 2)
    srd(a, 28, 10, L * D * 2)
    a("buffer_load_dwordx4 v[24:27], v14, s[24:27], s44 offen")
    a("buffer_load_dwordx4 v[28:31], v14, s[24:27], s44 offen offset:16")

    ACC = 32
    FS = [48, 80]
    XA = 112
    ATR = 128
    AT_ST = 10

    def reads(st):
        f = FS[st & 1]
        o = (st % 4) * G2_STAGE
        out = []
        for ks in range(4):
            out.append(f"ds_read_b64_tr_b16 {vr(f+8*ks,2)}, v20 offset:{o+ks*2048}")
            out.append(f"ds_read_b64_tr_b16 {vr(f+8*ks+2,2)}, v20 offset:{o+ks*2048+512}")
            out.append(f"ds_read_b128 {vr(f+8*ks+4,4)}, v{16+ks} offset:{o}")
        return out

    def mfmas(st):
        f = FS[st & 1]
        c = vr(ACC, 16)
        return [f"v_mfma_f32_32x32x16_bf16 {c}, {vr(f+8*ks,4)}, {vr(f+8*ks+4,4)}, "
                f"{'0' if st == 0 and ks == 0 else c}" for ks in range(4)]

    def xa_ops(k):
        x, t = XA + 2 * k, 4
        return [f"v_lshlrev_b32 v{x}, 16, v{24+k}",
                f"v_and_b32 v{x+1}, 0xffff0000, v{24+k}",
                f"v_lshlrev_b32 v{t}, 16, v{ATR+k}",
                f"v_and_b32 v{t+1}, 0xffff0000, v{ATR+k}",
                f"v_pk_add_f32 {vr(x,2)}, {vr(x,2)}, {vr(t,2)}",
                f"v_cvt_pk_bf16_f32 v{x+1}, v{x}, v{x+1}",
                f"v_lshlrev_b32 v{x}, 16, v{x+1}",
                f"v_and_b32 v{x+1}, 0xffff0000, v{x+1}"]

    for st in range(-1, G2_NST):
        nx = st + 1
        body = []
        if nx < G2_NST:
            if nx in (0, 8, 16):
                stamp(a)
            a("s_waitcnt lgkmcnt(0)" if nx != AT_ST + 1 else "s_waitcnt vmcnt(0) lgkmcnt(0)")
            a("s_barrier")
            if nx and nx % 4 == 0:
                delta = 65536 if (nx % G2_NS) == 4 else -65536
                for r in (16, 17, 18, 19, 20):
                    a(f"v_add_u32 v{r}, {delta & 0xffffffff:#x}, v{r}")
            body = reads(nx)
            if nx == AT_ST:
                body += [f"ds_read_b64_tr_b16 {vr(ATR+2*i,2)}, v21 offset:{512*i}" for i in range(4)]
        else:
            a("s_waitcnt lgkmcnt(0)")
        if st >= 0:
            body = interleave(body, mfmas(st), every=3) if body else mfmas(st)
        if AT_ST < nx <= AT_ST + 4:
            k = 2 * (nx - AT_ST - 1)
            body += xa_ops(k) + xa_ops(k + 1)
        for op in body:
            a(op)
    a("s_nop 15")
    stamp(a)
    for k in range(8):
        a(f"v_cvt_pk_bf16_f32 v{48+k}, v{ACC+2*k}, v{ACC+2*k+1}")
    for k in range(8):
        a(f"v_lshlrev_b32 v{ACC+2*k}, 16, v{48+k}")
        a(f"v_and_b32 v{ACC+2*k+1}, 0xffff0000, v{48+k}")
    for k in range(8):
        a(f"v_pk_add_f32 {vr(ACC+2*k,2)}, {vr(ACC+2*k,2)}, {vr(XA+2*k,2)}")
    for k in range(8):
        a(f"v_cvt_pk_bf16_f32 v{56+k}, v{ACC+2*k}, v{ACC+2*k+1}")
        if k == 3:
            a("ds_write_b128 v8, v[56:59]" if OUT_STAGE else
              "buffer_store_dwordx4 v[56:59], v14, s[28:31], s44 offen" + WT["out"])
    if OUT_STAGE:
        a("ds_write_b128 v8, v[60:63] offset:16")
        a("s_waitcnt lgkmcnt(0)")
        a("s_barrier")
        a("ds_read_b128 v[64:67], v9")
        a(f"ds_read_b128 v[68:71], v9 offset:{8*144}")
        a("s_waitcnt lgkmcnt(1)")
        a("buffer_store_dwordx4 v[64:67], v10, s[28:31], s46 offen" + WT["out"])
        a("s_waitcnt lgkmcnt(0)")
        a("buffer_store_dwordx4 v[68:71], v10, s[28:31], s47 offen" + WT["out"])
    else:
        a("buffer_store_dwordx4 v[60:63], v14, s[28:31], s44 offen offset:16" + WT["out"])
    stamp_end(a, 2, 6)
    a.label("k3_exit")
    a("s_endpgm")


def gen_k4(a):
    a.raw(".p2align 8")
    a.label("k4_kernel")
    a("s_cmp_ge_u32 s2, 1")
    a("s_cbranch_scc1 k4_exit")
    a(f"s_load_dwordx4 s[4:7], s[0:1], {KA_DBG}")
    a("s_memrealtime s[20:21]")
    a("s_waitcnt lgkmcnt(0)")
    srd(a, 8, 6, 0x1000000, PROF_BASE)
    srd(a, 12, 4, 256)
    groups = [(0, 0, 256, 0, 4), (0, 0, 256, 4, 8), (1, 0, 176, 0, 4), (1, 176, 240, 0, 8), (2, 0, 256, 0, 4)]
    for gi, (l, lo, hi, w0, w1) in enumerate(groups):
        a("v_mov_b32 v4, -1")
        a("v_mov_b32 v5, 0")
        for base in range(lo, hi, 64):
            n = min(64, hi - base)
            a(f"v_min_u32 v2, {n-1}, v0")
            a(f"v_add_u32 v2, {l*512 + base}, v2")
            a("v_lshlrev_b32 v2, 10, v2")
            for w in range(w0, w1):
                a(f"buffer_load_dwordx2 {vr(8+2*(w-w0),2)}, v2, s[8:11], 0 offen offset:{64*w}")
            a("s_waitcnt vmcnt(0)")
            for w in range(w0, w1):
                a(f"v_min_u32 v4, v4, v{8+2*(w-w0)}")
                a(f"v_max_u32 v5, v5, v{9+2*(w-w0)}")
        a("s_mov_b32 s22, -1")
        a("s_mov_b32 s23, 0")
        for ln in range(64):
            a(f"v_readlane_b32 s24, v4, {ln}")
            a(f"v_readlane_b32 s25, v5, {ln}")
            a("s_nop 1")
            a("s_min_u32 s22, s22, s24")
            a("s_max_u32 s23, s23, s25")
        a(f"s_mov_b32 s{30+2*gi}, s22")
        a(f"s_mov_b32 s{31+2*gi}, s23")
    a("v_mov_b32 v3, 0")
    for i in range(10):
        a(f"s_sub_u32 s24, s{30+i}, s30")
        a("v_mov_b32 v6, s24")
        a(f"buffer_store_dword v6, v3, s[12:15], 0 offen offset:{4*i}")
        a("s_nop 1")
    a("s_sub_u32 s24, s20, s30")
    a("v_mov_b32 v6, s24")
    a("buffer_store_dword v6, v3, s[12:15], 0 offen offset:40")
    if SPIN:
        hi, lo = SPIN
        a("s_max_u32 s31, s31, s33")
        a("s_min_u32 s34, s34, s36")
        a("s_max_u32 s35, s35, s37")
        a(f"s_sub_u32 s24, s{hi}, s{lo}")
        a("s_min_u32 s24, s24, 3000")
        a("s_lshl_b32 s24, s24, 2")
        a("s_memrealtime s[26:27]")
        a("s_waitcnt lgkmcnt(0)")
        a("s_add_u32 s24, s24, s26")
        a.label("k4_spin")
        a("s_memrealtime s[26:27]")
        a("s_waitcnt lgkmcnt(0)")
        a("s_sub_u32 s25, s24, s26")
        a("s_cmp_gt_i32 s25, 0")
        a("s_cbranch_scc1 k4_spin")
    a.label("k4_exit")
    a("s_endpgm")


def descriptor(name, vgpr, sgpr):
    acc = (vgpr + 3) // 4 * 4
    return f""".p2align 6
.amdhsa_kernel {name}
  .amdhsa_next_free_vgpr {vgpr}
  .amdhsa_next_free_sgpr {sgpr}
  .amdhsa_accum_offset {acc}
  .amdhsa_group_segment_fixed_size 0
  .amdhsa_kernarg_size 112
  .amdhsa_user_sgpr_count 2
  .amdhsa_user_sgpr_kernarg_segment_ptr 1
  .amdhsa_system_sgpr_workgroup_id_x 1
.end_amdhsa_kernel
"""


HEADER = """
out = x + (S4D causal conv(xn) + xn*D) + ReGLU-MLP(xn), xn = LayerNorm(x); bf16 rounding points follow the reference.
kernarg: A_u, log_A_real, A_imag, C_real, C_imag, log_dt, D_skip, B_x, W_gate, W_up, W_down, out, dbg, ws
k1: waves 0-3 build the S4D kernel table of 2 channels (exp(a*p) factorised as X[hi] * Y[lo], summed over n by MFMA,
    only the 641 positions a bf16 index can take); waves 4-7 LayerNorm 8 rows -> xn and time-blocked xn^T.
k2: WGs 0-175 gate/up GEMM (256 x 64 tiles, 4 MFMA waves + 4 LDS-DMA waves) -> h; WGs 176-239 causal convolution,
    one channel per wave, Toeplitz fragments by MFMA (taps >= 1029 through exact window sums, K is constant over
    each bf16 rounding group); WGs 240-255 rewrite W_down tile by tile.
k3: down GEMM (64 x 64 tiles, 4 MFMA waves + 8 LDS-DMA waves) and the final sum.
"""


def main(path):
    a = Asm()
    for ln in HEADER.strip("\n").split("\n"):
        a.raw(("; " + ln).rstrip())
    a.raw(f"; @launch kernel=k1_kernel grid=({N_K1},1,1) block=(512,1,1) lds={K1_LDS}")
    a.raw(f"; @launch kernel=k2_kernel grid=({N_G1+N_CV+N_RL},1,1) block=(512,1,1) lds={K2_LDS}")
    a.raw(f"; @launch kernel=k3_kernel grid=({N_G2},1,1) block=(768,1,1) lds={K3_LDS}")
    if K4:
        a.raw("; @launch kernel=k4_kernel grid=(1,1,1) block=(64,1,1) lds=0")
    a.raw('.amdgcn_target "amdgcn-amd-amdhsa--gfx950"')
    a.raw(".text")
    for k in ("k1_kernel", "k2_kernel", "k3_kernel") + (("k4_kernel",) if K4 else ()):
        a.raw(f".globl {k}")
        a.raw(f".type {k},@function")
    gen_k1(a)
    gen_k2(a)
    gen_k3(a)
    a.label("code_end")
    if K4:
        gen_k4(a)
    a.raw('.section .rodata,"a"')
    if K4:
        a.raw(descriptor("k4_kernel", 32, 48))
    sg = 102 if PROF else 0
    a.raw(descriptor("k1_kernel", 164, max(sg, 74)))
    a.raw(descriptor("k2_kernel", 256, max(sg, 56)))
    a.raw(descriptor("k3_kernel", 136, max(sg, 56)))
    open(path, "w").write(a.text())


if __name__ == "__main__":
    for arg in list(sys.argv):
        if arg.startswith("--prio="):
            PRIO = int(arg[7:])
            sys.argv.remove(arg)
        if arg.startswith("--g2map="):
            G2_MAP = int(arg[8:])
            sys.argv.remove(arg)
        if arg.startswith("--lead="):
            G2_LEAD = int(arg[7:])
            sys.argv.remove(arg)
        if arg == "--nooutstage":
            OUT_STAGE = False
            sys.argv.remove(arg)
        if arg.startswith("--spin="):
            SPIN = tuple(int(x) for x in arg[7:].split(","))
            sys.argv.remove(arg)
        if arg.startswith("--wt="):
            flag, names = arg[5:].split(":")
            for nm in names.split(","):
                WT[nm] = (" " + flag.replace("+", " ")).rstrip()
            sys.argv.remove(arg)
        if arg.startswith("--epi="):
            EPI = arg[6:]
            sys.argv.remove(arg)
    if "--nocodepf" in sys.argv:
        sys.argv.remove("--nocodepf")
        CODE_PF = False
    if "--notouch" in sys.argv:
        sys.argv.remove("--notouch")
        TOUCH = False
    if "--k4" in sys.argv:
        sys.argv.remove("--k4")
        K4 = PROF = True
    if "--prof" in sys.argv:
        sys.argv.remove("--prof")
        PROF = True
    main(sys.argv[1] if len(sys.argv) > 1 else f"cdna_kernels/{NAME}.s")
```

```python
import struct
import sys

NAME = "parallel_sum__ssm_conv_s4d__glu_gated_reglu__prompt"

L, D, N, F = 2048, 512, 128, 1376
FP = 1408
WS_XN = 0x000000
WS_XNT = 0x240000
WS_KR = 0x480000
WS_H = 0x880000
WS_AT = 0xE80000
XN_STRIDE = 1024 + 128
XN_BYTES = L * XN_STRIDE
H_STRIDE = 2 * FP + 128
H_BYTES = L * H_STRIDE
XNT_STRIDE = 8192 + 128
XNT_BYTES = (L // 8) * XNT_STRIDE
W_BYTES = D * F * 2
WS_WDT = WS_AT + L * D * 2
WDT_TILE = FP * 128
WS_END = WS_WDT + 8 * WDT_TILE
TOUCH = False
CODE_PF = True
PF_MODE = "full"
PRIO = 0
G2_MAP = 0
G1_MAP = True
EPI = "dot"
WT = dict(xn=" sc1", xnt=" sc1", k="", at=" sc1", wdt=" sc1", h=" sc1", out="")

KA_U, KA_LAR, KA_AI, KA_CR, KA_CI, KA_LDT, KA_DSK, KA_BX, KA_WG, KA_WU, KA_WD, KA_OUT, KA_DBG, KA_WS = \
    [8 * i for i in range(14)]


def f32(x):
    return "0x%08x" % struct.unpack("<I", struct.pack("<f", x))[0]


class Asm:
    def __init__(self):
        self.lines = []

    def __call__(self, s):
        for ln in s.strip("\n").split("\n"):
            self.lines.append("  " + ln.strip())

    def label(self, s):
        self.lines.append(s + ":")

    def raw(self, s):
        self.lines.append(s)

    def text(self):
        return "\n".join(self.lines) + "\n"


PROF = False
K4 = False
SPIN = None
PROF_BASE = 0x1400000
_stamp_n = [0]


def stamp_begin(a):
    _stamp_n[0] = 0
    if PROF:
        a("s_memrealtime s[80:81]")
        a("s_memtime s[82:83]")
        _stamp_n[0] = 1


def stamp(a):
    if PROF:
        k = _stamp_n[0]
        a(f"s_memtime s[{82+2*k}:{83+2*k}]")
        _stamp_n[0] += 1


def stamp_end(a, launch, ws_lo):
    if not PROF:
        return
    stamp(a)
    n = _stamp_n[0]
    a("s_waitcnt lgkmcnt(0)")
    a("s_memrealtime s[98:99]")
    a(f"s_add_u32 s76, s{ws_lo}, {PROF_BASE}")
    a(f"s_addc_u32 s77, s{ws_lo+1}, 0")
    a("s_mov_b32 s78, 0x1000000")
    a("s_mov_b32 s79, 0x00020000")
    a("v_lshrrev_b32 v2, 6, v0")
    a(f"s_add_u32 s75, s2, {launch*512}")
    a("s_lshl_b32 s75, s75, 10")
    a("v_lshlrev_b32 v2, 6, v2")
    a("v_add_u32 v2, s75, v2")
    a("s_waitcnt lgkmcnt(0)")
    a("v_mov_b32 v4, s80")
    a("v_mov_b32 v5, s98")
    a("buffer_store_dwordx2 v[4:5], v2, s[76:79], 0 offen")
    for k in range(n):
        a(f"v_mov_b32 v6, s{82+2*k}")
        a(f"buffer_store_dword v6, v2, s[76:79], 0 offen offset:{8+4*k}")
        a("s_nop 1")


def vr(b, n):
    return "v[%d:%d]" % (b, b + n - 1)


def sr(b, n):
    return "s[%d:%d]" % (b, b + n - 1)


def srd(a, dst, base, nbytes, add=0):
    if add:
        a(f"s_add_u32 s{dst}, s{base}, {add}")
        a(f"s_addc_u32 s{dst+1}, s{base+1}, 0")
    else:
        a(f"s_mov_b32 s{dst}, s{base}")
        a(f"s_mov_b32 s{dst+1}, s{base+1}")
    a(f"s_mov_b32 s{dst+2}, {nbytes}")
    a(f"s_mov_b32 s{dst+3}, 0x00020000")


_pc_n = [0]


def code_prefetch(a, lo, hi, slice_sgpr, lane16, dst, sbase):
    _pc_n[0] += 1
    lab = f"pc_ref{_pc_n[0]}"
    a(f"s_getpc_b64 {sr(sbase,2)}")
    a.label(lab)
    a(f"s_add_u32 s{sbase}, s{sbase}, ({lo} - {lab}) & 0xffffffff")
    a(f"s_addc_u32 s{sbase+1}, s{sbase+1}, (({lo} - {lab}) >> 32) & 0xffffffff")
    a(f"s_mov_b32 s{sbase+2}, {hi} - {lo}")
    a(f"s_mov_b32 s{sbase+3}, 0x00020000")
    a(f"s_lshl_b32 s{slice_sgpr}, s{slice_sgpr}, 10")
    a(f"buffer_load_dwordx4 {vr(dst,4)}, v{lane16}, {sr(sbase,4)}, s{slice_sgpr} offen")


def interleave(main, fill, every=1, start=0):
    out = []
    fill = list(fill)
    for i, m in enumerate(main):
        out.append(m)
        if i >= start and (i - start) % every == every - 1 and fill:
            out.append(fill.pop(0))
    out.extend(fill)
    return out


N_K1 = 256
LN_STRIDE = 1088
KG_ROW = 544
KG_XA, KG_YB, KG_T = 0, 24 * KG_ROW, 56 * KG_ROW
KG_CH = KG_T + 3072
LN_LDS = 2 * KG_CH
K1_LDS = LN_LDS + 8 * LN_STRIDE
LOG2E = 1.4426950408889634
L_HI = 47274.0 / 32768.0
C_LO = (LOG2E - L_HI) * 0.6931471805599453
T_BIAS = 0x3F7F
KT_BYTES = 3072
KT_O, KT_TAB = 1024, 2048
PF_W = 6


def dpp_reduce(a, regs):
    steps = ["row_shr:1 row_mask:0xf bank_mask:0xf bound_ctrl:0",
             "row_shr:2 row_mask:0xf bank_mask:0xf bound_ctrl:0",
             "row_shr:4 row_mask:0xf bank_mask:0xf bound_ctrl:0",
             "row_shr:8 row_mask:0xf bank_mask:0xf bound_ctrl:0",
             "row_bcast:15 row_mask:0xa bank_mask:0xf",
             "row_bcast:31 row_mask:0xc bank_mask:0xf"]
    a("s_nop 1")
    for st in steps:
        for r in regs:
            a(f"v_add_f32_dpp v{r}, v{r}, v{r} {st}")
    a("s_nop 1")


def bf16_round(a, dst, src):
    a(f"v_cvt_pk_bf16_f32 v{dst}, v{src}, v{src}")
    a(f"v_lshlrev_b32 v{dst}, 16, v{dst}")


def gen_ln(a):
    stamp_begin(a)
    if CODE_PF:
        a("v_lshlrev_b32 v3, 4, v1")
        a("s_lshr_b32 s45, s2, 3")
        a("s_lshl_b32 s45, s45, 1")
        a("s_sub_u32 s46, s44, 6")
        a("s_add_u32 s45, s45, s46")
        a("s_cmp_lt_u32 s44, 6")
        a("s_cbranch_scc1 k1_no_pf")
        code_prefetch(a, "k1_kernel", "code_end", 45, 3, 76, 56)
        a("s_branch k1_pf_done")
        a.label("k1_no_pf")
        a("s_nop 0")
        a.label("k1_pf_done")
    a(f"s_load_dwordx2 s[4:5], s[0:1], {KA_U}")
    a(f"s_load_dwordx2 s[6:7], s[0:1], {KA_WS}")
    a(f"s_load_dwordx4 s[48:51], s[0:1], {KA_WG}")
    a(f"s_load_dwordx4 s[68:71], s[0:1], {KA_WD}")
    a(f"s_load_dwordx2 s[54:55], s[0:1], {KA_DSK}")
    a("s_sub_u32 s22, s44, 4")
    a("s_and_b32 s20, s2, 7")
    a("s_lshr_b32 s21, s2, 3")
    a("s_lshl_b32 s20, s20, 8")
    a("s_lshl_b32 s23, s21, 3")
    a("s_add_u32 s20, s20, s23")
    a("s_lshl_b32 s23, s22, 1")
    a("s_add_u32 s23, s23, s20")
    a("s_lshl_b32 s24, s23, 10")
    a(f"s_mul_i32 s53, s23, {XN_STRIDE}")
    a("v_lshlrev_b32 v3, 4, v1")
    a("s_lshl_b32 s52, s2, 2")
    a("s_add_u32 s52, s52, s22")
    a("s_lshl_b32 s52, s52, 11")
    a(f"s_mul_i32 s25, s22, {2*LN_STRIDE}")
    a(f"s_add_u32 s25, s25, {LN_LDS}")
    a("v_add_u32 v4, s25, v3")
    a("v_and_b32 v5, 15, v1")
    a("v_lshrrev_b32 v6, 2, v5")
    a("v_and_b32 v5, 3, v5")
    a("v_lshrrev_b32 v7, 4, v1")
    a(f"v_mul_u32_u24 v6, {LN_STRIDE}, v6")
    a("v_lshlrev_b32 v5, 3, v5")
    a("v_lshl_add_u32 v5, v7, 5, v5")
    a("v_add_u32 v5, v5, v6")
    a("s_lshl_b32 s26, s22, 8")
    a(f"s_add_u32 s26, s26, {LN_LDS}")
    a("v_add_u32 v5, s26, v5")
    a("s_lshl_b32 s27, s22, 7")
    a("v_add_u32 v6, s27, v1")
    a("v_lshlrev_b32 v6, 4, v6")
    a(f"s_mul_i32 s28, s20, {XNT_STRIDE // 8}")
    a("s_waitcnt lgkmcnt(0)")
    srd(a, 8, 4, L * D * 2)
    for r in range(2):
        a(f"buffer_load_dwordx4 {vr(8+4*r,4)}, v3, s[8:11], s24 offen offset:{r*1024}")
    srd(a, 56, 48, W_BYTES)
    srd(a, 60, 50, W_BYTES)
    srd(a, 64, 68, W_BYTES)
    if TOUCH:
        a("s_cmp_ge_u32 s2, 16")
        a("s_cbranch_scc1 k1_no_touch")
        srd(a, 12, 6, WS_END)
        srd(a, 16, 70, L * D * 2)
        a("v_lshlrev_b32 v60, 18, v1")
        a("s_lshl_b32 s45, s22, 16")
        a("buffer_load_dword v61, v60, s[12:15], s45 offen")
        a("v_lshlrev_b32 v60, 15, v1")
        a(f"s_mov_b32 s45, {1 << 24}")
        a("buffer_load_dword v61, v60, s[12:15], s45 offen")
        a("buffer_load_dword v61, v60, s[16:19], 0 offen")
        srd(a, 16, 54, D * 2)
        a("buffer_load_dword v61, v3, s[16:19], 0 offen")
        for i in range(2):
            a(f"buffer_load_dwordx4 v[72:75], v3, s[56:59], s52 offen offset:{i*1024}")
        a("s_branch k1_touched")
        a.label("k1_no_touch")
    if PF_MODE == "full":
        for i in range(2):
            for b in (56, 60, 64):
                a(f"buffer_load_dwordx4 v[72:75], v3, {sr(b,4)}, s52 offen offset:{i*1024}")
    elif PF_MODE == "gu":
        for i in range(2):
            for b in (56, 60):
                a(f"buffer_load_dwordx4 v[72:75], v3, {sr(b,4)}, s52 offen offset:{i*1024}")
    elif PF_MODE == "touch":
        a("v_and_b32 v62, 15, v1")
        a("v_lshlrev_b32 v62, 7, v62")
        for b in (56, 60):
            a(f"buffer_load_dword v72, v62, {sr(b,4)}, s52 offen")
    if TOUCH:
        a.label("k1_touched")
    srd(a, 12, 6, XN_BYTES, WS_XN)
    srd(a, 16, 6, XNT_BYTES, WS_XNT)
    X = lambda r, e: 32 + 8 * r + e
    stamp(a)
    for r in range(2):
        a(f"s_waitcnt vmcnt({dict(full=6, gu=4, touch=2, none=0)[PF_MODE] + 1 - r})")
        if r == 0:
            stamp(a)
        for k in range(4):
            a(f"v_lshlrev_b32 v{X(r,2*k)}, 16, v{8+4*r+k}")
            a(f"v_and_b32 v{X(r,2*k+1)}, 0xffff0000, v{8+4*r+k}")
        a(f"v_readfirstlane_b32 s{30+2*r}, v{X(r,0)}")
        a(f"v_pk_add_f32 v[48:49], {vr(X(r,0),2)}, {vr(X(r,2),2)}")
        a(f"v_pk_add_f32 v[50:51], {vr(X(r,4),2)}, {vr(X(r,6),2)}")
        a(f"s_mov_b32 s{31+2*r}, s{30+2*r}")
        a("v_pk_add_f32 v[48:49], v[48:49], v[50:51]")
        for k in range(4):
            a(f"v_pk_add_f32 {vr(52+2*k,2)}, {vr(X(r,2*k),2)}, {sr(30+2*r,2)} neg_lo:[0,1] neg_hi:[0,1]")
        a(f"v_add_f32 v{24+2*r}, v48, v49")
        a("v_pk_mul_f32 v[50:51], v[52:53], v[52:53]")
        a("v_pk_mul_f32 v[48:49], v[54:55], v[54:55]")
        a("v_pk_fma_f32 v[50:51], v[56:57], v[56:57], v[50:51]")
        a("v_pk_fma_f32 v[48:49], v[58:59], v[58:59], v[48:49]")
        a("v_pk_add_f32 v[48:49], v[48:49], v[50:51]")
        a(f"v_add_f32 v{25+2*r}, v48, v49")
    dpp_reduce(a, [24, 25, 26, 27])
    for r in range(2):
        a(f"v_mul_f32 v{24+2*r}, {f32(1.0/512)}, v{24+2*r}")
        a(f"v_mul_f32 v{25+2*r}, {f32(1.0/512)}, v{25+2*r}")
    for r in range(2):
        a(f"v_subrev_f32 v{28+r}, s{30+2*r}, v{24+2*r}")
        bf16_round(a, 24 + 2 * r, 24 + 2 * r)
    for r in range(2):
        a(f"v_fma_f32 v{25+2*r}, -v{28+r}, v{28+r}, v{25+2*r}")
        a(f"v_max_f32 v{25+2*r}, 0, v{25+2*r}")
    for r in range(2):
        bf16_round(a, 25 + 2 * r, 25 + 2 * r)
    for r in range(2):
        a(f"v_add_f32 v{25+2*r}, {f32(1e-5)}, v{25+2*r}")
        a(f"v_readlane_b32 s{36+2*r}, v{24+2*r}, 63")
    for r in range(2):
        bf16_round(a, 25 + 2 * r, 25 + 2 * r)
    for r in range(2):
        a(f"v_sqrt_f32 v{25+2*r}, v{25+2*r}")
    for r in range(2):
        a(f"s_mov_b32 s{37+2*r}, s{36+2*r}")
    for r in range(2):
        bf16_round(a, 25 + 2 * r, 25 + 2 * r)
    for r in range(2):
        a(f"v_rcp_f32 v{25+2*r}, v{25+2*r}")
    for r in range(2):
        for k in range(4):
            a(f"v_pk_add_f32 {vr(X(r,2*k),2)}, {vr(X(r,2*k),2)}, {sr(36+2*r,2)} neg_lo:[0,1] neg_hi:[0,1]")
    for r in range(2):
        a(f"v_readlane_b32 s{40+2*r}, v{25+2*r}, 63")
    for r in range(2):
        for k in range(4):
            a(f"v_cvt_pk_bf16_f32 v{8+4*r+k}, v{X(r,2*k)}, v{X(r,2*k+1)}")
    for r in range(2):
        a(f"s_mov_b32 s{41+2*r}, s{40+2*r}")
    for r in range(2):
        for k in range(4):
            a(f"v_lshlrev_b32 v{X(r,2*k)}, 16, v{8+4*r+k}")
            a(f"v_and_b32 v{X(r,2*k+1)}, 0xffff0000, v{8+4*r+k}")
        for k in range(4):
            a(f"v_pk_mul_f32 {vr(X(r,2*k),2)}, {vr(X(r,2*k),2)}, {sr(40+2*r,2)}")
        for k in range(4):
            a(f"v_cvt_pk_bf16_f32 v{16+4*r+k}, v{X(r,2*k)}, v{X(r,2*k+1)}")
        a(f"ds_write_b128 v4, {vr(16+4*r,4)} offset:{r*LN_STRIDE}")
        a(f"buffer_store_dwordx4 {vr(16+4*r,4)}, v3, s[12:15], s53 offen offset:{r*XN_STRIDE}" + WT["xn"])
    a("s_waitcnt lgkmcnt(0)")
    stamp(a)
    a("s_barrier")
    for blk in range(2):
        for tb in range(2):
            a(f"ds_read_b64_tr_b16 {vr(32+4*blk+2*tb,2)}, v5 offset:{blk*128 + tb*4*LN_STRIDE}")
    a("s_waitcnt lgkmcnt(2)")
    a("buffer_store_dwordx4 v[32:35], v6, s[16:19], s28 offen" + WT["xnt"])
    a("s_waitcnt lgkmcnt(0)")
    a("buffer_store_dwordx4 v[36:39], v6, s[16:19], s28 offen offset:1024" + WT["xnt"])
    stamp_end(a, 0, 6)
    a("s_endpgm")


def exp_acc(a, dst, x, t):
    a(f"v_mul_f32 v{dst}, {f32(L_HI)}, v{x}")
    a(f"v_exp_f32 v{dst}, v{dst}")
    a(f"v_mul_f32 v{t}, {f32(C_LO)}, v{x}")
    a(f"v_fma_f32 v{dst}, v{dst}, v{t}, v{dst}")


def cmul(t, z, w):
    return [f"v_pk_mul_f32 {vr(t,2)}, {vr(z,2)}, {vr(w,2)} op_sel:[0,0] op_sel_hi:[1,0]",
            f"v_pk_fma_f32 {vr(t,2)}, {vr(z,2)}, {vr(w,2)}, {vr(t,2)} op_sel:[1,1,0] op_sel_hi:[0,1,1] "
            f"neg_lo:[1,0,0]"]


def gen_kgen(a):
    stamp_begin(a)
    a(f"s_load_dwordx8 s[4:11], s[0:1], {KA_LAR}")
    a(f"s_load_dwordx2 s[12:13], s[0:1], {KA_LDT}")
    a(f"s_load_dwordx2 s[14:15], s[0:1], {KA_WS}")
    a("s_and_b32 s41, s2, 7")
    a("s_lshr_b32 s42, s2, 3")
    a("s_lshr_b32 s43, s42, 2")
    a("s_lshl_b32 s43, s43, 6")
    a("s_lshl_b32 s41, s41, 3")
    a("s_add_u32 s41, s41, s43")
    a("s_and_b32 s42, s42, 3")
    a("s_lshl_b32 s42, s42, 1")
    a("s_add_u32 s41, s41, s42")
    a("s_lshr_b32 s45, s44, 1")
    a("s_and_b32 s46, s44, 1")
    a("s_add_u32 s47, s41, s45")
    a("s_lshl_b32 s48, s46, 6")
    a("v_add_u32 v3, s48, v1")
    a("s_lshl_b32 s49, s47, 8")
    a("v_lshlrev_b32 v4, 1, v3")
    a("s_lshl_b32 s50, s47, 1")
    a("v_mov_b32 v5, s50")
    a("s_waitcnt lgkmcnt(0)")
    srd(a, 16, 4, D * N * 2)
    srd(a, 32, 12, D * 2)
    a("buffer_load_ushort v8, v4, s[16:19], s49 offen")
    a("buffer_load_ushort v12, v5, s[32:35], 0 offen")
    srd(a, 20, 6, D * N * 2)
    a("buffer_load_ushort v9, v4, s[20:23], s49 offen")
    srd(a, 24, 8, D * N * 2)
    a("buffer_load_ushort v10, v4, s[24:27], s49 offen")
    srd(a, 28, 10, D * N * 2)
    a("buffer_load_ushort v11, v4, s[28:31], s49 offen")
    srd(a, 36, 14, D * KT_BYTES, WS_KR)
    a(f"s_mul_i32 s51, s45, {KG_CH}")
    a("v_lshlrev_b32 v6, 2, v3")
    a("v_add_u32 v6, s51, v6")
    a("v_and_b32 v7, 15, v1")
    a("v_lshrrev_b32 v2, 4, v1")
    a(f"v_mul_u32_u24 v13, {KG_ROW}, v7")
    a("v_lshl_add_u32 v13, v2, 4, v13")
    a("v_add_u32 v100, s51, v13")
    a(f"s_mul_i32 s52, s46, {16*KG_ROW}")
    a("v_add_u32 v101, s52, v100")
    quads = [(0, 1), (4, 1), (256, 2), (512, 256)], [(1536, 256), (516, 256), (4097, 0), (4097, 0)]
    a("s_cmp_eq_u32 s46, 0")
    for q in range(4):
        a(f"s_mov_b32 s64, {f32(float(quads[0][q][0]))}")
        a(f"s_mov_b32 s65, {f32(float(quads[0][q][1]))}")
        a(f"s_cselect_b32 s{56+q}, s64, {f32(float(quads[1][q][0]))}")
        a(f"s_cselect_b32 s{60+q}, s65, {f32(float(quads[1][q][1]))}")
    a("v_mov_b32 v14, s56")
    a("v_mov_b32 v15, s60")
    for q in range(1, 4):
        a(f"v_cmp_eq_u32 vcc, {q}, v2")
        a(f"v_mov_b32 v16, s{56+q}")
        a(f"v_mov_b32 v17, s{60+q}")
        a("v_cndmask_b32 v14, v14, v16, vcc")
        a("v_cndmask_b32 v15, v15, v17, vcc")
    a("v_cvt_f32_u32 v16, v7")
    a("v_fmac_f32 v14, 0x41000000, v16")
    a(f"s_add_u32 s53, s51, {KG_T + KT_TAB - 2*0x4380}")
    a(f"s_add_u32 s54, s51, {KG_T + 3000}")
    a(f"s_add_u32 s57, s51, {KG_T + 510}")
    a(f"s_add_u32 s58, s51, {KG_T + KT_O + 512}")
    a("v_mov_b32 v19, s54")
    TW, TW2 = 102, 112
    for jt in range(2):
        for r in range(4):
            p = 20 + 4 * jt + r
            if r == 0:
                a(f"v_mov_b32 v{p}, v14" if jt == 0 else f"v_add_f32 v{p}, 0x43000000, v14")
            else:
                a(f"v_add_f32 v{p}, v{p-1}, v15")
    for i in range(8):
        p, b, b2 = 20 + i, TW + i, TW2 + i
        a(f"v_cvt_pk_bf16_f32 v{b}, v{p}, v{p}")
        a(f"v_cvt_u32_f32 v17, v{p}")
        a(f"v_and_b32 v16, 0xffff0000, v{b}")
        a(f"v_cmp_eq_u32 vcc, v16, v{p}")
        a(f"v_and_b32 v{b}, 0xffff, v{b}")
        a(f"v_lshl_add_u32 v{b}, v{b}, 1, s53")
        a(f"v_cndmask_b32 v{b}, v19, v{b}, vcc")
        a("v_lshlrev_b32 v16, 1, v17")
        a("v_cmp_gt_u32 vcc, 256, v17")
        a("v_sub_u32 v18, s57, v16")
        a(f"v_sub_u32 v{b2}, s58, v16")
        a(f"v_cndmask_b32 v{b}, v{b}, v18, vcc")
        a("v_cmp_ge_u32 vcc, 256, v17")
        a("s_nop 1")
        a(f"v_cndmask_b32 v{b2}, v19, v{b2}, vcc")
    a("v_mov_b32 v20, 0")
    a("v_mov_b32 v21, 0")
    a("v_mov_b32 v22, 0")
    a("v_mov_b32 v23, 0")
    a("v_and_b32 v16, 1, v1")
    a("v_lshlrev_b32 v16, 4, v16")
    a(f"s_mul_i32 s59, s46, {KT_O}")
    a("s_add_u32 s59, s59, s57")
    a("v_add_u32 v16, s59, v16")
    a("ds_write_b128 v16, v[20:23] offset:2")
    a("v_lshlrev_b32 v130, 4, v3")
    a(f"s_add_u32 s55, s51, {KG_T}")
    a("v_add_u32 v110, s55, v130")
    a(f"s_mul_i32 s55, s47, {KT_BYTES}")
    a("v_mov_b32 v14, 0x00003f80")
    a(f"ds_write_b32 v6, v14 offset:{KG_YB}")
    stamp(a)
    a("s_waitcnt vmcnt(3)")
    stamp(a)
    a("v_lshlrev_b32 v12, 16, v12")
    a("v_lshlrev_b32 v8, 16, v8")
    exp_acc(a, 13, 12, 14)
    exp_acc(a, 15, 8, 16)
    bf16_round(a, 13, 13)
    bf16_round(a, 15, 15)
    a("s_waitcnt vmcnt(2)")
    a("v_lshlrev_b32 v9, 16, v9")
    a("v_mul_f32 v15, v15, v13")
    a("v_mul_f32 v16, v9, v13")
    a(f"v_mul_f32 v15, {f32(-LOG2E)}, v15")
    a(f"v_mul_f32 v16, {f32(0.15915494309189535)}, v16")
    seeds = [(1, 20, 1), (256, 22, 1), (8, 24, -1), (64, 26, -1)]
    for i, (p, z, sg) in enumerate(seeds):
        a(f"v_mul_f32 v{32+i}, {f32(float(p))}, v15")
        a(f"v_mul_f32 v{36+i}, {f32(float(p*sg))}, v16")
    for i in range(4):
        a(f"v_exp_f32 v{32+i}, v{32+i}")
        a(f"v_fract_f32 v{36+i}, v{36+i}")
    for i, (p, z, sg) in enumerate(seeds):
        a(f"v_cos_f32 v{z}, v{36+i}")
        a(f"v_sin_f32 v{z+1}, v{36+i}")
    a("s_waitcnt vmcnt(0)")
    a("v_lshlrev_b32 v10, 16, v10")
    a("v_lshlrev_b32 v11, 16, v11")
    a("v_add_f32 v13, v13, v13")
    for i, (p, z, sg) in enumerate(seeds):
        a(f"v_mul_f32 v{z}, v{32+i}, v{z}")
        a(f"v_mul_f32 v{z+1}, v{32+i}, v{z+1}")
    a("v_mul_f32 v28, v10, v13")
    a("v_mul_f32 v29, v11, v13")
    E1, E256, Y8, Y64, C = 20, 22, 24, 26, 28
    E2, E4, Y128, Y192 = 40, 42, 44, 46

    def emit(z, off, t):
        return [f"v_cvt_pk_bf16_f32 v{t}, v{z}, v{z+1}", f"ds_write_b32 v6, v{t} offset:{off}"]

    xrow = lambda q, r: KG_XA + (4 * q + r) * KG_ROW
    yrow = lambda j: KG_YB + j * KG_ROW

    def chain(seed, ratio, offs, ra, rb, t, emit_seed=True):
        ops = []
        cur = seed
        for k, off in enumerate(offs):
            if k:
                nxt = ra if cur != ra else rb
                ops.append(cmul(nxt, cur, ratio))
                cur = nxt
            if k or emit_seed:
                ops.append(emit(cur, off, t))
        return ops

    pre = [cmul(E2, E1, E1), cmul(Y128, Y64, Y64), cmul(48, C, E256), cmul(E4, E2, E2), cmul(Y192, Y128, Y64)]
    for i in range(2):
        for op in pre[:3]:
            a(op[i])
    for i in range(2):
        for op in pre[3:]:
            a(op[i])
    a("\n".join(cmul(50, C, E4)))
    chains = [
        chain(Y8, Y8, [yrow(j) for j in range(1, 8)], 52, 54, 88),
        chain(Y64, Y8, [yrow(j) for j in range(8, 16)], 56, 58, 89),
        chain(Y128, Y8, [yrow(j) for j in range(16, 24)], 60, 62, 90),
        chain(Y192, Y8, [yrow(j) for j in range(24, 32)], 64, 66, 91),
        chain(C, E1, [xrow(0, r) for r in range(4)], 68, 70, 92)
        + chain(48, E2, [xrow(2, r) for r in range(4)], 68, 70, 92),
        chain(50, E1, [xrow(1, r) for r in range(4)], 72, 74, 93),
    ]
    far = []
    cur = 48
    offs = [xrow(3, 0), xrow(3, 1), xrow(3, 2), xrow(3, 3), xrow(4, 0), xrow(4, 1), xrow(4, 2)]
    for k, off in enumerate(offs):
        nxt = 76 if cur != 76 else 78
        far.append(cmul(nxt, cur, E256))
        cur = nxt
        far.append(emit(cur, off, 94))
        if k < 2:
            far.append(cmul(80, cur, E4))
            far.append(emit(80, xrow(5, k), 95))
    chains.append(far)
    while any(chains):
        units = [c.pop(0) for c in chains if c]
        for i in range(2):
            for u in units:
                a(u[i])
    a("s_waitcnt lgkmcnt(0)")
    stamp(a)
    a("s_barrier")
    for ks in range(8):
        a(f"ds_read_b128 {vr(132+4*ks,4)}, v101 offset:{KG_XA + ks*64}")
        a(f"ds_read_b128 {vr(32+4*ks,4)}, v100 offset:{KG_YB + ks*64}")
        a(f"ds_read_b128 {vr(64+4*ks,4)}, v100 offset:{KG_YB + 16*KG_ROW + ks*64}")
    for ks in range(8):
        a(f"s_waitcnt lgkmcnt({min(15, 3*(7-ks))})")
        c0 = "0" if ks == 0 else "v[20:23]"
        c1 = "0" if ks == 0 else "v[24:27]"
        a(f"v_mfma_f32_16x16x32_bf16 v[20:23], {vr(132+4*ks,4)}, {vr(32+4*ks,4)}, {c0}")
        a(f"v_mfma_f32_16x16x32_bf16 v[24:27], {vr(132+4*ks,4)}, {vr(64+4*ks,4)}, {c1}")
    a("s_nop 7")
    for i in range(8):
        a(f"v_cvt_pk_bf16_f32 v{20+i}, v{20+i}, v{20+i}")
        a(f"ds_write_b16 v{TW+i}, v{20+i}")
        a(f"ds_write_b16 v{TW2+i}, v{20+i}")
    a("s_waitcnt lgkmcnt(0)")
    stamp(a)
    a("s_barrier")
    a("ds_read_b128 v[32:35], v110")
    a("ds_read_b128 v[36:39], v110 offset:2048")
    a("s_waitcnt lgkmcnt(1)")
    a("buffer_store_dwordx4 v[32:35], v130, s[36:39], s55 offen" + WT["k"])
    a("s_cmp_lg_u32 s46, 0")
    a("s_cbranch_scc1 k1_kg_done")
    a("s_waitcnt lgkmcnt(0)")
    a("buffer_store_dwordx4 v[36:39], v130, s[36:39], s55 offen offset:2048" + WT["k"])
    a.label("k1_kg_done")
    stamp_end(a, 0, 14)
    a("s_endpgm")


def gen_k1(a):
    a.raw(".p2align 8")
    a.label("k1_kernel")
    a(f"s_cmp_ge_u32 s2, {N_K1}")
    a("s_cbranch_scc1 k1_exit")
    a("v_lshrrev_b32 v2, 6, v0")
    a("v_and_b32 v1, 63, v0")
    a("v_readfirstlane_b32 s44, v2")
    a("s_cmp_ge_u32 s44, 4")
    a("s_cbranch_scc1 k1_ln")
    gen_kgen(a)
    a.label("k1_ln")
    gen_ln(a)
    a.label("k1_exit")
    a("s_endpgm")


N_G1, N_CV, N_RL = 176, 64, 16
G1_STAGE = 49152
G1_W = 32768
K2_LDS = 3 * G1_STAGE
G1_NST = 8
CV_ZB, CV_PW = 32768, 32896
CV_O, CV_T, CV_G, CV_W = 2752, 5376, 6400, 7168


def gen_gemm1_loader(a):
    a("s_sub_u32 s30, s30, 4")
    a("v_lshrrev_b32 v3, 3, v1")
    a("v_and_b32 v4, 7, v1")
    a("v_lshrrev_b32 v5, 4, v1")
    a(f"v_mul_u32_u24 v14, {XN_STRIDE}, v3")
    for q in range(4):
        a(f"v_add_u32 v6, {4*q}, v5")
        a("v_and_b32 v6, 7, v6")
        a("v_xor_b32 v6, v6, v4")
        a("v_lshl_add_u32 v6, v6, 4, v14")
        a(f"v_add_u32 v{8+q}, {q*(8*XN_STRIDE-1024)}, v6")
    a("v_and_b32 v6, 1, v5")
    a("v_lshrrev_b32 v7, 2, v4")
    a("v_xor_b32 v6, v6, v7")
    a("v_and_b32 v7, 3, v4")
    a("v_lshlrev_b32 v7, 3, v7")
    a("v_lshl_add_u32 v6, v6, 5, v7")
    a("s_lshl_b32 s31, s29, 6")
    a("v_add_u32 v6, s31, v6")
    a(f"v_mul_u32_u24 v12, {2*F}, v3")
    a("v_lshl_add_u32 v12, v6, 1, v12")
    a(f"v_add_u32 v13, {8*2*F-1024}, v12")
    a(f"v_cmp_le_u32 vcc, {F}, v6")
    a("v_mov_b32 v7, 0x40000000")
    a(f"s_mul_i32 s32, s28, {256*XN_STRIDE}")
    a("v_cndmask_b32 v12, v12, v7, vcc")
    a("v_cndmask_b32 v13, v13, v7, vcc")
    a(f"s_mul_i32 s33, s30, {64*XN_STRIDE}")
    a("s_add_u32 s32, s32, s33")
    a(f"s_add_u32 s36, s32, {32*XN_STRIDE}")
    a(f"s_mul_i32 s33, s30, {16*2*F}")
    a("s_lshl_b32 s34, s30, 13")
    a("s_lshl_b32 s35, s30, 11")
    a(f"s_add_u32 s35, s35, {G1_W}")
    a("s_waitcnt lgkmcnt(0)")
    srd(a, 16, 4, W_BYTES)
    srd(a, 20, 6, W_BYTES)
    srd(a, 12, 8, XN_BYTES, WS_XN)

    def dma(stage, lo=0, hi=12):
        b = (stage % 3) * G1_STAGE
        if lo == 0:
            a(f"s_add_u32 m0, s35, {b}")
            a("s_nop 0")
            a("buffer_load_dwordx4 v12, s[16:19], s33 offen lds")
            a("buffer_load_dwordx4 v13, s[16:19], s33 offen offset:1024 lds")
            a(f"s_add_u32 m0, s35, {b+8192}")
            a("s_nop 0")
            a("buffer_load_dwordx4 v12, s[20:23], s33 offen lds")
            a("buffer_load_dwordx4 v13, s[20:23], s33 offen offset:1024 lds")
            a(f"s_add_u32 s33, s33, {64*2*F}")
        if hi == 12:
            a(f"s_add_u32 m0, s34, {b}")
            a("s_nop 0")
            for q in range(4):
                a(f"buffer_load_dwordx4 v{8+q}, s[12:15], s32 offen offset:{q*1024} lds")
            a(f"s_add_u32 m0, s34, {b+4096}")
            a("s_add_u32 s32, s32, 128")
            for q in range(4):
                a(f"buffer_load_dwordx4 v{8+q}, s[12:15], s36 offen offset:{q*1024} lds")
            a("s_add_u32 s36, s36, 128")

    dma(0)
    dma(1, 0, 4)
    for st in range(G1_NST):
        if st in (0, 3, 4):
            stamp(a)
        a(f"s_waitcnt vmcnt({4 if st == 0 else (12 if st + 1 < G1_NST else 0)})")
        if st in (0, 3, 4):
            stamp(a)
        a("s_barrier")
        if st in (3,):
            stamp(a)
        if st == 0:
            dma(1, 4, 12)
        if st + 2 < G1_NST:
            dma(st + 2)
    stamp_end(a, 1, 8)
    a("s_endpgm")


def gen_gemm1(a):
    stamp_begin(a)
    a(f"s_load_dwordx4 s[4:7], s[0:1], {KA_WG}")
    a(f"s_load_dwordx2 s[8:9], s[0:1], {KA_WS}")
    a("v_and_b32 v1, 63, v0")
    a("v_lshrrev_b32 v2, 6, v0")
    if G1_MAP:
        a("s_lshr_b32 s29, s2, 3")
        a("s_and_b32 s28, s2, 6")
        a("s_and_b32 s31, s29, 1")
        a("s_add_u32 s28, s28, s31")
        a("s_lshr_b32 s29, s29, 1")
        a("s_and_b32 s31, s2, 1")
        a("s_mul_i32 s31, s31, 11")
        a("s_add_u32 s29, s29, s31")
    else:
        a("s_and_b32 s28, s2, 7")
        a("s_lshr_b32 s29, s2, 3")
    a("v_readfirstlane_b32 s30, v2")
    a("s_cmp_lt_u32 s30, 4")
    a("s_cbranch_scc1 k2_g1_compute")
    gen_gemm1_loader(a)
    a.label("k2_g1_compute")
    if PRIO:
        a(f"s_setprio {PRIO}")
    _stamp_n[0] = 1 if PROF else 0
    a("v_and_b32 v3, 31, v1")
    a("v_lshrrev_b32 v4, 5, v1")
    a("v_lshrrev_b32 v5, 1, v3")
    a("v_and_b32 v5, 7, v5")
    a("v_xor_b32 v5, v5, v4")
    a("v_lshlrev_b32 v6, 7, v3")
    a("s_lshl_b32 s38, s30, 13")
    a("v_add_u32 v6, s38, v6")
    for ks in range(4):
        a(f"v_xor_b32 v7, {2*ks}, v5")
        a(f"v_lshl_add_u32 v{16+ks}, v7, 4, v6")
    a("v_and_b32 v5, 15, v1")
    a("v_lshrrev_b32 v6, 2, v5")
    a("v_and_b32 v5, 3, v5")
    a("v_lshrrev_b32 v7, 4, v1")
    a("v_and_b32 v7, 1, v7")
    a("v_and_b32 v13, 1, v5")
    a("v_lshlrev_b32 v13, 5, v13")
    a("v_lshl_add_u32 v13, v7, 4, v13")
    a("v_lshrrev_b32 v5, 1, v5")
    a("v_lshl_add_u32 v13, v5, 3, v13")
    a("v_lshrrev_b32 v5, 1, v6")
    a("v_lshl_add_u32 v13, v5, 6, v13")
    a("v_lshl_add_u32 v6, v4, 3, v6")
    a("v_lshl_add_u32 v13, v6, 7, v13")
    a(f"v_add_u32 v20, {G1_W}, v13")
    a("v_xor_b32 v21, 64, v20")
    a("v_mov_b32 v12, 0")
    HS = 144
    a(f"s_mul_i32 s39, s30, {64*HS}")
    a(f"v_mul_u32_u24 v22, {HS}, v3")
    a("v_lshl_add_u32 v22, v4, 5, v22")
    a("v_add_u32 v22, s39, v22")
    a("v_lshrrev_b32 v5, 3, v1")
    a("v_and_b32 v6, 7, v1")
    a(f"v_mul_u32_u24 v23, {HS}, v5")
    a("v_lshl_add_u32 v23, v6, 4, v23")
    a("v_add_u32 v23, s39, v23")
    a(f"v_mul_u32_u24 v14, {H_STRIDE}, v5")
    a("v_lshl_add_u32 v14, v6, 4, v14")
    a("s_lshl_b32 s40, s28, 8")
    a("s_lshl_b32 s41, s30, 6")
    a("s_add_u32 s40, s40, s41")
    a(f"s_mul_i32 s42, s40, {H_STRIDE}")
    a("s_lshl_b32 s43, s29, 7")
    a("s_add_u32 s42, s42, s43")
    a("s_waitcnt lgkmcnt(0)")
    srd(a, 24, 8, H_BYTES, WS_H)

    ACC = lambda w, ft, tt: 128 + 64 * w + 32 * ft + 16 * tt
    FS = [32, 56, 80, 104]

    def reads(n, f):
        ks = n & 3
        out = []
        for w in range(2):
            for ft in range(2):
                o = 8192 * w + ks * 2048
                out.append(f"ds_read_b64_tr_b16 {vr(f+8*w+4*ft,2)}, v{20+ft} offset:{o}")
                out.append(f"ds_read_b64_tr_b16 {vr(f+8*w+4*ft+2,2)}, v{20+ft} offset:{o+512}")
            out.append(f"ds_read_b128 {vr(f+16+4*w,4)}, v{16+ks} offset:{4096*w}")
        return out

    def mfma(n, f, w, ft, tt):
        c = vr(ACC(w, ft, tt), 16)
        return (f"v_mfma_f32_32x32x16_bf16 {c}, {vr(f+8*w+4*ft,4)}, {vr(f+16+4*tt,4)}, "
                f"{'0' if n == 0 else c}")

    def mfmas(n, f):
        return [mfma(n, f, w, ft, tt) for tt in range(2) for w in range(2) for ft in range(2)]

    def boundary(st):
        a("s_waitcnt lgkmcnt(0)")
        a("s_barrier")
        if st in (0, 6, 7):
            stamp(a)
        if st >= 1:
            delta = G1_STAGE if st % 3 else -2 * G1_STAGE
            for r in (16, 17, 18, 19, 20, 21):
                a(f"v_add_u32 v{r}, {delta & 0xffffffff:#x}, v{r}")

    LASTN = 4 * (G1_NST - 1)
    boundary(0)
    for op in reads(0, FS[0]):
        a(op)
    for n in range(LASTN):
        nx = n + 1
        if nx == LASTN:
            break
        if nx & 3 == 0:
            boundary(nx >> 2)
        else:
            a("s_waitcnt lgkmcnt(0)")
        rd = reads(nx, FS[nx & 1])
        cuts = [0, 3, 6, 8, 10, 10, 10, 10, 10]
        for i, m in enumerate(mfmas(n, FS[n & 1])):
            a(m)
            for op in rd[cuts[i]:cuts[i + 1]]:
                a(op)
    n = LASTN - 1
    boundary(G1_NST - 1)
    sets = {LASTN: FS[0], LASTN + 2: FS[2], LASTN + 3: FS[3], LASTN + 1: FS[1]}
    early = reads(LASTN, FS[0]) + reads(LASTN + 2, FS[2]) + reads(LASTN + 3, FS[3])
    mm = mfmas(n, FS[n & 1])
    for i, m in enumerate(mm):
        a(m)
        for op in early[4 * i:4 * i + 4]:
            a(op)
    for op in reads(LASTN + 1, FS[1]):
        a(op)

    def pair_epilogue(ft, tt):
        g, u = ACC(0, ft, tt), ACC(1, ft, tt)
        o = 4 if ft == 0 else 24
        out = []
        if EPI == "fused":
            for k in range(16):
                out.append(f"v_max_f32 v{g+k}, 0, v{g+k}")
            for k in range(16):
                out.append(f"v_mul_f32 v{g+k}, v{g+k}, v{u+k}")
            for k in range(8):
                out.append(f"v_cvt_pk_bf16_f32 v{o+k}, v{g+2*k}, v{g+2*k+1}")
                if k == 3:
                    out.append(f"ds_write_b128 v22, {vr(o,4)} offset:{32*HS*tt + 64*ft}")
            out.append(f"ds_write_b128 v22, {vr(o+4,4)} offset:{32*HS*tt + 64*ft + 16}")
            return out
        for k in range(8):
            out.append(f"v_cvt_pk_bf16_f32 v{g+2*k}, v{g+2*k}, v{g+2*k+1}")
            out.append(f"v_cvt_pk_bf16_f32 v{u+2*k}, v{u+2*k}, v{u+2*k+1}")
        for k in range(8):
            out.append(f"v_max_i16_sdwa v{g+2*k+1}, v{g+2*k}, v12 dst_sel:WORD_0 dst_unused:UNUSED_PAD "
                       "src0_sel:WORD_0 src1_sel:WORD_0")
            out.append(f"v_max_i16_sdwa v{u+2*k+1}, v{g+2*k}, v12 dst_sel:WORD_1 dst_unused:UNUSED_PAD "
                       "src0_sel:WORD_1 src1_sel:WORD_0")
        for k in range(8):
            out.append(f"v_dot2_f32_bf16 v{g+2*k+1}, v{g+2*k+1}, v{u+2*k}, 0")
            out.append(f"v_dot2_f32_bf16 v{u+2*k+1}, v{u+2*k+1}, v{u+2*k}, 0")
        for k in range(8):
            out.append(f"v_cvt_pk_bf16_f32 v{o+k}, v{g+2*k+1}, v{u+2*k+1}")
            if k == 3:
                out.append(f"ds_write_b128 v22, {vr(o,4)} offset:{32*HS*tt + 64*ft}")
        out.append(f"ds_write_b128 v22, {vr(o+4,4)} offset:{32*HS*tt + 64*ft + 16}")
        return out

    def flush(tt, regs):
        rd = [f"ds_read_b128 {vr(regs+4*i,4)}, v23 offset:{8*HS*(4*tt+i)}" for i in range(4)]
        st = []
        for i in range(4):
            st.append(f"s_waitcnt lgkmcnt({3-i})\n"
                      f"buffer_store_dwordx4 {vr(regs+4*i,4)}, v14, s[24:27], s42 offen{WT['h']}\n"
                      f"s_add_u32 s42, s42, {8*H_STRIDE}")
        return rd, st

    order = [(0, 0), (1, 0), (0, 1), (1, 1)]
    korder = [LASTN, LASTN + 2, LASTN + 3, LASTN + 1]
    a("s_waitcnt lgkmcnt(10)")
    for pi, (ft, tt) in enumerate(order):
        if pi < 3:
            stamp(a)
        mm = []
        for kn in korder:
            if pi == 0 and kn == LASTN + 1:
                mm.append("s_waitcnt lgkmcnt(0)\n" + mfma(kn, sets[kn], 0, ft, tt))
            else:
                mm.append(mfma(kn, sets[kn], 0, ft, tt))
            mm.append(mfma(kn, sets[kn], 1, ft, tt))
        fill = ["s_nop 8"] + pair_epilogue(*order[pi - 1]) if pi else []
        if pi == 3:
            rd, st = flush(0, ACC(1, 0, 0))
            fill = ["s_waitcnt lgkmcnt(0)"] + rd + fill[:33] + st + fill[33:]
        lead = 2
        per = -(-len(fill) // (len(mm) - lead)) if fill else 0
        for i, m in enumerate(mm):
            a(m)
            if i >= lead - 1 and fill:
                j = i - (lead - 1)
                for op in fill[j * per:(j + 1) * per]:
                    a(op)
    a("s_nop 15")
    stamp(a)
    for op in pair_epilogue(*order[3]):
        a(op)
    a("s_waitcnt lgkmcnt(0)")
    rd, st = flush(1, ACC(1, 0, 0))
    for op in rd + st:
        a(op)
    stamp_end(a, 1, 8)
    a("s_endpgm")


def gen_conv(a):
    stamp_begin(a)
    a(f"s_load_dwordx2 s[4:5], s[0:1], {KA_DSK}")
    a(f"s_load_dwordx2 s[8:9], s[0:1], {KA_WS}")
    a("v_and_b32 v1, 63, v0")
    a("v_lshrrev_b32 v2, 6, v0")
    a(f"s_sub_u32 s28, s2, {N_G1}")
    a("s_lshl_b32 s29, s28, 7")
    a("v_readfirstlane_b32 s30, v2")
    a("s_lshl_b32 s28, s28, 3")
    a("s_add_u32 s28, s28, s30")
    a(f"s_mul_i32 s31, s30, {CV_W}")
    a(f"s_add_u32 s31, s31, {CV_PW}")
    a(f"s_mul_i32 s32, s28, {KT_BYTES}")
    a("s_lshl_b32 s34, s28, 12")
    a("s_lshr_b32 s35, s28, 1")
    a("s_lshl_b32 s35, s35, 2")
    a("v_lshlrev_b32 v3, 4, v1")
    a("v_lshrrev_b32 v4, 3, v1")
    a("v_and_b32 v5, 7, v1")
    a("v_lshrrev_b32 v6, 4, v1")
    a(f"v_mul_u32_u24 v4, {XNT_STRIDE}, v4")
    for q in range(2):
        a(f"v_add_u32 v7, {4*q}, v6")
        a("v_xor_b32 v7, v7, v5")
        a(f"v_lshl_add_u32 v{8+q}, v7, 4, v4")
    a(f"v_add_u32 v9, {8*XNT_STRIDE - 1024}, v9")
    a(f"s_mul_i32 s44, s30, {32*XNT_STRIDE}")
    a("s_add_u32 s44, s44, s29")
    a(f"s_add_u32 s45, s44, {16*XNT_STRIDE - 2048}")
    a("s_lshl_b32 s47, s30, 12")
    a("s_waitcnt lgkmcnt(0)")
    a("s_load_dword s36, s[4:5], s35")
    srd(a, 12, 8, D * KT_BYTES, WS_KR)
    srd(a, 16, 8, XNT_BYTES, WS_XNT)
    srd(a, 20, 8, L * D * 2, WS_AT)
    for q, dst in ((2, CV_T), (0, 1600), (1, CV_O + 1600)):
        a(f"s_add_u32 m0, s31, {dst - q*1024}")
        a("s_nop 0")
        a(f"buffer_load_dwordx4 v3, s[12:15], s32 offen offset:{q*1024} lds")
    a("s_mov_b32 m0, s47")
    a("s_nop 0")
    a("buffer_load_dwordx4 v8, s[16:19], s44 offen lds")
    a("buffer_load_dwordx4 v9, s[16:19], s44 offen offset:1024 lds")
    a("buffer_load_dwordx4 v8, s[16:19], s45 offen offset:2048 lds")
    a("buffer_load_dwordx4 v9, s[16:19], s45 offen offset:3072 lds")
    pf = 1 if CODE_PF else 0
    if CODE_PF:
        a(f"s_sub_u32 s45, s2, {N_G1}")
        a("s_lshr_b32 s45, s45, 3")
        a("s_lshl_b32 s45, s45, 3")
        a("s_add_u32 s45, s45, s30")
        code_prefetch(a, "k3_kernel", "code_end", 45, 3, 252, 48)
    for r in range(4, 8):
        a(f"v_mov_b32 v{r}, 0")
    a(f"v_add_u32 v10, {CV_G}, v3")
    for lo, base in ((48, 0), (51, CV_O)):
        a(f"v_cmp_le_u32 vcc, {lo}, v1")
        a(f"v_add_u32 v11, {(base - 16*lo) & 0xffffffff:#x}, v3")
        a("s_nop 0")
        a("v_cndmask_b32 v10, v10, v11, vcc")
    a("v_add_u32 v10, s31, v10")
    a("v_cmp_le_u32 vcc, 54, v1")
    a(f"v_mov_b32 v15, {CV_ZB}")
    a("s_nop 0")
    a("v_cndmask_b32 v238, v10, v15, vcc")
    a("v_and_b32 v4, 15, v1")
    a("v_lshrrev_b32 v5, 4, v1")
    a("v_lshlrev_b32 v6, 3, v5")
    a("v_sub_u32 v6, v6, v4")
    a("v_lshlrev_b32 v6, 1, v6")
    a("v_add_u32 v6, s31, v6")
    a("v_and_b32 v7, 1, v4")
    a("v_cmp_eq_u32 vcc, 1, v7")
    a(f"v_mov_b32 v8, {CV_O + 2*1040}")
    a(f"v_mov_b32 v9, {2*1039}")
    a("v_cndmask_b32 v8, v8, v9, vcc")
    a("v_add_u32 v8, v6, v8")
    for P in range(2):
        a(f"v_subrev_u32 v{10+P}, {512*(2*P+1)+448}, v8")
    a("v_subrev_u32 v12, 2048, v8")
    a(f"v_mov_b32 v8, {CV_G + 192 + 2*62 - 96}")
    a(f"v_mov_b32 v9, {CV_G + 2*63 - 96}")
    a("v_cndmask_b32 v8, v8, v9, vcc")
    a("v_lshlrev_b32 v9, 3, v5")
    a("v_sub_u32 v6, v6, v9")
    a("v_add_u32 v13, v6, v8")

    def uaddr(dst, gran, tmp):
        a(f"v_lshrrev_b32 v{tmp}, 1, v{gran}")
        a(f"v_and_b32 v{tmp}, 7, v{tmp}")
        a(f"v_xor_b32 v{tmp}, s30, v{tmp}")
        a(f"v_lshlrev_b32 v{tmp}, 4, v{tmp}")
        a(f"v_lshl_add_u32 v{dst}, v{gran}, 7, v{tmp}")

    UB, UC = 16, 24
    a("v_lshl_add_u32 v6, v4, 1, v5")
    for rho in range(4):
        a(f"v_add_u32 v7, {14 - 4*rho}, v6")
        uaddr(UB + rho, 7, 8)
    for rho in range(8):
        a(f"v_cmp_gt_u32 vcc, {4*rho + 2}, v6")
        a(f"v_subrev_u32 v7, {4096 if rho >= 4 else 2048}, v{UB + (rho & 3)}")
        a("s_nop 0")
        a(f"v_cndmask_b32 v{UC+rho}, v7, v15, vcc")
    a("v_lshrrev_b32 v7, 1, v5")
    a("v_lshl_add_u32 v7, v4, 1, v7")
    uaddr(246, 7, 8)
    a("v_and_b32 v7, 1, v5")
    a("v_lshl_add_u32 v246, v7, 3, v246")
    a("v_lshlrev_b32 v247, 5, v4")
    a("v_lshl_add_u32 v247, v5, 3, v247")
    BND = 224
    a("v_lshlrev_b32 v8, 3, v5")
    a("v_mov_b32 v9, 0x7f")
    a("v_add_u32 v7, 5, v4")
    a("v_lshlrev_b32 v240, v7, v9")
    a("v_mov_b32 v9, 0x1ff")
    a("v_lshlrev_b32 v241, v4, v9")
    a("v_lshrrev_b32 v241, 4, v241")
    a("v_mov_b32 v9, 0xf0000000")
    a("v_lshlrev_b32 v242, v4, v9")
    a("s_mov_b32 s40, 0x3f803f80")
    a("s_mov_b32 s41, 0xffff")
    for b in range(3):
        a(f"v_lshrrev_b32 v{240+b}, v8, v{240+b}")
    for b in range(3):
        for k in range(4):
            a(f"v_bfe_i32 v7, v{240+b}, {2*k}, 1")
            a(f"v_bfe_i32 v9, v{240+b}, {2*k+1}, 1")
            a("v_bfi_b32 v7, s41, v7, v9")
            a(f"v_and_b32 v{BND+4*b+k}, s40, v7")
    a(f"s_add_u32 s38, s31, {CV_T}")
    a("v_lshlrev_b32 v7, 2, v1")
    a("v_sub_u32 v249, s38, v7")
    a("v_lshlrev_b32 v7, 3, v1")
    a("v_min_u32 v7, 248, v7")
    a("v_sub_u32 v250, s38, v7")
    a("v_lshlrev_b32 v7, 2, v1")
    a("v_add_u32 v243, s38, v7")
    a("v_add_u32 v248, s31, v3")
    a("v_cmp_eq_u32 s[52:53], 63, v1")
    a("v_lshlrev_b32 v7, 1, v1")
    a(f"s_add_u32 s39, s31, {CV_G + 126}")
    a("v_sub_u32 v251, s39, v7")
    a("v_add_u32 v245, 190, v251")
    a("v_mov_b32 v7, s38")
    a("v_cndmask_b32 v245, v245, v7, s[52:53]")
    a("s_mov_b32 s42, 0x03020302")
    a("s_mov_b32 s43, 0x01000100")

    ACC = 32
    SET = [64, 112]
    A32 = 216
    WS9, WS7 = 160, 176
    FB = 192
    UREG = 160

    def loads(rho):
        s = SET[rho & 1]
        out = []
        for m in range(8):
            if m == 0:
                out.append(f"ds_read_b128 {vr(s+16,4)}, v{UC+rho}")
            else:
                o = 4096 * (m - 1) + (2048 if rho < 4 else 0)
                out.append(f"ds_read_b128 {vr(s+16+4*m,4)}, v{UB+(rho&3)} offset:{o}")
            if m < 4:
                o = (64 * (7 - rho) + (0 if m & 1 else 512)) // 4
                out.append(f"ds_read2_b32 {vr(s+4*m,2)}, v{10+(m>>1)} offset0:{o} offset1:{o+1}")
                out.append(f"ds_read2_b32 {vr(s+4*m+2,2)}, v{10+(m>>1)} offset0:{o+2} offset1:{o+3}")
        if rho == 0:
            out.append(f"ds_read2_b32 {vr(A32,2)}, v12 offset0:0 offset1:1")
            out.append(f"ds_read2_b32 {vr(A32+2,2)}, v12 offset0:2 offset1:3")
        return out

    def mfma(rho, i, m):
        s = SET[rho & 1]
        c = vr(ACC + 4 * (i + m), 4)
        fa = A32 if i == 4 else s + 4 * i
        return (f"v_mfma_f32_16x16x32_bf16 {c}, {vr(fa,4)}, {vr(s+16+4*m,4)}, "
                f"{'0' if rho == 0 and i == 0 else c}")

    def mfmas(rho):
        out = [mfma(rho, i, m) for i in range(5 if rho == 0 else 4) for m in range(8 - i)]
        s = SET[rho & 1]
        if rho == 0:
            for t in range(4):
                out.append(f"v_mfma_f32_16x16x32_bf16 {vr(WS7+4*t,4)}, {vr(s+16+4*t,4)}, {vr(BND,4)}, 0")
                out.append(f"v_mfma_f32_16x16x32_bf16 {vr(WS9+4*t,4)}, {vr(s+16+4*t,4)}, {vr(BND+4,4)}, 0")
        if rho == 1:
            for t in range(4):
                c = vr(WS9 + 4 * t, 4)
                out.insert(2 * t, f"v_mfma_f32_16x16x32_bf16 {c}, {vr(s+16+4*t,4)}, {vr(BND+8,4)}, {c}")
        return out

    def window_pack():
        out = []
        for base in (WS9, WS7):
            for t in range(4):
                out.append(f"v_cvt_pk_bf16_f32 v{base+2*t}, v{base+4*t}, v{base+4*t+1}")
                out.append(f"v_cvt_pk_bf16_f32 v{base+2*t+1}, v{base+4*t+2}, v{base+4*t+3}")
        return out

    def far_loads(par):
        out = []
        for dl in range(4):
            o = (96 - 32 * dl + 384 * par) // 4
            out.append(f"ds_read2_b32 {vr(FB+4*dl,2)}, v13 offset0:{o} offset1:{o+1}")
            out.append(f"ds_read2_b32 {vr(FB+4*dl+2,2)}, v13 offset0:{o+8} offset1:{o+9}")
        return out

    def far_mfmas(par):
        out = []
        for tp in range(4):
            for kb in range(2 if tp >= 2 else 1):
                c = vr(ACC + 4 * (4 + tp), 4)
                out.append(f"v_mfma_f32_16x16x32_bf16 {c}, {vr((WS9, WS7)[par]+4*kb,4)}, "
                           f"{vr(FB+4*(tp-2*kb),4)}, {c}")
        return out

    def tile_epilogue(t):
        y = ACC + 4 * t
        u = UREG + 2 * t
        w = 2 if t & 1 else 208
        return [f"v_lshlrev_b32 v{w}, 16, v{u}",
                f"v_and_b32 v{w+1}, 0xffff0000, v{u}",
                f"v_lshlrev_b32 v{w+2}, 16, v{u+1}",
                f"v_and_b32 v{w+3}, 0xffff0000, v{u+1}",
                f"v_pk_mul_f32 {vr(w,2)}, {vr(w,2)}, s[36:37]",
                f"v_pk_mul_f32 {vr(w+2,2)}, {vr(w+2,2)}, s[36:37]",
                f"v_cvt_pk_bf16_f32 v{u}, v{w}, v{w+1}",
                f"v_cvt_pk_bf16_f32 v{u+1}, v{w+2}, v{w+3}",
                f"v_cvt_pk_bf16_f32 v{w+5}, v{y}, v{y+1}",
                f"v_cvt_pk_bf16_f32 v{w+7}, v{y+2}, v{y+3}",
                f"v_lshlrev_b32 v{w}, 16, v{u}",
                f"v_and_b32 v{w+1}, 0xffff0000, v{u}",
                f"v_lshlrev_b32 v{w+2}, 16, v{u+1}",
                f"v_and_b32 v{w+3}, 0xffff0000, v{u+1}",
                f"v_lshlrev_b32 v{w+4}, 16, v{w+5}",
                f"v_and_b32 v{w+5}, 0xffff0000, v{w+5}",
                f"v_lshlrev_b32 v{w+6}, 16, v{w+7}",
                f"v_and_b32 v{w+7}, 0xffff0000, v{w+7}",
                f"v_pk_add_f32 {vr(w,2)}, {vr(w,2)}, {vr(w+4,2)}",
                f"v_pk_add_f32 {vr(w+2,2)}, {vr(w+2,2)}, {vr(w+6,2)}",
                f"v_cvt_pk_bf16_f32 v{u}, v{w}, v{w+1}",
                f"v_cvt_pk_bf16_f32 v{u+1}, v{w+2}, v{w+3}",
                f"buffer_store_dwordx2 {vr(u,2)}, v247, s[20:23], s34 offen offset:{512*t}" + WT["at"]]

    def spread(mm, fill):
        per = -(-len(fill) // len(mm)) if fill else 0
        for i, m in enumerate(mm):
            a(m)
            for op in fill[i * per:(i + 1) * per]:
                a(op)

    stamp(a)
    a(f"s_waitcnt vmcnt({4 + pf}) lgkmcnt(0)")
    a("ds_read_b32 v180, v249 offset:508")
    a("ds_read_u16 v181, v249 offset:512")
    a("ds_read_b64 v[182:183], v250 offset:248")
    a("ds_read_u16 v184, v250 offset:256")
    a("ds_read_u16 v185, v243 offset:514")
    a("ds_read_u16 v186, v243 offset:516")
    a("v_mov_b32 v4, 0")
    a("v_mov_b32 v5, 0")
    a("v_mov_b32 v6, 0")
    a("v_mov_b32 v7, 0")
    a("ds_write_b128 v238, v[4:7]")
    a("s_and_b32 s44, s28, 1")
    a("s_lshl_b32 s45, s36, 16")
    a("s_and_b32 s36, s36, 0xffff0000")
    a("s_cmp_eq_u32 s44, 0")
    a("s_cselect_b32 s36, s45, s36")
    a("s_mov_b32 s37, s36")
    a("s_waitcnt lgkmcnt(5)")
    a("v_lshl_or_b32 v188, v181, 16, v181")
    a("v_perm_b32 v189, v180, v180, s42")
    a("v_alignbit_b32 v190, v180, v180, 16")
    a("v_perm_b32 v191, v180, v180, s43")
    a("v_mov_b32 v192, v188")
    a("v_bfi_b32 v193, s41, v181, v180")
    a("v_mov_b32 v194, v189")
    a("v_mov_b32 v195, v191")
    a("ds_write_b128 v248, v[188:191] offset:64")
    a(f"ds_write_b128 v248, v[192:195] offset:{CV_O + 64}")
    a("v_lshlrev_b32 v5, 16, v181")
    a("v_mov_b32 v6, v188")
    a("v_mov_b32 v7, v188")
    a("v_mov_b32 v8, 0")
    a("v_mov_b32 v9, 0")
    a("v_mov_b32 v196, 0")
    a("v_mov_b32 v197, 0")
    a("v_mov_b32 v198, v188")
    a("v_mov_b32 v199, v188")
    a("s_mov_b64 s[54:55], exec")
    a("s_mov_b64 exec, 1")
    a("ds_write_b128 v248, v[4:7] offset:48")
    a(f"ds_write_b128 v248, v[196:199] offset:{CV_O + 48}")
    a("s_mov_b64 exec, s[54:55]")
    a("s_waitcnt lgkmcnt(7)")
    a("v_bfi_b32 v200, s41, v184, v183")
    a("v_perm_b32 v201, v183, v183, s43")
    a("v_bfi_b32 v202, s41, v183, v182")
    a("v_perm_b32 v203, v182, v182, s43")
    a("v_lshl_or_b32 v204, v184, 16, v184")
    a("v_alignbit_b32 v205, v183, v183, 16")
    a("v_mov_b32 v206, v201")
    a("v_alignbit_b32 v207, v182, v182, 16")
    a("s_mov_b32 exec_hi, 0")
    a(f"ds_write_b128 v248, v[200:203] offset:{68*16}")
    a(f"ds_write_b128 v248, v[204:207] offset:{CV_O + 68*16}")
    a("s_mov_b64 exec, s[54:55]")
    a("s_waitcnt lgkmcnt(7)")
    a("ds_write_b16 v251, v186")
    a("ds_write_b16 v245, v186")
    a("ds_write_b16 v251, v185 offset:384")
    a("ds_write_b16 v245, v185 offset:384")
    a(f"s_waitcnt vmcnt({pf}) lgkmcnt(0)")
    a("s_barrier")
    stamp(a)
    for op in loads(0):
        a(op)
    for rho in range(7):
        a("s_waitcnt lgkmcnt(0)")
        fill = loads(rho + 1)
        mm = mfmas(rho)
        if rho == 2:
            fill = window_pack() + fill + far_loads(0)
        elif rho == 3:
            mm = far_mfmas(0) + mm
            fill = fill + far_loads(1)
        elif rho == 4:
            mm = far_mfmas(1) + mm
        elif rho == 6:
            fill = fill + [f"ds_read_b64 {vr(UREG+2*t,2)}, v246 offset:{4096*t}" for t in range(8)]
        spread(mm, fill)
    a("s_waitcnt lgkmcnt(0)")
    seq = {t: [mfma(7, i, t - i) for i in range(min(t, 3) + 1)] for t in range(8)}
    for op in seq[0] + seq[1] + seq[2] + seq[3]:
        a(op)
    spread(seq[4] + seq[5], tile_epilogue(0) + tile_epilogue(1))
    spread(seq[6] + seq[7], tile_epilogue(2) + tile_epilogue(3))
    stamp(a)
    for op in interleave(tile_epilogue(4), tile_epilogue(5)) + interleave(tile_epilogue(6), tile_epilogue(7)):
        a(op)
    stamp_end(a, 1, 8)
    a("s_endpgm")


def gen_relayout(a):
    a(f"s_load_dwordx2 s[4:5], s[0:1], {KA_WD}")
    a(f"s_load_dwordx2 s[8:9], s[0:1], {KA_WS}")
    a("v_and_b32 v1, 63, v0")
    a("v_lshrrev_b32 v2, 6, v0")
    a(f"s_sub_u32 s28, s2, {N_G1 + N_CV}")
    a("s_mul_i32 s28, s28, 88")
    a("v_readfirstlane_b32 s30, v2")
    a("v_lshlrev_b32 v3, 4, v1")
    a("s_add_u32 s28, s28, s30")
    a("s_lshr_b32 s31, s28, 1")
    a("s_and_b32 s31, s31, 1")
    a("s_lshl_b32 s31, s31, 2")
    a("v_and_b32 v4, 7, v1")
    a("v_xor_b32 v4, s31, v4")
    a("v_lshrrev_b32 v5, 3, v1")
    a(f"s_mov_b32 s32, {WDT_TILE}")
    a("v_mul_lo_u32 v5, v5, s32")
    a("v_lshl_add_u32 v4, v4, 4, v5")
    a("s_lshl_b32 s33, s28, 10")
    a("s_lshl_b32 s34, s28, 7")
    a("s_waitcnt lgkmcnt(0)")
    srd(a, 12, 4, W_BYTES)
    srd(a, 16, 8, 8 * WDT_TILE, WS_WDT)
    for i in range(11):
        a(f"buffer_load_dwordx4 {vr(8+4*i,4)}, v3, s[12:15], s33 offen")
        a("s_add_u32 s33, s33, 8192")
    for i in range(11):
        a(f"s_waitcnt vmcnt(10)")
        a(f"buffer_store_dwordx4 {vr(8+4*i,4)}, v4, s[16:19], s34 offen offset:{(i%4)*1024}" + WT["wdt"])
        if i % 4 == 3:
            a("s_add_u32 s34, s34, 4096")
    a("s_endpgm")


def gen_k2(a):
    a.raw(".p2align 8")
    a.label("k2_kernel")
    a(f"s_cmp_ge_u32 s2, {N_G1 + N_CV + N_RL}")
    a("s_cbranch_scc1 k2_exit")
    a(f"s_cmp_ge_u32 s2, {N_G1 + N_CV}")
    a("s_cbranch_scc1 k2_relayout")
    a(f"s_cmp_ge_u32 s2, {N_G1}")
    a("s_cbranch_scc1 k2_conv")
    gen_gemm1(a)
    a.label("k2_conv")
    gen_conv(a)
    a.label("k2_relayout")
    gen_relayout(a)
    a.label("k2_exit")
    a("s_endpgm")


N_G2 = 256
G2_NS = 8
G2_STAGE = 16384
G2_AT = G2_NS * G2_STAGE
G2_OUT = G2_AT + 8192
K3_LDS = G2_OUT
OUT_STAGE = False
G2_NST = FP // 64
G2_LEAD = 3


def gen_k3(a):
    a.raw(".p2align 8")
    a.label("k3_kernel")
    a(f"s_cmp_ge_u32 s2, {N_G2}")
    a("s_cbranch_scc1 k3_exit")
    stamp_begin(a)
    a(f"s_load_dwordx2 s[4:5], s[0:1], {KA_U}")
    a(f"s_load_dwordx4 s[8:11], s[0:1], {KA_WD}")
    a(f"s_load_dwordx2 s[6:7], s[0:1], {KA_WS}")
    a("v_and_b32 v1, 63, v0")
    a("v_lshrrev_b32 v2, 6, v0")
    if G2_MAP == 0:
        a("s_and_b32 s32, s2, 7")
        a("s_lshr_b32 s33, s2, 3")
        a("s_lshl_b32 s32, s32, 8")
        a("s_and_b32 s35, s33, 3")
        a("s_lshl_b32 s35, s35, 6")
        a("s_add_u32 s32, s32, s35")
        a("s_lshr_b32 s33, s33, 2")
        a("s_lshl_b32 s33, s33, 6")
    else:
        a("s_and_b32 s32, s2, 6")
        a("s_lshr_b32 s33, s2, 3")
        a("s_lshl_b32 s32, s32, 8")
        a("s_and_b32 s35, s33, 7")
        a("s_lshl_b32 s35, s35, 6")
        a("s_add_u32 s32, s32, s35")
        a("s_lshr_b32 s33, s33, 3")
        a("s_and_b32 s35, s2, 1")
        a("s_lshl_b32 s35, s35, 2")
        a("s_add_u32 s33, s33, s35")
        a("s_lshl_b32 s33, s33, 6")
    a("v_readfirstlane_b32 s34, v2")
    a("s_cmp_lt_u32 s34, 4")
    a("s_cbranch_scc1 k3_compute")
    a("s_sub_u32 s34, s34, 4")
    a("v_lshrrev_b32 v3, 3, v1")
    a("v_and_b32 v4, 7, v1")
    a("v_lshrrev_b32 v5, 4, v1")
    a(f"v_mul_u32_u24 v7, {H_STRIDE}, v3")
    a("s_lshl_b32 s36, s34, 2")
    a("v_add_u32 v6, s36, v5")
    a("v_and_b32 v6, 7, v6")
    a("v_xor_b32 v6, v6, v4")
    a("v_lshl_add_u32 v8, v6, 4, v7")
    a("v_and_b32 v6, 1, v5")
    a("v_lshlrev_b32 v6, 2, v6")
    a("v_xor_b32 v6, v6, v4")
    a("v_lshlrev_b32 v6, 4, v6")
    a("v_lshlrev_b32 v10, 4, v1")
    a("v_lshl_add_u32 v12, v3, 12, v6")
    a("s_lshl_b32 s36, s34, 3")
    a("s_add_u32 s37, s36, s32")
    a(f"s_mul_i32 s37, s37, {H_STRIDE}")
    a(f"s_mul_i32 s38, s33, {WDT_TILE // 64}")
    a("s_lshl_b32 s39, s34, 10")
    a("s_add_u32 s38, s38, s39")
    a("s_add_u32 s39, s36, s33")
    a("s_lshl_b32 s39, s39, 12")
    a("s_lshl_b32 s40, s32, 1")
    a("s_add_u32 s39, s39, s40")
    a("s_lshl_b32 s40, s34, 10")
    a("s_waitcnt lgkmcnt(0)")
    srd(a, 16, 6, 8 * WDT_TILE, WS_WDT)
    srd(a, 12, 6, H_BYTES, WS_H)
    srd(a, 20, 6, L * D * 2, WS_AT)

    def dma(stage):
        b = (stage % G2_NS) * G2_STAGE
        a(f"s_add_u32 m0, s40, {b+8192}")
        a("s_nop 0")
        a("buffer_load_dwordx4 v10, s[16:19], s38 offen lds")
        a(f"s_add_u32 m0, s40, {b}")
        a("s_add_u32 s38, s38, 8192")
        a("buffer_load_dwordx4 v8, s[12:15], s37 offen lds")
        a("s_add_u32 s37, s37, 128")

    AT_AFTER = 3
    issued = 0
    for st in range(G2_NST):
        want = min(G2_NST - 1, 2 * st + 2, st + G2_LEAD)
        while issued <= want:
            dma(issued)
            if issued == AT_AFTER:
                a(f"s_add_u32 m0, s40, {G2_AT}")
                a("s_nop 0")
                a("buffer_load_dwordx4 v12, s[20:23], s39 offen lds")
            issued += 1
        vm = 2 * (issued - 1 - st) + (1 if st <= AT_AFTER < issued else 0)
        if st in (0, 8, 16):
            stamp(a)
        a(f"s_waitcnt vmcnt({vm})")
        a("s_barrier")
    stamp_end(a, 2, 6)
    a("s_endpgm")
    a.label("k3_compute")
    if PRIO:
        a(f"s_setprio {PRIO}")
    _stamp_n[0] = 1 if PROF else 0
    a("s_and_b32 s41, s34, 1")
    a("s_lshr_b32 s42, s34, 1")
    a("v_and_b32 v3, 31, v1")
    a("v_lshrrev_b32 v4, 5, v1")
    a("s_lshl_b32 s43, s41, 5")
    a("s_add_u32 s43, s43, s32")
    a("v_add_u32 v14, s43, v3")
    a("v_lshlrev_b32 v14, 10, v14")
    a("v_lshl_add_u32 v14, v4, 5, v14")
    a("s_lshl_b32 s44, s42, 5")
    a("s_add_u32 s44, s44, s33")
    a("s_lshl_b32 s44, s44, 1")
    a("v_lshrrev_b32 v5, 1, v3")
    a("v_and_b32 v5, 7, v5")
    a("v_xor_b32 v5, v5, v4")
    a("v_lshlrev_b32 v6, 7, v3")
    a("s_lshl_b32 s45, s41, 12")
    a("v_add_u32 v6, s45, v6")
    for ks in range(4):
        a(f"v_xor_b32 v7, {2*ks}, v5")
        a(f"v_lshl_add_u32 v{16+ks}, v7, 4, v6")
    a("v_and_b32 v5, 15, v1")
    a("v_lshrrev_b32 v6, 2, v5")
    a("v_and_b32 v5, 3, v5")
    a("v_lshrrev_b32 v7, 4, v1")
    a("v_and_b32 v7, 1, v7")
    a("v_lshlrev_b32 v21, 3, v5")
    a("v_lshl_add_u32 v21, v7, 5, v21")
    a("v_lshrrev_b32 v22, 1, v6")
    a("v_xor_b32 v23, s41, v22")
    a("v_lshl_add_u32 v21, v23, 6, v21")
    a("v_lshl_add_u32 v23, v4, 4, v6")
    a("v_lshl_add_u32 v21, v23, 7, v21")
    a("s_lshl_b32 s45, s42, 12")
    a(f"s_add_u32 s45, s45, {G2_AT}")
    a("v_add_u32 v21, s45, v21")
    a("v_and_b32 v15, 1, v5")
    a("v_lshlrev_b32 v15, 5, v15")
    a("v_lshl_add_u32 v15, v7, 4, v15")
    a("v_lshrrev_b32 v5, 1, v5")
    a("v_lshl_add_u32 v15, v5, 3, v15")
    a("v_xor_b32 v22, s42, v22")
    a("v_lshl_add_u32 v15, v22, 6, v15")
    a("v_lshl_add_u32 v6, v4, 3, v6")
    a("v_lshl_add_u32 v15, v6, 7, v15")
    a("v_add_u32 v20, 8192, v15")
    if OUT_STAGE:
        a("s_lshl_b32 s45, s41, 5")
        a("v_add_u32 v8, s45, v3")
        a("v_mul_u32_u24 v8, 144, v8")
        a("v_lshl_add_u32 v8, v4, 5, v8")
        a("s_lshl_b32 s45, s42, 6")
        a(f"s_add_u32 s45, s45, {G2_OUT}")
        a("v_add_u32 v8, s45, v8")
        a("v_lshrrev_b32 v10, 3, v1")
        a("v_and_b32 v11, 7, v1")
        a("v_mul_u32_u24 v9, 144, v10")
        a("v_lshl_add_u32 v9, v11, 4, v9")
        a(f"s_mul_i32 s45, s34, {16*144}")
        a(f"s_add_u32 s45, s45, {G2_OUT}")
        a("v_add_u32 v9, s45, v9")
        a("v_lshlrev_b32 v10, 10, v10")
        a("v_lshl_add_u32 v10, v11, 4, v10")
        a("s_lshl_b32 s46, s34, 4")
        a("s_add_u32 s46, s46, s32")
        a("s_lshl_b32 s46, s46, 10")
        a("s_lshl_b32 s47, s33, 1")
        a("s_add_u32 s46, s46, s47")
        a("s_add_u32 s47, s46, 8192")
    a("s_waitcnt lgkmcnt(0)")
    srd(a, 24, 4, L * D * 2)
    srd(a, 28, 10, L * D * 2)
    a("buffer_load_dwordx4 v[24:27], v14, s[24:27], s44 offen")
    a("buffer_load_dwordx4 v[28:31], v14, s[24:27], s44 offen offset:16")

    ACC = 32
    FS = [48, 80]
    XA = 112
    ATR = 128
    AT_ST = 10

    def reads(st):
        f = FS[st & 1]
        o = (st % 4) * G2_STAGE
        out = []
        for ks in range(4):
            out.append(f"ds_read_b64_tr_b16 {vr(f+8*ks,2)}, v20 offset:{o+ks*2048}")
            out.append(f"ds_read_b64_tr_b16 {vr(f+8*ks+2,2)}, v20 offset:{o+ks*2048+512}")
            out.append(f"ds_read_b128 {vr(f+8*ks+4,4)}, v{16+ks} offset:{o}")
        return out

    def mfmas(st):
        f = FS[st & 1]
        c = vr(ACC, 16)
        return [f"v_mfma_f32_32x32x16_bf16 {c}, {vr(f+8*ks,4)}, {vr(f+8*ks+4,4)}, "
                f"{'0' if st == 0 and ks == 0 else c}" for ks in range(4)]

    def xa_ops(k):
        x, t = XA + 2 * k, 4
        return [f"v_lshlrev_b32 v{x}, 16, v{24+k}",
                f"v_and_b32 v{x+1}, 0xffff0000, v{24+k}",
                f"v_lshlrev_b32 v{t}, 16, v{ATR+k}",
                f"v_and_b32 v{t+1}, 0xffff0000, v{ATR+k}",
                f"v_pk_add_f32 {vr(x,2)}, {vr(x,2)}, {vr(t,2)}",
                f"v_cvt_pk_bf16_f32 v{x+1}, v{x}, v{x+1}",
                f"v_lshlrev_b32 v{x}, 16, v{x+1}",
                f"v_and_b32 v{x+1}, 0xffff0000, v{x+1}"]

    for st in range(-1, G2_NST):
        nx = st + 1
        body = []
        if nx < G2_NST:
            if nx in (0, 8, 16):
                stamp(a)
            a("s_waitcnt lgkmcnt(0)" if nx != AT_ST + 1 else "s_waitcnt vmcnt(0) lgkmcnt(0)")
            a("s_barrier")
            if nx and nx % 4 == 0:
                delta = 65536 if (nx % G2_NS) == 4 else -65536
                for r in (16, 17, 18, 19, 20):
                    a(f"v_add_u32 v{r}, {delta & 0xffffffff:#x}, v{r}")
            body = reads(nx)
            if nx == AT_ST:
                body += [f"ds_read_b64_tr_b16 {vr(ATR+2*i,2)}, v21 offset:{512*i}" for i in range(4)]
        else:
            a("s_waitcnt lgkmcnt(0)")
        if st >= 0:
            body = interleave(body, mfmas(st), every=3) if body else mfmas(st)
        if AT_ST < nx <= AT_ST + 4:
            k = 2 * (nx - AT_ST - 1)
            body += xa_ops(k) + xa_ops(k + 1)
        for op in body:
            a(op)
    a("s_nop 15")
    stamp(a)
    for k in range(8):
        a(f"v_cvt_pk_bf16_f32 v{48+k}, v{ACC+2*k}, v{ACC+2*k+1}")
    for k in range(8):
        a(f"v_lshlrev_b32 v{ACC+2*k}, 16, v{48+k}")
        a(f"v_and_b32 v{ACC+2*k+1}, 0xffff0000, v{48+k}")
    for k in range(8):
        a(f"v_pk_add_f32 {vr(ACC+2*k,2)}, {vr(ACC+2*k,2)}, {vr(XA+2*k,2)}")
    for k in range(8):
        a(f"v_cvt_pk_bf16_f32 v{56+k}, v{ACC+2*k}, v{ACC+2*k+1}")
        if k == 3:
            a("ds_write_b128 v8, v[56:59]" if OUT_STAGE else
              "buffer_store_dwordx4 v[56:59], v14, s[28:31], s44 offen" + WT["out"])
    if OUT_STAGE:
        a("ds_write_b128 v8, v[60:63] offset:16")
        a("s_waitcnt lgkmcnt(0)")
        a("s_barrier")
        a("ds_read_b128 v[64:67], v9")
        a(f"ds_read_b128 v[68:71], v9 offset:{8*144}")
        a("s_waitcnt lgkmcnt(1)")
        a("buffer_store_dwordx4 v[64:67], v10, s[28:31], s46 offen" + WT["out"])
        a("s_waitcnt lgkmcnt(0)")
        a("buffer_store_dwordx4 v[68:71], v10, s[28:31], s47 offen" + WT["out"])
    else:
        a("buffer_store_dwordx4 v[60:63], v14, s[28:31], s44 offen offset:16" + WT["out"])
    stamp_end(a, 2, 6)
    a.label("k3_exit")
    a("s_endpgm")


def gen_k4(a):
    a.raw(".p2align 8")
    a.label("k4_kernel")
    a("s_cmp_ge_u32 s2, 1")
    a("s_cbranch_scc1 k4_exit")
    a(f"s_load_dwordx4 s[4:7], s[0:1], {KA_DBG}")
    a("s_memrealtime s[20:21]")
    a("s_waitcnt lgkmcnt(0)")
    srd(a, 8, 6, 0x1000000, PROF_BASE)
    srd(a, 12, 4, 256)
    groups = [(0, 0, 256, 0, 4), (0, 0, 256, 4, 8), (1, 0, 176, 0, 4), (1, 176, 240, 0, 8), (2, 0, 256, 0, 4)]
    for gi, (l, lo, hi, w0, w1) in enumerate(groups):
        a("v_mov_b32 v4, -1")
        a("v_mov_b32 v5, 0")
        for base in range(lo, hi, 64):
            n = min(64, hi - base)
            a(f"v_min_u32 v2, {n-1}, v0")
            a(f"v_add_u32 v2, {l*512 + base}, v2")
            a("v_lshlrev_b32 v2, 10, v2")
            for w in range(w0, w1):
                a(f"buffer_load_dwordx2 {vr(8+2*(w-w0),2)}, v2, s[8:11], 0 offen offset:{64*w}")
            a("s_waitcnt vmcnt(0)")
            for w in range(w0, w1):
                a(f"v_min_u32 v4, v4, v{8+2*(w-w0)}")
                a(f"v_max_u32 v5, v5, v{9+2*(w-w0)}")
        a("s_mov_b32 s22, -1")
        a("s_mov_b32 s23, 0")
        for ln in range(64):
            a(f"v_readlane_b32 s24, v4, {ln}")
            a(f"v_readlane_b32 s25, v5, {ln}")
            a("s_nop 1")
            a("s_min_u32 s22, s22, s24")
            a("s_max_u32 s23, s23, s25")
        a(f"s_mov_b32 s{30+2*gi}, s22")
        a(f"s_mov_b32 s{31+2*gi}, s23")
    a("v_mov_b32 v3, 0")
    for i in range(10):
        a(f"s_sub_u32 s24, s{30+i}, s30")
        a("v_mov_b32 v6, s24")
        a(f"buffer_store_dword v6, v3, s[12:15], 0 offen offset:{4*i}")
        a("s_nop 1")
    a("s_sub_u32 s24, s20, s30")
    a("v_mov_b32 v6, s24")
    a("buffer_store_dword v6, v3, s[12:15], 0 offen offset:40")
    if SPIN:
        hi, lo = SPIN
        a("s_max_u32 s31, s31, s33")
        a("s_min_u32 s34, s34, s36")
        a("s_max_u32 s35, s35, s37")
        a(f"s_sub_u32 s24, s{hi}, s{lo}")
        a("s_min_u32 s24, s24, 3000")
        a("s_lshl_b32 s24, s24, 2")
        a("s_memrealtime s[26:27]")
        a("s_waitcnt lgkmcnt(0)")
        a("s_add_u32 s24, s24, s26")
        a.label("k4_spin")
        a("s_memrealtime s[26:27]")
        a("s_waitcnt lgkmcnt(0)")
        a("s_sub_u32 s25, s24, s26")
        a("s_cmp_gt_i32 s25, 0")
        a("s_cbranch_scc1 k4_spin")
    a.label("k4_exit")
    a("s_endpgm")


def descriptor(name, vgpr, sgpr):
    acc = (vgpr + 3) // 4 * 4
    return f""".p2align 6
.amdhsa_kernel {name}
  .amdhsa_next_free_vgpr {vgpr}
  .amdhsa_next_free_sgpr {sgpr}
  .amdhsa_accum_offset {acc}
  .amdhsa_group_segment_fixed_size 0
  .amdhsa_kernarg_size 112
  .amdhsa_user_sgpr_count 2
  .amdhsa_user_sgpr_kernarg_segment_ptr 1
  .amdhsa_system_sgpr_workgroup_id_x 1
.end_amdhsa_kernel
"""


HEADER = """
out = x + (S4D causal conv(xn) + xn*D) + ReGLU-MLP(xn), xn = LayerNorm(x); bf16 rounding points follow the reference.
kernarg: A_u, log_A_real, A_imag, C_real, C_imag, log_dt, D_skip, B_x, W_gate, W_up, W_down, out, dbg, ws
k1: waves 0-3 build the S4D kernel table of 2 channels (exp(a*p) factorised as X[hi] * Y[lo], summed over n by MFMA,
    only the 641 positions a bf16 index can take); waves 4-7 LayerNorm 8 rows -> xn and time-blocked xn^T.
k2: WGs 0-175 gate/up GEMM (256 x 64 tiles, 4 MFMA waves + 4 LDS-DMA waves) -> h; WGs 176-239 causal convolution,
    one channel per wave, Toeplitz fragments by MFMA (taps >= 1029 through exact window sums, K is constant over
    each bf16 rounding group); WGs 240-255 rewrite W_down tile by tile.
k3: down GEMM (64 x 64 tiles, 4 MFMA waves + 8 LDS-DMA waves) and the final sum.
"""


def main(path):
    a = Asm()
    for ln in HEADER.strip("\n").split("\n"):
        a.raw(("; " + ln).rstrip())
    a.raw(f"; @launch kernel=k1_kernel grid=({N_K1},1,1) block=(512,1,1) lds={K1_LDS}")
    a.raw(f"; @launch kernel=k2_kernel grid=({N_G1+N_CV+N_RL},1,1) block=(512,1,1) lds={K2_LDS}")
    a.raw(f"; @launch kernel=k3_kernel grid=({N_G2},1,1) block=(768,1,1) lds={K3_LDS}")
    if K4:
        a.raw("; @launch kernel=k4_kernel grid=(1,1,1) block=(64,1,1) lds=0")
    a.raw('.amdgcn_target "amdgcn-amd-amdhsa--gfx950"')
    a.raw(".text")
    for k in ("k1_kernel", "k2_kernel", "k3_kernel") + (("k4_kernel",) if K4 else ()):
        a.raw(f".globl {k}")
        a.raw(f".type {k},@function")
    gen_k1(a)
    gen_k2(a)
    gen_k3(a)
    a.label("code_end")
    if K4:
        gen_k4(a)
    a.raw('.section .rodata,"a"')
    if K4:
        a.raw(descriptor("k4_kernel", 32, 48))
    sg = 102 if PROF else 0
    a.raw(descriptor("k1_kernel", 164, max(sg, 74)))
    a.raw(descriptor("k2_kernel", 256, max(sg, 56)))
    a.raw(descriptor("k3_kernel", 136, max(sg, 56)))
    open(path, "w").write(a.text())


if __name__ == "__main__":
    for arg in list(sys.argv):
        if arg.startswith("--prio="):
            PRIO = int(arg[7:])
            sys.argv.remove(arg)
        if arg.startswith("--g2map="):
            G2_MAP = int(arg[8:])
            sys.argv.remove(arg)
        if arg.startswith("--lead="):
            G2_LEAD = int(arg[7:])
            sys.argv.remove(arg)
        if arg == "--nooutstage":
            OUT_STAGE = False
            sys.argv.remove(arg)
        if arg.startswith("--pf="):
            PF_MODE = arg[5:]
            sys.argv.remove(arg)
        if arg.startswith("--spin="):
            SPIN = tuple(int(x) for x in arg[7:].split(","))
            sys.argv.remove(arg)
        if arg.startswith("--wt="):
            flag, names = arg[5:].split(":")
            for nm in names.split(","):
                WT[nm] = (" " + flag.replace("+", " ")).rstrip()
            sys.argv.remove(arg)
        if arg.startswith("--epi="):
            EPI = arg[6:]
            sys.argv.remove(arg)
    if "--nocodepf" in sys.argv:
        sys.argv.remove("--nocodepf")
        CODE_PF = False
    if "--notouch" in sys.argv:
        sys.argv.remove("--notouch")
        TOUCH = False
    if "--k4" in sys.argv:
        sys.argv.remove("--k4")
        K4 = PROF = True
    if "--prof" in sys.argv:
        sys.argv.remove("--prof")
        PROF = True
    main(sys.argv[1] if len(sys.argv) > 1 else f"cdna_kernels/{NAME}.s")
```

```python
import struct
import sys

NAME = "parallel_sum__ssm_conv_s4d__glu_gated_reglu__prompt"

L, D, N, F = 2048, 512, 128, 1376
FP = 1408
WS_XN = 0x000000
WS_XNT = 0x240000
WS_KR = 0x480000
WS_H = 0x880000
WS_AT = 0xE80000
XN_STRIDE = 1024 + 128
XN_BYTES = L * XN_STRIDE
H_STRIDE = 2 * FP + 128
H_BYTES = L * H_STRIDE
XNT_STRIDE = 8192 + 128
XNT_BYTES = (L // 8) * XNT_STRIDE
W_BYTES = D * F * 2
WS_WDT = WS_AT + L * D * 2
WDT_TILE = FP * 128
WS_END = WS_WDT + 8 * WDT_TILE
TOUCH = False
CODE_PF = True
PF_MODE = "touch"
PRIO = 0
G2_MAP = 0
G1_MAP = True
EPI = "dot"
WT = dict(xn=" sc1", xnt=" sc1", k="", at=" sc1", wdt=" sc1", h=" sc1", out="")

KA_U, KA_LAR, KA_AI, KA_CR, KA_CI, KA_LDT, KA_DSK, KA_BX, KA_WG, KA_WU, KA_WD, KA_OUT, KA_DBG, KA_WS = \
    [8 * i for i in range(14)]


def f32(x):
    return "0x%08x" % struct.unpack("<I", struct.pack("<f", x))[0]


class Asm:
    def __init__(self):
        self.lines = []

    def __call__(self, s):
        for ln in s.strip("\n").split("\n"):
            self.lines.append("  " + ln.strip())

    def label(self, s):
        self.lines.append(s + ":")

    def raw(self, s):
        self.lines.append(s)

    def text(self):
        return "\n".join(self.lines) + "\n"


PROF = False
K4 = False
SPIN = None
PROF_BASE = 0x1400000
_stamp_n = [0]


def stamp_begin(a):
    _stamp_n[0] = 0
    if PROF:
        a("s_memrealtime s[80:81]")
        a("s_memtime s[82:83]")
        _stamp_n[0] = 1


def stamp(a):
    if PROF:
        k = _stamp_n[0]
        a(f"s_memtime s[{82+2*k}:{83+2*k}]")
        _stamp_n[0] += 1


def stamp_end(a, launch, ws_lo):
    if not PROF:
        return
    stamp(a)
    n = _stamp_n[0]
    a("s_waitcnt lgkmcnt(0)")
    a("s_memrealtime s[98:99]")
    a(f"s_add_u32 s76, s{ws_lo}, {PROF_BASE}")
    a(f"s_addc_u32 s77, s{ws_lo+1}, 0")
    a("s_mov_b32 s78, 0x1000000")
    a("s_mov_b32 s79, 0x00020000")
    a("v_lshrrev_b32 v2, 6, v0")
    a(f"s_add_u32 s75, s2, {launch*512}")
    a("s_lshl_b32 s75, s75, 10")
    a("v_lshlrev_b32 v2, 6, v2")
    a("v_add_u32 v2, s75, v2")
    a("s_waitcnt lgkmcnt(0)")
    a("v_mov_b32 v4, s80")
    a("v_mov_b32 v5, s98")
    a("buffer_store_dwordx2 v[4:5], v2, s[76:79], 0 offen")
    for k in range(n):
        a(f"v_mov_b32 v6, s{82+2*k}")
        a(f"buffer_store_dword v6, v2, s[76:79], 0 offen offset:{8+4*k}")
        a("s_nop 1")


def vr(b, n):
    return "v[%d:%d]" % (b, b + n - 1)


def sr(b, n):
    return "s[%d:%d]" % (b, b + n - 1)


def srd(a, dst, base, nbytes, add=0):
    if add:
        a(f"s_add_u32 s{dst}, s{base}, {add}")
        a(f"s_addc_u32 s{dst+1}, s{base+1}, 0")
    else:
        a(f"s_mov_b32 s{dst}, s{base}")
        a(f"s_mov_b32 s{dst+1}, s{base+1}")
    a(f"s_mov_b32 s{dst+2}, {nbytes}")
    a(f"s_mov_b32 s{dst+3}, 0x00020000")


_pc_n = [0]


def code_prefetch(a, lo, hi, slice_sgpr, lane16, dst, sbase):
    _pc_n[0] += 1
    lab = f"pc_ref{_pc_n[0]}"
    a(f"s_getpc_b64 {sr(sbase,2)}")
    a.label(lab)
    a(f"s_add_u32 s{sbase}, s{sbase}, ({lo} - {lab}) & 0xffffffff")
    a(f"s_addc_u32 s{sbase+1}, s{sbase+1}, (({lo} - {lab}) >> 32) & 0xffffffff")
    a(f"s_mov_b32 s{sbase+2}, {hi} - {lo}")
    a(f"s_mov_b32 s{sbase+3}, 0x00020000")
    a(f"s_lshl_b32 s{slice_sgpr}, s{slice_sgpr}, 10")
    a(f"buffer_load_dwordx4 {vr(dst,4)}, v{lane16}, {sr(sbase,4)}, s{slice_sgpr} offen")


def interleave(main, fill, every=1, start=0):
    out = []
    fill = list(fill)
    for i, m in enumerate(main):
        out.append(m)
        if i >= start and (i - start) % every == every - 1 and fill:
            out.append(fill.pop(0))
    out.extend(fill)
    return out


N_K1 = 256
LN_STRIDE = 1088
KG_ROW = 544
KG_XA, KG_YB, KG_T = 0, 24 * KG_ROW, 56 * KG_ROW
KG_CH = KG_T + 3072
LN_LDS = 2 * KG_CH
K1_LDS = LN_LDS + 8 * LN_STRIDE
LOG2E = 1.4426950408889634
L_HI = 47274.0 / 32768.0
C_LO = (LOG2E - L_HI) * 0.6931471805599453
T_BIAS = 0x3F7F
KT_BYTES = 3072
KT_O, KT_TAB = 1024, 2048
PF_W = 6


def dpp_reduce(a, regs):
    steps = ["row_shr:1 row_mask:0xf bank_mask:0xf bound_ctrl:0",
             "row_shr:2 row_mask:0xf bank_mask:0xf bound_ctrl:0",
             "row_shr:4 row_mask:0xf bank_mask:0xf bound_ctrl:0",
             "row_shr:8 row_mask:0xf bank_mask:0xf bound_ctrl:0",
             "row_bcast:15 row_mask:0xa bank_mask:0xf",
             "row_bcast:31 row_mask:0xc bank_mask:0xf"]
    a("s_nop 1")
    for st in steps:
        for r in regs:
            a(f"v_add_f32_dpp v{r}, v{r}, v{r} {st}")
    a("s_nop 1")


def bf16_round(a, dst, src):
    a(f"v_cvt_pk_bf16_f32 v{dst}, v{src}, v{src}")
    a(f"v_lshlrev_b32 v{dst}, 16, v{dst}")


def gen_ln(a):
    stamp_begin(a)
    if CODE_PF:
        a("v_lshlrev_b32 v3, 4, v1")
        a("s_lshr_b32 s45, s2, 3")
        a("s_lshl_b32 s45, s45, 1")
        a("s_sub_u32 s46, s44, 6")
        a("s_add_u32 s45, s45, s46")
        a("s_cmp_lt_u32 s44, 6")
        a("s_cbranch_scc1 k1_no_pf")
        code_prefetch(a, "k1_kernel", "code_end", 45, 3, 76, 56)
        a("s_branch k1_pf_done")
        a.label("k1_no_pf")
        a("s_nop 0")
        a.label("k1_pf_done")
    a(f"s_load_dwordx2 s[4:5], s[0:1], {KA_U}")
    a(f"s_load_dwordx2 s[6:7], s[0:1], {KA_WS}")
    a(f"s_load_dwordx4 s[48:51], s[0:1], {KA_WG}")
    a(f"s_load_dwordx4 s[68:71], s[0:1], {KA_WD}")
    a(f"s_load_dwordx2 s[54:55], s[0:1], {KA_DSK}")
    a("s_sub_u32 s22, s44, 4")
    a("s_and_b32 s20, s2, 7")
    a("s_lshr_b32 s21, s2, 3")
    a("s_lshl_b32 s20, s20, 8")
    a("s_lshl_b32 s23, s21, 3")
    a("s_add_u32 s20, s20, s23")
    a("s_lshl_b32 s23, s22, 1")
    a("s_add_u32 s23, s23, s20")
    a("s_lshl_b32 s24, s23, 10")
    a(f"s_mul_i32 s53, s23, {XN_STRIDE}")
    a("v_lshlrev_b32 v3, 4, v1")
    a("s_lshl_b32 s52, s2, 2")
    a("s_add_u32 s52, s52, s22")
    a("s_lshl_b32 s52, s52, 11")
    a(f"s_mul_i32 s25, s22, {2*LN_STRIDE}")
    a(f"s_add_u32 s25, s25, {LN_LDS}")
    a("v_add_u32 v4, s25, v3")
    a("v_and_b32 v5, 15, v1")
    a("v_lshrrev_b32 v6, 2, v5")
    a("v_and_b32 v5, 3, v5")
    a("v_lshrrev_b32 v7, 4, v1")
    a(f"v_mul_u32_u24 v6, {LN_STRIDE}, v6")
    a("v_lshlrev_b32 v5, 3, v5")
    a("v_lshl_add_u32 v5, v7, 5, v5")
    a("v_add_u32 v5, v5, v6")
    a("s_lshl_b32 s26, s22, 8")
    a(f"s_add_u32 s26, s26, {LN_LDS}")
    a("v_add_u32 v5, s26, v5")
    a("s_lshl_b32 s27, s22, 7")
    a("v_add_u32 v6, s27, v1")
    a("v_lshlrev_b32 v6, 4, v6")
    a(f"s_mul_i32 s28, s20, {XNT_STRIDE // 8}")
    a("s_waitcnt lgkmcnt(0)")
    srd(a, 8, 4, L * D * 2)
    for r in range(2):
        a(f"buffer_load_dwordx4 {vr(8+4*r,4)}, v3, s[8:11], s24 offen offset:{r*1024}")
    srd(a, 56, 48, W_BYTES)
    srd(a, 60, 50, W_BYTES)
    srd(a, 64, 68, W_BYTES)
    if TOUCH:
        a("s_cmp_ge_u32 s2, 16")
        a("s_cbranch_scc1 k1_no_touch")
        srd(a, 12, 6, WS_END)
        srd(a, 16, 70, L * D * 2)
        a("v_lshlrev_b32 v60, 18, v1")
        a("s_lshl_b32 s45, s22, 16")
        a("buffer_load_dword v61, v60, s[12:15], s45 offen")
        a("v_lshlrev_b32 v60, 15, v1")
        a(f"s_mov_b32 s45, {1 << 24}")
        a("buffer_load_dword v61, v60, s[12:15], s45 offen")
        a("buffer_load_dword v61, v60, s[16:19], 0 offen")
        srd(a, 16, 54, D * 2)
        a("buffer_load_dword v61, v3, s[16:19], 0 offen")
        for i in range(2):
            a(f"buffer_load_dwordx4 v[72:75], v3, s[56:59], s52 offen offset:{i*1024}")
        a("s_branch k1_touched")
        a.label("k1_no_touch")
    if PF_MODE == "full":
        for i in range(2):
            for b in (56, 60, 64):
                a(f"buffer_load_dwordx4 v[72:75], v3, {sr(b,4)}, s52 offen offset:{i*1024}")
    elif PF_MODE == "gu":
        for i in range(2):
            for b in (56, 60):
                a(f"buffer_load_dwordx4 v[72:75], v3, {sr(b,4)}, s52 offen offset:{i*1024}")
    elif PF_MODE == "touch2":
        a("v_and_b32 v62, 15, v1")
        a("v_lshlrev_b32 v62, 7, v62")
        a("v_min_u32 v62, 1404, v62")
        a("s_lshr_b32 s52, s2, 1")
        a("s_lshl_b32 s52, s52, 2")
        a("s_add_u32 s52, s52, s22")
        a(f"s_mul_i32 s52, s52, {2*F}")
        a("s_and_b32 s55, s2, 1")
        a("s_mul_i32 s55, s55, 1408")
        a("s_add_u32 s52, s52, s55")
        for b in (56, 60):
            a(f"buffer_load_dword v72, v62, {sr(b,4)}, s52 offen")
    elif PF_MODE == "touch":
        a("v_and_b32 v62, 15, v1")
        a("v_lshlrev_b32 v62, 7, v62")
        for b in (56, 60):
            a(f"buffer_load_dword v72, v62, {sr(b,4)}, s52 offen")
    if TOUCH:
        a.label("k1_touched")
    srd(a, 12, 6, XN_BYTES, WS_XN)
    srd(a, 16, 6, XNT_BYTES, WS_XNT)
    X = lambda r, e: 32 + 8 * r + e
    stamp(a)
    for r in range(2):
        a(f"s_waitcnt vmcnt({dict(full=6, gu=4, touch=2, touch2=2, none=0)[PF_MODE] + 1 - r})")
        if r == 0:
            stamp(a)
        for k in range(4):
            a(f"v_lshlrev_b32 v{X(r,2*k)}, 16, v{8+4*r+k}")
            a(f"v_and_b32 v{X(r,2*k+1)}, 0xffff0000, v{8+4*r+k}")
        a(f"v_readfirstlane_b32 s{30+2*r}, v{X(r,0)}")
        a(f"v_pk_add_f32 v[48:49], {vr(X(r,0),2)}, {vr(X(r,2),2)}")
        a(f"v_pk_add_f32 v[50:51], {vr(X(r,4),2)}, {vr(X(r,6),2)}")
        a(f"s_mov_b32 s{31+2*r}, s{30+2*r}")
        a("v_pk_add_f32 v[48:49], v[48:49], v[50:51]")
        for k in range(4):
            a(f"v_pk_add_f32 {vr(52+2*k,2)}, {vr(X(r,2*k),2)}, {sr(30+2*r,2)} neg_lo:[0,1] neg_hi:[0,1]")
        a(f"v_add_f32 v{24+2*r}, v48, v49")
        a("v_pk_mul_f32 v[50:51], v[52:53], v[52:53]")
        a("v_pk_mul_f32 v[48:49], v[54:55], v[54:55]")
        a("v_pk_fma_f32 v[50:51], v[56:57], v[56:57], v[50:51]")
        a("v_pk_fma_f32 v[48:49], v[58:59], v[58:59], v[48:49]")
        a("v_pk_add_f32 v[48:49], v[48:49], v[50:51]")
        a(f"v_add_f32 v{25+2*r}, v48, v49")
    dpp_reduce(a, [24, 25, 26, 27])
    for r in range(2):
        a(f"v_mul_f32 v{24+2*r}, {f32(1.0/512)}, v{24+2*r}")
        a(f"v_mul_f32 v{25+2*r}, {f32(1.0/512)}, v{25+2*r}")
    for r in range(2):
        a(f"v_subrev_f32 v{28+r}, s{30+2*r}, v{24+2*r}")
        bf16_round(a, 24 + 2 * r, 24 + 2 * r)
    for r in range(2):
        a(f"v_fma_f32 v{25+2*r}, -v{28+r}, v{28+r}, v{25+2*r}")
        a(f"v_max_f32 v{25+2*r}, 0, v{25+2*r}")
    for r in range(2):
        bf16_round(a, 25 + 2 * r, 25 + 2 * r)
    for r in range(2):
        a(f"v_add_f32 v{25+2*r}, {f32(1e-5)}, v{25+2*r}")
        a(f"v_readlane_b32 s{36+2*r}, v{24+2*r}, 63")
    for r in range(2):
        bf16_round(a, 25 + 2 * r, 25 + 2 * r)
    for r in range(2):
        a(f"v_sqrt_f32 v{25+2*r}, v{25+2*r}")
    for r in range(2):
        a(f"s_mov_b32 s{37+2*r}, s{36+2*r}")
    for r in range(2):
        bf16_round(a, 25 + 2 * r, 25 + 2 * r)
    for r in range(2):
        a(f"v_rcp_f32 v{25+2*r}, v{25+2*r}")
    for r in range(2):
        for k in range(4):
            a(f"v_pk_add_f32 {vr(X(r,2*k),2)}, {vr(X(r,2*k),2)}, {sr(36+2*r,2)} neg_lo:[0,1] neg_hi:[0,1]")
    for r in range(2):
        a(f"v_readlane_b32 s{40+2*r}, v{25+2*r}, 63")
    for r in range(2):
        for k in range(4):
            a(f"v_cvt_pk_bf16_f32 v{8+4*r+k}, v{X(r,2*k)}, v{X(r,2*k+1)}")
    for r in range(2):
        a(f"s_mov_b32 s{41+2*r}, s{40+2*r}")
    for r in range(2):
        for k in range(4):
            a(f"v_lshlrev_b32 v{X(r,2*k)}, 16, v{8+4*r+k}")
            a(f"v_and_b32 v{X(r,2*k+1)}, 0xffff0000, v{8+4*r+k}")
        for k in range(4):
            a(f"v_pk_mul_f32 {vr(X(r,2*k),2)}, {vr(X(r,2*k),2)}, {sr(40+2*r,2)}")
        for k in range(4):
            a(f"v_cvt_pk_bf16_f32 v{16+4*r+k}, v{X(r,2*k)}, v{X(r,2*k+1)}")
        a(f"ds_write_b128 v4, {vr(16+4*r,4)} offset:{r*LN_STRIDE}")
        a(f"buffer_store_dwordx4 {vr(16+4*r,4)}, v3, s[12:15], s53 offen offset:{r*XN_STRIDE}" + WT["xn"])
    a("s_waitcnt lgkmcnt(0)")
    stamp(a)
    a("s_barrier")
    for blk in range(2):
        for tb in range(2):
            a(f"ds_read_b64_tr_b16 {vr(32+4*blk+2*tb,2)}, v5 offset:{blk*128 + tb*4*LN_STRIDE}")
    a("s_waitcnt lgkmcnt(2)")
    a("buffer_store_dwordx4 v[32:35], v6, s[16:19], s28 offen" + WT["xnt"])
    a("s_waitcnt lgkmcnt(0)")
    a("buffer_store_dwordx4 v[36:39], v6, s[16:19], s28 offen offset:1024" + WT["xnt"])
    stamp_end(a, 0, 6)
    a("s_endpgm")


def exp_acc(a, dst, x, t):
    a(f"v_mul_f32 v{dst}, {f32(L_HI)}, v{x}")
    a(f"v_exp_f32 v{dst}, v{dst}")
    a(f"v_mul_f32 v{t}, {f32(C_LO)}, v{x}")
    a(f"v_fma_f32 v{dst}, v{dst}, v{t}, v{dst}")


def cmul(t, z, w):
    return [f"v_pk_mul_f32 {vr(t,2)}, {vr(z,2)}, {vr(w,2)} op_sel:[0,0] op_sel_hi:[1,0]",
            f"v_pk_fma_f32 {vr(t,2)}, {vr(z,2)}, {vr(w,2)}, {vr(t,2)} op_sel:[1,1,0] op_sel_hi:[0,1,1] "
            f"neg_lo:[1,0,0]"]


def gen_kgen(a):
    stamp_begin(a)
    a(f"s_load_dwordx8 s[4:11], s[0:1], {KA_LAR}")
    a(f"s_load_dwordx2 s[12:13], s[0:1], {KA_LDT}")
    a(f"s_load_dwordx2 s[14:15], s[0:1], {KA_WS}")
    a("s_and_b32 s41, s2, 7")
    a("s_lshr_b32 s42, s2, 3")
    a("s_lshr_b32 s43, s42, 2")
    a("s_lshl_b32 s43, s43, 6")
    a("s_lshl_b32 s41, s41, 3")
    a("s_add_u32 s41, s41, s43")
    a("s_and_b32 s42, s42, 3")
    a("s_lshl_b32 s42, s42, 1")
    a("s_add_u32 s41, s41, s42")
    a("s_lshr_b32 s45, s44, 1")
    a("s_and_b32 s46, s44, 1")
    a("s_add_u32 s47, s41, s45")
    a("s_lshl_b32 s48, s46, 6")
    a("v_add_u32 v3, s48, v1")
    a("s_lshl_b32 s49, s47, 8")
    a("v_lshlrev_b32 v4, 1, v3")
    a("s_lshl_b32 s50, s47, 1")
    a("v_mov_b32 v5, s50")
    a("s_waitcnt lgkmcnt(0)")
    srd(a, 16, 4, D * N * 2)
    srd(a, 32, 12, D * 2)
    a("buffer_load_ushort v8, v4, s[16:19], s49 offen")
    a("buffer_load_ushort v12, v5, s[32:35], 0 offen")
    srd(a, 20, 6, D * N * 2)
    a("buffer_load_ushort v9, v4, s[20:23], s49 offen")
    srd(a, 24, 8, D * N * 2)
    a("buffer_load_ushort v10, v4, s[24:27], s49 offen")
    srd(a, 28, 10, D * N * 2)
    a("buffer_load_ushort v11, v4, s[28:31], s49 offen")
    srd(a, 36, 14, D * KT_BYTES, WS_KR)
    a(f"s_mul_i32 s51, s45, {KG_CH}")
    a("v_lshlrev_b32 v6, 2, v3")
    a("v_add_u32 v6, s51, v6")
    a("v_and_b32 v7, 15, v1")
    a("v_lshrrev_b32 v2, 4, v1")
    a(f"v_mul_u32_u24 v13, {KG_ROW}, v7")
    a("v_lshl_add_u32 v13, v2, 4, v13")
    a("v_add_u32 v100, s51, v13")
    a(f"s_mul_i32 s52, s46, {16*KG_ROW}")
    a("v_add_u32 v101, s52, v100")
    quads = [(0, 1), (4, 1), (256, 2), (512, 256)], [(1536, 256), (516, 256), (4097, 0), (4097, 0)]
    a("s_cmp_eq_u32 s46, 0")
    for q in range(4):
        a(f"s_mov_b32 s64, {f32(float(quads[0][q][0]))}")
        a(f"s_mov_b32 s65, {f32(float(quads[0][q][1]))}")
        a(f"s_cselect_b32 s{56+q}, s64, {f32(float(quads[1][q][0]))}")
        a(f"s_cselect_b32 s{60+q}, s65, {f32(float(quads[1][q][1]))}")
    a("v_mov_b32 v14, s56")
    a("v_mov_b32 v15, s60")
    for q in range(1, 4):
        a(f"v_cmp_eq_u32 vcc, {q}, v2")
        a(f"v_mov_b32 v16, s{56+q}")
        a(f"v_mov_b32 v17, s{60+q}")
        a("v_cndmask_b32 v14, v14, v16, vcc")
        a("v_cndmask_b32 v15, v15, v17, vcc")
    a("v_cvt_f32_u32 v16, v7")
    a("v_fmac_f32 v14, 0x41000000, v16")
    a(f"s_add_u32 s53, s51, {KG_T + KT_TAB - 2*0x4380}")
    a(f"s_add_u32 s54, s51, {KG_T + 3000}")
    a(f"s_add_u32 s57, s51, {KG_T + 510}")
    a(f"s_add_u32 s58, s51, {KG_T + KT_O + 512}")
    a("v_mov_b32 v19, s54")
    TW, TW2 = 102, 112
    for jt in range(2):
        for r in range(4):
            p = 20 + 4 * jt + r
            if r == 0:
                a(f"v_mov_b32 v{p}, v14" if jt == 0 else f"v_add_f32 v{p}, 0x43000000, v14")
            else:
                a(f"v_add_f32 v{p}, v{p-1}, v15")
    for i in range(8):
        p, b, b2 = 20 + i, TW + i, TW2 + i
        a(f"v_cvt_pk_bf16_f32 v{b}, v{p}, v{p}")
        a(f"v_cvt_u32_f32 v17, v{p}")
        a(f"v_and_b32 v16, 0xffff0000, v{b}")
        a(f"v_cmp_eq_u32 vcc, v16, v{p}")
        a(f"v_and_b32 v{b}, 0xffff, v{b}")
        a(f"v_lshl_add_u32 v{b}, v{b}, 1, s53")
        a(f"v_cndmask_b32 v{b}, v19, v{b}, vcc")
        a("v_lshlrev_b32 v16, 1, v17")
        a("v_cmp_gt_u32 vcc, 256, v17")
        a("v_sub_u32 v18, s57, v16")
        a(f"v_sub_u32 v{b2}, s58, v16")
        a(f"v_cndmask_b32 v{b}, v{b}, v18, vcc")
        a("v_cmp_ge_u32 vcc, 256, v17")
        a("s_nop 1")
        a(f"v_cndmask_b32 v{b2}, v19, v{b2}, vcc")
    a("v_mov_b32 v20, 0")
    a("v_mov_b32 v21, 0")
    a("v_mov_b32 v22, 0")
    a("v_mov_b32 v23, 0")
    a("v_and_b32 v16, 1, v1")
    a("v_lshlrev_b32 v16, 4, v16")
    a(f"s_mul_i32 s59, s46, {KT_O}")
    a("s_add_u32 s59, s59, s57")
    a("v_add_u32 v16, s59, v16")
    a("ds_write_b128 v16, v[20:23] offset:2")
    a("v_lshlrev_b32 v130, 4, v3")
    a(f"s_add_u32 s55, s51, {KG_T}")
    a("v_add_u32 v110, s55, v130")
    a(f"s_mul_i32 s55, s47, {KT_BYTES}")
    a("v_mov_b32 v14, 0x00003f80")
    a(f"ds_write_b32 v6, v14 offset:{KG_YB}")
    stamp(a)
    a("s_waitcnt vmcnt(3)")
    stamp(a)
    a("v_lshlrev_b32 v12, 16, v12")
    a("v_lshlrev_b32 v8, 16, v8")
    exp_acc(a, 13, 12, 14)
    exp_acc(a, 15, 8, 16)
    bf16_round(a, 13, 13)
    bf16_round(a, 15, 15)
    a("s_waitcnt vmcnt(2)")
    a("v_lshlrev_b32 v9, 16, v9")
    a("v_mul_f32 v15, v15, v13")
    a("v_mul_f32 v16, v9, v13")
    a(f"v_mul_f32 v15, {f32(-LOG2E)}, v15")
    a(f"v_mul_f32 v16, {f32(0.15915494309189535)}, v16")
    seeds = [(1, 20, 1), (256, 22, 1), (8, 24, -1), (64, 26, -1)]
    for i, (p, z, sg) in enumerate(seeds):
        a(f"v_mul_f32 v{32+i}, {f32(float(p))}, v15")
        a(f"v_mul_f32 v{36+i}, {f32(float(p*sg))}, v16")
    for i in range(4):
        a(f"v_exp_f32 v{32+i}, v{32+i}")
        a(f"v_fract_f32 v{36+i}, v{36+i}")
    for i, (p, z, sg) in enumerate(seeds):
        a(f"v_cos_f32 v{z}, v{36+i}")
        a(f"v_sin_f32 v{z+1}, v{36+i}")
    a("s_waitcnt vmcnt(0)")
    a("v_lshlrev_b32 v10, 16, v10")
    a("v_lshlrev_b32 v11, 16, v11")
    a("v_add_f32 v13, v13, v13")
    for i, (p, z, sg) in enumerate(seeds):
        a(f"v_mul_f32 v{z}, v{32+i}, v{z}")
        a(f"v_mul_f32 v{z+1}, v{32+i}, v{z+1}")
    a("v_mul_f32 v28, v10, v13")
    a("v_mul_f32 v29, v11, v13")
    E1, E256, Y8, Y64, C = 20, 22, 24, 26, 28
    E2, E4, Y128, Y192 = 40, 42, 44, 46

    def emit(z, off, t):
        return [f"v_cvt_pk_bf16_f32 v{t}, v{z}, v{z+1}", f"ds_write_b32 v6, v{t} offset:{off}"]

    xrow = lambda q, r: KG_XA + (4 * q + r) * KG_ROW
    yrow = lambda j: KG_YB + j * KG_ROW

    def chain(seed, ratio, offs, ra, rb, t, emit_seed=True):
        ops = []
        cur = seed
        for k, off in enumerate(offs):
            if k:
                nxt = ra if cur != ra else rb
                ops.append(cmul(nxt, cur, ratio))
                cur = nxt
            if k or emit_seed:
                ops.append(emit(cur, off, t))
        return ops

    pre = [cmul(E2, E1, E1), cmul(Y128, Y64, Y64), cmul(48, C, E256), cmul(E4, E2, E2), cmul(Y192, Y128, Y64)]
    for i in range(2):
        for op in pre[:3]:
            a(op[i])
    for i in range(2):
        for op in pre[3:]:
            a(op[i])
    a("\n".join(cmul(50, C, E4)))
    chains = [
        chain(Y8, Y8, [yrow(j) for j in range(1, 8)], 52, 54, 88),
        chain(Y64, Y8, [yrow(j) for j in range(8, 16)], 56, 58, 89),
        chain(Y128, Y8, [yrow(j) for j in range(16, 24)], 60, 62, 90),
        chain(Y192, Y8, [yrow(j) for j in range(24, 32)], 64, 66, 91),
        chain(C, E1, [xrow(0, r) for r in range(4)], 68, 70, 92)
        + chain(48, E2, [xrow(2, r) for r in range(4)], 68, 70, 92),
        chain(50, E1, [xrow(1, r) for r in range(4)], 72, 74, 93),
    ]
    far = []
    cur = 48
    offs = [xrow(3, 0), xrow(3, 1), xrow(3, 2), xrow(3, 3), xrow(4, 0), xrow(4, 1), xrow(4, 2)]
    for k, off in enumerate(offs):
        nxt = 76 if cur != 76 else 78
        far.append(cmul(nxt, cur, E256))
        cur = nxt
        far.append(emit(cur, off, 94))
        if k < 2:
            far.append(cmul(80, cur, E4))
            far.append(emit(80, xrow(5, k), 95))
    chains.append(far)
    while any(chains):
        units = [c.pop(0) for c in chains if c]
        for i in range(2):
            for u in units:
                a(u[i])
    a("s_waitcnt lgkmcnt(0)")
    stamp(a)
    a("s_barrier")
    for ks in range(8):
        a(f"ds_read_b128 {vr(132+4*ks,4)}, v101 offset:{KG_XA + ks*64}")
        a(f"ds_read_b128 {vr(32+4*ks,4)}, v100 offset:{KG_YB + ks*64}")
        a(f"ds_read_b128 {vr(64+4*ks,4)}, v100 offset:{KG_YB + 16*KG_ROW + ks*64}")
    for ks in range(8):
        a(f"s_waitcnt lgkmcnt({min(15, 3*(7-ks))})")
        c0 = "0" if ks == 0 else "v[20:23]"
        c1 = "0" if ks == 0 else "v[24:27]"
        a(f"v_mfma_f32_16x16x32_bf16 v[20:23], {vr(132+4*ks,4)}, {vr(32+4*ks,4)}, {c0}")
        a(f"v_mfma_f32_16x16x32_bf16 v[24:27], {vr(132+4*ks,4)}, {vr(64+4*ks,4)}, {c1}")
    a("s_nop 7")
    for i in range(8):
        a(f"v_cvt_pk_bf16_f32 v{20+i}, v{20+i}, v{20+i}")
        a(f"ds_write_b16 v{TW+i}, v{20+i}")
        a(f"ds_write_b16 v{TW2+i}, v{20+i}")
    a("s_waitcnt lgkmcnt(0)")
    stamp(a)
    a("s_barrier")
    a("ds_read_b128 v[32:35], v110")
    a("ds_read_b128 v[36:39], v110 offset:2048")
    a("s_waitcnt lgkmcnt(1)")
    a("buffer_store_dwordx4 v[32:35], v130, s[36:39], s55 offen" + WT["k"])
    a("s_cmp_lg_u32 s46, 0")
    a("s_cbranch_scc1 k1_kg_done")
    a("s_waitcnt lgkmcnt(0)")
    a("buffer_store_dwordx4 v[36:39], v130, s[36:39], s55 offen offset:2048" + WT["k"])
    a.label("k1_kg_done")
    stamp_end(a, 0, 14)
    a("s_endpgm")


def gen_k1(a):
    a.raw(".p2align 8")
    a.label("k1_kernel")
    a(f"s_cmp_ge_u32 s2, {N_K1}")
    a("s_cbranch_scc1 k1_exit")
    a("v_lshrrev_b32 v2, 6, v0")
    a("v_and_b32 v1, 63, v0")
    a("v_readfirstlane_b32 s44, v2")
    a("s_cmp_ge_u32 s44, 4")
    a("s_cbranch_scc1 k1_ln")
    gen_kgen(a)
    a.label("k1_ln")
    gen_ln(a)
    a.label("k1_exit")
    a("s_endpgm")


N_G1, N_CV, N_RL = 176, 64, 16
G1_STAGE = 49152
G1_W = 32768
K2_LDS = 3 * G1_STAGE
G1_NST = 8
CV_ZB, CV_PW = 32768, 32896
CV_O, CV_T, CV_G, CV_W = 2752, 5376, 6400, 7168


def gen_gemm1_loader(a):
    a("s_sub_u32 s30, s30, 4")
    a("v_lshrrev_b32 v3, 3, v1")
    a("v_and_b32 v4, 7, v1")
    a("v_lshrrev_b32 v5, 4, v1")
    a(f"v_mul_u32_u24 v14, {XN_STRIDE}, v3")
    for q in range(4):
        a(f"v_add_u32 v6, {4*q}, v5")
        a("v_and_b32 v6, 7, v6")
        a("v_xor_b32 v6, v6, v4")
        a("v_lshl_add_u32 v6, v6, 4, v14")
        a(f"v_add_u32 v{8+q}, {q*(8*XN_STRIDE-1024)}, v6")
    a("v_and_b32 v6, 1, v5")
    a("v_lshrrev_b32 v7, 2, v4")
    a("v_xor_b32 v6, v6, v7")
    a("v_and_b32 v7, 3, v4")
    a("v_lshlrev_b32 v7, 3, v7")
    a("v_lshl_add_u32 v6, v6, 5, v7")
    a("s_lshl_b32 s31, s29, 6")
    a("v_add_u32 v6, s31, v6")
    a(f"v_mul_u32_u24 v12, {2*F}, v3")
    a("v_lshl_add_u32 v12, v6, 1, v12")
    a(f"v_add_u32 v13, {8*2*F-1024}, v12")
    a(f"v_cmp_le_u32 vcc, {F}, v6")
    a("v_mov_b32 v7, 0x40000000")
    a(f"s_mul_i32 s32, s28, {256*XN_STRIDE}")
    a("v_cndmask_b32 v12, v12, v7, vcc")
    a("v_cndmask_b32 v13, v13, v7, vcc")
    a(f"s_mul_i32 s33, s30, {64*XN_STRIDE}")
    a("s_add_u32 s32, s32, s33")
    a(f"s_add_u32 s36, s32, {32*XN_STRIDE}")
    a(f"s_mul_i32 s33, s30, {16*2*F}")
    a("s_lshl_b32 s34, s30, 13")
    a("s_lshl_b32 s35, s30, 11")
    a(f"s_add_u32 s35, s35, {G1_W}")
    a("s_waitcnt lgkmcnt(0)")
    srd(a, 16, 4, W_BYTES)
    srd(a, 20, 6, W_BYTES)
    srd(a, 12, 8, XN_BYTES, WS_XN)

    def dma(stage, lo=0, hi=12):
        b = (stage % 3) * G1_STAGE
        if lo == 0:
            a(f"s_add_u32 m0, s35, {b}")
            a("s_nop 0")
            a("buffer_load_dwordx4 v12, s[16:19], s33 offen lds")
            a("buffer_load_dwordx4 v13, s[16:19], s33 offen offset:1024 lds")
            a(f"s_add_u32 m0, s35, {b+8192}")
            a("s_nop 0")
            a("buffer_load_dwordx4 v12, s[20:23], s33 offen lds")
            a("buffer_load_dwordx4 v13, s[20:23], s33 offen offset:1024 lds")
            a(f"s_add_u32 s33, s33, {64*2*F}")
        if hi == 12:
            a(f"s_add_u32 m0, s34, {b}")
            a("s_nop 0")
            for q in range(4):
                a(f"buffer_load_dwordx4 v{8+q}, s[12:15], s32 offen offset:{q*1024} lds")
            a(f"s_add_u32 m0, s34, {b+4096}")
            a("s_add_u32 s32, s32, 128")
            for q in range(4):
                a(f"buffer_load_dwordx4 v{8+q}, s[12:15], s36 offen offset:{q*1024} lds")
            a("s_add_u32 s36, s36, 128")

    dma(0)
    dma(1, 0, 4)
    for st in range(G1_NST):
        if st in (0, 3, 4):
            stamp(a)
        a(f"s_waitcnt vmcnt({4 if st == 0 else (12 if st + 1 < G1_NST else 0)})")
        if st in (0, 3, 4):
            stamp(a)
        a("s_barrier")
        if st in (3,):
            stamp(a)
        if st == 0:
            dma(1, 4, 12)
        if st + 2 < G1_NST:
            dma(st + 2)
    stamp_end(a, 1, 8)
    a("s_endpgm")


def gen_gemm1(a):
    stamp_begin(a)
    a(f"s_load_dwordx4 s[4:7], s[0:1], {KA_WG}")
    a(f"s_load_dwordx2 s[8:9], s[0:1], {KA_WS}")
    a("v_and_b32 v1, 63, v0")
    a("v_lshrrev_b32 v2, 6, v0")
    if G1_MAP:
        a("s_lshr_b32 s29, s2, 3")
        a("s_and_b32 s28, s2, 6")
        a("s_and_b32 s31, s29, 1")
        a("s_add_u32 s28, s28, s31")
        a("s_lshr_b32 s29, s29, 1")
        a("s_and_b32 s31, s2, 1")
        a("s_mul_i32 s31, s31, 11")
        a("s_add_u32 s29, s29, s31")
    else:
        a("s_and_b32 s28, s2, 7")
        a("s_lshr_b32 s29, s2, 3")
    a("v_readfirstlane_b32 s30, v2")
    a("s_cmp_lt_u32 s30, 4")
    a("s_cbranch_scc1 k2_g1_compute")
    gen_gemm1_loader(a)
    a.label("k2_g1_compute")
    if PRIO:
        a(f"s_setprio {PRIO}")
    _stamp_n[0] = 1 if PROF else 0
    a("v_and_b32 v3, 31, v1")
    a("v_lshrrev_b32 v4, 5, v1")
    a("v_lshrrev_b32 v5, 1, v3")
    a("v_and_b32 v5, 7, v5")
    a("v_xor_b32 v5, v5, v4")
    a("v_lshlrev_b32 v6, 7, v3")
    a("s_lshl_b32 s38, s30, 13")
    a("v_add_u32 v6, s38, v6")
    for ks in range(4):
        a(f"v_xor_b32 v7, {2*ks}, v5")
        a(f"v_lshl_add_u32 v{16+ks}, v7, 4, v6")
    a("v_and_b32 v5, 15, v1")
    a("v_lshrrev_b32 v6, 2, v5")
    a("v_and_b32 v5, 3, v5")
    a("v_lshrrev_b32 v7, 4, v1")
    a("v_and_b32 v7, 1, v7")
    a("v_and_b32 v13, 1, v5")
    a("v_lshlrev_b32 v13, 5, v13")
    a("v_lshl_add_u32 v13, v7, 4, v13")
    a("v_lshrrev_b32 v5, 1, v5")
    a("v_lshl_add_u32 v13, v5, 3, v13")
    a("v_lshrrev_b32 v5, 1, v6")
    a("v_lshl_add_u32 v13, v5, 6, v13")
    a("v_lshl_add_u32 v6, v4, 3, v6")
    a("v_lshl_add_u32 v13, v6, 7, v13")
    a(f"v_add_u32 v20, {G1_W}, v13")
    a("v_xor_b32 v21, 64, v20")
    a("v_mov_b32 v12, 0")
    HS = 144
    a(f"s_mul_i32 s39, s30, {64*HS}")
    a(f"v_mul_u32_u24 v22, {HS}, v3")
    a("v_lshl_add_u32 v22, v4, 5, v22")
    a("v_add_u32 v22, s39, v22")
    a("v_lshrrev_b32 v5, 3, v1")
    a("v_and_b32 v6, 7, v1")
    a(f"v_mul_u32_u24 v23, {HS}, v5")
    a("v_lshl_add_u32 v23, v6, 4, v23")
    a("v_add_u32 v23, s39, v23")
    a(f"v_mul_u32_u24 v14, {H_STRIDE}, v5")
    a("v_lshl_add_u32 v14, v6, 4, v14")
    a("s_lshl_b32 s40, s28, 8")
    a("s_lshl_b32 s41, s30, 6")
    a("s_add_u32 s40, s40, s41")
    a(f"s_mul_i32 s42, s40, {H_STRIDE}")
    a("s_lshl_b32 s43, s29, 7")
    a("s_add_u32 s42, s42, s43")
    a("s_waitcnt lgkmcnt(0)")
    srd(a, 24, 8, H_BYTES, WS_H)

    ACC = lambda w, ft, tt: 128 + 64 * w + 32 * ft + 16 * tt
    FS = [32, 56, 80, 104]

    def reads(n, f):
        ks = n & 3
        out = []
        for w in range(2):
            for ft in range(2):
                o = 8192 * w + ks * 2048
                out.append(f"ds_read_b64_tr_b16 {vr(f+8*w+4*ft,2)}, v{20+ft} offset:{o}")
                out.append(f"ds_read_b64_tr_b16 {vr(f+8*w+4*ft+2,2)}, v{20+ft} offset:{o+512}")
            out.append(f"ds_read_b128 {vr(f+16+4*w,4)}, v{16+ks} offset:{4096*w}")
        return out

    def mfma(n, f, w, ft, tt):
        c = vr(ACC(w, ft, tt), 16)
        return (f"v_mfma_f32_32x32x16_bf16 {c}, {vr(f+8*w+4*ft,4)}, {vr(f+16+4*tt,4)}, "
                f"{'0' if n == 0 else c}")

    def mfmas(n, f):
        return [mfma(n, f, w, ft, tt) for tt in range(2) for w in range(2) for ft in range(2)]

    def boundary(st):
        a("s_waitcnt lgkmcnt(0)")
        a("s_barrier")
        if st in (0, 6, 7):
            stamp(a)
        if st >= 1:
            delta = G1_STAGE if st % 3 else -2 * G1_STAGE
            for r in (16, 17, 18, 19, 20, 21):
                a(f"v_add_u32 v{r}, {delta & 0xffffffff:#x}, v{r}")

    LASTN = 4 * (G1_NST - 1)
    boundary(0)
    for op in reads(0, FS[0]):
        a(op)
    for n in range(LASTN):
        nx = n + 1
        if nx == LASTN:
            break
        if nx & 3 == 0:
            boundary(nx >> 2)
        else:
            a("s_waitcnt lgkmcnt(0)")
        rd = reads(nx, FS[nx & 1])
        cuts = [0, 3, 6, 8, 10, 10, 10, 10, 10]
        for i, m in enumerate(mfmas(n, FS[n & 1])):
            a(m)
            for op in rd[cuts[i]:cuts[i + 1]]:
                a(op)
    n = LASTN - 1
    boundary(G1_NST - 1)
    sets = {LASTN: FS[0], LASTN + 2: FS[2], LASTN + 3: FS[3], LASTN + 1: FS[1]}
    early = reads(LASTN, FS[0]) + reads(LASTN + 2, FS[2]) + reads(LASTN + 3, FS[3])
    mm = mfmas(n, FS[n & 1])
    for i, m in enumerate(mm):
        a(m)
        for op in early[4 * i:4 * i + 4]:
            a(op)
    for op in reads(LASTN + 1, FS[1]):
        a(op)

    def pair_epilogue(ft, tt):
        g, u = ACC(0, ft, tt), ACC(1, ft, tt)
        o = 4 if ft == 0 else 24
        out = []
        if EPI == "fused":
            for k in range(16):
                out.append(f"v_max_f32 v{g+k}, 0, v{g+k}")
            for k in range(16):
                out.append(f"v_mul_f32 v{g+k}, v{g+k}, v{u+k}")
            for k in range(8):
                out.append(f"v_cvt_pk_bf16_f32 v{o+k}, v{g+2*k}, v{g+2*k+1}")
                if k == 3:
                    out.append(f"ds_write_b128 v22, {vr(o,4)} offset:{32*HS*tt + 64*ft}")
            out.append(f"ds_write_b128 v22, {vr(o+4,4)} offset:{32*HS*tt + 64*ft + 16}")
            return out
        for k in range(8):
            out.append(f"v_cvt_pk_bf16_f32 v{g+2*k}, v{g+2*k}, v{g+2*k+1}")
            out.append(f"v_cvt_pk_bf16_f32 v{u+2*k}, v{u+2*k}, v{u+2*k+1}")
        for k in range(8):
            out.append(f"v_max_i16_sdwa v{g+2*k+1}, v{g+2*k}, v12 dst_sel:WORD_0 dst_unused:UNUSED_PAD "
                       "src0_sel:WORD_0 src1_sel:WORD_0")
            out.append(f"v_max_i16_sdwa v{u+2*k+1}, v{g+2*k}, v12 dst_sel:WORD_1 dst_unused:UNUSED_PAD "
                       "src0_sel:WORD_1 src1_sel:WORD_0")
        for k in range(8):
            out.append(f"v_dot2_f32_bf16 v{g+2*k+1}, v{g+2*k+1}, v{u+2*k}, 0")
            out.append(f"v_dot2_f32_bf16 v{u+2*k+1}, v{u+2*k+1}, v{u+2*k}, 0")
        for k in range(8):
            out.append(f"v_cvt_pk_bf16_f32 v{o+k}, v{g+2*k+1}, v{u+2*k+1}")
            if k == 3:
                out.append(f"ds_write_b128 v22, {vr(o,4)} offset:{32*HS*tt + 64*ft}")
        out.append(f"ds_write_b128 v22, {vr(o+4,4)} offset:{32*HS*tt + 64*ft + 16}")
        return out

    def flush(tt, regs):
        rd = [f"ds_read_b128 {vr(regs+4*i,4)}, v23 offset:{8*HS*(4*tt+i)}" for i in range(4)]
        st = []
        for i in range(4):
            st.append(f"s_waitcnt lgkmcnt({3-i})\n"
                      f"buffer_store_dwordx4 {vr(regs+4*i,4)}, v14, s[24:27], s42 offen{WT['h']}\n"
                      f"s_add_u32 s42, s42, {8*H_STRIDE}")
        return rd, st

    order = [(0, 0), (1, 0), (0, 1), (1, 1)]
    korder = [LASTN, LASTN + 2, LASTN + 3, LASTN + 1]
    a("s_waitcnt lgkmcnt(10)")
    for pi, (ft, tt) in enumerate(order):
        if pi < 3:
            stamp(a)
        mm = []
        for kn in korder:
            if pi == 0 and kn == LASTN + 1:
                mm.append("s_waitcnt lgkmcnt(0)\n" + mfma(kn, sets[kn], 0, ft, tt))
            else:
                mm.append(mfma(kn, sets[kn], 0, ft, tt))
            mm.append(mfma(kn, sets[kn], 1, ft, tt))
        fill = ["s_nop 8"] + pair_epilogue(*order[pi - 1]) if pi else []
        if pi == 3:
            rd, st = flush(0, ACC(1, 0, 0))
            fill = ["s_waitcnt lgkmcnt(0)"] + rd + fill[:33] + st + fill[33:]
        lead = 2
        per = -(-len(fill) // (len(mm) - lead)) if fill else 0
        for i, m in enumerate(mm):
            a(m)
            if i >= lead - 1 and fill:
                j = i - (lead - 1)
                for op in fill[j * per:(j + 1) * per]:
                    a(op)
    a("s_nop 15")
    stamp(a)
    for op in pair_epilogue(*order[3]):
        a(op)
    a("s_waitcnt lgkmcnt(0)")
    rd, st = flush(1, ACC(1, 0, 0))
    for op in rd + st:
        a(op)
    stamp_end(a, 1, 8)
    a("s_endpgm")


def gen_conv(a):
    stamp_begin(a)
    a(f"s_load_dwordx2 s[4:5], s[0:1], {KA_DSK}")
    a(f"s_load_dwordx2 s[8:9], s[0:1], {KA_WS}")
    a("v_and_b32 v1, 63, v0")
    a("v_lshrrev_b32 v2, 6, v0")
    a(f"s_sub_u32 s28, s2, {N_G1}")
    a("s_lshl_b32 s29, s28, 7")
    a("v_readfirstlane_b32 s30, v2")
    a("s_lshl_b32 s28, s28, 3")
    a("s_add_u32 s28, s28, s30")
    a(f"s_mul_i32 s31, s30, {CV_W}")
    a(f"s_add_u32 s31, s31, {CV_PW}")
    a(f"s_mul_i32 s32, s28, {KT_BYTES}")
    a("s_lshl_b32 s34, s28, 12")
    a("s_lshr_b32 s35, s28, 1")
    a("s_lshl_b32 s35, s35, 2")
    a("v_lshlrev_b32 v3, 4, v1")
    a("v_lshrrev_b32 v4, 3, v1")
    a("v_and_b32 v5, 7, v1")
    a("v_lshrrev_b32 v6, 4, v1")
    a(f"v_mul_u32_u24 v4, {XNT_STRIDE}, v4")
    for q in range(2):
        a(f"v_add_u32 v7, {4*q}, v6")
        a("v_xor_b32 v7, v7, v5")
        a(f"v_lshl_add_u32 v{8+q}, v7, 4, v4")
    a(f"v_add_u32 v9, {8*XNT_STRIDE - 1024}, v9")
    a(f"s_mul_i32 s44, s30, {32*XNT_STRIDE}")
    a("s_add_u32 s44, s44, s29")
    a(f"s_add_u32 s45, s44, {16*XNT_STRIDE - 2048}")
    a("s_lshl_b32 s47, s30, 12")
    a("s_waitcnt lgkmcnt(0)")
    a("s_load_dword s36, s[4:5], s35")
    srd(a, 12, 8, D * KT_BYTES, WS_KR)
    srd(a, 16, 8, XNT_BYTES, WS_XNT)
    srd(a, 20, 8, L * D * 2, WS_AT)
    for q, dst in ((2, CV_T), (0, 1600), (1, CV_O + 1600)):
        a(f"s_add_u32 m0, s31, {dst - q*1024}")
        a("s_nop 0")
        a(f"buffer_load_dwordx4 v3, s[12:15], s32 offen offset:{q*1024} lds")
    a("s_mov_b32 m0, s47")
    a("s_nop 0")
    a("buffer_load_dwordx4 v8, s[16:19], s44 offen lds")
    a("buffer_load_dwordx4 v9, s[16:19], s44 offen offset:1024 lds")
    a("buffer_load_dwordx4 v8, s[16:19], s45 offen offset:2048 lds")
    a("buffer_load_dwordx4 v9, s[16:19], s45 offen offset:3072 lds")
    pf = 1 if CODE_PF else 0
    if CODE_PF:
        a(f"s_sub_u32 s45, s2, {N_G1}")
        a("s_lshr_b32 s45, s45, 3")
        a("s_lshl_b32 s45, s45, 3")
        a("s_add_u32 s45, s45, s30")
        code_prefetch(a, "k3_kernel", "code_end", 45, 3, 252, 48)
    for r in range(4, 8):
        a(f"v_mov_b32 v{r}, 0")
    a(f"v_add_u32 v10, {CV_G}, v3")
    for lo, base in ((48, 0), (51, CV_O)):
        a(f"v_cmp_le_u32 vcc, {lo}, v1")
        a(f"v_add_u32 v11, {(base - 16*lo) & 0xffffffff:#x}, v3")
        a("s_nop 0")
        a("v_cndmask_b32 v10, v10, v11, vcc")
    a("v_add_u32 v10, s31, v10")
    a("v_cmp_le_u32 vcc, 54, v1")
    a(f"v_mov_b32 v15, {CV_ZB}")
    a("s_nop 0")
    a("v_cndmask_b32 v238, v10, v15, vcc")
    a("v_and_b32 v4, 15, v1")
    a("v_lshrrev_b32 v5, 4, v1")
    a("v_lshlrev_b32 v6, 3, v5")
    a("v_sub_u32 v6, v6, v4")
    a("v_lshlrev_b32 v6, 1, v6")
    a("v_add_u32 v6, s31, v6")
    a("v_and_b32 v7, 1, v4")
    a("v_cmp_eq_u32 vcc, 1, v7")
    a(f"v_mov_b32 v8, {CV_O + 2*1040}")
    a(f"v_mov_b32 v9, {2*1039}")
    a("v_cndmask_b32 v8, v8, v9, vcc")
    a("v_add_u32 v8, v6, v8")
    for P in range(2):
        a(f"v_subrev_u32 v{10+P}, {512*(2*P+1)+448}, v8")
    a("v_subrev_u32 v12, 2048, v8")
    a(f"v_mov_b32 v8, {CV_G + 192 + 2*62 - 96}")
    a(f"v_mov_b32 v9, {CV_G + 2*63 - 96}")
    a("v_cndmask_b32 v8, v8, v9, vcc")
    a("v_lshlrev_b32 v9, 3, v5")
    a("v_sub_u32 v6, v6, v9")
    a("v_add_u32 v13, v6, v8")

    def uaddr(dst, gran, tmp):
        a(f"v_lshrrev_b32 v{tmp}, 1, v{gran}")
        a(f"v_and_b32 v{tmp}, 7, v{tmp}")
        a(f"v_xor_b32 v{tmp}, s30, v{tmp}")
        a(f"v_lshlrev_b32 v{tmp}, 4, v{tmp}")
        a(f"v_lshl_add_u32 v{dst}, v{gran}, 7, v{tmp}")

    UB, UC = 16, 24
    a("v_lshl_add_u32 v6, v4, 1, v5")
    for rho in range(4):
        a(f"v_add_u32 v7, {14 - 4*rho}, v6")
        uaddr(UB + rho, 7, 8)
    for rho in range(8):
        a(f"v_cmp_gt_u32 vcc, {4*rho + 2}, v6")
        a(f"v_subrev_u32 v7, {4096 if rho >= 4 else 2048}, v{UB + (rho & 3)}")
        a("s_nop 0")
        a(f"v_cndmask_b32 v{UC+rho}, v7, v15, vcc")
    a("v_lshrrev_b32 v7, 1, v5")
    a("v_lshl_add_u32 v7, v4, 1, v7")
    uaddr(246, 7, 8)
    a("v_and_b32 v7, 1, v5")
    a("v_lshl_add_u32 v246, v7, 3, v246")
    a("v_lshlrev_b32 v247, 5, v4")
    a("v_lshl_add_u32 v247, v5, 3, v247")
    BND = 224
    a("v_lshlrev_b32 v8, 3, v5")
    a("v_mov_b32 v9, 0x7f")
    a("v_add_u32 v7, 5, v4")
    a("v_lshlrev_b32 v240, v7, v9")
    a("v_mov_b32 v9, 0x1ff")
    a("v_lshlrev_b32 v241, v4, v9")
    a("v_lshrrev_b32 v241, 4, v241")
    a("v_mov_b32 v9, 0xf0000000")
    a("v_lshlrev_b32 v242, v4, v9")
    a("s_mov_b32 s40, 0x3f803f80")
    a("s_mov_b32 s41, 0xffff")
    for b in range(3):
        a(f"v_lshrrev_b32 v{240+b}, v8, v{240+b}")
    for b in range(3):
        for k in range(4):
            a(f"v_bfe_i32 v7, v{240+b}, {2*k}, 1")
            a(f"v_bfe_i32 v9, v{240+b}, {2*k+1}, 1")
            a("v_bfi_b32 v7, s41, v7, v9")
            a(f"v_and_b32 v{BND+4*b+k}, s40, v7")
    a(f"s_add_u32 s38, s31, {CV_T}")
    a("v_lshlrev_b32 v7, 2, v1")
    a("v_sub_u32 v249, s38, v7")
    a("v_lshlrev_b32 v7, 3, v1")
    a("v_min_u32 v7, 248, v7")
    a("v_sub_u32 v250, s38, v7")
    a("v_lshlrev_b32 v7, 2, v1")
    a("v_add_u32 v243, s38, v7")
    a("v_add_u32 v248, s31, v3")
    a("v_cmp_eq_u32 s[52:53], 63, v1")
    a("v_lshlrev_b32 v7, 1, v1")
    a(f"s_add_u32 s39, s31, {CV_G + 126}")
    a("v_sub_u32 v251, s39, v7")
    a("v_add_u32 v245, 190, v251")
    a("v_mov_b32 v7, s38")
    a("v_cndmask_b32 v245, v245, v7, s[52:53]")
    a("s_mov_b32 s42, 0x03020302")
    a("s_mov_b32 s43, 0x01000100")

    ACC = 32
    SET = [64, 112]
    A32 = 216
    WS9, WS7 = 160, 176
    FB = 192
    UREG = 160

    def loads(rho):
        s = SET[rho & 1]
        out = []
        for m in range(8):
            if m == 0:
                out.append(f"ds_read_b128 {vr(s+16,4)}, v{UC+rho}")
            else:
                o = 4096 * (m - 1) + (2048 if rho < 4 else 0)
                out.append(f"ds_read_b128 {vr(s+16+4*m,4)}, v{UB+(rho&3)} offset:{o}")
            if m < 4:
                o = (64 * (7 - rho) + (0 if m & 1 else 512)) // 4
                out.append(f"ds_read2_b32 {vr(s+4*m,2)}, v{10+(m>>1)} offset0:{o} offset1:{o+1}")
                out.append(f"ds_read2_b32 {vr(s+4*m+2,2)}, v{10+(m>>1)} offset0:{o+2} offset1:{o+3}")
        if rho == 0:
            out.append(f"ds_read2_b32 {vr(A32,2)}, v12 offset0:0 offset1:1")
            out.append(f"ds_read2_b32 {vr(A32+2,2)}, v12 offset0:2 offset1:3")
        return out

    def mfma(rho, i, m):
        s = SET[rho & 1]
        c = vr(ACC + 4 * (i + m), 4)
        fa = A32 if i == 4 else s + 4 * i
        return (f"v_mfma_f32_16x16x32_bf16 {c}, {vr(fa,4)}, {vr(s+16+4*m,4)}, "
                f"{'0' if rho == 0 and i == 0 else c}")

    def mfmas(rho):
        out = [mfma(rho, i, m) for i in range(5 if rho == 0 else 4) for m in range(8 - i)]
        s = SET[rho & 1]
        if rho == 0:
            for t in range(4):
                out.append(f"v_mfma_f32_16x16x32_bf16 {vr(WS7+4*t,4)}, {vr(s+16+4*t,4)}, {vr(BND,4)}, 0")
                out.append(f"v_mfma_f32_16x16x32_bf16 {vr(WS9+4*t,4)}, {vr(s+16+4*t,4)}, {vr(BND+4,4)}, 0")
        if rho == 1:
            for t in range(4):
                c = vr(WS9 + 4 * t, 4)
                out.insert(2 * t, f"v_mfma_f32_16x16x32_bf16 {c}, {vr(s+16+4*t,4)}, {vr(BND+8,4)}, {c}")
        return out

    def window_pack():
        out = []
        for base in (WS9, WS7):
            for t in range(4):
                out.append(f"v_cvt_pk_bf16_f32 v{base+2*t}, v{base+4*t}, v{base+4*t+1}")
                out.append(f"v_cvt_pk_bf16_f32 v{base+2*t+1}, v{base+4*t+2}, v{base+4*t+3}")
        return out

    def far_loads(par):
        out = []
        for dl in range(4):
            o = (96 - 32 * dl + 384 * par) // 4
            out.append(f"ds_read2_b32 {vr(FB+4*dl,2)}, v13 offset0:{o} offset1:{o+1}")
            out.append(f"ds_read2_b32 {vr(FB+4*dl+2,2)}, v13 offset0:{o+8} offset1:{o+9}")
        return out

    def far_mfmas(par):
        out = []
        for tp in range(4):
            for kb in range(2 if tp >= 2 else 1):
                c = vr(ACC + 4 * (4 + tp), 4)
                out.append(f"v_mfma_f32_16x16x32_bf16 {c}, {vr((WS9, WS7)[par]+4*kb,4)}, "
                           f"{vr(FB+4*(tp-2*kb),4)}, {c}")
        return out

    def tile_epilogue(t):
        y = ACC + 4 * t
        u = UREG + 2 * t
        w = 2 if t & 1 else 208
        return [f"v_lshlrev_b32 v{w}, 16, v{u}",
                f"v_and_b32 v{w+1}, 0xffff0000, v{u}",
                f"v_lshlrev_b32 v{w+2}, 16, v{u+1}",
                f"v_and_b32 v{w+3}, 0xffff0000, v{u+1}",
                f"v_pk_mul_f32 {vr(w,2)}, {vr(w,2)}, s[36:37]",
                f"v_pk_mul_f32 {vr(w+2,2)}, {vr(w+2,2)}, s[36:37]",
                f"v_cvt_pk_bf16_f32 v{u}, v{w}, v{w+1}",
                f"v_cvt_pk_bf16_f32 v{u+1}, v{w+2}, v{w+3}",
                f"v_cvt_pk_bf16_f32 v{w+5}, v{y}, v{y+1}",
                f"v_cvt_pk_bf16_f32 v{w+7}, v{y+2}, v{y+3}",
                f"v_lshlrev_b32 v{w}, 16, v{u}",
                f"v_and_b32 v{w+1}, 0xffff0000, v{u}",
                f"v_lshlrev_b32 v{w+2}, 16, v{u+1}",
                f"v_and_b32 v{w+3}, 0xffff0000, v{u+1}",
                f"v_lshlrev_b32 v{w+4}, 16, v{w+5}",
                f"v_and_b32 v{w+5}, 0xffff0000, v{w+5}",
                f"v_lshlrev_b32 v{w+6}, 16, v{w+7}",
                f"v_and_b32 v{w+7}, 0xffff0000, v{w+7}",
                f"v_pk_add_f32 {vr(w,2)}, {vr(w,2)}, {vr(w+4,2)}",
                f"v_pk_add_f32 {vr(w+2,2)}, {vr(w+2,2)}, {vr(w+6,2)}",
                f"v_cvt_pk_bf16_f32 v{u}, v{w}, v{w+1}",
                f"v_cvt_pk_bf16_f32 v{u+1}, v{w+2}, v{w+3}",
                f"buffer_store_dwordx2 {vr(u,2)}, v247, s[20:23], s34 offen offset:{512*t}" + WT["at"]]

    def spread(mm, fill):
        per = -(-len(fill) // len(mm)) if fill else 0
        for i, m in enumerate(mm):
            a(m)
            for op in fill[i * per:(i + 1) * per]:
                a(op)

    stamp(a)
    a(f"s_waitcnt vmcnt({4 + pf}) lgkmcnt(0)")
    a("ds_read_b32 v180, v249 offset:508")
    a("ds_read_u16 v181, v249 offset:512")
    a("ds_read_b64 v[182:183], v250 offset:248")
    a("ds_read_u16 v184, v250 offset:256")
    a("ds_read_u16 v185, v243 offset:514")
    a("ds_read_u16 v186, v243 offset:516")
    a("v_mov_b32 v4, 0")
    a("v_mov_b32 v5, 0")
    a("v_mov_b32 v6, 0")
    a("v_mov_b32 v7, 0")
    a("ds_write_b128 v238, v[4:7]")
    a("s_and_b32 s44, s28, 1")
    a("s_lshl_b32 s45, s36, 16")
    a("s_and_b32 s36, s36, 0xffff0000")
    a("s_cmp_eq_u32 s44, 0")
    a("s_cselect_b32 s36, s45, s36")
    a("s_mov_b32 s37, s36")
    a("s_waitcnt lgkmcnt(5)")
    a("v_lshl_or_b32 v188, v181, 16, v181")
    a("v_perm_b32 v189, v180, v180, s42")
    a("v_alignbit_b32 v190, v180, v180, 16")
    a("v_perm_b32 v191, v180, v180, s43")
    a("v_mov_b32 v192, v188")
    a("v_bfi_b32 v193, s41, v181, v180")
    a("v_mov_b32 v194, v189")
    a("v_mov_b32 v195, v191")
    a("ds_write_b128 v248, v[188:191] offset:64")
    a(f"ds_write_b128 v248, v[192:195] offset:{CV_O + 64}")
    a("v_lshlrev_b32 v5, 16, v181")
    a("v_mov_b32 v6, v188")
    a("v_mov_b32 v7, v188")
    a("v_mov_b32 v8, 0")
    a("v_mov_b32 v9, 0")
    a("v_mov_b32 v196, 0")
    a("v_mov_b32 v197, 0")
    a("v_mov_b32 v198, v188")
    a("v_mov_b32 v199, v188")
    a("s_mov_b64 s[54:55], exec")
    a("s_mov_b64 exec, 1")
    a("ds_write_b128 v248, v[4:7] offset:48")
    a(f"ds_write_b128 v248, v[196:199] offset:{CV_O + 48}")
    a("s_mov_b64 exec, s[54:55]")
    a("s_waitcnt lgkmcnt(7)")
    a("v_bfi_b32 v200, s41, v184, v183")
    a("v_perm_b32 v201, v183, v183, s43")
    a("v_bfi_b32 v202, s41, v183, v182")
    a("v_perm_b32 v203, v182, v182, s43")
    a("v_lshl_or_b32 v204, v184, 16, v184")
    a("v_alignbit_b32 v205, v183, v183, 16")
    a("v_mov_b32 v206, v201")
    a("v_alignbit_b32 v207, v182, v182, 16")
    a("s_mov_b32 exec_hi, 0")
    a(f"ds_write_b128 v248, v[200:203] offset:{68*16}")
    a(f"ds_write_b128 v248, v[204:207] offset:{CV_O + 68*16}")
    a("s_mov_b64 exec, s[54:55]")
    a("s_waitcnt lgkmcnt(7)")
    a("ds_write_b16 v251, v186")
    a("ds_write_b16 v245, v186")
    a("ds_write_b16 v251, v185 offset:384")
    a("ds_write_b16 v245, v185 offset:384")
    a(f"s_waitcnt vmcnt({pf}) lgkmcnt(0)")
    a("s_barrier")
    stamp(a)
    for op in loads(0):
        a(op)
    for rho in range(7):
        a("s_waitcnt lgkmcnt(0)")
        fill = loads(rho + 1)
        mm = mfmas(rho)
        if rho == 2:
            fill = window_pack() + fill + far_loads(0)
        elif rho == 3:
            mm = far_mfmas(0) + mm
            fill = fill + far_loads(1)
        elif rho == 4:
            mm = far_mfmas(1) + mm
        elif rho == 6:
            fill = fill + [f"ds_read_b64 {vr(UREG+2*t,2)}, v246 offset:{4096*t}" for t in range(8)]
        spread(mm, fill)
    a("s_waitcnt lgkmcnt(0)")
    seq = {t: [mfma(7, i, t - i) for i in range(min(t, 3) + 1)] for t in range(8)}
    for op in seq[0] + seq[1] + seq[2] + seq[3]:
        a(op)
    spread(seq[4] + seq[5], tile_epilogue(0) + tile_epilogue(1))
    spread(seq[6] + seq[7], tile_epilogue(2) + tile_epilogue(3))
    stamp(a)
    for op in interleave(tile_epilogue(4), tile_epilogue(5)) + interleave(tile_epilogue(6), tile_epilogue(7)):
        a(op)
    stamp_end(a, 1, 8)
    a("s_endpgm")


def gen_relayout(a):
    a(f"s_load_dwordx2 s[4:5], s[0:1], {KA_WD}")
    a(f"s_load_dwordx2 s[8:9], s[0:1], {KA_WS}")
    a("v_and_b32 v1, 63, v0")
    a("v_lshrrev_b32 v2, 6, v0")
    a(f"s_sub_u32 s28, s2, {N_G1 + N_CV}")
    a("s_mul_i32 s28, s28, 88")
    a("v_readfirstlane_b32 s30, v2")
    a("v_lshlrev_b32 v3, 4, v1")
    a("s_add_u32 s28, s28, s30")
    a("s_lshr_b32 s31, s28, 1")
    a("s_and_b32 s31, s31, 1")
    a("s_lshl_b32 s31, s31, 2")
    a("v_and_b32 v4, 7, v1")
    a("v_xor_b32 v4, s31, v4")
    a("v_lshrrev_b32 v5, 3, v1")
    a(f"s_mov_b32 s32, {WDT_TILE}")
    a("v_mul_lo_u32 v5, v5, s32")
    a("v_lshl_add_u32 v4, v4, 4, v5")
    a("s_lshl_b32 s33, s28, 10")
    a("s_lshl_b32 s34, s28, 7")
    a("s_waitcnt lgkmcnt(0)")
    srd(a, 12, 4, W_BYTES)
    srd(a, 16, 8, 8 * WDT_TILE, WS_WDT)
    for i in range(11):
        a(f"buffer_load_dwordx4 {vr(8+4*i,4)}, v3, s[12:15], s33 offen")
        a("s_add_u32 s33, s33, 8192")
    a("s_waitcnt vmcnt(0)")
    for i in range(11):
        a(f"buffer_store_dwordx4 {vr(8+4*i,4)}, v4, s[16:19], s34 offen offset:{(i%4)*1024}" + WT["wdt"])
        if i % 4 == 3:
            a("s_add_u32 s34, s34, 4096")
    a("s_endpgm")


def gen_k2(a):
    a.raw(".p2align 8")
    a.label("k2_kernel")
    a(f"s_cmp_ge_u32 s2, {N_G1 + N_CV + N_RL}")
    a("s_cbranch_scc1 k2_exit")
    a(f"s_cmp_ge_u32 s2, {N_G1 + N_CV}")
    a("s_cbranch_scc1 k2_relayout")
    a(f"s_cmp_ge_u32 s2, {N_G1}")
    a("s_cbranch_scc1 k2_conv")
    gen_gemm1(a)
    a.label("k2_conv")
    gen_conv(a)
    a.label("k2_relayout")
    gen_relayout(a)
    a.label("k2_exit")
    a("s_endpgm")


N_G2 = 256
G2_NS = 8
G2_STAGE = 16384
G2_AT = G2_NS * G2_STAGE
G2_OUT = G2_AT + 8192
K3_LDS = G2_OUT
OUT_STAGE = False
G2_NST = FP // 64
G2_LEAD = 3


def gen_k3(a):
    a.raw(".p2align 8")
    a.label("k3_kernel")
    a(f"s_cmp_ge_u32 s2, {N_G2}")
    a("s_cbranch_scc1 k3_exit")
    stamp_begin(a)
    a(f"s_load_dwordx2 s[4:5], s[0:1], {KA_U}")
    a(f"s_load_dwordx4 s[8:11], s[0:1], {KA_WD}")
    a(f"s_load_dwordx2 s[6:7], s[0:1], {KA_WS}")
    a("v_and_b32 v1, 63, v0")
    a("v_lshrrev_b32 v2, 6, v0")
    if G2_MAP == 0:
        a("s_and_b32 s32, s2, 7")
        a("s_lshr_b32 s33, s2, 3")
        a("s_lshl_b32 s32, s32, 8")
        a("s_and_b32 s35, s33, 3")
        a("s_lshl_b32 s35, s35, 6")
        a("s_add_u32 s32, s32, s35")
        a("s_lshr_b32 s33, s33, 2")
        a("s_lshl_b32 s33, s33, 6")
    else:
        a("s_and_b32 s32, s2, 6")
        a("s_lshr_b32 s33, s2, 3")
        a("s_lshl_b32 s32, s32, 8")
        a("s_and_b32 s35, s33, 7")
        a("s_lshl_b32 s35, s35, 6")
        a("s_add_u32 s32, s32, s35")
        a("s_lshr_b32 s33, s33, 3")
        a("s_and_b32 s35, s2, 1")
        a("s_lshl_b32 s35, s35, 2")
        a("s_add_u32 s33, s33, s35")
        a("s_lshl_b32 s33, s33, 6")
    a("v_readfirstlane_b32 s34, v2")
    a("s_cmp_lt_u32 s34, 4")
    a("s_cbranch_scc1 k3_compute")
    a("s_sub_u32 s34, s34, 4")
    a("v_lshrrev_b32 v3, 3, v1")
    a("v_and_b32 v4, 7, v1")
    a("v_lshrrev_b32 v5, 4, v1")
    a(f"v_mul_u32_u24 v7, {H_STRIDE}, v3")
    a("s_lshl_b32 s36, s34, 2")
    a("v_add_u32 v6, s36, v5")
    a("v_and_b32 v6, 7, v6")
    a("v_xor_b32 v6, v6, v4")
    a("v_lshl_add_u32 v8, v6, 4, v7")
    a("v_and_b32 v6, 1, v5")
    a("v_lshlrev_b32 v6, 2, v6")
    a("v_xor_b32 v6, v6, v4")
    a("v_lshlrev_b32 v6, 4, v6")
    a("v_lshlrev_b32 v10, 4, v1")
    a("v_lshl_add_u32 v12, v3, 12, v6")
    a("s_lshl_b32 s36, s34, 3")
    a("s_add_u32 s37, s36, s32")
    a(f"s_mul_i32 s37, s37, {H_STRIDE}")
    a(f"s_mul_i32 s38, s33, {WDT_TILE // 64}")
    a("s_lshl_b32 s39, s34, 10")
    a("s_add_u32 s38, s38, s39")
    a("s_add_u32 s39, s36, s33")
    a("s_lshl_b32 s39, s39, 12")
    a("s_lshl_b32 s40, s32, 1")
    a("s_add_u32 s39, s39, s40")
    a("s_lshl_b32 s40, s34, 10")
    a("s_waitcnt lgkmcnt(0)")
    srd(a, 16, 6, 8 * WDT_TILE, WS_WDT)
    srd(a, 12, 6, H_BYTES, WS_H)
    srd(a, 20, 6, L * D * 2, WS_AT)

    def dma(stage):
        b = (stage % G2_NS) * G2_STAGE
        a(f"s_add_u32 m0, s40, {b+8192}")
        a("s_nop 0")
        a("buffer_load_dwordx4 v10, s[16:19], s38 offen lds")
        a(f"s_add_u32 m0, s40, {b}")
        a("s_add_u32 s38, s38, 8192")
        a("buffer_load_dwordx4 v8, s[12:15], s37 offen lds")
        a("s_add_u32 s37, s37, 128")

    AT_AFTER = 3
    issued = 0
    for st in range(G2_NST):
        want = min(G2_NST - 1, 2 * st + 2, st + G2_LEAD)
        while issued <= want:
            dma(issued)
            if issued == AT_AFTER:
                a(f"s_add_u32 m0, s40, {G2_AT}")
                a("s_nop 0")
                a("buffer_load_dwordx4 v12, s[20:23], s39 offen lds")
            issued += 1
        vm = 2 * (issued - 1 - st) + (1 if st <= AT_AFTER < issued else 0)
        if st in (0, 8, 16):
            stamp(a)
        a(f"s_waitcnt vmcnt({vm})")
        a("s_barrier")
    stamp_end(a, 2, 6)
    a("s_endpgm")
    a.label("k3_compute")
    if PRIO:
        a(f"s_setprio {PRIO}")
    _stamp_n[0] = 1 if PROF else 0
    a("s_and_b32 s41, s34, 1")
    a("s_lshr_b32 s42, s34, 1")
    a("v_and_b32 v3, 31, v1")
    a("v_lshrrev_b32 v4, 5, v1")
    a("s_lshl_b32 s43, s41, 5")
    a("s_add_u32 s43, s43, s32")
    a("v_add_u32 v14, s43, v3")
    a("v_lshlrev_b32 v14, 10, v14")
    a("v_lshl_add_u32 v14, v4, 5, v14")
    a("s_lshl_b32 s44, s42, 5")
    a("s_add_u32 s44, s44, s33")
    a("s_lshl_b32 s44, s44, 1")
    a("v_lshrrev_b32 v5, 1, v3")
    a("v_and_b32 v5, 7, v5")
    a("v_xor_b32 v5, v5, v4")
    a("v_lshlrev_b32 v6, 7, v3")
    a("s_lshl_b32 s45, s41, 12")
    a("v_add_u32 v6, s45, v6")
    for ks in range(4):
        a(f"v_xor_b32 v7, {2*ks}, v5")
        a(f"v_lshl_add_u32 v{16+ks}, v7, 4, v6")
    a("v_and_b32 v5, 15, v1")
    a("v_lshrrev_b32 v6, 2, v5")
    a("v_and_b32 v5, 3, v5")
    a("v_lshrrev_b32 v7, 4, v1")
    a("v_and_b32 v7, 1, v7")
    a("v_lshlrev_b32 v21, 3, v5")
    a("v_lshl_add_u32 v21, v7, 5, v21")
    a("v_lshrrev_b32 v22, 1, v6")
    a("v_xor_b32 v23, s41, v22")
    a("v_lshl_add_u32 v21, v23, 6, v21")
    a("v_lshl_add_u32 v23, v4, 4, v6")
    a("v_lshl_add_u32 v21, v23, 7, v21")
    a("s_lshl_b32 s45, s42, 12")
    a(f"s_add_u32 s45, s45, {G2_AT}")
    a("v_add_u32 v21, s45, v21")
    a("v_and_b32 v15, 1, v5")
    a("v_lshlrev_b32 v15, 5, v15")
    a("v_lshl_add_u32 v15, v7, 4, v15")
    a("v_lshrrev_b32 v5, 1, v5")
    a("v_lshl_add_u32 v15, v5, 3, v15")
    a("v_xor_b32 v22, s42, v22")
    a("v_lshl_add_u32 v15, v22, 6, v15")
    a("v_lshl_add_u32 v6, v4, 3, v6")
    a("v_lshl_add_u32 v15, v6, 7, v15")
    a("v_add_u32 v20, 8192, v15")
    if OUT_STAGE:
        a("s_lshl_b32 s45, s41, 5")
        a("v_add_u32 v8, s45, v3")
        a("v_mul_u32_u24 v8, 144, v8")
        a("v_lshl_add_u32 v8, v4, 5, v8")
        a("s_lshl_b32 s45, s42, 6")
        a(f"s_add_u32 s45, s45, {G2_OUT}")
        a("v_add_u32 v8, s45, v8")
        a("v_lshrrev_b32 v10, 3, v1")
        a("v_and_b32 v11, 7, v1")
        a("v_mul_u32_u24 v9, 144, v10")
        a("v_lshl_add_u32 v9, v11, 4, v9")
        a(f"s_mul_i32 s45, s34, {16*144}")
        a(f"s_add_u32 s45, s45, {G2_OUT}")
        a("v_add_u32 v9, s45, v9")
        a("v_lshlrev_b32 v10, 10, v10")
        a("v_lshl_add_u32 v10, v11, 4, v10")
        a("s_lshl_b32 s46, s34, 4")
        a("s_add_u32 s46, s46, s32")
        a("s_lshl_b32 s46, s46, 10")
        a("s_lshl_b32 s47, s33, 1")
        a("s_add_u32 s46, s46, s47")
        a("s_add_u32 s47, s46, 8192")
    a("s_waitcnt lgkmcnt(0)")
    srd(a, 24, 4, L * D * 2)
    srd(a, 28, 10, L * D * 2)
    a("buffer_load_dwordx4 v[24:27], v14, s[24:27], s44 offen")
    a("buffer_load_dwordx4 v[28:31], v14, s[24:27], s44 offen offset:16")

    ACC = 32
    FS = [48, 80]
    XA = 112
    ATR = 128
    AT_ST = 10

    def reads(st):
        f = FS[st & 1]
        o = (st % 4) * G2_STAGE
        out = []
        for ks in range(4):
            out.append(f"ds_read_b64_tr_b16 {vr(f+8*ks,2)}, v20 offset:{o+ks*2048}")
            out.append(f"ds_read_b64_tr_b16 {vr(f+8*ks+2,2)}, v20 offset:{o+ks*2048+512}")
            out.append(f"ds_read_b128 {vr(f+8*ks+4,4)}, v{16+ks} offset:{o}")
        return out

    def mfmas(st):
        f = FS[st & 1]
        c = vr(ACC, 16)
        return [f"v_mfma_f32_32x32x16_bf16 {c}, {vr(f+8*ks,4)}, {vr(f+8*ks+4,4)}, "
                f"{'0' if st == 0 and ks == 0 else c}" for ks in range(4)]

    def xa_ops(k):
        x, t = XA + 2 * k, 4
        return [f"v_lshlrev_b32 v{x}, 16, v{24+k}",
                f"v_and_b32 v{x+1}, 0xffff0000, v{24+k}",
                f"v_lshlrev_b32 v{t}, 16, v{ATR+k}",
                f"v_and_b32 v{t+1}, 0xffff0000, v{ATR+k}",
                f"v_pk_add_f32 {vr(x,2)}, {vr(x,2)}, {vr(t,2)}",
                f"v_cvt_pk_bf16_f32 v{x+1}, v{x}, v{x+1}",
                f"v_lshlrev_b32 v{x}, 16, v{x+1}",
                f"v_and_b32 v{x+1}, 0xffff0000, v{x+1}"]

    for st in range(-1, G2_NST):
        nx = st + 1
        body = []
        if nx < G2_NST:
            if nx in (0, 8, 16):
                stamp(a)
            a("s_waitcnt lgkmcnt(0)" if nx != AT_ST + 1 else "s_waitcnt vmcnt(0) lgkmcnt(0)")
            a("s_barrier")
            if nx and nx % 4 == 0:
                delta = 65536 if (nx % G2_NS) == 4 else -65536
                for r in (16, 17, 18, 19, 20):
                    a(f"v_add_u32 v{r}, {delta & 0xffffffff:#x}, v{r}")
            body = reads(nx)
            if nx == AT_ST:
                body += [f"ds_read_b64_tr_b16 {vr(ATR+2*i,2)}, v21 offset:{512*i}" for i in range(4)]
        else:
            a("s_waitcnt lgkmcnt(0)")
        if st >= 0:
            body = interleave(body, mfmas(st), every=3) if body else mfmas(st)
        if AT_ST < nx <= AT_ST + 4:
            k = 2 * (nx - AT_ST - 1)
            body += xa_ops(k) + xa_ops(k + 1)
        for op in body:
            a(op)
    a("s_nop 15")
    stamp(a)
    for k in range(8):
        a(f"v_cvt_pk_bf16_f32 v{48+k}, v{ACC+2*k}, v{ACC+2*k+1}")
    for k in range(8):
        a(f"v_lshlrev_b32 v{ACC+2*k}, 16, v{48+k}")
        a(f"v_and_b32 v{ACC+2*k+1}, 0xffff0000, v{48+k}")
    for k in range(8):
        a(f"v_pk_add_f32 {vr(ACC+2*k,2)}, {vr(ACC+2*k,2)}, {vr(XA+2*k,2)}")
    for k in range(8):
        a(f"v_cvt_pk_bf16_f32 v{56+k}, v{ACC+2*k}, v{ACC+2*k+1}")
        if k == 3:
            a("ds_write_b128 v8, v[56:59]" if OUT_STAGE else
              "buffer_store_dwordx4 v[56:59], v14, s[28:31], s44 offen" + WT["out"])
    if OUT_STAGE:
        a("ds_write_b128 v8, v[60:63] offset:16")
        a("s_waitcnt lgkmcnt(0)")
        a("s_barrier")
        a("ds_read_b128 v[64:67], v9")
        a(f"ds_read_b128 v[68:71], v9 offset:{8*144}")
        a("s_waitcnt lgkmcnt(1)")
        a("buffer_store_dwordx4 v[64:67], v10, s[28:31], s46 offen" + WT["out"])
        a("s_waitcnt lgkmcnt(0)")
        a("buffer_store_dwordx4 v[68:71], v10, s[28:31], s47 offen" + WT["out"])
    else:
        a("buffer_store_dwordx4 v[60:63], v14, s[28:31], s44 offen offset:16" + WT["out"])
    stamp_end(a, 2, 6)
    a.label("k3_exit")
    a("s_endpgm")


def gen_k4(a):
    a.raw(".p2align 8")
    a.label("k4_kernel")
    a("s_cmp_ge_u32 s2, 1")
    a("s_cbranch_scc1 k4_exit")
    a(f"s_load_dwordx4 s[4:7], s[0:1], {KA_DBG}")
    a("s_memrealtime s[20:21]")
    a("s_waitcnt lgkmcnt(0)")
    srd(a, 8, 6, 0x1000000, PROF_BASE)
    srd(a, 12, 4, 256)
    groups = [(0, 0, 256, 0, 4), (0, 0, 256, 4, 8), (1, 0, 176, 0, 4), (1, 176, 240, 0, 8), (2, 0, 256, 0, 4)]
    for gi, (l, lo, hi, w0, w1) in enumerate(groups):
        a("v_mov_b32 v4, -1")
        a("v_mov_b32 v5, 0")
        for base in range(lo, hi, 64):
            n = min(64, hi - base)
            a(f"v_min_u32 v2, {n-1}, v0")
            a(f"v_add_u32 v2, {l*512 + base}, v2")
            a("v_lshlrev_b32 v2, 10, v2")
            for w in range(w0, w1):
                a(f"buffer_load_dwordx2 {vr(8+2*(w-w0),2)}, v2, s[8:11], 0 offen offset:{64*w}")
            a("s_waitcnt vmcnt(0)")
            for w in range(w0, w1):
                a(f"v_min_u32 v4, v4, v{8+2*(w-w0)}")
                a(f"v_max_u32 v5, v5, v{9+2*(w-w0)}")
        a("s_mov_b32 s22, -1")
        a("s_mov_b32 s23, 0")
        for ln in range(64):
            a(f"v_readlane_b32 s24, v4, {ln}")
            a(f"v_readlane_b32 s25, v5, {ln}")
            a("s_nop 1")
            a("s_min_u32 s22, s22, s24")
            a("s_max_u32 s23, s23, s25")
        a(f"s_mov_b32 s{30+2*gi}, s22")
        a(f"s_mov_b32 s{31+2*gi}, s23")
    a("v_mov_b32 v3, 0")
    for i in range(10):
        a(f"s_sub_u32 s24, s{30+i}, s30")
        a("v_mov_b32 v6, s24")
        a(f"buffer_store_dword v6, v3, s[12:15], 0 offen offset:{4*i}")
        a("s_nop 1")
    a("s_sub_u32 s24, s20, s30")
    a("v_mov_b32 v6, s24")
    a("buffer_store_dword v6, v3, s[12:15], 0 offen offset:40")
    if SPIN:
        hi, lo = SPIN
        a("s_max_u32 s31, s31, s33")
        a("s_min_u32 s34, s34, s36")
        a("s_max_u32 s35, s35, s37")
        a(f"s_sub_u32 s24, s{hi}, s{lo}")
        a("s_min_u32 s24, s24, 3000")
        a("s_lshl_b32 s24, s24, 2")
        a("s_memrealtime s[26:27]")
        a("s_waitcnt lgkmcnt(0)")
        a("s_add_u32 s24, s24, s26")
        a.label("k4_spin")
        a("s_memrealtime s[26:27]")
        a("s_waitcnt lgkmcnt(0)")
        a("s_sub_u32 s25, s24, s26")
        a("s_cmp_gt_i32 s25, 0")
        a("s_cbranch_scc1 k4_spin")
    a.label("k4_exit")
    a("s_endpgm")


def descriptor(name, vgpr, sgpr):
    acc = (vgpr + 3) // 4 * 4
    return f""".p2align 6
.amdhsa_kernel {name}
  .amdhsa_next_free_vgpr {vgpr}
  .amdhsa_next_free_sgpr {sgpr}
  .amdhsa_accum_offset {acc}
  .amdhsa_group_segment_fixed_size 0
  .amdhsa_kernarg_size 112
  .amdhsa_user_sgpr_count 2
  .amdhsa_user_sgpr_kernarg_segment_ptr 1
  .amdhsa_system_sgpr_workgroup_id_x 1
.end_amdhsa_kernel
"""


HEADER = """
out = x + (S4D causal conv(xn) + xn*D) + ReGLU-MLP(xn), xn = LayerNorm(x); bf16 rounding points follow the reference.
kernarg: A_u, log_A_real, A_imag, C_real, C_imag, log_dt, D_skip, B_x, W_gate, W_up, W_down, out, dbg, ws
k1: waves 0-3 build the S4D kernel table of 2 channels (exp(a*p) factorised as X[hi] * Y[lo], summed over n by MFMA,
    only the 641 positions a bf16 index can take); waves 4-7 LayerNorm 8 rows -> xn and time-blocked xn^T.
k2: WGs 0-175 gate/up GEMM (256 x 64 tiles, 4 MFMA waves + 4 LDS-DMA waves) -> h; WGs 176-239 causal convolution,
    one channel per wave, Toeplitz fragments by MFMA (taps >= 1029 through exact window sums, K is constant over
    each bf16 rounding group); WGs 240-255 rewrite W_down tile by tile.
k3: down GEMM (64 x 64 tiles, 4 MFMA waves + 8 LDS-DMA waves) and the final sum.
"""


def main(path):
    a = Asm()
    for ln in HEADER.strip("\n").split("\n"):
        a.raw(("; " + ln).rstrip())
    a.raw(f"; @launch kernel=k1_kernel grid=({N_K1},1,1) block=(512,1,1) lds={K1_LDS}")
    a.raw(f"; @launch kernel=k2_kernel grid=({N_G1+N_CV+N_RL},1,1) block=(512,1,1) lds={K2_LDS}")
    a.raw(f"; @launch kernel=k3_kernel grid=({N_G2},1,1) block=(768,1,1) lds={K3_LDS}")
    if K4:
        a.raw("; @launch kernel=k4_kernel grid=(1,1,1) block=(64,1,1) lds=0")
    a.raw('.amdgcn_target "amdgcn-amd-amdhsa--gfx950"')
    a.raw(".text")
    for k in ("k1_kernel", "k2_kernel", "k3_kernel") + (("k4_kernel",) if K4 else ()):
        a.raw(f".globl {k}")
        a.raw(f".type {k},@function")
    gen_k1(a)
    gen_k2(a)
    gen_k3(a)
    a.label("code_end")
    if K4:
        gen_k4(a)
    a.raw('.section .rodata,"a"')
    if K4:
        a.raw(descriptor("k4_kernel", 32, 48))
    sg = 102 if PROF else 0
    a.raw(descriptor("k1_kernel", 164, max(sg, 74)))
    a.raw(descriptor("k2_kernel", 256, max(sg, 56)))
    a.raw(descriptor("k3_kernel", 136, max(sg, 56)))
    open(path, "w").write(a.text())


if __name__ == "__main__":
    for arg in list(sys.argv):
        if arg.startswith("--prio="):
            PRIO = int(arg[7:])
            sys.argv.remove(arg)
        if arg.startswith("--g2map="):
            G2_MAP = int(arg[8:])
            sys.argv.remove(arg)
        if arg.startswith("--lead="):
            G2_LEAD = int(arg[7:])
            sys.argv.remove(arg)
        if arg == "--nooutstage":
            OUT_STAGE = False
            sys.argv.remove(arg)
        if arg.startswith("--pf="):
            PF_MODE = arg[5:]
            sys.argv.remove(arg)
        if arg.startswith("--spin="):
            SPIN = tuple(int(x) for x in arg[7:].split(","))
            sys.argv.remove(arg)
        if arg.startswith("--wt="):
            flag, names = arg[5:].split(":")
            for nm in names.split(","):
                WT[nm] = (" " + flag.replace("+", " ")).rstrip()
            sys.argv.remove(arg)
        if arg.startswith("--epi="):
            EPI = arg[6:]
            sys.argv.remove(arg)
    if "--nocodepf" in sys.argv:
        sys.argv.remove("--nocodepf")
        CODE_PF = False
    if "--notouch" in sys.argv:
        sys.argv.remove("--notouch")
        TOUCH = False
    if "--k4" in sys.argv:
        sys.argv.remove("--k4")
        K4 = PROF = True
    if "--prof" in sys.argv:
        sys.argv.remove("--prof")
        PROF = True
    main(sys.argv[1] if len(sys.argv) > 1 else f"cdna_kernels/{NAME}.s")
```

```python
import struct
import sys

NAME = "parallel_sum__ssm_conv_s4d__glu_gated_reglu__prompt"

L, D, N, F = 2048, 512, 128, 1376
FP = 1408
WS_XN = 0x000000
WS_XNT = 0x240000
WS_KR = 0x480000
WS_H = 0x880000
WS_AT = 0xE80000
XN_STRIDE = 1024 + 128
XN_BYTES = L * XN_STRIDE
H_STRIDE = 2 * FP + 128
H_BYTES = L * H_STRIDE
XNT_STRIDE = 8192 + 128
XNT_BYTES = (L // 8) * XNT_STRIDE
W_BYTES = D * F * 2
WS_WDT = WS_AT + L * D * 2
WDT_TILE = FP * 128
WS_END = WS_WDT + 8 * WDT_TILE
TOUCH = False
CODE_PF = True
PF_MODE = "touch"
PRIO = 0
G2_MAP = 0
G1_MAP = True
EPI = "dot"
WT = dict(xn=" sc1", xnt=" sc1", k="", at=" sc1", wdt=" sc1", h=" sc1", out="")

KA_U, KA_LAR, KA_AI, KA_CR, KA_CI, KA_LDT, KA_DSK, KA_BX, KA_WG, KA_WU, KA_WD, KA_OUT, KA_DBG, KA_WS = \
    [8 * i for i in range(14)]


def f32(x):
    return "0x%08x" % struct.unpack("<I", struct.pack("<f", x))[0]


class Asm:
    def __init__(self):
        self.lines = []

    def __call__(self, s):
        for ln in s.strip("\n").split("\n"):
            self.lines.append("  " + ln.strip())

    def label(self, s):
        self.lines.append(s + ":")

    def raw(self, s):
        self.lines.append(s)

    def text(self):
        return "\n".join(self.lines) + "\n"


PROF = False
K4 = False
SPIN = None
PROF_BASE = 0x1400000
_stamp_n = [0]


def stamp_begin(a):
    _stamp_n[0] = 0
    if PROF:
        a("s_memrealtime s[80:81]")
        a("s_memtime s[82:83]")
        _stamp_n[0] = 1


def stamp(a):
    if PROF:
        k = _stamp_n[0]
        a(f"s_memtime s[{82+2*k}:{83+2*k}]")
        _stamp_n[0] += 1


def stamp_end(a, launch, ws_lo):
    if not PROF:
        return
    stamp(a)
    n = _stamp_n[0]
    a("s_waitcnt lgkmcnt(0)")
    a("s_memrealtime s[98:99]")
    a(f"s_add_u32 s76, s{ws_lo}, {PROF_BASE}")
    a(f"s_addc_u32 s77, s{ws_lo+1}, 0")
    a("s_mov_b32 s78, 0x1000000")
    a("s_mov_b32 s79, 0x00020000")
    a("v_lshrrev_b32 v2, 6, v0")
    a(f"s_add_u32 s75, s2, {launch*512}")
    a("s_lshl_b32 s75, s75, 10")
    a("v_lshlrev_b32 v2, 6, v2")
    a("v_add_u32 v2, s75, v2")
    a("s_waitcnt lgkmcnt(0)")
    a("v_mov_b32 v4, s80")
    a("v_mov_b32 v5, s98")
    a("buffer_store_dwordx2 v[4:5], v2, s[76:79], 0 offen")
    for k in range(n):
        a(f"v_mov_b32 v6, s{82+2*k}")
        a(f"buffer_store_dword v6, v2, s[76:79], 0 offen offset:{8+4*k}")
        a("s_nop 1")


def vr(b, n):
    return "v[%d:%d]" % (b, b + n - 1)


def sr(b, n):
    return "s[%d:%d]" % (b, b + n - 1)


def srd(a, dst, base, nbytes, add=0):
    if add:
        a(f"s_add_u32 s{dst}, s{base}, {add}")
        a(f"s_addc_u32 s{dst+1}, s{base+1}, 0")
    else:
        a(f"s_mov_b32 s{dst}, s{base}")
        a(f"s_mov_b32 s{dst+1}, s{base+1}")
    a(f"s_mov_b32 s{dst+2}, {nbytes}")
    a(f"s_mov_b32 s{dst+3}, 0x00020000")


_pc_n = [0]


def code_prefetch(a, lo, hi, slice_sgpr, lane16, dst, sbase):
    _pc_n[0] += 1
    lab = f"pc_ref{_pc_n[0]}"
    a(f"s_getpc_b64 {sr(sbase,2)}")
    a.label(lab)
    a(f"s_add_u32 s{sbase}, s{sbase}, ({lo} - {lab}) & 0xffffffff")
    a(f"s_addc_u32 s{sbase+1}, s{sbase+1}, (({lo} - {lab}) >> 32) & 0xffffffff")
    a(f"s_mov_b32 s{sbase+2}, {hi} - {lo}")
    a(f"s_mov_b32 s{sbase+3}, 0x00020000")
    a(f"s_lshl_b32 s{slice_sgpr}, s{slice_sgpr}, 10")
    a(f"buffer_load_dwordx4 {vr(dst,4)}, v{lane16}, {sr(sbase,4)}, s{slice_sgpr} offen")


def interleave(main, fill, every=1, start=0):
    out = []
    fill = list(fill)
    for i, m in enumerate(main):
        out.append(m)
        if i >= start and (i - start) % every == every - 1 and fill:
            out.append(fill.pop(0))
    out.extend(fill)
    return out


N_K1 = 256
LN_STRIDE = 1088
KG_ROW = 544
KG_XA, KG_YB, KG_T = 0, 24 * KG_ROW, 56 * KG_ROW
KG_CH = KG_T + 3072
LN_LDS = 2 * KG_CH
K1_LDS = LN_LDS + 8 * LN_STRIDE
LOG2E = 1.4426950408889634
L_HI = 47274.0 / 32768.0
C_LO = (LOG2E - L_HI) * 0.6931471805599453
T_BIAS = 0x3F7F
KT_BYTES = 3072
KT_O, KT_TAB = 1024, 2048
PF_W = 6


def dpp_reduce(a, regs):
    steps = ["row_shr:1 row_mask:0xf bank_mask:0xf bound_ctrl:0",
             "row_shr:2 row_mask:0xf bank_mask:0xf bound_ctrl:0",
             "row_shr:4 row_mask:0xf bank_mask:0xf bound_ctrl:0",
             "row_shr:8 row_mask:0xf bank_mask:0xf bound_ctrl:0",
             "row_bcast:15 row_mask:0xa bank_mask:0xf",
             "row_bcast:31 row_mask:0xc bank_mask:0xf"]
    a("s_nop 1")
    for st in steps:
        for r in regs:
            a(f"v_add_f32_dpp v{r}, v{r}, v{r} {st}")
    a("s_nop 1")


def bf16_round(a, dst, src):
    a(f"v_cvt_pk_bf16_f32 v{dst}, v{src}, v{src}")
    a(f"v_lshlrev_b32 v{dst}, 16, v{dst}")


def gen_ln(a):
    stamp_begin(a)
    if CODE_PF:
        a("v_lshlrev_b32 v3, 4, v1")
        a("s_lshr_b32 s45, s2, 3")
        a("s_lshl_b32 s45, s45, 1")
        a("s_sub_u32 s46, s44, 6")
        a("s_add_u32 s45, s45, s46")
        a("s_cmp_lt_u32 s44, 6")
        a("s_cbranch_scc1 k1_no_pf")
        code_prefetch(a, "k1_kernel", "code_end", 45, 3, 76, 56)
        a("s_branch k1_pf_done")
        a.label("k1_no_pf")
        a("s_nop 0")
        a.label("k1_pf_done")
    a(f"s_load_dwordx2 s[4:5], s[0:1], {KA_U}")
    a(f"s_load_dwordx2 s[6:7], s[0:1], {KA_WS}")
    a(f"s_load_dwordx4 s[48:51], s[0:1], {KA_WG}")
    a(f"s_load_dwordx4 s[68:71], s[0:1], {KA_WD}")
    a(f"s_load_dwordx2 s[54:55], s[0:1], {KA_DSK}")
    a("s_sub_u32 s22, s44, 4")
    a("s_and_b32 s20, s2, 7")
    a("s_lshr_b32 s21, s2, 3")
    a("s_lshl_b32 s20, s20, 8")
    a("s_lshl_b32 s23, s21, 3")
    a("s_add_u32 s20, s20, s23")
    a("s_lshl_b32 s23, s22, 1")
    a("s_add_u32 s23, s23, s20")
    a("s_lshl_b32 s24, s23, 10")
    a(f"s_mul_i32 s53, s23, {XN_STRIDE}")
    a("v_lshlrev_b32 v3, 4, v1")
    a("s_lshl_b32 s52, s2, 2")
    a("s_add_u32 s52, s52, s22")
    a("s_lshl_b32 s52, s52, 11")
    a(f"s_mul_i32 s25, s22, {2*LN_STRIDE}")
    a(f"s_add_u32 s25, s25, {LN_LDS}")
    a("v_add_u32 v4, s25, v3")
    a("v_and_b32 v5, 15, v1")
    a("v_lshrrev_b32 v6, 2, v5")
    a("v_and_b32 v5, 3, v5")
    a("v_lshrrev_b32 v7, 4, v1")
    a(f"v_mul_u32_u24 v6, {LN_STRIDE}, v6")
    a("v_lshlrev_b32 v5, 3, v5")
    a("v_lshl_add_u32 v5, v7, 5, v5")
    a("v_add_u32 v5, v5, v6")
    a("s_lshl_b32 s26, s22, 8")
    a(f"s_add_u32 s26, s26, {LN_LDS}")
    a("v_add_u32 v5, s26, v5")
    a("s_lshl_b32 s27, s22, 7")
    a("v_add_u32 v6, s27, v1")
    a("v_lshlrev_b32 v6, 4, v6")
    a(f"s_mul_i32 s28, s20, {XNT_STRIDE // 8}")
    a("s_waitcnt lgkmcnt(0)")
    srd(a, 8, 4, L * D * 2)
    for r in range(2):
        a(f"buffer_load_dwordx4 {vr(8+4*r,4)}, v3, s[8:11], s24 offen offset:{r*1024}")
    srd(a, 56, 48, W_BYTES)
    srd(a, 60, 50, W_BYTES)
    srd(a, 64, 68, W_BYTES)
    if TOUCH:
        a("s_cmp_ge_u32 s2, 16")
        a("s_cbranch_scc1 k1_no_touch")
        srd(a, 12, 6, WS_END)
        srd(a, 16, 70, L * D * 2)
        a("v_lshlrev_b32 v60, 18, v1")
        a("s_lshl_b32 s45, s22, 16")
        a("buffer_load_dword v61, v60, s[12:15], s45 offen")
        a("v_lshlrev_b32 v60, 15, v1")
        a(f"s_mov_b32 s45, {1 << 24}")
        a("buffer_load_dword v61, v60, s[12:15], s45 offen")
        a("buffer_load_dword v61, v60, s[16:19], 0 offen")
        srd(a, 16, 54, D * 2)
        a("buffer_load_dword v61, v3, s[16:19], 0 offen")
        for i in range(2):
            a(f"buffer_load_dwordx4 v[72:75], v3, s[56:59], s52 offen offset:{i*1024}")
        a("s_branch k1_touched")
        a.label("k1_no_touch")
    if PF_MODE == "full":
        for i in range(2):
            for b in (56, 60, 64):
                a(f"buffer_load_dwordx4 v[72:75], v3, {sr(b,4)}, s52 offen offset:{i*1024}")
    elif PF_MODE == "gu":
        for i in range(2):
            for b in (56, 60):
                a(f"buffer_load_dwordx4 v[72:75], v3, {sr(b,4)}, s52 offen offset:{i*1024}")
    elif PF_MODE == "touch2":
        a("v_and_b32 v62, 15, v1")
        a("v_lshlrev_b32 v62, 7, v62")
        a("v_min_u32 v62, 1404, v62")
        a("s_lshr_b32 s52, s2, 1")
        a("s_lshl_b32 s52, s52, 2")
        a("s_add_u32 s52, s52, s22")
        a(f"s_mul_i32 s52, s52, {2*F}")
        a("s_and_b32 s55, s2, 1")
        a("s_mul_i32 s55, s55, 1408")
        a("s_add_u32 s52, s52, s55")
        for b in (56, 60):
            a(f"buffer_load_dword v72, v62, {sr(b,4)}, s52 offen")
    elif PF_MODE == "touch":
        a("v_and_b32 v62, 15, v1")
        a("v_lshlrev_b32 v62, 7, v62")
        for b in (56, 60):
            a(f"buffer_load_dword v72, v62, {sr(b,4)}, s52 offen")
    if TOUCH:
        a.label("k1_touched")
    srd(a, 12, 6, XN_BYTES, WS_XN)
    srd(a, 16, 6, XNT_BYTES, WS_XNT)
    X = lambda r, e: 32 + 8 * r + e
    stamp(a)
    for r in range(2):
        a(f"s_waitcnt vmcnt({dict(full=6, gu=4, touch=2, touch2=2, none=0)[PF_MODE] + 1 - r})")
        if r == 0:
            stamp(a)
        for k in range(4):
            a(f"v_lshlrev_b32 v{X(r,2*k)}, 16, v{8+4*r+k}")
            a(f"v_and_b32 v{X(r,2*k+1)}, 0xffff0000, v{8+4*r+k}")
        a(f"v_readfirstlane_b32 s{30+2*r}, v{X(r,0)}")
        a(f"v_pk_add_f32 v[48:49], {vr(X(r,0),2)}, {vr(X(r,2),2)}")
        a(f"v_pk_add_f32 v[50:51], {vr(X(r,4),2)}, {vr(X(r,6),2)}")
        a(f"s_mov_b32 s{31+2*r}, s{30+2*r}")
        a("v_pk_add_f32 v[48:49], v[48:49], v[50:51]")
        for k in range(4):
            a(f"v_pk_add_f32 {vr(52+2*k,2)}, {vr(X(r,2*k),2)}, {sr(30+2*r,2)} neg_lo:[0,1] neg_hi:[0,1]")
        a(f"v_add_f32 v{24+2*r}, v48, v49")
        a("v_pk_mul_f32 v[50:51], v[52:53], v[52:53]")
        a("v_pk_mul_f32 v[48:49], v[54:55], v[54:55]")
        a("v_pk_fma_f32 v[50:51], v[56:57], v[56:57], v[50:51]")
        a("v_pk_fma_f32 v[48:49], v[58:59], v[58:59], v[48:49]")
        a("v_pk_add_f32 v[48:49], v[48:49], v[50:51]")
        a(f"v_add_f32 v{25+2*r}, v48, v49")
    dpp_reduce(a, [24, 25, 26, 27])
    for r in range(2):
        a(f"v_mul_f32 v{24+2*r}, {f32(1.0/512)}, v{24+2*r}")
        a(f"v_mul_f32 v{25+2*r}, {f32(1.0/512)}, v{25+2*r}")
    for r in range(2):
        a(f"v_subrev_f32 v{28+r}, s{30+2*r}, v{24+2*r}")
        bf16_round(a, 24 + 2 * r, 24 + 2 * r)
    for r in range(2):
        a(f"v_fma_f32 v{25+2*r}, -v{28+r}, v{28+r}, v{25+2*r}")
        a(f"v_max_f32 v{25+2*r}, 0, v{25+2*r}")
    for r in range(2):
        bf16_round(a, 25 + 2 * r, 25 + 2 * r)
    for r in range(2):
        a(f"v_add_f32 v{25+2*r}, {f32(1e-5)}, v{25+2*r}")
        a(f"v_readlane_b32 s{36+2*r}, v{24+2*r}, 63")
    for r in range(2):
        bf16_round(a, 25 + 2 * r, 25 + 2 * r)
    for r in range(2):
        a(f"v_sqrt_f32 v{25+2*r}, v{25+2*r}")
    for r in range(2):
        a(f"s_mov_b32 s{37+2*r}, s{36+2*r}")
    for r in range(2):
        bf16_round(a, 25 + 2 * r, 25 + 2 * r)
    for r in range(2):
        a(f"v_rcp_f32 v{25+2*r}, v{25+2*r}")
    for r in range(2):
        for k in range(4):
            a(f"v_pk_add_f32 {vr(X(r,2*k),2)}, {vr(X(r,2*k),2)}, {sr(36+2*r,2)} neg_lo:[0,1] neg_hi:[0,1]")
    for r in range(2):
        a(f"v_readlane_b32 s{40+2*r}, v{25+2*r}, 63")
    for r in range(2):
        for k in range(4):
            a(f"v_cvt_pk_bf16_f32 v{8+4*r+k}, v{X(r,2*k)}, v{X(r,2*k+1)}")
    for r in range(2):
        a(f"s_mov_b32 s{41+2*r}, s{40+2*r}")
    for r in range(2):
        for k in range(4):
            a(f"v_lshlrev_b32 v{X(r,2*k)}, 16, v{8+4*r+k}")
            a(f"v_and_b32 v{X(r,2*k+1)}, 0xffff0000, v{8+4*r+k}")
        for k in range(4):
            a(f"v_pk_mul_f32 {vr(X(r,2*k),2)}, {vr(X(r,2*k),2)}, {sr(40+2*r,2)}")
        for k in range(4):
            a(f"v_cvt_pk_bf16_f32 v{16+4*r+k}, v{X(r,2*k)}, v{X(r,2*k+1)}")
        a(f"ds_write_b128 v4, {vr(16+4*r,4)} offset:{r*LN_STRIDE}")
        a(f"buffer_store_dwordx4 {vr(16+4*r,4)}, v3, s[12:15], s53 offen offset:{r*XN_STRIDE}" + WT["xn"])
    a("s_waitcnt lgkmcnt(0)")
    stamp(a)
    a("s_barrier")
    for blk in range(2):
        for tb in range(2):
            a(f"ds_read_b64_tr_b16 {vr(32+4*blk+2*tb,2)}, v5 offset:{blk*128 + tb*4*LN_STRIDE}")
    a("s_waitcnt lgkmcnt(2)")
    a("buffer_store_dwordx4 v[32:35], v6, s[16:19], s28 offen" + WT["xnt"])
    a("s_waitcnt lgkmcnt(0)")
    a("buffer_store_dwordx4 v[36:39], v6, s[16:19], s28 offen offset:1024" + WT["xnt"])
    stamp_end(a, 0, 6)
    a("s_endpgm")


def exp_acc(a, dst, x, t):
    a(f"v_mul_f32 v{dst}, {f32(L_HI)}, v{x}")
    a(f"v_exp_f32 v{dst}, v{dst}")
    a(f"v_mul_f32 v{t}, {f32(C_LO)}, v{x}")
    a(f"v_fma_f32 v{dst}, v{dst}, v{t}, v{dst}")


def cmul(t, z, w):
    return [f"v_pk_mul_f32 {vr(t,2)}, {vr(z,2)}, {vr(w,2)} op_sel:[0,0] op_sel_hi:[1,0]",
            f"v_pk_fma_f32 {vr(t,2)}, {vr(z,2)}, {vr(w,2)}, {vr(t,2)} op_sel:[1,1,0] op_sel_hi:[0,1,1] "
            f"neg_lo:[1,0,0]"]


def gen_kgen(a):
    stamp_begin(a)
    a(f"s_load_dwordx8 s[4:11], s[0:1], {KA_LAR}")
    a(f"s_load_dwordx2 s[12:13], s[0:1], {KA_LDT}")
    a(f"s_load_dwordx2 s[14:15], s[0:1], {KA_WS}")
    a("s_and_b32 s41, s2, 7")
    a("s_lshr_b32 s42, s2, 3")
    a("s_lshr_b32 s43, s42, 2")
    a("s_lshl_b32 s43, s43, 6")
    a("s_lshl_b32 s41, s41, 3")
    a("s_add_u32 s41, s41, s43")
    a("s_and_b32 s42, s42, 3")
    a("s_lshl_b32 s42, s42, 1")
    a("s_add_u32 s41, s41, s42")
    a("s_lshr_b32 s45, s44, 1")
    a("s_and_b32 s46, s44, 1")
    a("s_add_u32 s47, s41, s45")
    a("s_lshl_b32 s48, s46, 6")
    a("v_add_u32 v3, s48, v1")
    a("s_lshl_b32 s49, s47, 8")
    a("v_lshlrev_b32 v4, 1, v3")
    a("s_lshl_b32 s50, s47, 1")
    a("v_mov_b32 v5, s50")
    a("s_waitcnt lgkmcnt(0)")
    srd(a, 16, 4, D * N * 2)
    srd(a, 32, 12, D * 2)
    a("buffer_load_ushort v8, v4, s[16:19], s49 offen")
    a("buffer_load_ushort v12, v5, s[32:35], 0 offen")
    srd(a, 20, 6, D * N * 2)
    a("buffer_load_ushort v9, v4, s[20:23], s49 offen")
    srd(a, 24, 8, D * N * 2)
    a("buffer_load_ushort v10, v4, s[24:27], s49 offen")
    srd(a, 28, 10, D * N * 2)
    a("buffer_load_ushort v11, v4, s[28:31], s49 offen")
    srd(a, 36, 14, D * KT_BYTES, WS_KR)
    a(f"s_mul_i32 s51, s45, {KG_CH}")
    a("v_lshlrev_b32 v6, 2, v3")
    a("v_add_u32 v6, s51, v6")
    a("v_and_b32 v7, 15, v1")
    a("v_lshrrev_b32 v2, 4, v1")
    a(f"v_mul_u32_u24 v13, {KG_ROW}, v7")
    a("v_lshl_add_u32 v13, v2, 4, v13")
    a("v_add_u32 v100, s51, v13")
    a(f"s_mul_i32 s52, s46, {16*KG_ROW}")
    a("v_add_u32 v101, s52, v100")
    quads = [(0, 1), (4, 1), (256, 2), (512, 256)], [(1536, 256), (516, 256), (4097, 0), (4097, 0)]
    a("s_cmp_eq_u32 s46, 0")
    for q in range(4):
        a(f"s_mov_b32 s64, {f32(float(quads[0][q][0]))}")
        a(f"s_mov_b32 s65, {f32(float(quads[0][q][1]))}")
        a(f"s_cselect_b32 s{56+q}, s64, {f32(float(quads[1][q][0]))}")
        a(f"s_cselect_b32 s{60+q}, s65, {f32(float(quads[1][q][1]))}")
    a("v_mov_b32 v14, s56")
    a("v_mov_b32 v15, s60")
    for q in range(1, 4):
        a(f"v_cmp_eq_u32 vcc, {q}, v2")
        a(f"v_mov_b32 v16, s{56+q}")
        a(f"v_mov_b32 v17, s{60+q}")
        a("v_cndmask_b32 v14, v14, v16, vcc")
        a("v_cndmask_b32 v15, v15, v17, vcc")
    a("v_cvt_f32_u32 v16, v7")
    a("v_fmac_f32 v14, 0x41000000, v16")
    a(f"s_add_u32 s53, s51, {KG_T + KT_TAB - 2*0x4380}")
    a(f"s_add_u32 s54, s51, {KG_T + 3000}")
    a(f"s_add_u32 s57, s51, {KG_T + 510}")
    a(f"s_add_u32 s58, s51, {KG_T + KT_O + 512}")
    a("v_mov_b32 v19, s54")
    TW, TW2 = 102, 112
    for jt in range(2):
        for r in range(4):
            p = 20 + 4 * jt + r
            if r == 0:
                a(f"v_mov_b32 v{p}, v14" if jt == 0 else f"v_add_f32 v{p}, 0x43000000, v14")
            else:
                a(f"v_add_f32 v{p}, v{p-1}, v15")
    for i in range(8):
        p, b, b2 = 20 + i, TW + i, TW2 + i
        a(f"v_cvt_pk_bf16_f32 v{b}, v{p}, v{p}")
        a(f"v_cvt_u32_f32 v17, v{p}")
        a(f"v_and_b32 v16, 0xffff0000, v{b}")
        a(f"v_cmp_eq_u32 vcc, v16, v{p}")
        a(f"v_and_b32 v{b}, 0xffff, v{b}")
        a(f"v_lshl_add_u32 v{b}, v{b}, 1, s53")
        a(f"v_cndmask_b32 v{b}, v19, v{b}, vcc")
        a("v_lshlrev_b32 v16, 1, v17")
        a("v_cmp_gt_u32 vcc, 256, v17")
        a("v_sub_u32 v18, s57, v16")
        a(f"v_sub_u32 v{b2}, s58, v16")
        a(f"v_cndmask_b32 v{b}, v{b}, v18, vcc")
        a("v_cmp_ge_u32 vcc, 256, v17")
        a("s_nop 1")
        a(f"v_cndmask_b32 v{b2}, v19, v{b2}, vcc")
    a("v_mov_b32 v20, 0")
    a("v_mov_b32 v21, 0")
    a("v_mov_b32 v22, 0")
    a("v_mov_b32 v23, 0")
    a("v_and_b32 v16, 1, v1")
    a("v_lshlrev_b32 v16, 4, v16")
    a(f"s_mul_i32 s59, s46, {KT_O}")
    a("s_add_u32 s59, s59, s57")
    a("v_add_u32 v16, s59, v16")
    a("ds_write_b128 v16, v[20:23] offset:2")
    a("v_lshlrev_b32 v130, 4, v3")
    a(f"s_add_u32 s55, s51, {KG_T}")
    a("v_add_u32 v110, s55, v130")
    a(f"s_mul_i32 s55, s47, {KT_BYTES}")
    a("v_mov_b32 v14, 0x00003f80")
    a(f"ds_write_b32 v6, v14 offset:{KG_YB}")
    stamp(a)
    a("s_waitcnt vmcnt(3)")
    stamp(a)
    a("v_lshlrev_b32 v12, 16, v12")
    a("v_lshlrev_b32 v8, 16, v8")
    exp_acc(a, 13, 12, 14)
    exp_acc(a, 15, 8, 16)
    bf16_round(a, 13, 13)
    bf16_round(a, 15, 15)
    a("s_waitcnt vmcnt(2)")
    a("v_lshlrev_b32 v9, 16, v9")
    a("v_mul_f32 v15, v15, v13")
    a("v_mul_f32 v16, v9, v13")
    a(f"v_mul_f32 v15, {f32(-LOG2E)}, v15")
    a(f"v_mul_f32 v16, {f32(0.15915494309189535)}, v16")
    seeds = [(1, 20, 1), (256, 22, 1), (8, 24, -1), (64, 26, -1)]
    for i, (p, z, sg) in enumerate(seeds):
        a(f"v_mul_f32 v{32+i}, {f32(float(p))}, v15")
        a(f"v_mul_f32 v{36+i}, {f32(float(p*sg))}, v16")
    for i in range(4):
        a(f"v_exp_f32 v{32+i}, v{32+i}")
        a(f"v_fract_f32 v{36+i}, v{36+i}")
    for i, (p, z, sg) in enumerate(seeds):
        a(f"v_cos_f32 v{z}, v{36+i}")
        a(f"v_sin_f32 v{z+1}, v{36+i}")
    a("s_waitcnt vmcnt(0)")
    a("v_lshlrev_b32 v10, 16, v10")
    a("v_lshlrev_b32 v11, 16, v11")
    a("v_add_f32 v13, v13, v13")
    for i, (p, z, sg) in enumerate(seeds):
        a(f"v_mul_f32 v{z}, v{32+i}, v{z}")
        a(f"v_mul_f32 v{z+1}, v{32+i}, v{z+1}")
    a("v_mul_f32 v28, v10, v13")
    a("v_mul_f32 v29, v11, v13")
    E1, E256, Y8, Y64, C = 20, 22, 24, 26, 28
    E2, E4, Y128, Y192 = 40, 42, 44, 46

    def emit(z, off, t):
        return [f"v_cvt_pk_bf16_f32 v{t}, v{z}, v{z+1}", f"ds_write_b32 v6, v{t} offset:{off}"]

    xrow = lambda q, r: KG_XA + (4 * q + r) * KG_ROW
    yrow = lambda j: KG_YB + j * KG_ROW

    def chain(seed, ratio, offs, ra, rb, t, emit_seed=True):
        ops = []
        cur = seed
        for k, off in enumerate(offs):
            if k:
                nxt = ra if cur != ra else rb
                ops.append(cmul(nxt, cur, ratio))
                cur = nxt
            if k or emit_seed:
                ops.append(emit(cur, off, t))
        return ops

    pre = [cmul(E2, E1, E1), cmul(Y128, Y64, Y64), cmul(48, C, E256), cmul(E4, E2, E2), cmul(Y192, Y128, Y64)]
    for i in range(2):
        for op in pre[:3]:
            a(op[i])
    for i in range(2):
        for op in pre[3:]:
            a(op[i])
    a("\n".join(cmul(50, C, E4)))
    chains = [
        chain(Y8, Y8, [yrow(j) for j in range(1, 8)], 52, 54, 88),
        chain(Y64, Y8, [yrow(j) for j in range(8, 16)], 56, 58, 89),
        chain(Y128, Y8, [yrow(j) for j in range(16, 24)], 60, 62, 90),
        chain(Y192, Y8, [yrow(j) for j in range(24, 32)], 64, 66, 91),
        chain(C, E1, [xrow(0, r) for r in range(4)], 68, 70, 92)
        + chain(48, E2, [xrow(2, r) for r in range(4)], 68, 70, 92),
        chain(50, E1, [xrow(1, r) for r in range(4)], 72, 74, 93),
    ]
    far = []
    cur = 48
    offs = [xrow(3, 0), xrow(3, 1), xrow(3, 2), xrow(3, 3), xrow(4, 0), xrow(4, 1), xrow(4, 2)]
    for k, off in enumerate(offs):
        nxt = 76 if cur != 76 else 78
        far.append(cmul(nxt, cur, E256))
        cur = nxt
        far.append(emit(cur, off, 94))
        if k < 2:
            far.append(cmul(80, cur, E4))
            far.append(emit(80, xrow(5, k), 95))
    chains.append(far)
    while any(chains):
        units = [c.pop(0) for c in chains if c]
        for i in range(2):
            for u in units:
                a(u[i])
    a("s_waitcnt lgkmcnt(0)")
    stamp(a)
    a("s_barrier")
    for ks in range(8):
        a(f"ds_read_b128 {vr(132+4*ks,4)}, v101 offset:{KG_XA + ks*64}")
        a(f"ds_read_b128 {vr(32+4*ks,4)}, v100 offset:{KG_YB + ks*64}")
        a(f"ds_read_b128 {vr(64+4*ks,4)}, v100 offset:{KG_YB + 16*KG_ROW + ks*64}")
    for ks in range(8):
        a(f"s_waitcnt lgkmcnt({min(15, 3*(7-ks))})")
        c0 = "0" if ks == 0 else "v[20:23]"
        c1 = "0" if ks == 0 else "v[24:27]"
        a(f"v_mfma_f32_16x16x32_bf16 v[20:23], {vr(132+4*ks,4)}, {vr(32+4*ks,4)}, {c0}")
        a(f"v_mfma_f32_16x16x32_bf16 v[24:27], {vr(132+4*ks,4)}, {vr(64+4*ks,4)}, {c1}")
    a("s_nop 7")
    for i in range(8):
        a(f"v_cvt_pk_bf16_f32 v{20+i}, v{20+i}, v{20+i}")
        a(f"ds_write_b16 v{TW+i}, v{20+i}")
        a(f"ds_write_b16 v{TW2+i}, v{20+i}")
    a("s_waitcnt lgkmcnt(0)")
    stamp(a)
    a("s_barrier")
    a("ds_read_b128 v[32:35], v110")
    a("ds_read_b128 v[36:39], v110 offset:2048")
    a("s_waitcnt lgkmcnt(1)")
    a("buffer_store_dwordx4 v[32:35], v130, s[36:39], s55 offen" + WT["k"])
    a("s_cmp_lg_u32 s46, 0")
    a("s_cbranch_scc1 k1_kg_done")
    a("s_waitcnt lgkmcnt(0)")
    a("buffer_store_dwordx4 v[36:39], v130, s[36:39], s55 offen offset:2048" + WT["k"])
    a.label("k1_kg_done")
    stamp_end(a, 0, 14)
    a("s_endpgm")


def gen_k1(a):
    a.raw(".p2align 8")
    a.label("k1_kernel")
    a(f"s_cmp_ge_u32 s2, {N_K1}")
    a("s_cbranch_scc1 k1_exit")
    a("v_lshrrev_b32 v2, 6, v0")
    a("v_and_b32 v1, 63, v0")
    a("v_readfirstlane_b32 s44, v2")
    a("s_cmp_ge_u32 s44, 4")
    a("s_cbranch_scc1 k1_ln")
    gen_kgen(a)
    a.label("k1_ln")
    gen_ln(a)
    a.label("k1_exit")
    a("s_endpgm")


N_G1, N_CV, N_RL = 176, 64, 16
G1_STAGE = 49152
G1_W = 32768
K2_LDS = 3 * G1_STAGE
G1_NST = 8
CV_ZB, CV_PW = 32768, 32896
CV_O, CV_T, CV_G, CV_W = 2752, 5376, 6400, 7168


def gen_gemm1_loader(a):
    a("s_sub_u32 s30, s30, 4")
    a("v_lshrrev_b32 v3, 3, v1")
    a("v_and_b32 v4, 7, v1")
    a("v_lshrrev_b32 v5, 4, v1")
    a(f"v_mul_u32_u24 v14, {XN_STRIDE}, v3")
    for q in range(4):
        a(f"v_add_u32 v6, {4*q}, v5")
        a("v_and_b32 v6, 7, v6")
        a("v_xor_b32 v6, v6, v4")
        a("v_lshl_add_u32 v6, v6, 4, v14")
        a(f"v_add_u32 v{8+q}, {q*(8*XN_STRIDE-1024)}, v6")
    a("v_and_b32 v6, 1, v5")
    a("v_lshrrev_b32 v7, 2, v4")
    a("v_xor_b32 v6, v6, v7")
    a("v_and_b32 v7, 3, v4")
    a("v_lshlrev_b32 v7, 3, v7")
    a("v_lshl_add_u32 v6, v6, 5, v7")
    a("s_lshl_b32 s31, s29, 6")
    a("v_add_u32 v6, s31, v6")
    a(f"v_mul_u32_u24 v12, {2*F}, v3")
    a("v_lshl_add_u32 v12, v6, 1, v12")
    a(f"v_add_u32 v13, {8*2*F-1024}, v12")
    a(f"v_cmp_le_u32 vcc, {F}, v6")
    a("v_mov_b32 v7, 0x40000000")
    a(f"s_mul_i32 s32, s28, {256*XN_STRIDE}")
    a("v_cndmask_b32 v12, v12, v7, vcc")
    a("v_cndmask_b32 v13, v13, v7, vcc")
    a(f"s_mul_i32 s33, s30, {64*XN_STRIDE}")
    a("s_add_u32 s32, s32, s33")
    a(f"s_add_u32 s36, s32, {32*XN_STRIDE}")
    a(f"s_mul_i32 s33, s30, {16*2*F}")
    a("s_lshl_b32 s34, s30, 13")
    a("s_lshl_b32 s35, s30, 11")
    a(f"s_add_u32 s35, s35, {G1_W}")
    a("s_waitcnt lgkmcnt(0)")
    srd(a, 16, 4, W_BYTES)
    srd(a, 20, 6, W_BYTES)
    srd(a, 12, 8, XN_BYTES, WS_XN)

    def dma(stage, lo=0, hi=12):
        b = (stage % 3) * G1_STAGE
        if lo == 0:
            a(f"s_add_u32 m0, s35, {b}")
            a("s_nop 0")
            a("buffer_load_dwordx4 v12, s[16:19], s33 offen lds")
            a("buffer_load_dwordx4 v13, s[16:19], s33 offen offset:1024 lds")
            a(f"s_add_u32 m0, s35, {b+8192}")
            a("s_nop 0")
            a("buffer_load_dwordx4 v12, s[20:23], s33 offen lds")
            a("buffer_load_dwordx4 v13, s[20:23], s33 offen offset:1024 lds")
            a(f"s_add_u32 s33, s33, {64*2*F}")
        if hi == 12:
            a(f"s_add_u32 m0, s34, {b}")
            a("s_nop 0")
            for q in range(4):
                a(f"buffer_load_dwordx4 v{8+q}, s[12:15], s32 offen offset:{q*1024} lds")
            a(f"s_add_u32 m0, s34, {b+4096}")
            a("s_add_u32 s32, s32, 128")
            for q in range(4):
                a(f"buffer_load_dwordx4 v{8+q}, s[12:15], s36 offen offset:{q*1024} lds")
            a("s_add_u32 s36, s36, 128")

    dma(0)
    dma(1, 0, 4)
    for st in range(G1_NST):
        if st in (0, 3, 4):
            stamp(a)
        a(f"s_waitcnt vmcnt({4 if st == 0 else (12 if st + 1 < G1_NST else 0)})")
        if st in (0, 3, 4):
            stamp(a)
        a("s_barrier")
        if st in (3,):
            stamp(a)
        if st == 0:
            dma(1, 4, 12)
        if st + 2 < G1_NST:
            dma(st + 2)
    stamp_end(a, 1, 8)
    a("s_endpgm")


def gen_gemm1(a):
    stamp_begin(a)
    a(f"s_load_dwordx4 s[4:7], s[0:1], {KA_WG}")
    a(f"s_load_dwordx2 s[8:9], s[0:1], {KA_WS}")
    a("v_and_b32 v1, 63, v0")
    a("v_lshrrev_b32 v2, 6, v0")
    if G1_MAP:
        a("s_lshr_b32 s29, s2, 3")
        a("s_and_b32 s28, s2, 6")
        a("s_and_b32 s31, s29, 1")
        a("s_add_u32 s28, s28, s31")
        a("s_lshr_b32 s29, s29, 1")
        a("s_and_b32 s31, s2, 1")
        a("s_mul_i32 s31, s31, 11")
        a("s_add_u32 s29, s29, s31")
    else:
        a("s_and_b32 s28, s2, 7")
        a("s_lshr_b32 s29, s2, 3")
    a("v_readfirstlane_b32 s30, v2")
    a("s_cmp_lt_u32 s30, 4")
    a("s_cbranch_scc1 k2_g1_compute")
    gen_gemm1_loader(a)
    a.label("k2_g1_compute")
    if PRIO:
        a(f"s_setprio {PRIO}")
    _stamp_n[0] = 1 if PROF else 0
    a("v_and_b32 v3, 31, v1")
    a("v_lshrrev_b32 v4, 5, v1")
    a("v_lshrrev_b32 v5, 1, v3")
    a("v_and_b32 v5, 7, v5")
    a("v_xor_b32 v5, v5, v4")
    a("v_lshlrev_b32 v6, 7, v3")
    a("s_lshl_b32 s38, s30, 13")
    a("v_add_u32 v6, s38, v6")
    for ks in range(4):
        a(f"v_xor_b32 v7, {2*ks}, v5")
        a(f"v_lshl_add_u32 v{16+ks}, v7, 4, v6")
    a("v_and_b32 v5, 15, v1")
    a("v_lshrrev_b32 v6, 2, v5")
    a("v_and_b32 v5, 3, v5")
    a("v_lshrrev_b32 v7, 4, v1")
    a("v_and_b32 v7, 1, v7")
    a("v_and_b32 v13, 1, v5")
    a("v_lshlrev_b32 v13, 5, v13")
    a("v_lshl_add_u32 v13, v7, 4, v13")
    a("v_lshrrev_b32 v5, 1, v5")
    a("v_lshl_add_u32 v13, v5, 3, v13")
    a("v_lshrrev_b32 v5, 1, v6")
    a("v_lshl_add_u32 v13, v5, 6, v13")
    a("v_lshl_add_u32 v6, v4, 3, v6")
    a("v_lshl_add_u32 v13, v6, 7, v13")
    a(f"v_add_u32 v20, {G1_W}, v13")
    a("v_xor_b32 v21, 64, v20")
    a("v_mov_b32 v12, 0")
    HS = 144
    a(f"s_mul_i32 s39, s30, {64*HS}")
    a(f"v_mul_u32_u24 v22, {HS}, v3")
    a("v_lshl_add_u32 v22, v4, 5, v22")
    a("v_add_u32 v22, s39, v22")
    a("v_lshrrev_b32 v5, 3, v1")
    a("v_and_b32 v6, 7, v1")
    a(f"v_mul_u32_u24 v23, {HS}, v5")
    a("v_lshl_add_u32 v23, v6, 4, v23")
    a("v_add_u32 v23, s39, v23")
    a(f"v_mul_u32_u24 v14, {H_STRIDE}, v5")
    a("v_lshl_add_u32 v14, v6, 4, v14")
    a("s_lshl_b32 s40, s28, 8")
    a("s_lshl_b32 s41, s30, 6")
    a("s_add_u32 s40, s40, s41")
    a(f"s_mul_i32 s42, s40, {H_STRIDE}")
    a("s_lshl_b32 s43, s29, 7")
    a("s_add_u32 s42, s42, s43")
    a("s_waitcnt lgkmcnt(0)")
    srd(a, 24, 8, H_BYTES, WS_H)

    ACC = lambda w, ft, tt: 128 + 64 * w + 32 * ft + 16 * tt
    FS = [32, 56, 80, 104]

    def reads(n, f):
        ks = n & 3
        out = []
        for w in range(2):
            for ft in range(2):
                o = 8192 * w + ks * 2048
                out.append(f"ds_read_b64_tr_b16 {vr(f+8*w+4*ft,2)}, v{20+ft} offset:{o}")
                out.append(f"ds_read_b64_tr_b16 {vr(f+8*w+4*ft+2,2)}, v{20+ft} offset:{o+512}")
            out.append(f"ds_read_b128 {vr(f+16+4*w,4)}, v{16+ks} offset:{4096*w}")
        return out

    def mfma(n, f, w, ft, tt):
        c = vr(ACC(w, ft, tt), 16)
        return (f"v_mfma_f32_32x32x16_bf16 {c}, {vr(f+8*w+4*ft,4)}, {vr(f+16+4*tt,4)}, "
                f"{'0' if n == 0 else c}")

    def mfmas(n, f):
        return [mfma(n, f, w, ft, tt) for tt in range(2) for w in range(2) for ft in range(2)]

    def boundary(st):
        a("s_waitcnt lgkmcnt(0)")
        a("s_barrier")
        if st in (0, 6, 7):
            stamp(a)
        if st >= 1:
            delta = G1_STAGE if st % 3 else -2 * G1_STAGE
            for r in (16, 17, 18, 19, 20, 21):
                a(f"v_add_u32 v{r}, {delta & 0xffffffff:#x}, v{r}")

    LASTN = 4 * (G1_NST - 1)
    boundary(0)
    for op in reads(0, FS[0]):
        a(op)
    for n in range(LASTN):
        nx = n + 1
        if nx == LASTN:
            break
        if nx & 3 == 0:
            boundary(nx >> 2)
        else:
            a("s_waitcnt lgkmcnt(0)")
        rd = reads(nx, FS[nx & 1])
        cuts = [0, 3, 6, 8, 10, 10, 10, 10, 10]
        for i, m in enumerate(mfmas(n, FS[n & 1])):
            a(m)
            for op in rd[cuts[i]:cuts[i + 1]]:
                a(op)
    n = LASTN - 1
    boundary(G1_NST - 1)
    sets = {LASTN: FS[0], LASTN + 2: FS[2], LASTN + 3: FS[3], LASTN + 1: FS[1]}
    early = reads(LASTN, FS[0]) + reads(LASTN + 2, FS[2]) + reads(LASTN + 3, FS[3])
    mm = mfmas(n, FS[n & 1])
    for i, m in enumerate(mm):
        a(m)
        for op in early[4 * i:4 * i + 4]:
            a(op)
    for op in reads(LASTN + 1, FS[1]):
        a(op)

    def pair_epilogue(ft, tt):
        g, u = ACC(0, ft, tt), ACC(1, ft, tt)
        o = 4 if ft == 0 else 24
        out = []
        if EPI == "fused":
            for k in range(16):
                out.append(f"v_max_f32 v{g+k}, 0, v{g+k}")
            for k in range(16):
                out.append(f"v_mul_f32 v{g+k}, v{g+k}, v{u+k}")
            for k in range(8):
                out.append(f"v_cvt_pk_bf16_f32 v{o+k}, v{g+2*k}, v{g+2*k+1}")
                if k == 3:
                    out.append(f"ds_write_b128 v22, {vr(o,4)} offset:{32*HS*tt + 64*ft}")
            out.append(f"ds_write_b128 v22, {vr(o+4,4)} offset:{32*HS*tt + 64*ft + 16}")
            return out
        for k in range(8):
            out.append(f"v_cvt_pk_bf16_f32 v{g+2*k}, v{g+2*k}, v{g+2*k+1}")
            out.append(f"v_cvt_pk_bf16_f32 v{u+2*k}, v{u+2*k}, v{u+2*k+1}")
        for k in range(8):
            out.append(f"v_max_i16_sdwa v{g+2*k+1}, v{g+2*k}, v12 dst_sel:WORD_0 dst_unused:UNUSED_PAD "
                       "src0_sel:WORD_0 src1_sel:WORD_0")
            out.append(f"v_max_i16_sdwa v{u+2*k+1}, v{g+2*k}, v12 dst_sel:WORD_1 dst_unused:UNUSED_PAD "
                       "src0_sel:WORD_1 src1_sel:WORD_0")
        for k in range(8):
            out.append(f"v_dot2_f32_bf16 v{g+2*k+1}, v{g+2*k+1}, v{u+2*k}, 0")
            out.append(f"v_dot2_f32_bf16 v{u+2*k+1}, v{u+2*k+1}, v{u+2*k}, 0")
        for k in range(8):
            out.append(f"v_cvt_pk_bf16_f32 v{o+k}, v{g+2*k+1}, v{u+2*k+1}")
            if k == 3:
                out.append(f"ds_write_b128 v22, {vr(o,4)} offset:{32*HS*tt + 64*ft}")
        out.append(f"ds_write_b128 v22, {vr(o+4,4)} offset:{32*HS*tt + 64*ft + 16}")
        return out

    def flush(tt, regs):
        rd = [f"ds_read_b128 {vr(regs+4*i,4)}, v23 offset:{8*HS*(4*tt+i)}" for i in range(4)]
        st = []
        for i in range(4):
            st.append(f"s_waitcnt lgkmcnt({3-i})\n"
                      f"buffer_store_dwordx4 {vr(regs+4*i,4)}, v14, s[24:27], s42 offen{WT['h']}\n"
                      f"s_add_u32 s42, s42, {8*H_STRIDE}")
        return rd, st

    order = [(0, 0), (1, 0), (0, 1), (1, 1)]
    korder = [LASTN, LASTN + 2, LASTN + 3, LASTN + 1]
    a("s_waitcnt lgkmcnt(10)")
    for pi, (ft, tt) in enumerate(order):
        if pi < 3:
            stamp(a)
        mm = []
        for kn in korder:
            if pi == 0 and kn == LASTN + 1:
                mm.append("s_waitcnt lgkmcnt(0)\n" + mfma(kn, sets[kn], 0, ft, tt))
            else:
                mm.append(mfma(kn, sets[kn], 0, ft, tt))
            mm.append(mfma(kn, sets[kn], 1, ft, tt))
        fill = ["s_nop 8"] + pair_epilogue(*order[pi - 1]) if pi else []
        if pi == 3:
            rd, st = flush(0, ACC(1, 0, 0))
            fill = ["s_waitcnt lgkmcnt(0)"] + rd + fill[:33] + st + fill[33:]
        lead = 2
        per = -(-len(fill) // (len(mm) - lead)) if fill else 0
        for i, m in enumerate(mm):
            a(m)
            if i >= lead - 1 and fill:
                j = i - (lead - 1)
                for op in fill[j * per:(j + 1) * per]:
                    a(op)
    a("s_nop 15")
    stamp(a)
    for op in pair_epilogue(*order[3]):
        a(op)
    a("s_waitcnt lgkmcnt(0)")
    rd, st = flush(1, ACC(1, 0, 0))
    for op in rd + st:
        a(op)
    stamp_end(a, 1, 8)
    a("s_endpgm")


def gen_conv(a):
    stamp_begin(a)
    a(f"s_load_dwordx2 s[4:5], s[0:1], {KA_DSK}")
    a(f"s_load_dwordx2 s[8:9], s[0:1], {KA_WS}")
    a("v_and_b32 v1, 63, v0")
    a("v_lshrrev_b32 v2, 6, v0")
    a(f"s_sub_u32 s28, s2, {N_G1}")
    a("s_lshl_b32 s29, s28, 7")
    a("v_readfirstlane_b32 s30, v2")
    a("s_lshl_b32 s28, s28, 3")
    a("s_add_u32 s28, s28, s30")
    a(f"s_mul_i32 s31, s30, {CV_W}")
    a(f"s_add_u32 s31, s31, {CV_PW}")
    a(f"s_mul_i32 s32, s28, {KT_BYTES}")
    a("s_lshl_b32 s34, s28, 12")
    a("s_lshr_b32 s35, s28, 1")
    a("s_lshl_b32 s35, s35, 2")
    a("v_lshlrev_b32 v3, 4, v1")
    a("v_lshrrev_b32 v4, 3, v1")
    a("v_and_b32 v5, 7, v1")
    a("v_lshrrev_b32 v6, 4, v1")
    a(f"v_mul_u32_u24 v4, {XNT_STRIDE}, v4")
    for q in range(2):
        a(f"v_add_u32 v7, {4*q}, v6")
        a("v_xor_b32 v7, v7, v5")
        a(f"v_lshl_add_u32 v{8+q}, v7, 4, v4")
    a(f"v_add_u32 v9, {8*XNT_STRIDE - 1024}, v9")
    a(f"s_mul_i32 s44, s30, {32*XNT_STRIDE}")
    a("s_add_u32 s44, s44, s29")
    a(f"s_add_u32 s45, s44, {16*XNT_STRIDE - 2048}")
    a("s_lshl_b32 s47, s30, 12")
    a("s_waitcnt lgkmcnt(0)")
    a("s_load_dword s36, s[4:5], s35")
    srd(a, 12, 8, D * KT_BYTES, WS_KR)
    srd(a, 16, 8, XNT_BYTES, WS_XNT)
    srd(a, 20, 8, L * D * 2, WS_AT)
    for q, dst in ((2, CV_T), (0, 1600), (1, CV_O + 1600)):
        a(f"s_add_u32 m0, s31, {dst - q*1024}")
        a("s_nop 0")
        a(f"buffer_load_dwordx4 v3, s[12:15], s32 offen offset:{q*1024} lds")
    a("s_mov_b32 m0, s47")
    a("s_nop 0")
    a("buffer_load_dwordx4 v8, s[16:19], s44 offen lds")
    a("buffer_load_dwordx4 v9, s[16:19], s44 offen offset:1024 lds")
    a("buffer_load_dwordx4 v8, s[16:19], s45 offen offset:2048 lds")
    a("buffer_load_dwordx4 v9, s[16:19], s45 offen offset:3072 lds")
    pf = 1 if CODE_PF else 0
    if CODE_PF:
        a(f"s_sub_u32 s45, s2, {N_G1}")
        a("s_lshr_b32 s45, s45, 3")
        a("s_lshl_b32 s45, s45, 3")
        a("s_add_u32 s45, s45, s30")
        code_prefetch(a, "k3_kernel", "code_end", 45, 3, 252, 48)
    for r in range(4, 8):
        a(f"v_mov_b32 v{r}, 0")
    a(f"v_add_u32 v10, {CV_G}, v3")
    for lo, base in ((48, 0), (51, CV_O)):
        a(f"v_cmp_le_u32 vcc, {lo}, v1")
        a(f"v_add_u32 v11, {(base - 16*lo) & 0xffffffff:#x}, v3")
        a("s_nop 0")
        a("v_cndmask_b32 v10, v10, v11, vcc")
    a("v_add_u32 v10, s31, v10")
    a("v_cmp_le_u32 vcc, 54, v1")
    a(f"v_mov_b32 v15, {CV_ZB}")
    a("s_nop 0")
    a("v_cndmask_b32 v238, v10, v15, vcc")
    a("v_and_b32 v4, 15, v1")
    a("v_lshrrev_b32 v5, 4, v1")
    a("v_lshlrev_b32 v6, 3, v5")
    a("v_sub_u32 v6, v6, v4")
    a("v_lshlrev_b32 v6, 1, v6")
    a("v_add_u32 v6, s31, v6")
    a("v_and_b32 v7, 1, v4")
    a("v_cmp_eq_u32 vcc, 1, v7")
    a(f"v_mov_b32 v8, {CV_O + 2*1040}")
    a(f"v_mov_b32 v9, {2*1039}")
    a("v_cndmask_b32 v8, v8, v9, vcc")
    a("v_add_u32 v8, v6, v8")
    for P in range(2):
        a(f"v_subrev_u32 v{10+P}, {512*(2*P+1)+448}, v8")
    a("v_subrev_u32 v12, 2048, v8")
    a(f"v_mov_b32 v8, {CV_G + 192 + 2*62 - 96}")
    a(f"v_mov_b32 v9, {CV_G + 2*63 - 96}")
    a("v_cndmask_b32 v8, v8, v9, vcc")
    a("v_lshlrev_b32 v9, 3, v5")
    a("v_sub_u32 v6, v6, v9")
    a("v_add_u32 v13, v6, v8")

    def uaddr(dst, gran, tmp):
        a(f"v_lshrrev_b32 v{tmp}, 1, v{gran}")
        a(f"v_and_b32 v{tmp}, 7, v{tmp}")
        a(f"v_xor_b32 v{tmp}, s30, v{tmp}")
        a(f"v_lshlrev_b32 v{tmp}, 4, v{tmp}")
        a(f"v_lshl_add_u32 v{dst}, v{gran}, 7, v{tmp}")

    UB, UC = 16, 24
    a("v_lshl_add_u32 v6, v4, 1, v5")
    for rho in range(4):
        a(f"v_add_u32 v7, {14 - 4*rho}, v6")
        uaddr(UB + rho, 7, 8)
    for rho in range(8):
        a(f"v_cmp_gt_u32 vcc, {4*rho + 2}, v6")
        a(f"v_subrev_u32 v7, {4096 if rho >= 4 else 2048}, v{UB + (rho & 3)}")
        a("s_nop 0")
        a(f"v_cndmask_b32 v{UC+rho}, v7, v15, vcc")
    a("v_lshrrev_b32 v7, 1, v5")
    a("v_lshl_add_u32 v7, v4, 1, v7")
    uaddr(246, 7, 8)
    a("v_and_b32 v7, 1, v5")
    a("v_lshl_add_u32 v246, v7, 3, v246")
    a("v_lshlrev_b32 v247, 5, v4")
    a("v_lshl_add_u32 v247, v5, 3, v247")
    BND = 224
    a("v_lshlrev_b32 v8, 3, v5")
    a("v_mov_b32 v9, 0x7f")
    a("v_add_u32 v7, 5, v4")
    a("v_lshlrev_b32 v240, v7, v9")
    a("v_mov_b32 v9, 0x1ff")
    a("v_lshlrev_b32 v241, v4, v9")
    a("v_lshrrev_b32 v241, 4, v241")
    a("v_mov_b32 v9, 0xf0000000")
    a("v_lshlrev_b32 v242, v4, v9")
    a("s_mov_b32 s40, 0x3f803f80")
    a("s_mov_b32 s41, 0xffff")
    for b in range(3):
        a(f"v_lshrrev_b32 v{240+b}, v8, v{240+b}")
    for b in range(3):
        for k in range(4):
            a(f"v_bfe_i32 v7, v{240+b}, {2*k}, 1")
            a(f"v_bfe_i32 v9, v{240+b}, {2*k+1}, 1")
            a("v_bfi_b32 v7, s41, v7, v9")
            a(f"v_and_b32 v{BND+4*b+k}, s40, v7")
    a(f"s_add_u32 s38, s31, {CV_T}")
    a("v_lshlrev_b32 v7, 2, v1")
    a("v_sub_u32 v249, s38, v7")
    a("v_lshlrev_b32 v7, 3, v1")
    a("v_min_u32 v7, 248, v7")
    a("v_sub_u32 v250, s38, v7")
    a("v_lshlrev_b32 v7, 2, v1")
    a("v_add_u32 v243, s38, v7")
    a("v_add_u32 v248, s31, v3")
    a("v_cmp_eq_u32 s[52:53], 63, v1")
    a("v_lshlrev_b32 v7, 1, v1")
    a(f"s_add_u32 s39, s31, {CV_G + 126}")
    a("v_sub_u32 v251, s39, v7")
    a("v_add_u32 v245, 190, v251")
    a("v_mov_b32 v7, s38")
    a("v_cndmask_b32 v245, v245, v7, s[52:53]")
    a("s_mov_b32 s42, 0x03020302")
    a("s_mov_b32 s43, 0x01000100")

    ACC = 32
    SET = [64, 112]
    A32 = 216
    WS9, WS7 = 160, 176
    FB = 192
    UREG = 160

    def loads(rho):
        s = SET[rho & 1]
        out = []
        for m in range(8):
            if m == 0:
                out.append(f"ds_read_b128 {vr(s+16,4)}, v{UC+rho}")
            else:
                o = 4096 * (m - 1) + (2048 if rho < 4 else 0)
                out.append(f"ds_read_b128 {vr(s+16+4*m,4)}, v{UB+(rho&3)} offset:{o}")
            if m < 4:
                o = (64 * (7 - rho) + (0 if m & 1 else 512)) // 4
                out.append(f"ds_read2_b32 {vr(s+4*m,2)}, v{10+(m>>1)} offset0:{o} offset1:{o+1}")
                out.append(f"ds_read2_b32 {vr(s+4*m+2,2)}, v{10+(m>>1)} offset0:{o+2} offset1:{o+3}")
        if rho == 0:
            out.append(f"ds_read2_b32 {vr(A32,2)}, v12 offset0:0 offset1:1")
            out.append(f"ds_read2_b32 {vr(A32+2,2)}, v12 offset0:2 offset1:3")
        return out

    def mfma(rho, i, m):
        s = SET[rho & 1]
        c = vr(ACC + 4 * (i + m), 4)
        fa = A32 if i == 4 else s + 4 * i
        return (f"v_mfma_f32_16x16x32_bf16 {c}, {vr(fa,4)}, {vr(s+16+4*m,4)}, "
                f"{'0' if rho == 0 and i == 0 else c}")

    def mfmas(rho):
        out = [mfma(rho, i, m) for i in range(5 if rho == 0 else 4) for m in range(8 - i)]
        s = SET[rho & 1]
        if rho == 0:
            for t in range(4):
                out.append(f"v_mfma_f32_16x16x32_bf16 {vr(WS7+4*t,4)}, {vr(s+16+4*t,4)}, {vr(BND,4)}, 0")
                out.append(f"v_mfma_f32_16x16x32_bf16 {vr(WS9+4*t,4)}, {vr(s+16+4*t,4)}, {vr(BND+4,4)}, 0")
        if rho == 1:
            for t in range(4):
                c = vr(WS9 + 4 * t, 4)
                out.insert(2 * t, f"v_mfma_f32_16x16x32_bf16 {c}, {vr(s+16+4*t,4)}, {vr(BND+8,4)}, {c}")
        return out

    def window_pack():
        out = []
        for base in (WS9, WS7):
            for t in range(4):
                out.append(f"v_cvt_pk_bf16_f32 v{base+2*t}, v{base+4*t}, v{base+4*t+1}")
                out.append(f"v_cvt_pk_bf16_f32 v{base+2*t+1}, v{base+4*t+2}, v{base+4*t+3}")
        return out

    def far_loads(par):
        out = []
        for dl in range(4):
            o = (96 - 32 * dl + 384 * par) // 4
            out.append(f"ds_read2_b32 {vr(FB+4*dl,2)}, v13 offset0:{o} offset1:{o+1}")
            out.append(f"ds_read2_b32 {vr(FB+4*dl+2,2)}, v13 offset0:{o+8} offset1:{o+9}")
        return out

    def far_mfmas(par):
        out = []
        for tp in range(4):
            for kb in range(2 if tp >= 2 else 1):
                c = vr(ACC + 4 * (4 + tp), 4)
                out.append(f"v_mfma_f32_16x16x32_bf16 {c}, {vr((WS9, WS7)[par]+4*kb,4)}, "
                           f"{vr(FB+4*(tp-2*kb),4)}, {c}")
        return out

    def tile_epilogue(t):
        y = ACC + 4 * t
        u = UREG + 2 * t
        w = 2 if t & 1 else 208
        return [f"v_lshlrev_b32 v{w}, 16, v{u}",
                f"v_and_b32 v{w+1}, 0xffff0000, v{u}",
                f"v_lshlrev_b32 v{w+2}, 16, v{u+1}",
                f"v_and_b32 v{w+3}, 0xffff0000, v{u+1}",
                f"v_pk_mul_f32 {vr(w,2)}, {vr(w,2)}, s[36:37]",
                f"v_pk_mul_f32 {vr(w+2,2)}, {vr(w+2,2)}, s[36:37]",
                f"v_cvt_pk_bf16_f32 v{u}, v{w}, v{w+1}",
                f"v_cvt_pk_bf16_f32 v{u+1}, v{w+2}, v{w+3}",
                f"v_cvt_pk_bf16_f32 v{w+5}, v{y}, v{y+1}",
                f"v_cvt_pk_bf16_f32 v{w+7}, v{y+2}, v{y+3}",
                f"v_lshlrev_b32 v{w}, 16, v{u}",
                f"v_and_b32 v{w+1}, 0xffff0000, v{u}",
                f"v_lshlrev_b32 v{w+2}, 16, v{u+1}",
                f"v_and_b32 v{w+3}, 0xffff0000, v{u+1}",
                f"v_lshlrev_b32 v{w+4}, 16, v{w+5}",
                f"v_and_b32 v{w+5}, 0xffff0000, v{w+5}",
                f"v_lshlrev_b32 v{w+6}, 16, v{w+7}",
                f"v_and_b32 v{w+7}, 0xffff0000, v{w+7}",
                f"v_pk_add_f32 {vr(w,2)}, {vr(w,2)}, {vr(w+4,2)}",
                f"v_pk_add_f32 {vr(w+2,2)}, {vr(w+2,2)}, {vr(w+6,2)}",
                f"v_cvt_pk_bf16_f32 v{u}, v{w}, v{w+1}",
                f"v_cvt_pk_bf16_f32 v{u+1}, v{w+2}, v{w+3}",
                f"buffer_store_dwordx2 {vr(u,2)}, v247, s[20:23], s34 offen offset:{512*t}" + WT["at"]]

    def spread(mm, fill):
        per = -(-len(fill) // len(mm)) if fill else 0
        for i, m in enumerate(mm):
            a(m)
            for op in fill[i * per:(i + 1) * per]:
                a(op)

    stamp(a)
    a(f"s_waitcnt vmcnt({4 + pf}) lgkmcnt(0)")
    a("ds_read_b32 v180, v249 offset:508")
    a("ds_read_u16 v181, v249 offset:512")
    a("ds_read_b64 v[182:183], v250 offset:248")
    a("ds_read_u16 v184, v250 offset:256")
    a("ds_read_u16 v185, v243 offset:514")
    a("ds_read_u16 v186, v243 offset:516")
    a("v_mov_b32 v4, 0")
    a("v_mov_b32 v5, 0")
    a("v_mov_b32 v6, 0")
    a("v_mov_b32 v7, 0")
    a("ds_write_b128 v238, v[4:7]")
    a("s_and_b32 s44, s28, 1")
    a("s_lshl_b32 s45, s36, 16")
    a("s_and_b32 s36, s36, 0xffff0000")
    a("s_cmp_eq_u32 s44, 0")
    a("s_cselect_b32 s36, s45, s36")
    a("s_mov_b32 s37, s36")
    a("s_waitcnt lgkmcnt(5)")
    a("v_lshl_or_b32 v188, v181, 16, v181")
    a("v_perm_b32 v189, v180, v180, s42")
    a("v_alignbit_b32 v190, v180, v180, 16")
    a("v_perm_b32 v191, v180, v180, s43")
    a("v_mov_b32 v192, v188")
    a("v_bfi_b32 v193, s41, v181, v180")
    a("v_mov_b32 v194, v189")
    a("v_mov_b32 v195, v191")
    a("ds_write_b128 v248, v[188:191] offset:64")
    a(f"ds_write_b128 v248, v[192:195] offset:{CV_O + 64}")
    a("v_lshlrev_b32 v5, 16, v181")
    a("v_mov_b32 v6, v188")
    a("v_mov_b32 v7, v188")
    a("v_mov_b32 v8, 0")
    a("v_mov_b32 v9, 0")
    a("v_mov_b32 v196, 0")
    a("v_mov_b32 v197, 0")
    a("v_mov_b32 v198, v188")
    a("v_mov_b32 v199, v188")
    a("s_mov_b64 s[54:55], exec")
    a("s_mov_b64 exec, 1")
    a("ds_write_b128 v248, v[4:7] offset:48")
    a(f"ds_write_b128 v248, v[196:199] offset:{CV_O + 48}")
    a("s_mov_b64 exec, s[54:55]")
    a("s_waitcnt lgkmcnt(7)")
    a("v_bfi_b32 v200, s41, v184, v183")
    a("v_perm_b32 v201, v183, v183, s43")
    a("v_bfi_b32 v202, s41, v183, v182")
    a("v_perm_b32 v203, v182, v182, s43")
    a("v_lshl_or_b32 v204, v184, 16, v184")
    a("v_alignbit_b32 v205, v183, v183, 16")
    a("v_mov_b32 v206, v201")
    a("v_alignbit_b32 v207, v182, v182, 16")
    a("s_mov_b32 exec_hi, 0")
    a(f"ds_write_b128 v248, v[200:203] offset:{68*16}")
    a(f"ds_write_b128 v248, v[204:207] offset:{CV_O + 68*16}")
    a("s_mov_b64 exec, s[54:55]")
    a("s_waitcnt lgkmcnt(7)")
    a("ds_write_b16 v251, v186")
    a("ds_write_b16 v245, v186")
    a("ds_write_b16 v251, v185 offset:384")
    a("ds_write_b16 v245, v185 offset:384")
    a(f"s_waitcnt vmcnt({pf}) lgkmcnt(0)")
    a("s_barrier")
    stamp(a)
    for op in loads(0):
        a(op)
    for rho in range(7):
        a("s_waitcnt lgkmcnt(0)")
        fill = loads(rho + 1)
        mm = mfmas(rho)
        if rho == 2:
            fill = window_pack() + fill + far_loads(0)
        elif rho == 3:
            mm = far_mfmas(0) + mm
            fill = fill + far_loads(1)
        elif rho == 4:
            mm = far_mfmas(1) + mm
        elif rho == 6:
            fill = fill + [f"ds_read_b64 {vr(UREG+2*t,2)}, v246 offset:{4096*t}" for t in range(8)]
        spread(mm, fill)
    a("s_waitcnt lgkmcnt(0)")
    seq = {t: [mfma(7, i, t - i) for i in range(min(t, 3) + 1)] for t in range(8)}
    for op in seq[0] + seq[1] + seq[2] + seq[3]:
        a(op)
    spread(seq[4] + seq[5], tile_epilogue(0) + tile_epilogue(1))
    spread(seq[6] + seq[7], tile_epilogue(2) + tile_epilogue(3))
    stamp(a)
    for op in interleave(tile_epilogue(4), tile_epilogue(5)) + interleave(tile_epilogue(6), tile_epilogue(7)):
        a(op)
    stamp_end(a, 1, 8)
    a("s_endpgm")


def gen_relayout(a):
    a(f"s_load_dwordx2 s[4:5], s[0:1], {KA_WD}")
    a(f"s_load_dwordx2 s[8:9], s[0:1], {KA_WS}")
    a("v_and_b32 v1, 63, v0")
    a("v_lshrrev_b32 v2, 6, v0")
    a(f"s_sub_u32 s28, s2, {N_G1 + N_CV}")
    a("s_mul_i32 s28, s28, 88")
    a("v_readfirstlane_b32 s30, v2")
    a("v_lshlrev_b32 v3, 4, v1")
    a("s_add_u32 s28, s28, s30")
    a("s_lshr_b32 s31, s28, 1")
    a("s_and_b32 s31, s31, 1")
    a("s_lshl_b32 s31, s31, 2")
    a("v_and_b32 v4, 7, v1")
    a("v_xor_b32 v4, s31, v4")
    a("v_lshrrev_b32 v5, 3, v1")
    a(f"s_mov_b32 s32, {WDT_TILE}")
    a("v_mul_lo_u32 v5, v5, s32")
    a("v_lshl_add_u32 v4, v4, 4, v5")
    a("s_lshl_b32 s33, s28, 10")
    a("s_lshl_b32 s34, s28, 7")
    a("s_waitcnt lgkmcnt(0)")
    srd(a, 12, 4, W_BYTES)
    srd(a, 16, 8, 8 * WDT_TILE, WS_WDT)
    for i in range(11):
        a(f"buffer_load_dwordx4 {vr(8+4*i,4)}, v3, s[12:15], s33 offen")
        a("s_add_u32 s33, s33, 8192")
    a("s_waitcnt vmcnt(0)")
    for i in range(11):
        a(f"buffer_store_dwordx4 {vr(8+4*i,4)}, v4, s[16:19], s34 offen offset:{(i%4)*1024}" + WT["wdt"])
        if i % 4 == 3:
            a("s_add_u32 s34, s34, 4096")
    a("s_endpgm")


def gen_k2(a):
    a.raw(".p2align 8")
    a.label("k2_kernel")
    a(f"s_cmp_ge_u32 s2, {N_G1 + N_CV + N_RL}")
    a("s_cbranch_scc1 k2_exit")
    a(f"s_cmp_ge_u32 s2, {N_G1 + N_CV}")
    a("s_cbranch_scc1 k2_relayout")
    a(f"s_cmp_ge_u32 s2, {N_G1}")
    a("s_cbranch_scc1 k2_conv")
    gen_gemm1(a)
    a.label("k2_conv")
    gen_conv(a)
    a.label("k2_relayout")
    gen_relayout(a)
    a.label("k2_exit")
    a("s_endpgm")


N_G2 = 256
G2_NS = 8
G2_STAGE = 16384
G2_AT = G2_NS * G2_STAGE
G2_OUT = G2_AT + 8192
K3_LDS = G2_OUT
OUT_STAGE = False
G2_NST = FP // 64
G2_LEAD = 3
AT_AFTER = 3
AT_ST = 10
X_AT = -1


def gen_k3(a):
    a.raw(".p2align 8")
    a.label("k3_kernel")
    a(f"s_cmp_ge_u32 s2, {N_G2}")
    a("s_cbranch_scc1 k3_exit")
    stamp_begin(a)
    a(f"s_load_dwordx2 s[4:5], s[0:1], {KA_U}")
    a(f"s_load_dwordx4 s[8:11], s[0:1], {KA_WD}")
    a(f"s_load_dwordx2 s[6:7], s[0:1], {KA_WS}")
    a("v_and_b32 v1, 63, v0")
    a("v_lshrrev_b32 v2, 6, v0")
    if G2_MAP == 0:
        a("s_and_b32 s32, s2, 7")
        a("s_lshr_b32 s33, s2, 3")
        a("s_lshl_b32 s32, s32, 8")
        a("s_and_b32 s35, s33, 3")
        a("s_lshl_b32 s35, s35, 6")
        a("s_add_u32 s32, s32, s35")
        a("s_lshr_b32 s33, s33, 2")
        a("s_lshl_b32 s33, s33, 6")
    else:
        a("s_and_b32 s32, s2, 6")
        a("s_lshr_b32 s33, s2, 3")
        a("s_lshl_b32 s32, s32, 8")
        a("s_and_b32 s35, s33, 7")
        a("s_lshl_b32 s35, s35, 6")
        a("s_add_u32 s32, s32, s35")
        a("s_lshr_b32 s33, s33, 3")
        a("s_and_b32 s35, s2, 1")
        a("s_lshl_b32 s35, s35, 2")
        a("s_add_u32 s33, s33, s35")
        a("s_lshl_b32 s33, s33, 6")
    a("v_readfirstlane_b32 s34, v2")
    a("s_cmp_lt_u32 s34, 4")
    a("s_cbranch_scc1 k3_compute")
    a("s_sub_u32 s34, s34, 4")
    a("v_lshrrev_b32 v3, 3, v1")
    a("v_and_b32 v4, 7, v1")
    a("v_lshrrev_b32 v5, 4, v1")
    a(f"v_mul_u32_u24 v7, {H_STRIDE}, v3")
    a("s_lshl_b32 s36, s34, 2")
    a("v_add_u32 v6, s36, v5")
    a("v_and_b32 v6, 7, v6")
    a("v_xor_b32 v6, v6, v4")
    a("v_lshl_add_u32 v8, v6, 4, v7")
    a("v_and_b32 v6, 1, v5")
    a("v_lshlrev_b32 v6, 2, v6")
    a("v_xor_b32 v6, v6, v4")
    a("v_lshlrev_b32 v6, 4, v6")
    a("v_lshlrev_b32 v10, 4, v1")
    a("v_lshl_add_u32 v12, v3, 12, v6")
    a("s_lshl_b32 s36, s34, 3")
    a("s_add_u32 s37, s36, s32")
    a(f"s_mul_i32 s37, s37, {H_STRIDE}")
    a(f"s_mul_i32 s38, s33, {WDT_TILE // 64}")
    a("s_lshl_b32 s39, s34, 10")
    a("s_add_u32 s38, s38, s39")
    a("s_add_u32 s39, s36, s33")
    a("s_lshl_b32 s39, s39, 12")
    a("s_lshl_b32 s40, s32, 1")
    a("s_add_u32 s39, s39, s40")
    a("s_lshl_b32 s40, s34, 10")
    a("s_waitcnt lgkmcnt(0)")
    srd(a, 16, 6, 8 * WDT_TILE, WS_WDT)
    srd(a, 12, 6, H_BYTES, WS_H)
    srd(a, 20, 6, L * D * 2, WS_AT)

    def dma(stage):
        b = (stage % G2_NS) * G2_STAGE
        a(f"s_add_u32 m0, s40, {b+8192}")
        a("s_nop 0")
        a("buffer_load_dwordx4 v10, s[16:19], s38 offen lds")
        a(f"s_add_u32 m0, s40, {b}")
        a("s_add_u32 s38, s38, 8192")
        a("buffer_load_dwordx4 v8, s[12:15], s37 offen lds")
        a("s_add_u32 s37, s37, 128")

    issued = 0
    for st in range(G2_NST):
        want = min(G2_NST - 1, 2 * st + 2, st + G2_LEAD)
        while issued <= want:
            dma(issued)
            if issued == AT_AFTER:
                a(f"s_add_u32 m0, s40, {G2_AT}")
                a("s_nop 0")
                a("buffer_load_dwordx4 v12, s[20:23], s39 offen lds")
            issued += 1
        vm = 2 * (issued - 1 - st) + (1 if st <= AT_AFTER < issued else 0)
        if st in (0, 8, 16):
            stamp(a)
        a(f"s_waitcnt vmcnt({vm})")
        a("s_barrier")
    stamp_end(a, 2, 6)
    a("s_endpgm")
    a.label("k3_compute")
    if PRIO:
        a(f"s_setprio {PRIO}")
    _stamp_n[0] = 1 if PROF else 0
    a("s_and_b32 s41, s34, 1")
    a("s_lshr_b32 s42, s34, 1")
    a("v_and_b32 v3, 31, v1")
    a("v_lshrrev_b32 v4, 5, v1")
    a("s_lshl_b32 s43, s41, 5")
    a("s_add_u32 s43, s43, s32")
    a("v_add_u32 v14, s43, v3")
    a("v_lshlrev_b32 v14, 10, v14")
    a("v_lshl_add_u32 v14, v4, 5, v14")
    a("s_lshl_b32 s44, s42, 5")
    a("s_add_u32 s44, s44, s33")
    a("s_lshl_b32 s44, s44, 1")
    a("v_lshrrev_b32 v5, 1, v3")
    a("v_and_b32 v5, 7, v5")
    a("v_xor_b32 v5, v5, v4")
    a("v_lshlrev_b32 v6, 7, v3")
    a("s_lshl_b32 s45, s41, 12")
    a("v_add_u32 v6, s45, v6")
    for ks in range(4):
        a(f"v_xor_b32 v7, {2*ks}, v5")
        a(f"v_lshl_add_u32 v{16+ks}, v7, 4, v6")
    a("v_and_b32 v5, 15, v1")
    a("v_lshrrev_b32 v6, 2, v5")
    a("v_and_b32 v5, 3, v5")
    a("v_lshrrev_b32 v7, 4, v1")
    a("v_and_b32 v7, 1, v7")
    a("v_lshlrev_b32 v21, 3, v5")
    a("v_lshl_add_u32 v21, v7, 5, v21")
    a("v_lshrrev_b32 v22, 1, v6")
    a("v_xor_b32 v23, s41, v22")
    a("v_lshl_add_u32 v21, v23, 6, v21")
    a("v_lshl_add_u32 v23, v4, 4, v6")
    a("v_lshl_add_u32 v21, v23, 7, v21")
    a("s_lshl_b32 s45, s42, 12")
    a(f"s_add_u32 s45, s45, {G2_AT}")
    a("v_add_u32 v21, s45, v21")
    a("v_and_b32 v15, 1, v5")
    a("v_lshlrev_b32 v15, 5, v15")
    a("v_lshl_add_u32 v15, v7, 4, v15")
    a("v_lshrrev_b32 v5, 1, v5")
    a("v_lshl_add_u32 v15, v5, 3, v15")
    a("v_xor_b32 v22, s42, v22")
    a("v_lshl_add_u32 v15, v22, 6, v15")
    a("v_lshl_add_u32 v6, v4, 3, v6")
    a("v_lshl_add_u32 v15, v6, 7, v15")
    a("v_add_u32 v20, 8192, v15")
    if OUT_STAGE:
        a("s_lshl_b32 s45, s41, 5")
        a("v_add_u32 v8, s45, v3")
        a("v_mul_u32_u24 v8, 144, v8")
        a("v_lshl_add_u32 v8, v4, 5, v8")
        a("s_lshl_b32 s45, s42, 6")
        a(f"s_add_u32 s45, s45, {G2_OUT}")
        a("v_add_u32 v8, s45, v8")
        a("v_lshrrev_b32 v10, 3, v1")
        a("v_and_b32 v11, 7, v1")
        a("v_mul_u32_u24 v9, 144, v10")
        a("v_lshl_add_u32 v9, v11, 4, v9")
        a(f"s_mul_i32 s45, s34, {16*144}")
        a(f"s_add_u32 s45, s45, {G2_OUT}")
        a("v_add_u32 v9, s45, v9")
        a("v_lshlrev_b32 v10, 10, v10")
        a("v_lshl_add_u32 v10, v11, 4, v10")
        a("s_lshl_b32 s46, s34, 4")
        a("s_add_u32 s46, s46, s32")
        a("s_lshl_b32 s46, s46, 10")
        a("s_lshl_b32 s47, s33, 1")
        a("s_add_u32 s46, s46, s47")
        a("s_add_u32 s47, s46, 8192")
    a("s_waitcnt lgkmcnt(0)")
    srd(a, 24, 4, L * D * 2)
    srd(a, 28, 10, L * D * 2)
    xload = ["buffer_load_dwordx4 v[24:27], v14, s[24:27], s44 offen",
             "buffer_load_dwordx4 v[28:31], v14, s[24:27], s44 offen offset:16"]
    if X_AT < 0:
        for op in xload:
            a(op)

    ACC = 32
    FS = [48, 80]
    XA = 112
    ATR = 128

    def reads(st):
        f = FS[st & 1]
        o = (st % 4) * G2_STAGE
        out = []
        for ks in range(4):
            out.append(f"ds_read_b64_tr_b16 {vr(f+8*ks,2)}, v20 offset:{o+ks*2048}")
            out.append(f"ds_read_b64_tr_b16 {vr(f+8*ks+2,2)}, v20 offset:{o+ks*2048+512}")
            out.append(f"ds_read_b128 {vr(f+8*ks+4,4)}, v{16+ks} offset:{o}")
        return out

    def mfmas(st):
        f = FS[st & 1]
        c = vr(ACC, 16)
        return [f"v_mfma_f32_32x32x16_bf16 {c}, {vr(f+8*ks,4)}, {vr(f+8*ks+4,4)}, "
                f"{'0' if st == 0 and ks == 0 else c}" for ks in range(4)]

    def xa_ops(k):
        x, t = XA + 2 * k, 4
        return [f"v_lshlrev_b32 v{x}, 16, v{24+k}",
                f"v_and_b32 v{x+1}, 0xffff0000, v{24+k}",
                f"v_lshlrev_b32 v{t}, 16, v{ATR+k}",
                f"v_and_b32 v{t+1}, 0xffff0000, v{ATR+k}",
                f"v_pk_add_f32 {vr(x,2)}, {vr(x,2)}, {vr(t,2)}",
                f"v_cvt_pk_bf16_f32 v{x+1}, v{x}, v{x+1}",
                f"v_lshlrev_b32 v{x}, 16, v{x+1}",
                f"v_and_b32 v{x+1}, 0xffff0000, v{x+1}"]

    for st in range(-1, G2_NST):
        nx = st + 1
        body = []
        if nx < G2_NST:
            if nx in (0, 8, 16):
                stamp(a)
            a("s_waitcnt lgkmcnt(0)" if nx != AT_ST + 1 else "s_waitcnt vmcnt(0) lgkmcnt(0)")
            a("s_barrier")
            if nx and nx % 4 == 0:
                delta = 65536 if (nx % G2_NS) == 4 else -65536
                for r in (16, 17, 18, 19, 20):
                    a(f"v_add_u32 v{r}, {delta & 0xffffffff:#x}, v{r}")
            body = reads(nx)
            if nx == X_AT:
                body += xload
            if nx == AT_ST:
                body += [f"ds_read_b64_tr_b16 {vr(ATR+2*i,2)}, v21 offset:{512*i}" for i in range(4)]
        else:
            a("s_waitcnt lgkmcnt(0)")
        if st >= 0:
            body = interleave(body, mfmas(st), every=3) if body else mfmas(st)
        if AT_ST < nx <= AT_ST + 4:
            k = 2 * (nx - AT_ST - 1)
            body += xa_ops(k) + xa_ops(k + 1)
        for op in body:
            a(op)
    a("s_nop 15")
    stamp(a)
    for k in range(8):
        a(f"v_cvt_pk_bf16_f32 v{48+k}, v{ACC+2*k}, v{ACC+2*k+1}")
    for k in range(8):
        a(f"v_lshlrev_b32 v{ACC+2*k}, 16, v{48+k}")
        a(f"v_and_b32 v{ACC+2*k+1}, 0xffff0000, v{48+k}")
    for k in range(8):
        a(f"v_pk_add_f32 {vr(ACC+2*k,2)}, {vr(ACC+2*k,2)}, {vr(XA+2*k,2)}")
    for k in range(8):
        a(f"v_cvt_pk_bf16_f32 v{56+k}, v{ACC+2*k}, v{ACC+2*k+1}")
        if k == 3:
            a("ds_write_b128 v8, v[56:59]" if OUT_STAGE else
              "buffer_store_dwordx4 v[56:59], v14, s[28:31], s44 offen" + WT["out"])
    if OUT_STAGE:
        a("ds_write_b128 v8, v[60:63] offset:16")
        a("s_waitcnt lgkmcnt(0)")
        a("s_barrier")
        a("ds_read_b128 v[64:67], v9")
        a(f"ds_read_b128 v[68:71], v9 offset:{8*144}")
        a("s_waitcnt lgkmcnt(1)")
        a("buffer_store_dwordx4 v[64:67], v10, s[28:31], s46 offen" + WT["out"])
        a("s_waitcnt lgkmcnt(0)")
        a("buffer_store_dwordx4 v[68:71], v10, s[28:31], s47 offen" + WT["out"])
    else:
        a("buffer_store_dwordx4 v[60:63], v14, s[28:31], s44 offen offset:16" + WT["out"])
    stamp_end(a, 2, 6)
    a.label("k3_exit")
    a("s_endpgm")


def gen_k4(a):
    a.raw(".p2align 8")
    a.label("k4_kernel")
    a("s_cmp_ge_u32 s2, 1")
    a("s_cbranch_scc1 k4_exit")
    a(f"s_load_dwordx4 s[4:7], s[0:1], {KA_DBG}")
    a("s_memrealtime s[20:21]")
    a("s_waitcnt lgkmcnt(0)")
    srd(a, 8, 6, 0x1000000, PROF_BASE)
    srd(a, 12, 4, 256)
    groups = [(0, 0, 256, 0, 4), (0, 0, 256, 4, 8), (1, 0, 176, 0, 4), (1, 176, 240, 0, 8), (2, 0, 256, 0, 4)]
    for gi, (l, lo, hi, w0, w1) in enumerate(groups):
        a("v_mov_b32 v4, -1")
        a("v_mov_b32 v5, 0")
        for base in range(lo, hi, 64):
            n = min(64, hi - base)
            a(f"v_min_u32 v2, {n-1}, v0")
            a(f"v_add_u32 v2, {l*512 + base}, v2")
            a("v_lshlrev_b32 v2, 10, v2")
            for w in range(w0, w1):
                a(f"buffer_load_dwordx2 {vr(8+2*(w-w0),2)}, v2, s[8:11], 0 offen offset:{64*w}")
            a("s_waitcnt vmcnt(0)")
            for w in range(w0, w1):
                a(f"v_min_u32 v4, v4, v{8+2*(w-w0)}")
                a(f"v_max_u32 v5, v5, v{9+2*(w-w0)}")
        a("s_mov_b32 s22, -1")
        a("s_mov_b32 s23, 0")
        for ln in range(64):
            a(f"v_readlane_b32 s24, v4, {ln}")
            a(f"v_readlane_b32 s25, v5, {ln}")
            a("s_nop 1")
            a("s_min_u32 s22, s22, s24")
            a("s_max_u32 s23, s23, s25")
        a(f"s_mov_b32 s{30+2*gi}, s22")
        a(f"s_mov_b32 s{31+2*gi}, s23")
    a("v_mov_b32 v3, 0")
    for i in range(10):
        a(f"s_sub_u32 s24, s{30+i}, s30")
        a("v_mov_b32 v6, s24")
        a(f"buffer_store_dword v6, v3, s[12:15], 0 offen offset:{4*i}")
        a("s_nop 1")
    a("s_sub_u32 s24, s20, s30")
    a("v_mov_b32 v6, s24")
    a("buffer_store_dword v6, v3, s[12:15], 0 offen offset:40")
    if SPIN:
        hi, lo = SPIN
        a("s_max_u32 s31, s31, s33")
        a("s_min_u32 s34, s34, s36")
        a("s_max_u32 s35, s35, s37")
        a(f"s_sub_u32 s24, s{hi}, s{lo}")
        a("s_min_u32 s24, s24, 3000")
        a("s_lshl_b32 s24, s24, 2")
        a("s_memrealtime s[26:27]")
        a("s_waitcnt lgkmcnt(0)")
        a("s_add_u32 s24, s24, s26")
        a.label("k4_spin")
        a("s_memrealtime s[26:27]")
        a("s_waitcnt lgkmcnt(0)")
        a("s_sub_u32 s25, s24, s26")
        a("s_cmp_gt_i32 s25, 0")
        a("s_cbranch_scc1 k4_spin")
    a.label("k4_exit")
    a("s_endpgm")


def descriptor(name, vgpr, sgpr):
    acc = (vgpr + 3) // 4 * 4
    return f""".p2align 6
.amdhsa_kernel {name}
  .amdhsa_next_free_vgpr {vgpr}
  .amdhsa_next_free_sgpr {sgpr}
  .amdhsa_accum_offset {acc}
  .amdhsa_group_segment_fixed_size 0
  .amdhsa_kernarg_size 112
  .amdhsa_user_sgpr_count 2
  .amdhsa_user_sgpr_kernarg_segment_ptr 1
  .amdhsa_system_sgpr_workgroup_id_x 1
.end_amdhsa_kernel
"""


HEADER = """
out = x + (S4D causal conv(xn) + xn*D) + ReGLU-MLP(xn), xn = LayerNorm(x); bf16 rounding points follow the reference.
kernarg: A_u, log_A_real, A_imag, C_real, C_imag, log_dt, D_skip, B_x, W_gate, W_up, W_down, out, dbg, ws
k1: waves 0-3 build the S4D kernel table of 2 channels (exp(a*p) factorised as X[hi] * Y[lo], summed over n by MFMA,
    only the 641 positions a bf16 index can take); waves 4-7 LayerNorm 8 rows -> xn and time-blocked xn^T.
k2: WGs 0-175 gate/up GEMM (256 x 64 tiles, 4 MFMA waves + 4 LDS-DMA waves) -> h; WGs 176-239 causal convolution,
    one channel per wave, Toeplitz fragments by MFMA (taps >= 1029 through exact window sums, K is constant over
    each bf16 rounding group); WGs 240-255 rewrite W_down tile by tile.
k3: down GEMM (64 x 64 tiles, 4 MFMA waves + 8 LDS-DMA waves) and the final sum.
"""


def main(path):
    a = Asm()
    for ln in HEADER.strip("\n").split("\n"):
        a.raw(("; " + ln).rstrip())
    a.raw(f"; @launch kernel=k1_kernel grid=({N_K1},1,1) block=(512,1,1) lds={K1_LDS}")
    a.raw(f"; @launch kernel=k2_kernel grid=({N_G1+N_CV+N_RL},1,1) block=(512,1,1) lds={K2_LDS}")
    a.raw(f"; @launch kernel=k3_kernel grid=({N_G2},1,1) block=(768,1,1) lds={K3_LDS}")
    if K4:
        a.raw("; @launch kernel=k4_kernel grid=(1,1,1) block=(64,1,1) lds=0")
    a.raw('.amdgcn_target "amdgcn-amd-amdhsa--gfx950"')
    a.raw(".text")
    for k in ("k1_kernel", "k2_kernel", "k3_kernel") + (("k4_kernel",) if K4 else ()):
        a.raw(f".globl {k}")
        a.raw(f".type {k},@function")
    gen_k1(a)
    gen_k2(a)
    gen_k3(a)
    a.label("code_end")
    if K4:
        gen_k4(a)
    a.raw('.section .rodata,"a"')
    if K4:
        a.raw(descriptor("k4_kernel", 32, 48))
    sg = 102 if PROF else 0
    a.raw(descriptor("k1_kernel", 164, max(sg, 74)))
    a.raw(descriptor("k2_kernel", 256, max(sg, 56)))
    a.raw(descriptor("k3_kernel", 136, max(sg, 56)))
    open(path, "w").write(a.text())


if __name__ == "__main__":
    for arg in list(sys.argv):
        if arg.startswith("--prio="):
            PRIO = int(arg[7:])
            sys.argv.remove(arg)
        if arg.startswith("--g2map="):
            G2_MAP = int(arg[8:])
            sys.argv.remove(arg)
        if arg.startswith("--lead="):
            G2_LEAD = int(arg[7:])
            sys.argv.remove(arg)
        if arg == "--nooutstage":
            OUT_STAGE = False
            sys.argv.remove(arg)
        if arg.startswith("--pf="):
            PF_MODE = arg[5:]
            sys.argv.remove(arg)
        if arg.startswith("--late="):
            X_AT, AT_AFTER, AT_ST = (int(x) for x in arg[7:].split(","))
            sys.argv.remove(arg)
        if arg.startswith("--spin="):
            SPIN = tuple(int(x) for x in arg[7:].split(","))
            sys.argv.remove(arg)
        if arg.startswith("--wt="):
            flag, names = arg[5:].split(":")
            for nm in names.split(","):
                WT[nm] = (" " + flag.replace("+", " ")).rstrip()
            sys.argv.remove(arg)
        if arg.startswith("--epi="):
            EPI = arg[6:]
            sys.argv.remove(arg)
    if "--nocodepf" in sys.argv:
        sys.argv.remove("--nocodepf")
        CODE_PF = False
    if "--notouch" in sys.argv:
        sys.argv.remove("--notouch")
        TOUCH = False
    if "--k4" in sys.argv:
        sys.argv.remove("--k4")
        K4 = PROF = True
    if "--prof" in sys.argv:
        sys.argv.remove("--prof")
        PROF = True
    main(sys.argv[1] if len(sys.argv) > 1 else f"cdna_kernels/{NAME}.s")
```
